```python
import torch

def _softmax(x, axis=-1):
    return torch.softmax(x, dim=axis)

def _gelu(x):
    return torch.nn.functional.gelu(x, approximate='tanh')

def _silu(x):
    return torch.nn.functional.silu(x)

def _sigmoid(x):
    return torch.sigmoid(x)

def _layernorm(x, axis=-1, eps=1e-05):
    m = x.mean(dim=axis, keepdim=True)
    v = x.var(dim=axis, keepdim=True, unbiased=False)
    return (x - m) / torch.sqrt(v + eps)

def _scatter_add(tgt, idx, src, axis=0):
    return tgt.clone().index_add_(axis, idx, src)

def _segment_sum(src, seg, n):
    out = torch.zeros((n,) + src.shape[1:], dtype=src.dtype)
    return out.index_add_(0, seg, src)

def _pad(x, pw):
    flat = tuple((v for pair in reversed(pw) for v in pair))
    return torch.nn.functional.pad(x, flat)
kernel_name = 'adaLN_cond__gqa_block_cached__glu_gated_bilinear__decode'

def setup_inputs():

    _w = lambda a: (lambda t: t.to(torch.bfloat16) if t.is_floating_point() else t)(torch.as_tensor(a))

    def _A_setup():
        B, Sq, D = (4, 1, 640)
        Hq, Hkv, Sk, Dh = (32, 32, 4096, 192)
        assert Hq % Hkv == 0, (Hq, Hkv)
        return {'x': _w((lambda *s: torch.randn(*s, dtype=torch.bfloat16) * 0.1)(B, Sq, D)), 'k_cache': _w((lambda *s: torch.randn(*s, dtype=torch.bfloat16) * 0.8)(B, Hkv, Sk, Dh)), 'v_cache': _w((lambda *s: torch.randn(*s, dtype=torch.bfloat16) * 3.2)(B, Hkv, Sk, Dh)), 'wq': _w((lambda *s: torch.randn(*s, dtype=torch.bfloat16) * 0.8)(D, Hq * Dh) * D ** (-0.5)), 'wo': _w((lambda *s: torch.randn(*s, dtype=torch.bfloat16) * 3.2)(Hq * Dh, D) * (Hq * Dh) ** (-0.5))}
    _A_in = _A_setup()

    def _B_setup():
        B, S, D, F = (4, 1, 640, 1536)
        return {'x': _w((lambda *s: torch.randn(*s, dtype=torch.bfloat16) * 0.1)(B, S, D)), 'w_gate': _w((lambda *s: torch.randn(*s, dtype=torch.bfloat16) * 3.2)(D, F) * D ** (-0.5)), 'w_up': _w((lambda *s: torch.randn(*s, dtype=torch.bfloat16) * 3.2)(D, F) * D ** (-0.5)), 'w_down': _w((lambda *s: torch.randn(*s, dtype=torch.bfloat16) * 3.2)(F, D) * F ** (-0.5))}
    _B_in = _B_setup()
    return {'A_x': _A_in['x'], 'A_k_cache': _A_in['k_cache'], 'A_v_cache': _A_in['v_cache'], 'A_wq': _A_in['wq'], 'A_wo': _A_in['wo'], 'B_x': _B_in['x'], 'B_w_gate': _B_in['w_gate'], 'B_w_up': _B_in['w_up'], 'B_w_down': _B_in['w_down'], 'c': _w((lambda *s: torch.randn(*s, dtype=torch.bfloat16) * 0.4)(4, 640) * 8.0), 'w_mod': _w((lambda *s: torch.randn(*s, dtype=torch.bfloat16) * 0.4)(640, 6 * 640) * 640 ** (-0.5) * 8.0)}

def reference(A_x, A_k_cache, A_v_cache, A_wq, A_wo, B_x, B_w_gate, B_w_up, B_w_down, c, w_mod):

    def _A_ref(x, k_cache, v_cache, wq, wo):
        B, Sq, D = x.shape
        Hq, Dh = (32, 192)
        Hkv = k_cache.shape[1]
        rep = Hq // Hkv
        q = (lambda x, *d: x.permute(*d))((x @ wq).reshape(B, Sq, Hq, Dh), 0, 2, 1, 3)
        k = (lambda x, n, axis: torch.repeat_interleave(x, n, dim=axis))(k_cache, rep, axis=1)
        v = (lambda x, n, axis: torch.repeat_interleave(x, n, dim=axis))(v_cache, rep, axis=1)
        scores = torch.einsum('bhqd,bhkd->bhqk', q, k) * Dh ** (-0.5)
        p = _softmax(scores, axis=-1)
        o = torch.einsum('bhqk,bhkd->bhqd', p, v)
        return (lambda x, *d: x.permute(*d))(o, 0, 2, 1, 3).reshape(B, Sq, Hq * Dh) @ wo

    def _B_ref(x, w_gate, w_up, w_down):
        g = torch.einsum('bsd,df->bsf', x, w_gate)
        u = torch.einsum('bsd,df->bsf', x, w_up)
        h = g * u
        return torch.einsum('bsf,fd->bsd', h, w_down)
    x = A_x
    mod = (_silu(c) @ w_mod).reshape(c.shape[0], 6, 1, -1)
    sa, ca, ga, sb, cb, gb = (mod[:, 0].clone(), mod[:, 1].clone(), mod[:, 2].clone(), mod[:, 3].clone(), mod[:, 4].clone(), mod[:, 5].clone())
    h = _layernorm(x, axis=-1) * (1 + ca) + sa
    x = x + ga * _A_ref(h, A_k_cache, A_v_cache, A_wq, A_wo)
    h = _layernorm(x, axis=-1) * (1 + cb) + sb
    x = x + gb * _B_ref(h, B_w_gate, B_w_up, B_w_down)
    return x
```

```python
import re

_REG = re.compile(r'^(-?|\|)?(v|s|a)(\d+|\[(\d+):(\d+)\])\|?$')


def regs_of(tok):
    tok = tok.strip()
    tok = tok.replace('abs(', '').replace(')', '') if tok.startswith(('abs(', '-abs(')) else tok
    tok = tok.lstrip('-')
    tok = tok.strip('|')
    if tok == 'vcc':
        return {('s', 'vcc_lo'), ('s', 'vcc_hi')}
    if tok == 'exec':
        return {('s', 'exec_lo'), ('s', 'exec_hi')}
    if tok in ('m0', 'vcc_lo', 'vcc_hi', 'exec_lo', 'exec_hi'):
        return {('s', tok)}
    m = re.match(r'^(v|s|a)(\d+)$', tok)
    if m:
        return {(m.group(1), int(m.group(2)))}
    m = re.match(r'^(v|s|a)\[(\d+):(\d+)\]$', tok)
    if m:
        return {(m.group(1), i) for i in range(int(m.group(2)), int(m.group(3)) + 1)}
    return set()


TRANS = ('v_exp_f32', 'v_log_f32', 'v_rcp_f32', 'v_rsq_f32', 'v_sqrt_f32', 'v_sin_f32', 'v_cos_f32', 'v_rcp_iflag_f32')


class Ins:
    __slots__ = ('text', 'op', 'cls', 'w', 'r', 'dpp', 'dppsrc', 'states', 'srcc', 'ab', 'lanesel', 'storedata')

    def __init__(self, text):
        self.text = text
        t = text.split(';')[0].strip()
        parts = t.split(None, 1)
        self.op = parts[0]
        rest = parts[1] if len(parts) > 1 else ''
        ops = [o.strip() for o in re.split(r',(?![^\[]*\])', rest)] if rest else []
        mods = ''
        if ops:
            last = ops[-1].split(None, 1)
            if last:
                ops[-1] = last[0]
                mods = last[1] if len(last) > 1 else ''
        op = self.op
        self.w = set(); self.r = set(); self.dpp = False; self.dppsrc = set(); self.states = 1
        self.srcc = set(); self.ab = set(); self.lanesel = set(); self.storedata = set()
        R = regs_of
        if op == 's_nop':
            self.cls = 'nop'; self.states = int(ops[0], 0) + 1
        elif op.startswith('v_mfma'):
            self.cls = 'mfma'
            self.w = R(ops[0]); self.ab = R(ops[1]) | R(ops[2]); self.srcc = R(ops[3]); self.r = self.ab | self.srcc
        elif op.startswith('v_'):
            self.cls = 'valu'
            base = op.replace('_e32', '').replace('_e64', '').replace('_dpp', '')
            if base.startswith('v_cmp'):
                self.w = R(ops[0])
                for o in ops[1:]: self.r |= R(o)
                if base.startswith('v_cmpx'): self.w |= R('exec')
            elif base in ('v_permlane16_swap_b32', 'v_permlane32_swap_b32'):
                self.cls = 'permlane'
                self.w = R(ops[0]) | R(ops[1]); self.r = set(self.w)
            elif base in ('v_readfirstlane_b32',):
                self.cls = 'readlane'
                self.w = R(ops[0]); self.r = R(ops[1])
            elif base == 'v_readlane_b32':
                self.cls = 'readlane'
                self.w = R(ops[0]); self.r = R(ops[1]) | R(ops[2]); self.lanesel = R(ops[2])
            elif base == 'v_writelane_b32':
                self.w = R(ops[0]); self.r = R(ops[1]) | R(ops[2]); self.lanesel = R(ops[2])
            elif base in ('v_add_co_u32', 'v_sub_co_u32', 'v_div_scale_f32'):
                self.w = R(ops[0]) | R(ops[1])
                for o in ops[2:]: self.r |= R(o)
            elif base in ('v_addc_co_u32', 'v_subb_co_u32'):
                self.w = R(ops[0]) | R(ops[1])
                for o in ops[2:]: self.r |= R(o)
            else:
                self.w = R(ops[0])
                for o in ops[1:]: self.r |= R(o)
                if base in ('v_fmac_f32', 'v_dot2c_f32_bf16', 'v_mac_f32', 'v_pk_fmac_f16', 'v_cvt_sr_pk_bf16_f32'):
                    self.r |= self.w
                if base in ('v_cndmask_b32',) and len(ops) == 3:
                    self.r |= R('vcc')
                if base == 'v_div_fmas_f32':
                    self.r |= R('vcc')
                if base.startswith('v_dot2'):
                    self.cls = 'dot'
                    if base == 'v_dot2c_f32_bf16':
                        self.srcc = set(self.w); self.ab = R(ops[1]) | R(ops[2])
                    else:
                        self.srcc = R(ops[3]); self.ab = R(ops[1]) | R(ops[2])
                if base in TRANS:
                    self.cls = 'trans'
            if 'quad_perm' in mods or 'row_' in mods or op.endswith('_dpp'):
                self.dpp = True; self.dppsrc = R(ops[1])
                self.r |= self.w
        elif op.startswith('ds_'):
            self.cls = 'ds'
            if op.startswith(('ds_read', 'ds_bpermute', 'ds_permute', 'ds_swizzle')) or '_rtn' in op:
                self.w = R(ops[0])
                for o in ops[1:]: self.r |= R(o)
            else:
                for o in ops: self.r |= R(o)
        elif op.startswith(('buffer_', 'global_')):
            self.cls = 'vmem'
            is_lds = (' lds' in (' ' + mods)) or op.startswith('global_load_lds')
            if 'load' in op and not is_lds:
                self.w = R(ops[0])
                for o in ops[1:]: self.r |= R(o)
            elif 'atomic' in op and 'sc0' in mods:
                self.w = R(ops[0])
                for o in ops: self.r |= R(o)
            else:
                for o in ops: self.r |= R(o)
                if 'store' in op and (op.endswith('x3') or op.endswith('x4')):
                    self.storedata = R(ops[0]) if op.startswith('buffer_') else R(ops[1])
            if is_lds:
                self.r |= {('s', 'm0')}
                self.cls = 'vmem_lds'
        elif op.startswith('s_'):
            self.cls = 'salu'
            if op.startswith(('s_cmp', 's_cbranch', 's_branch', 's_waitcnt', 's_barrier', 's_endpgm', 's_sleep', 's_setprio', 's_setpc', 's_bitcmp')):
                for o in ops: self.r |= R(o)
            else:
                if ops:
                    self.w = R(ops[0])
                    for o in ops[1:]: self.r |= R(o)
                if 'saveexec' in op:
                    self.w |= R('exec')
        else:
            raise ValueError('unknown instr ' + text)


def is_valu(c):
    return c in ('valu', 'trans', 'dot', 'permlane', 'readlane')


def vregs(s):
    return {x for x in s if x[0] in ('v', 'a')}


def sregs(s):
    return {x for x in s if x[0] == 's'}


def need_states(p, c):
    n = 0
    pv = vregs(p.w)
    if is_valu(p.cls):
        if c.dpp and pv & c.dppsrc: n = max(n, 2)
        if c.cls == 'permlane' and pv & c.r: n = max(n, 2)
        if c.cls == 'readlane' and pv & vregs(c.r): n = max(n, 1)
        if c.cls == 'mfma' and pv & c.r: n = max(n, 2)
        ps = sregs(p.w)
        if ps:
            if c.cls in ('vmem', 'vmem_lds') and ps & c.r: n = max(n, 5)
            if is_valu(c.cls) and ps & c.r: n = max(n, 2)
            if ps & c.lanesel: n = max(n, 4)
            if c.op.startswith('v_div_fmas') and ('s', 'vcc_lo') in ps: n = max(n, 4)
            if ('s', 'exec_lo') in ps:
                if c.dpp: n = max(n, 5)
                if c.cls in ('readlane', 'permlane', 'mfma'): n = max(n, 4)
    if p.cls == 'trans' and is_valu(c.cls) and c.cls != 'trans' and pv & (c.r | c.w): n = max(n, 1)
    if p.cls == 'trans' and c.cls in ('mfma',) and pv & c.r: n = max(n, 2)
    if p.cls == 'dot':
        if c.cls == 'dot' and c.op == p.op:
            if pv & c.ab: n = max(n, 3)
        elif pv & (c.r | c.w) and c.cls not in ('salu', 'nop'):
            n = max(n, 3)
    if p.cls == 'mfma':
        if c.cls == 'mfma':
            if pv & c.ab: n = max(n, 8)
            if pv & c.srcc and pv != vregs(c.srcc): n = max(n, 6)
        elif c.cls not in ('salu', 'nop') and pv & (c.r | c.w): n = max(n, 8)
        if is_valu(c.cls) and vregs(p.srcc) & vregs(c.w): n = max(n, 3)
    if p.storedata and (vregs(c.w) & p.storedata) and c.cls not in ('salu', 'nop'):
        n = max(n, 2)
    if p.cls == 'salu' and ('s', 'm0') in p.w and c.cls == 'vmem_lds': n = max(n, 1)
    return n


class Asm:
    def __init__(self):
        self.out = []
        self.hist = []
        self.nops = 0
        self.vm = []
        self.nlabel = 0

    def raw(self, text):
        self.out.append(text)

    def comment(self, t):
        self.out.append('  ; ' + t)

    def label(self, name):
        self.out.append(name + ':')

    def newlabel(self, base):
        self.nlabel += 1
        return f'L_{base}_{self.nlabel}'

    def I(self, text):
        ins = Ins(text)
        need = 0
        dist = 0
        for p in reversed(self.hist):
            req = need_states(p, ins)
            if req > dist:
                need = max(need, req - dist)
            dist += p.states
            if dist >= 24:
                break
        while need > 0:
            k = min(need, 16)
            nop = Ins(f's_nop {k-1}')
            self.out.append(f'  s_nop {k-1}')
            self.hist.append(nop)
            self.nops += 1
            need -= k
        self.out.append('  ' + text)
        self.hist.append(ins)
        if len(self.hist) > 64:
            self.hist = self.hist[-40:]

    def L(self, block):
        for ln in block.strip().split('\n'):
            ln = ln.strip()
            if not ln or ln.startswith(';'):
                continue
            if ln.endswith(':'):
                self.label(ln[:-1])
            else:
                self.I(ln)

    def fence(self, n=8):
        self.I(f's_nop {n-1}')

    def vm_reset(self, tags=()):
        self.vm = list(tags)

    def vmem(self, text, tag):
        self.I(text)
        self.vm.append(tag)

    def vm_wait(self, tag):
        if tag not in self.vm:
            return
        idx = self.vm.index(tag)
        n = len(self.vm) - 1 - idx
        assert n <= 63, n
        self.I(f's_waitcnt vmcnt({n})')
        self.vm = self.vm[idx + 1:]

    def vm_window(self, n):
        if len(self.vm) > n:
            self.I(f's_waitcnt vmcnt({n})')
            self.vm = self.vm[len(self.vm) - n:]

    def text(self):
        return '\n'.join(self.out) + '\n'
```

```python
from asmdsl import Asm

LOG2E = 0x3fb8aa3b
SCALE = 0x3d93cd3a

R0 = 8
D = 32


def slot(i):
    return R0 + 4 * (i % D)


def hole(i):
    return R0 + 4 * i + 3


V_OFF = 1
V_Q = (2, 3, 4)
V_LANE = 5
V_T0, V_T1 = 6, 7
A_ = (hole(0), hole(1))
B_ = (hole(2), hole(3))
C_ = (hole(4), hole(5))
D_ = (hole(6), hole(7), hole(8), hole(9))
E_ = (hole(10), hole(11))
TT = (hole(12), hole(13))
V_PADDR = hole(14)
V_PW = hole(15)
V_X = [hole(16 + i) for i in range(8)]
SC = (136, 137, 138, 139)
ACC = (140, 141, 142, 143, 144, 145)
PG = (148, 152)
PT = (156, 157, 158, 159)


class StreamCfg:
    W = 10
    W0 = 8
    late_skip = True
    WV = 32
    nt = 'nt'
    codepf = 0
    N1 = 4
    pw_early = 0
    gate = 1
    pretouch = 0


def emit_issue(a, cfg, u, S):
    srd = S['srdK'] if u < 128 else S['srdV']
    if u == 128:
        a.I(f"s_mov_b32 s{S['soff']}, 0")
    s = slot(u)
    a.vmem(f"buffer_load_dwordx3 v[{s}:{s+2}], v{V_OFF}, s[{srd}:{srd+3}], s{S['soff']} offen {cfg.nt}", ('ld', u))
    if u not in (127, 255):
        a.I(f"s_addk_i32 s{S['soff']}, 6144")


def stream_prologue(a, cfg, S):
    a.comment('stream prologue')
    a.I(f"v_and_b32 v{V_LANE}, 63, v0")
    a.I(f"s_mul_i32 s{S['tmp']}, s{S['wave']}, 768")
    a.I(f"v_mul_u32_u24 v{V_OFF}, 12, v{V_LANE}")
    a.I(f"v_add_u32 v{V_OFF}, s{S['tmp']}, v{V_OFF}")
    a.I(f"s_mov_b32 s{S['soff']}, 0")
    a.vm_reset()
    issued = 0
    for u in range(D):
        if u >= cfg.W0:
            a.vm_window(cfg.W0 - 1)
        emit_issue(a, cfg, u, S)
        if u == S.get('b0_after', -1):
            a.I('s_barrier')
    return D


def k_tree(a, t, S):
    i = t % 32
    if i % 2 == 1:
        a.I(f"v_permlane16_swap_b32 v{A_[0]}, v{A_[1]}")
        a.I(f"v_add_f32 v{B_[(i >> 1) & 1]}, v{A_[0]}, v{A_[1]}")
    if i % 4 == 3:
        c = C_[(i >> 2) & 1]
        a.I(f"v_add_f32_dpp v{c}, v{B_[0]}, v{B_[0]} row_ror:8 row_mask:0xf bank_mask:0x3")
        a.I(f"v_add_f32_dpp v{c}, v{B_[1]}, v{B_[1]} row_ror:8 row_mask:0xf bank_mask:0xc")
    if i % 8 == 7:
        d = D_[i >> 3]
        a.I(f"v_add_f32_dpp v{d}, v{C_[0]}, v{C_[0]} row_half_mirror row_mask:0xf bank_mask:0x5")
        a.I(f"v_add_f32_dpp v{d}, v{C_[1]}, v{C_[1]} row_half_mirror row_mask:0xf bank_mask:0xa")
    if i % 16 == 15:
        k = i >> 4
        d0, d1 = D_[2 * k], D_[2 * k + 1]
        a.I(f"v_add_f32_dpp v{TT[0]}, v{d0}, v{d0} quad_perm:[1,0,3,2] row_mask:0xf bank_mask:0xf")
        a.I(f"v_add_f32_dpp v{TT[1]}, v{d1}, v{d1} quad_perm:[1,0,3,2] row_mask:0xf bank_mask:0xf")
        a.I(f"v_cndmask_b32 v{E_[k]}, v{TT[0]}, v{TT[1]}, s[{S['mask0']}:{S['mask0']+1}]")
    if i == 31:
        a.I(f"v_add_f32_dpp v{TT[0]}, v{E_[0]}, v{E_[0]} quad_perm:[2,3,0,1] row_mask:0xf bank_mask:0xf")
        a.I(f"v_add_f32_dpp v{TT[1]}, v{E_[1]}, v{E_[1]} quad_perm:[2,3,0,1] row_mask:0xf bank_mask:0xf")
        a.I(f"v_cndmask_b32 v{SC[t // 32]}, v{TT[0]}, v{TT[1]}, s[{S['mask1']}:{S['mask1']+1}]")


def wave_reduce(a, op, v, sdst):
    for r in (8, 4, 2, 1):
        a.I(f"{op}_dpp v{v}, v{v}, v{v} row_ror:{r} row_mask:0xf bank_mask:0xf")
    a.I(f"{op}_dpp v{v}, v{v}, v{v} row_bcast:15 row_mask:0xa bank_mask:0xf")
    a.I(f"{op}_dpp v{v}, v{v}, v{v} row_bcast:31 row_mask:0xc bank_mask:0xf")
    a.I(f"v_readlane_b32 s{sdst}, v{v}, 63")


def round_bf16_pairs(a, regs, tmp):
    a.I(f"v_cvt_pk_bf16_f32 v{tmp[0]}, v{regs[0]}, v{regs[1]}")
    a.I(f"v_cvt_pk_bf16_f32 v{tmp[1]}, v{regs[2]}, v{regs[3]}")
    a.I(f"v_lshlrev_b32 v{regs[0]}, 16, v{tmp[0]}")
    a.I(f"v_and_b32 v{regs[1]}, 0xffff0000, v{tmp[0]}")
    a.I(f"v_lshlrev_b32 v{regs[2]}, 16, v{tmp[1]}")
    a.I(f"v_and_b32 v{regs[3]}, 0xffff0000, v{tmp[1]}")


def stream_main(a, cfg, S, L, issued, stamp=None):
    stamp = stamp or (lambda k: None)
    a.I(f"s_mov_b32 s{S['mask0']}, 0xaaaaaaaa")
    a.I(f"s_mov_b32 s{S['mask0']+1}, 0xaaaaaaaa")
    a.I(f"s_mov_b32 s{S['mask1']}, 0xcccccccc")
    a.I(f"s_mov_b32 s{S['mask1']+1}, 0xcccccccc")
    a.I(f"s_mov_b32 s{S['sello']}, 0x05040100")
    a.I(f"s_mov_b32 s{S['selhi']}, 0x07060302")
    a.I(f"s_mov_b32 s{S['log2e']}, 0x{LOG2E:x}")
    a.I(f"v_and_b32 v{V_T0}, 31, v{V_LANE}")
    a.I(f"v_mul_u32_u24 v{V_T0}, 12, v{V_T0}")
    a.I(f"v_lshrrev_b32 v{V_T1}, 5, v{V_LANE}")
    a.I(f"v_lshlrev_b32 v{V_PADDR}, 8, v{V_T1}")
    a.I(f"s_lshl_b32 s{S['tmp']}, s{S['wave']}, 9")
    a.I(f"s_add_u32 s{S['tmp']}, s{S['tmp']}, {L['P']}")
    a.I(f"v_add_u32 v{V_PADDR}, s{S['tmp']}, v{V_PADDR}")
    x = V_X
    a.I(f"v_bfe_u32 v{x[0]}, v{V_LANE}, 4, 1")
    a.I(f"v_lshl_add_u32 v{V_PW}, v{x[0]}, 1, v{V_PADDR}")
    a.I(f"v_bfe_u32 v{x[0]}, v{V_LANE}, 3, 1")
    a.I(f"v_lshl_add_u32 v{V_PW}, v{x[0]}, 2, v{V_PW}")
    a.I(f"v_bfe_u32 v{x[0]}, v{V_LANE}, 2, 1")
    a.I(f"v_lshl_add_u32 v{V_PW}, v{x[0]}, 3, v{V_PW}")
    a.I(f"v_bfe_u32 v{x[0]}, v{V_LANE}, 0, 1")
    a.I(f"v_lshl_add_u32 v{V_PW}, v{x[0]}, 4, v{V_PW}")
    a.I(f"v_bfe_u32 v{x[0]}, v{V_LANE}, 1, 1")
    a.I(f"v_lshl_add_u32 v{V_PW}, v{x[0]}, 5, v{V_PW}")
    for k in range(6):
        a.I(f"v_mov_b32 v{ACC[k]}, 0")
    stamp(1)
    a.I('s_barrier')
    stamp(2)
    a.I(f"ds_read_b32 v{V_Q[0]}, v{V_T0} offset:{L['QV']}")
    a.I(f"ds_read_b32 v{V_Q[1]}, v{V_T0} offset:{L['QV']+4}")
    a.I(f"ds_read_b32 v{V_Q[2]}, v{V_T0} offset:{L['QV']+8}")
    a.I('s_waitcnt lgkmcnt(0)')

    W = cfg.W
    pend = None
    for t in range(128):
        s = slot(t)
        a.vm_wait(('ld', t))
        leaf = A_[t & 1]
        a.I(f"v_dot2_f32_bf16 v{leaf}, v{s}, v{V_Q[0]}, 0")
        a.I(f"v_dot2c_f32_bf16 v{leaf}, v{s+1}, v{V_Q[1]}") if False else a.I(f"v_dot2_f32_bf16 v{leaf}, v{s+1}, v{V_Q[1]}, v{leaf}")
        a.I(f"v_dot2_f32_bf16 v{leaf}, v{s+2}, v{V_Q[2]}, v{leaf}")
        if cfg.late_skip:
            target = min(t + D, 127 + W)
        else:
            target = max(D - 1, t + W)
        while issued <= target:
            emit_issue(a, cfg, issued, S)
            issued += 1
        k_tree(a, t, S)
    stamp(3)
    sc = list(SC)
    round_bf16_pairs(a, sc, (V_T0, V_T1))
    a.I(f"s_mov_b32 s{S['tmp']}, 0x{SCALE:x}")
    for r in sc:
        a.I(f"v_mul_f32 v{r}, s{S['tmp']}, v{r}")
    round_bf16_pairs(a, sc, (V_T0, V_T1))
    a.I(f"v_max_f32 v{V_T0}, v{sc[0]}, v{sc[1]}")
    a.I(f"v_max3_f32 v{V_T0}, v{V_T0}, v{sc[2]}, v{sc[3]}")
    wave_reduce(a, 'v_max_f32', V_T0, S['m'])
    for k, r in enumerate(sc):
        a.I(f"v_subrev_f32 v{x[k]}, s{S['m']}, v{r}")
    for k in range(4):
        a.I(f"v_mul_f32 v{x[k]}, s{S['log2e']}, v{x[k]}")
    for k in range(4):
        a.I(f"v_exp_f32 v{x[k]}, v{x[k]}")
    a.I(f"v_add_f32 v{V_T0}, v{x[0]}, v{x[1]}")
    a.I(f"v_add_f32 v{V_T1}, v{x[2]}, v{x[3]}")
    a.I(f"v_add_f32 v{V_T0}, v{V_T0}, v{V_T1}")
    wave_reduce(a, 'v_add_f32', V_T0, S['l'])
    a.I(f"s_lshl_b32 s{S['tmp']}, s{S['wave']}, 3")
    a.I(f"s_add_u32 s{S['tmp']}, s{S['tmp']}, {L['STATS']}")
    a.I(f"v_mov_b32 v{x[4]}, s{S['m']}")
    a.I(f"v_mov_b32 v{x[5]}, s{S['l']}")
    a.I(f"v_mov_b32 v{V_T0}, s{S['tmp']}")
    a.I(f"ds_write_b32 v{V_T0}, v{x[4]}")
    a.I(f"ds_write_b32 v{V_T0}, v{x[5]} offset:4")
    a.I('s_waitcnt lgkmcnt(0)')
    a.I('s_barrier')
    stamp(4)
    while issued <= 127 + D:
        a.vm_window(cfg.W0 - 1)
        emit_issue(a, cfg, issued, S)
        issued += 1
    stamp(5)
    a.I('s_barrier')
    stamp(6)
    a.I(f"v_mov_b32 v{V_T0}, {L['FIN']}")
    a.I(f"ds_read_b64 v[{PT[0]}:{PT[1]}], v{V_T0}")
    a.I('s_waitcnt lgkmcnt(0)')
    for k, r in enumerate(sc):
        a.I(f"v_sub_f32 v{x[k]}, v{r}, v{PT[0]}")
    for k in range(4):
        a.I(f"v_mul_f32 v{x[k]}, s{S['log2e']}, v{x[k]}")
    for k in range(4):
        a.I(f"v_exp_f32 v{x[k]}, v{x[k]}")
    for k in range(4):
        a.I(f"v_mul_f32 v{x[k]}, v{x[k]}, v{PT[1]}")
    a.I(f"v_cvt_pk_bf16_f32 v{x[4]}, v{x[0]}, v{x[1]}")
    a.I(f"v_cvt_pk_bf16_f32 v{x[5]}, v{x[2]}, v{x[3]}")
    a.I(f"ds_write_b16 v{V_PW}, v{x[4]}")
    a.I(f"ds_write_b16_d16_hi v{V_PW}, v{x[4]} offset:64")
    a.I(f"ds_write_b16 v{V_PW}, v{x[5]} offset:128")
    a.I(f"ds_write_b16_d16_hi v{V_PW}, v{x[5]} offset:192")
    a.I(f"ds_read_b128 v[{PG[0]}:{PG[0]+3}], v{V_PADDR}")
    a.I(f"ds_read_b128 v[{PG[1]}:{PG[1]+3}], v{V_PADDR} offset:16")

    for j in range(64):
        g = j // 4
        if j % 4 == 0:
            a.I('s_waitcnt lgkmcnt(1)' if g + 1 < 16 else 's_waitcnt lgkmcnt(0)')
        P = PG[g & 1] + (j % 4)
        t0, t1 = 128 + 2 * j, 128 + 2 * j + 1
        s0, s1 = slot(t0), slot(t1)
        a.vm_wait(('ld', t1))
        for k in range(3):
            tl, th = PT[(2 * k) % 4], PT[(2 * k + 1) % 4]
            a.I(f"v_perm_b32 v{tl}, v{s1+k}, v{s0+k}, s{S['sello']}")
            a.I(f"v_perm_b32 v{th}, v{s1+k}, v{s0+k}, s{S['selhi']}")
            a.I(f"v_dot2c_f32_bf16 v{ACC[2*k]}, v{tl}, v{P}")
            a.I(f"v_dot2c_f32_bf16 v{ACC[2*k+1]}, v{th}, v{P}")
        if j % 4 == 3 and g + 2 < 16:
            a.I(f"ds_read_b128 v[{PG[g & 1]}:{PG[g & 1]+3}], v{V_PADDR} offset:{16*(g+2)}")
        target = min(255, t1 + cfg.WV)
        while issued <= target:
            emit_issue(a, cfg, issued, S)
            issued += 1
    stamp(7)
    for k in range(3):
        a.I(f"v_permlane32_swap_b32 v{ACC[k]}, v{ACC[k+3]}")
        a.I(f"v_add_f32 v{ACC[k]}, v{ACC[k]}, v{ACC[k+3]}")
    a.I(f"v_and_b32 v{V_T0}, 31, v{V_LANE}")
    a.I(f"v_mul_u32_u24 v{V_T0}, 24, v{V_T0}")
    a.I(f"v_lshrrev_b32 v{V_T1}, 5, v{V_LANE}")
    a.I(f"v_mad_u32_u24 v{V_T0}, v{V_T1}, 12, v{V_T0}")
    a.I(f"s_mul_i32 s{S['tmp']}, s{S['wave']}, 768")
    a.I(f"s_add_u32 s{S['tmp']}, s{S['tmp']}, {L['OPART']}")
    a.I(f"v_add_u32 v{V_T0}, s{S['tmp']}, v{V_T0}")
    for k in range(3):
        a.I(f"ds_write_b32 v{V_T0}, v{ACC[k]} offset:{4*k}")
    a.I('s_waitcnt lgkmcnt(0)')
    a.I('s_barrier')
    stamp(8)
```

```python
import sys
sys.path.insert(0, 'gen')
from asmdsl import Asm
import stream as st
from stream import StreamCfg, LOG2E

KNAME = 'adaLN_cond__gqa_block_cached__glu_gated_bilinear__decode_kernel'

WS_MOD, WS_Q, WS_ML, WS_O, WS_Y, WS_PD, WS_DBG = 0, 0x8000, 0x38000, 0x40000, 0x70000, 0x84000, 0x100000
WS_SIZE = 0x200000
L_ACT = 0x0000
L_RED = 0x3200
L_QV = 0x4200
L_STATS = 0x4400
L_FIN = 0x4480
L_HFLAG = 0x4500
L_LNST = 0x4540
L_P = 0x4600
L_OPART = 0x5600
L_W = 0x7000
L_WD = L_W + 81920
L_X1 = 0x6E00
LDS_BYTES = L_W + 81920 + 40960 + 512
LDS = dict(QV=L_QV, STATS=L_STATS, FIN=L_FIN, P=L_P, OPART=L_OPART)

SPIN_MAX = 1 << 16
NANF = 0x7fc00000
NANB = 0x7fc07fc0
EPS = 0x3727c5ac

S = dict(srdK=32, srdV=36, srdW=40, wave=44, tmp=45, soff=46, mask0=48, mask1=50, sello=52, selhi=53, log2e=54,
         m=55, l=56, b=57, h=58, half=59, spin=62)
S_PRE, S_BAND, S_POST, S_NB, S_KG = 80, 81, 82, 83, 84
S_KH, S_LATE, S_PHASE, S_DT = 89, 90, 91, 92
MASK_N4_LO = 0x000f000f


class Gen:
    def __init__(self, cfg, diag=False, name=KNAME):
        self.a = Asm()
        self.cfg = cfg
        self.diag = diag
        self.name = name

    def stamp(self, k):
        if not self.diag:
            return
        a = self.a
        a.I("s_memrealtime s[60:61]")
        a.I("s_waitcnt lgkmcnt(0)")
        a.I(f"s_mov_b32 s{64+k if k < 16 else 93+k-16}, s60")

    def srd(self, dst, ptr, size, off=None):
        a = self.a
        if off is None:
            a.I(f"s_mov_b32 s{dst}, s{ptr}")
            a.I(f"s_mov_b32 s{dst+1}, s{ptr+1}")
        else:
            a.I(f"s_add_u32 s{dst}, s{ptr}, s{off}")
            a.I(f"s_addc_u32 s{dst+1}, s{ptr+1}, 0")
        a.I(f"s_mov_b32 s{dst+2}, {size}")
        a.I(f"s_mov_b32 s{dst+3}, 0x20000")

    def canon(self, regs, nanreg):
        a = self.a
        for r in regs:
            a.I(f"v_cmp_eq_u32 vcc, -1, v{r}")
            a.I(f"v_cndmask_b32 v{r}, v{r}, v{nanreg}, vcc")

    def poll(self, loads, regs, label, pre=None):
        a = self.a
        a.I("s_mov_b32 s62, 0")
        a.label(label)
        for ld in loads:
            a.I(ld)
        a.I("s_add_u32 s62, s62, 1")
        a.I("s_waitcnt vmcnt(0)")
        rs = list(regs)
        t = pre
        first = True
        i = 0
        while i < len(rs):
            if first:
                if len(rs) >= 3:
                    a.I(f"v_max3_u32 v{t}, v{rs[0]}, v{rs[1]}, v{rs[2]}"); i = 3
                elif len(rs) == 2:
                    a.I(f"v_max_u32 v{t}, v{rs[0]}, v{rs[1]}"); i = 2
                else:
                    a.I(f"v_mov_b32 v{t}, v{rs[0]}"); i = 1
                first = False
            elif i + 1 < len(rs):
                a.I(f"v_max3_u32 v{t}, v{t}, v{rs[i]}, v{rs[i+1]}"); i += 2
            else:
                a.I(f"v_max_u32 v{t}, v{t}, v{rs[i]}"); i += 1
        a.I(f"v_cmp_eq_u32 vcc, -1, v{t}")
        a.I("s_cmp_eq_u64 vcc, 0")
        a.I(f"s_cbranch_scc1 {label}_ok")
        a.I(f"s_cmp_lt_u32 s62, {SPIN_MAX}")
        a.I(f"s_cbranch_scc1 {label}")
        a.label(f"{label}_ok")

    def poll_counter(self, off, expect, label, vz, vt):
        a = self.a
        a.I(f"v_mov_b32 v{vz}, {off}")
        a.I("s_mov_b32 s62, 0")
        a.I("s_mov_b64 exec, 1")
        a.label(label)
        a.I(f"global_load_dword v{vt}, v{vz}, s[28:29] sc1")
        a.I("s_add_u32 s62, s62, 1")
        a.I("s_waitcnt vmcnt(0)")
        a.I(f"v_readfirstlane_b32 s45, v{vt}")
        a.I(f"s_cmp_ge_u32 s45, {expect}")
        a.I(f"s_cbranch_scc1 {label}_ok")
        a.I(f"s_cmp_lt_u32 s62, {SPIN_MAX}")
        a.I(f"s_cbranch_scc1 {label}")
        a.label(f"{label}_ok")
        a.I("s_mov_b64 exec, -1")

    def hsync(self, k, label, vz, vt):
        a = self.a
        a.I("s_waitcnt lgkmcnt(0)")
        a.I("s_lshl_b32 s45, s44, 2")
        a.I(f"s_add_u32 s45, s45, {L_HFLAG}")
        a.I(f"v_mov_b32 v{vz}, s45")
        a.I(f"v_mov_b32 v{vt}, {k}")
        a.I(f"ds_write_b32 v{vz}, v{vt}")
        a.I(f"v_mov_b32 v{vz}, {L_HFLAG}")
        a.I("s_mov_b32 s62, 0")
        a.label(label)
        a.I(f"ds_read_b128 v[{vt}:{vt+3}], v{vz}")
        a.I("s_add_u32 s62, s62, 1")
        a.I("s_waitcnt lgkmcnt(0)")
        a.I(f"v_min3_u32 v{vt}, v{vt}, v{vt+1}, v{vt+2}")
        a.I(f"v_min_u32 v{vt}, v{vt}, v{vt+3}")
        a.I(f"v_readfirstlane_b32 s45, v{vt}")
        a.I(f"s_cmp_ge_u32 s45, {k}")
        a.I(f"s_cbranch_scc1 {label}_ok")
        a.I(f"s_cmp_lt_u32 s62, {SPIN_MAX*4}")
        a.I(f"s_cbranch_scc1 {label}")
        a.label(f"{label}_ok")

    def bf16_round(self, regs, tmp):
        a = self.a
        for i in range(0, len(regs), 2):
            a.I(f"v_cvt_pk_bf16_f32 v{tmp}, v{regs[i]}, v{regs[i+1]}")
            a.I(f"v_lshlrev_b32 v{regs[i]}, 16, v{tmp}")
            a.I(f"v_and_b32 v{regs[i+1]}, 0xffff0000, v{tmp}")

    def unpack(self, src, lo, hi):
        a = self.a
        a.I(f"v_lshlrev_b32 v{lo}, 16, v{src}")
        a.I(f"v_and_b32 v{hi}, 0xffff0000, v{src}")

    def wave_sum_bcast(self, v, sdst):
        st.wave_reduce(self.a, 'v_add_f32', v, sdst)

    def ln_denom(self, vvar, vt):
        a = self.a
        a.I(f"v_cvt_pk_bf16_f32 v{vt}, v{vvar}, v{vvar}")
        a.I(f"v_lshlrev_b32 v{vvar}, 16, v{vt}")
        a.I(f"v_add_f32 v{vvar}, 0x{EPS:x}, v{vvar}")
        a.I(f"v_cvt_pk_bf16_f32 v{vt}, v{vvar}, v{vvar}")
        a.I(f"v_lshlrev_b32 v{vvar}, 16, v{vt}")
        a.I(f"v_sqrt_f32 v{vt}, v{vvar}")
        a.I(f"v_rcp_f32 v{vt+1}, v{vt}")
        a.I(f"v_fma_f32 v{vt+2}, -v{vt}, v{vt}, v{vvar}")
        a.I(f"v_mul_f32 v{vt+1}, 0.5, v{vt+1}")
        a.I(f"v_fma_f32 v{vt}, v{vt+2}, v{vt+1}, v{vt}")
        a.I(f"v_cvt_pk_bf16_f32 v{vt}, v{vt}, v{vt}")
        a.I(f"v_lshlrev_b32 v{vvar}, 16, v{vt}")

    def div_by(self, num, den, rcp, t):
        a = self.a
        a.I(f"v_mul_f32 v{t}, v{num}, v{rcp}")
        a.I(f"v_fma_f32 v{num}, -v{t}, v{den}, v{num}")
        a.I(f"v_fma_f32 v{num}, v{num}, v{rcp}, v{t}")

    def entry(self):
        a = self.a
        a.raw(f"; @launch grid=(256,1,1) block=(768,1,1) lds={LDS_BYTES}")
        a.raw('.amdgcn_target "amdgcn-amd-amdhsa--gfx950"\n.text')
        a.raw(f".globl {self.name}\n.p2align 8\n.type {self.name},@function\n{self.name}:")
        a.I("s_cmp_ge_u32 s2, 256")
        a.I("s_cbranch_scc1 L_end")
        a.I("s_load_dwordx16 s[4:19], s[0:1], 0")
        a.I("s_load_dwordx8 s[20:27], s[0:1], 64")
        a.I("s_load_dwordx4 s[28:31], s[0:1], 96")
        a.I("v_lshrrev_b32 v1, 6, v0")
        a.I("v_and_b32 v5, 63, v0")
        a.I("v_readfirstlane_b32 s44, v1")
        a.I("s_lshr_b32 s45, s2, 1")
        a.I(f"s_mov_b32 s{S_PRE}, 2")
        a.I("s_bitcmp1_b32 s2, 0")
        a.I("s_cbranch_scc1 L_early_q")
        a.I(f"s_mov_b32 s{S_BAND}, s45")
        a.I("s_cmp_lt_u32 s45, 60")
        a.I(f"s_cselect_b32 s{S_PRE}, 1, 2")
        a.I("s_cbranch_scc1 L_early_done")
        a.I("s_cmp_lt_u32 s45, 124")
        a.I(f"s_cselect_b32 s{S_PRE}, 2, 0")
        a.I("s_add_u32 s45, s45, 68")
        a.label("L_early_q")
        a.I(f"s_lshr_b32 s{S_BAND}, s45, 1")
        a.I(f"s_and_b32 s{S_KH}, s45, 1")
        a.label("L_early_done")
        a.I("s_cmp_lt_u32 s44, 4")
        a.I("s_cbranch_scc0 L_stream")

    def pair_unit(self, sv, sdst):
        a = self.a
        a.I(f"s_and_b32 s46, s{sv}, 7")
        a.I(f"s_lshr_b32 s47, s{sv}, 4")
        a.I("s_lshl_b32 s47, s47, 3")
        a.I("s_add_u32 s46, s46, s47")
        a.I(f"s_bfe_u32 s47, s{sv}, 0x10003")
        a.I(f"s_lshl_b32 s{sdst}, s46, 1")
        a.I(f"s_add_u32 s{sdst}, s{sdst}, s47")

    def roles_rest(self):
        a = self.a
        a.I("s_and_b32 s45, s2, 7")
        a.I("s_lshr_b32 s46, s2, 3")
        a.I("s_and_b32 s47, s46, 3")
        a.I("s_lshl_b32 s47, s47, 3")
        a.I("s_add_u32 s58, s45, s47")
        a.I("s_lshr_b32 s46, s2, 5")
        a.I("s_lshr_b32 s57, s46, 1")
        a.I("s_and_b32 s59, s46, 1")
        a.I(f"s_mov_b32 s{S_POST}, 0")
        a.I(f"s_mov_b32 s{S_DT}, -1")
        lab = a.newlabel('roles_done')
        lab2 = a.newlabel('roles_wo')
        a.I("s_bitcmp1_b32 s2, 0")
        a.I(f"s_cbranch_scc1 {lab}")
        a.I("s_lshr_b32 s45, s2, 1")
        a.I("s_sub_u32 s46, s45, 60")
        a.I("s_cmp_lt_u32 s46, 48")
        a.I(f"s_cbranch_scc0 {lab2}")
        a.I("s_cmp_lt_u32 s46, 40")
        a.I(f"s_cselect_b32 s{S_DT}, s46, -1")
        a.I("s_lshr_b32 s47, s46, 3")
        a.I("s_lshl_b32 s47, s47, 2")
        a.I("s_and_b32 s45, s46, 3")
        a.I("s_add_u32 s47, s47, s45")
        a.I("s_lshl_b32 s47, s47, 1")
        a.I("s_bfe_u32 s45, s46, 0x10002")
        a.I(f"s_add_u32 s{S_NB}, s47, s45")
        a.I(f"s_mov_b32 s{S_POST}, 2")
        a.I(f"s_branch {lab}")
        a.label(lab2)
        a.I("s_sub_u32 s46, s45, 48")
        a.I("s_cmp_lt_u32 s45, 60")
        a.I("s_cselect_b32 s45, s45, s46")
        a.I("s_mul_i32 s46, s45, 6554")
        a.I("s_lshr_b32 s46, s46, 16")
        a.I(f"s_mov_b32 s{S_KG}, s46")
        a.I("s_mul_i32 s47, s46, 10")
        a.I(f"s_sub_u32 s{S_NB}, s45, s47")
        a.I(f"s_mov_b32 s{S_POST}, 1")
        a.label(lab)

    def code_prefetch(self, wave):
        a = self.a
        a.I(f"s_cmp_eq_u32 s44, {wave}")
        a.I("s_cbranch_scc0 L_nopf")
        a.I("s_getpc_b64 s[46:47]")
        a.label("L_pc")
        a.I(f"s_sub_u32 s46, s46, (L_pc-{self.name})")
        a.I("s_subb_u32 s47, s47, 0")
        a.I("s_lshr_b32 s45, s2, 3")
        a.I("s_lshl_b32 s45, s45, 10")
        a.I("v_lshlrev_b32 v6, 4, v5")
        a.I("v_add_u32 v6, s45, v6")
        a.I("v_mov_b32 v7, 0")
        a.I("v_mov_b32 v9, s47")
        a.I("v_add_co_u32 v8, vcc, s46, v6")
        a.I("v_addc_co_u32 v9, vcc, v9, v7, vcc")
        a.I(f"s_mov_b32 s45, (L_end-{self.name}-12)")
        a.I("v_cmp_gt_u32 vcc, s45, v6")
        a.I("s_and_saveexec_b64 s[46:47], vcc")
        a.I("s_cbranch_execz L_pfskip")
        a.I("global_load_dwordx4 v[12:15], v[8:9], off")
        a.label("L_pfskip")
        a.I("s_mov_b64 exec, s[46:47]")
        a.label("L_nopf")

    def pretouch(self):
        a = self.a
        a.I("s_cmp_eq_u32 s44, 10")
        a.I("s_cbranch_scc0 L_nopt")
        a.I("v_lshlrev_b32 v6, 21, v5")
        bufs = [(24, 640*7680), (10, 640*12288), (30, WS_SIZE), (28, 256), (4, 5120), (22, 5120),
                (12, 6144*1280), (16, 640*3072), (18, 640*3072), (20, 1536*1280), (26, 5120)]
        if self.cfg.pretouch >= 2:
            pass
        for i, (p, size) in enumerate(bufs):
            self.srd(32, p, size)
            a.I(f"buffer_load_dword v{12+i}, v6, s[32:35], 0 offen")
        a.label("L_nopt")

    def resets(self):
        a = self.a
        a.I("v_mov_b32 v8, -1")
        a.I("v_mov_b32 v9, -1")
        a.I("v_mov_b32 v10, -1")
        a.I("v_mov_b32 v11, -1")
        a.I("v_lshlrev_b32 v6, 4, v5")
        a.I("s_lshl_b32 s45, s57, 5")
        a.I("s_add_u32 s45, s45, s58")
        a.I("s_lshl_b32 s45, s45, 1")
        a.I("s_add_u32 s45, s45, s59")
        a.I("s_mul_i32 s45, s45, 768")
        a.I(f"s_add_u32 s45, s45, {WS_O}")
        a.I("s_mov_b32 exec_lo, -1"); a.I("s_mov_b32 exec_hi, 0xffff")
        a.I("buffer_store_dwordx4 v[8:11], v6, s[40:43], s45 offen sc1")
        a.I("s_lshl_b32 s45, s2, 7")
        a.I(f"s_add_u32 s45, s45, {WS_ML}")
        a.I("s_mov_b64 exec, 0x11")
        a.I("buffer_store_dwordx4 v[8:11], v6, s[40:43], s45 offen sc1")
        a.I("s_mov_b64 exec, -1")
        a.I("v_lshrrev_b32 v7, 4, v5")
        a.I("v_and_b32 v12, 15, v5")
        a.I("v_lshlrev_b32 v12, 4, v12")

        def rows(cmp, rowbytes, base, bandbytes, band_reg, nchunk, lab, extra=None):
            a.I(cmp)
            a.I(f"s_cbranch_scc0 {lab}")
            a.I(f"v_mul_u32_u24 v13, {rowbytes}, v7")
            a.I("v_add_u32 v13, v13, v12")
            a.I(f"s_mul_i32 s45, s{band_reg}, {bandbytes}")
            if extra:
                a.I(f"s_mul_i32 s46, s{extra}, {4*rowbytes}")
                a.I("s_add_u32 s45, s45, s46")
            a.I(f"s_add_u32 s45, s45, {base}")
            m = (1 << nchunk) - 1
            m32 = m | (m << 16)
            a.I(f"s_mov_b32 exec_lo, 0x{m32:x}")
            a.I(f"s_mov_b32 exec_hi, 0x{m32:x}")
            a.I("buffer_store_dwordx4 v[8:11], v13, s[40:43], s45 offen sc1")
            a.I("s_mov_b64 exec, -1")
            a.label(lab)
        rows(f"s_cmp_eq_u32 s{S_PRE}, 2", 24576, WS_Q, 256, S_BAND, 16, 'L_rs2', extra=S_KH)
        rows(f"s_cmp_eq_u32 s{S_PRE}, 1", 7680, WS_MOD, 128, S_BAND, 8, 'L_rs1')
        rows(f"s_cmp_eq_u32 s{S_POST}, 1", 2560, WS_Y, 256, S_NB, 16, 'L_rs3', extra=S_KG)
        a.I(f"s_cmp_eq_u32 s{S_POST}, 2")
        a.I("s_cbranch_scc0 L_rs4")
        a.I("v_mul_u32_u24 v13, 12288, v7")
        a.I("v_add_u32 v13, v13, v12")
        a.I(f"s_lshl_b32 s45, s{S_NB}, 8")
        a.I(f"s_add_u32 s45, s45, {WS_PD}")
        for k in range(10):
            a.I("buffer_store_dwordx4 v[8:11], v13, s[40:43], s45 offen sc1")
            if k < 9:
                a.I(f"s_add_u32 s45, s45, {4*12288}")
        a.label("L_rs4")

    def resets_arrive(self):
        a = self.a
        a.I("s_waitcnt vmcnt(0)")
        self.stamp(16)
        a.I("s_mov_b64 exec, 1")
        a.I("v_mov_b32 v8, 1")
        a.I("s_and_b32 s45, s2, 1")
        a.I("s_lshl_b32 s45, s45, 7")
        a.I("v_mov_b32 v9, s45")
        a.I("global_atomic_add v9, v8, s[28:29] sc1")
        a.I("s_mov_b64 exec, -1")

    def master(self):
        a = self.a
        a.I("s_cmp_eq_u32 s44, 7")
        a.I("s_cbranch_scc0 L_notmaster")
        a.I("s_cmp_eq_u32 s2, 0")
        a.I("s_cbranch_scc0 L_notmaster")
        a.I("v_and_b32 v9, 1, v5")
        a.I("v_lshlrev_b32 v9, 7, v9")
        a.I("s_mov_b32 s62, 0")
        a.I("s_mov_b64 exec, 3")
        a.label("L_master")
        a.I("global_load_dword v10, v9, s[28:29] sc1")
        a.I("s_add_u32 s62, s62, 1")
        a.I("s_waitcnt vmcnt(0)")
        a.I("v_lshrrev_b32 v10, 7, v10")
        a.I("v_cmp_eq_u32 vcc, 0, v10")
        a.I("s_cmp_eq_u64 vcc, 0")
        a.I("s_cbranch_scc1 L_master_ok")
        a.I(f"s_cmp_lt_u32 s62, {SPIN_MAX}")
        a.I("s_cbranch_scc1 L_master")
        a.label("L_master_ok")
        a.I("s_mov_b64 exec, -1")
        a.I("v_lshlrev_b32 v9, 7, v5")
        a.I("v_mov_b32 v8, 1")
        for k in range(4):
            a.I(f"s_mov_b32 s45, {WS_ML + 64 + 8192*k}")
            a.I("buffer_store_dword v8, v9, s[40:43], s45 offen sc1")
        self.stamp(18)
        a.label("L_notmaster")

    def poll_go(self, label, vz, vt):
        a = self.a
        a.I("s_lshl_b32 s45, s2, 7")
        a.I(f"s_add_u32 s46, s45, {WS_ML + 64}")
        a.I(f"v_mov_b32 v{vz}, 0")
        a.I("s_mov_b32 s62, 0")
        a.I("s_mov_b64 exec, 1")
        a.label(label)
        a.I(f"buffer_load_dword v{vt}, v{vz}, s[40:43], s46 offen sc1")
        a.I("s_add_u32 s62, s62, 1")
        a.I("s_waitcnt vmcnt(0)")
        a.I(f"v_readfirstlane_b32 s45, v{vt}")
        a.I("s_cmp_eq_u32 s45, 1")
        a.I(f"s_cbranch_scc1 {label}_ok")
        a.I(f"s_cmp_lt_u32 s62, {SPIN_MAX}")
        a.I(f"s_cbranch_scc1 {label}")
        a.label(f"{label}_ok")
        a.I("s_mov_b64 exec, -1")

    def stream(self):
        a = self.a
        cfg = self.cfg
        a.label("L_stream")
        a.fence(2)
        self.roles_rest()
        if self.cfg.codepf:
            self.code_prefetch(10)
        a.I("s_waitcnt lgkmcnt(0)")
        self.stamp(0)
        self.srd(40, 30, WS_SIZE)
        if self.cfg.pretouch:
            self.pretouch()
        a.I("s_sub_u32 s44, s44, 4")
        a.I("s_lshl_b32 s45, s57, 5")
        a.I("s_add_u32 s45, s45, s58")
        a.I("s_mul_i32 s45, s45, 1572864")
        a.I("s_mul_i32 s46, s59, 786432")
        a.I("s_add_u32 s47, s45, s46")
        self.srd(32, 6, 786432, off=47)
        self.srd(36, 8, 786432, off=47)
        a.I("s_cmp_eq_u32 s44, 7")
        a.I("s_cbranch_scc0 L_noreset")
        self.resets()
        self.resets_arrive()
        a.label("L_noreset")
        a.fence(2)
        a.I("s_barrier")
        self.master()
        a.fence(2)
        S2 = dict(S); S2['b0_after'] = cfg.N1 - 1 if cfg.gate else -1
        issued = st.stream_prologue(a, cfg, S2)
        st.stream_main(a, cfg, S2, LDS, issued, self.stamp)
        a.I("s_add_u32 s44, s44, 4")
        a.I("s_branch L_post")

    def u_layout(self, n, per):
        a = self.a
        magic = {80: 52429, 40: 104858}[per]
        a.I(f"s_mov_b32 s47, {magic}")
        for jj in range(n):
            a.I(f"v_add_u32 v6, {64*jj}, v5")
            a.I("v_mul_u32_u24 v7, s47, v6")
            a.I(f"v_lshrrev_b32 v{20+jj}, 22, v7")
            a.I(f"v_mul_u32_u24 v7, {per}, v{20+jj}")
            a.I("v_sub_u32 v6, v6, v7")
            a.I(f"v_lshlrev_b32 v{25+jj}, 2, v6")

    def helper(self):
        a = self.a
        a.label("L_helper")
        a.I("s_setprio 3")
        a.I("s_lshl_b32 s45, s44, 2")
        a.I(f"s_add_u32 s45, s45, {L_HFLAG}")
        a.I("v_mov_b32 v6, s45")
        a.I("v_mov_b32 v7, 0")
        a.I("ds_write_b32 v6, v7")
        a.I(f"s_cmp_eq_u32 s{S_PRE}, 2")
        a.I("s_cbranch_scc0 L_h_notq")
        a.I("v_lshrrev_b32 v6, 3, v5")
        a.I("v_bfe_u32 v7, v5, 4, 1")
        a.I("v_lshlrev_b32 v7, 5, v7")
        a.I("v_and_b32 v8, 7, v5")
        a.I("v_lshlrev_b32 v8, 4, v8")
        a.I("v_xor_b32 v8, v8, v7")
        a.I("v_xor_b32 v9, 64, v8")
        a.I("v_mul_u32_u24 v6, 12288, v6")
        a.I("v_add_u32 v8, v8, v6")
        a.I("v_add_u32 v9, v9, v6")
        a.I(f"s_mul_i32 s46, s44, {80*12288}")
        a.I(f"s_mov_b32 s86, {8*12288}")
        a.I(f"s_mul_i32 s47, s{S_KH}, {320*12288}")
        a.I(f"s_lshl_b32 s45, s{S_BAND}, 7")
        a.I("s_add_u32 s85, s47, s45")
        self.u_layout(3, 40)
        a.I(f"s_mul_i32 s63, s{S_KH}, 640")
        a.I("s_mul_i32 s45, s44, 160")
        a.I("s_add_u32 s63, s63, s45")
        a.I("v_lshlrev_b32 v16, 2, v5")
        for jj in range(3):
            a.I(f"v_mul_u32_u24 v{40+jj}, 1280, v{20+jj}")
            a.I(f"v_add_u32 v{40+jj}, v{40+jj}, v{25+jj}")
        a.I("s_mul_i32 s48, s44, 1280")
        a.I("s_waitcnt lgkmcnt(0)")
        self.stamp(0)
        self.srd(36, 4, 5120)
        for jj in range(5):
            a.I(f"buffer_load_dword v{35+jj}, v16, s[36:39], s48 offen offset:{256*jj}")
        for jj in range(3):
            a.I(f"buffer_load_dword v{30+jj}, v{40+jj}, s[36:39], s63 offen")
        self.srd(32, 10, 320 * 12288, off=85)
        a.I("s_branch L_h_dma")
        a.label("L_h_notq")
        a.I(f"s_cmp_eq_u32 s{S_PRE}, 1")
        a.I("s_cbranch_scc1 L_modunit")
        a.I("s_waitcnt lgkmcnt(0)")
        self.stamp(0)
        self.srd(40, 30, WS_SIZE)
        a.I("s_barrier")
        a.I("s_branch L_h_go")
        a.label("L_modunit")
        a.fence(2)
        self.dma_voff128(7680, 8, 9, 6, 7)
        a.I(f"s_mul_i32 s46, s44, {160*7680}")
        a.I(f"s_lshl_b32 s85, s{S_BAND}, 7")
        self.u_layout(5, 80)
        a.I("s_mul_i32 s63, s44, 320")
        for jj in range(5):
            a.I(f"v_mul_u32_u24 v{40+jj}, 1280, v{20+jj}")
            a.I(f"v_add_u32 v{40+jj}, v{40+jj}, v{25+jj}")
        a.I("s_mul_i32 s47, s44, 20480")
        a.I(f"s_add_u32 s47, s47, {L_W}")
        a.I("s_waitcnt lgkmcnt(0)")
        self.stamp(0)
        self.srd(36, 22, 5120)
        for jj in range(5):
            a.I(f"buffer_load_dword v{30+jj}, v{40+jj}, s[36:39], s63 offen")
        self.srd(32, 24, 640 * 7680, off=85)
        self.dma_loop(32, 20, 8, 9, 47, 46, 8 * 7680, "L_mod_dma", cnt=85)
        self.stamp(3)
        self.srd(40, 30, WS_SIZE)
        a.I(f"s_mov_b32 s54, 0x{LOG2E:x}")
        a.I("s_mul_i32 s47, s44, 320")
        a.I(f"s_add_u32 s47, s47, {L_ACT}")
        for jj in range(5):
            a.I(f"v_mul_u32_u24 v{40+jj}, 1344, v{20+jj}")
            a.I(f"v_add3_u32 v{40+jj}, v{40+jj}, v{25+jj}, s47")
        a.I("s_waitcnt vmcnt(20)")
        for jj in range(5):
            lo, hi = 46, 47
            self.unpack(30 + jj, lo, hi)
            for r in (lo, hi):
                a.I(f"v_mul_f32 v48, s54, v{r}")
                a.I("v_exp_f32 v48, -v48")
                a.I("v_add_f32 v48, 1.0, v48")
                a.I("v_min_f32 v48, 0x7f7fffff, v48")
                a.I("v_rcp_f32 v49, v48")
                self.div_by(r, 48, 49, 50)
            a.I(f"v_cvt_pk_bf16_f32 v46, v46, v47")
            a.I(f"ds_write_b32 v{40+jj}, v46")
        self.tr_addr128(10, 6, 7)
        a.I("s_lshl_b32 s45, s44, 5")
        a.I("v_xor_b32 v10, s45, v10")
        a.I(f"v_add_u32 v10, {L_W}, v10")
        a.I(f"v_add_u32 v11, {10*4096}, v10")
        self.act_addr(14, 1344, 6)
        a.I("s_waitcnt vmcnt(0) lgkmcnt(0)")
        self.stamp(7)
        a.I("s_barrier")
        self.mfma_chain2(10, 10, 11, 4096, 512, 14, 64, 68)
        for k in range(4):
            a.I(f"v_add_f32 v{64+k}, v{64+k}, v{68+k}")
        a.I("v_cvt_pk_bf16_f32 v64, v64, v65")
        a.I("v_cvt_pk_bf16_f32 v65, v66, v67")
        a.I(f"v_mov_b32 v44, 0x{NANB:x}")
        self.canon([64, 65], 44)
        a.I("v_and_b32 v6, 3, v5")
        a.I("v_mul_u32_u24 v6, 7680, v6")
        a.I("v_lshrrev_b32 v7, 4, v5")
        a.I("v_lshl_add_u32 v6, v7, 3, v6")
        a.I(f"s_lshl_b32 s45, s{S_BAND}, 7")
        a.I("s_lshl_b32 s47, s44, 5")
        a.I("s_add_u32 s47, s47, s45")
        a.I(f"s_mov_b32 exec_lo, 0x{MASK_N4_LO:x}")
        a.I(f"s_mov_b32 exec_hi, 0x{MASK_N4_LO:x}")
        a.I("buffer_store_dwordx2 v[64:65], v6, s[40:43], s47 offen sc1")
        a.I("s_mov_b64 exec, -1")
        self.stamp(12)
        a.label("L_h_go")
        a.fence(2)
        a.I("s_cmp_lg_u32 s44, 0")
        a.I("s_cbranch_scc1 L_go_skip")
        self.poll_go("L_go1", 6, 7)
        a.label("L_go_skip")
        if self.cfg.gate:
            a.I("s_barrier")
        a.I("s_branch L_h_q")
        a.label("L_h_dma")
        a.I("s_mul_i32 s47, s44, 10240")
        a.I(f"s_add_u32 s47, s47, {L_W}")
        for i in range(10):
            a.I("s_mov_b32 m0, s47")
            a.I("s_add_u32 s47, s47, 1024")
            a.I(f"buffer_load_dwordx4 v{9 if i & 1 else 8}, s[32:35], s46 offen nt lds")
            if i < 9:
                a.I("s_add_u32 s46, s46, s86")
        self.stamp(3)
        self.srd(40, 30, WS_SIZE)
        a.I("s_waitcnt vmcnt(13)")
        for jj in range(5):
            self.unpack(35 + jj, 40 + 2 * jj, 41 + 2 * jj)
        a.I("v_add_f32 v6, v40, v41")
        for k in range(42, 50):
            a.I(f"v_add_f32 v6, v6, v{k}")
        self.wave_sum_bcast(6, 46)
        a.I("v_mov_b32 v6, 0x3acccccd")
        a.I("v_mul_f32 v50, s46, v6")
        a.I("v_mov_b32 v7, 0")
        for k in range(40, 50):
            a.I(f"v_sub_f32 v51, v{k}, v50")
            a.I("v_fmac_f32 v7, v51, v51")
        self.wave_sum_bcast(7, 46)
        a.I("v_mul_f32 v52, s46, v6")
        self.ln_denom(52, 53)
        a.I("v_cvt_pk_bf16_f32 v50, v50, v50")
        a.I("v_lshlrev_b32 v50, 16, v50")
        a.I("s_lshl_b32 s45, s44, 3")
        a.I(f"s_add_u32 s45, s45, {L_LNST}")
        a.I("v_mov_b32 v6, s45")
        a.I("ds_write_b32 v6, v50")
        a.I("ds_write_b32 v6, v52 offset:4")
        a.I("s_waitcnt vmcnt(0) lgkmcnt(0)")
        self.stamp(7)
        a.I("s_barrier")
        a.I("s_waitcnt vmcnt(10)")
        for jj in range(3):
            a.I(f"v_min_u32 v6, 3, v{20+jj}")
            a.I(f"v_lshlrev_b32 v6, 3, v6")
            a.I(f"ds_read_b64 v[56:57], v6 offset:{L_LNST}")
            lo, hi = 60 + 2 * jj, 61 + 2 * jj
            self.unpack(30 + jj, lo, hi)
            a.I("s_waitcnt lgkmcnt(0)")
            a.I(f"v_sub_f32 v{lo}, v{lo}, v56")
            a.I(f"v_sub_f32 v{hi}, v{hi}, v56")
            self.bf16_round([lo, hi], 58)
            a.I("v_rcp_f32 v58, v57")
            self.div_by(lo, 57, 58, 59)
            self.div_by(hi, 57, 58, 59)
            self.bf16_round([lo, hi], 58)
        for jj in range(3):
            a.I(f"v_min_u32 v6, 3, v{20+jj}")
            a.I(f"v_mul_u32_u24 v{40+jj}, 7680, v6")
            a.I(f"v_add_u32 v{40+jj}, v{40+jj}, v{25+jj}")
        a.I("s_mul_i32 s47, s44, 160")
        a.I(f"s_add_u32 s47, s47, {L_ACT}")
        for jj in range(3):
            a.I(f"v_mul_u32_u24 v{43+jj}, 704, v{20+jj}")
            a.I(f"v_add3_u32 v{43+jj}, v{43+jj}, v{25+jj}, s47")
        self.tr_addr128(10, 6, 7)
        a.I("s_lshl_b32 s45, s44, 5")
        a.I("v_xor_b32 v10, s45, v10")
        a.I(f"v_add_u32 v10, {L_W}, v10")
        self.act_addr(14, 704, 6)
        a.I(f"v_add_u32 v14, {L_ACT}, v14") if L_ACT else None
        self.stamp(16)
        self.poll_go("L_go2", 6, 7)
        self.stamp(18)
        a.I(f"s_add_u32 s46, s63, {WS_MOD}")
        a.I(f"s_add_u32 s47, s63, {WS_MOD + 1280}")
        loads = [f"buffer_load_dword v{30+jj}, v{40+jj}, s[40:43], s46 offen sc1" for jj in range(3)] + \
                [f"buffer_load_dword v{35+jj}, v{40+jj}, s[40:43], s47 offen sc1" for jj in range(3)]
        self.poll(loads, [30, 31, 32, 35, 36, 37], "L_pmod", pre=6)
        self.stamp(14)
        for jj in range(3):
            lo, hi = 60 + 2 * jj, 61 + 2 * jj
            self.unpack(35 + jj, 46, 47)
            a.I("v_add_f32 v46, 1.0, v46")
            a.I("v_add_f32 v47, 1.0, v47")
            self.bf16_round([46, 47], 48)
            a.I(f"v_mul_f32 v{lo}, v{lo}, v46")
            a.I(f"v_mul_f32 v{hi}, v{hi}, v47")
            self.bf16_round([lo, hi], 48)
            self.unpack(30 + jj, 46, 47)
            a.I(f"v_add_f32 v{lo}, v{lo}, v46")
            a.I(f"v_add_f32 v{hi}, v{hi}, v47")
            a.I(f"v_cvt_pk_bf16_f32 v46, v{lo}, v{hi}")
            if jj == 2:
                a.I("s_mov_b32 exec_hi, 0")
            a.I(f"ds_write_b32 v{43+jj}, v46")
        a.I("s_mov_b64 exec, -1")
        if self.cfg.gate:
            a.I("s_waitcnt lgkmcnt(0)")
            a.I("s_barrier")
        else:
            self.hsync(2, "L_hs2", 6, 16)
        self.stamp(17)
        self.mfma_chain(10, 10, 4096, 512, 14, 64)
        a.I(f"v_mov_b32 v44, 0x{NANF:x}")
        self.canon([64, 65, 66, 67], 44)
        a.I("v_and_b32 v6, 3, v5")
        a.I("v_mul_u32_u24 v6, 24576, v6")
        a.I("v_lshrrev_b32 v7, 4, v5")
        a.I("v_lshl_add_u32 v6, v7, 4, v6")
        a.I(f"s_mul_i32 s45, s{S_KH}, {4*24576}")
        a.I(f"s_lshl_b32 s47, s{S_BAND}, 8")
        a.I("s_add_u32 s47, s47, s45")
        a.I("s_lshl_b32 s45, s44, 6")
        a.I("s_add_u32 s47, s47, s45")
        a.I(f"s_add_u32 s47, s47, {WS_Q}")
        a.I(f"s_mov_b32 exec_lo, 0x{MASK_N4_LO:x}")
        a.I(f"s_mov_b32 exec_hi, 0x{MASK_N4_LO:x}")
        a.I("buffer_store_dwordx4 v[64:67], v6, s[40:43], s47 offen sc1")
        a.I("s_mov_b64 exec, -1")
        self.stamp(12)
        a.label("L_h_q")
        a.fence(2)
        self.roles_rest()
        self.srd(40, 30, WS_SIZE)
        a.I("s_cmp_lg_u32 s44, 0")
        a.I("s_cbranch_scc1 L_hb1")
        a.I("v_and_b32 v6, 31, v5")
        a.I("v_mul_u32_u24 v11, 12, v6")
        a.I("v_lshlrev_b32 v6, 1, v11")
        a.I("s_mul_i32 s45, s57, 24576")
        a.I("s_mul_i32 s46, s58, 768")
        a.I("s_add_u32 s46, s45, s46")
        a.I(f"s_add_u32 s46, s46, {WS_Q}")
        a.I(f"s_add_u32 s47, s46, {4*24576}")
        self.poll(["buffer_load_dwordx3 v[12:14], v6, s[40:43], s46 offen sc1",
                   "buffer_load_dwordx3 v[16:18], v6, s[40:43], s46 offen offset:12 sc1",
                   "buffer_load_dwordx3 v[20:22], v6, s[40:43], s47 offen sc1",
                   "buffer_load_dwordx3 v[24:26], v6, s[40:43], s47 offen offset:12 sc1"],
                  [12, 13, 14, 16, 17, 18, 20, 21, 22, 24, 25, 26], "L_pq", pre=7)
        for k in range(3):
            a.I(f"v_add_f32 v{12+k}, v{12+k}, v{20+k}")
            a.I(f"v_add_f32 v{16+k}, v{16+k}, v{24+k}")
        a.I("v_cvt_pk_bf16_f32 v8, v12, v13")
        a.I("v_cvt_pk_bf16_f32 v9, v14, v16")
        a.I("v_cvt_pk_bf16_f32 v10, v17, v18")
        a.I(f"ds_write_b32 v11, v8 offset:{L_QV}")
        a.I(f"ds_write_b32 v11, v9 offset:{L_QV+4}")
        a.I(f"ds_write_b32 v11, v10 offset:{L_QV+8}")
        a.I("s_waitcnt lgkmcnt(0)")
        a.label("L_hb1")
        self.stamp(1)
        a.I("s_barrier")
        self.stamp(2)
        a.label("L_late_done")
        a.fence(2)
        a.I("s_barrier")
        self.stamp(4)
        a.I("s_cmp_lg_u32 s44, 0")
        a.I("s_cbranch_scc1 L_hb3")
        self.ml_exchange()
        a.label("L_hb3")
        self.stamp(5)
        a.I("s_barrier")
        self.stamp(6)
        a.I("s_waitcnt vmcnt(0)")
        a.I("s_barrier")
        self.stamp(8)

    def dma_loop(self, srd, n, vE, vO, lds_reg, soff_reg, step, label, cnt=63):
        a = self.a
        a.I(f"s_mov_b32 s{cnt}, {n // 2}")
        a.label(label)
        for v in (vE, vO):
            a.I(f"s_mov_b32 m0, s{lds_reg}")
            a.I(f"s_add_u32 s{lds_reg}, s{lds_reg}, 1024")
            a.I(f"buffer_load_dwordx4 v{v}, s[{srd}:{srd+3}], s{soff_reg} offen nt lds")
            a.I(f"s_add_u32 s{soff_reg}, s{soff_reg}, {step}")
        a.I(f"s_sub_u32 s{cnt}, s{cnt}, 1")
        a.I(f"s_cmp_lg_u32 s{cnt}, 0")
        a.I(f"s_cbranch_scc1 {label}")

    def mfma_chain2(self, nks, vA0, vA1, stepA, half_off, vB, d0, d1):
        a = self.a
        DEPTH = 2

        def issue(ks):
            b = 80 + 16 * (ks % DEPTH)
            a.I(f"ds_read_b64_tr_b16 v[{b}:{b+1}], v{vA0} offset:{stepA*ks}")
            a.I(f"ds_read_b64_tr_b16 v[{b+2}:{b+3}], v{vA0} offset:{stepA*ks + half_off}")
            a.I(f"ds_read_b128 v[{b+4}:{b+7}], v{vB} offset:{64*ks}")
            a.I(f"ds_read_b64_tr_b16 v[{b+8}:{b+9}], v{vA1} offset:{stepA*ks}")
            a.I(f"ds_read_b64_tr_b16 v[{b+10}:{b+11}], v{vA1} offset:{stepA*ks + half_off}")
            a.I(f"ds_read_b128 v[{b+12}:{b+15}], v{vB} offset:{64*(nks+ks)}")
        for ks in range(DEPTH):
            issue(ks)
        for ks in range(nks):
            left = min(nks - 1 - ks, DEPTH - 1)
            a.I(f"s_waitcnt lgkmcnt({6*left})")
            b = 80 + 16 * (ks % DEPTH)
            c0 = "0" if ks == 0 else f"v[{d0}:{d0+3}]"
            c1 = "0" if ks == 0 else f"v[{d1}:{d1+3}]"
            a.I(f"v_mfma_f32_16x16x32_bf16 v[{d0}:{d0+3}], v[{b}:{b+3}], v[{b+4}:{b+7}], {c0}")
            a.I(f"v_mfma_f32_16x16x32_bf16 v[{d1}:{d1+3}], v[{b+8}:{b+11}], v[{b+12}:{b+15}], {c1}")
            if ks + DEPTH < nks:
                issue(ks + DEPTH)

    def mfma_chain(self, nks, vA, stepA, half_off, vB, dreg):
        a = self.a
        DEPTH = 4

        def issue(ks):
            b = 80 + 8 * (ks % DEPTH)
            a.I(f"ds_read_b64_tr_b16 v[{b}:{b+1}], v{vA} offset:{stepA*ks}")
            a.I(f"ds_read_b64_tr_b16 v[{b+2}:{b+3}], v{vA} offset:{stepA*ks + half_off}")
            a.I(f"ds_read_b128 v[{b+4}:{b+7}], v{vB} offset:{64*ks}")
        for ks in range(min(DEPTH, nks)):
            issue(ks)
        for ks in range(nks):
            left = min(nks - 1 - ks, DEPTH - 1)
            a.I(f"s_waitcnt lgkmcnt({3*left})")
            b = 80 + 8 * (ks % DEPTH)
            c = "0" if ks == 0 else f"v[{dreg}:{dreg+3}]"
            a.I(f"v_mfma_f32_16x16x32_bf16 v[{dreg}:{dreg+3}], v[{b}:{b+3}], v[{b+4}:{b+7}], {c}")
            if ks + DEPTH < nks:
                issue(ks + DEPTH)

    def dma_band128(self, srd, rowstride, ninstr, vE, vO, lds_base_sreg, soff_reg, tag):
        a = self.a
        for i in range(ninstr):
            a.I(f"s_mov_b32 m0, s{lds_base_sreg}")
            v = vO if i & 1 else vE
            a.I(f"s_add_u32 s{lds_base_sreg}, s{lds_base_sreg}, 1024")
            a.I(f"buffer_load_dwordx4 v{v}, s[{srd}:{srd+3}], s{soff_reg} offen nt lds")
            if i + 1 < ninstr:
                a.I(f"s_add_u32 s{soff_reg}, s{soff_reg}, {8*rowstride}")

    def dma_voff128(self, rowstride, vE, vO, t0, t1):
        a = self.a
        a.I(f"v_lshrrev_b32 v{t0}, 3, v5")
        a.I(f"v_bfe_u32 v{t1}, v5, 4, 1")
        a.I(f"v_lshlrev_b32 v{t1}, 5, v{t1}")
        a.I(f"v_and_b32 v{vE}, 7, v5")
        a.I(f"v_lshlrev_b32 v{vE}, 4, v{vE}")
        a.I(f"v_xor_b32 v{vE}, v{vE}, v{t1}")
        a.I(f"v_xor_b32 v{vO}, 64, v{vE}")
        a.I(f"s_mov_b32 s45, {rowstride}")
        a.I(f"v_mul_lo_u32 v{t0}, s45, v{t0}")
        a.I(f"v_add_u32 v{vE}, v{vE}, v{t0}")
        a.I(f"v_add_u32 v{vO}, v{vO}, v{t0}")

    def tr_addr128(self, vdst, t0, t1):
        a = self.a
        a.I(f"v_lshrrev_b32 v{t0}, 4, v5")
        a.I(f"v_bfe_u32 v{t1}, v5, 2, 2")
        a.I(f"v_lshl_add_u32 v{vdst}, v{t0}, 3, v{t1}")
        a.I(f"v_lshlrev_b32 v{vdst}, 7, v{vdst}")
        a.I(f"v_and_b32 v{t0}, 1, v{t0}")
        a.I(f"v_lshlrev_b32 v{t0}, 6, v{t0}")
        a.I(f"v_bfe_u32 v{t1}, v5, 3, 1")
        a.I(f"v_lshlrev_b32 v{t1}, 5, v{t1}")
        a.I(f"v_or3_b32 v{vdst}, v{vdst}, v{t0}, v{t1}")
        a.I(f"v_and_b32 v{t0}, 3, v5")
        a.I(f"v_lshl_add_u32 v{vdst}, v{t0}, 3, v{vdst}")

    def act_addr(self, vdst, stride, t0):
        a = self.a
        a.I(f"v_and_b32 v{t0}, 3, v5")
        a.I(f"v_mul_u32_u24 v{vdst}, {stride}, v{t0}")
        a.I(f"v_lshrrev_b32 v{t0}, 4, v5")
        a.I(f"v_lshl_add_u32 v{vdst}, v{t0}, 4, v{vdst}")

    def ml_exchange(self):
        a = self.a
        a.I("v_and_b32 v6, 7, v5")
        a.I("v_lshlrev_b32 v6, 3, v6")
        a.I(f"ds_read_b64 v[8:9], v6 offset:{L_STATS}")
        a.I(f"s_mov_b32 s54, 0x{LOG2E:x}")
        a.I("s_waitcnt lgkmcnt(0)")
        a.I("v_mov_b32 v10, v8")
        a.I("v_max_f32_dpp v10, v10, v10 quad_perm:[1,0,3,2] row_mask:0xf bank_mask:0xf")
        a.I("v_max_f32_dpp v10, v10, v10 quad_perm:[2,3,0,1] row_mask:0xf bank_mask:0xf")
        a.I("v_max_f32_dpp v10, v10, v10 row_half_mirror row_mask:0xf bank_mask:0xf")
        a.I("v_sub_f32 v11, v8, v10")
        a.I("v_mul_f32 v11, s54, v11")
        a.I("v_exp_f32 v11, v11")
        a.I("v_mul_f32 v11, v11, v9")
        a.I("v_add_f32_dpp v11, v11, v11 quad_perm:[1,0,3,2] row_mask:0xf bank_mask:0xf")
        a.I("v_add_f32_dpp v11, v11, v11 quad_perm:[2,3,0,1] row_mask:0xf bank_mask:0xf")
        a.I("v_add_f32_dpp v11, v11, v11 row_half_mirror row_mask:0xf bank_mask:0xf")
        a.I(f"v_mov_b32 v12, 0x{NANF:x}")
        self.canon([10, 11], 12)
        a.I("s_lshl_b32 s45, s2, 7")
        a.I(f"s_add_u32 s45, s45, {WS_ML}")
        a.I("v_mov_b32 v6, 0")
        a.I("s_mov_b64 exec, 1")
        a.I("buffer_store_dwordx2 v[10:11], v6, s[40:43], s45 offen sc1")
        a.I("s_mov_b64 exec, -1")
        a.I("s_xor_b32 s46, s2, 32")
        a.I("s_lshl_b32 s46, s46, 7")
        a.I(f"s_add_u32 s46, s46, {WS_ML}")
        self.poll(["buffer_load_dwordx2 v[12:13], v6, s[40:43], s46 offen sc1"], [12, 13], "L_pml", pre=7)
        a.I("v_max_f32 v14, v10, v12")
        a.I("v_sub_f32 v15, v10, v14")
        a.I("v_sub_f32 v16, v12, v14")
        a.I("v_mul_f32 v15, s54, v15")
        a.I("v_mul_f32 v16, s54, v16")
        a.I("v_exp_f32 v15, v15")
        a.I("v_exp_f32 v16, v16")
        a.I("v_mul_f32 v15, v15, v11")
        a.I("v_mul_f32 v16, v16, v13")
        a.I("v_add_f32 v15, v15, v16")
        a.I("v_rcp_f32 v16, v15")
        a.I("v_fma_f32 v17, -v15, v16, 1.0")
        a.I("v_fma_f32 v16, v17, v16, v16")
        a.I(f"v_mov_b32 v6, {L_FIN}")
        a.I("ds_write_b32 v6, v14")
        a.I("ds_write_b32 v6, v16 offset:4")
        a.I("s_waitcnt lgkmcnt(0)")

    def post(self):
        a = self.a
        a.label("L_post")
        a.fence(4)
        a.I("s_setprio 0")
        a.I("v_and_b32 v5, 63, v0")
        a.I("s_cmp_lg_u32 s44, 0")
        a.I("s_cbranch_scc1 L_o_done")
        a.I("v_lshlrev_b32 v6, 4, v5")
        a.I("s_mov_b32 exec_lo, -1"); a.I("s_mov_b32 exec_hi, 0xffff")
        for w in range(8):
            a.I(f"ds_read_b128 v[{8+4*w}:{11+4*w}], v6 offset:{L_OPART+768*w}")
        for w in range(1, 8):
            a.I(f"s_waitcnt lgkmcnt({7-w})")
            for k in range(4):
                a.I(f"v_add_f32 v{8+k}, v{8+k}, v{8+4*w+k}")
        a.I(f"v_mov_b32 v12, 0x{NANF:x}")
        self.canon([8, 9, 10, 11], 12)
        a.I("s_lshl_b32 s45, s57, 5")
        a.I("s_add_u32 s45, s45, s58")
        a.I("s_lshl_b32 s45, s45, 1")
        a.I("s_add_u32 s45, s45, s59")
        a.I("s_mul_i32 s45, s45, 768")
        a.I(f"s_add_u32 s45, s45, {WS_O}")
        a.I("buffer_store_dwordx4 v[8:11], v6, s[40:43], s45 offen sc1")
        a.I("s_mov_b64 exec, -1")
        a.label("L_o_done")
        a.fence(2)
        a.I(f"s_cmp_eq_u32 s{S_POST}, 0")
        a.I("s_cbranch_scc1 L_tail")
        a.I("s_barrier")
        a.I(f"s_cmp_eq_u32 s{S_POST}, 1")
        a.I("s_cbranch_scc0 L_post23")
        self.post_wo()
        a.I("s_branch L_tail")
        a.label("L_post23")
        a.fence(2)
        self.post_gu()
        a.I(f"s_cmp_lt_u32 s{S_DT}, 40")
        a.I("s_cbranch_scc0 L_tail")
        self.post_final()

    def red_lane_addr(self, vdst, t):
        a = self.a
        a.I(f"v_lshrrev_b32 v{vdst}, 4, v5")
        a.I(f"v_and_b32 v{t}, 3, v5")
        a.I(f"v_lshl_add_u32 v{vdst}, v{vdst}, 2, v{t}")
        a.I(f"v_lshlrev_b32 v{vdst}, 4, v{vdst}")

    def write_red(self, dreg, vaddr):
        a = self.a
        a.I("s_lshl_b32 s45, s44, 8")
        a.I(f"s_add_u32 s45, s45, {L_RED}")
        a.I(f"v_add_u32 v{vaddr}, s45, v{vaddr}")
        a.I(f"s_mov_b32 exec_lo, 0x{MASK_N4_LO:x}")
        a.I(f"s_mov_b32 exec_hi, 0x{MASK_N4_LO:x}")
        a.I(f"ds_write_b128 v{vaddr}, v[{dreg}:{dreg+3}]")
        a.I("s_mov_b64 exec, -1")
        a.I("s_waitcnt lgkmcnt(0)")
        a.I("s_barrier")

    def mfma_run(self, nks, vA, offA, stepA, half_off, vB, dreg, first_reg=40):
        a = self.a
        for ks in range(nks):
            b = first_reg + 8 * ks
            a.I(f"ds_read_b64_tr_b16 v[{b}:{b+1}], v{vA} offset:{offA + stepA*ks}")
            a.I(f"ds_read_b64_tr_b16 v[{b+2}:{b+3}], v{vA} offset:{offA + stepA*ks + half_off}")
            a.I(f"ds_read_b128 v[{b+4}:{b+7}], v{vB} offset:{64*ks}")
        for ks in range(nks):
            b = first_reg + 8 * ks
            a.I(f"s_waitcnt lgkmcnt({min(15, 3*(nks-1-ks))})")
            c = "0" if ks == 0 else f"v[{dreg}:{dreg+3}]"
            a.I(f"v_mfma_f32_16x16x32_bf16 v[{dreg}:{dreg+3}], v[{b}:{b+3}], v[{b+4}:{b+7}], {c}")

    def mfma_preread(self, n, vA, stepA, half_off, first):
        a = self.a
        for ks in range(n):
            b = first + 4 * ks
            a.I(f"ds_read_b64_tr_b16 v[{b}:{b+1}], v{vA} offset:{stepA*ks}")
            a.I(f"ds_read_b64_tr_b16 v[{b+2}:{b+3}], v{vA} offset:{stepA*ks + half_off}")

    def mfma_with_b(self, n, firstA, vB, firstB, dreg):
        a = self.a
        for ks in range(n):
            b = firstB + 4 * ks
            a.I(f"ds_read_b128 v[{b}:{b+3}], v{vB} offset:{64*ks}")
        for ks in range(n):
            a.I(f"s_waitcnt lgkmcnt({n-1-ks})")
            c = "0" if ks == 0 else f"v[{dreg}:{dreg+3}]"
            a.I(f"v_mfma_f32_16x16x32_bf16 v[{dreg}:{dreg+3}], v[{firstA+4*ks}:{firstA+4*ks+3}], v[{firstB+4*ks}:{firstB+4*ks+3}], {c}")

    def post_wo(self):
        a = self.a
        a.I(f"s_mul_i32 s45, s{S_KG}, {768*1280}")
        a.I(f"s_lshl_b32 s46, s{S_NB}, 7")
        a.I("s_add_u32 s47, s45, s46")
        self.srd(32, 12, 768 * 1280, off=47)
        self.dma_voff128(1280, 8, 9, 6, 7)
        a.I(f"s_mul_i32 s46, s44, {64*1280}")
        a.I("s_lshl_b32 s47, s44, 13")
        a.I(f"s_add_u32 s47, s47, {L_W}")
        self.dma_loop(32, 8, 8, 9, 47, 46, 8 * 1280, "L_wo_dma")
        a.I("s_mul_i32 s45, s44, 21846")
        a.I("s_lshr_b32 s45, s45, 16")
        a.I("s_mul_i32 s46, s45, 3")
        a.I("s_sub_u32 s46, s44, s46")
        a.I("s_lshl_b32 s46, s46, 6")
        a.I("v_add_u32 v10, s46, v5")
        a.I("v_mul_u32_u24 v11, 1366, v10")
        a.I("v_lshrrev_b32 v11, 16, v11")
        a.I("v_mul_u32_u24 v12, 48, v11")
        a.I("v_sub_u32 v12, v10, v12")
        a.I("v_mul_u32_u24 v11, 1536, v11")
        a.I("v_lshl_add_u32 v11, v12, 4, v11")
        a.I("s_lshl_b32 s63, s45, 5")
        a.I(f"s_lshl_b32 s46, s{S_KG}, 2")
        a.I("s_add_u32 s63, s63, s46")
        a.I("s_mul_i32 s63, s63, 1536")
        a.I(f"s_add_u32 s63, s63, {WS_O}")
        a.I("s_mul_i32 s46, s45, 1600")
        a.I(f"s_add_u32 s46, s46, {L_ACT}")
        a.I("v_lshl_add_u32 v13, v10, 3, s46")
        self.tr_addr128(14, 6, 7)
        a.I("s_and_b32 s45, s44, 3")
        a.I("s_lshl_b32 s45, s45, 5")
        a.I("v_xor_b32 v14, s45, v14")
        a.I("s_lshr_b32 s45, s44, 2")
        a.I("s_lshl_b32 s46, s45, 15")
        a.I(f"s_add_u32 s46, s46, {L_W}")
        a.I("v_add_u32 v14, s46, v14")
        self.act_addr(15, 1600, 6)
        a.I("s_lshl_b32 s46, s45, 9")
        a.I(f"s_add_u32 s46, s46, {L_ACT}")
        a.I("v_add_u32 v15, s46, v15")
        self.red_lane_addr(16, 6)
        a.I("v_and_b32 v17, 3, v5")
        a.I("v_mul_u32_u24 v17, 2560, v17")
        a.I("v_lshrrev_b32 v7, 2, v5")
        a.I("v_lshl_add_u32 v17, v7, 4, v17")
        a.I("s_waitcnt vmcnt(0)")
        a.I("s_barrier")
        self.stamp(9)
        self.mfma_preread(8, 14, 4096, 512, 40)
        self.poll(["buffer_load_dwordx4 v[20:23], v11, s[40:43], s63 offen sc1",
                   "buffer_load_dwordx4 v[24:27], v11, s[40:43], s63 offen offset:768 sc1"],
                  list(range(20, 28)), "L_po", pre=6)
        self.stamp(10)
        for k in range(4):
            a.I(f"v_add_f32 v{20+k}, v{20+k}, v{24+k}")
        a.I("v_cvt_pk_bf16_f32 v20, v20, v21")
        a.I("v_cvt_pk_bf16_f32 v21, v22, v23")
        a.I("ds_write_b64 v13, v[20:21]")
        a.I("s_waitcnt lgkmcnt(0)")
        a.I("s_barrier")
        self.mfma_with_b(8, 40, 15, 72, 20)
        self.write_red(20, 16)
        a.I("s_cmp_lg_u32 s44, 0")
        a.I("s_cbranch_scc1 L_wo_done")
        a.I("v_lshlrev_b32 v6, 4, v5")
        for kt in range(3):
            a.I(f"ds_read_b128 v[{20+4*kt}:{23+4*kt}], v6 offset:{L_RED + 1024*kt}")
        a.I(f"s_mul_i32 s45, s{S_KG}, 10240")
        a.I(f"s_lshl_b32 s46, s{S_NB}, 8")
        a.I("s_add_u32 s45, s45, s46")
        a.I(f"s_add_u32 s45, s45, {WS_Y}")
        a.I(f"v_mov_b32 v12, 0x{NANF:x}")
        a.I("s_waitcnt lgkmcnt(0)")
        for k in range(4):
            a.I(f"v_add_f32 v{20+k}, v{20+k}, v{24+k}")
        for k in range(4):
            a.I(f"v_add_f32 v{20+k}, v{20+k}, v{28+k}")
        self.canon([20, 21, 22, 23], 12)
        a.I("buffer_store_dwordx4 v[20:23], v17, s[40:43], s45 offen sc1")
        a.label("L_wo_done")
        self.stamp(11)

    def dma_band64(self, srd, rowstride, ninstr, v, lds_reg, soff_reg):
        a = self.a
        for i in range(ninstr):
            a.I(f"s_mov_b32 m0, s{lds_reg}")
            a.I(f"s_add_u32 s{lds_reg}, s{lds_reg}, 1024")
            a.I(f"buffer_load_dwordx4 v{v}, s[{srd}:{srd+3}], s{soff_reg} offen nt lds")
            if i + 1 < ninstr:
                a.I(f"s_add_u32 s{soff_reg}, s{soff_reg}, {16*rowstride}")

    def dma_voff64(self, rowstride, v, t0, t1):
        a = self.a
        a.I(f"v_lshrrev_b32 v{t0}, 2, v5")
        a.I(f"v_bfe_u32 v{t1}, v5, 5, 1")
        a.I(f"v_lshlrev_b32 v{t1}, 5, v{t1}")
        a.I(f"v_and_b32 v{v}, 3, v5")
        a.I(f"v_lshlrev_b32 v{v}, 4, v{v}")
        a.I(f"v_xor_b32 v{v}, v{v}, v{t1}")
        a.I(f"v_mul_u32_u24 v{t0}, {rowstride}, v{t0}")
        a.I(f"v_add_u32 v{v}, v{v}, v{t0}")

    def tr_addr64(self, vdst, t0, t1):
        a = self.a
        a.I(f"v_lshrrev_b32 v{t0}, 4, v5")
        a.I(f"v_bfe_u32 v{t1}, v5, 2, 2")
        a.I(f"v_lshl_add_u32 v{vdst}, v{t0}, 3, v{t1}")
        a.I(f"v_lshlrev_b32 v{vdst}, 6, v{vdst}")
        a.I(f"v_and_b32 v{t0}, 1, v{t0}")
        a.I(f"v_lshl_or_b32 v{vdst}, v{t0}, 5, v{vdst}")
        a.I(f"v_and_b32 v{t0}, 3, v5")
        a.I(f"v_lshl_add_u32 v{vdst}, v{t0}, 3, v{vdst}")

    def x1_from_y(self, vy_addr_soff, yregs, ga, xr, out, t):
        a = self.a
        for k in range(4):
            a.I(f"v_add_f32 v{out+k}, v{yregs+k}, v{yregs+4+k}")
        for w in range(2, 8):
            for k in range(4):
                a.I(f"v_add_f32 v{out+k}, v{out+k}, v{yregs+4*w+k}")
        o = [out + k for k in range(4)]
        self.bf16_round(o, t)
        for p in range(2):
            self.unpack(ga + p, t + 1, t + 2)
            a.I(f"v_mul_f32 v{o[2*p]}, v{o[2*p]}, v{t+1}")
            a.I(f"v_mul_f32 v{o[2*p+1]}, v{o[2*p+1]}, v{t+2}")
        self.bf16_round(o, t)
        for p in range(2):
            self.unpack(xr + p, t + 1, t + 2)
            a.I(f"v_add_f32 v{o[2*p]}, v{o[2*p]}, v{t+1}")
            a.I(f"v_add_f32 v{o[2*p+1]}, v{o[2*p+1]}, v{t+2}")
        self.bf16_round(o, t)

    def post_gu(self):
        a = self.a
        a.I("s_cmp_ge_u32 s44, 10")
        a.I("s_cbranch_scc1 L_gu_dn")
        a.I(f"s_lshl_b32 s47, s{S_NB}, 6")
        a.I("s_cmp_ge_u32 s44, 5")
        a.I("s_cselect_b32 s48, s18, s16")
        a.I("s_cselect_b32 s49, s19, s17")
        a.I("s_cselect_b32 s63, 5, 0")
        self.srd(32, 48, 640 * 3072, off=47)
        self.dma_voff64(3072, 8, 6, 7)
        a.I("s_sub_u32 s63, s44, s63")
        a.I(f"s_mul_i32 s46, s63, {128*3072}")
        a.I("s_lshl_b32 s47, s44, 13")
        a.I(f"s_add_u32 s47, s47, {L_W}")
        self.dma_loop(32, 8, 8, 8, 47, 46, 16 * 3072, "L_gu_dma")
        a.I("s_branch L_gu_dma_done")
        a.label("L_gu_dn")
        a.I(f"s_mul_i32 s47, s{S_NB}, 40960")
        self.srd(32, 20, 40960, off=47)
        a.I("v_lshlrev_b32 v8, 4, v5")
        a.I("s_sub_u32 s63, s44, 10")
        a.I("s_mul_i32 s46, s63, 20480")
        a.I(f"s_add_u32 s47, s46, {L_WD}")
        self.dma_loop(32, 20, 8, 8, 47, 46, 1024, "L_gu_dndma")
        a.label("L_gu_dma_done")
        a.fence(2)
        self.stamp(22)
        a.I("s_mul_i32 s45, s44, 21846")
        a.I("s_lshr_b32 s87, s45, 16")
        a.I("s_mul_i32 s46, s87, 3")
        a.I("s_sub_u32 s88, s44, s46")
        a.I("s_mul_i32 s46, s88, 54")
        a.I("v_add_u32 v10, s46, v5")
        a.I("v_cmp_gt_u32 vcc, 54, v5")
        a.I("s_mov_b64 s[50:51], vcc")
        a.I("v_mov_b32 v6, 160")
        a.I("v_cmp_lt_u32 vcc, v10, v6")
        a.I("s_and_b64 s[50:51], s[50:51], vcc")
        a.I("v_min_u32 v10, 159, v10")
        a.I("v_lshlrev_b32 v11, 3, v10")
        a.I("s_mul_i32 s46, s87, 7680")
        a.I(f"s_add_u32 s46, s46, {WS_MOD}")
        self.srd(36, 4, 5120)
        a.I("s_mul_i32 s47, s87, 1280")
        a.I("buffer_load_dwordx2 v[18:19], v11, s[36:39], s47 offen")
        a.I("s_mul_i32 s46, s87, 7680")
        a.I(f"s_add_u32 s46, s46, {WS_MOD}")
        a.I("v_add_u32 v40, 2560, v11")
        a.I("v_add_u32 v41, 3840, v11")
        a.I("v_add_u32 v42, 5120, v11")
        self.poll(["buffer_load_dwordx2 v[12:13], v40, s[40:43], s46 offen sc1",
                   "buffer_load_dwordx2 v[14:15], v41, s[40:43], s46 offen sc1",
                   "buffer_load_dwordx2 v[16:17], v42, s[40:43], s46 offen sc1"],
                  list(range(12, 18)), "L_pm2", pre=6)
        self.stamp(23)
        self.unpack(16, 20, 21)
        self.unpack(17, 22, 23)
        for k in range(4):
            a.I(f"v_add_f32 v{20+k}, 1.0, v{20+k}")
        self.bf16_round([20, 21, 22, 23], 6)
        self.unpack(14, 24, 25)
        self.unpack(15, 26, 27)
        self.tr_addr64(28, 6, 7)
        a.I("s_and_b32 s45, s44, 1")
        a.I("s_lshl_b32 s45, s45, 5")
        a.I("v_xor_b32 v28, s45, v28")
        a.I("s_bfe_u32 s45, s44, 0x10001")
        a.I("s_mul_i32 s45, s45, 40960")
        a.I("s_lshr_b32 s46, s44, 2")
        a.I(f"s_mul_i32 s47, s46, {7*2048}")
        a.I("s_add_u32 s45, s45, s47")
        a.I(f"s_add_u32 s45, s45, {L_W}")
        a.I("v_add_u32 v28, s45, v28")
        self.act_addr(29, 1344, 6)
        a.I(f"s_mul_i32 s47, s46, {7*64}")
        a.I(f"s_add_u32 s47, s47, {L_ACT}")
        a.I("v_add_u32 v29, s47, v29")
        self.red_lane_addr(30, 6)
        a.I("s_mul_i32 s47, s87, 1344")
        a.I(f"s_add_u32 s47, s47, {L_ACT}")
        a.I("v_lshl_add_u32 v31, v10, 3, s47")
        a.I("v_lshlrev_b32 v32, 4, v10")
        a.I("s_mul_i32 s47, s87, 2560")
        a.I(f"s_add_u32 s47, s47, {WS_Y}")
        a.I("s_barrier")
        self.stamp(9)
        self.mfma_preread(7, 28, 2048, 256, 96)
        a.I("v_lshrrev_b32 v6, 4, v5")
        a.I("v_bfe_u32 v7, v5, 2, 2")
        a.I("v_lshl_add_u32 v6, v6, 3, v7")
        a.I("v_mul_u32_u24 v6, 1280, v6")
        a.I("v_and_b32 v7, 3, v5")
        a.I("v_lshl_add_u32 v6, v7, 3, v6")
        a.I("s_lshl_b32 s45, s44, 5")
        a.I(f"s_add_u32 s45, s45, {L_WD}")
        a.I("v_add_u32 v6, s45, v6")
        for t in range(4):
            b = 124 + 4 * t
            off = 384 * t
            a.I(f"ds_read_b64_tr_b16 v[{b}:{b+1}], v6 offset:{off}")
            a.I(f"ds_read_b64_tr_b16 v[{b+2}:{b+3}], v6 offset:{off + 4*1280}")
        loads = []
        for w in range(8):
            loads.append(f"buffer_load_dwordx4 v[{40+4*w}:{43+4*w}], v{72+w}, s[40:43], s47 offen sc1")
            a.I(f"v_add_u32 v{72+w}, {10240*w}, v32")
        self.poll(loads, list(range(40, 72)), "L_py", pre=6)
        self.stamp(10)
        self.x1_from_y(None, 40, 12, 18, 32, 6)
        a.I("v_cvt_pk_bf16_f32 v36, v32, v33")
        a.I("v_cvt_pk_bf16_f32 v37, v34, v35")
        a.I("s_mul_i32 s45, s87, 1280")
        a.I(f"s_add_u32 s45, s45, {L_OPART}")
        a.I("v_lshl_add_u32 v6, v10, 3, s45")
        a.I("s_mov_b64 exec, s[50:51]")
        a.I("ds_write_b64 v6, v[36:37]")
        a.I("s_mov_b64 exec, -1")
        a.I("v_add_f32 v36, v32, v33")
        a.I("v_add_f32 v37, v34, v35")
        a.I("v_add_f32 v36, v36, v37")
        a.I("v_cndmask_b32 v36, 0, v36, s[50:51]")
        self.wave_sum_bcast(36, 46)
        a.I("s_cmp_eq_u32 s88, 2")
        a.I("s_mov_b32 s45, OPQ")
        a.I("s_cselect_b32 s45, s45, OPQ")
        a.I("v_mov_b32 v37, s45")
        a.I("v_mul_f32 v37, s46, v37")
        a.I("v_mov_b32 v36, 0")
        for k in range(4):
            a.I(f"v_sub_f32 v38, v{32+k}, v37")
            a.I("v_fmac_f32 v36, v38, v38")
        a.I("v_cndmask_b32 v36, 0, v36, s[50:51]")
        self.wave_sum_bcast(36, 46)
        a.I("s_lshl_b32 s45, s44, 3")
        a.I(f"s_add_u32 s45, s45, {L_LNST}")
        a.I("v_mov_b32 v6, s45")
        a.I("v_mov_b32 v38, s46")
        a.I("ds_write_b32 v6, v37")
        a.I("ds_write_b32 v6, v38 offset:4")
        a.I("s_waitcnt lgkmcnt(0)")
        a.I("s_barrier")
        a.I("s_mul_i32 s45, s87, 24")
        a.I(f"s_add_u32 s45, s45, {L_LNST}")
        a.I("v_mov_b32 v6, s45")
        a.I("ds_read_b64 v[40:41], v6")
        a.I("ds_read_b64 v[42:43], v6 offset:8")
        a.I("ds_read_b64 v[44:45], v6 offset:16")
        a.I("s_waitcnt lgkmcnt(0)")
        a.I("v_add_f32 v46, v40, v42")
        a.I("v_mul_f32 v46, 0x43580000, v46")
        a.I("v_mov_b32 v47, 0x43500000")
        a.I("v_fmac_f32 v46, v47, v44")
        a.I("v_mul_f32 v46, 0x3acccccd, v46")
        a.I("v_sub_f32 v40, v40, v46")
        a.I("v_sub_f32 v42, v42, v46")
        a.I("v_sub_f32 v44, v44, v46")
        a.I("v_mul_f32 v40, v40, v40")
        a.I("v_fmac_f32 v40, v42, v42")
        a.I("v_mul_f32 v40, 0x43580000, v40")
        a.I("v_mul_f32 v44, v44, v44")
        a.I("v_fmac_f32 v40, v47, v44")
        a.I("v_add_f32 v40, v40, v41")
        a.I("v_add_f32 v40, v40, v43")
        a.I("v_add_f32 v40, v40, v45")
        a.I("v_mul_f32 v40, 0x3acccccd, v40")
        self.ln_denom(40, 48)
        a.I("v_cvt_pk_bf16_f32 v46, v46, v46")
        a.I("v_lshlrev_b32 v46, 16, v46")
        a.I("v_rcp_f32 v41, v40")
        o = [32, 33, 34, 35]
        for r in o:
            a.I(f"v_sub_f32 v{r}, v{r}, v46")
        self.bf16_round(o, 6)
        for r in o:
            self.div_by(r, 40, 41, 7)
        self.bf16_round(o, 6)
        for k, r in enumerate(o):
            a.I(f"v_mul_f32 v{r}, v{r}, v{20+k}")
        self.bf16_round(o, 6)
        for k, r in enumerate(o):
            a.I(f"v_add_f32 v{r}, v{r}, v{24+k}")
        a.I("v_cvt_pk_bf16_f32 v32, v32, v33")
        a.I("v_cvt_pk_bf16_f32 v33, v34, v35")
        a.I("s_mov_b64 exec, s[50:51]")
        a.I("ds_write_b64 v31, v[32:33]")
        a.I("s_mov_b64 exec, -1")
        a.I("s_waitcnt lgkmcnt(0)")
        a.I("s_barrier")
        a.I("s_cmp_ge_u32 s44, 8")
        a.I("s_cbranch_scc1 L_gu_m6")
        self.mfma_with_b(7, 96, 29, 40, 20)
        a.I("s_branch L_gu_mdone")
        a.label("L_gu_m6")
        a.fence(2)
        self.mfma_with_b(6, 96, 29, 40, 20)
        a.label("L_gu_mdone")
        a.fence(8)
        self.write_red(20, 30)
        a.I("s_cmp_lg_u32 s44, 0")
        a.I("s_cbranch_scc1 L_gu_done")
        a.I("v_lshlrev_b32 v6, 4, v5")
        for kt in range(3):
            a.I(f"ds_read_b128 v[{20+4*kt}:{23+4*kt}], v6 offset:{L_RED + 1024*kt}")
        a.I("s_waitcnt lgkmcnt(0)")
        for k in range(4):
            a.I(f"v_add_f32 v{20+k}, v{20+k}, v{24+k}")
        for k in range(4):
            a.I(f"v_add_f32 v{20+k}, v{20+k}, v{28+k}")
        self.bf16_round([20, 21, 22, 23], 6)
        for k in range(4):
            a.I(f"v_mov_b32 v{24+k}, v{20+k}")
        for k in range(4):
            a.I(f"v_permlane32_swap_b32 v{20+k}, v{24+k}")
        for k in range(4):
            a.I(f"v_mul_f32 v{20+k}, v{20+k}, v{24+k}")
        a.I("v_cvt_pk_bf16_f32 v20, v20, v21")
        a.I("v_cvt_pk_bf16_f32 v21, v22, v23")
        a.I("v_and_b32 v6, 3, v5")
        a.I("v_lshlrev_b32 v6, 6, v6")
        a.I("v_bfe_u32 v7, v5, 2, 3")
        a.I("v_lshl_add_u32 v6, v7, 3, v6")
        a.I("s_mov_b32 exec_lo, -1"); a.I("s_mov_b32 exec_hi, 0")
        a.I(f"ds_write_b64 v6, v[20:21] offset:{L_QV}")
        a.I("s_mov_b64 exec, -1")
        a.I("s_waitcnt lgkmcnt(0)")
        a.label("L_gu_done")
        a.I("s_barrier")
        a.I("v_and_b32 v6, 3, v5")
        a.I("v_lshlrev_b32 v6, 6, v6")
        a.I("v_lshrrev_b32 v7, 4, v5")
        a.I("v_lshl_add_u32 v6, v7, 4, v6")
        a.I(f"ds_read_b128 v[40:43], v6 offset:{L_QV}")
        a.I("v_and_b32 v6, 3, v5")
        a.I("v_lshlrev_b32 v6, 6, v6")
        a.I("v_lshl_add_u32 v6, v7, 4, v6")
        a.I("s_mul_i32 s45, s44, 12288")
        a.I(f"s_lshl_b32 s46, s{S_NB}, 8")
        a.I("s_add_u32 s45, s45, s46")
        a.I(f"s_add_u32 s45, s45, {WS_PD}")
        a.I(f"v_mov_b32 v12, 0x{NANF:x}")
        a.I("s_waitcnt lgkmcnt(0)")
        for t in range(4):
            a.I(f"v_mfma_f32_16x16x32_bf16 v[{44+4*t}:{47+4*t}], v[{124+4*t}:{127+4*t}], v[40:43], 0")
        a.I(f"s_mov_b32 exec_lo, 0x{MASK_N4_LO:x}")
        a.I(f"s_mov_b32 exec_hi, 0x{MASK_N4_LO:x}")
        for t in range(4):
            if t == 3:
                a.I("s_cmp_ge_u32 s44, 4")
                a.I("s_cbranch_scc1 L_gu_st_done")
            self.canon([44+4*t+k for k in range(4)], 12)
            a.I(f"buffer_store_dwordx4 v[{44+4*t}:{47+4*t}], v6, s[40:43], s45 offen sc1")
            if t < 3:
                a.I(f"s_add_u32 s45, s45, {12*12288}")
        a.label("L_gu_st_done")
        a.I("s_mov_b64 exec, -1")
        self.stamp(11)

    def post_final(self):
        a = self.a
        a.fence(2)
        a.I("v_lshlrev_b32 v10, 4, v5")
        a.I(f"s_mul_i32 s47, s{S_DT}, 12288")
        a.I("s_lshl_b32 s45, s44, 10")
        a.I("s_add_u32 s47, s47, s45")
        a.I(f"s_add_u32 s47, s47, {WS_PD}")
        a.I("v_bfe_u32 v12, v5, 2, 2")
        a.I("v_and_b32 v13, 3, v5")
        a.I("v_mul_u32_u24 v14, 7680, v12")
        a.I("v_lshl_add_u32 v14, v13, 3, v14")
        a.I(f"s_lshl_b32 s45, s{S_DT}, 5")
        a.I(f"s_add_u32 s46, s45, {WS_MOD + 6400}")
        a.I("v_mul_u32_u24 v31, 1280, v12")
        a.I("v_lshl_add_u32 v31, v13, 3, v31")
        a.I(f"s_add_u32 s45, s45, {L_OPART}")
        a.I("v_add_u32 v31, s45, v31")
        a.I("v_and_b32 v30, 15, v5")
        a.I("v_lshlrev_b32 v30, 4, v30")
        a.I("s_lshl_b32 s45, s44, 8")
        a.I(f"s_add_u32 s45, s45, {L_RED}")
        a.I("v_add_u32 v29, s45, v30")
        self.stamp(19)
        self.poll(["buffer_load_dwordx4 v[40:43], v10, s[40:43], s47 offen sc1",
                   "buffer_load_dwordx2 v[22:23], v14, s[40:43], s46 offen sc1"], [40, 41, 42, 43, 22, 23], "L_ph", pre=6)
        self.stamp(20)
        for sw in ("v_permlane32_swap_b32", "v_permlane16_swap_b32"):
            for k in range(4):
                a.I(f"v_mov_b32 v{44+k}, v{40+k}")
            for k in range(4):
                a.I(f"{sw} v{40+k}, v{44+k}")
            for k in range(4):
                a.I(f"v_add_f32 v{40+k}, v{40+k}, v{44+k}")
        a.I("s_mov_b32 exec_lo, 0xffff"); a.I("s_mov_b32 exec_hi, 0")
        a.I("ds_write_b128 v29, v[40:43]")
        a.I("s_mov_b64 exec, -1")
        a.I("s_waitcnt lgkmcnt(0)")
        a.I("s_barrier")
        a.I("s_cmp_lg_u32 s44, 0")
        a.I("s_cbranch_scc1 L_dn_done")
        a.I("v_lshrrev_b32 v6, 4, v5")
        a.I("v_mul_u32_u24 v6, 768, v6")
        a.I("v_add_u32 v6, v6, v30")
        for k in range(3):
            a.I(f"ds_read_b128 v[{40+4*k}:{43+4*k}], v6 offset:{L_RED + 256*k}")
        a.I("ds_read_b64 v[32:33], v31")
        self.srd(36, 26, 5120)
        a.I("s_waitcnt lgkmcnt(0)")
        for k in range(4):
            a.I(f"v_add_f32 v{40+k}, v{40+k}, v{44+k}")
        for k in range(4):
            a.I(f"v_add_f32 v{40+k}, v{40+k}, v{48+k}")
        for sw in ("v_permlane32_swap_b32", "v_permlane16_swap_b32"):
            for k in range(4):
                a.I(f"v_mov_b32 v{44+k}, v{40+k}")
            for k in range(4):
                a.I(f"{sw} v{40+k}, v{44+k}")
            for k in range(4):
                a.I(f"v_add_f32 v{40+k}, v{40+k}, v{44+k}")
        o = [40, 41, 42, 43]
        self.bf16_round(o, 6)
        self.unpack(22, 24, 25)
        self.unpack(23, 26, 27)
        for k in range(4):
            a.I(f"v_mul_f32 v{40+k}, v{40+k}, v{24+k}")
        self.bf16_round(o, 6)
        self.unpack(32, 24, 25)
        self.unpack(33, 26, 27)
        for k in range(4):
            a.I(f"v_add_f32 v{40+k}, v{40+k}, v{24+k}")
        a.I("v_cvt_pk_bf16_f32 v40, v40, v41")
        a.I("v_cvt_pk_bf16_f32 v41, v42, v43")
        a.I("v_mul_u32_u24 v6, 1280, v12")
        a.I("v_lshl_add_u32 v6, v13, 3, v6")
        a.I(f"s_lshl_b32 s45, s{S_DT}, 5")
        a.I("s_mov_b32 exec_lo, 0xffff"); a.I("s_mov_b32 exec_hi, 0")
        a.I("buffer_store_dwordx2 v[40:41], v6, s[36:39], s45 offen")
        a.I("s_mov_b64 exec, -1")
        a.label("L_dn_done")
        self.stamp(21)

    def tail(self):
        a = self.a
        a.label("L_tail")
        if self.diag:
            a.fence(4)
            self.stamp(13)
            a.I(f"s_lshl_b32 s79, s{S_PRE}, 4")
            a.I(f"s_or_b32 s79, s79, s{S_POST}")
            a.I("s_mul_i32 s45, s2, 12")
            a.I("s_add_u32 s45, s45, s44")
            a.I("s_lshl_b32 s45, s45, 7")
            a.I(f"s_add_u32 s45, s45, {WS_DBG}")
            a.I("s_mov_b64 exec, 1")
            a.I("v_mov_b32 v6, 0")
            regs = [64 + k for k in range(16)] + [93 + k for k in range(8)]
            for q in range(6):
                for k in range(4):
                    a.I(f"v_mov_b32 v{8+k}, s{regs[4*q+k]}")
                a.I(f"buffer_store_dwordx4 v[8:11], v6, s[40:43], s45 offen offset:{16*q}")
                a.I("s_nop 1")
        a.label("L_end")
        a.I("s_endpgm")
        a.raw(f""".section .rodata,"a"
.p2align 6
.amdhsa_kernel {self.name}
  .amdhsa_next_free_vgpr 168
  .amdhsa_next_free_sgpr 102
  .amdhsa_accum_offset 168
  .amdhsa_group_segment_fixed_size 0
  .amdhsa_float_denorm_mode_32 3
  .amdhsa_kernarg_size 112
  .amdhsa_user_sgpr_count 2
  .amdhsa_user_sgpr_kernarg_segment_ptr 1
  .amdhsa_system_sgpr_workgroup_id_x 1
.end_amdhsa_kernel""")

    def build(self):
        self.entry()
        self.helper()
        self.a.I("s_branch L_post")
        self.stream()
        self.post()
        self.tail()
        return self.a.text()


def make(path, diag=False, name=KNAME, **kw):
    cfg = StreamCfg()
    for k, v in kw.items():
        setattr(cfg, k, v)
    g = Gen(cfg, diag=diag, name=name)
    txt = g.build()
    open(path, 'w').write(txt)
    return g


if __name__ == '__main__':
    out = sys.argv[1]
    kw = {}
    diag = False
    name = KNAME
    for kv in sys.argv[2:]:
        k, v = kv.split('=')
        if k == 'diag': diag = bool(int(v))
        elif k == 'name': name = v
        else: kw[k] = v.replace('_', ' ') if k == 'nt' else int(v)
    g = make(out, diag=diag, name=name, **kw)
    print(out, 'nops', g.a.nops)
```

```python
import re

_REG = re.compile(r'^(-?|\|)?(v|s|a)(\d+|\[(\d+):(\d+)\])\|?$')


def regs_of(tok):
    tok = tok.strip()
    tok = tok.replace('abs(', '').replace(')', '') if tok.startswith(('abs(', '-abs(')) else tok
    tok = tok.lstrip('-')
    tok = tok.strip('|')
    if tok == 'vcc':
        return {('s', 'vcc_lo'), ('s', 'vcc_hi')}
    if tok == 'exec':
        return {('s', 'exec_lo'), ('s', 'exec_hi')}
    if tok in ('m0', 'vcc_lo', 'vcc_hi', 'exec_lo', 'exec_hi'):
        return {('s', tok)}
    m = re.match(r'^(v|s|a)(\d+)$', tok)
    if m:
        return {(m.group(1), int(m.group(2)))}
    m = re.match(r'^(v|s|a)\[(\d+):(\d+)\]$', tok)
    if m:
        return {(m.group(1), i) for i in range(int(m.group(2)), int(m.group(3)) + 1)}
    return set()


TRANS = ('v_exp_f32', 'v_log_f32', 'v_rcp_f32', 'v_rsq_f32', 'v_sqrt_f32', 'v_sin_f32', 'v_cos_f32', 'v_rcp_iflag_f32')


class Ins:
    __slots__ = ('text', 'op', 'cls', 'w', 'r', 'dpp', 'dppsrc', 'states', 'srcc', 'ab', 'lanesel', 'storedata')

    def __init__(self, text):
        self.text = text
        t = text.split(';')[0].strip()
        parts = t.split(None, 1)
        self.op = parts[0]
        rest = parts[1] if len(parts) > 1 else ''
        ops = [o.strip() for o in re.split(r',(?![^\[]*\])', rest)] if rest else []
        mods = ''
        if ops:
            last = ops[-1].split(None, 1)
            if last:
                ops[-1] = last[0]
                mods = last[1] if len(last) > 1 else ''
        op = self.op
        self.w = set(); self.r = set(); self.dpp = False; self.dppsrc = set(); self.states = 1
        self.srcc = set(); self.ab = set(); self.lanesel = set(); self.storedata = set()
        R = regs_of
        if op == 's_nop':
            self.cls = 'nop'; self.states = int(ops[0], 0) + 1
        elif op.startswith('v_mfma'):
            self.cls = 'mfma'
            self.w = R(ops[0]); self.ab = R(ops[1]) | R(ops[2]); self.srcc = R(ops[3]); self.r = self.ab | self.srcc
        elif op.startswith('v_'):
            self.cls = 'valu'
            base = op.replace('_e32', '').replace('_e64', '').replace('_dpp', '')
            if base.startswith('v_cmp'):
                self.w = R(ops[0])
                for o in ops[1:]: self.r |= R(o)
                if base.startswith('v_cmpx'): self.w |= R('exec')
            elif base in ('v_permlane16_swap_b32', 'v_permlane32_swap_b32'):
                self.cls = 'permlane'
                self.w = R(ops[0]) | R(ops[1]); self.r = set(self.w)
            elif base in ('v_readfirstlane_b32',):
                self.cls = 'readlane'
                self.w = R(ops[0]); self.r = R(ops[1])
            elif base == 'v_readlane_b32':
                self.cls = 'readlane'
                self.w = R(ops[0]); self.r = R(ops[1]) | R(ops[2]); self.lanesel = R(ops[2])
            elif base == 'v_writelane_b32':
                self.w = R(ops[0]); self.r = R(ops[1]) | R(ops[2]); self.lanesel = R(ops[2])
            elif base in ('v_add_co_u32', 'v_sub_co_u32', 'v_div_scale_f32'):
                self.w = R(ops[0]) | R(ops[1])
                for o in ops[2:]: self.r |= R(o)
            elif base in ('v_addc_co_u32', 'v_subb_co_u32'):
                self.w = R(ops[0]) | R(ops[1])
                for o in ops[2:]: self.r |= R(o)
            else:
                self.w = R(ops[0])
                for o in ops[1:]: self.r |= R(o)
                if base in ('v_fmac_f32', 'v_dot2c_f32_bf16', 'v_mac_f32', 'v_pk_fmac_f16', 'v_cvt_sr_pk_bf16_f32'):
                    self.r |= self.w
                if base in ('v_cndmask_b32',) and len(ops) == 3:
                    self.r |= R('vcc')
                if base == 'v_div_fmas_f32':
                    self.r |= R('vcc')
                if base.startswith('v_dot2'):
                    self.cls = 'dot'
                    if base == 'v_dot2c_f32_bf16':
                        self.srcc = set(self.w); self.ab = R(ops[1]) | R(ops[2])
                    else:
                        self.srcc = R(ops[3]); self.ab = R(ops[1]) | R(ops[2])
                if base in TRANS:
                    self.cls = 'trans'
            if 'quad_perm' in mods or 'row_' in mods or op.endswith('_dpp'):
                self.dpp = True; self.dppsrc = R(ops[1])
                self.r |= self.w
        elif op.startswith('ds_'):
            self.cls = 'ds'
            if op.startswith(('ds_read', 'ds_bpermute', 'ds_permute', 'ds_swizzle')) or '_rtn' in op:
                self.w = R(ops[0])
                for o in ops[1:]: self.r |= R(o)
            else:
                for o in ops: self.r |= R(o)
        elif op.startswith(('buffer_', 'global_')):
            self.cls = 'vmem'
            is_lds = (' lds' in (' ' + mods)) or op.startswith('global_load_lds')
            if 'load' in op and not is_lds:
                self.w = R(ops[0])
                for o in ops[1:]: self.r |= R(o)
            elif 'atomic' in op and 'sc0' in mods:
                self.w = R(ops[0])
                for o in ops[1:]: self.r |= R(o)
            else:
                for o in ops: self.r |= R(o)
                if 'store' in op and (op.endswith('x3') or op.endswith('x4')):
                    self.storedata = R(ops[0]) if op.startswith('buffer_') else R(ops[1])
            if is_lds:
                self.r |= {('s', 'm0')}
                self.cls = 'vmem_lds'
        elif op.startswith('s_'):
            self.cls = 'salu'
            if op.startswith(('s_cmp', 's_cbranch', 's_branch', 's_waitcnt', 's_barrier', 's_endpgm', 's_sleep', 's_setprio', 's_setpc', 's_bitcmp')):
                for o in ops: self.r |= R(o)
            else:
                if ops:
                    self.w = R(ops[0])
                    for o in ops[1:]: self.r |= R(o)
                if 'saveexec' in op:
                    self.w |= R('exec')
        else:
            raise ValueError('unknown instr ' + text)


def is_valu(c):
    return c in ('valu', 'trans', 'dot', 'permlane', 'readlane')


def vregs(s):
    return {x for x in s if x[0] in ('v', 'a')}


def sregs(s):
    return {x for x in s if x[0] == 's'}


def need_states(p, c):
    n = 0
    pv = vregs(p.w)
    if is_valu(p.cls):
        if c.dpp and pv & c.dppsrc: n = max(n, 2)
        if c.cls == 'permlane' and pv & c.r: n = max(n, 2)
        if c.cls == 'readlane' and pv & vregs(c.r): n = max(n, 1)
        if c.cls == 'mfma' and pv & c.r: n = max(n, 2)
        ps = sregs(p.w)
        if ps:
            if c.cls in ('vmem', 'vmem_lds') and ps & c.r: n = max(n, 5)
            if is_valu(c.cls) and ps & c.r: n = max(n, 2)
            if ps & c.lanesel: n = max(n, 4)
            if c.op.startswith('v_div_fmas') and ('s', 'vcc_lo') in ps: n = max(n, 4)
            if ('s', 'exec_lo') in ps:
                if c.dpp: n = max(n, 5)
                if c.cls in ('readlane', 'permlane', 'mfma'): n = max(n, 4)
    if p.cls == 'trans' and is_valu(c.cls) and c.cls != 'trans' and pv & (c.r | c.w): n = max(n, 1)
    if p.cls == 'trans' and c.cls in ('mfma',) and pv & c.r: n = max(n, 2)
    if p.cls == 'dot':
        if c.cls == 'dot' and c.op == p.op:
            if pv & c.ab: n = max(n, 3)
        elif pv & (c.r | c.w) and c.cls not in ('salu', 'nop'):
            n = max(n, 3)
    if p.cls == 'mfma':
        if c.cls == 'mfma':
            if pv & c.ab: n = max(n, 8)
            if pv & c.srcc and pv != vregs(c.srcc): n = max(n, 6)
        elif c.cls not in ('salu', 'nop') and pv & (c.r | c.w): n = max(n, 8)
        if is_valu(c.cls) and vregs(p.srcc) & vregs(c.w): n = max(n, 3)
    if p.storedata and (vregs(c.w) & p.storedata) and c.cls not in ('salu', 'nop'):
        n = max(n, 2)
    if p.cls == 'salu' and ('s', 'm0') in p.w and c.cls == 'vmem_lds': n = max(n, 1)
    return n


class Asm:
    def __init__(self):
        self.out = []
        self.hist = []
        self.nops = 0
        self.vm = []
        self.nlabel = 0
        self.hop_every = 0
        self.hop_cnt = 0
        self.hop_n = 0
        self.hop_name = ''

    def raw(self, text):
        self.out.append(text)

    def comment(self, t):
        self.out.append('  ; ' + t)

    def label(self, name):
        self.out.append(name + ':')

    def newlabel(self, base):
        self.nlabel += 1
        return f'L_{base}_{self.nlabel}'

    def hops_begin(self, name, every):
        self.hop_every = every
        self.hop_name = name
        self.hop_n = 0
        if every:
            self._hop()

    def _hop(self, target=None):
        self.out.append(f'{self.hop_name}_{self.hop_n}:')
        t = target or f'{self.hop_name}_{self.hop_n + 1}'
        text = f's_cbranch_execz {t}'
        self.out.append('  ' + text)
        self.hist.append(Ins(text))
        self.hop_n += 1
        self.hop_cnt = 0

    def hops_end(self, ret):
        if self.hop_every:
            self._hop(ret)
        self.hop_every = 0

    def I(self, text):
        if self.hop_every:
            self.hop_cnt += 1
            if self.hop_cnt > self.hop_every:
                self._hop()
                self.hop_cnt = 1
        ins = Ins(text)
        need = 0
        dist = 0
        for p in reversed(self.hist):
            req = need_states(p, ins)
            if req > dist:
                need = max(need, req - dist)
            dist += p.states
            if dist >= 24:
                break
        while need > 0:
            k = min(need, 16)
            nop = Ins(f's_nop {k-1}')
            self.out.append(f'  s_nop {k-1}')
            self.hist.append(nop)
            self.nops += 1
            need -= k
        self.out.append('  ' + text)
        self.hist.append(ins)
        if len(self.hist) > 64:
            self.hist = self.hist[-40:]

    def L(self, block):
        for ln in block.strip().split('\n'):
            ln = ln.strip()
            if not ln or ln.startswith(';'):
                continue
            if ln.endswith(':'):
                self.label(ln[:-1])
            else:
                self.I(ln)

    def fence(self, n=8):
        self.I(f's_nop {n-1}')

    def vm_reset(self, tags=()):
        self.vm = list(tags)

    def vmem(self, text, tag):
        self.I(text)
        self.vm.append(tag)

    def vm_wait(self, tag):
        if tag not in self.vm:
            return
        idx = self.vm.index(tag)
        n = len(self.vm) - 1 - idx
        assert n <= 63, n
        self.I(f's_waitcnt vmcnt({n})')
        self.vm = self.vm[idx + 1:]

    def vm_window(self, n):
        if len(self.vm) > n:
            self.I(f's_waitcnt vmcnt({n})')
            self.vm = self.vm[len(self.vm) - n:]

    def text(self):
        return '\n'.join(self.out) + '\n'
```

```python
from asmdsl import Asm

LOG2E = 0x3fb8aa3b
SCALE = 0x3d93cd3a

R0 = 8
D = 38


def slot(i):
    return R0 + 4 * (i % D)


def hole(i):
    return R0 + 4 * i + 3


V_OFF = 1
V_Q = (2, 3, 4)
V_LANE = 5
V_T0, V_T1 = 6, 7
A_ = (hole(0), hole(1))
B_ = (hole(2), hole(3))
C_ = (hole(4), hole(5))
D_ = (hole(6), hole(7), hole(8), hole(9))
E_ = (hole(10), hole(11))
TT = (hole(12), hole(13))
V_PADDR = hole(14)
V_PW = hole(15)
V_X = [hole(16 + i) for i in range(6)]
SC = tuple(hole(22 + i) for i in range(4))
ACC = tuple(hole(26 + i) for i in range(6))
PG = (160, 164)
PTX = (hole(32), hole(33), hole(34), hole(35))
V_TK = hole(0)
PT = PTX


def set_depth(d):
    global D
    assert 36 <= d <= 38 or d == 32
    D = d


class StreamCfg:
    D = 38
    NB0 = 0
    W = 10
    W0 = 8
    late_skip = True
    WV = 64
    nt = 'nt'
    codepf = 0
    N1 = 4
    pf = 0
    pfpol = ''
    PW = 2
    ygate = 1
    early_w = 1
    WW = 3
    WX = 10
    DX = 64
    hop = 0
    TJ = 44
    pw_early = 0
    gate = 1
    pretouch = 0


def emit_issue(a, cfg, u, S):
    srd = S['srdK'] if u < 128 else S['srdV']
    if u == 128:
        a.I(f"s_mov_b32 s{S['soff']}, 0")
    s = slot(u)
    a.vmem(f"buffer_load_dwordx3 v[{s}:{s+2}], v{V_OFF}, s[{srd}:{srd+3}], s{S['soff']} offen {cfg.nt}", ('ld', u))
    if u not in (127, 255):
        a.I(f"s_addk_i32 s{S['soff']}, 6144")


def stream_prologue(a, cfg, S):
    a.comment('stream prologue')
    a.I(f"v_and_b32 v{V_LANE}, 63, v0")
    a.I(f"s_mul_i32 s{S['tmp']}, s{S['wave']}, 768")
    a.I(f"v_mul_u32_u24 v{V_OFF}, 12, v{V_LANE}")
    a.I(f"v_add_u32 v{V_OFF}, s{S['tmp']}, v{V_OFF}")
    a.I(f"s_mov_b32 s{S['soff']}, 0")
    a.vm_reset()
    for u in range(D):
        if u in S.get('hook_before', {}):
            S['hook_before'][u]()
        if u >= cfg.W0:
            a.vm_window(cfg.W0 - 1)
        emit_issue(a, cfg, u, S)
        if u == S.get('b0_after', -1):
            a.I('s_barrier')
    return D


def k_tree(a, t, S):
    i = t % 32
    if i % 2 == 1:
        a.I(f"v_permlane16_swap_b32 v{A_[0]}, v{A_[1]}")
        a.I(f"v_add_f32 v{B_[(i >> 1) & 1]}, v{A_[0]}, v{A_[1]}")
    if i % 4 == 3:
        c = C_[(i >> 2) & 1]
        a.I(f"v_add_f32_dpp v{c}, v{B_[0]}, v{B_[0]} row_ror:8 row_mask:0xf bank_mask:0x3")
        a.I(f"v_add_f32_dpp v{c}, v{B_[1]}, v{B_[1]} row_ror:8 row_mask:0xf bank_mask:0xc")
    if i % 8 == 7:
        d = D_[i >> 3]
        a.I(f"v_add_f32_dpp v{d}, v{C_[0]}, v{C_[0]} row_half_mirror row_mask:0xf bank_mask:0x5")
        a.I(f"v_add_f32_dpp v{d}, v{C_[1]}, v{C_[1]} row_half_mirror row_mask:0xf bank_mask:0xa")
    if i % 16 == 15:
        k = i >> 4
        d0, d1 = D_[2 * k], D_[2 * k + 1]
        a.I(f"v_add_f32_dpp v{TT[0]}, v{d0}, v{d0} quad_perm:[1,0,3,2] row_mask:0xf bank_mask:0xf")
        a.I(f"v_add_f32_dpp v{TT[1]}, v{d1}, v{d1} quad_perm:[1,0,3,2] row_mask:0xf bank_mask:0xf")
        a.I(f"v_cndmask_b32 v{E_[k]}, v{TT[0]}, v{TT[1]}, s[{S['mask0']}:{S['mask0']+1}]")
    if i == 31:
        a.I(f"v_add_f32_dpp v{TT[0]}, v{E_[0]}, v{E_[0]} quad_perm:[2,3,0,1] row_mask:0xf bank_mask:0xf")
        a.I(f"v_add_f32_dpp v{TT[1]}, v{E_[1]}, v{E_[1]} quad_perm:[2,3,0,1] row_mask:0xf bank_mask:0xf")
        a.I(f"v_cndmask_b32 v{SC[t // 32]}, v{TT[0]}, v{TT[1]}, s[{S['mask1']}:{S['mask1']+1}]")


def wave_reduce(a, op, v, sdst):
    for r in (8, 4, 2, 1):
        a.I(f"{op}_dpp v{v}, v{v}, v{v} row_ror:{r} row_mask:0xf bank_mask:0xf")
    a.I(f"{op}_dpp v{v}, v{v}, v{v} row_bcast:15 row_mask:0xa bank_mask:0xf")
    a.I(f"{op}_dpp v{v}, v{v}, v{v} row_bcast:31 row_mask:0xc bank_mask:0xf")
    a.I(f"v_readlane_b32 s{sdst}, v{v}, 63")


def round_bf16_pairs(a, regs, tmp):
    a.I(f"v_cvt_pk_bf16_f32 v{tmp[0]}, v{regs[0]}, v{regs[1]}")
    a.I(f"v_cvt_pk_bf16_f32 v{tmp[1]}, v{regs[2]}, v{regs[3]}")
    a.I(f"v_lshlrev_b32 v{regs[0]}, 16, v{tmp[0]}")
    a.I(f"v_and_b32 v{regs[1]}, 0xffff0000, v{tmp[0]}")
    a.I(f"v_lshlrev_b32 v{regs[2]}, 16, v{tmp[1]}")
    a.I(f"v_and_b32 v{regs[3]}, 0xffff0000, v{tmp[1]}")


def stream_main(a, cfg, S, L, issued, stamp=None):
    stamp = stamp or (lambda k: None)
    a.I(f"s_mov_b32 s{S['mask0']}, 0xaaaaaaaa")
    a.I(f"s_mov_b32 s{S['mask0']+1}, 0xaaaaaaaa")
    a.I(f"s_mov_b32 s{S['mask1']}, 0xcccccccc")
    a.I(f"s_mov_b32 s{S['mask1']+1}, 0xcccccccc")
    a.I(f"s_mov_b32 s{S['sello']}, 0x05040100")
    a.I(f"s_mov_b32 s{S['selhi']}, 0x07060302")
    a.I(f"s_mov_b32 s{S['log2e']}, 0x{LOG2E:x}")
    a.I(f"v_and_b32 v{V_T0}, 31, v{V_LANE}")
    a.I(f"v_mul_u32_u24 v{V_T0}, 12, v{V_T0}")
    a.I(f"v_lshrrev_b32 v{V_T1}, 5, v{V_LANE}")
    a.I(f"v_lshlrev_b32 v{V_PADDR}, 8, v{V_T1}")
    a.I(f"s_lshl_b32 s{S['tmp']}, s{S['wave']}, 9")
    a.I(f"s_add_u32 s{S['tmp']}, s{S['tmp']}, {L['P']}")
    a.I(f"v_add_u32 v{V_PADDR}, s{S['tmp']}, v{V_PADDR}")
    x = V_X
    a.I(f"v_bfe_u32 v{x[0]}, v{V_LANE}, 4, 1")
    a.I(f"v_lshl_add_u32 v{V_PW}, v{x[0]}, 1, v{V_PADDR}")
    a.I(f"v_bfe_u32 v{x[0]}, v{V_LANE}, 3, 1")
    a.I(f"v_lshl_add_u32 v{V_PW}, v{x[0]}, 2, v{V_PW}")
    a.I(f"v_bfe_u32 v{x[0]}, v{V_LANE}, 2, 1")
    a.I(f"v_lshl_add_u32 v{V_PW}, v{x[0]}, 3, v{V_PW}")
    a.I(f"v_bfe_u32 v{x[0]}, v{V_LANE}, 0, 1")
    a.I(f"v_lshl_add_u32 v{V_PW}, v{x[0]}, 4, v{V_PW}")
    a.I(f"v_bfe_u32 v{x[0]}, v{V_LANE}, 1, 1")
    a.I(f"v_lshl_add_u32 v{V_PW}, v{x[0]}, 5, v{V_PW}")
    for k in range(6):
        a.I(f"v_mov_b32 v{ACC[k]}, 0")
    stamp(1)
    a.I('s_barrier')
    stamp(2)
    a.I(f"ds_read_b32 v{V_Q[0]}, v{V_T0} offset:{L['QV']}")
    a.I(f"ds_read_b32 v{V_Q[1]}, v{V_T0} offset:{L['QV']+4}")
    a.I(f"ds_read_b32 v{V_Q[2]}, v{V_T0} offset:{L['QV']+8}")
    a.I('s_waitcnt lgkmcnt(0)')

    W = cfg.W
    pend = None
    for t in range(128):
        s = slot(t)
        a.vm_wait(('ld', t))
        leaf = A_[t & 1]
        a.I(f"v_dot2_f32_bf16 v{leaf}, v{s}, v{V_Q[0]}, 0")
        a.I(f"v_dot2c_f32_bf16 v{leaf}, v{s+1}, v{V_Q[1]}") if False else a.I(f"v_dot2_f32_bf16 v{leaf}, v{s+1}, v{V_Q[1]}, v{leaf}")
        a.I(f"v_dot2_f32_bf16 v{leaf}, v{s+2}, v{V_Q[2]}, v{leaf}")
        if cfg.late_skip:
            target = min(t + D, 127 + W)
        else:
            target = max(D - 1, t + W)
        while issued <= target:
            emit_issue(a, cfg, issued, S)
            issued += 1
        k_tree(a, t, S)
    stamp(3)
    sc = list(SC)
    round_bf16_pairs(a, sc, (V_T0, V_T1))
    a.I(f"s_mov_b32 s{S['tmp']}, 0x{SCALE:x}")
    for r in sc:
        a.I(f"v_mul_f32 v{r}, s{S['tmp']}, v{r}")
    round_bf16_pairs(a, sc, (V_T0, V_T1))
    a.I(f"v_max_f32 v{V_T0}, v{sc[0]}, v{sc[1]}")
    a.I(f"v_max3_f32 v{V_T0}, v{V_T0}, v{sc[2]}, v{sc[3]}")
    wave_reduce(a, 'v_max_f32', V_T0, S['m'])
    for k, r in enumerate(sc):
        a.I(f"v_subrev_f32 v{x[k]}, s{S['m']}, v{r}")
    for k in range(4):
        a.I(f"v_mul_f32 v{x[k]}, s{S['log2e']}, v{x[k]}")
    for k in range(4):
        a.I(f"v_exp_f32 v{x[k]}, v{x[k]}")
    a.I(f"v_add_f32 v{V_T0}, v{x[0]}, v{x[1]}")
    a.I(f"v_add_f32 v{V_T1}, v{x[2]}, v{x[3]}")
    a.I(f"v_add_f32 v{V_T0}, v{V_T0}, v{V_T1}")
    wave_reduce(a, 'v_add_f32', V_T0, S['l'])
    a.I(f"s_lshl_b32 s{S['tmp']}, s{S['wave']}, 3")
    a.I(f"s_add_u32 s{S['tmp']}, s{S['tmp']}, {L['STATS']}")
    a.I(f"v_mov_b32 v{x[4]}, s{S['m']}")
    a.I(f"v_mov_b32 v{x[5]}, s{S['l']}")
    a.I(f"v_mov_b32 v{V_T0}, s{S['tmp']}")
    a.I(f"ds_write_b32 v{V_T0}, v{x[4]}")
    a.I(f"ds_write_b32 v{V_T0}, v{x[5]} offset:4")
    a.I('s_waitcnt lgkmcnt(0)')
    a.I('s_barrier')
    stamp(4)
    while issued <= 127 + min(D, cfg.DX):
        a.vm_window(cfg.WX - 1)
        emit_issue(a, cfg, issued, S)
        issued += 1
    stamp(5)
    a.I('s_barrier')
    stamp(6)
    a.I(f"v_mov_b32 v{V_T0}, {L['FIN']}")
    a.I(f"ds_read_b64 v[{PG[1]}:{PG[1]+1}], v{V_T0}")
    a.I('s_waitcnt lgkmcnt(0)')
    for k, r in enumerate(sc):
        a.I(f"v_sub_f32 v{x[k]}, v{r}, v{PG[1]}")
    for k in range(4):
        a.I(f"v_mul_f32 v{x[k]}, s{S['log2e']}, v{x[k]}")
    for k in range(4):
        a.I(f"v_exp_f32 v{x[k]}, v{x[k]}")
    for k in range(4):
        a.I(f"v_mul_f32 v{x[k]}, v{x[k]}, v{PG[1]+1}")
    a.I(f"v_cvt_pk_bf16_f32 v{x[4]}, v{x[0]}, v{x[1]}")
    a.I(f"v_cvt_pk_bf16_f32 v{x[5]}, v{x[2]}, v{x[3]}")
    a.I(f"ds_write_b16 v{V_PW}, v{x[4]}")
    a.I(f"ds_write_b16_d16_hi v{V_PW}, v{x[4]} offset:64")
    a.I(f"ds_write_b16 v{V_PW}, v{x[5]} offset:128")
    a.I(f"ds_write_b16_d16_hi v{V_PW}, v{x[5]} offset:192")
    a.I(f"ds_read_b128 v[{PG[0]}:{PG[0]+3}], v{V_PADDR}")
    a.I(f"ds_read_b128 v[{PG[1]}:{PG[1]+3}], v{V_PADDR} offset:16")

    for j in range(64):
        g = j // 4
        if j % 4 == 0:
            a.I('s_waitcnt lgkmcnt(1)' if g + 1 < 16 else 's_waitcnt lgkmcnt(0)')
        P = PG[g & 1] + (j % 4)
        t0, t1 = 128 + 2 * j, 128 + 2 * j + 1
        s0, s1 = slot(t0), slot(t1)
        a.vm_wait(('ld', t1))
        for k in range(3):
            tl, th = PT[(2 * k) % 4], PT[(2 * k + 1) % 4]
            a.I(f"v_perm_b32 v{tl}, v{s1+k}, v{s0+k}, s{S['sello']}")
            a.I(f"v_perm_b32 v{th}, v{s1+k}, v{s0+k}, s{S['selhi']}")
            a.I(f"v_dot2c_f32_bf16 v{ACC[2*k]}, v{tl}, v{P}")
            a.I(f"v_dot2c_f32_bf16 v{ACC[2*k+1]}, v{th}, v{P}")
        if j % 4 == 3 and g + 2 < 16:
            a.I(f"ds_read_b128 v[{PG[g & 1]}:{PG[g & 1]+3}], v{V_PADDR} offset:{16*(g+2)}")
        if j == cfg.TJ and not cfg.early_w:
            lab = a.newlabel('tk')
            a.I(f"v_mov_b32 v{V_T0}, 8")
            a.I(f"v_mov_b32 v{V_T1}, 1")
            a.I(f"s_cmp_eq_u32 s{S['wave']}, 0")
            a.I(f"s_cbranch_scc0 {lab}_ld")
            a.I("s_mov_b64 exec, 1")
            a.I(f"global_atomic_add v{V_TK}, v{V_T0}, v{V_T1}, s[28:29] sc0 sc1")
            a.I("s_mov_b64 exec, -1")
            a.I(f"s_branch {lab}_done")
            a.label(f"{lab}_ld")
            a.I(f"global_load_dword v{V_TK}, v{V_T0}, s[4:5]")
            a.label(f"{lab}_done")
            a.vm.append(('tk', 0))
        target = min(255, t1 + min(cfg.WV, D))
        while issued <= target:
            emit_issue(a, cfg, issued, S)
            issued += 1
    stamp(7)
    for k in range(3):
        a.I(f"v_permlane32_swap_b32 v{ACC[k]}, v{ACC[k+3]}")
        a.I(f"v_add_f32 v{ACC[k]}, v{ACC[k]}, v{ACC[k+3]}")
    a.I(f"v_and_b32 v{V_T0}, 31, v{V_LANE}")
    a.I(f"v_mul_u32_u24 v{V_T0}, 24, v{V_T0}")
    a.I(f"v_lshrrev_b32 v{V_T1}, 5, v{V_LANE}")
    a.I(f"v_mad_u32_u24 v{V_T0}, v{V_T1}, 12, v{V_T0}")
    a.I(f"s_mul_i32 s{S['tmp']}, s{S['wave']}, 768")
    a.I(f"s_add_u32 s{S['tmp']}, s{S['tmp']}, {L['OPART']}")
    a.I(f"v_add_u32 v{V_T0}, s{S['tmp']}, v{V_T0}")
    for k in range(3):
        a.I(f"ds_write_b32 v{V_T0}, v{ACC[k]} offset:{4*k}")
    if not cfg.early_w:
        a.vm_wait(('tk', 0))
        a.I("s_waitcnt vmcnt(0)")
        lab = a.newlabel('tkw')
        a.I(f"s_cmp_eq_u32 s{S['wave']}, 0")
        a.I(f"s_cbranch_scc0 {lab}")
        a.I("s_mov_b64 exec, 1")
        a.I(f"v_mov_b32 v{V_T1}, {L['TICKET']}")
        a.I(f"ds_write_b32 v{V_T1}, v{V_TK}")
        a.I("s_mov_b64 exec, -1")
        a.label(lab)
    a.I('s_waitcnt lgkmcnt(0)')
    a.I('s_barrier')
    stamp(8)
```

```python
import sys
sys.path.insert(0, 'gen')
from asmdsl import Asm
import stream as st
from stream import StreamCfg, LOG2E

KNAME = 'adaLN_cond__gqa_block_cached__glu_gated_bilinear__decode_kernel'

WS_MOD, WS_Q, WS_ML, WS_O, WS_Y, WS_PD, WS_DBG = 0, 0x8000, 0x38000, 0x40000, 0x70000, 0x84000, 0x100000
WS_SIZE = 0x200000
L_ACT = 0x0000
L_RED = 0x3200
L_QV = 0x4200
L_STATS = 0x4400
L_FIN = 0x4480
L_HFLAG = 0x4500
L_LNST = 0x4540
L_P = 0x4600
L_OPART = 0x5600
L_W = 0x7000
L_WD = L_W + 81920
L_X1 = 0x6E00
LDS_BYTES = L_W + 81920 + 40960 + 512
LDS = dict(QV=L_QV, STATS=L_STATS, FIN=L_FIN, P=L_P, OPART=L_OPART, TICKET=L_FIN + 8)

SPIN_MAX = 1 << 16
NANF = 0x7fc00000
NANB = 0x7fc07fc0
EPS = 0x3727c5ac

S = dict(srdK=32, srdV=36, srdW=40, wave=44, tmp=45, soff=46, mask0=48, mask1=50, sello=52, selhi=53, log2e=54,
         m=55, l=56, b=57, h=58, half=59, spin=62)
S_PRE, S_BAND, S_POST, S_NB, S_KG = 80, 81, 82, 83, 84
S_KH, S_LATE, S_PHASE, S_DT = 89, 90, 91, 92
MASK_N4_LO = 0x000f000f


class Gen:
    def __init__(self, cfg, diag=False, name=KNAME):
        self.a = Asm()
        self.cfg = cfg
        self.diag = diag
        self.name = name

    def stamp(self, k):
        if not self.diag:
            return
        a = self.a
        a.I("s_memrealtime s[60:61]")
        a.I("s_waitcnt lgkmcnt(0)")
        a.I(f"s_mov_b32 s{64+k if k < 16 else 93+k-16}, s60")

    def srd(self, dst, ptr, size, off=None):
        a = self.a
        if off is None:
            a.I(f"s_mov_b32 s{dst}, s{ptr}")
            a.I(f"s_mov_b32 s{dst+1}, s{ptr+1}")
        else:
            a.I(f"s_add_u32 s{dst}, s{ptr}, s{off}")
            a.I(f"s_addc_u32 s{dst+1}, s{ptr+1}, 0")
        a.I(f"s_mov_b32 s{dst+2}, {size}")
        a.I(f"s_mov_b32 s{dst+3}, 0x20000")

    def canon(self, regs, nanreg=None):
        a = self.a
        for r in regs:
            a.I(f"v_min_u32 v{r}, -2, v{r}")

    def poll_sel(self, loads, label, t, first_issued=False):
        a = self.a
        n = len(loads)
        a.I(f"s_mov_b32 s63, {(1 << n) - 1}")
        a.I("s_mov_b32 s62, 0")
        if first_issued:
            a.I(f"s_branch {label}_chk")
        a.label(label)
        for i, (ld, regs) in enumerate(loads):
            a.I(f"s_bitcmp1_b32 s63, {i}")
            a.I(f"s_cbranch_scc0 {label}_s{i}")
            a.I(ld)
            a.label(f"{label}_s{i}")
        a.label(f"{label}_chk")
        a.I("s_add_u32 s62, s62, 1")
        a.I("s_waitcnt vmcnt(0)")
        for i, (ld, regs) in enumerate(loads):
            r = regs
            a.I(f"v_max3_u32 v{t}, v{r[0]}, v{r[1]}, v{r[2]}")
            a.I(f"v_max_u32 v{t}, v{t}, v{r[3]}")
            a.I(f"v_cmp_eq_u32 vcc, -1, v{t}")
            a.I("s_cmp_eq_u64 vcc, 0")
            a.I(f"s_cbranch_scc0 {label}_p{i}")
            a.I(f"s_bitset0_b32 s63, {i}")
            a.label(f"{label}_p{i}")
        a.I("s_cmp_eq_u32 s63, 0")
        a.I(f"s_cbranch_scc1 {label}_ok")
        a.I(f"s_cmp_lt_u32 s62, {SPIN_MAX}")
        a.I(f"s_cbranch_scc1 {label}")
        a.label(f"{label}_ok")

    def poll(self, loads, regs, label, pre=None):
        a = self.a
        a.I("s_mov_b32 s62, 0")
        a.label(label)
        for ld in loads:
            a.I(ld)
        a.I("s_add_u32 s62, s62, 1")
        a.I("s_waitcnt vmcnt(0)")
        rs = list(regs)
        t = pre
        first = True
        i = 0
        while i < len(rs):
            if first:
                if len(rs) >= 3:
                    a.I(f"v_max3_u32 v{t}, v{rs[0]}, v{rs[1]}, v{rs[2]}"); i = 3
                elif len(rs) == 2:
                    a.I(f"v_max_u32 v{t}, v{rs[0]}, v{rs[1]}"); i = 2
                else:
                    a.I(f"v_mov_b32 v{t}, v{rs[0]}"); i = 1
                first = False
            elif i + 1 < len(rs):
                a.I(f"v_max3_u32 v{t}, v{t}, v{rs[i]}, v{rs[i+1]}"); i += 2
            else:
                a.I(f"v_max_u32 v{t}, v{t}, v{rs[i]}"); i += 1
        a.I(f"v_cmp_eq_u32 vcc, -1, v{t}")
        a.I("s_cmp_eq_u64 vcc, 0")
        a.I(f"s_cbranch_scc1 {label}_ok")
        a.I(f"s_cmp_lt_u32 s62, {SPIN_MAX}")
        a.I(f"s_cbranch_scc1 {label}")
        a.label(f"{label}_ok")

    def poll_counter(self, off, expect, label, vz, vt):
        a = self.a
        a.I(f"v_mov_b32 v{vz}, {off}")
        a.I("s_mov_b32 s62, 0")
        a.I("s_mov_b64 exec, 1")
        a.label(label)
        a.I(f"global_load_dword v{vt}, v{vz}, s[28:29] sc1")
        a.I("s_add_u32 s62, s62, 1")
        a.I("s_waitcnt vmcnt(0)")
        a.I(f"v_readfirstlane_b32 s45, v{vt}")
        a.I(f"s_cmp_ge_u32 s45, {expect}")
        a.I(f"s_cbranch_scc1 {label}_ok")
        a.I(f"s_cmp_lt_u32 s62, {SPIN_MAX}")
        a.I(f"s_cbranch_scc1 {label}")
        a.label(f"{label}_ok")
        a.I("s_mov_b64 exec, -1")

    def hsync(self, k, label, vz, vt):
        a = self.a
        a.I("s_waitcnt lgkmcnt(0)")
        a.I("s_lshl_b32 s45, s44, 2")
        a.I(f"s_add_u32 s45, s45, {L_HFLAG}")
        a.I(f"v_mov_b32 v{vz}, s45")
        a.I(f"v_mov_b32 v{vt}, {k}")
        a.I(f"ds_write_b32 v{vz}, v{vt}")
        a.I(f"v_mov_b32 v{vz}, {L_HFLAG}")
        a.I("s_mov_b32 s62, 0")
        a.label(label)
        a.I(f"ds_read_b128 v[{vt}:{vt+3}], v{vz}")
        a.I("s_add_u32 s62, s62, 1")
        a.I("s_waitcnt lgkmcnt(0)")
        a.I(f"v_min3_u32 v{vt}, v{vt}, v{vt+1}, v{vt+2}")
        a.I(f"v_min_u32 v{vt}, v{vt}, v{vt+3}")
        a.I(f"v_readfirstlane_b32 s45, v{vt}")
        a.I(f"s_cmp_ge_u32 s45, {k}")
        a.I(f"s_cbranch_scc1 {label}_ok")
        a.I(f"s_cmp_lt_u32 s62, {SPIN_MAX*4}")
        a.I(f"s_cbranch_scc1 {label}")
        a.label(f"{label}_ok")

    def bf16_round(self, regs, tmp):
        a = self.a
        for i in range(0, len(regs), 2):
            a.I(f"v_cvt_pk_bf16_f32 v{tmp}, v{regs[i]}, v{regs[i+1]}")
            a.I(f"v_lshlrev_b32 v{regs[i]}, 16, v{tmp}")
            a.I(f"v_and_b32 v{regs[i+1]}, 0xffff0000, v{tmp}")

    def unpack(self, src, lo, hi):
        a = self.a
        a.I(f"v_lshlrev_b32 v{lo}, 16, v{src}")
        a.I(f"v_and_b32 v{hi}, 0xffff0000, v{src}")

    def wave_sum_bcast(self, v, sdst):
        st.wave_reduce(self.a, 'v_add_f32', v, sdst)

    def ln_denom(self, vvar, vt):
        a = self.a
        a.I(f"v_cvt_pk_bf16_f32 v{vt}, v{vvar}, v{vvar}")
        a.I(f"v_lshlrev_b32 v{vvar}, 16, v{vt}")
        a.I(f"v_add_f32 v{vvar}, 0x{EPS:x}, v{vvar}")
        a.I(f"v_cvt_pk_bf16_f32 v{vt}, v{vvar}, v{vvar}")
        a.I(f"v_lshlrev_b32 v{vvar}, 16, v{vt}")
        a.I(f"v_sqrt_f32 v{vt}, v{vvar}")
        a.I(f"v_rcp_f32 v{vt+1}, v{vt}")
        a.I(f"v_fma_f32 v{vt+2}, -v{vt}, v{vt}, v{vvar}")
        a.I(f"v_mul_f32 v{vt+1}, 0.5, v{vt+1}")
        a.I(f"v_fma_f32 v{vt}, v{vt+2}, v{vt+1}, v{vt}")
        a.I(f"v_cvt_pk_bf16_f32 v{vt}, v{vt}, v{vt}")
        a.I(f"v_lshlrev_b32 v{vvar}, 16, v{vt}")

    def div_by(self, num, den, rcp, t):
        a = self.a
        a.I(f"v_mul_f32 v{t}, v{num}, v{rcp}")
        a.I(f"v_fma_f32 v{num}, -v{t}, v{den}, v{num}")
        a.I(f"v_fma_f32 v{num}, v{num}, v{rcp}, v{t}")

    def entry(self):
        a = self.a
        a.raw(f"; @launch grid=(256,1,1) block=(768,1,1) lds={LDS_BYTES}")
        a.raw('.amdgcn_target "amdgcn-amd-amdhsa--gfx950"\n.text')
        a.raw(f".globl {self.name}\n.p2align 8\n.type {self.name},@function\n{self.name}:")
        a.I("s_cmp_ge_u32 s2, 256")
        a.I("s_cbranch_scc1 L_end")
        a.I("s_load_dwordx16 s[4:19], s[0:1], 0")
        a.I("s_load_dwordx8 s[20:27], s[0:1], 64")
        a.I("s_load_dwordx4 s[28:31], s[0:1], 96")
        a.I("v_lshrrev_b32 v1, 6, v0")
        a.I("v_and_b32 v5, 63, v0")
        a.I("v_readfirstlane_b32 s44, v1")
        a.I("s_lshr_b32 s45, s2, 1")
        a.I(f"s_mov_b32 s{S_PRE}, 2")
        a.I("s_bitcmp1_b32 s2, 0")
        a.I("s_cbranch_scc1 L_early_q")
        a.I(f"s_mov_b32 s{S_BAND}, s45")
        a.I("s_cmp_lt_u32 s45, 60")
        a.I(f"s_cselect_b32 s{S_PRE}, 1, 2")
        a.I("s_cbranch_scc1 L_early_done")
        a.I("s_cmp_lt_u32 s45, 124")
        a.I(f"s_cselect_b32 s{S_PRE}, 2, 0")
        a.I("s_add_u32 s45, s45, 68")
        a.label("L_early_q")
        a.I(f"s_lshr_b32 s{S_BAND}, s45, 1")
        a.I(f"s_and_b32 s{S_KH}, s45, 1")
        a.label("L_early_done")
        a.I("s_cmp_lt_u32 s44, 4")
        a.I("s_cbranch_scc0 L_stream")

    def pair_unit(self, sv, sdst):
        a = self.a
        a.I(f"s_and_b32 s46, s{sv}, 7")
        a.I(f"s_lshr_b32 s47, s{sv}, 4")
        a.I("s_lshl_b32 s47, s47, 3")
        a.I("s_add_u32 s46, s46, s47")
        a.I(f"s_bfe_u32 s47, s{sv}, 0x10003")
        a.I(f"s_lshl_b32 s{sdst}, s46, 1")
        a.I(f"s_add_u32 s{sdst}, s{sdst}, s47")

    def roles_rest(self):
        a = self.a
        a.I("s_and_b32 s45, s2, 7")
        a.I("s_lshr_b32 s46, s2, 3")
        a.I("s_and_b32 s47, s46, 3")
        a.I("s_lshl_b32 s47, s47, 3")
        a.I("s_add_u32 s58, s45, s47")
        a.I("s_lshr_b32 s46, s2, 5")
        a.I("s_lshr_b32 s57, s46, 1")
        a.I("s_and_b32 s59, s46, 1")
        a.I(f"s_mov_b32 s{S_POST}, 0")
        a.I("s_lshr_b32 s45, s2, 1")
        a.I("s_mul_i32 s46, s45, 6554")
        a.I("s_lshr_b32 s46, s46, 16")
        a.I(f"s_mov_b32 s{S_KG}, s46")
        a.I("s_mul_i32 s47, s46, 10")
        a.I(f"s_sub_u32 s{S_NB}, s45, s47")
        a.I("s_cmp_lt_u32 s45, 80")
        a.I(f"s_cselect_b32 s{S_POST}, 1, 0")
        lab = a.newlabel('roles_done')
        a.I("s_bitcmp1_b32 s2, 0")
        a.I(f"s_cbranch_scc0 {lab}")
        a.I(f"s_mov_b32 s{S_NB}, s45")
        a.I("s_cmp_lt_u32 s45, 48")
        a.I(f"s_cselect_b32 s{S_POST}, 2, 0")
        a.label(lab)

    def prefetch_weights(self):
        a = self.a
        pol = self.cfg.pfpol
        lab = a.newlabel('pf')
        a.I("s_cmp_eq_u32 s44, 0")
        a.I(f"s_cbranch_scc1 {lab}_done")
        a.I("v_lshlrev_b32 v8, 4, v5")
        a.I("s_cmp_eq_u32 s44, 3")
        a.I(f"s_cbranch_scc1 {lab}_small")
        a.I("s_mul_i32 s45, s2, 30720")
        self.srd(32, 12, 30720, off=45)
        a.I("s_sub_u32 s46, s44, 1")
        a.I("s_mul_i32 s46, s46, 15360")
        a.I("s_mov_b32 s63, 15")
        a.label(f"{lab}_l1")
        a.I(f"s_waitcnt vmcnt({self.cfg.PW - 1})")
        a.I(f"buffer_load_dwordx4 v[12:15], v8, s[32:35], s46 offen {pol}")
        a.I("s_add_u32 s46, s46, 1024")
        a.I("s_sub_u32 s63, s63, 1")
        a.I("s_cmp_lg_u32 s63, 0")
        a.I(f"s_cbranch_scc1 {lab}_l1")
        a.I(f"s_branch {lab}_done")
        a.label(f"{lab}_small")
        for i, p in enumerate((16, 18, 20)):
            a.I("s_mul_i32 s45, s2, 7680")
            self.srd(32, p, 7680, off=45)
            a.I("s_mov_b32 s46, 0")
            a.I("s_mov_b32 s63, 8")
            a.label(f"{lab}_s{i}")
            a.I(f"s_waitcnt vmcnt({self.cfg.PW - 1})")
            a.I(f"buffer_load_dwordx4 v[12:15], v8, s[32:35], s46 offen {pol}")
            a.I("s_add_u32 s46, s46, 1024")
            a.I("s_sub_u32 s63, s63, 1")
            a.I("s_cmp_lg_u32 s63, 0")
            a.I(f"s_cbranch_scc1 {lab}_s{i}")
        a.label(f"{lab}_done")
        a.fence(2)

    def v_weights(self):
        a = self.a
        WN = self.cfg.WW
        a.I(f"s_cmp_eq_u32 s{S_POST}, 1")
        a.I("s_cbranch_scc0 L_vw_gu")
        a.I(f"s_mul_i32 s45, s{S_KG}, {768*1280}")
        a.I(f"s_lshl_b32 s46, s{S_NB}, 7")
        a.I("s_add_u32 s47, s45, s46")
        self.srd(32, 12, 768 * 1280, off=47)
        self.dma_voff128(1280, 8, 9, 6, 7)
        a.I("s_sub_u32 s63, s44, 1")
        a.I(f"s_mul_i32 s46, s63, {256*1280}")
        a.I("s_lshl_b32 s47, s63, 15")
        a.I(f"s_add_u32 s47, s47, {L_W}")
        self.dma_loop(32, 32, 8, 9, 47, 46, 8 * 1280, "L_vw_wo_loop", window=WN + 1)
        a.I("s_branch L_vw_done")
        a.label("L_vw_gu")
        a.I(f"s_cmp_eq_u32 s{S_POST}, 2")
        a.I("s_cbranch_scc0 L_vw_done")
        a.I("s_cmp_eq_u32 s44, 3")
        a.I("s_cbranch_scc1 L_vw_dn")
        a.I(f"s_lshl_b32 s47, s{S_NB}, 6")
        a.I("s_cmp_eq_u32 s44, 2")
        a.I("s_cselect_b32 s48, s18, s16")
        a.I("s_cselect_b32 s49, s19, s17")
        self.srd(32, 48, 640 * 3072, off=47)
        self.dma_voff64(3072, 8, 6, 7)
        a.I("s_mov_b32 s46, 0")
        a.I("s_sub_u32 s47, s44, 1")
        a.I("s_mul_i32 s47, s47, 40960")
        a.I(f"s_add_u32 s47, s47, {L_W}")
        self.dma_loop(32, 40, 8, 8, 47, 46, 16 * 3072, "L_vw_gu_loop", window=WN)
        a.I("s_branch L_vw_done")
        a.label("L_vw_dn")
        a.I(f"s_mul_i32 s45, s{S_NB}, 40960")
        self.srd(32, 20, 40960, off=45)
        a.I("v_lshlrev_b32 v8, 4, v5")
        a.I("s_mov_b32 s46, 0")
        a.I(f"s_mov_b32 s47, {L_WD}")
        self.dma_loop(32, 40, 8, 8, 47, 46, 1024, "L_vw_dn_loop", window=WN)

    def roles_from_ticket(self, sfx=""):
        a = self.a
        a.I(f"v_mov_b32 v6, {L_FIN + 8}")
        a.I("ds_read_b32 v7, v6")
        a.I("s_waitcnt lgkmcnt(0)")
        a.I("v_readfirstlane_b32 s45, v7")
        a.I("s_cmp_lt_u32 s45, 40")
        a.I(f"s_cselect_b32 s{S_DT}, s45, -1")
        a.I(f"s_mov_b32 s{S_NB}, s45")
        a.I("s_cmp_lt_u32 s45, 48")
        a.I(f"s_cselect_b32 s{S_POST}, 2, 0")
        a.I(f"s_cbranch_scc1 L_ticket_done{sfx}")
        a.I("s_sub_u32 s45, s45, 48")
        a.I("s_cmp_lt_u32 s45, 80")
        a.I(f"s_cselect_b32 s{S_POST}, 1, 0")
        a.I("s_mul_i32 s46, s45, 6554")
        a.I("s_lshr_b32 s46, s46, 16")
        a.I(f"s_mov_b32 s{S_KG}, s46")
        a.I("s_mul_i32 s47, s46, 10")
        a.I(f"s_sub_u32 s{S_NB}, s45, s47")
        a.label(f"L_ticket_done{sfx}")

    def code_prefetch(self, wave):
        a = self.a
        a.I(f"s_cmp_eq_u32 s44, {wave}")
        a.I("s_cbranch_scc0 L_nopf")
        a.I("s_getpc_b64 s[46:47]")
        a.label("L_pc")
        a.I(f"s_sub_u32 s46, s46, (L_pc-{self.name})")
        a.I("s_subb_u32 s47, s47, 0")
        a.I("s_lshr_b32 s45, s2, 3")
        a.I("s_lshl_b32 s45, s45, 10")
        a.I("v_lshlrev_b32 v6, 4, v5")
        a.I("v_add_u32 v6, s45, v6")
        a.I("v_mov_b32 v7, 0")
        a.I("v_mov_b32 v9, s47")
        a.I("v_add_co_u32 v8, vcc, s46, v6")
        a.I("v_addc_co_u32 v9, vcc, v9, v7, vcc")
        a.I(f"s_mov_b32 s45, (L_end-{self.name}-12)")
        a.I("v_cmp_gt_u32 vcc, s45, v6")
        a.I("s_and_saveexec_b64 s[46:47], vcc")
        a.I("s_cbranch_execz L_pfskip")
        a.I("global_load_dwordx4 v[12:15], v[8:9], off")
        a.label("L_pfskip")
        a.I("s_mov_b64 exec, s[46:47]")
        a.label("L_nopf")

    def pretouch(self):
        a = self.a
        a.I("s_cmp_eq_u32 s44, 10")
        a.I("s_cbranch_scc0 L_nopt")
        a.I("v_lshlrev_b32 v6, 21, v5")
        bufs = [(24, 640*7680), (10, 640*12288), (30, WS_SIZE), (28, 256), (4, 5120), (22, 5120),
                (12, 6144*1280), (16, 640*3072), (18, 640*3072), (20, 1536*1280), (26, 5120)]
        if self.cfg.pretouch >= 2:
            pass
        for i, (p, size) in enumerate(bufs):
            self.srd(32, p, size)
            a.I(f"buffer_load_dword v{12+i}, v6, s[32:35], 0 offen")
        a.label("L_nopt")

    def resets(self):
        a = self.a
        a.I("v_mov_b32 v8, -1")
        a.I("v_mov_b32 v9, -1")
        a.I("v_mov_b32 v10, -1")
        a.I("v_mov_b32 v11, -1")
        a.I("v_lshlrev_b32 v6, 4, v5")
        a.I("s_lshl_b32 s45, s57, 5")
        a.I("s_add_u32 s45, s45, s58")
        a.I("s_lshl_b32 s45, s45, 1")
        a.I("s_add_u32 s45, s45, s59")
        a.I("s_mul_i32 s45, s45, 768")
        a.I(f"s_add_u32 s45, s45, {WS_O}")
        a.I("s_mov_b32 exec_lo, -1"); a.I("s_mov_b32 exec_hi, 0xffff")
        a.I("buffer_store_dwordx4 v[8:11], v6, s[40:43], s45 offen sc1")
        a.I("s_lshl_b32 s45, s2, 7")
        a.I(f"s_add_u32 s45, s45, {WS_ML}")
        a.I("s_mov_b64 exec, 0x11")
        a.I("buffer_store_dwordx4 v[8:11], v6, s[40:43], s45 offen sc1")
        a.I("s_mov_b64 exec, -1")
        a.I("v_lshrrev_b32 v7, 4, v5")
        a.I("v_and_b32 v12, 15, v5")
        a.I("v_lshlrev_b32 v12, 4, v12")

        def rows(cmp, rowbytes, base, bandbytes, band_reg, nchunk, lab, extra=None):
            a.I(cmp)
            a.I(f"s_cbranch_scc0 {lab}")
            a.I(f"v_mul_u32_u24 v13, {rowbytes}, v7")
            a.I("v_add_u32 v13, v13, v12")
            a.I(f"s_mul_i32 s45, s{band_reg}, {bandbytes}")
            if extra:
                a.I(f"s_mul_i32 s46, s{extra}, {4*rowbytes}")
                a.I("s_add_u32 s45, s45, s46")
            a.I(f"s_add_u32 s45, s45, {base}")
            m = (1 << nchunk) - 1
            m32 = m | (m << 16)
            a.I(f"s_mov_b32 exec_lo, 0x{m32:x}")
            a.I(f"s_mov_b32 exec_hi, 0x{m32:x}")
            a.I("buffer_store_dwordx4 v[8:11], v13, s[40:43], s45 offen sc1")
            a.I("s_mov_b64 exec, -1")
            a.label(lab)
        rows(f"s_cmp_eq_u32 s{S_PRE}, 2", 24576, WS_Q, 256, S_BAND, 16, 'L_rs2', extra=S_KH)
        rows(f"s_cmp_eq_u32 s{S_PRE}, 1", 7680, WS_MOD, 128, S_BAND, 8, 'L_rs1')
        rows(f"s_cmp_eq_u32 s{S_POST}, 1", 2560, WS_Y, 256, S_NB, 16, 'L_rs3', extra=S_KG)
        a.I(f"s_cmp_eq_u32 s{S_POST}, 2")
        a.I("s_cbranch_scc0 L_rs4")
        a.I("v_mul_u32_u24 v13, 12288, v7")
        a.I("v_add_u32 v13, v13, v12")
        a.I(f"s_lshl_b32 s45, s{S_NB}, 8")
        a.I(f"s_add_u32 s45, s45, {WS_PD}")
        for k in range(10):
            a.I("buffer_store_dwordx4 v[8:11], v13, s[40:43], s45 offen sc1")
            if k < 9:
                a.I(f"s_add_u32 s45, s45, {4*12288}")
        a.label("L_rs4")

    def resets_arrive(self):
        a = self.a
        a.I("s_waitcnt vmcnt(0)")
        self.stamp(16)
        a.I("s_mov_b64 exec, 1")
        a.I("v_mov_b32 v8, 1")
        a.I("s_and_b32 s45, s2, 1")
        a.I("s_lshl_b32 s45, s45, 7")
        a.I("v_mov_b32 v9, s45")
        a.I("global_atomic_add v9, v8, s[28:29] sc1")
        a.I(f"s_cmp_eq_u32 s{S_PRE}, 1")
        a.I("s_cbranch_scc0 L_noc1")
        a.I(f"s_cmp_lt_u32 s{S_BAND}, 20")
        a.I("s_cbranch_scc0 L_noc1")
        a.I("v_mov_b32 v9, 132")
        a.I("global_atomic_add v9, v8, s[28:29] sc1")
        a.label("L_noc1")
        a.I("s_mov_b64 exec, -1")

    def master(self):
        a = self.a
        a.I("s_cmp_eq_u32 s44, 1")
        a.I("s_cbranch_scc0 L_notmaster")
        a.I("s_cmp_eq_u32 s2, 254")
        a.I("s_cbranch_scc0 L_notmaster")
        def go(val):
            a.I("s_mov_b64 exec, -1")
            a.I("v_lshlrev_b32 v7, 7, v5")
            a.I(f"v_mov_b32 v6, {val}")
            for k in range(4):
                a.I(f"s_mov_b32 s45, {WS_ML + 64 + 8192*k}")
                a.I("buffer_store_dword v6, v7, s[40:43], s45 offen sc1")
        a.I("v_mov_b32 v7, 132")
        a.I("s_mov_b32 s62, 0")
        a.I("s_mov_b64 exec, 1")
        a.label("L_master1")
        a.I("global_load_dword v6, v7, s[28:29] sc1")
        a.I("s_add_u32 s62, s62, 1")
        a.I("s_waitcnt vmcnt(0)")
        a.I("v_readfirstlane_b32 s45, v6")
        a.I("s_cmp_ge_u32 s45, 20")
        a.I("s_cbranch_scc1 L_master1_ok")
        a.I(f"s_cmp_lt_u32 s62, {SPIN_MAX}")
        a.I("s_cbranch_scc1 L_master1")
        a.label("L_master1_ok")
        go(1)
        self.stamp(17)
        a.I("v_and_b32 v7, 1, v5")
        a.I("v_lshlrev_b32 v7, 7, v7")
        a.I("s_mov_b32 s62, 0")
        a.I("s_mov_b64 exec, 3")
        a.label("L_master")
        a.I("global_load_dword v6, v7, s[28:29] sc1")
        a.I("s_add_u32 s62, s62, 1")
        a.I("s_waitcnt vmcnt(0)")
        a.I("v_lshrrev_b32 v6, 7, v6")
        a.I("v_cmp_eq_u32 vcc, 0, v6")
        a.I("s_cmp_eq_u64 vcc, 0")
        a.I("s_cbranch_scc1 L_master_ok")
        a.I(f"s_cmp_lt_u32 s62, {SPIN_MAX}")
        a.I("s_cbranch_scc1 L_master")
        a.label("L_master_ok")
        go(2)
        self.stamp(18)
        a.label("L_notmaster")

    def poll_go(self, label, vz, vt, level):
        a = self.a
        a.I("s_lshl_b32 s45, s2, 7")
        a.I(f"s_add_u32 s46, s45, {WS_ML + 64}")
        a.I(f"v_mov_b32 v{vz}, 0")
        a.I("s_mov_b32 s62, 0")
        a.I("s_mov_b64 exec, 1")
        a.label(label)
        a.I(f"buffer_load_dword v{vt}, v{vz}, s[40:43], s46 offen sc1")
        a.I("s_add_u32 s62, s62, 1")
        a.I("s_waitcnt vmcnt(0)")
        a.I(f"v_readfirstlane_b32 s45, v{vt}")
        a.I(f"s_sub_u32 s45, s45, {level}")
        a.I(f"s_cmp_le_u32 s45, {2-level}")
        a.I(f"s_cbranch_scc1 {label}_ok")
        a.I(f"s_cmp_lt_u32 s62, {SPIN_MAX}")
        a.I(f"s_cbranch_scc1 {label}")
        a.label(f"{label}_ok")
        a.I("s_mov_b64 exec, -1")

    def stream(self):
        a = self.a
        cfg = self.cfg
        a.label("L_stream")
        a.fence(2)
        self.roles_rest()
        if self.cfg.codepf:
            self.code_prefetch(10)
        a.I("s_waitcnt lgkmcnt(0)")
        self.stamp(0)
        self.srd(40, 30, WS_SIZE)
        if self.cfg.pretouch:
            self.pretouch()
        a.I("s_sub_u32 s44, s44, 4")
        a.I("s_lshl_b32 s45, s57, 5")
        a.I("s_add_u32 s45, s45, s58")
        a.I("s_mul_i32 s45, s45, 1572864")
        a.I("s_mul_i32 s46, s59, 786432")
        a.I("s_add_u32 s47, s45, s46")
        self.srd(32, 6, 786432, off=47)
        self.srd(36, 8, 786432, off=47)
        a.I("s_cmp_eq_u32 s44, 7")
        a.I("s_cbranch_scc0 L_noreset")
        self.resets()
        self.resets_arrive()
        a.label("L_noreset")
        a.fence(2)
        st.set_depth(cfg.D)

        def b0():
            a.I("s_barrier")
        S2 = dict(S); S2['b0_after'] = cfg.N1 - 1 if cfg.gate else -1
        S2['hook_before'] = {cfg.NB0: b0}
        issued = st.stream_prologue(a, cfg, S2)
        st.stream_main(a, cfg, S2, LDS, issued, self.stamp)
        a.I("s_add_u32 s44, s44, 4")
        a.I("s_branch L_post")

    def u_layout(self, n, per):
        a = self.a
        magic = {80: 52429, 40: 104858}[per]
        a.I(f"s_mov_b32 s47, {magic}")
        for jj in range(n):
            a.I(f"v_add_u32 v6, {64*jj}, v5")
            a.I("v_mul_u32_u24 v7, s47, v6")
            a.I(f"v_lshrrev_b32 v{20+jj}, 22, v7")
            a.I(f"v_mul_u32_u24 v7, {per}, v{20+jj}")
            a.I("v_sub_u32 v6, v6, v7")
            a.I(f"v_lshlrev_b32 v{25+jj}, 2, v6")

    def helper(self):
        a = self.a
        a.label("L_helper")
        a.I("s_setprio 3")
        a.I("s_lshl_b32 s45, s44, 2")
        a.I(f"s_add_u32 s45, s45, {L_HFLAG}")
        a.I("v_mov_b32 v6, s45")
        a.I("v_mov_b32 v7, 0")
        a.I("ds_write_b32 v6, v7")
        a.I(f"s_cmp_eq_u32 s{S_PRE}, 2")
        a.I("s_cbranch_scc0 L_h_notq")
        a.I("v_lshrrev_b32 v6, 3, v5")
        a.I("v_bfe_u32 v7, v5, 4, 1")
        a.I("v_lshlrev_b32 v7, 5, v7")
        a.I("v_and_b32 v8, 7, v5")
        a.I("v_lshlrev_b32 v8, 4, v8")
        a.I("v_xor_b32 v8, v8, v7")
        a.I("v_xor_b32 v9, 64, v8")
        a.I("v_mul_u32_u24 v6, 12288, v6")
        a.I("v_add_u32 v8, v8, v6")
        a.I("v_add_u32 v9, v9, v6")
        a.I(f"s_mul_i32 s46, s44, {80*12288}")
        a.I(f"s_mov_b32 s86, {8*12288}")
        a.I(f"s_mul_i32 s47, s{S_KH}, {320*12288}")
        a.I(f"s_lshl_b32 s45, s{S_BAND}, 7")
        a.I("s_add_u32 s85, s47, s45")
        self.u_layout(3, 40)
        a.I(f"s_mul_i32 s63, s{S_KH}, 640")
        a.I("s_mul_i32 s45, s44, 160")
        a.I("s_add_u32 s63, s63, s45")
        a.I("v_lshlrev_b32 v16, 2, v5")
        for jj in range(3):
            a.I(f"v_mul_u32_u24 v{40+jj}, 1280, v{20+jj}")
            a.I(f"v_add_u32 v{40+jj}, v{40+jj}, v{25+jj}")
        a.I("s_mul_i32 s48, s44, 1280")
        a.I("s_waitcnt lgkmcnt(0)")
        self.stamp(0)
        self.srd(36, 4, 5120)
        for jj in range(5):
            a.I(f"buffer_load_dword v{35+jj}, v16, s[36:39], s48 offen offset:{256*jj}")
        for jj in range(3):
            a.I(f"buffer_load_dword v{30+jj}, v{40+jj}, s[36:39], s63 offen")
        self.srd(32, 10, 320 * 12288, off=85)
        a.I("s_branch L_h_dma")
        a.label("L_h_notq")
        a.I(f"s_cmp_eq_u32 s{S_PRE}, 1")
        a.I("s_cbranch_scc1 L_modunit")
        a.I("s_waitcnt lgkmcnt(0)")
        self.stamp(0)
        self.srd(40, 30, WS_SIZE)
        a.I("s_barrier")
        self.master()
        a.I("s_branch L_h_go")
        a.label("L_modunit")
        a.fence(2)
        self.dma_voff128(7680, 8, 9, 6, 7)
        a.I(f"s_mul_i32 s46, s44, {160*7680}")
        a.I(f"s_lshl_b32 s85, s{S_BAND}, 7")
        self.u_layout(5, 80)
        a.I("s_mul_i32 s63, s44, 320")
        for jj in range(5):
            a.I(f"v_mul_u32_u24 v{40+jj}, 1280, v{20+jj}")
            a.I(f"v_add_u32 v{40+jj}, v{40+jj}, v{25+jj}")
        a.I("s_mul_i32 s47, s44, 20480")
        a.I(f"s_add_u32 s47, s47, {L_W}")
        a.I("s_waitcnt lgkmcnt(0)")
        self.stamp(0)
        self.srd(36, 22, 5120)
        for jj in range(5):
            a.I(f"buffer_load_dword v{30+jj}, v{40+jj}, s[36:39], s63 offen")
        self.srd(32, 24, 640 * 7680, off=85)
        self.dma_loop(32, 20, 8, 9, 47, 46, 8 * 7680, "L_mod_dma", cnt=85)
        self.stamp(3)
        self.srd(40, 30, WS_SIZE)
        a.I(f"s_mov_b32 s54, 0x{LOG2E:x}")
        a.I("s_mul_i32 s47, s44, 320")
        a.I(f"s_add_u32 s47, s47, {L_ACT}")
        for jj in range(5):
            a.I(f"v_mul_u32_u24 v{40+jj}, 1344, v{20+jj}")
            a.I(f"v_add3_u32 v{40+jj}, v{40+jj}, v{25+jj}, s47")
        a.I("s_waitcnt vmcnt(20)")
        for jj in range(5):
            lo, hi = 46, 47
            self.unpack(30 + jj, lo, hi)
            for r in (lo, hi):
                a.I(f"v_mul_f32 v48, s54, v{r}")
                a.I("v_exp_f32 v48, -v48")
                a.I("v_add_f32 v48, 1.0, v48")
                a.I("v_min_f32 v48, 0x7f7fffff, v48")
                a.I("v_rcp_f32 v49, v48")
                self.div_by(r, 48, 49, 50)
            a.I(f"v_cvt_pk_bf16_f32 v46, v46, v47")
            a.I(f"ds_write_b32 v{40+jj}, v46")
        self.tr_addr128(10, 6, 7)
        a.I("s_lshl_b32 s45, s44, 5")
        a.I("v_xor_b32 v10, s45, v10")
        a.I(f"v_add_u32 v10, {L_W}, v10")
        a.I(f"v_add_u32 v11, {10*4096}, v10")
        self.act_addr(14, 1344, 6)
        a.I("s_waitcnt vmcnt(0) lgkmcnt(0)")
        self.stamp(7)
        a.I("s_barrier")
        self.mfma_chain2(10, 10, 11, 4096, 512, 14, 64, 68)
        for k in range(4):
            a.I(f"v_add_f32 v{64+k}, v{64+k}, v{68+k}")
        a.I("v_cvt_pk_bf16_f32 v64, v64, v65")
        a.I("v_cvt_pk_bf16_f32 v65, v66, v67")
        self.canon([64, 65], 44)
        a.I("v_and_b32 v6, 3, v5")
        a.I("v_mul_u32_u24 v6, 7680, v6")
        a.I("v_lshrrev_b32 v7, 4, v5")
        a.I("v_lshl_add_u32 v6, v7, 3, v6")
        a.I(f"s_lshl_b32 s45, s{S_BAND}, 7")
        a.I("s_lshl_b32 s47, s44, 5")
        a.I("s_add_u32 s47, s47, s45")
        a.I(f"s_mov_b32 exec_lo, 0x{MASK_N4_LO:x}")
        a.I(f"s_mov_b32 exec_hi, 0x{MASK_N4_LO:x}")
        a.I("buffer_store_dwordx2 v[64:65], v6, s[40:43], s47 offen sc1")
        a.I("s_mov_b64 exec, -1")
        self.stamp(12)
        a.label("L_h_go")
        a.fence(2)
        a.I("s_cmp_lg_u32 s44, 0")
        a.I("s_cbranch_scc1 L_go_skip")
        self.poll_go("L_go1", 6, 7, 2)
        a.label("L_go_skip")
        if self.cfg.gate:
            a.I("s_barrier")
        a.I("s_branch L_h_q")
        a.label("L_h_dma")
        a.I("s_mul_i32 s47, s44, 10240")
        a.I(f"s_add_u32 s47, s47, {L_W}")
        for i in range(10):
            a.I("s_mov_b32 m0, s47")
            a.I("s_add_u32 s47, s47, 1024")
            a.I(f"buffer_load_dwordx4 v{9 if i & 1 else 8}, s[32:35], s46 offen nt lds")
            if i < 9:
                a.I("s_add_u32 s46, s46, s86")
        self.stamp(3)
        self.srd(40, 30, WS_SIZE)
        a.I("s_waitcnt vmcnt(13)")
        for jj in range(5):
            self.unpack(35 + jj, 40 + 2 * jj, 41 + 2 * jj)
        a.I("v_add_f32 v6, v40, v41")
        for k in range(42, 50):
            a.I(f"v_add_f32 v6, v6, v{k}")
        self.wave_sum_bcast(6, 46)
        a.I("v_mov_b32 v6, 0x3acccccd")
        a.I("v_mul_f32 v50, s46, v6")
        a.I("v_mov_b32 v7, 0")
        for k in range(40, 50):
            a.I(f"v_sub_f32 v51, v{k}, v50")
            a.I("v_fmac_f32 v7, v51, v51")
        self.wave_sum_bcast(7, 46)
        a.I("v_mul_f32 v52, s46, v6")
        self.ln_denom(52, 53)
        a.I("v_cvt_pk_bf16_f32 v50, v50, v50")
        a.I("v_lshlrev_b32 v50, 16, v50")
        a.I("s_lshl_b32 s45, s44, 3")
        a.I(f"s_add_u32 s45, s45, {L_LNST}")
        a.I("v_mov_b32 v6, s45")
        a.I("ds_write_b32 v6, v50")
        a.I("ds_write_b32 v6, v52 offset:4")
        a.I("s_waitcnt vmcnt(0) lgkmcnt(0)")
        self.stamp(7)
        a.I("s_barrier")
        a.I("s_waitcnt vmcnt(10)")
        for jj in range(3):
            a.I(f"v_min_u32 v6, 3, v{20+jj}")
            a.I(f"v_lshlrev_b32 v6, 3, v6")
            a.I(f"ds_read_b64 v[56:57], v6 offset:{L_LNST}")
            lo, hi = 60 + 2 * jj, 61 + 2 * jj
            self.unpack(30 + jj, lo, hi)
            a.I("s_waitcnt lgkmcnt(0)")
            a.I(f"v_sub_f32 v{lo}, v{lo}, v56")
            a.I(f"v_sub_f32 v{hi}, v{hi}, v56")
            self.bf16_round([lo, hi], 58)
            a.I("v_rcp_f32 v58, v57")
            self.div_by(lo, 57, 58, 59)
            self.div_by(hi, 57, 58, 59)
            self.bf16_round([lo, hi], 58)
        for jj in range(3):
            a.I(f"v_min_u32 v6, 3, v{20+jj}")
            a.I(f"v_mul_u32_u24 v{40+jj}, 7680, v6")
            a.I(f"v_add_u32 v{40+jj}, v{40+jj}, v{25+jj}")
        a.I("s_mul_i32 s47, s44, 160")
        a.I(f"s_add_u32 s47, s47, {L_ACT}")
        for jj in range(3):
            a.I(f"v_mul_u32_u24 v{43+jj}, 704, v{20+jj}")
            a.I(f"v_add3_u32 v{43+jj}, v{43+jj}, v{25+jj}, s47")
        self.tr_addr128(10, 6, 7)
        a.I("s_lshl_b32 s45, s44, 5")
        a.I("v_xor_b32 v10, s45, v10")
        a.I(f"v_add_u32 v10, {L_W}, v10")
        self.act_addr(14, 704, 6)
        a.I(f"v_add_u32 v14, {L_ACT}, v14") if L_ACT else None
        self.stamp(16)
        self.poll_go("L_go2", 6, 7, 1)
        self.stamp(18)
        a.I(f"s_add_u32 s46, s63, {WS_MOD}")
        a.I(f"s_add_u32 s47, s63, {WS_MOD + 1280}")
        loads = [f"buffer_load_dword v{30+jj}, v{40+jj}, s[40:43], s46 offen sc1" for jj in range(3)] + \
                [f"buffer_load_dword v{35+jj}, v{40+jj}, s[40:43], s47 offen sc1" for jj in range(3)]
        self.poll(loads, [30, 31, 32, 35, 36, 37], "L_pmod", pre=6)
        self.stamp(14)
        for jj in range(3):
            lo, hi = 60 + 2 * jj, 61 + 2 * jj
            self.unpack(35 + jj, 46, 47)
            a.I("v_add_f32 v46, 1.0, v46")
            a.I("v_add_f32 v47, 1.0, v47")
            self.bf16_round([46, 47], 48)
            a.I(f"v_mul_f32 v{lo}, v{lo}, v46")
            a.I(f"v_mul_f32 v{hi}, v{hi}, v47")
            self.bf16_round([lo, hi], 48)
            self.unpack(30 + jj, 46, 47)
            a.I(f"v_add_f32 v{lo}, v{lo}, v46")
            a.I(f"v_add_f32 v{hi}, v{hi}, v47")
            a.I(f"v_cvt_pk_bf16_f32 v46, v{lo}, v{hi}")
            if jj == 2:
                a.I("s_mov_b32 exec_hi, 0")
            a.I(f"ds_write_b32 v{43+jj}, v46")
        a.I("s_mov_b64 exec, -1")
        if self.cfg.gate:
            a.I("s_waitcnt lgkmcnt(0)")
            a.I("s_barrier")
        else:
            self.hsync(2, "L_hs2", 6, 16)
        self.stamp(17)
        self.mfma_chain(10, 10, 4096, 512, 14, 64)
        self.canon([64, 65, 66, 67], 44)
        a.I("v_and_b32 v6, 3, v5")
        a.I("v_mul_u32_u24 v6, 24576, v6")
        a.I("v_lshrrev_b32 v7, 4, v5")
        a.I("v_lshl_add_u32 v6, v7, 4, v6")
        a.I(f"s_mul_i32 s45, s{S_KH}, {4*24576}")
        a.I(f"s_lshl_b32 s47, s{S_BAND}, 8")
        a.I("s_add_u32 s47, s47, s45")
        a.I("s_lshl_b32 s45, s44, 6")
        a.I("s_add_u32 s47, s47, s45")
        a.I(f"s_add_u32 s47, s47, {WS_Q}")
        a.I(f"s_mov_b32 exec_lo, 0x{MASK_N4_LO:x}")
        a.I(f"s_mov_b32 exec_hi, 0x{MASK_N4_LO:x}")
        a.I("buffer_store_dwordx4 v[64:67], v6, s[40:43], s47 offen sc1")
        a.I("s_mov_b64 exec, -1")
        self.stamp(12)
        a.label("L_h_q")
        a.fence(2)
        self.roles_rest()
        self.srd(40, 30, WS_SIZE)
        a.I("s_cmp_lg_u32 s44, 0")
        a.I("s_cbranch_scc1 L_hb1")
        self.poll_go("L_go3", 6, 7, 2)
        self.stamp(19)
        a.I("v_and_b32 v6, 31, v5")
        a.I("v_mul_u32_u24 v11, 12, v6")
        a.I("v_lshlrev_b32 v6, 1, v11")
        a.I("s_mul_i32 s45, s57, 24576")
        a.I("s_mul_i32 s46, s58, 768")
        a.I("s_add_u32 s46, s45, s46")
        a.I(f"s_add_u32 s46, s46, {WS_Q}")
        a.I(f"s_add_u32 s47, s46, {4*24576}")
        self.poll(["buffer_load_dwordx3 v[12:14], v6, s[40:43], s46 offen sc1",
                   "buffer_load_dwordx3 v[16:18], v6, s[40:43], s46 offen offset:12 sc1",
                   "buffer_load_dwordx3 v[20:22], v6, s[40:43], s47 offen sc1",
                   "buffer_load_dwordx3 v[24:26], v6, s[40:43], s47 offen offset:12 sc1"],
                  [12, 13, 14, 16, 17, 18, 20, 21, 22, 24, 25, 26], "L_pq", pre=7)
        for k in range(3):
            a.I(f"v_add_f32 v{12+k}, v{12+k}, v{20+k}")
            a.I(f"v_add_f32 v{16+k}, v{16+k}, v{24+k}")
        a.I("v_cvt_pk_bf16_f32 v8, v12, v13")
        a.I("v_cvt_pk_bf16_f32 v9, v14, v16")
        a.I("v_cvt_pk_bf16_f32 v10, v17, v18")
        a.I(f"ds_write_b32 v11, v8 offset:{L_QV}")
        a.I(f"ds_write_b32 v11, v9 offset:{L_QV+4}")
        a.I(f"ds_write_b32 v11, v10 offset:{L_QV+8}")
        a.I("s_waitcnt lgkmcnt(0)")
        a.label("L_hb1")
        self.stamp(1)
        a.I("s_barrier")
        self.stamp(2)
        if self.cfg.hop:
            a.I("s_cmp_eq_u32 s44, 0")
            a.I("s_cbranch_scc1 L_late_done")
            a.I("s_mov_b64 exec, 0")
            a.I("s_cmp_eq_u32 s44, 1")
            a.I("s_cbranch_scc1 L_hopA_0")
            a.I("s_cmp_eq_u32 s44, 2")
            a.I("s_cbranch_scc1 L_hopB_0")
            a.I("s_branch L_hopC_0")
            a.label("L_warm_ret")
            a.I("s_mov_b64 exec, -1")
            self.stamp(22)
        if self.cfg.pf == 2:
            a.label("L_late_pf")
            self.prefetch_weights()
        a.label("L_late_done")
        a.fence(2)
        a.I("s_barrier")
        self.stamp(4)
        a.I("s_cmp_lg_u32 s44, 0")
        a.I("s_cbranch_scc1 L_hb3")
        self.ml_exchange()
        a.label("L_hb3")
        self.stamp(5)
        a.I("s_barrier")
        self.stamp(6)
        if self.cfg.pf == 1:
            self.prefetch_weights()
        if self.cfg.early_w:
            a.I("s_cmp_eq_u32 s44, 0")
            a.I("s_cbranch_scc1 L_vw_done")
            self.roles_from_ticket("v")
            self.v_weights()
            a.label("L_vw_done")
            a.fence(2)
        a.I("s_barrier")
        self.stamp(8)

    def dma_loop(self, srd, n, vE, vO, lds_reg, soff_reg, step, label, cnt=63, window=0):
        a = self.a
        a.I(f"s_mov_b32 s{cnt}, {n // 2}")
        a.label(label)
        for v in (vE, vO):
            if window:
                a.I(f"s_waitcnt vmcnt({window - 1})")
            a.I(f"s_mov_b32 m0, s{lds_reg}")
            a.I(f"s_add_u32 s{lds_reg}, s{lds_reg}, 1024")
            a.I(f"buffer_load_dwordx4 v{v}, s[{srd}:{srd+3}], s{soff_reg} offen nt lds")
            a.I(f"s_add_u32 s{soff_reg}, s{soff_reg}, {step}")
        a.I(f"s_sub_u32 s{cnt}, s{cnt}, 1")
        a.I(f"s_cmp_lg_u32 s{cnt}, 0")
        a.I(f"s_cbranch_scc1 {label}")

    def mfma_chain2(self, nks, vA0, vA1, stepA, half_off, vB, d0, d1):
        a = self.a
        DEPTH = 2

        def issue(ks):
            b = 80 + 16 * (ks % DEPTH)
            a.I(f"ds_read_b64_tr_b16 v[{b}:{b+1}], v{vA0} offset:{stepA*ks}")
            a.I(f"ds_read_b64_tr_b16 v[{b+2}:{b+3}], v{vA0} offset:{stepA*ks + half_off}")
            a.I(f"ds_read_b128 v[{b+4}:{b+7}], v{vB} offset:{64*ks}")
            a.I(f"ds_read_b64_tr_b16 v[{b+8}:{b+9}], v{vA1} offset:{stepA*ks}")
            a.I(f"ds_read_b64_tr_b16 v[{b+10}:{b+11}], v{vA1} offset:{stepA*ks + half_off}")
            a.I(f"ds_read_b128 v[{b+12}:{b+15}], v{vB} offset:{64*(nks+ks)}")
        for ks in range(DEPTH):
            issue(ks)
        for ks in range(nks):
            left = min(nks - 1 - ks, DEPTH - 1)
            a.I(f"s_waitcnt lgkmcnt({6*left})")
            b = 80 + 16 * (ks % DEPTH)
            c0 = "0" if ks == 0 else f"v[{d0}:{d0+3}]"
            c1 = "0" if ks == 0 else f"v[{d1}:{d1+3}]"
            a.I(f"v_mfma_f32_16x16x32_bf16 v[{d0}:{d0+3}], v[{b}:{b+3}], v[{b+4}:{b+7}], {c0}")
            a.I(f"v_mfma_f32_16x16x32_bf16 v[{d1}:{d1+3}], v[{b+8}:{b+11}], v[{b+12}:{b+15}], {c1}")
            if ks + DEPTH < nks:
                issue(ks + DEPTH)

    def mfma_chain(self, nks, vA, stepA, half_off, vB, dreg):
        a = self.a
        DEPTH = 4

        def issue(ks):
            b = 80 + 8 * (ks % DEPTH)
            a.I(f"ds_read_b64_tr_b16 v[{b}:{b+1}], v{vA} offset:{stepA*ks}")
            a.I(f"ds_read_b64_tr_b16 v[{b+2}:{b+3}], v{vA} offset:{stepA*ks + half_off}")
            a.I(f"ds_read_b128 v[{b+4}:{b+7}], v{vB} offset:{64*ks}")
        for ks in range(min(DEPTH, nks)):
            issue(ks)
        for ks in range(nks):
            left = min(nks - 1 - ks, DEPTH - 1)
            a.I(f"s_waitcnt lgkmcnt({3*left})")
            b = 80 + 8 * (ks % DEPTH)
            c = "0" if ks == 0 else f"v[{dreg}:{dreg+3}]"
            a.I(f"v_mfma_f32_16x16x32_bf16 v[{dreg}:{dreg+3}], v[{b}:{b+3}], v[{b+4}:{b+7}], {c}")
            if ks + DEPTH < nks:
                issue(ks + DEPTH)

    def dma_band128(self, srd, rowstride, ninstr, vE, vO, lds_base_sreg, soff_reg, tag):
        a = self.a
        for i in range(ninstr):
            a.I(f"s_mov_b32 m0, s{lds_base_sreg}")
            v = vO if i & 1 else vE
            a.I(f"s_add_u32 s{lds_base_sreg}, s{lds_base_sreg}, 1024")
            a.I(f"buffer_load_dwordx4 v{v}, s[{srd}:{srd+3}], s{soff_reg} offen nt lds")
            if i + 1 < ninstr:
                a.I(f"s_add_u32 s{soff_reg}, s{soff_reg}, {8*rowstride}")

    def dma_voff128(self, rowstride, vE, vO, t0, t1):
        a = self.a
        a.I(f"v_lshrrev_b32 v{t0}, 3, v5")
        a.I(f"v_bfe_u32 v{t1}, v5, 4, 1")
        a.I(f"v_lshlrev_b32 v{t1}, 5, v{t1}")
        a.I(f"v_and_b32 v{vE}, 7, v5")
        a.I(f"v_lshlrev_b32 v{vE}, 4, v{vE}")
        a.I(f"v_xor_b32 v{vE}, v{vE}, v{t1}")
        a.I(f"v_xor_b32 v{vO}, 64, v{vE}")
        a.I(f"s_mov_b32 s45, {rowstride}")
        a.I(f"v_mul_lo_u32 v{t0}, s45, v{t0}")
        a.I(f"v_add_u32 v{vE}, v{vE}, v{t0}")
        a.I(f"v_add_u32 v{vO}, v{vO}, v{t0}")

    def tr_addr128(self, vdst, t0, t1):
        a = self.a
        a.I(f"v_lshrrev_b32 v{t0}, 4, v5")
        a.I(f"v_bfe_u32 v{t1}, v5, 2, 2")
        a.I(f"v_lshl_add_u32 v{vdst}, v{t0}, 3, v{t1}")
        a.I(f"v_lshlrev_b32 v{vdst}, 7, v{vdst}")
        a.I(f"v_and_b32 v{t0}, 1, v{t0}")
        a.I(f"v_lshlrev_b32 v{t0}, 6, v{t0}")
        a.I(f"v_bfe_u32 v{t1}, v5, 3, 1")
        a.I(f"v_lshlrev_b32 v{t1}, 5, v{t1}")
        a.I(f"v_or3_b32 v{vdst}, v{vdst}, v{t0}, v{t1}")
        a.I(f"v_and_b32 v{t0}, 3, v5")
        a.I(f"v_lshl_add_u32 v{vdst}, v{t0}, 3, v{vdst}")

    def act_addr(self, vdst, stride, t0):
        a = self.a
        a.I(f"v_and_b32 v{t0}, 3, v5")
        a.I(f"v_mul_u32_u24 v{vdst}, {stride}, v{t0}")
        a.I(f"v_lshrrev_b32 v{t0}, 4, v5")
        a.I(f"v_lshl_add_u32 v{vdst}, v{t0}, 4, v{vdst}")

    def ml_exchange(self):
        a = self.a
        a.I("v_and_b32 v6, 7, v5")
        a.I("v_lshlrev_b32 v6, 3, v6")
        a.I(f"ds_read_b64 v[8:9], v6 offset:{L_STATS}")
        a.I(f"s_mov_b32 s54, 0x{LOG2E:x}")
        a.I("s_waitcnt lgkmcnt(0)")
        a.I("v_mov_b32 v10, v8")
        a.I("v_max_f32_dpp v10, v10, v10 quad_perm:[1,0,3,2] row_mask:0xf bank_mask:0xf")
        a.I("v_max_f32_dpp v10, v10, v10 quad_perm:[2,3,0,1] row_mask:0xf bank_mask:0xf")
        a.I("v_max_f32_dpp v10, v10, v10 row_half_mirror row_mask:0xf bank_mask:0xf")
        a.I("v_sub_f32 v11, v8, v10")
        a.I("v_mul_f32 v11, s54, v11")
        a.I("v_exp_f32 v11, v11")
        a.I("v_mul_f32 v11, v11, v9")
        a.I("v_add_f32_dpp v11, v11, v11 quad_perm:[1,0,3,2] row_mask:0xf bank_mask:0xf")
        a.I("v_add_f32_dpp v11, v11, v11 quad_perm:[2,3,0,1] row_mask:0xf bank_mask:0xf")
        a.I("v_add_f32_dpp v11, v11, v11 row_half_mirror row_mask:0xf bank_mask:0xf")
        self.canon([10, 11], 12)
        a.I("s_lshl_b32 s45, s2, 7")
        a.I(f"s_add_u32 s45, s45, {WS_ML}")
        a.I("v_mov_b32 v6, 0")
        a.I("s_mov_b64 exec, 1")
        a.I("buffer_store_dwordx2 v[10:11], v6, s[40:43], s45 offen sc1")
        if self.cfg.early_w:
            a.I("v_mov_b32 v7, 8")
            a.I("v_mov_b32 v18, 1")
            a.I("global_atomic_add v19, v7, v18, s[28:29] sc0 sc1")
        a.I("s_mov_b64 exec, -1")
        a.I("s_xor_b32 s46, s2, 32")
        a.I("s_lshl_b32 s46, s46, 7")
        a.I(f"s_add_u32 s46, s46, {WS_ML}")
        self.poll(["buffer_load_dwordx2 v[12:13], v6, s[40:43], s46 offen sc1"], [12, 13], "L_pml", pre=7)
        a.I("v_max_f32 v14, v10, v12")
        a.I("v_sub_f32 v15, v10, v14")
        a.I("v_sub_f32 v16, v12, v14")
        a.I("v_mul_f32 v15, s54, v15")
        a.I("v_mul_f32 v16, s54, v16")
        a.I("v_exp_f32 v15, v15")
        a.I("v_exp_f32 v16, v16")
        a.I("v_mul_f32 v15, v15, v11")
        a.I("v_mul_f32 v16, v16, v13")
        a.I("v_add_f32 v15, v15, v16")
        a.I("v_rcp_f32 v16, v15")
        a.I("v_fma_f32 v17, -v15, v16, 1.0")
        a.I("v_fma_f32 v16, v17, v16, v16")
        a.I(f"v_mov_b32 v6, {L_FIN}")
        a.I("ds_write_b32 v6, v14")
        a.I("ds_write_b32 v6, v16 offset:4")
        if self.cfg.early_w:
            a.I("s_mov_b64 exec, 1")
            a.I("ds_write_b32 v6, v19 offset:8")
            a.I("s_mov_b64 exec, -1")
        a.I("s_waitcnt lgkmcnt(0)")

    def post(self):
        a = self.a
        a.label("L_post")
        a.hops_begin("L_hopA", self.cfg.hop)
        a.fence(4)
        a.I("s_setprio 0")
        a.I("v_and_b32 v5, 63, v0")
        a.I("s_cmp_lg_u32 s44, 0")
        a.I("s_cbranch_scc1 L_o_done")
        a.I("v_lshlrev_b32 v6, 4, v5")
        a.I("s_mov_b32 exec_lo, -1"); a.I("s_mov_b32 exec_hi, 0xffff")
        for w in range(8):
            a.I(f"ds_read_b128 v[{8+4*w}:{11+4*w}], v6 offset:{L_OPART+768*w}")
        for w in range(1, 8):
            a.I(f"s_waitcnt lgkmcnt({7-w})")
            for k in range(4):
                a.I(f"v_add_f32 v{8+k}, v{8+k}, v{8+4*w+k}")
        self.canon([8, 9, 10, 11], 12)
        a.I("s_lshl_b32 s45, s57, 5")
        a.I("s_add_u32 s45, s45, s58")
        a.I("s_lshl_b32 s45, s45, 1")
        a.I("s_add_u32 s45, s45, s59")
        a.I("s_mul_i32 s45, s45, 768")
        a.I(f"s_add_u32 s45, s45, {WS_O}")
        a.I("buffer_store_dwordx4 v[8:11], v6, s[40:43], s45 offen sc1")
        a.I("s_mov_b64 exec, -1")
        a.label("L_o_done")
        a.fence(2)
        self.roles_from_ticket()
        a.I(f"s_cmp_eq_u32 s{S_POST}, 0")
        a.I("s_cbranch_scc1 L_tail")
        a.I("s_barrier")
        a.I(f"s_cmp_eq_u32 s{S_POST}, 1")
        a.I("s_cbranch_scc0 L_post23")
        self.post_wo()
        a.I("s_branch L_tail")
        a.hops_end("L_warm_ret")
        a.label("L_post23")
        a.hops_begin("L_hopB", self.cfg.hop)
        a.fence(2)
        self.post_gu()
        a.I(f"s_cmp_lt_u32 s{S_DT}, 40")
        a.I("s_cbranch_scc0 L_tail")
        a.hops_end("L_warm_ret")
        a.hops_begin("L_hopC", self.cfg.hop)
        self.post_final()
        a.hops_end("L_warm_ret")

    def red_lane_addr(self, vdst, t):
        a = self.a
        a.I(f"v_lshrrev_b32 v{vdst}, 4, v5")
        a.I(f"v_and_b32 v{t}, 3, v5")
        a.I(f"v_lshl_add_u32 v{vdst}, v{vdst}, 2, v{t}")
        a.I(f"v_lshlrev_b32 v{vdst}, 4, v{vdst}")

    def write_red(self, dreg, vaddr):
        a = self.a
        a.I("s_lshl_b32 s45, s44, 8")
        a.I(f"s_add_u32 s45, s45, {L_RED}")
        a.I(f"v_add_u32 v{vaddr}, s45, v{vaddr}")
        a.I(f"s_mov_b32 exec_lo, 0x{MASK_N4_LO:x}")
        a.I(f"s_mov_b32 exec_hi, 0x{MASK_N4_LO:x}")
        a.I(f"ds_write_b128 v{vaddr}, v[{dreg}:{dreg+3}]")
        a.I("s_mov_b64 exec, -1")
        a.I("s_waitcnt lgkmcnt(0)")
        a.I("s_barrier")

    def mfma_run(self, nks, vA, offA, stepA, half_off, vB, dreg, first_reg=40):
        a = self.a
        for ks in range(nks):
            b = first_reg + 8 * ks
            a.I(f"ds_read_b64_tr_b16 v[{b}:{b+1}], v{vA} offset:{offA + stepA*ks}")
            a.I(f"ds_read_b64_tr_b16 v[{b+2}:{b+3}], v{vA} offset:{offA + stepA*ks + half_off}")
            a.I(f"ds_read_b128 v[{b+4}:{b+7}], v{vB} offset:{64*ks}")
        for ks in range(nks):
            b = first_reg + 8 * ks
            a.I(f"s_waitcnt lgkmcnt({min(15, 3*(nks-1-ks))})")
            c = "0" if ks == 0 else f"v[{dreg}:{dreg+3}]"
            a.I(f"v_mfma_f32_16x16x32_bf16 v[{dreg}:{dreg+3}], v[{b}:{b+3}], v[{b+4}:{b+7}], {c}")

    def mfma_preread(self, n, vA, stepA, half_off, first):
        a = self.a
        for ks in range(n):
            b = first + 4 * ks
            a.I(f"ds_read_b64_tr_b16 v[{b}:{b+1}], v{vA} offset:{stepA*ks}")
            a.I(f"ds_read_b64_tr_b16 v[{b+2}:{b+3}], v{vA} offset:{stepA*ks + half_off}")

    def mfma_with_b(self, n, firstA, vB, firstB, dreg):
        a = self.a
        for ks in range(n):
            b = firstB + 4 * ks
            a.I(f"ds_read_b128 v[{b}:{b+3}], v{vB} offset:{64*ks}")
        for ks in range(n):
            a.I(f"s_waitcnt lgkmcnt({n-1-ks})")
            c = "0" if ks == 0 else f"v[{dreg}:{dreg+3}]"
            a.I(f"v_mfma_f32_16x16x32_bf16 v[{dreg}:{dreg+3}], v[{firstA+4*ks}:{firstA+4*ks+3}], v[{firstB+4*ks}:{firstB+4*ks+3}], {c}")

    def post_wo(self):
        a = self.a
        if not self.cfg.early_w:
            a.I(f"s_mul_i32 s45, s{S_KG}, {768*1280}")
            a.I(f"s_lshl_b32 s46, s{S_NB}, 7")
            a.I("s_add_u32 s47, s45, s46")
            self.srd(32, 12, 768 * 1280, off=47)
            self.dma_voff128(1280, 8, 9, 6, 7)
            a.I(f"s_mul_i32 s46, s44, {64*1280}")
            a.I("s_lshl_b32 s47, s44, 13")
            a.I(f"s_add_u32 s47, s47, {L_W}")
            self.dma_loop(32, 8, 8, 9, 47, 46, 8 * 1280, "L_wo_dma")
        a.I("s_mul_i32 s45, s44, 21846")
        a.I("s_lshr_b32 s45, s45, 16")
        a.I("s_mul_i32 s46, s45, 3")
        a.I("s_sub_u32 s46, s44, s46")
        a.I("s_lshl_b32 s46, s46, 6")
        a.I("v_add_u32 v10, s46, v5")
        a.I("v_mul_u32_u24 v11, 1366, v10")
        a.I("v_lshrrev_b32 v11, 16, v11")
        a.I("v_mul_u32_u24 v12, 48, v11")
        a.I("v_sub_u32 v12, v10, v12")
        a.I("v_mul_u32_u24 v11, 1536, v11")
        a.I("v_lshl_add_u32 v11, v12, 4, v11")
        a.I("s_lshl_b32 s63, s45, 5")
        a.I(f"s_lshl_b32 s46, s{S_KG}, 2")
        a.I("s_add_u32 s63, s63, s46")
        a.I("s_mul_i32 s63, s63, 1536")
        a.I(f"s_add_u32 s63, s63, {WS_O}")
        a.I("s_mul_i32 s46, s45, 1600")
        a.I(f"s_add_u32 s46, s46, {L_ACT}")
        a.I("v_lshl_add_u32 v13, v10, 3, s46")
        self.tr_addr128(14, 6, 7)
        a.I("s_and_b32 s45, s44, 3")
        a.I("s_lshl_b32 s45, s45, 5")
        a.I("v_xor_b32 v14, s45, v14")
        a.I("s_lshr_b32 s45, s44, 2")
        a.I("s_lshl_b32 s46, s45, 15")
        a.I(f"s_add_u32 s46, s46, {L_W}")
        a.I("v_add_u32 v14, s46, v14")
        self.act_addr(15, 1600, 6)
        a.I("s_lshl_b32 s46, s45, 9")
        a.I(f"s_add_u32 s46, s46, {L_ACT}")
        a.I("v_add_u32 v15, s46, v15")
        self.red_lane_addr(16, 6)
        a.I("v_and_b32 v17, 3, v5")
        a.I("v_mul_u32_u24 v17, 2560, v17")
        a.I("v_lshrrev_b32 v7, 2, v5")
        a.I("v_lshl_add_u32 v17, v7, 4, v17")
        a.I("s_waitcnt vmcnt(0)")
        a.I("s_barrier")
        self.stamp(9)
        self.mfma_preread(8, 14, 4096, 512, 40)
        self.poll(["buffer_load_dwordx4 v[20:23], v11, s[40:43], s63 offen sc1",
                   "buffer_load_dwordx4 v[24:27], v11, s[40:43], s63 offen offset:768 sc1"],
                  list(range(20, 28)), "L_po", pre=6)
        self.stamp(10)
        for k in range(4):
            a.I(f"v_add_f32 v{20+k}, v{20+k}, v{24+k}")
        a.I("v_cvt_pk_bf16_f32 v20, v20, v21")
        a.I("v_cvt_pk_bf16_f32 v21, v22, v23")
        a.I("ds_write_b64 v13, v[20:21]")
        a.I("s_waitcnt lgkmcnt(0)")
        a.I("s_barrier")
        self.mfma_with_b(8, 40, 15, 72, 20)
        self.write_red(20, 16)
        a.I("s_cmp_lg_u32 s44, 0")
        a.I("s_cbranch_scc1 L_wo_done")
        a.I("v_lshlrev_b32 v6, 4, v5")
        for kt in range(3):
            a.I(f"ds_read_b128 v[{20+4*kt}:{23+4*kt}], v6 offset:{L_RED + 1024*kt}")
        a.I(f"s_mul_i32 s45, s{S_KG}, 10240")
        a.I(f"s_lshl_b32 s46, s{S_NB}, 8")
        a.I("s_add_u32 s45, s45, s46")
        a.I(f"s_add_u32 s45, s45, {WS_Y}")
        a.I("s_waitcnt lgkmcnt(0)")
        for k in range(4):
            a.I(f"v_add_f32 v{20+k}, v{20+k}, v{24+k}")
        for k in range(4):
            a.I(f"v_add_f32 v{20+k}, v{20+k}, v{28+k}")
        self.canon([20, 21, 22, 23], 12)
        a.I("buffer_store_dwordx4 v[20:23], v17, s[40:43], s45 offen sc1")
        a.label("L_wo_done")
        self.stamp(11)

    def dma_band64(self, srd, rowstride, ninstr, v, lds_reg, soff_reg):
        a = self.a
        for i in range(ninstr):
            a.I(f"s_mov_b32 m0, s{lds_reg}")
            a.I(f"s_add_u32 s{lds_reg}, s{lds_reg}, 1024")
            a.I(f"buffer_load_dwordx4 v{v}, s[{srd}:{srd+3}], s{soff_reg} offen nt lds")
            if i + 1 < ninstr:
                a.I(f"s_add_u32 s{soff_reg}, s{soff_reg}, {16*rowstride}")

    def dma_voff64(self, rowstride, v, t0, t1):
        a = self.a
        a.I(f"v_lshrrev_b32 v{t0}, 2, v5")
        a.I(f"v_bfe_u32 v{t1}, v5, 5, 1")
        a.I(f"v_lshlrev_b32 v{t1}, 5, v{t1}")
        a.I(f"v_and_b32 v{v}, 3, v5")
        a.I(f"v_lshlrev_b32 v{v}, 4, v{v}")
        a.I(f"v_xor_b32 v{v}, v{v}, v{t1}")
        a.I(f"v_mul_u32_u24 v{t0}, {rowstride}, v{t0}")
        a.I(f"v_add_u32 v{v}, v{v}, v{t0}")

    def tr_addr64(self, vdst, t0, t1):
        a = self.a
        a.I(f"v_lshrrev_b32 v{t0}, 4, v5")
        a.I(f"v_bfe_u32 v{t1}, v5, 2, 2")
        a.I(f"v_lshl_add_u32 v{vdst}, v{t0}, 3, v{t1}")
        a.I(f"v_lshlrev_b32 v{vdst}, 6, v{vdst}")
        a.I(f"v_and_b32 v{t0}, 1, v{t0}")
        a.I(f"v_lshl_or_b32 v{vdst}, v{t0}, 5, v{vdst}")
        a.I(f"v_and_b32 v{t0}, 3, v5")
        a.I(f"v_lshl_add_u32 v{vdst}, v{t0}, 3, v{vdst}")

    def x1_from_y(self, vy_addr_soff, yregs, ga, xr, out, t):
        a = self.a
        for k in range(4):
            a.I(f"v_add_f32 v{out+k}, v{yregs+k}, v{yregs+4+k}")
        for w in range(2, 8):
            for k in range(4):
                a.I(f"v_add_f32 v{out+k}, v{out+k}, v{yregs+4*w+k}")
        o = [out + k for k in range(4)]
        self.bf16_round(o, t)
        for p in range(2):
            self.unpack(ga + p, t + 1, t + 2)
            a.I(f"v_mul_f32 v{o[2*p]}, v{o[2*p]}, v{t+1}")
            a.I(f"v_mul_f32 v{o[2*p+1]}, v{o[2*p+1]}, v{t+2}")
        self.bf16_round(o, t)
        for p in range(2):
            self.unpack(xr + p, t + 1, t + 2)
            a.I(f"v_add_f32 v{o[2*p]}, v{o[2*p]}, v{t+1}")
            a.I(f"v_add_f32 v{o[2*p+1]}, v{o[2*p+1]}, v{t+2}")
        self.bf16_round(o, t)

    def post_gu(self):
        a = self.a
        a.I("s_mul_i32 s45, s44, 21846")
        a.I("s_lshr_b32 s87, s45, 16")
        a.I("s_mul_i32 s46, s87, 3")
        a.I("s_sub_u32 s88, s44, s46")
        a.I("s_mul_i32 s46, s88, 54")
        a.I("v_add_u32 v10, s46, v5")
        a.I("v_cmp_gt_u32 vcc, 54, v5")
        a.I("s_mov_b64 s[50:51], vcc")
        a.I("v_mov_b32 v6, 160")
        a.I("v_cmp_lt_u32 vcc, v10, v6")
        a.I("s_and_b64 s[50:51], s[50:51], vcc")
        a.I("v_min_u32 v10, 159, v10")
        a.I("v_lshlrev_b32 v11, 3, v10")
        a.I("s_mul_i32 s46, s87, 7680")
        a.I(f"s_add_u32 s46, s46, {WS_MOD}")
        self.srd(36, 4, 5120)
        a.I("s_mul_i32 s47, s87, 1280")
        a.I("buffer_load_dwordx2 v[18:19], v11, s[36:39], s47 offen")
        a.I("v_add_u32 v40, 2560, v11")
        a.I("v_add_u32 v41, 3840, v11")
        a.I("v_add_u32 v42, 5120, v11")
        a.I("s_mul_i32 s85, s87, 7680")
        a.I(f"s_add_u32 s85, s85, {WS_MOD}")
        a.I("v_lshlrev_b32 v32, 4, v10")
        a.I("s_mul_i32 s86, s87, 2560")
        a.I(f"s_add_u32 s86, s86, {WS_Y}")
        yloads = []
        for w in range(8):
            yloads.append((f"buffer_load_dwordx4 v[{48+4*w}:{51+4*w}], v{80+w if False else 140+w}, s[40:43], s86 offen sc1", [48+4*w+k for k in range(4)]))
            a.I(f"v_add_u32 v{140+w}, {10240*w}, v32")
        modloads = ["buffer_load_dwordx2 v[12:13], v40, s[40:43], s85 offen sc1",
                    "buffer_load_dwordx2 v[14:15], v41, s[40:43], s85 offen sc1",
                    "buffer_load_dwordx2 v[16:17], v42, s[40:43], s85 offen sc1"]
        for ld in modloads:
            a.I(ld)
        if not self.cfg.early_w:
            a.I("s_cmp_ge_u32 s44, 10")
            a.I("s_cbranch_scc1 L_gu_dn")
            a.I(f"s_lshl_b32 s47, s{S_NB}, 6")
            a.I("s_cmp_ge_u32 s44, 5")
            a.I("s_cselect_b32 s48, s18, s16")
            a.I("s_cselect_b32 s49, s19, s17")
            a.I("s_cselect_b32 s63, 5, 0")
            self.srd(32, 48, 640 * 3072, off=47)
            self.dma_voff64(3072, 8, 6, 7)
            a.I("s_sub_u32 s63, s44, s63")
            a.I(f"s_mul_i32 s46, s63, {128*3072}")
            a.I("s_lshl_b32 s47, s44, 13")
            a.I(f"s_add_u32 s47, s47, {L_W}")
            self.dma_loop(32, 8, 8, 8, 47, 46, 16 * 3072, "L_gu_dma")
            a.I("s_waitcnt vmcnt(8)")
            a.I("s_branch L_gu_dma_done")
            a.label("L_gu_dn")
            a.I(f"s_mul_i32 s45, s{S_NB}, 40960")
            self.srd(32, 20, 40960, off=45)
            a.I("v_lshlrev_b32 v8, 4, v5")
            a.I("s_sub_u32 s63, s44, 10")
            a.I("s_mul_i32 s46, s63, 20480")
            a.I(f"s_add_u32 s47, s46, {L_WD}")
            self.dma_loop(32, 20, 8, 8, 47, 46, 1024, "L_gu_dndma")
            a.I("s_waitcnt vmcnt(20)")
            a.label("L_gu_dma_done")
            a.fence(2)
        else:
            a.I("s_waitcnt vmcnt(0)")
        self.stamp(22)
        a.I("v_max3_u32 v6, v12, v13, v14")
        a.I("v_max3_u32 v6, v6, v15, v16")
        a.I("v_max_u32 v6, v6, v17")
        a.I("v_cmp_eq_u32 vcc, -1, v6")
        a.I("s_cmp_eq_u64 vcc, 0")
        a.I("s_cbranch_scc1 L_pm2_skip")
        self.poll(modloads, list(range(12, 18)), "L_pm2", pre=6)
        a.label("L_pm2_skip")
        self.stamp(23)
        self.unpack(16, 20, 21)
        self.unpack(17, 22, 23)
        for k in range(4):
            a.I(f"v_add_f32 v{20+k}, 1.0, v{20+k}")
        self.bf16_round([20, 21, 22, 23], 6)
        self.unpack(14, 24, 25)
        self.unpack(15, 26, 27)
        self.unpack(12, 84, 85)
        self.unpack(13, 86, 87)
        self.unpack(18, 88, 89)
        self.unpack(19, 90, 91)
        self.tr_addr64(28, 6, 7)
        a.I("s_and_b32 s45, s44, 1")
        a.I("s_lshl_b32 s45, s45, 5")
        a.I("v_xor_b32 v28, s45, v28")
        a.I("s_bfe_u32 s45, s44, 0x10001")
        a.I("s_mul_i32 s45, s45, 40960")
        a.I("s_lshr_b32 s46, s44, 2")
        a.I(f"s_mul_i32 s47, s46, {7*2048}")
        a.I("s_add_u32 s45, s45, s47")
        a.I(f"s_add_u32 s45, s45, {L_W}")
        a.I("v_add_u32 v28, s45, v28")
        self.act_addr(29, 1344, 6)
        a.I(f"s_mul_i32 s47, s46, {7*64}")
        a.I(f"s_add_u32 s47, s47, {L_ACT}")
        a.I("v_add_u32 v29, s47, v29")
        self.red_lane_addr(30, 6)
        a.I("s_mul_i32 s47, s87, 1344")
        a.I(f"s_add_u32 s47, s47, {L_ACT}")
        a.I("v_lshl_add_u32 v31, v10, 3, s47")
        a.I("s_mul_i32 s45, s87, 1280")
        a.I(f"s_add_u32 s45, s45, {L_OPART}")
        a.I("v_lshl_add_u32 v92, v10, 3, s45")
        a.I("s_cmp_eq_u32 s88, 2")
        a.I("s_mov_b32 s45, 0x3b9d89d9")
        a.I("s_cselect_b32 s45, s45, 0x3b97b426")
        a.I("v_mov_b32 v93, s45")
        a.I("s_lshl_b32 s45, s44, 3")
        a.I(f"s_add_u32 s45, s45, {L_LNST}")
        a.I("v_mov_b32 v94, s45")
        a.I("s_mul_i32 s45, s87, 24")
        a.I(f"s_add_u32 s45, s45, {L_LNST}")
        a.I("v_mov_b32 v95, s45")
        a.I("s_waitcnt vmcnt(0)")
        a.I("s_barrier")
        self.stamp(9)
        self.mfma_preread(7, 28, 2048, 256, 96)
        a.I("v_lshrrev_b32 v9, 4, v5")
        a.I("v_bfe_u32 v8, v5, 2, 2")
        a.I("v_lshl_add_u32 v9, v9, 3, v8")
        a.I("v_mul_u32_u24 v9, 1280, v9")
        a.I("v_and_b32 v8, 3, v5")
        a.I("v_lshl_add_u32 v9, v8, 3, v9")
        a.I("s_lshl_b32 s45, s44, 5")
        a.I(f"s_add_u32 s45, s45, {L_WD}")
        a.I("v_add_u32 v9, s45, v9")
        for t in range(4):
            b = 124 + 4 * t
            off = 384 * t
            a.I(f"ds_read_b64_tr_b16 v[{b}:{b+1}], v9 offset:{off}")
            a.I(f"ds_read_b64_tr_b16 v[{b+2}:{b+3}], v9 offset:{off + 4*1280}")
        if self.cfg.ygate:
            a.I("s_and_b32 s45, s44, 7")
            a.I("s_mul_i32 s45, s45, 10240")
            a.I("v_add_u32 v6, s45, v32")
            self.poll(["buffer_load_dwordx4 v[44:47], v6, s[40:43], s86 offen sc1"], [44, 45, 46, 47], "L_pyg", pre=7)
        self.poll_sel(yloads, "L_py", 6)
        self.stamp(10)
        for (o_, d, q) in ((48, 48, 52), (56, 56, 60), (64, 64, 68), (72, 72, 76), (48, 48, 56), (64, 64, 72), (40, 48, 64)):
            a.I(f"v_pk_add_f32 v[{o_}:{o_+1}], v[{d}:{d+1}], v[{q}:{q+1}]")
            a.I(f"v_pk_add_f32 v[{o_+2}:{o_+3}], v[{d+2}:{d+3}], v[{q+2}:{q+3}]")
        o = [40, 41, 42, 43]
        self.bf16_round(o, 6)
        a.I("v_pk_mul_f32 v[40:41], v[40:41], v[84:85]")
        a.I("v_pk_mul_f32 v[42:43], v[42:43], v[86:87]")
        self.bf16_round(o, 6)
        a.I("v_pk_add_f32 v[40:41], v[40:41], v[88:89]")
        a.I("v_pk_add_f32 v[42:43], v[42:43], v[90:91]")
        a.I("v_cvt_pk_bf16_f32 v36, v40, v41")
        a.I("v_cvt_pk_bf16_f32 v37, v42, v43")
        self.unpack(36, 32, 33)
        self.unpack(37, 34, 35)
        a.I("s_mov_b64 exec, s[50:51]")
        a.I("ds_write_b64 v92, v[36:37]")
        a.I("s_mov_b64 exec, -1")
        a.I("v_readfirstlane_b32 s46, v32")
        for k in range(4):
            a.I(f"v_subrev_f32 v{40+k}, s46, v{32+k}")
        a.I("v_add_f32 v36, v40, v41")
        a.I("v_mul_f32 v37, v40, v40")
        a.I("v_add_f32 v38, v42, v43")
        a.I("v_fmac_f32 v37, v41, v41")
        a.I("v_add_f32 v36, v36, v38")
        a.I("v_fmac_f32 v37, v42, v42")
        a.I("v_fmac_f32 v37, v43, v43")
        a.I("v_cndmask_b32 v36, 0, v36, s[50:51]")
        a.I("v_cndmask_b32 v37, 0, v37, s[50:51]")
        for r in (8, 4, 2, 1):
            for v in (36, 37):
                a.I(f"v_add_f32_dpp v{v}, v{v}, v{v} row_ror:{r} row_mask:0xf bank_mask:0xf")
        for m in ("row_bcast:15 row_mask:0xa", "row_bcast:31 row_mask:0xc"):
            for v in (36, 37):
                a.I(f"v_add_f32_dpp v{v}, v{v}, v{v} {m} bank_mask:0xf")
        a.I("v_readlane_b32 s47, v36, 63")
        a.I("v_readlane_b32 s45, v37, 63")
        a.I("v_mul_f32 v38, s47, v93")
        a.I("v_mov_b32 v39, s45")
        a.I("v_add_f32 v37, s46, v38")
        a.I("v_mul_f32 v38, s47, v38")
        a.I("v_sub_f32 v38, v39, v38")
        a.I("ds_write_b32 v94, v37")
        a.I("ds_write_b32 v94, v38 offset:4")
        a.I("s_waitcnt lgkmcnt(0)")
        a.I("s_barrier")
        a.I("ds_read_b64 v[40:41], v95")
        a.I("ds_read_b64 v[42:43], v95 offset:8")
        a.I("ds_read_b64 v[44:45], v95 offset:16")
        a.I("s_waitcnt lgkmcnt(0)")
        a.I("v_add_f32 v46, v40, v42")
        a.I("v_mul_f32 v46, 0x43580000, v46")
        a.I("v_mov_b32 v47, 0x43500000")
        a.I("v_fmac_f32 v46, v47, v44")
        a.I("v_mul_f32 v46, 0x3acccccd, v46")
        a.I("v_sub_f32 v40, v40, v46")
        a.I("v_sub_f32 v42, v42, v46")
        a.I("v_sub_f32 v44, v44, v46")
        a.I("v_mul_f32 v40, v40, v40")
        a.I("v_fmac_f32 v40, v42, v42")
        a.I("v_mul_f32 v40, 0x43580000, v40")
        a.I("v_mul_f32 v44, v44, v44")
        a.I("v_fmac_f32 v40, v47, v44")
        a.I("v_add_f32 v40, v40, v41")
        a.I("v_add_f32 v40, v40, v43")
        a.I("v_add_f32 v40, v40, v45")
        a.I("v_mul_f32 v40, 0x3acccccd, v40")
        self.ln_denom(40, 48)
        a.I("v_cvt_pk_bf16_f32 v46, v46, v46")
        a.I("v_lshlrev_b32 v46, 16, v46")
        a.I("v_rcp_f32 v41, v40")
        o = [32, 33, 34, 35]
        for r in o:
            a.I(f"v_sub_f32 v{r}, v{r}, v46")
        self.bf16_round(o, 6)
        for r in o:
            self.div_by(r, 40, 41, 7)
        self.bf16_round(o, 6)
        for k, r in enumerate(o):
            a.I(f"v_mul_f32 v{r}, v{r}, v{20+k}")
        self.bf16_round(o, 6)
        for k, r in enumerate(o):
            a.I(f"v_add_f32 v{r}, v{r}, v{24+k}")
        a.I("v_cvt_pk_bf16_f32 v32, v32, v33")
        a.I("v_cvt_pk_bf16_f32 v33, v34, v35")
        a.I("s_mov_b64 exec, s[50:51]")
        a.I("ds_write_b64 v31, v[32:33]")
        a.I("s_mov_b64 exec, -1")
        a.I("s_waitcnt lgkmcnt(0)")
        a.I("s_barrier")
        a.I("s_cmp_ge_u32 s44, 8")
        a.I("s_cbranch_scc1 L_gu_m6")
        self.mfma_with_b(7, 96, 29, 40, 20)
        a.I("s_branch L_gu_mdone")
        a.label("L_gu_m6")
        a.fence(2)
        self.mfma_with_b(6, 96, 29, 40, 20)
        a.label("L_gu_mdone")
        a.fence(8)
        self.write_red(20, 30)
        a.I("s_cmp_lg_u32 s44, 0")
        a.I("s_cbranch_scc1 L_gu_done")
        a.I("v_lshlrev_b32 v6, 4, v5")
        for kt in range(3):
            a.I(f"ds_read_b128 v[{20+4*kt}:{23+4*kt}], v6 offset:{L_RED + 1024*kt}")
        a.I("s_waitcnt lgkmcnt(0)")
        for k in range(4):
            a.I(f"v_add_f32 v{20+k}, v{20+k}, v{24+k}")
        for k in range(4):
            a.I(f"v_add_f32 v{20+k}, v{20+k}, v{28+k}")
        self.bf16_round([20, 21, 22, 23], 6)
        for k in range(4):
            a.I(f"v_mov_b32 v{24+k}, v{20+k}")
        for k in range(4):
            a.I(f"v_permlane32_swap_b32 v{20+k}, v{24+k}")
        for k in range(4):
            a.I(f"v_mul_f32 v{20+k}, v{20+k}, v{24+k}")
        a.I("v_cvt_pk_bf16_f32 v20, v20, v21")
        a.I("v_cvt_pk_bf16_f32 v21, v22, v23")
        a.I("v_and_b32 v6, 3, v5")
        a.I("v_lshlrev_b32 v6, 6, v6")
        a.I("v_bfe_u32 v7, v5, 2, 3")
        a.I("v_lshl_add_u32 v6, v7, 3, v6")
        a.I("s_mov_b32 exec_lo, -1"); a.I("s_mov_b32 exec_hi, 0")
        a.I(f"ds_write_b64 v6, v[20:21] offset:{L_QV}")
        a.I("s_mov_b64 exec, -1")
        a.I("s_waitcnt lgkmcnt(0)")
        a.label("L_gu_done")
        a.I("s_barrier")
        a.I("v_and_b32 v6, 3, v5")
        a.I("v_lshlrev_b32 v6, 6, v6")
        a.I("v_lshrrev_b32 v7, 4, v5")
        a.I("v_lshl_add_u32 v6, v7, 4, v6")
        a.I(f"ds_read_b128 v[40:43], v6 offset:{L_QV}")
        a.I("v_and_b32 v6, 3, v5")
        a.I("v_lshlrev_b32 v6, 6, v6")
        a.I("v_lshl_add_u32 v6, v7, 4, v6")
        a.I("s_mul_i32 s45, s44, 12288")
        a.I(f"s_lshl_b32 s46, s{S_NB}, 8")
        a.I("s_add_u32 s45, s45, s46")
        a.I(f"s_add_u32 s45, s45, {WS_PD}")
        a.I("s_waitcnt lgkmcnt(0)")
        for t in range(4):
            a.I(f"v_mfma_f32_16x16x32_bf16 v[{44+4*t}:{47+4*t}], v[{124+4*t}:{127+4*t}], v[40:43], 0")
        a.I(f"s_mov_b32 exec_lo, 0x{MASK_N4_LO:x}")
        a.I(f"s_mov_b32 exec_hi, 0x{MASK_N4_LO:x}")
        for t in range(4):
            if t == 3:
                a.I("s_cmp_ge_u32 s44, 4")
                a.I("s_cbranch_scc1 L_gu_st_done")
            self.canon([44+4*t+k for k in range(4)], 12)
            a.I(f"buffer_store_dwordx4 v[{44+4*t}:{47+4*t}], v6, s[40:43], s45 offen sc1")
            if t < 3:
                a.I(f"s_add_u32 s45, s45, {12*12288}")
        a.label("L_gu_st_done")
        a.I("s_mov_b64 exec, -1")
        self.stamp(11)

    def post_final(self):
        a = self.a
        a.fence(2)
        a.I("v_lshlrev_b32 v10, 4, v5")
        a.I(f"s_mul_i32 s47, s{S_DT}, 12288")
        a.I("s_lshl_b32 s45, s44, 10")
        a.I("s_add_u32 s47, s47, s45")
        a.I(f"s_add_u32 s47, s47, {WS_PD}")
        a.I("v_bfe_u32 v12, v5, 2, 2")
        a.I("v_and_b32 v13, 3, v5")
        a.I("v_mul_u32_u24 v14, 7680, v12")
        a.I("v_lshl_add_u32 v14, v13, 3, v14")
        a.I(f"s_lshl_b32 s45, s{S_DT}, 5")
        a.I(f"s_add_u32 s46, s45, {WS_MOD + 6400}")
        a.I("v_mul_u32_u24 v31, 1280, v12")
        a.I("v_lshl_add_u32 v31, v13, 3, v31")
        a.I(f"s_add_u32 s45, s45, {L_OPART}")
        a.I("v_add_u32 v31, s45, v31")
        a.I("v_and_b32 v30, 15, v5")
        a.I("v_lshlrev_b32 v30, 4, v30")
        a.I("s_lshl_b32 s45, s44, 8")
        a.I(f"s_add_u32 s45, s45, {L_RED}")
        a.I("v_add_u32 v29, s45, v30")
        self.stamp(19)
        self.poll(["buffer_load_dwordx4 v[40:43], v10, s[40:43], s47 offen sc1",
                   "buffer_load_dwordx2 v[22:23], v14, s[40:43], s46 offen sc1"], [40, 41, 42, 43, 22, 23], "L_ph", pre=6)
        self.stamp(20)
        for sw in ("v_permlane32_swap_b32", "v_permlane16_swap_b32"):
            for k in range(4):
                a.I(f"v_mov_b32 v{44+k}, v{40+k}")
            for k in range(4):
                a.I(f"{sw} v{40+k}, v{44+k}")
            for k in range(4):
                a.I(f"v_add_f32 v{40+k}, v{40+k}, v{44+k}")
        a.I("s_mov_b32 exec_lo, 0xffff"); a.I("s_mov_b32 exec_hi, 0")
        a.I("ds_write_b128 v29, v[40:43]")
        a.I("s_mov_b64 exec, -1")
        a.I("s_waitcnt lgkmcnt(0)")
        a.I("s_barrier")
        a.I("s_cmp_lg_u32 s44, 0")
        a.I("s_cbranch_scc1 L_dn_done")
        a.I("v_lshrrev_b32 v6, 4, v5")
        a.I("v_mul_u32_u24 v6, 768, v6")
        a.I("v_add_u32 v6, v6, v30")
        for k in range(3):
            a.I(f"ds_read_b128 v[{40+4*k}:{43+4*k}], v6 offset:{L_RED + 256*k}")
        a.I("ds_read_b64 v[32:33], v31")
        self.srd(36, 26, 5120)
        a.I("s_waitcnt lgkmcnt(0)")
        for k in range(4):
            a.I(f"v_add_f32 v{40+k}, v{40+k}, v{44+k}")
        for k in range(4):
            a.I(f"v_add_f32 v{40+k}, v{40+k}, v{48+k}")
        for sw in ("v_permlane32_swap_b32", "v_permlane16_swap_b32"):
            for k in range(4):
                a.I(f"v_mov_b32 v{44+k}, v{40+k}")
            for k in range(4):
                a.I(f"{sw} v{40+k}, v{44+k}")
            for k in range(4):
                a.I(f"v_add_f32 v{40+k}, v{40+k}, v{44+k}")
        o = [40, 41, 42, 43]
        self.bf16_round(o, 6)
        self.unpack(22, 24, 25)
        self.unpack(23, 26, 27)
        for k in range(4):
            a.I(f"v_mul_f32 v{40+k}, v{40+k}, v{24+k}")
        self.bf16_round(o, 6)
        self.unpack(32, 24, 25)
        self.unpack(33, 26, 27)
        for k in range(4):
            a.I(f"v_add_f32 v{40+k}, v{40+k}, v{24+k}")
        a.I("v_cvt_pk_bf16_f32 v40, v40, v41")
        a.I("v_cvt_pk_bf16_f32 v41, v42, v43")
        a.I("v_mul_u32_u24 v6, 1280, v12")
        a.I("v_lshl_add_u32 v6, v13, 3, v6")
        a.I(f"s_lshl_b32 s45, s{S_DT}, 5")
        a.I("s_mov_b32 exec_lo, 0xffff"); a.I("s_mov_b32 exec_hi, 0")
        a.I("buffer_store_dwordx2 v[40:41], v6, s[36:39], s45 offen")
        a.I("s_mov_b64 exec, -1")
        a.label("L_dn_done")
        self.stamp(21)

    def tail(self):
        a = self.a
        a.label("L_tail")
        if self.diag:
            a.fence(4)
            self.stamp(13)
            a.I(f"s_lshl_b32 s79, s{S_PRE}, 4")
            a.I(f"s_or_b32 s79, s79, s{S_POST}")
            a.I("s_mul_i32 s45, s2, 12")
            a.I("s_add_u32 s45, s45, s44")
            a.I("s_lshl_b32 s45, s45, 7")
            a.I(f"s_add_u32 s45, s45, {WS_DBG}")
            a.I("s_mov_b64 exec, 1")
            a.I("v_mov_b32 v6, 0")
            regs = [64 + k for k in range(16)] + [93 + k for k in range(8)]
            for q in range(6):
                for k in range(4):
                    a.I(f"v_mov_b32 v{8+k}, s{regs[4*q+k]}")
                a.I(f"buffer_store_dwordx4 v[8:11], v6, s[40:43], s45 offen offset:{16*q}")
                a.I("s_nop 1")
        a.label("L_end")
        a.I("s_endpgm")
        a.raw(f""".section .rodata,"a"
.p2align 6
.amdhsa_kernel {self.name}
  .amdhsa_next_free_vgpr 168
  .amdhsa_next_free_sgpr 102
  .amdhsa_accum_offset 168
  .amdhsa_group_segment_fixed_size 0
  .amdhsa_float_denorm_mode_32 3
  .amdhsa_kernarg_size 112
  .amdhsa_user_sgpr_count 2
  .amdhsa_user_sgpr_kernarg_segment_ptr 1
  .amdhsa_system_sgpr_workgroup_id_x 1
.end_amdhsa_kernel""")

    def build(self):
        self.entry()
        self.helper()
        self.a.I("s_branch L_post")
        self.stream()
        self.post()
        self.tail()
        return self.a.text()


def make(path, diag=False, name=KNAME, **kw):
    cfg = StreamCfg()
    for k, v in kw.items():
        setattr(cfg, k, v)
    g = Gen(cfg, diag=diag, name=name)
    txt = g.build()
    open(path, 'w').write(txt)
    return g


if __name__ == '__main__':
    out = sys.argv[1]
    kw = {}
    diag = False
    name = KNAME
    for kv in sys.argv[2:]:
        k, v = kv.split('=')
        if k == 'diag': diag = bool(int(v))
        elif k == 'name': name = v
        else: kw[k] = v.replace('_', ' ').replace('none', '') if k in ('nt', 'pfpol') else int(v)
    g = make(out, diag=diag, name=name, **kw)
    print(out, 'nops', g.a.nops)
```

```python
from asmdsl import Asm

LOG2E = 0x3fb8aa3b
SCALE = 0x3d93cd3a

R0 = 8
D = 38


def slot(i):
    return R0 + 4 * (i % D)


def hole(i):
    return R0 + 4 * i + 3


V_OFF = 1
V_Q = (2, 3, 4)
V_LANE = 5
V_T0, V_T1 = 6, 7
A_ = (hole(0), hole(1))
B_ = (hole(2), hole(3))
C_ = (hole(4), hole(5))
D_ = (hole(6), hole(7), hole(8), hole(9))
E_ = (hole(10), hole(11))
TT = (hole(12), hole(13))
V_PADDR = hole(14)
V_PW = hole(15)
V_X = [hole(16 + i) for i in range(6)]
SC = tuple(hole(22 + i) for i in range(4))
ACC = tuple(hole(26 + i) for i in range(6))
PG = (160, 164)
PTX = (hole(32), hole(33), hole(34), hole(35))
V_TK = hole(0)
PT = PTX


def set_depth(d):
    global D
    assert 36 <= d <= 38 or d == 32
    D = d


class StreamCfg:
    D = 38
    NB0 = 0
    W = 10
    W0 = 8
    late_skip = True
    WV = 64
    nt = 'nt'
    codepf = 0
    N1 = 4
    dbgt = 0
    pad = 0
    pf = 0
    pfpol = ''
    PW = 2
    ygate = 1
    early_w = 1
    WW = 3
    WX = 10
    DX = 64
    hop = 0
    TJ = 44
    pw_early = 0
    gate = 1
    pretouch = 0


def emit_issue(a, cfg, u, S):
    srd = S['srdK'] if u < 128 else S['srdV']
    if u == 128:
        a.I(f"s_mov_b32 s{S['soff']}, 0")
    s = slot(u)
    a.vmem(f"buffer_load_dwordx3 v[{s}:{s+2}], v{V_OFF}, s[{srd}:{srd+3}], s{S['soff']} offen {cfg.nt}", ('ld', u))
    if u not in (127, 255):
        a.I(f"s_addk_i32 s{S['soff']}, 6144")


def stream_prologue(a, cfg, S):
    a.comment('stream prologue')
    a.I(f"v_and_b32 v{V_LANE}, 63, v0")
    a.I(f"s_mul_i32 s{S['tmp']}, s{S['wave']}, 768")
    a.I(f"v_mul_u32_u24 v{V_OFF}, 12, v{V_LANE}")
    a.I(f"v_add_u32 v{V_OFF}, s{S['tmp']}, v{V_OFF}")
    a.I(f"s_mov_b32 s{S['soff']}, 0")
    a.vm_reset()
    for u in range(D):
        if u in S.get('hook_before', {}):
            S['hook_before'][u]()
        if u >= cfg.W0:
            a.vm_window(cfg.W0 - 1)
        emit_issue(a, cfg, u, S)
        if u == S.get('b0_after', -1):
            a.I('s_barrier')
    return D


def k_tree(a, t, S):
    i = t % 32
    if i % 2 == 1:
        a.I(f"v_permlane16_swap_b32 v{A_[0]}, v{A_[1]}")
        a.I(f"v_add_f32 v{B_[(i >> 1) & 1]}, v{A_[0]}, v{A_[1]}")
    if i % 4 == 3:
        c = C_[(i >> 2) & 1]
        a.I(f"v_add_f32_dpp v{c}, v{B_[0]}, v{B_[0]} row_ror:8 row_mask:0xf bank_mask:0x3")
        a.I(f"v_add_f32_dpp v{c}, v{B_[1]}, v{B_[1]} row_ror:8 row_mask:0xf bank_mask:0xc")
    if i % 8 == 7:
        d = D_[i >> 3]
        a.I(f"v_add_f32_dpp v{d}, v{C_[0]}, v{C_[0]} row_half_mirror row_mask:0xf bank_mask:0x5")
        a.I(f"v_add_f32_dpp v{d}, v{C_[1]}, v{C_[1]} row_half_mirror row_mask:0xf bank_mask:0xa")
    if i % 16 == 15:
        k = i >> 4
        d0, d1 = D_[2 * k], D_[2 * k + 1]
        a.I(f"v_add_f32_dpp v{TT[0]}, v{d0}, v{d0} quad_perm:[1,0,3,2] row_mask:0xf bank_mask:0xf")
        a.I(f"v_add_f32_dpp v{TT[1]}, v{d1}, v{d1} quad_perm:[1,0,3,2] row_mask:0xf bank_mask:0xf")
        a.I(f"v_cndmask_b32 v{E_[k]}, v{TT[0]}, v{TT[1]}, s[{S['mask0']}:{S['mask0']+1}]")
    if i == 31:
        a.I(f"v_add_f32_dpp v{TT[0]}, v{E_[0]}, v{E_[0]} quad_perm:[2,3,0,1] row_mask:0xf bank_mask:0xf")
        a.I(f"v_add_f32_dpp v{TT[1]}, v{E_[1]}, v{E_[1]} quad_perm:[2,3,0,1] row_mask:0xf bank_mask:0xf")
        a.I(f"v_cndmask_b32 v{SC[t // 32]}, v{TT[0]}, v{TT[1]}, s[{S['mask1']}:{S['mask1']+1}]")


def wave_reduce(a, op, v, sdst):
    for r in (8, 4, 2, 1):
        a.I(f"{op}_dpp v{v}, v{v}, v{v} row_ror:{r} row_mask:0xf bank_mask:0xf")
    a.I(f"{op}_dpp v{v}, v{v}, v{v} row_bcast:15 row_mask:0xa bank_mask:0xf")
    a.I(f"{op}_dpp v{v}, v{v}, v{v} row_bcast:31 row_mask:0xc bank_mask:0xf")
    a.I(f"v_readlane_b32 s{sdst}, v{v}, 63")


def round_bf16_pairs(a, regs, tmp):
    a.I(f"v_cvt_pk_bf16_f32 v{tmp[0]}, v{regs[0]}, v{regs[1]}")
    a.I(f"v_cvt_pk_bf16_f32 v{tmp[1]}, v{regs[2]}, v{regs[3]}")
    a.I(f"v_lshlrev_b32 v{regs[0]}, 16, v{tmp[0]}")
    a.I(f"v_and_b32 v{regs[1]}, 0xffff0000, v{tmp[0]}")
    a.I(f"v_lshlrev_b32 v{regs[2]}, 16, v{tmp[1]}")
    a.I(f"v_and_b32 v{regs[3]}, 0xffff0000, v{tmp[1]}")


def stream_main(a, cfg, S, L, issued, stamp=None):
    stamp = stamp or (lambda k: None)
    a.I(f"s_mov_b32 s{S['mask0']}, 0xaaaaaaaa")
    a.I(f"s_mov_b32 s{S['mask0']+1}, 0xaaaaaaaa")
    a.I(f"s_mov_b32 s{S['mask1']}, 0xcccccccc")
    a.I(f"s_mov_b32 s{S['mask1']+1}, 0xcccccccc")
    a.I(f"s_mov_b32 s{S['sello']}, 0x05040100")
    a.I(f"s_mov_b32 s{S['selhi']}, 0x07060302")
    a.I(f"s_mov_b32 s{S['log2e']}, 0x{LOG2E:x}")
    a.I(f"v_and_b32 v{V_T0}, 31, v{V_LANE}")
    a.I(f"v_mul_u32_u24 v{V_T0}, 12, v{V_T0}")
    a.I(f"v_lshrrev_b32 v{V_T1}, 5, v{V_LANE}")
    a.I(f"v_lshlrev_b32 v{V_PADDR}, 8, v{V_T1}")
    a.I(f"s_lshl_b32 s{S['tmp']}, s{S['wave']}, 9")
    a.I(f"s_add_u32 s{S['tmp']}, s{S['tmp']}, {L['P']}")
    a.I(f"v_add_u32 v{V_PADDR}, s{S['tmp']}, v{V_PADDR}")
    x = V_X
    a.I(f"v_bfe_u32 v{x[0]}, v{V_LANE}, 4, 1")
    a.I(f"v_lshl_add_u32 v{V_PW}, v{x[0]}, 1, v{V_PADDR}")
    a.I(f"v_bfe_u32 v{x[0]}, v{V_LANE}, 3, 1")
    a.I(f"v_lshl_add_u32 v{V_PW}, v{x[0]}, 2, v{V_PW}")
    a.I(f"v_bfe_u32 v{x[0]}, v{V_LANE}, 2, 1")
    a.I(f"v_lshl_add_u32 v{V_PW}, v{x[0]}, 3, v{V_PW}")
    a.I(f"v_bfe_u32 v{x[0]}, v{V_LANE}, 0, 1")
    a.I(f"v_lshl_add_u32 v{V_PW}, v{x[0]}, 4, v{V_PW}")
    a.I(f"v_bfe_u32 v{x[0]}, v{V_LANE}, 1, 1")
    a.I(f"v_lshl_add_u32 v{V_PW}, v{x[0]}, 5, v{V_PW}")
    for k in range(6):
        a.I(f"v_mov_b32 v{ACC[k]}, 0")
    stamp(1)
    a.I('s_barrier')
    stamp(2)
    a.I(f"ds_read_b32 v{V_Q[0]}, v{V_T0} offset:{L['QV']}")
    a.I(f"ds_read_b32 v{V_Q[1]}, v{V_T0} offset:{L['QV']+4}")
    a.I(f"ds_read_b32 v{V_Q[2]}, v{V_T0} offset:{L['QV']+8}")
    a.I('s_waitcnt lgkmcnt(0)')

    W = cfg.W
    pend = None
    for t in range(128):
        s = slot(t)
        a.vm_wait(('ld', t))
        leaf = A_[t & 1]
        a.I(f"v_dot2_f32_bf16 v{leaf}, v{s}, v{V_Q[0]}, 0")
        a.I(f"v_dot2c_f32_bf16 v{leaf}, v{s+1}, v{V_Q[1]}") if False else a.I(f"v_dot2_f32_bf16 v{leaf}, v{s+1}, v{V_Q[1]}, v{leaf}")
        a.I(f"v_dot2_f32_bf16 v{leaf}, v{s+2}, v{V_Q[2]}, v{leaf}")
        if cfg.late_skip:
            target = min(t + D, 127 + W)
        else:
            target = max(D - 1, t + W)
        while issued <= target:
            emit_issue(a, cfg, issued, S)
            issued += 1
        k_tree(a, t, S)
        for _ in range(cfg.pad):
            a.I("s_mov_b32 s63, 0x12345")
    stamp(3)
    sc = list(SC)
    round_bf16_pairs(a, sc, (V_T0, V_T1))
    a.I(f"s_mov_b32 s{S['tmp']}, 0x{SCALE:x}")
    for r in sc:
        a.I(f"v_mul_f32 v{r}, s{S['tmp']}, v{r}")
    round_bf16_pairs(a, sc, (V_T0, V_T1))
    a.I(f"v_max_f32 v{V_T0}, v{sc[0]}, v{sc[1]}")
    a.I(f"v_max3_f32 v{V_T0}, v{V_T0}, v{sc[2]}, v{sc[3]}")
    wave_reduce(a, 'v_max_f32', V_T0, S['m'])
    for k, r in enumerate(sc):
        a.I(f"v_subrev_f32 v{x[k]}, s{S['m']}, v{r}")
    for k in range(4):
        a.I(f"v_mul_f32 v{x[k]}, s{S['log2e']}, v{x[k]}")
    for k in range(4):
        a.I(f"v_exp_f32 v{x[k]}, v{x[k]}")
    a.I(f"v_add_f32 v{V_T0}, v{x[0]}, v{x[1]}")
    a.I(f"v_add_f32 v{V_T1}, v{x[2]}, v{x[3]}")
    a.I(f"v_add_f32 v{V_T0}, v{V_T0}, v{V_T1}")
    wave_reduce(a, 'v_add_f32', V_T0, S['l'])
    a.I(f"s_lshl_b32 s{S['tmp']}, s{S['wave']}, 3")
    a.I(f"s_add_u32 s{S['tmp']}, s{S['tmp']}, {L['STATS']}")
    a.I(f"v_mov_b32 v{x[4]}, s{S['m']}")
    a.I(f"v_mov_b32 v{x[5]}, s{S['l']}")
    a.I(f"v_mov_b32 v{V_T0}, s{S['tmp']}")
    a.I(f"ds_write_b32 v{V_T0}, v{x[4]}")
    a.I(f"ds_write_b32 v{V_T0}, v{x[5]} offset:4")
    a.I('s_waitcnt lgkmcnt(0)')
    a.I('s_barrier')
    stamp(4)
    while issued <= 127 + min(D, cfg.DX):
        a.vm_window(cfg.WX - 1)
        emit_issue(a, cfg, issued, S)
        issued += 1
    stamp(5)
    a.I('s_barrier')
    stamp(6)
    a.I(f"v_mov_b32 v{V_T0}, {L['FIN']}")
    a.I(f"ds_read_b64 v[{PG[1]}:{PG[1]+1}], v{V_T0}")
    a.I('s_waitcnt lgkmcnt(0)')
    for k, r in enumerate(sc):
        a.I(f"v_sub_f32 v{x[k]}, v{r}, v{PG[1]}")
    for k in range(4):
        a.I(f"v_mul_f32 v{x[k]}, s{S['log2e']}, v{x[k]}")
    for k in range(4):
        a.I(f"v_exp_f32 v{x[k]}, v{x[k]}")
    for k in range(4):
        a.I(f"v_mul_f32 v{x[k]}, v{x[k]}, v{PG[1]+1}")
    a.I(f"v_cvt_pk_bf16_f32 v{x[4]}, v{x[0]}, v{x[1]}")
    a.I(f"v_cvt_pk_bf16_f32 v{x[5]}, v{x[2]}, v{x[3]}")
    a.I(f"ds_write_b16 v{V_PW}, v{x[4]}")
    a.I(f"ds_write_b16_d16_hi v{V_PW}, v{x[4]} offset:64")
    a.I(f"ds_write_b16 v{V_PW}, v{x[5]} offset:128")
    a.I(f"ds_write_b16_d16_hi v{V_PW}, v{x[5]} offset:192")
    a.I(f"ds_read_b128 v[{PG[0]}:{PG[0]+3}], v{V_PADDR}")
    a.I(f"ds_read_b128 v[{PG[1]}:{PG[1]+3}], v{V_PADDR} offset:16")

    for j in range(64):
        g = j // 4
        if j % 4 == 0:
            a.I('s_waitcnt lgkmcnt(1)' if g + 1 < 16 else 's_waitcnt lgkmcnt(0)')
        P = PG[g & 1] + (j % 4)
        t0, t1 = 128 + 2 * j, 128 + 2 * j + 1
        s0, s1 = slot(t0), slot(t1)
        a.vm_wait(('ld', t1))
        for k in range(3):
            tl, th = PT[(2 * k) % 4], PT[(2 * k + 1) % 4]
            a.I(f"v_perm_b32 v{tl}, v{s1+k}, v{s0+k}, s{S['sello']}")
            a.I(f"v_perm_b32 v{th}, v{s1+k}, v{s0+k}, s{S['selhi']}")
            a.I(f"v_dot2c_f32_bf16 v{ACC[2*k]}, v{tl}, v{P}")
            a.I(f"v_dot2c_f32_bf16 v{ACC[2*k+1]}, v{th}, v{P}")
        if j % 4 == 3 and g + 2 < 16:
            a.I(f"ds_read_b128 v[{PG[g & 1]}:{PG[g & 1]+3}], v{V_PADDR} offset:{16*(g+2)}")
        if j == cfg.TJ and not cfg.early_w:
            lab = a.newlabel('tk')
            a.I(f"v_mov_b32 v{V_T0}, 8")
            a.I(f"v_mov_b32 v{V_T1}, 1")
            a.I(f"s_cmp_eq_u32 s{S['wave']}, 0")
            a.I(f"s_cbranch_scc0 {lab}_ld")
            a.I("s_mov_b64 exec, 1")
            a.I(f"global_atomic_add v{V_TK}, v{V_T0}, v{V_T1}, s[28:29] sc0 sc1")
            a.I("s_mov_b64 exec, -1")
            a.I(f"s_branch {lab}_done")
            a.label(f"{lab}_ld")
            a.I(f"global_load_dword v{V_TK}, v{V_T0}, s[4:5]")
            a.label(f"{lab}_done")
            a.vm.append(('tk', 0))
        for _ in range(2 * cfg.pad):
            a.I("s_mov_b32 s63, 0x12345")
        target = min(255, t1 + min(cfg.WV, D))
        while issued <= target:
            emit_issue(a, cfg, issued, S)
            issued += 1
    stamp(7)
    for k in range(3):
        a.I(f"v_permlane32_swap_b32 v{ACC[k]}, v{ACC[k+3]}")
        a.I(f"v_add_f32 v{ACC[k]}, v{ACC[k]}, v{ACC[k+3]}")
    a.I(f"v_and_b32 v{V_T0}, 31, v{V_LANE}")
    a.I(f"v_mul_u32_u24 v{V_T0}, 24, v{V_T0}")
    a.I(f"v_lshrrev_b32 v{V_T1}, 5, v{V_LANE}")
    a.I(f"v_mad_u32_u24 v{V_T0}, v{V_T1}, 12, v{V_T0}")
    a.I(f"s_mul_i32 s{S['tmp']}, s{S['wave']}, 768")
    a.I(f"s_add_u32 s{S['tmp']}, s{S['tmp']}, {L['OPART']}")
    a.I(f"v_add_u32 v{V_T0}, s{S['tmp']}, v{V_T0}")
    for k in range(3):
        a.I(f"ds_write_b32 v{V_T0}, v{ACC[k]} offset:{4*k}")
    if not cfg.early_w:
        a.vm_wait(('tk', 0))
        a.I("s_waitcnt vmcnt(0)")
        lab = a.newlabel('tkw')
        a.I(f"s_cmp_eq_u32 s{S['wave']}, 0")
        a.I(f"s_cbranch_scc0 {lab}")
        a.I("s_mov_b64 exec, 1")
        a.I(f"v_mov_b32 v{V_T1}, {L['TICKET']}")
        a.I(f"ds_write_b32 v{V_T1}, v{V_TK}")
        a.I("s_mov_b64 exec, -1")
        a.label(lab)
    a.I('s_waitcnt lgkmcnt(0)')
    a.I('s_barrier')
    stamp(8)
```

```python
import sys
sys.path.insert(0, 'gen')
from asmdsl import Asm
import stream as st
from stream import StreamCfg, LOG2E

KNAME = 'adaLN_cond__gqa_block_cached__glu_gated_bilinear__decode_kernel'

WS_MOD, WS_Q, WS_ML, WS_O, WS_Y, WS_PD, WS_DBG = 0, 0x8000, 0x38000, 0x40000, 0x70000, 0x84000, 0x100000
WS_SIZE = 0x200000
L_ACT = 0x0000
L_RED = 0x3200
L_QV = 0x4200
L_STATS = 0x4400
L_FIN = 0x4480
L_HFLAG = 0x4500
L_LNST = 0x4540
L_P = 0x4600
L_OPART = 0x5600
L_W = 0x7000
L_WD = L_W + 81920
L_X1 = 0x6E00
LDS_BYTES = L_W + 81920 + 40960 + 512
LDS = dict(QV=L_QV, STATS=L_STATS, FIN=L_FIN, P=L_P, OPART=L_OPART, TICKET=L_FIN + 8)

SPIN_MAX = 1 << 16
NANF = 0x7fc00000
NANB = 0x7fc07fc0
EPS = 0x3727c5ac

S = dict(srdK=32, srdV=36, srdW=40, wave=44, tmp=45, soff=46, mask0=48, mask1=50, sello=52, selhi=53, log2e=54,
         m=55, l=56, b=57, h=58, half=59, spin=62)
S_PRE, S_BAND, S_POST, S_NB, S_KG = 80, 81, 82, 83, 84
S_KH, S_LATE, S_PHASE, S_DT = 89, 90, 91, 92
MASK_N4_LO = 0x000f000f


class Gen:
    def __init__(self, cfg, diag=False, name=KNAME):
        self.a = Asm()
        self.cfg = cfg
        self.diag = diag
        self.name = name

    def stamp(self, k):
        if not self.diag:
            return
        a = self.a
        a.I("s_memrealtime s[60:61]")
        a.I("s_waitcnt lgkmcnt(0)")
        a.I(f"s_mov_b32 s{64+k if k < 16 else 93+k-16}, s60")

    def srd(self, dst, ptr, size, off=None):
        a = self.a
        if off is None:
            a.I(f"s_mov_b32 s{dst}, s{ptr}")
            a.I(f"s_mov_b32 s{dst+1}, s{ptr+1}")
        else:
            a.I(f"s_add_u32 s{dst}, s{ptr}, s{off}")
            a.I(f"s_addc_u32 s{dst+1}, s{ptr+1}, 0")
        a.I(f"s_mov_b32 s{dst+2}, {size}")
        a.I(f"s_mov_b32 s{dst+3}, 0x20000")

    def canon(self, regs, nanreg=None):
        a = self.a
        for r in regs:
            a.I(f"v_min_u32 v{r}, -2, v{r}")

    def poll_sel(self, loads, label, t, first_issued=False):
        a = self.a
        n = len(loads)
        a.I(f"s_mov_b32 s63, {(1 << n) - 1}")
        a.I("s_mov_b32 s62, 0")
        if first_issued:
            a.I(f"s_branch {label}_chk")
        a.label(label)
        for i, (ld, regs) in enumerate(loads):
            a.I(f"s_bitcmp1_b32 s63, {i}")
            a.I(f"s_cbranch_scc0 {label}_s{i}")
            a.I(ld)
            a.label(f"{label}_s{i}")
        a.label(f"{label}_chk")
        a.I("s_add_u32 s62, s62, 1")
        a.I("s_waitcnt vmcnt(0)")
        for i, (ld, regs) in enumerate(loads):
            r = regs
            a.I(f"v_max3_u32 v{t}, v{r[0]}, v{r[1]}, v{r[2]}")
            a.I(f"v_max_u32 v{t}, v{t}, v{r[3]}")
            a.I(f"v_cmp_eq_u32 vcc, -1, v{t}")
            a.I("s_cmp_eq_u64 vcc, 0")
            a.I(f"s_cbranch_scc0 {label}_p{i}")
            a.I(f"s_bitset0_b32 s63, {i}")
            a.label(f"{label}_p{i}")
        a.I("s_cmp_eq_u32 s63, 0")
        a.I(f"s_cbranch_scc1 {label}_ok")
        a.I(f"s_cmp_lt_u32 s62, {SPIN_MAX}")
        a.I(f"s_cbranch_scc1 {label}")
        a.label(f"{label}_ok")

    def poll(self, loads, regs, label, pre=None):
        a = self.a
        a.I("s_mov_b32 s62, 0")
        a.label(label)
        for ld in loads:
            a.I(ld)
        a.I("s_add_u32 s62, s62, 1")
        a.I("s_waitcnt vmcnt(0)")
        rs = list(regs)
        t = pre
        first = True
        i = 0
        while i < len(rs):
            if first:
                if len(rs) >= 3:
                    a.I(f"v_max3_u32 v{t}, v{rs[0]}, v{rs[1]}, v{rs[2]}"); i = 3
                elif len(rs) == 2:
                    a.I(f"v_max_u32 v{t}, v{rs[0]}, v{rs[1]}"); i = 2
                else:
                    a.I(f"v_mov_b32 v{t}, v{rs[0]}"); i = 1
                first = False
            elif i + 1 < len(rs):
                a.I(f"v_max3_u32 v{t}, v{t}, v{rs[i]}, v{rs[i+1]}"); i += 2
            else:
                a.I(f"v_max_u32 v{t}, v{t}, v{rs[i]}"); i += 1
        a.I(f"v_cmp_eq_u32 vcc, -1, v{t}")
        a.I("s_cmp_eq_u64 vcc, 0")
        a.I(f"s_cbranch_scc1 {label}_ok")
        a.I(f"s_cmp_lt_u32 s62, {SPIN_MAX}")
        a.I(f"s_cbranch_scc1 {label}")
        a.label(f"{label}_ok")

    def poll_counter(self, off, expect, label, vz, vt):
        a = self.a
        a.I(f"v_mov_b32 v{vz}, {off}")
        a.I("s_mov_b32 s62, 0")
        a.I("s_mov_b64 exec, 1")
        a.label(label)
        a.I(f"global_load_dword v{vt}, v{vz}, s[28:29] sc1")
        a.I("s_add_u32 s62, s62, 1")
        a.I("s_waitcnt vmcnt(0)")
        a.I(f"v_readfirstlane_b32 s45, v{vt}")
        a.I(f"s_cmp_ge_u32 s45, {expect}")
        a.I(f"s_cbranch_scc1 {label}_ok")
        a.I(f"s_cmp_lt_u32 s62, {SPIN_MAX}")
        a.I(f"s_cbranch_scc1 {label}")
        a.label(f"{label}_ok")
        a.I("s_mov_b64 exec, -1")

    def hsync(self, k, label, vz, vt):
        a = self.a
        a.I("s_waitcnt lgkmcnt(0)")
        a.I("s_lshl_b32 s45, s44, 2")
        a.I(f"s_add_u32 s45, s45, {L_HFLAG}")
        a.I(f"v_mov_b32 v{vz}, s45")
        a.I(f"v_mov_b32 v{vt}, {k}")
        a.I(f"ds_write_b32 v{vz}, v{vt}")
        a.I(f"v_mov_b32 v{vz}, {L_HFLAG}")
        a.I("s_mov_b32 s62, 0")
        a.label(label)
        a.I(f"ds_read_b128 v[{vt}:{vt+3}], v{vz}")
        a.I("s_add_u32 s62, s62, 1")
        a.I("s_waitcnt lgkmcnt(0)")
        a.I(f"v_min3_u32 v{vt}, v{vt}, v{vt+1}, v{vt+2}")
        a.I(f"v_min_u32 v{vt}, v{vt}, v{vt+3}")
        a.I(f"v_readfirstlane_b32 s45, v{vt}")
        a.I(f"s_cmp_ge_u32 s45, {k}")
        a.I(f"s_cbranch_scc1 {label}_ok")
        a.I(f"s_cmp_lt_u32 s62, {SPIN_MAX*4}")
        a.I(f"s_cbranch_scc1 {label}")
        a.label(f"{label}_ok")

    def bf16_round(self, regs, tmp):
        a = self.a
        for i in range(0, len(regs), 2):
            a.I(f"v_cvt_pk_bf16_f32 v{tmp}, v{regs[i]}, v{regs[i+1]}")
            a.I(f"v_lshlrev_b32 v{regs[i]}, 16, v{tmp}")
            a.I(f"v_and_b32 v{regs[i+1]}, 0xffff0000, v{tmp}")

    def unpack(self, src, lo, hi):
        a = self.a
        a.I(f"v_lshlrev_b32 v{lo}, 16, v{src}")
        a.I(f"v_and_b32 v{hi}, 0xffff0000, v{src}")

    def wave_sum_bcast(self, v, sdst):
        st.wave_reduce(self.a, 'v_add_f32', v, sdst)

    def ln_denom(self, vvar, vt):
        a = self.a
        a.I(f"v_cvt_pk_bf16_f32 v{vt}, v{vvar}, v{vvar}")
        a.I(f"v_lshlrev_b32 v{vvar}, 16, v{vt}")
        a.I(f"v_add_f32 v{vvar}, 0x{EPS:x}, v{vvar}")
        a.I(f"v_cvt_pk_bf16_f32 v{vt}, v{vvar}, v{vvar}")
        a.I(f"v_lshlrev_b32 v{vvar}, 16, v{vt}")
        a.I(f"v_sqrt_f32 v{vt}, v{vvar}")
        a.I(f"v_rcp_f32 v{vt+1}, v{vt}")
        a.I(f"v_fma_f32 v{vt+2}, -v{vt}, v{vt}, v{vvar}")
        a.I(f"v_mul_f32 v{vt+1}, 0.5, v{vt+1}")
        a.I(f"v_fma_f32 v{vt}, v{vt+2}, v{vt+1}, v{vt}")
        a.I(f"v_cvt_pk_bf16_f32 v{vt}, v{vt}, v{vt}")
        a.I(f"v_lshlrev_b32 v{vvar}, 16, v{vt}")

    def div_by(self, num, den, rcp, t):
        a = self.a
        a.I(f"v_mul_f32 v{t}, v{num}, v{rcp}")
        a.I(f"v_fma_f32 v{num}, -v{t}, v{den}, v{num}")
        a.I(f"v_fma_f32 v{num}, v{num}, v{rcp}, v{t}")

    def entry(self):
        a = self.a
        a.raw(f"; @launch grid=(256,1,1) block=(768,1,1) lds={LDS_BYTES}")
        a.raw('.amdgcn_target "amdgcn-amd-amdhsa--gfx950"\n.text')
        a.raw(f".globl {self.name}\n.p2align 8\n.type {self.name},@function\n{self.name}:")
        a.I("s_cmp_ge_u32 s2, 256")
        a.I("s_cbranch_scc1 L_end")
        if self.cfg.dbgt:
            a.I("s_memrealtime s[98:99]")
        a.I("s_load_dwordx16 s[4:19], s[0:1], 0")
        a.I("s_load_dwordx8 s[20:27], s[0:1], 64")
        a.I("s_load_dwordx4 s[28:31], s[0:1], 96")
        a.I("v_lshrrev_b32 v1, 6, v0")
        a.I("v_and_b32 v5, 63, v0")
        a.I("v_readfirstlane_b32 s44, v1")
        a.I("s_lshr_b32 s45, s2, 1")
        a.I(f"s_mov_b32 s{S_PRE}, 2")
        a.I("s_bitcmp1_b32 s2, 0")
        a.I("s_cbranch_scc1 L_early_q")
        a.I(f"s_mov_b32 s{S_BAND}, s45")
        a.I("s_cmp_lt_u32 s45, 60")
        a.I(f"s_cselect_b32 s{S_PRE}, 1, 2")
        a.I("s_cbranch_scc1 L_early_done")
        a.I("s_cmp_lt_u32 s45, 124")
        a.I(f"s_cselect_b32 s{S_PRE}, 2, 0")
        a.I("s_add_u32 s45, s45, 68")
        a.label("L_early_q")
        a.I(f"s_lshr_b32 s{S_BAND}, s45, 1")
        a.I(f"s_and_b32 s{S_KH}, s45, 1")
        a.label("L_early_done")
        a.I("s_cmp_lt_u32 s44, 4")
        a.I("s_cbranch_scc0 L_stream")

    def pair_unit(self, sv, sdst):
        a = self.a
        a.I(f"s_and_b32 s46, s{sv}, 7")
        a.I(f"s_lshr_b32 s47, s{sv}, 4")
        a.I("s_lshl_b32 s47, s47, 3")
        a.I("s_add_u32 s46, s46, s47")
        a.I(f"s_bfe_u32 s47, s{sv}, 0x10003")
        a.I(f"s_lshl_b32 s{sdst}, s46, 1")
        a.I(f"s_add_u32 s{sdst}, s{sdst}, s47")

    def roles_rest(self):
        a = self.a
        a.I("s_and_b32 s45, s2, 7")
        a.I("s_lshr_b32 s46, s2, 3")
        a.I("s_and_b32 s47, s46, 3")
        a.I("s_lshl_b32 s47, s47, 3")
        a.I("s_add_u32 s58, s45, s47")
        a.I("s_lshr_b32 s46, s2, 5")
        a.I("s_lshr_b32 s57, s46, 1")
        a.I("s_and_b32 s59, s46, 1")
        a.I(f"s_mov_b32 s{S_POST}, 0")
        a.I("s_lshr_b32 s45, s2, 1")
        a.I("s_mul_i32 s46, s45, 6554")
        a.I("s_lshr_b32 s46, s46, 16")
        a.I(f"s_mov_b32 s{S_KG}, s46")
        a.I("s_mul_i32 s47, s46, 10")
        a.I(f"s_sub_u32 s{S_NB}, s45, s47")
        a.I("s_cmp_lt_u32 s45, 80")
        a.I(f"s_cselect_b32 s{S_POST}, 1, 0")
        lab = a.newlabel('roles_done')
        a.I("s_bitcmp1_b32 s2, 0")
        a.I(f"s_cbranch_scc0 {lab}")
        a.I(f"s_mov_b32 s{S_NB}, s45")
        a.I("s_cmp_lt_u32 s45, 48")
        a.I(f"s_cselect_b32 s{S_POST}, 2, 0")
        a.label(lab)

    def prefetch_weights(self):
        a = self.a
        pol = self.cfg.pfpol
        lab = a.newlabel('pf')
        a.I("s_cmp_eq_u32 s44, 0")
        a.I(f"s_cbranch_scc1 {lab}_done")
        a.I("v_lshlrev_b32 v8, 4, v5")
        a.I("s_cmp_eq_u32 s44, 3")
        a.I(f"s_cbranch_scc1 {lab}_small")
        a.I("s_mul_i32 s45, s2, 30720")
        self.srd(32, 12, 30720, off=45)
        a.I("s_sub_u32 s46, s44, 1")
        a.I("s_mul_i32 s46, s46, 15360")
        a.I("s_mov_b32 s63, 15")
        a.label(f"{lab}_l1")
        a.I(f"s_waitcnt vmcnt({self.cfg.PW - 1})")
        a.I(f"buffer_load_dwordx4 v[12:15], v8, s[32:35], s46 offen {pol}")
        a.I("s_add_u32 s46, s46, 1024")
        a.I("s_sub_u32 s63, s63, 1")
        a.I("s_cmp_lg_u32 s63, 0")
        a.I(f"s_cbranch_scc1 {lab}_l1")
        a.I(f"s_branch {lab}_done")
        a.label(f"{lab}_small")
        for i, p in enumerate((16, 18, 20)):
            a.I("s_mul_i32 s45, s2, 7680")
            self.srd(32, p, 7680, off=45)
            a.I("s_mov_b32 s46, 0")
            a.I("s_mov_b32 s63, 8")
            a.label(f"{lab}_s{i}")
            a.I(f"s_waitcnt vmcnt({self.cfg.PW - 1})")
            a.I(f"buffer_load_dwordx4 v[12:15], v8, s[32:35], s46 offen {pol}")
            a.I("s_add_u32 s46, s46, 1024")
            a.I("s_sub_u32 s63, s63, 1")
            a.I("s_cmp_lg_u32 s63, 0")
            a.I(f"s_cbranch_scc1 {lab}_s{i}")
        a.label(f"{lab}_done")
        a.fence(2)

    def v_weights(self):
        a = self.a
        WN = self.cfg.WW
        a.I(f"s_cmp_eq_u32 s{S_POST}, 1")
        a.I("s_cbranch_scc0 L_vw_gu")
        a.I(f"s_mul_i32 s45, s{S_KG}, {768*1280}")
        a.I(f"s_lshl_b32 s46, s{S_NB}, 7")
        a.I("s_add_u32 s47, s45, s46")
        self.srd(32, 12, 768 * 1280, off=47)
        self.dma_voff128(1280, 8, 9, 6, 7)
        a.I("s_sub_u32 s63, s44, 1")
        a.I(f"s_mul_i32 s46, s63, {256*1280}")
        a.I("s_lshl_b32 s47, s63, 15")
        a.I(f"s_add_u32 s47, s47, {L_W}")
        self.dma_loop(32, 32, 8, 9, 47, 46, 8 * 1280, "L_vw_wo_loop", window=WN + 1)
        a.I("s_branch L_vw_done")
        a.label("L_vw_gu")
        a.I(f"s_cmp_eq_u32 s{S_POST}, 2")
        a.I("s_cbranch_scc0 L_vw_done")
        a.I("s_cmp_eq_u32 s44, 3")
        a.I("s_cbranch_scc1 L_vw_dn")
        a.I(f"s_lshl_b32 s47, s{S_NB}, 6")
        a.I("s_cmp_eq_u32 s44, 2")
        a.I("s_cselect_b32 s48, s18, s16")
        a.I("s_cselect_b32 s49, s19, s17")
        self.srd(32, 48, 640 * 3072, off=47)
        self.dma_voff64(3072, 8, 6, 7)
        a.I("s_mov_b32 s46, 0")
        a.I("s_sub_u32 s47, s44, 1")
        a.I("s_mul_i32 s47, s47, 40960")
        a.I(f"s_add_u32 s47, s47, {L_W}")
        self.dma_loop(32, 40, 8, 8, 47, 46, 16 * 3072, "L_vw_gu_loop", window=WN)
        a.I("s_branch L_vw_done")
        a.label("L_vw_dn")
        a.I(f"s_mul_i32 s45, s{S_NB}, 40960")
        self.srd(32, 20, 40960, off=45)
        a.I("v_lshlrev_b32 v8, 4, v5")
        a.I("s_mov_b32 s46, 0")
        a.I(f"s_mov_b32 s47, {L_WD}")
        self.dma_loop(32, 40, 8, 8, 47, 46, 1024, "L_vw_dn_loop", window=WN)

    def roles_from_ticket(self, sfx=""):
        a = self.a
        a.I(f"v_mov_b32 v6, {L_FIN + 8}")
        a.I("ds_read_b32 v7, v6")
        a.I("s_waitcnt lgkmcnt(0)")
        a.I("v_readfirstlane_b32 s45, v7")
        a.I("s_cmp_lt_u32 s45, 40")
        a.I(f"s_cselect_b32 s{S_DT}, s45, -1")
        a.I(f"s_mov_b32 s{S_NB}, s45")
        a.I("s_cmp_lt_u32 s45, 48")
        a.I(f"s_cselect_b32 s{S_POST}, 2, 0")
        a.I(f"s_cbranch_scc1 L_ticket_done{sfx}")
        a.I("s_sub_u32 s45, s45, 48")
        a.I("s_cmp_lt_u32 s45, 80")
        a.I(f"s_cselect_b32 s{S_POST}, 1, 0")
        a.I("s_mul_i32 s46, s45, 6554")
        a.I("s_lshr_b32 s46, s46, 16")
        a.I(f"s_mov_b32 s{S_KG}, s46")
        a.I("s_mul_i32 s47, s46, 10")
        a.I(f"s_sub_u32 s{S_NB}, s45, s47")
        a.label(f"L_ticket_done{sfx}")

    def code_prefetch(self, wave):
        a = self.a
        a.I(f"s_cmp_eq_u32 s44, {wave}")
        a.I("s_cbranch_scc0 L_nopf")
        a.I("s_getpc_b64 s[46:47]")
        a.label("L_pc")
        a.I(f"s_sub_u32 s46, s46, (L_pc-{self.name})")
        a.I("s_subb_u32 s47, s47, 0")
        a.I("s_lshr_b32 s45, s2, 3")
        a.I("s_lshl_b32 s45, s45, 10")
        a.I("v_lshlrev_b32 v6, 4, v5")
        a.I("v_add_u32 v6, s45, v6")
        a.I("v_mov_b32 v7, 0")
        a.I("v_mov_b32 v9, s47")
        a.I("v_add_co_u32 v8, vcc, s46, v6")
        a.I("v_addc_co_u32 v9, vcc, v9, v7, vcc")
        a.I(f"s_mov_b32 s45, (L_end-{self.name}-12)")
        a.I("v_cmp_gt_u32 vcc, s45, v6")
        a.I("s_and_saveexec_b64 s[46:47], vcc")
        a.I("s_cbranch_execz L_pfskip")
        a.I("global_load_dwordx4 v[12:15], v[8:9], off")
        a.label("L_pfskip")
        a.I("s_mov_b64 exec, s[46:47]")
        a.label("L_nopf")

    def pretouch(self):
        a = self.a
        a.I("s_cmp_eq_u32 s44, 10")
        a.I("s_cbranch_scc0 L_nopt")
        a.I("v_lshlrev_b32 v6, 21, v5")
        bufs = [(24, 640*7680), (10, 640*12288), (30, WS_SIZE), (28, 256), (4, 5120), (22, 5120),
                (12, 6144*1280), (16, 640*3072), (18, 640*3072), (20, 1536*1280), (26, 5120)]
        if self.cfg.pretouch >= 2:
            pass
        for i, (p, size) in enumerate(bufs):
            self.srd(32, p, size)
            a.I(f"buffer_load_dword v{12+i}, v6, s[32:35], 0 offen")
        a.label("L_nopt")

    def resets(self):
        a = self.a
        a.I("v_mov_b32 v8, -1")
        a.I("v_mov_b32 v9, -1")
        a.I("v_mov_b32 v10, -1")
        a.I("v_mov_b32 v11, -1")
        a.I("v_lshlrev_b32 v6, 4, v5")
        a.I("s_lshl_b32 s45, s57, 5")
        a.I("s_add_u32 s45, s45, s58")
        a.I("s_lshl_b32 s45, s45, 1")
        a.I("s_add_u32 s45, s45, s59")
        a.I("s_mul_i32 s45, s45, 768")
        a.I(f"s_add_u32 s45, s45, {WS_O}")
        a.I("s_mov_b32 exec_lo, -1"); a.I("s_mov_b32 exec_hi, 0xffff")
        a.I("buffer_store_dwordx4 v[8:11], v6, s[40:43], s45 offen sc1")
        a.I("s_lshl_b32 s45, s2, 7")
        a.I(f"s_add_u32 s45, s45, {WS_ML}")
        a.I("s_mov_b64 exec, 0x11")
        a.I("buffer_store_dwordx4 v[8:11], v6, s[40:43], s45 offen sc1")
        a.I("s_mov_b64 exec, -1")
        a.I("v_lshrrev_b32 v7, 4, v5")
        a.I("v_and_b32 v12, 15, v5")
        a.I("v_lshlrev_b32 v12, 4, v12")

        def rows(cmp, rowbytes, base, bandbytes, band_reg, nchunk, lab, extra=None):
            a.I(cmp)
            a.I(f"s_cbranch_scc0 {lab}")
            a.I(f"v_mul_u32_u24 v13, {rowbytes}, v7")
            a.I("v_add_u32 v13, v13, v12")
            a.I(f"s_mul_i32 s45, s{band_reg}, {bandbytes}")
            if extra:
                a.I(f"s_mul_i32 s46, s{extra}, {4*rowbytes}")
                a.I("s_add_u32 s45, s45, s46")
            a.I(f"s_add_u32 s45, s45, {base}")
            m = (1 << nchunk) - 1
            m32 = m | (m << 16)
            a.I(f"s_mov_b32 exec_lo, 0x{m32:x}")
            a.I(f"s_mov_b32 exec_hi, 0x{m32:x}")
            a.I("buffer_store_dwordx4 v[8:11], v13, s[40:43], s45 offen sc1")
            a.I("s_mov_b64 exec, -1")
            a.label(lab)
        rows(f"s_cmp_eq_u32 s{S_PRE}, 2", 24576, WS_Q, 256, S_BAND, 16, 'L_rs2', extra=S_KH)
        rows(f"s_cmp_eq_u32 s{S_PRE}, 1", 7680, WS_MOD, 128, S_BAND, 8, 'L_rs1')
        rows(f"s_cmp_eq_u32 s{S_POST}, 1", 2560, WS_Y, 256, S_NB, 16, 'L_rs3', extra=S_KG)
        a.I(f"s_cmp_eq_u32 s{S_POST}, 2")
        a.I("s_cbranch_scc0 L_rs4")
        a.I("v_mul_u32_u24 v13, 12288, v7")
        a.I("v_add_u32 v13, v13, v12")
        a.I(f"s_lshl_b32 s45, s{S_NB}, 8")
        a.I(f"s_add_u32 s45, s45, {WS_PD}")
        for k in range(10):
            a.I("buffer_store_dwordx4 v[8:11], v13, s[40:43], s45 offen sc1")
            if k < 9:
                a.I(f"s_add_u32 s45, s45, {4*12288}")
        a.label("L_rs4")

    def resets_arrive(self):
        a = self.a
        a.I("s_waitcnt vmcnt(0)")
        self.stamp(16)
        a.I("s_mov_b64 exec, 1")
        a.I("v_mov_b32 v8, 1")
        a.I("s_and_b32 s45, s2, 1")
        a.I("s_lshl_b32 s45, s45, 7")
        a.I("v_mov_b32 v9, s45")
        a.I("global_atomic_add v9, v8, s[28:29] sc1")
        a.I(f"s_cmp_eq_u32 s{S_PRE}, 1")
        a.I("s_cbranch_scc0 L_noc1")
        a.I(f"s_cmp_lt_u32 s{S_BAND}, 20")
        a.I("s_cbranch_scc0 L_noc1")
        a.I("v_mov_b32 v9, 132")
        a.I("global_atomic_add v9, v8, s[28:29] sc1")
        a.label("L_noc1")
        a.I("s_mov_b64 exec, -1")

    def master(self):
        a = self.a
        a.I("s_cmp_eq_u32 s44, 1")
        a.I("s_cbranch_scc0 L_notmaster")
        a.I("s_cmp_eq_u32 s2, 254")
        a.I("s_cbranch_scc0 L_notmaster")
        def go(val):
            a.I("s_mov_b64 exec, -1")
            a.I("v_lshlrev_b32 v7, 7, v5")
            a.I(f"v_mov_b32 v6, {val}")
            for k in range(4):
                a.I(f"s_mov_b32 s45, {WS_ML + 64 + 8192*k}")
                a.I("buffer_store_dword v6, v7, s[40:43], s45 offen sc1")
        a.I("v_mov_b32 v7, 132")
        a.I("s_mov_b32 s62, 0")
        a.I("s_mov_b64 exec, 1")
        a.label("L_master1")
        a.I("global_load_dword v6, v7, s[28:29] sc1")
        a.I("s_add_u32 s62, s62, 1")
        a.I("s_waitcnt vmcnt(0)")
        a.I("v_readfirstlane_b32 s45, v6")
        a.I("s_cmp_ge_u32 s45, 20")
        a.I("s_cbranch_scc1 L_master1_ok")
        a.I(f"s_cmp_lt_u32 s62, {SPIN_MAX}")
        a.I("s_cbranch_scc1 L_master1")
        a.label("L_master1_ok")
        go(1)
        self.stamp(17)
        a.I("v_and_b32 v7, 1, v5")
        a.I("v_lshlrev_b32 v7, 7, v7")
        a.I("s_mov_b32 s62, 0")
        a.I("s_mov_b64 exec, 3")
        a.label("L_master")
        a.I("global_load_dword v6, v7, s[28:29] sc1")
        a.I("s_add_u32 s62, s62, 1")
        a.I("s_waitcnt vmcnt(0)")
        a.I("v_lshrrev_b32 v6, 7, v6")
        a.I("v_cmp_eq_u32 vcc, 0, v6")
        a.I("s_cmp_eq_u64 vcc, 0")
        a.I("s_cbranch_scc1 L_master_ok")
        a.I(f"s_cmp_lt_u32 s62, {SPIN_MAX}")
        a.I("s_cbranch_scc1 L_master")
        a.label("L_master_ok")
        go(2)
        self.stamp(18)
        a.label("L_notmaster")

    def poll_go(self, label, vz, vt, level):
        a = self.a
        a.I("s_lshl_b32 s45, s2, 7")
        a.I(f"s_add_u32 s46, s45, {WS_ML + 64}")
        a.I(f"v_mov_b32 v{vz}, 0")
        a.I("s_mov_b32 s62, 0")
        a.I("s_mov_b64 exec, 1")
        a.label(label)
        a.I(f"buffer_load_dword v{vt}, v{vz}, s[40:43], s46 offen sc1")
        a.I("s_add_u32 s62, s62, 1")
        a.I("s_waitcnt vmcnt(0)")
        a.I(f"v_readfirstlane_b32 s45, v{vt}")
        a.I(f"s_sub_u32 s45, s45, {level}")
        a.I(f"s_cmp_le_u32 s45, {2-level}")
        a.I(f"s_cbranch_scc1 {label}_ok")
        a.I(f"s_cmp_lt_u32 s62, {SPIN_MAX}")
        a.I(f"s_cbranch_scc1 {label}")
        a.label(f"{label}_ok")
        a.I("s_mov_b64 exec, -1")

    def stream(self):
        a = self.a
        cfg = self.cfg
        a.label("L_stream")
        a.fence(2)
        self.roles_rest()
        if self.cfg.codepf:
            self.code_prefetch(10)
        a.I("s_waitcnt lgkmcnt(0)")
        self.stamp(0)
        self.srd(40, 30, WS_SIZE)
        if self.cfg.pretouch:
            self.pretouch()
        a.I("s_sub_u32 s44, s44, 4")
        a.I("s_lshl_b32 s45, s57, 5")
        a.I("s_add_u32 s45, s45, s58")
        a.I("s_mul_i32 s45, s45, 1572864")
        a.I("s_mul_i32 s46, s59, 786432")
        a.I("s_add_u32 s47, s45, s46")
        self.srd(32, 6, 786432, off=47)
        self.srd(36, 8, 786432, off=47)
        a.I("s_cmp_eq_u32 s44, 7")
        a.I("s_cbranch_scc0 L_noreset")
        self.resets()
        self.resets_arrive()
        a.label("L_noreset")
        a.fence(2)
        st.set_depth(cfg.D)

        def b0():
            a.I("s_barrier")
        S2 = dict(S); S2['b0_after'] = cfg.N1 - 1 if cfg.gate else -1
        S2['hook_before'] = {cfg.NB0: b0}
        issued = st.stream_prologue(a, cfg, S2)
        st.stream_main(a, cfg, S2, LDS, issued, self.stamp)
        a.I("s_add_u32 s44, s44, 4")
        a.I("s_branch L_post")

    def u_layout(self, n, per):
        a = self.a
        magic = {80: 52429, 40: 104858}[per]
        a.I(f"s_mov_b32 s47, {magic}")
        for jj in range(n):
            a.I(f"v_add_u32 v6, {64*jj}, v5")
            a.I("v_mul_u32_u24 v7, s47, v6")
            a.I(f"v_lshrrev_b32 v{20+jj}, 22, v7")
            a.I(f"v_mul_u32_u24 v7, {per}, v{20+jj}")
            a.I("v_sub_u32 v6, v6, v7")
            a.I(f"v_lshlrev_b32 v{25+jj}, 2, v6")

    def helper(self):
        a = self.a
        a.label("L_helper")
        a.I("s_setprio 3")
        a.I("s_lshl_b32 s45, s44, 2")
        a.I(f"s_add_u32 s45, s45, {L_HFLAG}")
        a.I("v_mov_b32 v6, s45")
        a.I("v_mov_b32 v7, 0")
        a.I("ds_write_b32 v6, v7")
        a.I(f"s_cmp_eq_u32 s{S_PRE}, 2")
        a.I("s_cbranch_scc0 L_h_notq")
        a.I("v_lshrrev_b32 v6, 3, v5")
        a.I("v_bfe_u32 v7, v5, 4, 1")
        a.I("v_lshlrev_b32 v7, 5, v7")
        a.I("v_and_b32 v8, 7, v5")
        a.I("v_lshlrev_b32 v8, 4, v8")
        a.I("v_xor_b32 v8, v8, v7")
        a.I("v_xor_b32 v9, 64, v8")
        a.I("v_mul_u32_u24 v6, 12288, v6")
        a.I("v_add_u32 v8, v8, v6")
        a.I("v_add_u32 v9, v9, v6")
        a.I(f"s_mul_i32 s46, s44, {80*12288}")
        a.I(f"s_mov_b32 s86, {8*12288}")
        a.I(f"s_mul_i32 s47, s{S_KH}, {320*12288}")
        a.I(f"s_lshl_b32 s45, s{S_BAND}, 7")
        a.I("s_add_u32 s85, s47, s45")
        self.u_layout(3, 40)
        a.I(f"s_mul_i32 s63, s{S_KH}, 640")
        a.I("s_mul_i32 s45, s44, 160")
        a.I("s_add_u32 s63, s63, s45")
        a.I("v_lshlrev_b32 v16, 2, v5")
        for jj in range(3):
            a.I(f"v_mul_u32_u24 v{40+jj}, 1280, v{20+jj}")
            a.I(f"v_add_u32 v{40+jj}, v{40+jj}, v{25+jj}")
        a.I("s_mul_i32 s48, s44, 1280")
        a.I("s_waitcnt lgkmcnt(0)")
        self.stamp(0)
        self.srd(36, 4, 5120)
        for jj in range(5):
            a.I(f"buffer_load_dword v{35+jj}, v16, s[36:39], s48 offen offset:{256*jj}")
        for jj in range(3):
            a.I(f"buffer_load_dword v{30+jj}, v{40+jj}, s[36:39], s63 offen")
        self.srd(32, 10, 320 * 12288, off=85)
        a.I("s_branch L_h_dma")
        a.label("L_h_notq")
        a.I(f"s_cmp_eq_u32 s{S_PRE}, 1")
        a.I("s_cbranch_scc1 L_modunit")
        a.I("s_waitcnt lgkmcnt(0)")
        self.stamp(0)
        self.srd(40, 30, WS_SIZE)
        a.I("s_barrier")
        self.master()
        a.I("s_branch L_h_go")
        a.label("L_modunit")
        a.fence(2)
        self.dma_voff128(7680, 8, 9, 6, 7)
        a.I(f"s_mul_i32 s46, s44, {160*7680}")
        a.I(f"s_lshl_b32 s85, s{S_BAND}, 7")
        self.u_layout(5, 80)
        a.I("s_mul_i32 s63, s44, 320")
        for jj in range(5):
            a.I(f"v_mul_u32_u24 v{40+jj}, 1280, v{20+jj}")
            a.I(f"v_add_u32 v{40+jj}, v{40+jj}, v{25+jj}")
        a.I("s_mul_i32 s47, s44, 20480")
        a.I(f"s_add_u32 s47, s47, {L_W}")
        a.I("s_waitcnt lgkmcnt(0)")
        self.stamp(0)
        self.srd(36, 22, 5120)
        for jj in range(5):
            a.I(f"buffer_load_dword v{30+jj}, v{40+jj}, s[36:39], s63 offen")
        self.srd(32, 24, 640 * 7680, off=85)
        self.dma_loop(32, 20, 8, 9, 47, 46, 8 * 7680, "L_mod_dma", cnt=85)
        self.stamp(3)
        self.srd(40, 30, WS_SIZE)
        a.I(f"s_mov_b32 s54, 0x{LOG2E:x}")
        a.I("s_mul_i32 s47, s44, 320")
        a.I(f"s_add_u32 s47, s47, {L_ACT}")
        for jj in range(5):
            a.I(f"v_mul_u32_u24 v{40+jj}, 1344, v{20+jj}")
            a.I(f"v_add3_u32 v{40+jj}, v{40+jj}, v{25+jj}, s47")
        a.I("s_waitcnt vmcnt(20)")
        for jj in range(5):
            lo, hi = 46, 47
            self.unpack(30 + jj, lo, hi)
            for r in (lo, hi):
                a.I(f"v_mul_f32 v48, s54, v{r}")
                a.I("v_exp_f32 v48, -v48")
                a.I("v_add_f32 v48, 1.0, v48")
                a.I("v_min_f32 v48, 0x7f7fffff, v48")
                a.I("v_rcp_f32 v49, v48")
                self.div_by(r, 48, 49, 50)
            a.I(f"v_cvt_pk_bf16_f32 v46, v46, v47")
            a.I(f"ds_write_b32 v{40+jj}, v46")
        self.tr_addr128(10, 6, 7)
        a.I("s_lshl_b32 s45, s44, 5")
        a.I("v_xor_b32 v10, s45, v10")
        a.I(f"v_add_u32 v10, {L_W}, v10")
        a.I(f"v_add_u32 v11, {10*4096}, v10")
        self.act_addr(14, 1344, 6)
        a.I("s_waitcnt vmcnt(0) lgkmcnt(0)")
        self.stamp(7)
        a.I("s_barrier")
        self.mfma_chain2(10, 10, 11, 4096, 512, 14, 64, 68)
        for k in range(4):
            a.I(f"v_add_f32 v{64+k}, v{64+k}, v{68+k}")
        a.I("v_cvt_pk_bf16_f32 v64, v64, v65")
        a.I("v_cvt_pk_bf16_f32 v65, v66, v67")
        self.canon([64, 65], 44)
        a.I("v_and_b32 v6, 3, v5")
        a.I("v_mul_u32_u24 v6, 7680, v6")
        a.I("v_lshrrev_b32 v7, 4, v5")
        a.I("v_lshl_add_u32 v6, v7, 3, v6")
        a.I(f"s_lshl_b32 s45, s{S_BAND}, 7")
        a.I("s_lshl_b32 s47, s44, 5")
        a.I("s_add_u32 s47, s47, s45")
        a.I(f"s_mov_b32 exec_lo, 0x{MASK_N4_LO:x}")
        a.I(f"s_mov_b32 exec_hi, 0x{MASK_N4_LO:x}")
        a.I("buffer_store_dwordx2 v[64:65], v6, s[40:43], s47 offen sc1")
        a.I("s_mov_b64 exec, -1")
        self.stamp(12)
        a.label("L_h_go")
        a.fence(2)
        a.I("s_cmp_lg_u32 s44, 0")
        a.I("s_cbranch_scc1 L_go_skip")
        self.poll_go("L_go1", 6, 7, 2)
        a.label("L_go_skip")
        if self.cfg.gate:
            a.I("s_barrier")
        a.I("s_branch L_h_q")
        a.label("L_h_dma")
        a.I("s_mul_i32 s47, s44, 10240")
        a.I(f"s_add_u32 s47, s47, {L_W}")
        for i in range(10):
            a.I("s_mov_b32 m0, s47")
            a.I("s_add_u32 s47, s47, 1024")
            a.I(f"buffer_load_dwordx4 v{9 if i & 1 else 8}, s[32:35], s46 offen nt lds")
            if i < 9:
                a.I("s_add_u32 s46, s46, s86")
        self.stamp(3)
        self.srd(40, 30, WS_SIZE)
        a.I("s_waitcnt vmcnt(13)")
        for jj in range(5):
            self.unpack(35 + jj, 40 + 2 * jj, 41 + 2 * jj)
        a.I("v_add_f32 v6, v40, v41")
        for k in range(42, 50):
            a.I(f"v_add_f32 v6, v6, v{k}")
        self.wave_sum_bcast(6, 46)
        a.I("v_mov_b32 v6, 0x3acccccd")
        a.I("v_mul_f32 v50, s46, v6")
        a.I("v_mov_b32 v7, 0")
        for k in range(40, 50):
            a.I(f"v_sub_f32 v51, v{k}, v50")
            a.I("v_fmac_f32 v7, v51, v51")
        self.wave_sum_bcast(7, 46)
        a.I("v_mul_f32 v52, s46, v6")
        self.ln_denom(52, 53)
        a.I("v_cvt_pk_bf16_f32 v50, v50, v50")
        a.I("v_lshlrev_b32 v50, 16, v50")
        a.I("s_lshl_b32 s45, s44, 3")
        a.I(f"s_add_u32 s45, s45, {L_LNST}")
        a.I("v_mov_b32 v6, s45")
        a.I("ds_write_b32 v6, v50")
        a.I("ds_write_b32 v6, v52 offset:4")
        a.I("s_waitcnt vmcnt(0) lgkmcnt(0)")
        self.stamp(7)
        a.I("s_barrier")
        a.I("s_waitcnt vmcnt(10)")
        for jj in range(3):
            a.I(f"v_min_u32 v6, 3, v{20+jj}")
            a.I(f"v_lshlrev_b32 v6, 3, v6")
            a.I(f"ds_read_b64 v[56:57], v6 offset:{L_LNST}")
            lo, hi = 60 + 2 * jj, 61 + 2 * jj
            self.unpack(30 + jj, lo, hi)
            a.I("s_waitcnt lgkmcnt(0)")
            a.I(f"v_sub_f32 v{lo}, v{lo}, v56")
            a.I(f"v_sub_f32 v{hi}, v{hi}, v56")
            self.bf16_round([lo, hi], 58)
            a.I("v_rcp_f32 v58, v57")
            self.div_by(lo, 57, 58, 59)
            self.div_by(hi, 57, 58, 59)
            self.bf16_round([lo, hi], 58)
        for jj in range(3):
            a.I(f"v_min_u32 v6, 3, v{20+jj}")
            a.I(f"v_mul_u32_u24 v{40+jj}, 7680, v6")
            a.I(f"v_add_u32 v{40+jj}, v{40+jj}, v{25+jj}")
        a.I("s_mul_i32 s47, s44, 160")
        a.I(f"s_add_u32 s47, s47, {L_ACT}")
        for jj in range(3):
            a.I(f"v_mul_u32_u24 v{43+jj}, 704, v{20+jj}")
            a.I(f"v_add3_u32 v{43+jj}, v{43+jj}, v{25+jj}, s47")
        self.tr_addr128(10, 6, 7)
        a.I("s_lshl_b32 s45, s44, 5")
        a.I("v_xor_b32 v10, s45, v10")
        a.I(f"v_add_u32 v10, {L_W}, v10")
        self.act_addr(14, 704, 6)
        a.I(f"v_add_u32 v14, {L_ACT}, v14") if L_ACT else None
        self.stamp(16)
        self.poll_go("L_go2", 6, 7, 1)
        self.stamp(18)
        a.I(f"s_add_u32 s46, s63, {WS_MOD}")
        a.I(f"s_add_u32 s47, s63, {WS_MOD + 1280}")
        loads = [f"buffer_load_dword v{30+jj}, v{40+jj}, s[40:43], s46 offen sc1" for jj in range(3)] + \
                [f"buffer_load_dword v{35+jj}, v{40+jj}, s[40:43], s47 offen sc1" for jj in range(3)]
        self.poll(loads, [30, 31, 32, 35, 36, 37], "L_pmod", pre=6)
        self.stamp(14)
        for jj in range(3):
            lo, hi = 60 + 2 * jj, 61 + 2 * jj
            self.unpack(35 + jj, 46, 47)
            a.I("v_add_f32 v46, 1.0, v46")
            a.I("v_add_f32 v47, 1.0, v47")
            self.bf16_round([46, 47], 48)
            a.I(f"v_mul_f32 v{lo}, v{lo}, v46")
            a.I(f"v_mul_f32 v{hi}, v{hi}, v47")
            self.bf16_round([lo, hi], 48)
            self.unpack(30 + jj, 46, 47)
            a.I(f"v_add_f32 v{lo}, v{lo}, v46")
            a.I(f"v_add_f32 v{hi}, v{hi}, v47")
            a.I(f"v_cvt_pk_bf16_f32 v46, v{lo}, v{hi}")
            if jj == 2:
                a.I("s_mov_b32 exec_hi, 0")
            a.I(f"ds_write_b32 v{43+jj}, v46")
        a.I("s_mov_b64 exec, -1")
        if self.cfg.gate:
            a.I("s_waitcnt lgkmcnt(0)")
            a.I("s_barrier")
        else:
            self.hsync(2, "L_hs2", 6, 16)
        self.stamp(17)
        self.mfma_chain(10, 10, 4096, 512, 14, 64)
        self.canon([64, 65, 66, 67], 44)
        a.I("v_and_b32 v6, 3, v5")
        a.I("v_mul_u32_u24 v6, 24576, v6")
        a.I("v_lshrrev_b32 v7, 4, v5")
        a.I("v_lshl_add_u32 v6, v7, 4, v6")
        a.I(f"s_mul_i32 s45, s{S_KH}, {4*24576}")
        a.I(f"s_lshl_b32 s47, s{S_BAND}, 8")
        a.I("s_add_u32 s47, s47, s45")
        a.I("s_lshl_b32 s45, s44, 6")
        a.I("s_add_u32 s47, s47, s45")
        a.I(f"s_add_u32 s47, s47, {WS_Q}")
        a.I(f"s_mov_b32 exec_lo, 0x{MASK_N4_LO:x}")
        a.I(f"s_mov_b32 exec_hi, 0x{MASK_N4_LO:x}")
        a.I("buffer_store_dwordx4 v[64:67], v6, s[40:43], s47 offen sc1")
        a.I("s_mov_b64 exec, -1")
        self.stamp(12)
        a.label("L_h_q")
        a.fence(2)
        self.roles_rest()
        self.srd(40, 30, WS_SIZE)
        a.I("s_cmp_lg_u32 s44, 0")
        a.I("s_cbranch_scc1 L_hb1")
        self.poll_go("L_go3", 6, 7, 2)
        self.stamp(19)
        a.I("v_and_b32 v6, 31, v5")
        a.I("v_mul_u32_u24 v11, 12, v6")
        a.I("v_lshlrev_b32 v6, 1, v11")
        a.I("s_mul_i32 s45, s57, 24576")
        a.I("s_mul_i32 s46, s58, 768")
        a.I("s_add_u32 s46, s45, s46")
        a.I(f"s_add_u32 s46, s46, {WS_Q}")
        a.I(f"s_add_u32 s47, s46, {4*24576}")
        self.poll(["buffer_load_dwordx3 v[12:14], v6, s[40:43], s46 offen sc1",
                   "buffer_load_dwordx3 v[16:18], v6, s[40:43], s46 offen offset:12 sc1",
                   "buffer_load_dwordx3 v[20:22], v6, s[40:43], s47 offen sc1",
                   "buffer_load_dwordx3 v[24:26], v6, s[40:43], s47 offen offset:12 sc1"],
                  [12, 13, 14, 16, 17, 18, 20, 21, 22, 24, 25, 26], "L_pq", pre=7)
        for k in range(3):
            a.I(f"v_add_f32 v{12+k}, v{12+k}, v{20+k}")
            a.I(f"v_add_f32 v{16+k}, v{16+k}, v{24+k}")
        a.I("v_cvt_pk_bf16_f32 v8, v12, v13")
        a.I("v_cvt_pk_bf16_f32 v9, v14, v16")
        a.I("v_cvt_pk_bf16_f32 v10, v17, v18")
        a.I(f"ds_write_b32 v11, v8 offset:{L_QV}")
        a.I(f"ds_write_b32 v11, v9 offset:{L_QV+4}")
        a.I(f"ds_write_b32 v11, v10 offset:{L_QV+8}")
        a.I("s_waitcnt lgkmcnt(0)")
        a.label("L_hb1")
        self.stamp(1)
        a.I("s_barrier")
        self.stamp(2)
        if self.cfg.hop:
            a.I("s_cmp_eq_u32 s44, 0")
            a.I("s_cbranch_scc1 L_late_done")
            a.I("s_mov_b64 exec, 0")
            a.I("s_cmp_eq_u32 s44, 1")
            a.I("s_cbranch_scc1 L_hopA_0")
            a.I("s_cmp_eq_u32 s44, 2")
            a.I("s_cbranch_scc1 L_hopB_0")
            a.I("s_branch L_hopC_0")
            a.label("L_warm_ret")
            a.I("s_mov_b64 exec, -1")
            self.stamp(22)
        if self.cfg.pf == 2:
            a.label("L_late_pf")
            self.prefetch_weights()
        a.label("L_late_done")
        a.fence(2)
        a.I("s_barrier")
        self.stamp(4)
        a.I("s_cmp_lg_u32 s44, 0")
        a.I("s_cbranch_scc1 L_hb3")
        self.ml_exchange()
        a.label("L_hb3")
        self.stamp(5)
        a.I("s_barrier")
        self.stamp(6)
        if self.cfg.pf == 1:
            self.prefetch_weights()
        if self.cfg.early_w:
            a.I("s_cmp_eq_u32 s44, 0")
            a.I("s_cbranch_scc1 L_vw_done")
            self.roles_from_ticket("v")
            self.v_weights()
            a.label("L_vw_done")
            a.fence(2)
        a.I("s_barrier")
        self.stamp(8)

    def dma_loop(self, srd, n, vE, vO, lds_reg, soff_reg, step, label, cnt=63, window=0):
        a = self.a
        a.I(f"s_mov_b32 s{cnt}, {n // 2}")
        a.label(label)
        for v in (vE, vO):
            if window:
                a.I(f"s_waitcnt vmcnt({window - 1})")
            a.I(f"s_mov_b32 m0, s{lds_reg}")
            a.I(f"s_add_u32 s{lds_reg}, s{lds_reg}, 1024")
            a.I(f"buffer_load_dwordx4 v{v}, s[{srd}:{srd+3}], s{soff_reg} offen nt lds")
            a.I(f"s_add_u32 s{soff_reg}, s{soff_reg}, {step}")
        a.I(f"s_sub_u32 s{cnt}, s{cnt}, 1")
        a.I(f"s_cmp_lg_u32 s{cnt}, 0")
        a.I(f"s_cbranch_scc1 {label}")

    def mfma_chain2(self, nks, vA0, vA1, stepA, half_off, vB, d0, d1):
        a = self.a
        DEPTH = 2

        def issue(ks):
            b = 80 + 16 * (ks % DEPTH)
            a.I(f"ds_read_b64_tr_b16 v[{b}:{b+1}], v{vA0} offset:{stepA*ks}")
            a.I(f"ds_read_b64_tr_b16 v[{b+2}:{b+3}], v{vA0} offset:{stepA*ks + half_off}")
            a.I(f"ds_read_b128 v[{b+4}:{b+7}], v{vB} offset:{64*ks}")
            a.I(f"ds_read_b64_tr_b16 v[{b+8}:{b+9}], v{vA1} offset:{stepA*ks}")
            a.I(f"ds_read_b64_tr_b16 v[{b+10}:{b+11}], v{vA1} offset:{stepA*ks + half_off}")
            a.I(f"ds_read_b128 v[{b+12}:{b+15}], v{vB} offset:{64*(nks+ks)}")
        for ks in range(DEPTH):
            issue(ks)
        for ks in range(nks):
            left = min(nks - 1 - ks, DEPTH - 1)
            a.I(f"s_waitcnt lgkmcnt({6*left})")
            b = 80 + 16 * (ks % DEPTH)
            c0 = "0" if ks == 0 else f"v[{d0}:{d0+3}]"
            c1 = "0" if ks == 0 else f"v[{d1}:{d1+3}]"
            a.I(f"v_mfma_f32_16x16x32_bf16 v[{d0}:{d0+3}], v[{b}:{b+3}], v[{b+4}:{b+7}], {c0}")
            a.I(f"v_mfma_f32_16x16x32_bf16 v[{d1}:{d1+3}], v[{b+8}:{b+11}], v[{b+12}:{b+15}], {c1}")
            if ks + DEPTH < nks:
                issue(ks + DEPTH)

    def mfma_chain(self, nks, vA, stepA, half_off, vB, dreg):
        a = self.a
        DEPTH = 4

        def issue(ks):
            b = 80 + 8 * (ks % DEPTH)
            a.I(f"ds_read_b64_tr_b16 v[{b}:{b+1}], v{vA} offset:{stepA*ks}")
            a.I(f"ds_read_b64_tr_b16 v[{b+2}:{b+3}], v{vA} offset:{stepA*ks + half_off}")
            a.I(f"ds_read_b128 v[{b+4}:{b+7}], v{vB} offset:{64*ks}")
        for ks in range(min(DEPTH, nks)):
            issue(ks)
        for ks in range(nks):
            left = min(nks - 1 - ks, DEPTH - 1)
            a.I(f"s_waitcnt lgkmcnt({3*left})")
            b = 80 + 8 * (ks % DEPTH)
            c = "0" if ks == 0 else f"v[{dreg}:{dreg+3}]"
            a.I(f"v_mfma_f32_16x16x32_bf16 v[{dreg}:{dreg+3}], v[{b}:{b+3}], v[{b+4}:{b+7}], {c}")
            if ks + DEPTH < nks:
                issue(ks + DEPTH)

    def dma_band128(self, srd, rowstride, ninstr, vE, vO, lds_base_sreg, soff_reg, tag):
        a = self.a
        for i in range(ninstr):
            a.I(f"s_mov_b32 m0, s{lds_base_sreg}")
            v = vO if i & 1 else vE
            a.I(f"s_add_u32 s{lds_base_sreg}, s{lds_base_sreg}, 1024")
            a.I(f"buffer_load_dwordx4 v{v}, s[{srd}:{srd+3}], s{soff_reg} offen nt lds")
            if i + 1 < ninstr:
                a.I(f"s_add_u32 s{soff_reg}, s{soff_reg}, {8*rowstride}")

    def dma_voff128(self, rowstride, vE, vO, t0, t1):
        a = self.a
        a.I(f"v_lshrrev_b32 v{t0}, 3, v5")
        a.I(f"v_bfe_u32 v{t1}, v5, 4, 1")
        a.I(f"v_lshlrev_b32 v{t1}, 5, v{t1}")
        a.I(f"v_and_b32 v{vE}, 7, v5")
        a.I(f"v_lshlrev_b32 v{vE}, 4, v{vE}")
        a.I(f"v_xor_b32 v{vE}, v{vE}, v{t1}")
        a.I(f"v_xor_b32 v{vO}, 64, v{vE}")
        a.I(f"s_mov_b32 s45, {rowstride}")
        a.I(f"v_mul_lo_u32 v{t0}, s45, v{t0}")
        a.I(f"v_add_u32 v{vE}, v{vE}, v{t0}")
        a.I(f"v_add_u32 v{vO}, v{vO}, v{t0}")

    def tr_addr128(self, vdst, t0, t1):
        a = self.a
        a.I(f"v_lshrrev_b32 v{t0}, 4, v5")
        a.I(f"v_bfe_u32 v{t1}, v5, 2, 2")
        a.I(f"v_lshl_add_u32 v{vdst}, v{t0}, 3, v{t1}")
        a.I(f"v_lshlrev_b32 v{vdst}, 7, v{vdst}")
        a.I(f"v_and_b32 v{t0}, 1, v{t0}")
        a.I(f"v_lshlrev_b32 v{t0}, 6, v{t0}")
        a.I(f"v_bfe_u32 v{t1}, v5, 3, 1")
        a.I(f"v_lshlrev_b32 v{t1}, 5, v{t1}")
        a.I(f"v_or3_b32 v{vdst}, v{vdst}, v{t0}, v{t1}")
        a.I(f"v_and_b32 v{t0}, 3, v5")
        a.I(f"v_lshl_add_u32 v{vdst}, v{t0}, 3, v{vdst}")

    def act_addr(self, vdst, stride, t0):
        a = self.a
        a.I(f"v_and_b32 v{t0}, 3, v5")
        a.I(f"v_mul_u32_u24 v{vdst}, {stride}, v{t0}")
        a.I(f"v_lshrrev_b32 v{t0}, 4, v5")
        a.I(f"v_lshl_add_u32 v{vdst}, v{t0}, 4, v{vdst}")

    def ml_exchange(self):
        a = self.a
        a.I("v_and_b32 v6, 7, v5")
        a.I("v_lshlrev_b32 v6, 3, v6")
        a.I(f"ds_read_b64 v[8:9], v6 offset:{L_STATS}")
        a.I(f"s_mov_b32 s54, 0x{LOG2E:x}")
        a.I("s_waitcnt lgkmcnt(0)")
        a.I("v_mov_b32 v10, v8")
        a.I("v_max_f32_dpp v10, v10, v10 quad_perm:[1,0,3,2] row_mask:0xf bank_mask:0xf")
        a.I("v_max_f32_dpp v10, v10, v10 quad_perm:[2,3,0,1] row_mask:0xf bank_mask:0xf")
        a.I("v_max_f32_dpp v10, v10, v10 row_half_mirror row_mask:0xf bank_mask:0xf")
        a.I("v_sub_f32 v11, v8, v10")
        a.I("v_mul_f32 v11, s54, v11")
        a.I("v_exp_f32 v11, v11")
        a.I("v_mul_f32 v11, v11, v9")
        a.I("v_add_f32_dpp v11, v11, v11 quad_perm:[1,0,3,2] row_mask:0xf bank_mask:0xf")
        a.I("v_add_f32_dpp v11, v11, v11 quad_perm:[2,3,0,1] row_mask:0xf bank_mask:0xf")
        a.I("v_add_f32_dpp v11, v11, v11 row_half_mirror row_mask:0xf bank_mask:0xf")
        self.canon([10, 11], 12)
        a.I("s_lshl_b32 s45, s2, 7")
        a.I(f"s_add_u32 s45, s45, {WS_ML}")
        a.I("v_mov_b32 v6, 0")
        a.I("s_mov_b64 exec, 1")
        a.I("buffer_store_dwordx2 v[10:11], v6, s[40:43], s45 offen sc1")
        if self.cfg.early_w:
            a.I("v_mov_b32 v7, 8")
            a.I("v_mov_b32 v18, 1")
            a.I("global_atomic_add v19, v7, v18, s[28:29] sc0 sc1")
        a.I("s_mov_b64 exec, -1")
        a.I("s_xor_b32 s46, s2, 32")
        a.I("s_lshl_b32 s46, s46, 7")
        a.I(f"s_add_u32 s46, s46, {WS_ML}")
        self.poll(["buffer_load_dwordx2 v[12:13], v6, s[40:43], s46 offen sc1"], [12, 13], "L_pml", pre=7)
        a.I("v_max_f32 v14, v10, v12")
        a.I("v_sub_f32 v15, v10, v14")
        a.I("v_sub_f32 v16, v12, v14")
        a.I("v_mul_f32 v15, s54, v15")
        a.I("v_mul_f32 v16, s54, v16")
        a.I("v_exp_f32 v15, v15")
        a.I("v_exp_f32 v16, v16")
        a.I("v_mul_f32 v15, v15, v11")
        a.I("v_mul_f32 v16, v16, v13")
        a.I("v_add_f32 v15, v15, v16")
        a.I("v_rcp_f32 v16, v15")
        a.I("v_fma_f32 v17, -v15, v16, 1.0")
        a.I("v_fma_f32 v16, v17, v16, v16")
        a.I(f"v_mov_b32 v6, {L_FIN}")
        a.I("ds_write_b32 v6, v14")
        a.I("ds_write_b32 v6, v16 offset:4")
        if self.cfg.early_w:
            a.I("s_mov_b64 exec, 1")
            a.I("ds_write_b32 v6, v19 offset:8")
            a.I("s_mov_b64 exec, -1")
        a.I("s_waitcnt lgkmcnt(0)")

    def post(self):
        a = self.a
        a.label("L_post")
        a.hops_begin("L_hopA", self.cfg.hop)
        a.fence(4)
        a.I("s_setprio 0")
        a.I("v_and_b32 v5, 63, v0")
        a.I("s_cmp_lg_u32 s44, 0")
        a.I("s_cbranch_scc1 L_o_done")
        a.I("v_lshlrev_b32 v6, 4, v5")
        a.I("s_mov_b32 exec_lo, -1"); a.I("s_mov_b32 exec_hi, 0xffff")
        for w in range(8):
            a.I(f"ds_read_b128 v[{8+4*w}:{11+4*w}], v6 offset:{L_OPART+768*w}")
        for w in range(1, 8):
            a.I(f"s_waitcnt lgkmcnt({7-w})")
            for k in range(4):
                a.I(f"v_add_f32 v{8+k}, v{8+k}, v{8+4*w+k}")
        self.canon([8, 9, 10, 11], 12)
        a.I("s_lshl_b32 s45, s57, 5")
        a.I("s_add_u32 s45, s45, s58")
        a.I("s_lshl_b32 s45, s45, 1")
        a.I("s_add_u32 s45, s45, s59")
        a.I("s_mul_i32 s45, s45, 768")
        a.I(f"s_add_u32 s45, s45, {WS_O}")
        a.I("buffer_store_dwordx4 v[8:11], v6, s[40:43], s45 offen sc1")
        a.I("s_mov_b64 exec, -1")
        a.label("L_o_done")
        a.fence(2)
        self.roles_from_ticket()
        a.I(f"s_cmp_eq_u32 s{S_POST}, 0")
        a.I("s_cbranch_scc1 L_tail")
        a.I("s_barrier")
        a.I(f"s_cmp_eq_u32 s{S_POST}, 1")
        a.I("s_cbranch_scc0 L_post23")
        self.post_wo()
        a.I("s_branch L_tail")
        a.hops_end("L_warm_ret")
        a.label("L_post23")
        a.hops_begin("L_hopB", self.cfg.hop)
        a.fence(2)
        self.post_gu()
        a.I(f"s_cmp_lt_u32 s{S_DT}, 40")
        a.I("s_cbranch_scc0 L_tail")
        a.hops_end("L_warm_ret")
        a.hops_begin("L_hopC", self.cfg.hop)
        self.post_final()
        a.hops_end("L_warm_ret")

    def red_lane_addr(self, vdst, t):
        a = self.a
        a.I(f"v_lshrrev_b32 v{vdst}, 4, v5")
        a.I(f"v_and_b32 v{t}, 3, v5")
        a.I(f"v_lshl_add_u32 v{vdst}, v{vdst}, 2, v{t}")
        a.I(f"v_lshlrev_b32 v{vdst}, 4, v{vdst}")

    def write_red(self, dreg, vaddr):
        a = self.a
        a.I("s_lshl_b32 s45, s44, 8")
        a.I(f"s_add_u32 s45, s45, {L_RED}")
        a.I(f"v_add_u32 v{vaddr}, s45, v{vaddr}")
        a.I(f"s_mov_b32 exec_lo, 0x{MASK_N4_LO:x}")
        a.I(f"s_mov_b32 exec_hi, 0x{MASK_N4_LO:x}")
        a.I(f"ds_write_b128 v{vaddr}, v[{dreg}:{dreg+3}]")
        a.I("s_mov_b64 exec, -1")
        a.I("s_waitcnt lgkmcnt(0)")
        a.I("s_barrier")

    def mfma_run(self, nks, vA, offA, stepA, half_off, vB, dreg, first_reg=40):
        a = self.a
        for ks in range(nks):
            b = first_reg + 8 * ks
            a.I(f"ds_read_b64_tr_b16 v[{b}:{b+1}], v{vA} offset:{offA + stepA*ks}")
            a.I(f"ds_read_b64_tr_b16 v[{b+2}:{b+3}], v{vA} offset:{offA + stepA*ks + half_off}")
            a.I(f"ds_read_b128 v[{b+4}:{b+7}], v{vB} offset:{64*ks}")
        for ks in range(nks):
            b = first_reg + 8 * ks
            a.I(f"s_waitcnt lgkmcnt({min(15, 3*(nks-1-ks))})")
            c = "0" if ks == 0 else f"v[{dreg}:{dreg+3}]"
            a.I(f"v_mfma_f32_16x16x32_bf16 v[{dreg}:{dreg+3}], v[{b}:{b+3}], v[{b+4}:{b+7}], {c}")

    def mfma_preread(self, n, vA, stepA, half_off, first):
        a = self.a
        for ks in range(n):
            b = first + 4 * ks
            a.I(f"ds_read_b64_tr_b16 v[{b}:{b+1}], v{vA} offset:{stepA*ks}")
            a.I(f"ds_read_b64_tr_b16 v[{b+2}:{b+3}], v{vA} offset:{stepA*ks + half_off}")

    def mfma_with_b(self, n, firstA, vB, firstB, dreg):
        a = self.a
        for ks in range(n):
            b = firstB + 4 * ks
            a.I(f"ds_read_b128 v[{b}:{b+3}], v{vB} offset:{64*ks}")
        for ks in range(n):
            a.I(f"s_waitcnt lgkmcnt({n-1-ks})")
            c = "0" if ks == 0 else f"v[{dreg}:{dreg+3}]"
            a.I(f"v_mfma_f32_16x16x32_bf16 v[{dreg}:{dreg+3}], v[{firstA+4*ks}:{firstA+4*ks+3}], v[{firstB+4*ks}:{firstB+4*ks+3}], {c}")

    def post_wo(self):
        a = self.a
        if not self.cfg.early_w:
            a.I(f"s_mul_i32 s45, s{S_KG}, {768*1280}")
            a.I(f"s_lshl_b32 s46, s{S_NB}, 7")
            a.I("s_add_u32 s47, s45, s46")
            self.srd(32, 12, 768 * 1280, off=47)
            self.dma_voff128(1280, 8, 9, 6, 7)
            a.I(f"s_mul_i32 s46, s44, {64*1280}")
            a.I("s_lshl_b32 s47, s44, 13")
            a.I(f"s_add_u32 s47, s47, {L_W}")
            self.dma_loop(32, 8, 8, 9, 47, 46, 8 * 1280, "L_wo_dma")
        a.I("s_mul_i32 s45, s44, 21846")
        a.I("s_lshr_b32 s45, s45, 16")
        a.I("s_mul_i32 s46, s45, 3")
        a.I("s_sub_u32 s46, s44, s46")
        a.I("s_lshl_b32 s46, s46, 6")
        a.I("v_add_u32 v10, s46, v5")
        a.I("v_mul_u32_u24 v11, 1366, v10")
        a.I("v_lshrrev_b32 v11, 16, v11")
        a.I("v_mul_u32_u24 v12, 48, v11")
        a.I("v_sub_u32 v12, v10, v12")
        a.I("v_mul_u32_u24 v11, 1536, v11")
        a.I("v_lshl_add_u32 v11, v12, 4, v11")
        a.I("s_lshl_b32 s63, s45, 5")
        a.I(f"s_lshl_b32 s46, s{S_KG}, 2")
        a.I("s_add_u32 s63, s63, s46")
        a.I("s_mul_i32 s63, s63, 1536")
        a.I(f"s_add_u32 s63, s63, {WS_O}")
        a.I("s_mul_i32 s46, s45, 1600")
        a.I(f"s_add_u32 s46, s46, {L_ACT}")
        a.I("v_lshl_add_u32 v13, v10, 3, s46")
        self.tr_addr128(14, 6, 7)
        a.I("s_and_b32 s45, s44, 3")
        a.I("s_lshl_b32 s45, s45, 5")
        a.I("v_xor_b32 v14, s45, v14")
        a.I("s_lshr_b32 s45, s44, 2")
        a.I("s_lshl_b32 s46, s45, 15")
        a.I(f"s_add_u32 s46, s46, {L_W}")
        a.I("v_add_u32 v14, s46, v14")
        self.act_addr(15, 1600, 6)
        a.I("s_lshl_b32 s46, s45, 9")
        a.I(f"s_add_u32 s46, s46, {L_ACT}")
        a.I("v_add_u32 v15, s46, v15")
        self.red_lane_addr(16, 6)
        a.I("v_and_b32 v17, 3, v5")
        a.I("v_mul_u32_u24 v17, 2560, v17")
        a.I("v_lshrrev_b32 v7, 2, v5")
        a.I("v_lshl_add_u32 v17, v7, 4, v17")
        a.I("s_waitcnt vmcnt(0)")
        a.I("s_barrier")
        self.stamp(9)
        self.mfma_preread(8, 14, 4096, 512, 40)
        self.poll(["buffer_load_dwordx4 v[20:23], v11, s[40:43], s63 offen sc1",
                   "buffer_load_dwordx4 v[24:27], v11, s[40:43], s63 offen offset:768 sc1"],
                  list(range(20, 28)), "L_po", pre=6)
        self.stamp(10)
        for k in range(4):
            a.I(f"v_add_f32 v{20+k}, v{20+k}, v{24+k}")
        a.I("v_cvt_pk_bf16_f32 v20, v20, v21")
        a.I("v_cvt_pk_bf16_f32 v21, v22, v23")
        a.I("ds_write_b64 v13, v[20:21]")
        a.I("s_waitcnt lgkmcnt(0)")
        a.I("s_barrier")
        self.mfma_with_b(8, 40, 15, 72, 20)
        self.write_red(20, 16)
        a.I("s_cmp_lg_u32 s44, 0")
        a.I("s_cbranch_scc1 L_wo_done")
        a.I("v_lshlrev_b32 v6, 4, v5")
        for kt in range(3):
            a.I(f"ds_read_b128 v[{20+4*kt}:{23+4*kt}], v6 offset:{L_RED + 1024*kt}")
        a.I(f"s_mul_i32 s45, s{S_KG}, 10240")
        a.I(f"s_lshl_b32 s46, s{S_NB}, 8")
        a.I("s_add_u32 s45, s45, s46")
        a.I(f"s_add_u32 s45, s45, {WS_Y}")
        a.I("s_waitcnt lgkmcnt(0)")
        for k in range(4):
            a.I(f"v_add_f32 v{20+k}, v{20+k}, v{24+k}")
        for k in range(4):
            a.I(f"v_add_f32 v{20+k}, v{20+k}, v{28+k}")
        self.canon([20, 21, 22, 23], 12)
        a.I("buffer_store_dwordx4 v[20:23], v17, s[40:43], s45 offen sc1")
        a.label("L_wo_done")
        self.stamp(11)

    def dma_band64(self, srd, rowstride, ninstr, v, lds_reg, soff_reg):
        a = self.a
        for i in range(ninstr):
            a.I(f"s_mov_b32 m0, s{lds_reg}")
            a.I(f"s_add_u32 s{lds_reg}, s{lds_reg}, 1024")
            a.I(f"buffer_load_dwordx4 v{v}, s[{srd}:{srd+3}], s{soff_reg} offen nt lds")
            if i + 1 < ninstr:
                a.I(f"s_add_u32 s{soff_reg}, s{soff_reg}, {16*rowstride}")

    def dma_voff64(self, rowstride, v, t0, t1):
        a = self.a
        a.I(f"v_lshrrev_b32 v{t0}, 2, v5")
        a.I(f"v_bfe_u32 v{t1}, v5, 5, 1")
        a.I(f"v_lshlrev_b32 v{t1}, 5, v{t1}")
        a.I(f"v_and_b32 v{v}, 3, v5")
        a.I(f"v_lshlrev_b32 v{v}, 4, v{v}")
        a.I(f"v_xor_b32 v{v}, v{v}, v{t1}")
        a.I(f"v_mul_u32_u24 v{t0}, {rowstride}, v{t0}")
        a.I(f"v_add_u32 v{v}, v{v}, v{t0}")

    def tr_addr64(self, vdst, t0, t1):
        a = self.a
        a.I(f"v_lshrrev_b32 v{t0}, 4, v5")
        a.I(f"v_bfe_u32 v{t1}, v5, 2, 2")
        a.I(f"v_lshl_add_u32 v{vdst}, v{t0}, 3, v{t1}")
        a.I(f"v_lshlrev_b32 v{vdst}, 6, v{vdst}")
        a.I(f"v_and_b32 v{t0}, 1, v{t0}")
        a.I(f"v_lshl_or_b32 v{vdst}, v{t0}, 5, v{vdst}")
        a.I(f"v_and_b32 v{t0}, 3, v5")
        a.I(f"v_lshl_add_u32 v{vdst}, v{t0}, 3, v{vdst}")

    def x1_from_y(self, vy_addr_soff, yregs, ga, xr, out, t):
        a = self.a
        for k in range(4):
            a.I(f"v_add_f32 v{out+k}, v{yregs+k}, v{yregs+4+k}")
        for w in range(2, 8):
            for k in range(4):
                a.I(f"v_add_f32 v{out+k}, v{out+k}, v{yregs+4*w+k}")
        o = [out + k for k in range(4)]
        self.bf16_round(o, t)
        for p in range(2):
            self.unpack(ga + p, t + 1, t + 2)
            a.I(f"v_mul_f32 v{o[2*p]}, v{o[2*p]}, v{t+1}")
            a.I(f"v_mul_f32 v{o[2*p+1]}, v{o[2*p+1]}, v{t+2}")
        self.bf16_round(o, t)
        for p in range(2):
            self.unpack(xr + p, t + 1, t + 2)
            a.I(f"v_add_f32 v{o[2*p]}, v{o[2*p]}, v{t+1}")
            a.I(f"v_add_f32 v{o[2*p+1]}, v{o[2*p+1]}, v{t+2}")
        self.bf16_round(o, t)

    def post_gu(self):
        a = self.a
        a.I("s_mul_i32 s45, s44, 21846")
        a.I("s_lshr_b32 s87, s45, 16")
        a.I("s_mul_i32 s46, s87, 3")
        a.I("s_sub_u32 s88, s44, s46")
        a.I("s_mul_i32 s46, s88, 54")
        a.I("v_add_u32 v10, s46, v5")
        a.I("v_cmp_gt_u32 vcc, 54, v5")
        a.I("s_mov_b64 s[50:51], vcc")
        a.I("v_mov_b32 v6, 160")
        a.I("v_cmp_lt_u32 vcc, v10, v6")
        a.I("s_and_b64 s[50:51], s[50:51], vcc")
        a.I("v_min_u32 v10, 159, v10")
        a.I("v_lshlrev_b32 v11, 3, v10")
        a.I("s_mul_i32 s46, s87, 7680")
        a.I(f"s_add_u32 s46, s46, {WS_MOD}")
        self.srd(36, 4, 5120)
        a.I("s_mul_i32 s47, s87, 1280")
        a.I("buffer_load_dwordx2 v[18:19], v11, s[36:39], s47 offen")
        a.I("v_add_u32 v40, 2560, v11")
        a.I("v_add_u32 v41, 3840, v11")
        a.I("v_add_u32 v42, 5120, v11")
        a.I("s_mul_i32 s85, s87, 7680")
        a.I(f"s_add_u32 s85, s85, {WS_MOD}")
        a.I("v_lshlrev_b32 v32, 4, v10")
        a.I("s_mul_i32 s86, s87, 2560")
        a.I(f"s_add_u32 s86, s86, {WS_Y}")
        yloads = []
        for w in range(8):
            yloads.append((f"buffer_load_dwordx4 v[{48+4*w}:{51+4*w}], v{80+w if False else 140+w}, s[40:43], s86 offen sc1", [48+4*w+k for k in range(4)]))
            a.I(f"v_add_u32 v{140+w}, {10240*w}, v32")
        modloads = ["buffer_load_dwordx2 v[12:13], v40, s[40:43], s85 offen sc1",
                    "buffer_load_dwordx2 v[14:15], v41, s[40:43], s85 offen sc1",
                    "buffer_load_dwordx2 v[16:17], v42, s[40:43], s85 offen sc1"]
        for ld in modloads:
            a.I(ld)
        if not self.cfg.early_w:
            a.I("s_cmp_ge_u32 s44, 10")
            a.I("s_cbranch_scc1 L_gu_dn")
            a.I(f"s_lshl_b32 s47, s{S_NB}, 6")
            a.I("s_cmp_ge_u32 s44, 5")
            a.I("s_cselect_b32 s48, s18, s16")
            a.I("s_cselect_b32 s49, s19, s17")
            a.I("s_cselect_b32 s63, 5, 0")
            self.srd(32, 48, 640 * 3072, off=47)
            self.dma_voff64(3072, 8, 6, 7)
            a.I("s_sub_u32 s63, s44, s63")
            a.I(f"s_mul_i32 s46, s63, {128*3072}")
            a.I("s_lshl_b32 s47, s44, 13")
            a.I(f"s_add_u32 s47, s47, {L_W}")
            self.dma_loop(32, 8, 8, 8, 47, 46, 16 * 3072, "L_gu_dma")
            a.I("s_waitcnt vmcnt(8)")
            a.I("s_branch L_gu_dma_done")
            a.label("L_gu_dn")
            a.I(f"s_mul_i32 s45, s{S_NB}, 40960")
            self.srd(32, 20, 40960, off=45)
            a.I("v_lshlrev_b32 v8, 4, v5")
            a.I("s_sub_u32 s63, s44, 10")
            a.I("s_mul_i32 s46, s63, 20480")
            a.I(f"s_add_u32 s47, s46, {L_WD}")
            self.dma_loop(32, 20, 8, 8, 47, 46, 1024, "L_gu_dndma")
            a.I("s_waitcnt vmcnt(20)")
            a.label("L_gu_dma_done")
            a.fence(2)
        else:
            a.I("s_waitcnt vmcnt(0)")
        self.stamp(22)
        a.I("v_max3_u32 v6, v12, v13, v14")
        a.I("v_max3_u32 v6, v6, v15, v16")
        a.I("v_max_u32 v6, v6, v17")
        a.I("v_cmp_eq_u32 vcc, -1, v6")
        a.I("s_cmp_eq_u64 vcc, 0")
        a.I("s_cbranch_scc1 L_pm2_skip")
        self.poll(modloads, list(range(12, 18)), "L_pm2", pre=6)
        a.label("L_pm2_skip")
        self.stamp(23)
        self.unpack(16, 20, 21)
        self.unpack(17, 22, 23)
        for k in range(4):
            a.I(f"v_add_f32 v{20+k}, 1.0, v{20+k}")
        self.bf16_round([20, 21, 22, 23], 6)
        self.unpack(14, 24, 25)
        self.unpack(15, 26, 27)
        self.unpack(12, 84, 85)
        self.unpack(13, 86, 87)
        self.unpack(18, 88, 89)
        self.unpack(19, 90, 91)
        self.tr_addr64(28, 6, 7)
        a.I("s_and_b32 s45, s44, 1")
        a.I("s_lshl_b32 s45, s45, 5")
        a.I("v_xor_b32 v28, s45, v28")
        a.I("s_bfe_u32 s45, s44, 0x10001")
        a.I("s_mul_i32 s45, s45, 40960")
        a.I("s_lshr_b32 s46, s44, 2")
        a.I(f"s_mul_i32 s47, s46, {7*2048}")
        a.I("s_add_u32 s45, s45, s47")
        a.I(f"s_add_u32 s45, s45, {L_W}")
        a.I("v_add_u32 v28, s45, v28")
        self.act_addr(29, 1344, 6)
        a.I(f"s_mul_i32 s47, s46, {7*64}")
        a.I(f"s_add_u32 s47, s47, {L_ACT}")
        a.I("v_add_u32 v29, s47, v29")
        self.red_lane_addr(30, 6)
        a.I("s_mul_i32 s47, s87, 1344")
        a.I(f"s_add_u32 s47, s47, {L_ACT}")
        a.I("v_lshl_add_u32 v31, v10, 3, s47")
        a.I("s_mul_i32 s45, s87, 1280")
        a.I(f"s_add_u32 s45, s45, {L_OPART}")
        a.I("v_lshl_add_u32 v92, v10, 3, s45")
        a.I("s_cmp_eq_u32 s88, 2")
        a.I("s_mov_b32 s45, 0x3b9d89d9")
        a.I("s_cselect_b32 s45, s45, 0x3b97b426")
        a.I("v_mov_b32 v93, s45")
        a.I("s_lshl_b32 s45, s44, 3")
        a.I(f"s_add_u32 s45, s45, {L_LNST}")
        a.I("v_mov_b32 v94, s45")
        a.I("s_mul_i32 s45, s87, 24")
        a.I(f"s_add_u32 s45, s45, {L_LNST}")
        a.I("v_mov_b32 v95, s45")
        a.I("s_waitcnt vmcnt(0)")
        a.I("s_barrier")
        self.stamp(9)
        self.mfma_preread(7, 28, 2048, 256, 96)
        a.I("v_lshrrev_b32 v9, 4, v5")
        a.I("v_bfe_u32 v8, v5, 2, 2")
        a.I("v_lshl_add_u32 v9, v9, 3, v8")
        a.I("v_mul_u32_u24 v9, 1280, v9")
        a.I("v_and_b32 v8, 3, v5")
        a.I("v_lshl_add_u32 v9, v8, 3, v9")
        a.I("s_lshl_b32 s45, s44, 5")
        a.I(f"s_add_u32 s45, s45, {L_WD}")
        a.I("v_add_u32 v9, s45, v9")
        for t in range(4):
            b = 124 + 4 * t
            off = 384 * t
            a.I(f"ds_read_b64_tr_b16 v[{b}:{b+1}], v9 offset:{off}")
            a.I(f"ds_read_b64_tr_b16 v[{b+2}:{b+3}], v9 offset:{off + 4*1280}")
        if self.cfg.ygate:
            a.I("s_and_b32 s45, s44, 7")
            a.I("s_mul_i32 s45, s45, 10240")
            a.I("v_add_u32 v6, s45, v32")
            self.poll(["buffer_load_dwordx4 v[44:47], v6, s[40:43], s86 offen sc1"], [44, 45, 46, 47], "L_pyg", pre=7)
        self.poll_sel(yloads, "L_py", 6)
        self.stamp(10)
        for (o_, d, q) in ((48, 48, 52), (56, 56, 60), (64, 64, 68), (72, 72, 76), (48, 48, 56), (64, 64, 72), (40, 48, 64)):
            a.I(f"v_pk_add_f32 v[{o_}:{o_+1}], v[{d}:{d+1}], v[{q}:{q+1}]")
            a.I(f"v_pk_add_f32 v[{o_+2}:{o_+3}], v[{d+2}:{d+3}], v[{q+2}:{q+3}]")
        o = [40, 41, 42, 43]
        self.bf16_round(o, 6)
        a.I("v_pk_mul_f32 v[40:41], v[40:41], v[84:85]")
        a.I("v_pk_mul_f32 v[42:43], v[42:43], v[86:87]")
        self.bf16_round(o, 6)
        a.I("v_pk_add_f32 v[40:41], v[40:41], v[88:89]")
        a.I("v_pk_add_f32 v[42:43], v[42:43], v[90:91]")
        a.I("v_cvt_pk_bf16_f32 v36, v40, v41")
        a.I("v_cvt_pk_bf16_f32 v37, v42, v43")
        self.unpack(36, 32, 33)
        self.unpack(37, 34, 35)
        a.I("s_mov_b64 exec, s[50:51]")
        a.I("ds_write_b64 v92, v[36:37]")
        a.I("s_mov_b64 exec, -1")
        a.I("v_readfirstlane_b32 s46, v32")
        for k in range(4):
            a.I(f"v_subrev_f32 v{40+k}, s46, v{32+k}")
        a.I("v_add_f32 v36, v40, v41")
        a.I("v_mul_f32 v37, v40, v40")
        a.I("v_add_f32 v38, v42, v43")
        a.I("v_fmac_f32 v37, v41, v41")
        a.I("v_add_f32 v36, v36, v38")
        a.I("v_fmac_f32 v37, v42, v42")
        a.I("v_fmac_f32 v37, v43, v43")
        a.I("v_cndmask_b32 v36, 0, v36, s[50:51]")
        a.I("v_cndmask_b32 v37, 0, v37, s[50:51]")
        for r in (8, 4, 2, 1):
            for v in (36, 37):
                a.I(f"v_add_f32_dpp v{v}, v{v}, v{v} row_ror:{r} row_mask:0xf bank_mask:0xf")
        for m in ("row_bcast:15 row_mask:0xa", "row_bcast:31 row_mask:0xc"):
            for v in (36, 37):
                a.I(f"v_add_f32_dpp v{v}, v{v}, v{v} {m} bank_mask:0xf")
        a.I("v_readlane_b32 s47, v36, 63")
        a.I("v_readlane_b32 s45, v37, 63")
        a.I("v_mul_f32 v38, s47, v93")
        a.I("v_mov_b32 v39, s45")
        a.I("v_add_f32 v37, s46, v38")
        a.I("v_mul_f32 v38, s47, v38")
        a.I("v_sub_f32 v38, v39, v38")
        a.I("ds_write_b32 v94, v37")
        a.I("ds_write_b32 v94, v38 offset:4")
        a.I("s_waitcnt lgkmcnt(0)")
        a.I("s_barrier")
        a.I("ds_read_b64 v[40:41], v95")
        a.I("ds_read_b64 v[42:43], v95 offset:8")
        a.I("ds_read_b64 v[44:45], v95 offset:16")
        a.I("s_waitcnt lgkmcnt(0)")
        a.I("v_add_f32 v46, v40, v42")
        a.I("v_mul_f32 v46, 0x43580000, v46")
        a.I("v_mov_b32 v47, 0x43500000")
        a.I("v_fmac_f32 v46, v47, v44")
        a.I("v_mul_f32 v46, 0x3acccccd, v46")
        a.I("v_sub_f32 v40, v40, v46")
        a.I("v_sub_f32 v42, v42, v46")
        a.I("v_sub_f32 v44, v44, v46")
        a.I("v_mul_f32 v40, v40, v40")
        a.I("v_fmac_f32 v40, v42, v42")
        a.I("v_mul_f32 v40, 0x43580000, v40")
        a.I("v_mul_f32 v44, v44, v44")
        a.I("v_fmac_f32 v40, v47, v44")
        a.I("v_add_f32 v40, v40, v41")
        a.I("v_add_f32 v40, v40, v43")
        a.I("v_add_f32 v40, v40, v45")
        a.I("v_mul_f32 v40, 0x3acccccd, v40")
        self.ln_denom(40, 48)
        a.I("v_cvt_pk_bf16_f32 v46, v46, v46")
        a.I("v_lshlrev_b32 v46, 16, v46")
        a.I("v_rcp_f32 v41, v40")
        o = [32, 33, 34, 35]
        for r in o:
            a.I(f"v_sub_f32 v{r}, v{r}, v46")
        self.bf16_round(o, 6)
        for r in o:
            self.div_by(r, 40, 41, 7)
        self.bf16_round(o, 6)
        for k, r in enumerate(o):
            a.I(f"v_mul_f32 v{r}, v{r}, v{20+k}")
        self.bf16_round(o, 6)
        for k, r in enumerate(o):
            a.I(f"v_add_f32 v{r}, v{r}, v{24+k}")
        a.I("v_cvt_pk_bf16_f32 v32, v32, v33")
        a.I("v_cvt_pk_bf16_f32 v33, v34, v35")
        a.I("s_mov_b64 exec, s[50:51]")
        a.I("ds_write_b64 v31, v[32:33]")
        a.I("s_mov_b64 exec, -1")
        a.I("s_waitcnt lgkmcnt(0)")
        a.I("s_barrier")
        a.I("s_cmp_ge_u32 s44, 8")
        a.I("s_cbranch_scc1 L_gu_m6")
        self.mfma_with_b(7, 96, 29, 40, 20)
        a.I("s_branch L_gu_mdone")
        a.label("L_gu_m6")
        a.fence(2)
        self.mfma_with_b(6, 96, 29, 40, 20)
        a.label("L_gu_mdone")
        a.fence(8)
        self.write_red(20, 30)
        a.I("s_cmp_lg_u32 s44, 0")
        a.I("s_cbranch_scc1 L_gu_done")
        a.I("v_lshlrev_b32 v6, 4, v5")
        for kt in range(3):
            a.I(f"ds_read_b128 v[{20+4*kt}:{23+4*kt}], v6 offset:{L_RED + 1024*kt}")
        a.I("s_waitcnt lgkmcnt(0)")
        for k in range(4):
            a.I(f"v_add_f32 v{20+k}, v{20+k}, v{24+k}")
        for k in range(4):
            a.I(f"v_add_f32 v{20+k}, v{20+k}, v{28+k}")
        self.bf16_round([20, 21, 22, 23], 6)
        for k in range(4):
            a.I(f"v_mov_b32 v{24+k}, v{20+k}")
        for k in range(4):
            a.I(f"v_permlane32_swap_b32 v{20+k}, v{24+k}")
        for k in range(4):
            a.I(f"v_mul_f32 v{20+k}, v{20+k}, v{24+k}")
        a.I("v_cvt_pk_bf16_f32 v20, v20, v21")
        a.I("v_cvt_pk_bf16_f32 v21, v22, v23")
        a.I("v_and_b32 v6, 3, v5")
        a.I("v_lshlrev_b32 v6, 6, v6")
        a.I("v_bfe_u32 v7, v5, 2, 3")
        a.I("v_lshl_add_u32 v6, v7, 3, v6")
        a.I("s_mov_b32 exec_lo, -1"); a.I("s_mov_b32 exec_hi, 0")
        a.I(f"ds_write_b64 v6, v[20:21] offset:{L_QV}")
        a.I("s_mov_b64 exec, -1")
        a.I("s_waitcnt lgkmcnt(0)")
        a.label("L_gu_done")
        a.I("s_barrier")
        a.I("v_and_b32 v6, 3, v5")
        a.I("v_lshlrev_b32 v6, 6, v6")
        a.I("v_lshrrev_b32 v7, 4, v5")
        a.I("v_lshl_add_u32 v6, v7, 4, v6")
        a.I(f"ds_read_b128 v[40:43], v6 offset:{L_QV}")
        a.I("v_and_b32 v6, 3, v5")
        a.I("v_lshlrev_b32 v6, 6, v6")
        a.I("v_lshl_add_u32 v6, v7, 4, v6")
        a.I("s_mul_i32 s45, s44, 12288")
        a.I(f"s_lshl_b32 s46, s{S_NB}, 8")
        a.I("s_add_u32 s45, s45, s46")
        a.I(f"s_add_u32 s45, s45, {WS_PD}")
        a.I("s_waitcnt lgkmcnt(0)")
        for t in range(4):
            a.I(f"v_mfma_f32_16x16x32_bf16 v[{44+4*t}:{47+4*t}], v[{124+4*t}:{127+4*t}], v[40:43], 0")
        a.I(f"s_mov_b32 exec_lo, 0x{MASK_N4_LO:x}")
        a.I(f"s_mov_b32 exec_hi, 0x{MASK_N4_LO:x}")
        for t in range(4):
            if t == 3:
                a.I("s_cmp_ge_u32 s44, 4")
                a.I("s_cbranch_scc1 L_gu_st_done")
            self.canon([44+4*t+k for k in range(4)], 12)
            a.I(f"buffer_store_dwordx4 v[{44+4*t}:{47+4*t}], v6, s[40:43], s45 offen sc1")
            if t < 3:
                a.I(f"s_add_u32 s45, s45, {12*12288}")
        a.label("L_gu_st_done")
        a.I("s_mov_b64 exec, -1")
        self.stamp(11)

    def post_final(self):
        a = self.a
        a.fence(2)
        a.I("v_lshlrev_b32 v10, 4, v5")
        a.I(f"s_mul_i32 s47, s{S_DT}, 12288")
        a.I("s_lshl_b32 s45, s44, 10")
        a.I("s_add_u32 s47, s47, s45")
        a.I(f"s_add_u32 s47, s47, {WS_PD}")
        a.I("v_bfe_u32 v12, v5, 2, 2")
        a.I("v_and_b32 v13, 3, v5")
        a.I("v_mul_u32_u24 v14, 7680, v12")
        a.I("v_lshl_add_u32 v14, v13, 3, v14")
        a.I(f"s_lshl_b32 s45, s{S_DT}, 5")
        a.I(f"s_add_u32 s46, s45, {WS_MOD + 6400}")
        a.I("v_mul_u32_u24 v31, 1280, v12")
        a.I("v_lshl_add_u32 v31, v13, 3, v31")
        a.I(f"s_add_u32 s45, s45, {L_OPART}")
        a.I("v_add_u32 v31, s45, v31")
        a.I("v_and_b32 v30, 15, v5")
        a.I("v_lshlrev_b32 v30, 4, v30")
        a.I("s_lshl_b32 s45, s44, 8")
        a.I(f"s_add_u32 s45, s45, {L_RED}")
        a.I("v_add_u32 v29, s45, v30")
        self.stamp(19)
        self.poll(["buffer_load_dwordx4 v[40:43], v10, s[40:43], s47 offen sc1",
                   "buffer_load_dwordx2 v[22:23], v14, s[40:43], s46 offen sc1"], [40, 41, 42, 43, 22, 23], "L_ph", pre=6)
        self.stamp(20)
        for sw in ("v_permlane32_swap_b32", "v_permlane16_swap_b32"):
            for k in range(4):
                a.I(f"v_mov_b32 v{44+k}, v{40+k}")
            for k in range(4):
                a.I(f"{sw} v{40+k}, v{44+k}")
            for k in range(4):
                a.I(f"v_add_f32 v{40+k}, v{40+k}, v{44+k}")
        a.I("s_mov_b32 exec_lo, 0xffff"); a.I("s_mov_b32 exec_hi, 0")
        a.I("ds_write_b128 v29, v[40:43]")
        a.I("s_mov_b64 exec, -1")
        a.I("s_waitcnt lgkmcnt(0)")
        a.I("s_barrier")
        a.I("s_cmp_lg_u32 s44, 0")
        a.I("s_cbranch_scc1 L_dn_done")
        a.I("v_lshrrev_b32 v6, 4, v5")
        a.I("v_mul_u32_u24 v6, 768, v6")
        a.I("v_add_u32 v6, v6, v30")
        for k in range(3):
            a.I(f"ds_read_b128 v[{40+4*k}:{43+4*k}], v6 offset:{L_RED + 256*k}")
        a.I("ds_read_b64 v[32:33], v31")
        self.srd(36, 26, 5120)
        a.I("s_waitcnt lgkmcnt(0)")
        for k in range(4):
            a.I(f"v_add_f32 v{40+k}, v{40+k}, v{44+k}")
        for k in range(4):
            a.I(f"v_add_f32 v{40+k}, v{40+k}, v{48+k}")
        for sw in ("v_permlane32_swap_b32", "v_permlane16_swap_b32"):
            for k in range(4):
                a.I(f"v_mov_b32 v{44+k}, v{40+k}")
            for k in range(4):
                a.I(f"{sw} v{40+k}, v{44+k}")
            for k in range(4):
                a.I(f"v_add_f32 v{40+k}, v{40+k}, v{44+k}")
        o = [40, 41, 42, 43]
        self.bf16_round(o, 6)
        self.unpack(22, 24, 25)
        self.unpack(23, 26, 27)
        for k in range(4):
            a.I(f"v_mul_f32 v{40+k}, v{40+k}, v{24+k}")
        self.bf16_round(o, 6)
        self.unpack(32, 24, 25)
        self.unpack(33, 26, 27)
        for k in range(4):
            a.I(f"v_add_f32 v{40+k}, v{40+k}, v{24+k}")
        a.I("v_cvt_pk_bf16_f32 v40, v40, v41")
        a.I("v_cvt_pk_bf16_f32 v41, v42, v43")
        a.I("v_mul_u32_u24 v6, 1280, v12")
        a.I("v_lshl_add_u32 v6, v13, 3, v6")
        a.I(f"s_lshl_b32 s45, s{S_DT}, 5")
        a.I("s_mov_b32 exec_lo, 0xffff"); a.I("s_mov_b32 exec_hi, 0")
        a.I("buffer_store_dwordx2 v[40:41], v6, s[36:39], s45 offen")
        a.I("s_mov_b64 exec, -1")
        a.label("L_dn_done")
        self.stamp(21)

    def tail(self):
        a = self.a
        a.label("L_tail")
        if self.cfg.dbgt:
            a.fence(4)
            a.I("s_cmp_eq_u32 s44, 0")
            a.I("s_cbranch_scc0 L_end")
            self.stamp(13)
            a.I("s_mov_b64 exec, 1")
            a.I("s_not_b32 s98, s98")
            for i, r in enumerate((98, 77, 72, 66, 64 + 4, 64 + 6)):
                a.I(f"v_mov_b32 v6, {16 + 4*i}")
                a.I(f"v_mov_b32 v7, s{r}")
                a.I("global_atomic_umax v6, v7, s[28:29] sc1")
            a.I("s_branch L_end")
        if self.diag and not self.cfg.dbgt:
            a.fence(4)
            self.stamp(13)
            a.I(f"s_lshl_b32 s79, s{S_PRE}, 4")
            a.I(f"s_or_b32 s79, s79, s{S_POST}")
            a.I("s_mul_i32 s45, s2, 12")
            a.I("s_add_u32 s45, s45, s44")
            a.I("s_lshl_b32 s45, s45, 7")
            a.I(f"s_add_u32 s45, s45, {WS_DBG}")
            a.I("s_mov_b64 exec, 1")
            a.I("v_mov_b32 v6, 0")
            regs = [64 + k for k in range(16)] + [93 + k for k in range(8)]
            for q in range(6):
                for k in range(4):
                    a.I(f"v_mov_b32 v{8+k}, s{regs[4*q+k]}")
                a.I(f"buffer_store_dwordx4 v[8:11], v6, s[40:43], s45 offen offset:{16*q}")
                a.I("s_nop 1")
        a.label("L_end")
        a.I("s_endpgm")
        a.raw(f""".section .rodata,"a"
.p2align 6
.amdhsa_kernel {self.name}
  .amdhsa_next_free_vgpr 168
  .amdhsa_next_free_sgpr 102
  .amdhsa_accum_offset 168
  .amdhsa_group_segment_fixed_size 0
  .amdhsa_float_denorm_mode_32 3
  .amdhsa_kernarg_size 112
  .amdhsa_user_sgpr_count 2
  .amdhsa_user_sgpr_kernarg_segment_ptr 1
  .amdhsa_system_sgpr_workgroup_id_x 1
.end_amdhsa_kernel""")

    def build(self):
        self.entry()
        self.helper()
        self.a.I("s_branch L_post")
        self.stream()
        self.post()
        self.tail()
        return self.a.text()


def make(path, diag=False, name=KNAME, **kw):
    cfg = StreamCfg()
    for k, v in kw.items():
        setattr(cfg, k, v)
    g = Gen(cfg, diag=diag, name=name)
    txt = g.build()
    open(path, 'w').write(txt)
    return g


if __name__ == '__main__':
    out = sys.argv[1]
    kw = {}
    diag = False
    name = KNAME
    for kv in sys.argv[2:]:
        k, v = kv.split('=')
        if k == 'diag': diag = bool(int(v))
        elif k == 'name': name = v
        else: kw[k] = v.replace('_', ' ').replace('none', '') if k in ('nt', 'pfpol') else int(v)
    g = make(out, diag=diag, name=name, **kw)
    print(out, 'nops', g.a.nops)
```

```python
from asmdsl import Asm

LOG2E = 0x3fb8aa3b
SCALE = 0x3d93cd3a

R0 = 8
D = 38


def slot(i):
    return R0 + 4 * (i % D)


def hole(i):
    return R0 + 4 * i + 3


V_OFF = 1
V_Q = (2, 3, 4)
V_LANE = 5
V_T0, V_T1 = 6, 7
A_ = (hole(0), hole(1))
B_ = (hole(2), hole(3))
C_ = (hole(4), hole(5))
D_ = (hole(6), hole(7), hole(8), hole(9))
E_ = (hole(10), hole(11))
TT = (hole(12), hole(13))
V_PADDR = hole(14)
V_PW = hole(15)
V_X = [hole(16 + i) for i in range(6)]
SC = tuple(hole(22 + i) for i in range(4))
ACC = tuple(hole(26 + i) for i in range(6))
PG = (160, 164)
PTX = (hole(32), hole(33), hole(34), hole(35))
V_TK = hole(0)
PT = PTX


def set_depth(d):
    global D
    assert 36 <= d <= 38 or d == 32
    D = d


class StreamCfg:
    D = 38
    NB0 = 0
    W = 10
    W0 = 8
    late_skip = True
    WV = 64
    nt = 'nt'
    ntV = None
    ntW = 'nt'
    codepf = 0
    N1 = 4
    dbgt = 0
    pad = 0
    pf = 0
    pfpol = ''
    PW = 2
    ygate = 1
    early_w = 1
    WW = 3
    WX = 10
    DX = 64
    hop = 0
    TJ = 44
    pw_early = 0
    gate = 1
    pretouch = 0


def emit_issue(a, cfg, u, S):
    srd = S['srdK'] if u < 128 else S['srdV']
    if u == 128:
        a.I(f"s_mov_b32 s{S['soff']}, 0")
    s = slot(u)
    pol = cfg.nt if u < 128 else (cfg.ntV if cfg.ntV is not None else cfg.nt)
    a.vmem(f"buffer_load_dwordx3 v[{s}:{s+2}], v{V_OFF}, s[{srd}:{srd+3}], s{S['soff']} offen {pol}", ('ld', u))
    if u not in (127, 255):
        a.I(f"s_addk_i32 s{S['soff']}, 6144")


def stream_prologue(a, cfg, S):
    a.comment('stream prologue')
    a.I(f"v_and_b32 v{V_LANE}, 63, v0")
    a.I(f"s_mul_i32 s{S['tmp']}, s{S['wave']}, 768")
    a.I(f"v_mul_u32_u24 v{V_OFF}, 12, v{V_LANE}")
    a.I(f"v_add_u32 v{V_OFF}, s{S['tmp']}, v{V_OFF}")
    a.I(f"s_mov_b32 s{S['soff']}, 0")
    a.vm_reset()
    for u in range(D):
        if u in S.get('hook_before', {}):
            S['hook_before'][u]()
        if u >= cfg.W0:
            a.vm_window(cfg.W0 - 1)
        emit_issue(a, cfg, u, S)
        if u == S.get('b0_after', -1):
            a.I('s_barrier')
    return D


def k_tree(a, t, S):
    i = t % 32
    if i % 2 == 1:
        a.I(f"v_permlane16_swap_b32 v{A_[0]}, v{A_[1]}")
        a.I(f"v_add_f32 v{B_[(i >> 1) & 1]}, v{A_[0]}, v{A_[1]}")
    if i % 4 == 3:
        c = C_[(i >> 2) & 1]
        a.I(f"v_add_f32_dpp v{c}, v{B_[0]}, v{B_[0]} row_ror:8 row_mask:0xf bank_mask:0x3")
        a.I(f"v_add_f32_dpp v{c}, v{B_[1]}, v{B_[1]} row_ror:8 row_mask:0xf bank_mask:0xc")
    if i % 8 == 7:
        d = D_[i >> 3]
        a.I(f"v_add_f32_dpp v{d}, v{C_[0]}, v{C_[0]} row_half_mirror row_mask:0xf bank_mask:0x5")
        a.I(f"v_add_f32_dpp v{d}, v{C_[1]}, v{C_[1]} row_half_mirror row_mask:0xf bank_mask:0xa")
    if i % 16 == 15:
        k = i >> 4
        d0, d1 = D_[2 * k], D_[2 * k + 1]
        a.I(f"v_add_f32_dpp v{TT[0]}, v{d0}, v{d0} quad_perm:[1,0,3,2] row_mask:0xf bank_mask:0xf")
        a.I(f"v_add_f32_dpp v{TT[1]}, v{d1}, v{d1} quad_perm:[1,0,3,2] row_mask:0xf bank_mask:0xf")
        a.I(f"v_cndmask_b32 v{E_[k]}, v{TT[0]}, v{TT[1]}, s[{S['mask0']}:{S['mask0']+1}]")
    if i == 31:
        a.I(f"v_add_f32_dpp v{TT[0]}, v{E_[0]}, v{E_[0]} quad_perm:[2,3,0,1] row_mask:0xf bank_mask:0xf")
        a.I(f"v_add_f32_dpp v{TT[1]}, v{E_[1]}, v{E_[1]} quad_perm:[2,3,0,1] row_mask:0xf bank_mask:0xf")
        a.I(f"v_cndmask_b32 v{SC[t // 32]}, v{TT[0]}, v{TT[1]}, s[{S['mask1']}:{S['mask1']+1}]")


def wave_reduce(a, op, v, sdst):
    for r in (8, 4, 2, 1):
        a.I(f"{op}_dpp v{v}, v{v}, v{v} row_ror:{r} row_mask:0xf bank_mask:0xf")
    a.I(f"{op}_dpp v{v}, v{v}, v{v} row_bcast:15 row_mask:0xa bank_mask:0xf")
    a.I(f"{op}_dpp v{v}, v{v}, v{v} row_bcast:31 row_mask:0xc bank_mask:0xf")
    a.I(f"v_readlane_b32 s{sdst}, v{v}, 63")


def round_bf16_pairs(a, regs, tmp):
    a.I(f"v_cvt_pk_bf16_f32 v{tmp[0]}, v{regs[0]}, v{regs[1]}")
    a.I(f"v_cvt_pk_bf16_f32 v{tmp[1]}, v{regs[2]}, v{regs[3]}")
    a.I(f"v_lshlrev_b32 v{regs[0]}, 16, v{tmp[0]}")
    a.I(f"v_and_b32 v{regs[1]}, 0xffff0000, v{tmp[0]}")
    a.I(f"v_lshlrev_b32 v{regs[2]}, 16, v{tmp[1]}")
    a.I(f"v_and_b32 v{regs[3]}, 0xffff0000, v{tmp[1]}")


def stream_main(a, cfg, S, L, issued, stamp=None):
    stamp = stamp or (lambda k: None)
    a.I(f"s_mov_b32 s{S['mask0']}, 0xaaaaaaaa")
    a.I(f"s_mov_b32 s{S['mask0']+1}, 0xaaaaaaaa")
    a.I(f"s_mov_b32 s{S['mask1']}, 0xcccccccc")
    a.I(f"s_mov_b32 s{S['mask1']+1}, 0xcccccccc")
    a.I(f"s_mov_b32 s{S['sello']}, 0x05040100")
    a.I(f"s_mov_b32 s{S['selhi']}, 0x07060302")
    a.I(f"s_mov_b32 s{S['log2e']}, 0x{LOG2E:x}")
    a.I(f"v_and_b32 v{V_T0}, 31, v{V_LANE}")
    a.I(f"v_mul_u32_u24 v{V_T0}, 12, v{V_T0}")
    a.I(f"v_lshrrev_b32 v{V_T1}, 5, v{V_LANE}")
    a.I(f"v_lshlrev_b32 v{V_PADDR}, 8, v{V_T1}")
    a.I(f"s_lshl_b32 s{S['tmp']}, s{S['wave']}, 9")
    a.I(f"s_add_u32 s{S['tmp']}, s{S['tmp']}, {L['P']}")
    a.I(f"v_add_u32 v{V_PADDR}, s{S['tmp']}, v{V_PADDR}")
    x = V_X
    a.I(f"v_bfe_u32 v{x[0]}, v{V_LANE}, 4, 1")
    a.I(f"v_lshl_add_u32 v{V_PW}, v{x[0]}, 1, v{V_PADDR}")
    a.I(f"v_bfe_u32 v{x[0]}, v{V_LANE}, 3, 1")
    a.I(f"v_lshl_add_u32 v{V_PW}, v{x[0]}, 2, v{V_PW}")
    a.I(f"v_bfe_u32 v{x[0]}, v{V_LANE}, 2, 1")
    a.I(f"v_lshl_add_u32 v{V_PW}, v{x[0]}, 3, v{V_PW}")
    a.I(f"v_bfe_u32 v{x[0]}, v{V_LANE}, 0, 1")
    a.I(f"v_lshl_add_u32 v{V_PW}, v{x[0]}, 4, v{V_PW}")
    a.I(f"v_bfe_u32 v{x[0]}, v{V_LANE}, 1, 1")
    a.I(f"v_lshl_add_u32 v{V_PW}, v{x[0]}, 5, v{V_PW}")
    for k in range(6):
        a.I(f"v_mov_b32 v{ACC[k]}, 0")
    stamp(1)
    a.I('s_barrier')
    stamp(2)
    a.I(f"ds_read_b32 v{V_Q[0]}, v{V_T0} offset:{L['QV']}")
    a.I(f"ds_read_b32 v{V_Q[1]}, v{V_T0} offset:{L['QV']+4}")
    a.I(f"ds_read_b32 v{V_Q[2]}, v{V_T0} offset:{L['QV']+8}")
    a.I('s_waitcnt lgkmcnt(0)')

    W = cfg.W
    pend = None
    for t in range(128):
        s = slot(t)
        a.vm_wait(('ld', t))
        leaf = A_[t & 1]
        a.I(f"v_dot2_f32_bf16 v{leaf}, v{s}, v{V_Q[0]}, 0")
        a.I(f"v_dot2c_f32_bf16 v{leaf}, v{s+1}, v{V_Q[1]}") if False else a.I(f"v_dot2_f32_bf16 v{leaf}, v{s+1}, v{V_Q[1]}, v{leaf}")
        a.I(f"v_dot2_f32_bf16 v{leaf}, v{s+2}, v{V_Q[2]}, v{leaf}")
        if cfg.late_skip:
            target = min(t + D, 127 + W)
        else:
            target = max(D - 1, t + W)
        while issued <= target:
            emit_issue(a, cfg, issued, S)
            issued += 1
        k_tree(a, t, S)
        for _ in range(cfg.pad):
            a.I("s_mov_b32 s63, 0x12345")
    stamp(3)
    sc = list(SC)
    round_bf16_pairs(a, sc, (V_T0, V_T1))
    a.I(f"s_mov_b32 s{S['tmp']}, 0x{SCALE:x}")
    for r in sc:
        a.I(f"v_mul_f32 v{r}, s{S['tmp']}, v{r}")
    round_bf16_pairs(a, sc, (V_T0, V_T1))
    a.I(f"v_max_f32 v{V_T0}, v{sc[0]}, v{sc[1]}")
    a.I(f"v_max3_f32 v{V_T0}, v{V_T0}, v{sc[2]}, v{sc[3]}")
    wave_reduce(a, 'v_max_f32', V_T0, S['m'])
    for k, r in enumerate(sc):
        a.I(f"v_subrev_f32 v{x[k]}, s{S['m']}, v{r}")
    for k in range(4):
        a.I(f"v_mul_f32 v{x[k]}, s{S['log2e']}, v{x[k]}")
    for k in range(4):
        a.I(f"v_exp_f32 v{x[k]}, v{x[k]}")
    a.I(f"v_add_f32 v{V_T0}, v{x[0]}, v{x[1]}")
    a.I(f"v_add_f32 v{V_T1}, v{x[2]}, v{x[3]}")
    a.I(f"v_add_f32 v{V_T0}, v{V_T0}, v{V_T1}")
    wave_reduce(a, 'v_add_f32', V_T0, S['l'])
    a.I(f"s_lshl_b32 s{S['tmp']}, s{S['wave']}, 3")
    a.I(f"s_add_u32 s{S['tmp']}, s{S['tmp']}, {L['STATS']}")
    a.I(f"v_mov_b32 v{x[4]}, s{S['m']}")
    a.I(f"v_mov_b32 v{x[5]}, s{S['l']}")
    a.I(f"v_mov_b32 v{V_T0}, s{S['tmp']}")
    a.I(f"ds_write_b32 v{V_T0}, v{x[4]}")
    a.I(f"ds_write_b32 v{V_T0}, v{x[5]} offset:4")
    a.I('s_waitcnt lgkmcnt(0)')
    a.I('s_barrier')
    stamp(4)
    while issued <= 127 + min(D, cfg.DX):
        a.vm_window(cfg.WX - 1)
        emit_issue(a, cfg, issued, S)
        issued += 1
    stamp(5)
    a.I('s_barrier')
    stamp(6)
    a.I(f"v_mov_b32 v{V_T0}, {L['FIN']}")
    a.I(f"ds_read_b64 v[{PG[1]}:{PG[1]+1}], v{V_T0}")
    a.I('s_waitcnt lgkmcnt(0)')
    for k, r in enumerate(sc):
        a.I(f"v_sub_f32 v{x[k]}, v{r}, v{PG[1]}")
    for k in range(4):
        a.I(f"v_mul_f32 v{x[k]}, s{S['log2e']}, v{x[k]}")
    for k in range(4):
        a.I(f"v_exp_f32 v{x[k]}, v{x[k]}")
    for k in range(4):
        a.I(f"v_mul_f32 v{x[k]}, v{x[k]}, v{PG[1]+1}")
    a.I(f"v_cvt_pk_bf16_f32 v{x[4]}, v{x[0]}, v{x[1]}")
    a.I(f"v_cvt_pk_bf16_f32 v{x[5]}, v{x[2]}, v{x[3]}")
    a.I(f"ds_write_b16 v{V_PW}, v{x[4]}")
    a.I(f"ds_write_b16_d16_hi v{V_PW}, v{x[4]} offset:64")
    a.I(f"ds_write_b16 v{V_PW}, v{x[5]} offset:128")
    a.I(f"ds_write_b16_d16_hi v{V_PW}, v{x[5]} offset:192")
    a.I(f"ds_read_b128 v[{PG[0]}:{PG[0]+3}], v{V_PADDR}")
    a.I(f"ds_read_b128 v[{PG[1]}:{PG[1]+3}], v{V_PADDR} offset:16")

    for j in range(64):
        g = j // 4
        if j % 4 == 0:
            a.I('s_waitcnt lgkmcnt(1)' if g + 1 < 16 else 's_waitcnt lgkmcnt(0)')
        P = PG[g & 1] + (j % 4)
        t0, t1 = 128 + 2 * j, 128 + 2 * j + 1
        s0, s1 = slot(t0), slot(t1)
        a.vm_wait(('ld', t1))
        for k in range(3):
            tl, th = PT[(2 * k) % 4], PT[(2 * k + 1) % 4]
            a.I(f"v_perm_b32 v{tl}, v{s1+k}, v{s0+k}, s{S['sello']}")
            a.I(f"v_perm_b32 v{th}, v{s1+k}, v{s0+k}, s{S['selhi']}")
            a.I(f"v_dot2c_f32_bf16 v{ACC[2*k]}, v{tl}, v{P}")
            a.I(f"v_dot2c_f32_bf16 v{ACC[2*k+1]}, v{th}, v{P}")
        if j % 4 == 3 and g + 2 < 16:
            a.I(f"ds_read_b128 v[{PG[g & 1]}:{PG[g & 1]+3}], v{V_PADDR} offset:{16*(g+2)}")
        if j == cfg.TJ and not cfg.early_w:
            lab = a.newlabel('tk')
            a.I(f"v_mov_b32 v{V_T0}, 8")
            a.I(f"v_mov_b32 v{V_T1}, 1")
            a.I(f"s_cmp_eq_u32 s{S['wave']}, 0")
            a.I(f"s_cbranch_scc0 {lab}_ld")
            a.I("s_mov_b64 exec, 1")
            a.I(f"global_atomic_add v{V_TK}, v{V_T0}, v{V_T1}, s[28:29] sc0 sc1")
            a.I("s_mov_b64 exec, -1")
            a.I(f"s_branch {lab}_done")
            a.label(f"{lab}_ld")
            a.I(f"global_load_dword v{V_TK}, v{V_T0}, s[4:5]")
            a.label(f"{lab}_done")
            a.vm.append(('tk', 0))
        for _ in range(2 * cfg.pad):
            a.I("s_mov_b32 s63, 0x12345")
        target = min(255, t1 + min(cfg.WV, D))
        while issued <= target:
            emit_issue(a, cfg, issued, S)
            issued += 1
    stamp(7)
    for k in range(3):
        a.I(f"v_permlane32_swap_b32 v{ACC[k]}, v{ACC[k+3]}")
        a.I(f"v_add_f32 v{ACC[k]}, v{ACC[k]}, v{ACC[k+3]}")
    a.I(f"v_and_b32 v{V_T0}, 31, v{V_LANE}")
    a.I(f"v_mul_u32_u24 v{V_T0}, 24, v{V_T0}")
    a.I(f"v_lshrrev_b32 v{V_T1}, 5, v{V_LANE}")
    a.I(f"v_mad_u32_u24 v{V_T0}, v{V_T1}, 12, v{V_T0}")
    a.I(f"s_mul_i32 s{S['tmp']}, s{S['wave']}, 768")
    a.I(f"s_add_u32 s{S['tmp']}, s{S['tmp']}, {L['OPART']}")
    a.I(f"v_add_u32 v{V_T0}, s{S['tmp']}, v{V_T0}")
    for k in range(3):
        a.I(f"ds_write_b32 v{V_T0}, v{ACC[k]} offset:{4*k}")
    if not cfg.early_w:
        a.vm_wait(('tk', 0))
        a.I("s_waitcnt vmcnt(0)")
        lab = a.newlabel('tkw')
        a.I(f"s_cmp_eq_u32 s{S['wave']}, 0")
        a.I(f"s_cbranch_scc0 {lab}")
        a.I("s_mov_b64 exec, 1")
        a.I(f"v_mov_b32 v{V_T1}, {L['TICKET']}")
        a.I(f"ds_write_b32 v{V_T1}, v{V_TK}")
        a.I("s_mov_b64 exec, -1")
        a.label(lab)
    a.I('s_waitcnt lgkmcnt(0)')
    a.I('s_barrier')
    stamp(8)
```

```python
import sys
sys.path.insert(0, 'gen')
from asmdsl import Asm
import stream as st
from stream import StreamCfg, LOG2E

KNAME = 'adaLN_cond__gqa_block_cached__glu_gated_bilinear__decode_kernel'

WS_MOD, WS_Q, WS_ML, WS_O, WS_Y, WS_PD, WS_DBG = 0, 0x8000, 0x38000, 0x40000, 0x70000, 0x84000, 0x100000
WS_SIZE = 0x200000
L_ACT = 0x0000
L_RED = 0x3200
L_QV = 0x4200
L_STATS = 0x4400
L_FIN = 0x4480
L_HFLAG = 0x4500
L_LNST = 0x4540
L_P = 0x4600
L_OPART = 0x5600
L_W = 0x7000
L_WD = L_W + 81920
L_X1 = 0x6E00
LDS_BYTES = L_W + 81920 + 40960 + 512
LDS = dict(QV=L_QV, STATS=L_STATS, FIN=L_FIN, P=L_P, OPART=L_OPART, TICKET=L_FIN + 8)

SPIN_MAX = 1 << 16
NANF = 0x7fc00000
NANB = 0x7fc07fc0
EPS = 0x3727c5ac

S = dict(srdK=32, srdV=36, srdW=40, wave=44, tmp=45, soff=46, mask0=48, mask1=50, sello=52, selhi=53, log2e=54,
         m=55, l=56, b=57, h=58, half=59, spin=62)
S_PRE, S_BAND, S_POST, S_NB, S_KG = 80, 81, 82, 83, 84
S_KH, S_LATE, S_PHASE, S_DT = 89, 90, 91, 92
MASK_N4_LO = 0x000f000f


class Gen:
    def __init__(self, cfg, diag=False, name=KNAME):
        self.a = Asm()
        self.cfg = cfg
        self.diag = diag
        self.name = name

    def stamp(self, k):
        if not self.diag:
            return
        a = self.a
        a.I("s_memrealtime s[60:61]")
        a.I("s_waitcnt lgkmcnt(0)")
        a.I(f"s_mov_b32 s{64+k if k < 16 else 93+k-16}, s60")

    def srd(self, dst, ptr, size, off=None):
        a = self.a
        if off is None:
            a.I(f"s_mov_b32 s{dst}, s{ptr}")
            a.I(f"s_mov_b32 s{dst+1}, s{ptr+1}")
        else:
            a.I(f"s_add_u32 s{dst}, s{ptr}, s{off}")
            a.I(f"s_addc_u32 s{dst+1}, s{ptr+1}, 0")
        a.I(f"s_mov_b32 s{dst+2}, {size}")
        a.I(f"s_mov_b32 s{dst+3}, 0x20000")

    def canon(self, regs, nanreg=None):
        a = self.a
        for r in regs:
            a.I(f"v_min_u32 v{r}, -2, v{r}")

    def poll_sel(self, loads, label, t, first_issued=False):
        a = self.a
        n = len(loads)
        a.I(f"s_mov_b32 s63, {(1 << n) - 1}")
        a.I("s_mov_b32 s62, 0")
        if first_issued:
            a.I(f"s_branch {label}_chk")
        a.label(label)
        for i, (ld, regs) in enumerate(loads):
            a.I(f"s_bitcmp1_b32 s63, {i}")
            a.I(f"s_cbranch_scc0 {label}_s{i}")
            a.I(ld)
            a.label(f"{label}_s{i}")
        a.label(f"{label}_chk")
        a.I("s_add_u32 s62, s62, 1")
        a.I("s_waitcnt vmcnt(0)")
        for i, (ld, regs) in enumerate(loads):
            r = regs
            a.I(f"v_max3_u32 v{t}, v{r[0]}, v{r[1]}, v{r[2]}")
            a.I(f"v_max_u32 v{t}, v{t}, v{r[3]}")
            a.I(f"v_cmp_eq_u32 vcc, -1, v{t}")
            a.I("s_cmp_eq_u64 vcc, 0")
            a.I(f"s_cbranch_scc0 {label}_p{i}")
            a.I(f"s_bitset0_b32 s63, {i}")
            a.label(f"{label}_p{i}")
        a.I("s_cmp_eq_u32 s63, 0")
        a.I(f"s_cbranch_scc1 {label}_ok")
        a.I(f"s_cmp_lt_u32 s62, {SPIN_MAX}")
        a.I(f"s_cbranch_scc1 {label}")
        a.label(f"{label}_ok")

    def poll(self, loads, regs, label, pre=None):
        a = self.a
        a.I("s_mov_b32 s62, 0")
        a.label(label)
        for ld in loads:
            a.I(ld)
        a.I("s_add_u32 s62, s62, 1")
        a.I("s_waitcnt vmcnt(0)")
        rs = list(regs)
        t = pre
        first = True
        i = 0
        while i < len(rs):
            if first:
                if len(rs) >= 3:
                    a.I(f"v_max3_u32 v{t}, v{rs[0]}, v{rs[1]}, v{rs[2]}"); i = 3
                elif len(rs) == 2:
                    a.I(f"v_max_u32 v{t}, v{rs[0]}, v{rs[1]}"); i = 2
                else:
                    a.I(f"v_mov_b32 v{t}, v{rs[0]}"); i = 1
                first = False
            elif i + 1 < len(rs):
                a.I(f"v_max3_u32 v{t}, v{t}, v{rs[i]}, v{rs[i+1]}"); i += 2
            else:
                a.I(f"v_max_u32 v{t}, v{t}, v{rs[i]}"); i += 1
        a.I(f"v_cmp_eq_u32 vcc, -1, v{t}")
        a.I("s_cmp_eq_u64 vcc, 0")
        a.I(f"s_cbranch_scc1 {label}_ok")
        a.I(f"s_cmp_lt_u32 s62, {SPIN_MAX}")
        a.I(f"s_cbranch_scc1 {label}")
        a.label(f"{label}_ok")

    def poll_counter(self, off, expect, label, vz, vt):
        a = self.a
        a.I(f"v_mov_b32 v{vz}, {off}")
        a.I("s_mov_b32 s62, 0")
        a.I("s_mov_b64 exec, 1")
        a.label(label)
        a.I(f"global_load_dword v{vt}, v{vz}, s[28:29] sc1")
        a.I("s_add_u32 s62, s62, 1")
        a.I("s_waitcnt vmcnt(0)")
        a.I(f"v_readfirstlane_b32 s45, v{vt}")
        a.I(f"s_cmp_ge_u32 s45, {expect}")
        a.I(f"s_cbranch_scc1 {label}_ok")
        a.I(f"s_cmp_lt_u32 s62, {SPIN_MAX}")
        a.I(f"s_cbranch_scc1 {label}")
        a.label(f"{label}_ok")
        a.I("s_mov_b64 exec, -1")

    def hsync(self, k, label, vz, vt):
        a = self.a
        a.I("s_waitcnt lgkmcnt(0)")
        a.I("s_lshl_b32 s45, s44, 2")
        a.I(f"s_add_u32 s45, s45, {L_HFLAG}")
        a.I(f"v_mov_b32 v{vz}, s45")
        a.I(f"v_mov_b32 v{vt}, {k}")
        a.I(f"ds_write_b32 v{vz}, v{vt}")
        a.I(f"v_mov_b32 v{vz}, {L_HFLAG}")
        a.I("s_mov_b32 s62, 0")
        a.label(label)
        a.I(f"ds_read_b128 v[{vt}:{vt+3}], v{vz}")
        a.I("s_add_u32 s62, s62, 1")
        a.I("s_waitcnt lgkmcnt(0)")
        a.I(f"v_min3_u32 v{vt}, v{vt}, v{vt+1}, v{vt+2}")
        a.I(f"v_min_u32 v{vt}, v{vt}, v{vt+3}")
        a.I(f"v_readfirstlane_b32 s45, v{vt}")
        a.I(f"s_cmp_ge_u32 s45, {k}")
        a.I(f"s_cbranch_scc1 {label}_ok")
        a.I(f"s_cmp_lt_u32 s62, {SPIN_MAX*4}")
        a.I(f"s_cbranch_scc1 {label}")
        a.label(f"{label}_ok")

    def bf16_round(self, regs, tmp):
        a = self.a
        for i in range(0, len(regs), 2):
            a.I(f"v_cvt_pk_bf16_f32 v{tmp}, v{regs[i]}, v{regs[i+1]}")
            a.I(f"v_lshlrev_b32 v{regs[i]}, 16, v{tmp}")
            a.I(f"v_and_b32 v{regs[i+1]}, 0xffff0000, v{tmp}")

    def unpack(self, src, lo, hi):
        a = self.a
        a.I(f"v_lshlrev_b32 v{lo}, 16, v{src}")
        a.I(f"v_and_b32 v{hi}, 0xffff0000, v{src}")

    def wave_sum_bcast(self, v, sdst):
        st.wave_reduce(self.a, 'v_add_f32', v, sdst)

    def ln_denom(self, vvar, vt):
        a = self.a
        a.I(f"v_cvt_pk_bf16_f32 v{vt}, v{vvar}, v{vvar}")
        a.I(f"v_lshlrev_b32 v{vvar}, 16, v{vt}")
        a.I(f"v_add_f32 v{vvar}, 0x{EPS:x}, v{vvar}")
        a.I(f"v_cvt_pk_bf16_f32 v{vt}, v{vvar}, v{vvar}")
        a.I(f"v_lshlrev_b32 v{vvar}, 16, v{vt}")
        a.I(f"v_sqrt_f32 v{vt}, v{vvar}")
        a.I(f"v_rcp_f32 v{vt+1}, v{vt}")
        a.I(f"v_fma_f32 v{vt+2}, -v{vt}, v{vt}, v{vvar}")
        a.I(f"v_mul_f32 v{vt+1}, 0.5, v{vt+1}")
        a.I(f"v_fma_f32 v{vt}, v{vt+2}, v{vt+1}, v{vt}")
        a.I(f"v_cvt_pk_bf16_f32 v{vt}, v{vt}, v{vt}")
        a.I(f"v_lshlrev_b32 v{vvar}, 16, v{vt}")

    def div_by(self, num, den, rcp, t):
        a = self.a
        a.I(f"v_mul_f32 v{t}, v{num}, v{rcp}")
        a.I(f"v_fma_f32 v{num}, -v{t}, v{den}, v{num}")
        a.I(f"v_fma_f32 v{num}, v{num}, v{rcp}, v{t}")

    def entry(self):
        a = self.a
        a.raw(f"; @launch grid=(256,1,1) block=(768,1,1) lds={LDS_BYTES}")
        a.raw('.amdgcn_target "amdgcn-amd-amdhsa--gfx950"\n.text')
        a.raw(f".globl {self.name}\n.p2align 8\n.type {self.name},@function\n{self.name}:")
        a.I("s_cmp_ge_u32 s2, 256")
        a.I("s_cbranch_scc1 L_end")
        if self.cfg.dbgt:
            a.I("s_memrealtime s[98:99]")
        a.I("s_load_dwordx16 s[4:19], s[0:1], 0")
        a.I("s_load_dwordx8 s[20:27], s[0:1], 64")
        a.I("s_load_dwordx4 s[28:31], s[0:1], 96")
        a.I("v_lshrrev_b32 v1, 6, v0")
        a.I("v_and_b32 v5, 63, v0")
        a.I("v_readfirstlane_b32 s44, v1")
        a.I("s_lshr_b32 s45, s2, 1")
        a.I(f"s_mov_b32 s{S_PRE}, 2")
        a.I("s_bitcmp1_b32 s2, 0")
        a.I("s_cbranch_scc1 L_early_q")
        a.I(f"s_mov_b32 s{S_BAND}, s45")
        a.I("s_cmp_lt_u32 s45, 60")
        a.I(f"s_cselect_b32 s{S_PRE}, 1, 2")
        a.I("s_cbranch_scc1 L_early_done")
        a.I("s_cmp_lt_u32 s45, 124")
        a.I(f"s_cselect_b32 s{S_PRE}, 2, 0")
        a.I("s_add_u32 s45, s45, 68")
        a.label("L_early_q")
        a.I(f"s_lshr_b32 s{S_BAND}, s45, 1")
        a.I(f"s_and_b32 s{S_KH}, s45, 1")
        a.label("L_early_done")
        a.I("s_cmp_lt_u32 s44, 4")
        a.I("s_cbranch_scc0 L_stream")

    def pair_unit(self, sv, sdst):
        a = self.a
        a.I(f"s_and_b32 s46, s{sv}, 7")
        a.I(f"s_lshr_b32 s47, s{sv}, 4")
        a.I("s_lshl_b32 s47, s47, 3")
        a.I("s_add_u32 s46, s46, s47")
        a.I(f"s_bfe_u32 s47, s{sv}, 0x10003")
        a.I(f"s_lshl_b32 s{sdst}, s46, 1")
        a.I(f"s_add_u32 s{sdst}, s{sdst}, s47")

    def roles_rest(self):
        a = self.a
        a.I("s_and_b32 s45, s2, 7")
        a.I("s_lshr_b32 s46, s2, 3")
        a.I("s_and_b32 s47, s46, 3")
        a.I("s_lshl_b32 s47, s47, 3")
        a.I("s_add_u32 s58, s45, s47")
        a.I("s_lshr_b32 s46, s2, 5")
        a.I("s_lshr_b32 s57, s46, 1")
        a.I("s_and_b32 s59, s46, 1")
        a.I(f"s_mov_b32 s{S_POST}, 0")
        a.I("s_lshr_b32 s45, s2, 1")
        a.I("s_mul_i32 s46, s45, 6554")
        a.I("s_lshr_b32 s46, s46, 16")
        a.I(f"s_mov_b32 s{S_KG}, s46")
        a.I("s_mul_i32 s47, s46, 10")
        a.I(f"s_sub_u32 s{S_NB}, s45, s47")
        a.I("s_cmp_lt_u32 s45, 80")
        a.I(f"s_cselect_b32 s{S_POST}, 1, 0")
        lab = a.newlabel('roles_done')
        a.I("s_bitcmp1_b32 s2, 0")
        a.I(f"s_cbranch_scc0 {lab}")
        a.I(f"s_mov_b32 s{S_NB}, s45")
        a.I("s_cmp_lt_u32 s45, 48")
        a.I(f"s_cselect_b32 s{S_POST}, 2, 0")
        a.label(lab)

    def prefetch_weights(self):
        a = self.a
        pol = self.cfg.pfpol
        lab = a.newlabel('pf')
        a.I("s_cmp_eq_u32 s44, 0")
        a.I(f"s_cbranch_scc1 {lab}_done")
        a.I("v_lshlrev_b32 v8, 4, v5")
        a.I("s_cmp_eq_u32 s44, 3")
        a.I(f"s_cbranch_scc1 {lab}_small")
        a.I("s_mul_i32 s45, s2, 30720")
        self.srd(32, 12, 30720, off=45)
        a.I("s_sub_u32 s46, s44, 1")
        a.I("s_mul_i32 s46, s46, 15360")
        a.I("s_mov_b32 s63, 15")
        a.label(f"{lab}_l1")
        a.I(f"s_waitcnt vmcnt({self.cfg.PW - 1})")
        a.I(f"buffer_load_dwordx4 v[12:15], v8, s[32:35], s46 offen {pol}")
        a.I("s_add_u32 s46, s46, 1024")
        a.I("s_sub_u32 s63, s63, 1")
        a.I("s_cmp_lg_u32 s63, 0")
        a.I(f"s_cbranch_scc1 {lab}_l1")
        a.I(f"s_branch {lab}_done")
        a.label(f"{lab}_small")
        for i, p in enumerate((16, 18, 20)):
            a.I("s_mul_i32 s45, s2, 7680")
            self.srd(32, p, 7680, off=45)
            a.I("s_mov_b32 s46, 0")
            a.I("s_mov_b32 s63, 8")
            a.label(f"{lab}_s{i}")
            a.I(f"s_waitcnt vmcnt({self.cfg.PW - 1})")
            a.I(f"buffer_load_dwordx4 v[12:15], v8, s[32:35], s46 offen {pol}")
            a.I("s_add_u32 s46, s46, 1024")
            a.I("s_sub_u32 s63, s63, 1")
            a.I("s_cmp_lg_u32 s63, 0")
            a.I(f"s_cbranch_scc1 {lab}_s{i}")
        a.label(f"{lab}_done")
        a.fence(2)

    def v_weights(self):
        a = self.a
        WN = self.cfg.WW
        a.I(f"s_cmp_eq_u32 s{S_POST}, 1")
        a.I("s_cbranch_scc0 L_vw_gu")
        a.I(f"s_mul_i32 s45, s{S_KG}, {768*1280}")
        a.I(f"s_lshl_b32 s46, s{S_NB}, 7")
        a.I("s_add_u32 s47, s45, s46")
        self.srd(32, 12, 768 * 1280, off=47)
        self.dma_voff128(1280, 8, 9, 6, 7)
        a.I("s_sub_u32 s63, s44, 1")
        a.I(f"s_mul_i32 s46, s63, {256*1280}")
        a.I("s_lshl_b32 s47, s63, 15")
        a.I(f"s_add_u32 s47, s47, {L_W}")
        self.dma_loop(32, 32, 8, 9, 47, 46, 8 * 1280, "L_vw_wo_loop", window=WN + 1)
        a.I("s_branch L_vw_done")
        a.label("L_vw_gu")
        a.I(f"s_cmp_eq_u32 s{S_POST}, 2")
        a.I("s_cbranch_scc0 L_vw_done")
        a.I("s_cmp_eq_u32 s44, 3")
        a.I("s_cbranch_scc1 L_vw_dn")
        a.I(f"s_lshl_b32 s47, s{S_NB}, 6")
        a.I("s_cmp_eq_u32 s44, 2")
        a.I("s_cselect_b32 s48, s18, s16")
        a.I("s_cselect_b32 s49, s19, s17")
        self.srd(32, 48, 640 * 3072, off=47)
        self.dma_voff64(3072, 8, 6, 7)
        a.I("s_mov_b32 s46, 0")
        a.I("s_sub_u32 s47, s44, 1")
        a.I("s_mul_i32 s47, s47, 40960")
        a.I(f"s_add_u32 s47, s47, {L_W}")
        self.dma_loop(32, 40, 8, 8, 47, 46, 16 * 3072, "L_vw_gu_loop", window=WN)
        a.I("s_branch L_vw_done")
        a.label("L_vw_dn")
        a.I(f"s_mul_i32 s45, s{S_NB}, 40960")
        self.srd(32, 20, 40960, off=45)
        a.I("v_lshlrev_b32 v8, 4, v5")
        a.I("s_mov_b32 s46, 0")
        a.I(f"s_mov_b32 s47, {L_WD}")
        self.dma_loop(32, 40, 8, 8, 47, 46, 1024, "L_vw_dn_loop", window=WN)

    def roles_from_ticket(self, sfx=""):
        a = self.a
        a.I(f"v_mov_b32 v6, {L_FIN + 8}")
        a.I("ds_read_b32 v7, v6")
        a.I("s_waitcnt lgkmcnt(0)")
        a.I("v_readfirstlane_b32 s45, v7")
        a.I("s_cmp_lt_u32 s45, 40")
        a.I(f"s_cselect_b32 s{S_DT}, s45, -1")
        a.I(f"s_mov_b32 s{S_NB}, s45")
        a.I("s_cmp_lt_u32 s45, 48")
        a.I(f"s_cselect_b32 s{S_POST}, 2, 0")
        a.I(f"s_cbranch_scc1 L_ticket_done{sfx}")
        a.I("s_sub_u32 s45, s45, 48")
        a.I("s_cmp_lt_u32 s45, 80")
        a.I(f"s_cselect_b32 s{S_POST}, 1, 0")
        a.I("s_mul_i32 s46, s45, 6554")
        a.I("s_lshr_b32 s46, s46, 16")
        a.I(f"s_mov_b32 s{S_KG}, s46")
        a.I("s_mul_i32 s47, s46, 10")
        a.I(f"s_sub_u32 s{S_NB}, s45, s47")
        a.label(f"L_ticket_done{sfx}")

    def code_prefetch(self, wave):
        a = self.a
        a.I(f"s_cmp_eq_u32 s44, {wave}")
        a.I("s_cbranch_scc0 L_nopf")
        a.I("s_getpc_b64 s[46:47]")
        a.label("L_pc")
        a.I(f"s_sub_u32 s46, s46, (L_pc-{self.name})")
        a.I("s_subb_u32 s47, s47, 0")
        a.I("s_lshr_b32 s45, s2, 3")
        a.I("s_lshl_b32 s45, s45, 10")
        a.I("v_lshlrev_b32 v6, 4, v5")
        a.I("v_add_u32 v6, s45, v6")
        a.I("v_mov_b32 v7, 0")
        a.I("v_mov_b32 v9, s47")
        a.I("v_add_co_u32 v8, vcc, s46, v6")
        a.I("v_addc_co_u32 v9, vcc, v9, v7, vcc")
        a.I(f"s_mov_b32 s45, (L_end-{self.name}-12)")
        a.I("v_cmp_gt_u32 vcc, s45, v6")
        a.I("s_and_saveexec_b64 s[46:47], vcc")
        a.I("s_cbranch_execz L_pfskip")
        a.I("global_load_dwordx4 v[12:15], v[8:9], off")
        a.label("L_pfskip")
        a.I("s_mov_b64 exec, s[46:47]")
        a.label("L_nopf")

    def pretouch(self):
        a = self.a
        a.I("s_cmp_eq_u32 s44, 10")
        a.I("s_cbranch_scc0 L_nopt")
        a.I("v_lshlrev_b32 v6, 21, v5")
        bufs = [(24, 640*7680), (10, 640*12288), (30, WS_SIZE), (28, 256), (4, 5120), (22, 5120),
                (12, 6144*1280), (16, 640*3072), (18, 640*3072), (20, 1536*1280), (26, 5120)]
        if self.cfg.pretouch >= 2:
            pass
        for i, (p, size) in enumerate(bufs):
            self.srd(32, p, size)
            a.I(f"buffer_load_dword v{12+i}, v6, s[32:35], 0 offen")
        a.label("L_nopt")

    def resets(self):
        a = self.a
        a.I("v_mov_b32 v8, -1")
        a.I("v_mov_b32 v9, -1")
        a.I("v_mov_b32 v10, -1")
        a.I("v_mov_b32 v11, -1")
        a.I("v_lshlrev_b32 v6, 4, v5")
        a.I("s_lshl_b32 s45, s57, 5")
        a.I("s_add_u32 s45, s45, s58")
        a.I("s_lshl_b32 s45, s45, 1")
        a.I("s_add_u32 s45, s45, s59")
        a.I("s_mul_i32 s45, s45, 768")
        a.I(f"s_add_u32 s45, s45, {WS_O}")
        a.I("s_mov_b32 exec_lo, -1"); a.I("s_mov_b32 exec_hi, 0xffff")
        a.I("buffer_store_dwordx4 v[8:11], v6, s[40:43], s45 offen sc1")
        a.I("s_lshl_b32 s45, s2, 7")
        a.I(f"s_add_u32 s45, s45, {WS_ML}")
        a.I("s_mov_b64 exec, 0x11")
        a.I("buffer_store_dwordx4 v[8:11], v6, s[40:43], s45 offen sc1")
        a.I("s_mov_b64 exec, -1")
        a.I("v_lshrrev_b32 v7, 4, v5")
        a.I("v_and_b32 v12, 15, v5")
        a.I("v_lshlrev_b32 v12, 4, v12")

        def rows(cmp, rowbytes, base, bandbytes, band_reg, nchunk, lab, extra=None):
            a.I(cmp)
            a.I(f"s_cbranch_scc0 {lab}")
            a.I(f"v_mul_u32_u24 v13, {rowbytes}, v7")
            a.I("v_add_u32 v13, v13, v12")
            a.I(f"s_mul_i32 s45, s{band_reg}, {bandbytes}")
            if extra:
                a.I(f"s_mul_i32 s46, s{extra}, {4*rowbytes}")
                a.I("s_add_u32 s45, s45, s46")
            a.I(f"s_add_u32 s45, s45, {base}")
            m = (1 << nchunk) - 1
            m32 = m | (m << 16)
            a.I(f"s_mov_b32 exec_lo, 0x{m32:x}")
            a.I(f"s_mov_b32 exec_hi, 0x{m32:x}")
            a.I("buffer_store_dwordx4 v[8:11], v13, s[40:43], s45 offen sc1")
            a.I("s_mov_b64 exec, -1")
            a.label(lab)
        rows(f"s_cmp_eq_u32 s{S_PRE}, 2", 24576, WS_Q, 256, S_BAND, 16, 'L_rs2', extra=S_KH)
        rows(f"s_cmp_eq_u32 s{S_PRE}, 1", 7680, WS_MOD, 128, S_BAND, 8, 'L_rs1')
        rows(f"s_cmp_eq_u32 s{S_POST}, 1", 2560, WS_Y, 256, S_NB, 16, 'L_rs3', extra=S_KG)
        a.I(f"s_cmp_eq_u32 s{S_POST}, 2")
        a.I("s_cbranch_scc0 L_rs4")
        a.I("v_mul_u32_u24 v13, 12288, v7")
        a.I("v_add_u32 v13, v13, v12")
        a.I(f"s_lshl_b32 s45, s{S_NB}, 8")
        a.I(f"s_add_u32 s45, s45, {WS_PD}")
        for k in range(10):
            a.I("buffer_store_dwordx4 v[8:11], v13, s[40:43], s45 offen sc1")
            if k < 9:
                a.I(f"s_add_u32 s45, s45, {4*12288}")
        a.label("L_rs4")

    def resets_arrive(self):
        a = self.a
        a.I("s_waitcnt vmcnt(0)")
        self.stamp(16)
        a.I("s_mov_b64 exec, 1")
        a.I("v_mov_b32 v8, 1")
        a.I("s_and_b32 s45, s2, 1")
        a.I("s_lshl_b32 s45, s45, 7")
        a.I("v_mov_b32 v9, s45")
        a.I("global_atomic_add v9, v8, s[28:29] sc1")
        a.I(f"s_cmp_eq_u32 s{S_PRE}, 1")
        a.I("s_cbranch_scc0 L_noc1")
        a.I(f"s_cmp_lt_u32 s{S_BAND}, 20")
        a.I("s_cbranch_scc0 L_noc1")
        a.I("v_mov_b32 v9, 132")
        a.I("global_atomic_add v9, v8, s[28:29] sc1")
        a.label("L_noc1")
        a.I("s_mov_b64 exec, -1")

    def master(self):
        a = self.a
        a.I("s_cmp_eq_u32 s44, 1")
        a.I("s_cbranch_scc0 L_notmaster")
        a.I("s_cmp_eq_u32 s2, 254")
        a.I("s_cbranch_scc0 L_notmaster")
        def go(val):
            a.I("s_mov_b64 exec, -1")
            a.I("v_lshlrev_b32 v7, 7, v5")
            a.I(f"v_mov_b32 v6, {val}")
            for k in range(4):
                a.I(f"s_mov_b32 s45, {WS_ML + 64 + 8192*k}")
                a.I("buffer_store_dword v6, v7, s[40:43], s45 offen sc1")
        a.I("v_mov_b32 v7, 132")
        a.I("s_mov_b32 s62, 0")
        a.I("s_mov_b64 exec, 1")
        a.label("L_master1")
        a.I("global_load_dword v6, v7, s[28:29] sc1")
        a.I("s_add_u32 s62, s62, 1")
        a.I("s_waitcnt vmcnt(0)")
        a.I("v_readfirstlane_b32 s45, v6")
        a.I("s_cmp_ge_u32 s45, 20")
        a.I("s_cbranch_scc1 L_master1_ok")
        a.I(f"s_cmp_lt_u32 s62, {SPIN_MAX}")
        a.I("s_cbranch_scc1 L_master1")
        a.label("L_master1_ok")
        go(1)
        self.stamp(17)
        a.I("v_and_b32 v7, 1, v5")
        a.I("v_lshlrev_b32 v7, 7, v7")
        a.I("s_mov_b32 s62, 0")
        a.I("s_mov_b64 exec, 3")
        a.label("L_master")
        a.I("global_load_dword v6, v7, s[28:29] sc1")
        a.I("s_add_u32 s62, s62, 1")
        a.I("s_waitcnt vmcnt(0)")
        a.I("v_lshrrev_b32 v6, 7, v6")
        a.I("v_cmp_eq_u32 vcc, 0, v6")
        a.I("s_cmp_eq_u64 vcc, 0")
        a.I("s_cbranch_scc1 L_master_ok")
        a.I(f"s_cmp_lt_u32 s62, {SPIN_MAX}")
        a.I("s_cbranch_scc1 L_master")
        a.label("L_master_ok")
        go(2)
        self.stamp(18)
        a.label("L_notmaster")

    def poll_go(self, label, vz, vt, level):
        a = self.a
        a.I("s_lshl_b32 s45, s2, 7")
        a.I(f"s_add_u32 s46, s45, {WS_ML + 64}")
        a.I(f"v_mov_b32 v{vz}, 0")
        a.I("s_mov_b32 s62, 0")
        a.I("s_mov_b64 exec, 1")
        a.label(label)
        a.I(f"buffer_load_dword v{vt}, v{vz}, s[40:43], s46 offen sc1")
        a.I("s_add_u32 s62, s62, 1")
        a.I("s_waitcnt vmcnt(0)")
        a.I(f"v_readfirstlane_b32 s45, v{vt}")
        a.I(f"s_sub_u32 s45, s45, {level}")
        a.I(f"s_cmp_le_u32 s45, {2-level}")
        a.I(f"s_cbranch_scc1 {label}_ok")
        a.I(f"s_cmp_lt_u32 s62, {SPIN_MAX}")
        a.I(f"s_cbranch_scc1 {label}")
        a.label(f"{label}_ok")
        a.I("s_mov_b64 exec, -1")

    def stream(self):
        a = self.a
        cfg = self.cfg
        a.label("L_stream")
        a.fence(2)
        self.roles_rest()
        if self.cfg.codepf:
            self.code_prefetch(10)
        a.I("s_waitcnt lgkmcnt(0)")
        self.stamp(0)
        self.srd(40, 30, WS_SIZE)
        if self.cfg.pretouch:
            self.pretouch()
        a.I("s_sub_u32 s44, s44, 4")
        a.I("s_lshl_b32 s45, s57, 5")
        a.I("s_add_u32 s45, s45, s58")
        a.I("s_mul_i32 s45, s45, 1572864")
        a.I("s_mul_i32 s46, s59, 786432")
        a.I("s_add_u32 s47, s45, s46")
        self.srd(32, 6, 786432, off=47)
        self.srd(36, 8, 786432, off=47)
        a.I("s_cmp_eq_u32 s44, 7")
        a.I("s_cbranch_scc0 L_noreset")
        self.resets()
        self.resets_arrive()
        a.label("L_noreset")
        a.fence(2)
        st.set_depth(cfg.D)

        def b0():
            a.I("s_barrier")
        S2 = dict(S); S2['b0_after'] = cfg.N1 - 1 if cfg.gate else -1
        S2['hook_before'] = {cfg.NB0: b0}
        issued = st.stream_prologue(a, cfg, S2)
        st.stream_main(a, cfg, S2, LDS, issued, self.stamp)
        a.I("s_add_u32 s44, s44, 4")
        a.I("s_branch L_post")

    def u_layout(self, n, per):
        a = self.a
        magic = {80: 52429, 40: 104858}[per]
        a.I(f"s_mov_b32 s47, {magic}")
        for jj in range(n):
            a.I(f"v_add_u32 v6, {64*jj}, v5")
            a.I("v_mul_u32_u24 v7, s47, v6")
            a.I(f"v_lshrrev_b32 v{20+jj}, 22, v7")
            a.I(f"v_mul_u32_u24 v7, {per}, v{20+jj}")
            a.I("v_sub_u32 v6, v6, v7")
            a.I(f"v_lshlrev_b32 v{25+jj}, 2, v6")

    def helper(self):
        a = self.a
        a.label("L_helper")
        a.I("s_setprio 3")
        a.I("s_lshl_b32 s45, s44, 2")
        a.I(f"s_add_u32 s45, s45, {L_HFLAG}")
        a.I("v_mov_b32 v6, s45")
        a.I("v_mov_b32 v7, 0")
        a.I("ds_write_b32 v6, v7")
        a.I(f"s_cmp_eq_u32 s{S_PRE}, 2")
        a.I("s_cbranch_scc0 L_h_notq")
        a.I("v_lshrrev_b32 v6, 3, v5")
        a.I("v_bfe_u32 v7, v5, 4, 1")
        a.I("v_lshlrev_b32 v7, 5, v7")
        a.I("v_and_b32 v8, 7, v5")
        a.I("v_lshlrev_b32 v8, 4, v8")
        a.I("v_xor_b32 v8, v8, v7")
        a.I("v_xor_b32 v9, 64, v8")
        a.I("v_mul_u32_u24 v6, 12288, v6")
        a.I("v_add_u32 v8, v8, v6")
        a.I("v_add_u32 v9, v9, v6")
        a.I(f"s_mul_i32 s46, s44, {80*12288}")
        a.I(f"s_mov_b32 s86, {8*12288}")
        a.I(f"s_mul_i32 s47, s{S_KH}, {320*12288}")
        a.I(f"s_lshl_b32 s45, s{S_BAND}, 7")
        a.I("s_add_u32 s85, s47, s45")
        self.u_layout(3, 40)
        a.I(f"s_mul_i32 s63, s{S_KH}, 640")
        a.I("s_mul_i32 s45, s44, 160")
        a.I("s_add_u32 s63, s63, s45")
        a.I("v_lshlrev_b32 v16, 2, v5")
        for jj in range(3):
            a.I(f"v_mul_u32_u24 v{40+jj}, 1280, v{20+jj}")
            a.I(f"v_add_u32 v{40+jj}, v{40+jj}, v{25+jj}")
        a.I("s_mul_i32 s48, s44, 1280")
        a.I("s_waitcnt lgkmcnt(0)")
        self.stamp(0)
        self.srd(36, 4, 5120)
        for jj in range(5):
            a.I(f"buffer_load_dword v{35+jj}, v16, s[36:39], s48 offen offset:{256*jj}")
        for jj in range(3):
            a.I(f"buffer_load_dword v{30+jj}, v{40+jj}, s[36:39], s63 offen")
        self.srd(32, 10, 320 * 12288, off=85)
        a.I("s_branch L_h_dma")
        a.label("L_h_notq")
        a.I(f"s_cmp_eq_u32 s{S_PRE}, 1")
        a.I("s_cbranch_scc1 L_modunit")
        a.I("s_waitcnt lgkmcnt(0)")
        self.stamp(0)
        self.srd(40, 30, WS_SIZE)
        a.I("s_barrier")
        self.master()
        a.I("s_branch L_h_go")
        a.label("L_modunit")
        a.fence(2)
        self.dma_voff128(7680, 8, 9, 6, 7)
        a.I(f"s_mul_i32 s46, s44, {160*7680}")
        a.I(f"s_lshl_b32 s85, s{S_BAND}, 7")
        self.u_layout(5, 80)
        a.I("s_mul_i32 s63, s44, 320")
        for jj in range(5):
            a.I(f"v_mul_u32_u24 v{40+jj}, 1280, v{20+jj}")
            a.I(f"v_add_u32 v{40+jj}, v{40+jj}, v{25+jj}")
        a.I("s_mul_i32 s47, s44, 20480")
        a.I(f"s_add_u32 s47, s47, {L_W}")
        a.I("s_waitcnt lgkmcnt(0)")
        self.stamp(0)
        self.srd(36, 22, 5120)
        for jj in range(5):
            a.I(f"buffer_load_dword v{30+jj}, v{40+jj}, s[36:39], s63 offen")
        self.srd(32, 24, 640 * 7680, off=85)
        self.dma_loop(32, 20, 8, 9, 47, 46, 8 * 7680, "L_mod_dma", cnt=85)
        self.stamp(3)
        self.srd(40, 30, WS_SIZE)
        a.I(f"s_mov_b32 s54, 0x{LOG2E:x}")
        a.I("s_mul_i32 s47, s44, 320")
        a.I(f"s_add_u32 s47, s47, {L_ACT}")
        for jj in range(5):
            a.I(f"v_mul_u32_u24 v{40+jj}, 1344, v{20+jj}")
            a.I(f"v_add3_u32 v{40+jj}, v{40+jj}, v{25+jj}, s47")
        a.I("s_waitcnt vmcnt(20)")
        for jj in range(5):
            lo, hi = 46, 47
            self.unpack(30 + jj, lo, hi)
            for r in (lo, hi):
                a.I(f"v_mul_f32 v48, s54, v{r}")
                a.I("v_exp_f32 v48, -v48")
                a.I("v_add_f32 v48, 1.0, v48")
                a.I("v_min_f32 v48, 0x7f7fffff, v48")
                a.I("v_rcp_f32 v49, v48")
                self.div_by(r, 48, 49, 50)
            a.I(f"v_cvt_pk_bf16_f32 v46, v46, v47")
            a.I(f"ds_write_b32 v{40+jj}, v46")
        self.tr_addr128(10, 6, 7)
        a.I("s_lshl_b32 s45, s44, 5")
        a.I("v_xor_b32 v10, s45, v10")
        a.I(f"v_add_u32 v10, {L_W}, v10")
        a.I(f"v_add_u32 v11, {10*4096}, v10")
        self.act_addr(14, 1344, 6)
        a.I("s_waitcnt vmcnt(0) lgkmcnt(0)")
        self.stamp(7)
        a.I("s_barrier")
        self.mfma_chain2(10, 10, 11, 4096, 512, 14, 64, 68)
        for k in range(4):
            a.I(f"v_add_f32 v{64+k}, v{64+k}, v{68+k}")
        a.I("v_cvt_pk_bf16_f32 v64, v64, v65")
        a.I("v_cvt_pk_bf16_f32 v65, v66, v67")
        self.canon([64, 65], 44)
        a.I("v_and_b32 v6, 3, v5")
        a.I("v_mul_u32_u24 v6, 7680, v6")
        a.I("v_lshrrev_b32 v7, 4, v5")
        a.I("v_lshl_add_u32 v6, v7, 3, v6")
        a.I(f"s_lshl_b32 s45, s{S_BAND}, 7")
        a.I("s_lshl_b32 s47, s44, 5")
        a.I("s_add_u32 s47, s47, s45")
        a.I(f"s_mov_b32 exec_lo, 0x{MASK_N4_LO:x}")
        a.I(f"s_mov_b32 exec_hi, 0x{MASK_N4_LO:x}")
        a.I("buffer_store_dwordx2 v[64:65], v6, s[40:43], s47 offen sc1")
        a.I("s_mov_b64 exec, -1")
        self.stamp(12)
        a.label("L_h_go")
        a.fence(2)
        a.I("s_cmp_lg_u32 s44, 0")
        a.I("s_cbranch_scc1 L_go_skip")
        self.poll_go("L_go1", 6, 7, 2)
        a.label("L_go_skip")
        if self.cfg.gate:
            a.I("s_barrier")
        a.I("s_branch L_h_q")
        a.label("L_h_dma")
        a.I("s_mul_i32 s47, s44, 10240")
        a.I(f"s_add_u32 s47, s47, {L_W}")
        for i in range(10):
            a.I("s_mov_b32 m0, s47")
            a.I("s_add_u32 s47, s47, 1024")
            a.I(f"buffer_load_dwordx4 v{9 if i & 1 else 8}, s[32:35], s46 offen {self.cfg.ntW} lds")
            if i < 9:
                a.I("s_add_u32 s46, s46, s86")
        self.stamp(3)
        self.srd(40, 30, WS_SIZE)
        a.I("s_waitcnt vmcnt(13)")
        for jj in range(5):
            self.unpack(35 + jj, 40 + 2 * jj, 41 + 2 * jj)
        a.I("v_add_f32 v6, v40, v41")
        for k in range(42, 50):
            a.I(f"v_add_f32 v6, v6, v{k}")
        self.wave_sum_bcast(6, 46)
        a.I("v_mov_b32 v6, 0x3acccccd")
        a.I("v_mul_f32 v50, s46, v6")
        a.I("v_mov_b32 v7, 0")
        for k in range(40, 50):
            a.I(f"v_sub_f32 v51, v{k}, v50")
            a.I("v_fmac_f32 v7, v51, v51")
        self.wave_sum_bcast(7, 46)
        a.I("v_mul_f32 v52, s46, v6")
        self.ln_denom(52, 53)
        a.I("v_cvt_pk_bf16_f32 v50, v50, v50")
        a.I("v_lshlrev_b32 v50, 16, v50")
        a.I("s_lshl_b32 s45, s44, 3")
        a.I(f"s_add_u32 s45, s45, {L_LNST}")
        a.I("v_mov_b32 v6, s45")
        a.I("ds_write_b32 v6, v50")
        a.I("ds_write_b32 v6, v52 offset:4")
        a.I("s_waitcnt vmcnt(0) lgkmcnt(0)")
        self.stamp(7)
        a.I("s_barrier")
        a.I("s_waitcnt vmcnt(10)")
        for jj in range(3):
            a.I(f"v_min_u32 v6, 3, v{20+jj}")
            a.I(f"v_lshlrev_b32 v6, 3, v6")
            a.I(f"ds_read_b64 v[56:57], v6 offset:{L_LNST}")
            lo, hi = 60 + 2 * jj, 61 + 2 * jj
            self.unpack(30 + jj, lo, hi)
            a.I("s_waitcnt lgkmcnt(0)")
            a.I(f"v_sub_f32 v{lo}, v{lo}, v56")
            a.I(f"v_sub_f32 v{hi}, v{hi}, v56")
            self.bf16_round([lo, hi], 58)
            a.I("v_rcp_f32 v58, v57")
            self.div_by(lo, 57, 58, 59)
            self.div_by(hi, 57, 58, 59)
            self.bf16_round([lo, hi], 58)
        for jj in range(3):
            a.I(f"v_min_u32 v6, 3, v{20+jj}")
            a.I(f"v_mul_u32_u24 v{40+jj}, 7680, v6")
            a.I(f"v_add_u32 v{40+jj}, v{40+jj}, v{25+jj}")
        a.I("s_mul_i32 s47, s44, 160")
        a.I(f"s_add_u32 s47, s47, {L_ACT}")
        for jj in range(3):
            a.I(f"v_mul_u32_u24 v{43+jj}, 704, v{20+jj}")
            a.I(f"v_add3_u32 v{43+jj}, v{43+jj}, v{25+jj}, s47")
        self.tr_addr128(10, 6, 7)
        a.I("s_lshl_b32 s45, s44, 5")
        a.I("v_xor_b32 v10, s45, v10")
        a.I(f"v_add_u32 v10, {L_W}, v10")
        self.act_addr(14, 704, 6)
        a.I(f"v_add_u32 v14, {L_ACT}, v14") if L_ACT else None
        self.stamp(16)
        self.poll_go("L_go2", 6, 7, 1)
        self.stamp(18)
        a.I(f"s_add_u32 s46, s63, {WS_MOD}")
        a.I(f"s_add_u32 s47, s63, {WS_MOD + 1280}")
        loads = [f"buffer_load_dword v{30+jj}, v{40+jj}, s[40:43], s46 offen sc1" for jj in range(3)] + \
                [f"buffer_load_dword v{35+jj}, v{40+jj}, s[40:43], s47 offen sc1" for jj in range(3)]
        self.poll(loads, [30, 31, 32, 35, 36, 37], "L_pmod", pre=6)
        self.stamp(14)
        for jj in range(3):
            lo, hi = 60 + 2 * jj, 61 + 2 * jj
            self.unpack(35 + jj, 46, 47)
            a.I("v_add_f32 v46, 1.0, v46")
            a.I("v_add_f32 v47, 1.0, v47")
            self.bf16_round([46, 47], 48)
            a.I(f"v_mul_f32 v{lo}, v{lo}, v46")
            a.I(f"v_mul_f32 v{hi}, v{hi}, v47")
            self.bf16_round([lo, hi], 48)
            self.unpack(30 + jj, 46, 47)
            a.I(f"v_add_f32 v{lo}, v{lo}, v46")
            a.I(f"v_add_f32 v{hi}, v{hi}, v47")
            a.I(f"v_cvt_pk_bf16_f32 v46, v{lo}, v{hi}")
            if jj == 2:
                a.I("s_mov_b32 exec_hi, 0")
            a.I(f"ds_write_b32 v{43+jj}, v46")
        a.I("s_mov_b64 exec, -1")
        if self.cfg.gate:
            a.I("s_waitcnt lgkmcnt(0)")
            a.I("s_barrier")
        else:
            self.hsync(2, "L_hs2", 6, 16)
        self.stamp(17)
        self.mfma_chain(10, 10, 4096, 512, 14, 64)
        self.canon([64, 65, 66, 67], 44)
        a.I("v_and_b32 v6, 3, v5")
        a.I("v_mul_u32_u24 v6, 24576, v6")
        a.I("v_lshrrev_b32 v7, 4, v5")
        a.I("v_lshl_add_u32 v6, v7, 4, v6")
        a.I(f"s_mul_i32 s45, s{S_KH}, {4*24576}")
        a.I(f"s_lshl_b32 s47, s{S_BAND}, 8")
        a.I("s_add_u32 s47, s47, s45")
        a.I("s_lshl_b32 s45, s44, 6")
        a.I("s_add_u32 s47, s47, s45")
        a.I(f"s_add_u32 s47, s47, {WS_Q}")
        a.I(f"s_mov_b32 exec_lo, 0x{MASK_N4_LO:x}")
        a.I(f"s_mov_b32 exec_hi, 0x{MASK_N4_LO:x}")
        a.I("buffer_store_dwordx4 v[64:67], v6, s[40:43], s47 offen sc1")
        a.I("s_mov_b64 exec, -1")
        self.stamp(12)
        a.label("L_h_q")
        a.fence(2)
        self.roles_rest()
        self.srd(40, 30, WS_SIZE)
        a.I("s_cmp_lg_u32 s44, 0")
        a.I("s_cbranch_scc1 L_hb1")
        self.poll_go("L_go3", 6, 7, 2)
        self.stamp(19)
        a.I("v_and_b32 v6, 31, v5")
        a.I("v_mul_u32_u24 v11, 12, v6")
        a.I("v_lshlrev_b32 v6, 1, v11")
        a.I("s_mul_i32 s45, s57, 24576")
        a.I("s_mul_i32 s46, s58, 768")
        a.I("s_add_u32 s46, s45, s46")
        a.I(f"s_add_u32 s46, s46, {WS_Q}")
        a.I(f"s_add_u32 s47, s46, {4*24576}")
        self.poll(["buffer_load_dwordx3 v[12:14], v6, s[40:43], s46 offen sc1",
                   "buffer_load_dwordx3 v[16:18], v6, s[40:43], s46 offen offset:12 sc1",
                   "buffer_load_dwordx3 v[20:22], v6, s[40:43], s47 offen sc1",
                   "buffer_load_dwordx3 v[24:26], v6, s[40:43], s47 offen offset:12 sc1"],
                  [12, 13, 14, 16, 17, 18, 20, 21, 22, 24, 25, 26], "L_pq", pre=7)
        for k in range(3):
            a.I(f"v_add_f32 v{12+k}, v{12+k}, v{20+k}")
            a.I(f"v_add_f32 v{16+k}, v{16+k}, v{24+k}")
        a.I("v_cvt_pk_bf16_f32 v8, v12, v13")
        a.I("v_cvt_pk_bf16_f32 v9, v14, v16")
        a.I("v_cvt_pk_bf16_f32 v10, v17, v18")
        a.I(f"ds_write_b32 v11, v8 offset:{L_QV}")
        a.I(f"ds_write_b32 v11, v9 offset:{L_QV+4}")
        a.I(f"ds_write_b32 v11, v10 offset:{L_QV+8}")
        a.I("s_waitcnt lgkmcnt(0)")
        a.label("L_hb1")
        self.stamp(1)
        a.I("s_barrier")
        self.stamp(2)
        if self.cfg.hop:
            a.I("s_cmp_eq_u32 s44, 0")
            a.I("s_cbranch_scc1 L_late_done")
            a.I("s_mov_b64 exec, 0")
            a.I("s_cmp_eq_u32 s44, 1")
            a.I("s_cbranch_scc1 L_hopA_0")
            a.I("s_cmp_eq_u32 s44, 2")
            a.I("s_cbranch_scc1 L_hopB_0")
            a.I("s_branch L_hopC_0")
            a.label("L_warm_ret")
            a.I("s_mov_b64 exec, -1")
            self.stamp(22)
        if self.cfg.pf == 2:
            a.label("L_late_pf")
            self.prefetch_weights()
        a.label("L_late_done")
        a.fence(2)
        a.I("s_barrier")
        self.stamp(4)
        a.I("s_cmp_lg_u32 s44, 0")
        a.I("s_cbranch_scc1 L_hb3")
        self.ml_exchange()
        a.label("L_hb3")
        self.stamp(5)
        a.I("s_barrier")
        self.stamp(6)
        if self.cfg.pf == 1:
            self.prefetch_weights()
        if self.cfg.early_w:
            a.I("s_cmp_eq_u32 s44, 0")
            a.I("s_cbranch_scc1 L_vw_done")
            self.roles_from_ticket("v")
            self.v_weights()
            a.label("L_vw_done")
            a.fence(2)
        a.I("s_barrier")
        self.stamp(8)

    def dma_loop(self, srd, n, vE, vO, lds_reg, soff_reg, step, label, cnt=63, window=0):
        a = self.a
        a.I(f"s_mov_b32 s{cnt}, {n // 2}")
        a.label(label)
        for v in (vE, vO):
            if window:
                a.I(f"s_waitcnt vmcnt({window - 1})")
            a.I(f"s_mov_b32 m0, s{lds_reg}")
            a.I(f"s_add_u32 s{lds_reg}, s{lds_reg}, 1024")
            a.I(f"buffer_load_dwordx4 v{v}, s[{srd}:{srd+3}], s{soff_reg} offen {self.cfg.ntW} lds")
            a.I(f"s_add_u32 s{soff_reg}, s{soff_reg}, {step}")
        a.I(f"s_sub_u32 s{cnt}, s{cnt}, 1")
        a.I(f"s_cmp_lg_u32 s{cnt}, 0")
        a.I(f"s_cbranch_scc1 {label}")

    def mfma_chain2(self, nks, vA0, vA1, stepA, half_off, vB, d0, d1):
        a = self.a
        DEPTH = 2

        def issue(ks):
            b = 80 + 16 * (ks % DEPTH)
            a.I(f"ds_read_b64_tr_b16 v[{b}:{b+1}], v{vA0} offset:{stepA*ks}")
            a.I(f"ds_read_b64_tr_b16 v[{b+2}:{b+3}], v{vA0} offset:{stepA*ks + half_off}")
            a.I(f"ds_read_b128 v[{b+4}:{b+7}], v{vB} offset:{64*ks}")
            a.I(f"ds_read_b64_tr_b16 v[{b+8}:{b+9}], v{vA1} offset:{stepA*ks}")
            a.I(f"ds_read_b64_tr_b16 v[{b+10}:{b+11}], v{vA1} offset:{stepA*ks + half_off}")
            a.I(f"ds_read_b128 v[{b+12}:{b+15}], v{vB} offset:{64*(nks+ks)}")
        for ks in range(DEPTH):
            issue(ks)
        for ks in range(nks):
            left = min(nks - 1 - ks, DEPTH - 1)
            a.I(f"s_waitcnt lgkmcnt({6*left})")
            b = 80 + 16 * (ks % DEPTH)
            c0 = "0" if ks == 0 else f"v[{d0}:{d0+3}]"
            c1 = "0" if ks == 0 else f"v[{d1}:{d1+3}]"
            a.I(f"v_mfma_f32_16x16x32_bf16 v[{d0}:{d0+3}], v[{b}:{b+3}], v[{b+4}:{b+7}], {c0}")
            a.I(f"v_mfma_f32_16x16x32_bf16 v[{d1}:{d1+3}], v[{b+8}:{b+11}], v[{b+12}:{b+15}], {c1}")
            if ks + DEPTH < nks:
                issue(ks + DEPTH)

    def mfma_chain(self, nks, vA, stepA, half_off, vB, dreg):
        a = self.a
        DEPTH = 4

        def issue(ks):
            b = 80 + 8 * (ks % DEPTH)
            a.I(f"ds_read_b64_tr_b16 v[{b}:{b+1}], v{vA} offset:{stepA*ks}")
            a.I(f"ds_read_b64_tr_b16 v[{b+2}:{b+3}], v{vA} offset:{stepA*ks + half_off}")
            a.I(f"ds_read_b128 v[{b+4}:{b+7}], v{vB} offset:{64*ks}")
        for ks in range(min(DEPTH, nks)):
            issue(ks)
        for ks in range(nks):
            left = min(nks - 1 - ks, DEPTH - 1)
            a.I(f"s_waitcnt lgkmcnt({3*left})")
            b = 80 + 8 * (ks % DEPTH)
            c = "0" if ks == 0 else f"v[{dreg}:{dreg+3}]"
            a.I(f"v_mfma_f32_16x16x32_bf16 v[{dreg}:{dreg+3}], v[{b}:{b+3}], v[{b+4}:{b+7}], {c}")
            if ks + DEPTH < nks:
                issue(ks + DEPTH)

    def dma_band128(self, srd, rowstride, ninstr, vE, vO, lds_base_sreg, soff_reg, tag):
        a = self.a
        for i in range(ninstr):
            a.I(f"s_mov_b32 m0, s{lds_base_sreg}")
            v = vO if i & 1 else vE
            a.I(f"s_add_u32 s{lds_base_sreg}, s{lds_base_sreg}, 1024")
            a.I(f"buffer_load_dwordx4 v{v}, s[{srd}:{srd+3}], s{soff_reg} offen {self.cfg.ntW} lds")
            if i + 1 < ninstr:
                a.I(f"s_add_u32 s{soff_reg}, s{soff_reg}, {8*rowstride}")

    def dma_voff128(self, rowstride, vE, vO, t0, t1):
        a = self.a
        a.I(f"v_lshrrev_b32 v{t0}, 3, v5")
        a.I(f"v_bfe_u32 v{t1}, v5, 4, 1")
        a.I(f"v_lshlrev_b32 v{t1}, 5, v{t1}")
        a.I(f"v_and_b32 v{vE}, 7, v5")
        a.I(f"v_lshlrev_b32 v{vE}, 4, v{vE}")
        a.I(f"v_xor_b32 v{vE}, v{vE}, v{t1}")
        a.I(f"v_xor_b32 v{vO}, 64, v{vE}")
        a.I(f"s_mov_b32 s45, {rowstride}")
        a.I(f"v_mul_lo_u32 v{t0}, s45, v{t0}")
        a.I(f"v_add_u32 v{vE}, v{vE}, v{t0}")
        a.I(f"v_add_u32 v{vO}, v{vO}, v{t0}")

    def tr_addr128(self, vdst, t0, t1):
        a = self.a
        a.I(f"v_lshrrev_b32 v{t0}, 4, v5")
        a.I(f"v_bfe_u32 v{t1}, v5, 2, 2")
        a.I(f"v_lshl_add_u32 v{vdst}, v{t0}, 3, v{t1}")
        a.I(f"v_lshlrev_b32 v{vdst}, 7, v{vdst}")
        a.I(f"v_and_b32 v{t0}, 1, v{t0}")
        a.I(f"v_lshlrev_b32 v{t0}, 6, v{t0}")
        a.I(f"v_bfe_u32 v{t1}, v5, 3, 1")
        a.I(f"v_lshlrev_b32 v{t1}, 5, v{t1}")
        a.I(f"v_or3_b32 v{vdst}, v{vdst}, v{t0}, v{t1}")
        a.I(f"v_and_b32 v{t0}, 3, v5")
        a.I(f"v_lshl_add_u32 v{vdst}, v{t0}, 3, v{vdst}")

    def act_addr(self, vdst, stride, t0):
        a = self.a
        a.I(f"v_and_b32 v{t0}, 3, v5")
        a.I(f"v_mul_u32_u24 v{vdst}, {stride}, v{t0}")
        a.I(f"v_lshrrev_b32 v{t0}, 4, v5")
        a.I(f"v_lshl_add_u32 v{vdst}, v{t0}, 4, v{vdst}")

    def ml_exchange(self):
        a = self.a
        a.I("v_and_b32 v6, 7, v5")
        a.I("v_lshlrev_b32 v6, 3, v6")
        a.I(f"ds_read_b64 v[8:9], v6 offset:{L_STATS}")
        a.I(f"s_mov_b32 s54, 0x{LOG2E:x}")
        a.I("s_waitcnt lgkmcnt(0)")
        a.I("v_mov_b32 v10, v8")
        a.I("v_max_f32_dpp v10, v10, v10 quad_perm:[1,0,3,2] row_mask:0xf bank_mask:0xf")
        a.I("v_max_f32_dpp v10, v10, v10 quad_perm:[2,3,0,1] row_mask:0xf bank_mask:0xf")
        a.I("v_max_f32_dpp v10, v10, v10 row_half_mirror row_mask:0xf bank_mask:0xf")
        a.I("v_sub_f32 v11, v8, v10")
        a.I("v_mul_f32 v11, s54, v11")
        a.I("v_exp_f32 v11, v11")
        a.I("v_mul_f32 v11, v11, v9")
        a.I("v_add_f32_dpp v11, v11, v11 quad_perm:[1,0,3,2] row_mask:0xf bank_mask:0xf")
        a.I("v_add_f32_dpp v11, v11, v11 quad_perm:[2,3,0,1] row_mask:0xf bank_mask:0xf")
        a.I("v_add_f32_dpp v11, v11, v11 row_half_mirror row_mask:0xf bank_mask:0xf")
        self.canon([10, 11], 12)
        a.I("s_lshl_b32 s45, s2, 7")
        a.I(f"s_add_u32 s45, s45, {WS_ML}")
        a.I("v_mov_b32 v6, 0")
        a.I("s_mov_b64 exec, 1")
        a.I("buffer_store_dwordx2 v[10:11], v6, s[40:43], s45 offen sc1")
        if self.cfg.early_w:
            a.I("v_mov_b32 v7, 8")
            a.I("v_mov_b32 v18, 1")
            a.I("global_atomic_add v19, v7, v18, s[28:29] sc0 sc1")
        a.I("s_mov_b64 exec, -1")
        a.I("s_xor_b32 s46, s2, 32")
        a.I("s_lshl_b32 s46, s46, 7")
        a.I(f"s_add_u32 s46, s46, {WS_ML}")
        self.poll(["buffer_load_dwordx2 v[12:13], v6, s[40:43], s46 offen sc1"], [12, 13], "L_pml", pre=7)
        a.I("v_max_f32 v14, v10, v12")
        a.I("v_sub_f32 v15, v10, v14")
        a.I("v_sub_f32 v16, v12, v14")
        a.I("v_mul_f32 v15, s54, v15")
        a.I("v_mul_f32 v16, s54, v16")
        a.I("v_exp_f32 v15, v15")
        a.I("v_exp_f32 v16, v16")
        a.I("v_mul_f32 v15, v15, v11")
        a.I("v_mul_f32 v16, v16, v13")
        a.I("v_add_f32 v15, v15, v16")
        a.I("v_rcp_f32 v16, v15")
        a.I("v_fma_f32 v17, -v15, v16, 1.0")
        a.I("v_fma_f32 v16, v17, v16, v16")
        a.I(f"v_mov_b32 v6, {L_FIN}")
        a.I("ds_write_b32 v6, v14")
        a.I("ds_write_b32 v6, v16 offset:4")
        if self.cfg.early_w:
            a.I("s_mov_b64 exec, 1")
            a.I("ds_write_b32 v6, v19 offset:8")
            a.I("s_mov_b64 exec, -1")
        a.I("s_waitcnt lgkmcnt(0)")

    def post(self):
        a = self.a
        a.label("L_post")
        a.hops_begin("L_hopA", self.cfg.hop)
        a.fence(4)
        a.I("s_setprio 0")
        a.I("v_and_b32 v5, 63, v0")
        a.I("s_cmp_lg_u32 s44, 0")
        a.I("s_cbranch_scc1 L_o_done")
        a.I("v_lshlrev_b32 v6, 4, v5")
        a.I("s_mov_b32 exec_lo, -1"); a.I("s_mov_b32 exec_hi, 0xffff")
        for w in range(8):
            a.I(f"ds_read_b128 v[{8+4*w}:{11+4*w}], v6 offset:{L_OPART+768*w}")
        for w in range(1, 8):
            a.I(f"s_waitcnt lgkmcnt({7-w})")
            for k in range(4):
                a.I(f"v_add_f32 v{8+k}, v{8+k}, v{8+4*w+k}")
        self.canon([8, 9, 10, 11], 12)
        a.I("s_lshl_b32 s45, s57, 5")
        a.I("s_add_u32 s45, s45, s58")
        a.I("s_lshl_b32 s45, s45, 1")
        a.I("s_add_u32 s45, s45, s59")
        a.I("s_mul_i32 s45, s45, 768")
        a.I(f"s_add_u32 s45, s45, {WS_O}")
        a.I("buffer_store_dwordx4 v[8:11], v6, s[40:43], s45 offen sc1")
        a.I("s_mov_b64 exec, -1")
        a.label("L_o_done")
        a.fence(2)
        self.roles_from_ticket()
        a.I(f"s_cmp_eq_u32 s{S_POST}, 0")
        a.I("s_cbranch_scc1 L_tail")
        a.I("s_barrier")
        a.I(f"s_cmp_eq_u32 s{S_POST}, 1")
        a.I("s_cbranch_scc0 L_post23")
        self.post_wo()
        a.I("s_branch L_tail")
        a.hops_end("L_warm_ret")
        a.label("L_post23")
        a.hops_begin("L_hopB", self.cfg.hop)
        a.fence(2)
        self.post_gu()
        a.I(f"s_cmp_lt_u32 s{S_DT}, 40")
        a.I("s_cbranch_scc0 L_tail")
        a.hops_end("L_warm_ret")
        a.hops_begin("L_hopC", self.cfg.hop)
        self.post_final()
        a.hops_end("L_warm_ret")

    def red_lane_addr(self, vdst, t):
        a = self.a
        a.I(f"v_lshrrev_b32 v{vdst}, 4, v5")
        a.I(f"v_and_b32 v{t}, 3, v5")
        a.I(f"v_lshl_add_u32 v{vdst}, v{vdst}, 2, v{t}")
        a.I(f"v_lshlrev_b32 v{vdst}, 4, v{vdst}")

    def write_red(self, dreg, vaddr):
        a = self.a
        a.I("s_lshl_b32 s45, s44, 8")
        a.I(f"s_add_u32 s45, s45, {L_RED}")
        a.I(f"v_add_u32 v{vaddr}, s45, v{vaddr}")
        a.I(f"s_mov_b32 exec_lo, 0x{MASK_N4_LO:x}")
        a.I(f"s_mov_b32 exec_hi, 0x{MASK_N4_LO:x}")
        a.I(f"ds_write_b128 v{vaddr}, v[{dreg}:{dreg+3}]")
        a.I("s_mov_b64 exec, -1")
        a.I("s_waitcnt lgkmcnt(0)")
        a.I("s_barrier")

    def mfma_run(self, nks, vA, offA, stepA, half_off, vB, dreg, first_reg=40):
        a = self.a
        for ks in range(nks):
            b = first_reg + 8 * ks
            a.I(f"ds_read_b64_tr_b16 v[{b}:{b+1}], v{vA} offset:{offA + stepA*ks}")
            a.I(f"ds_read_b64_tr_b16 v[{b+2}:{b+3}], v{vA} offset:{offA + stepA*ks + half_off}")
            a.I(f"ds_read_b128 v[{b+4}:{b+7}], v{vB} offset:{64*ks}")
        for ks in range(nks):
            b = first_reg + 8 * ks
            a.I(f"s_waitcnt lgkmcnt({min(15, 3*(nks-1-ks))})")
            c = "0" if ks == 0 else f"v[{dreg}:{dreg+3}]"
            a.I(f"v_mfma_f32_16x16x32_bf16 v[{dreg}:{dreg+3}], v[{b}:{b+3}], v[{b+4}:{b+7}], {c}")

    def mfma_preread(self, n, vA, stepA, half_off, first):
        a = self.a
        for ks in range(n):
            b = first + 4 * ks
            a.I(f"ds_read_b64_tr_b16 v[{b}:{b+1}], v{vA} offset:{stepA*ks}")
            a.I(f"ds_read_b64_tr_b16 v[{b+2}:{b+3}], v{vA} offset:{stepA*ks + half_off}")

    def mfma_with_b(self, n, firstA, vB, firstB, dreg):
        a = self.a
        for ks in range(n):
            b = firstB + 4 * ks
            a.I(f"ds_read_b128 v[{b}:{b+3}], v{vB} offset:{64*ks}")
        for ks in range(n):
            a.I(f"s_waitcnt lgkmcnt({n-1-ks})")
            c = "0" if ks == 0 else f"v[{dreg}:{dreg+3}]"
            a.I(f"v_mfma_f32_16x16x32_bf16 v[{dreg}:{dreg+3}], v[{firstA+4*ks}:{firstA+4*ks+3}], v[{firstB+4*ks}:{firstB+4*ks+3}], {c}")

    def post_wo(self):
        a = self.a
        if not self.cfg.early_w:
            a.I(f"s_mul_i32 s45, s{S_KG}, {768*1280}")
            a.I(f"s_lshl_b32 s46, s{S_NB}, 7")
            a.I("s_add_u32 s47, s45, s46")
            self.srd(32, 12, 768 * 1280, off=47)
            self.dma_voff128(1280, 8, 9, 6, 7)
            a.I(f"s_mul_i32 s46, s44, {64*1280}")
            a.I("s_lshl_b32 s47, s44, 13")
            a.I(f"s_add_u32 s47, s47, {L_W}")
            self.dma_loop(32, 8, 8, 9, 47, 46, 8 * 1280, "L_wo_dma")
        a.I("s_mul_i32 s45, s44, 21846")
        a.I("s_lshr_b32 s45, s45, 16")
        a.I("s_mul_i32 s46, s45, 3")
        a.I("s_sub_u32 s46, s44, s46")
        a.I("s_lshl_b32 s46, s46, 6")
        a.I("v_add_u32 v10, s46, v5")
        a.I("v_mul_u32_u24 v11, 1366, v10")
        a.I("v_lshrrev_b32 v11, 16, v11")
        a.I("v_mul_u32_u24 v12, 48, v11")
        a.I("v_sub_u32 v12, v10, v12")
        a.I("v_mul_u32_u24 v11, 1536, v11")
        a.I("v_lshl_add_u32 v11, v12, 4, v11")
        a.I("s_lshl_b32 s63, s45, 5")
        a.I(f"s_lshl_b32 s46, s{S_KG}, 2")
        a.I("s_add_u32 s63, s63, s46")
        a.I("s_mul_i32 s63, s63, 1536")
        a.I(f"s_add_u32 s63, s63, {WS_O}")
        a.I("s_mul_i32 s46, s45, 1600")
        a.I(f"s_add_u32 s46, s46, {L_ACT}")
        a.I("v_lshl_add_u32 v13, v10, 3, s46")
        self.tr_addr128(14, 6, 7)
        a.I("s_and_b32 s45, s44, 3")
        a.I("s_lshl_b32 s45, s45, 5")
        a.I("v_xor_b32 v14, s45, v14")
        a.I("s_lshr_b32 s45, s44, 2")
        a.I("s_lshl_b32 s46, s45, 15")
        a.I(f"s_add_u32 s46, s46, {L_W}")
        a.I("v_add_u32 v14, s46, v14")
        self.act_addr(15, 1600, 6)
        a.I("s_lshl_b32 s46, s45, 9")
        a.I(f"s_add_u32 s46, s46, {L_ACT}")
        a.I("v_add_u32 v15, s46, v15")
        self.red_lane_addr(16, 6)
        a.I("v_and_b32 v17, 3, v5")
        a.I("v_mul_u32_u24 v17, 2560, v17")
        a.I("v_lshrrev_b32 v7, 2, v5")
        a.I("v_lshl_add_u32 v17, v7, 4, v17")
        a.I("s_waitcnt vmcnt(0)")
        a.I("s_barrier")
        self.stamp(9)
        self.mfma_preread(8, 14, 4096, 512, 40)
        self.poll(["buffer_load_dwordx4 v[20:23], v11, s[40:43], s63 offen sc1",
                   "buffer_load_dwordx4 v[24:27], v11, s[40:43], s63 offen offset:768 sc1"],
                  list(range(20, 28)), "L_po", pre=6)
        self.stamp(10)
        for k in range(4):
            a.I(f"v_add_f32 v{20+k}, v{20+k}, v{24+k}")
        a.I("v_cvt_pk_bf16_f32 v20, v20, v21")
        a.I("v_cvt_pk_bf16_f32 v21, v22, v23")
        a.I("ds_write_b64 v13, v[20:21]")
        a.I("s_waitcnt lgkmcnt(0)")
        a.I("s_barrier")
        self.mfma_with_b(8, 40, 15, 72, 20)
        self.write_red(20, 16)
        a.I("s_cmp_lg_u32 s44, 0")
        a.I("s_cbranch_scc1 L_wo_done")
        a.I("v_lshlrev_b32 v6, 4, v5")
        for kt in range(3):
            a.I(f"ds_read_b128 v[{20+4*kt}:{23+4*kt}], v6 offset:{L_RED + 1024*kt}")
        a.I(f"s_mul_i32 s45, s{S_KG}, 10240")
        a.I(f"s_lshl_b32 s46, s{S_NB}, 8")
        a.I("s_add_u32 s45, s45, s46")
        a.I(f"s_add_u32 s45, s45, {WS_Y}")
        a.I("s_waitcnt lgkmcnt(0)")
        for k in range(4):
            a.I(f"v_add_f32 v{20+k}, v{20+k}, v{24+k}")
        for k in range(4):
            a.I(f"v_add_f32 v{20+k}, v{20+k}, v{28+k}")
        self.canon([20, 21, 22, 23], 12)
        a.I("buffer_store_dwordx4 v[20:23], v17, s[40:43], s45 offen sc1")
        a.label("L_wo_done")
        self.stamp(11)

    def dma_band64(self, srd, rowstride, ninstr, v, lds_reg, soff_reg):
        a = self.a
        for i in range(ninstr):
            a.I(f"s_mov_b32 m0, s{lds_reg}")
            a.I(f"s_add_u32 s{lds_reg}, s{lds_reg}, 1024")
            a.I(f"buffer_load_dwordx4 v{v}, s[{srd}:{srd+3}], s{soff_reg} offen {self.cfg.ntW} lds")
            if i + 1 < ninstr:
                a.I(f"s_add_u32 s{soff_reg}, s{soff_reg}, {16*rowstride}")

    def dma_voff64(self, rowstride, v, t0, t1):
        a = self.a
        a.I(f"v_lshrrev_b32 v{t0}, 2, v5")
        a.I(f"v_bfe_u32 v{t1}, v5, 5, 1")
        a.I(f"v_lshlrev_b32 v{t1}, 5, v{t1}")
        a.I(f"v_and_b32 v{v}, 3, v5")
        a.I(f"v_lshlrev_b32 v{v}, 4, v{v}")
        a.I(f"v_xor_b32 v{v}, v{v}, v{t1}")
        a.I(f"v_mul_u32_u24 v{t0}, {rowstride}, v{t0}")
        a.I(f"v_add_u32 v{v}, v{v}, v{t0}")

    def tr_addr64(self, vdst, t0, t1):
        a = self.a
        a.I(f"v_lshrrev_b32 v{t0}, 4, v5")
        a.I(f"v_bfe_u32 v{t1}, v5, 2, 2")
        a.I(f"v_lshl_add_u32 v{vdst}, v{t0}, 3, v{t1}")
        a.I(f"v_lshlrev_b32 v{vdst}, 6, v{vdst}")
        a.I(f"v_and_b32 v{t0}, 1, v{t0}")
        a.I(f"v_lshl_or_b32 v{vdst}, v{t0}, 5, v{vdst}")
        a.I(f"v_and_b32 v{t0}, 3, v5")
        a.I(f"v_lshl_add_u32 v{vdst}, v{t0}, 3, v{vdst}")

    def x1_from_y(self, vy_addr_soff, yregs, ga, xr, out, t):
        a = self.a
        for k in range(4):
            a.I(f"v_add_f32 v{out+k}, v{yregs+k}, v{yregs+4+k}")
        for w in range(2, 8):
            for k in range(4):
                a.I(f"v_add_f32 v{out+k}, v{out+k}, v{yregs+4*w+k}")
        o = [out + k for k in range(4)]
        self.bf16_round(o, t)
        for p in range(2):
            self.unpack(ga + p, t + 1, t + 2)
            a.I(f"v_mul_f32 v{o[2*p]}, v{o[2*p]}, v{t+1}")
            a.I(f"v_mul_f32 v{o[2*p+1]}, v{o[2*p+1]}, v{t+2}")
        self.bf16_round(o, t)
        for p in range(2):
            self.unpack(xr + p, t + 1, t + 2)
            a.I(f"v_add_f32 v{o[2*p]}, v{o[2*p]}, v{t+1}")
            a.I(f"v_add_f32 v{o[2*p+1]}, v{o[2*p+1]}, v{t+2}")
        self.bf16_round(o, t)

    def post_gu(self):
        a = self.a
        a.I("s_mul_i32 s45, s44, 21846")
        a.I("s_lshr_b32 s87, s45, 16")
        a.I("s_mul_i32 s46, s87, 3")
        a.I("s_sub_u32 s88, s44, s46")
        a.I("s_mul_i32 s46, s88, 54")
        a.I("v_add_u32 v10, s46, v5")
        a.I("v_cmp_gt_u32 vcc, 54, v5")
        a.I("s_mov_b64 s[50:51], vcc")
        a.I("v_mov_b32 v6, 160")
        a.I("v_cmp_lt_u32 vcc, v10, v6")
        a.I("s_and_b64 s[50:51], s[50:51], vcc")
        a.I("v_min_u32 v10, 159, v10")
        a.I("v_lshlrev_b32 v11, 3, v10")
        a.I("s_mul_i32 s46, s87, 7680")
        a.I(f"s_add_u32 s46, s46, {WS_MOD}")
        self.srd(36, 4, 5120)
        a.I("s_mul_i32 s47, s87, 1280")
        a.I("buffer_load_dwordx2 v[18:19], v11, s[36:39], s47 offen")
        a.I("v_add_u32 v40, 2560, v11")
        a.I("v_add_u32 v41, 3840, v11")
        a.I("v_add_u32 v42, 5120, v11")
        a.I("s_mul_i32 s85, s87, 7680")
        a.I(f"s_add_u32 s85, s85, {WS_MOD}")
        a.I("v_lshlrev_b32 v32, 4, v10")
        a.I("s_mul_i32 s86, s87, 2560")
        a.I(f"s_add_u32 s86, s86, {WS_Y}")
        yloads = []
        for w in range(8):
            yloads.append((f"buffer_load_dwordx4 v[{48+4*w}:{51+4*w}], v{80+w if False else 140+w}, s[40:43], s86 offen sc1", [48+4*w+k for k in range(4)]))
            a.I(f"v_add_u32 v{140+w}, {10240*w}, v32")
        modloads = ["buffer_load_dwordx2 v[12:13], v40, s[40:43], s85 offen sc1",
                    "buffer_load_dwordx2 v[14:15], v41, s[40:43], s85 offen sc1",
                    "buffer_load_dwordx2 v[16:17], v42, s[40:43], s85 offen sc1"]
        for ld in modloads:
            a.I(ld)
        if not self.cfg.early_w:
            a.I("s_cmp_ge_u32 s44, 10")
            a.I("s_cbranch_scc1 L_gu_dn")
            a.I(f"s_lshl_b32 s47, s{S_NB}, 6")
            a.I("s_cmp_ge_u32 s44, 5")
            a.I("s_cselect_b32 s48, s18, s16")
            a.I("s_cselect_b32 s49, s19, s17")
            a.I("s_cselect_b32 s63, 5, 0")
            self.srd(32, 48, 640 * 3072, off=47)
            self.dma_voff64(3072, 8, 6, 7)
            a.I("s_sub_u32 s63, s44, s63")
            a.I(f"s_mul_i32 s46, s63, {128*3072}")
            a.I("s_lshl_b32 s47, s44, 13")
            a.I(f"s_add_u32 s47, s47, {L_W}")
            self.dma_loop(32, 8, 8, 8, 47, 46, 16 * 3072, "L_gu_dma")
            a.I("s_waitcnt vmcnt(8)")
            a.I("s_branch L_gu_dma_done")
            a.label("L_gu_dn")
            a.I(f"s_mul_i32 s45, s{S_NB}, 40960")
            self.srd(32, 20, 40960, off=45)
            a.I("v_lshlrev_b32 v8, 4, v5")
            a.I("s_sub_u32 s63, s44, 10")
            a.I("s_mul_i32 s46, s63, 20480")
            a.I(f"s_add_u32 s47, s46, {L_WD}")
            self.dma_loop(32, 20, 8, 8, 47, 46, 1024, "L_gu_dndma")
            a.I("s_waitcnt vmcnt(20)")
            a.label("L_gu_dma_done")
            a.fence(2)
        else:
            a.I("s_waitcnt vmcnt(0)")
        self.stamp(22)
        a.I("v_max3_u32 v6, v12, v13, v14")
        a.I("v_max3_u32 v6, v6, v15, v16")
        a.I("v_max_u32 v6, v6, v17")
        a.I("v_cmp_eq_u32 vcc, -1, v6")
        a.I("s_cmp_eq_u64 vcc, 0")
        a.I("s_cbranch_scc1 L_pm2_skip")
        self.poll(modloads, list(range(12, 18)), "L_pm2", pre=6)
        a.label("L_pm2_skip")
        self.stamp(23)
        self.unpack(16, 20, 21)
        self.unpack(17, 22, 23)
        for k in range(4):
            a.I(f"v_add_f32 v{20+k}, 1.0, v{20+k}")
        self.bf16_round([20, 21, 22, 23], 6)
        self.unpack(14, 24, 25)
        self.unpack(15, 26, 27)
        self.unpack(12, 84, 85)
        self.unpack(13, 86, 87)
        self.unpack(18, 88, 89)
        self.unpack(19, 90, 91)
        self.tr_addr64(28, 6, 7)
        a.I("s_and_b32 s45, s44, 1")
        a.I("s_lshl_b32 s45, s45, 5")
        a.I("v_xor_b32 v28, s45, v28")
        a.I("s_bfe_u32 s45, s44, 0x10001")
        a.I("s_mul_i32 s45, s45, 40960")
        a.I("s_lshr_b32 s46, s44, 2")
        a.I(f"s_mul_i32 s47, s46, {7*2048}")
        a.I("s_add_u32 s45, s45, s47")
        a.I(f"s_add_u32 s45, s45, {L_W}")
        a.I("v_add_u32 v28, s45, v28")
        self.act_addr(29, 1344, 6)
        a.I(f"s_mul_i32 s47, s46, {7*64}")
        a.I(f"s_add_u32 s47, s47, {L_ACT}")
        a.I("v_add_u32 v29, s47, v29")
        self.red_lane_addr(30, 6)
        a.I("s_mul_i32 s47, s87, 1344")
        a.I(f"s_add_u32 s47, s47, {L_ACT}")
        a.I("v_lshl_add_u32 v31, v10, 3, s47")
        a.I("s_mul_i32 s45, s87, 1280")
        a.I(f"s_add_u32 s45, s45, {L_OPART}")
        a.I("v_lshl_add_u32 v92, v10, 3, s45")
        a.I("s_cmp_eq_u32 s88, 2")
        a.I("s_mov_b32 s45, 0x3b9d89d9")
        a.I("s_cselect_b32 s45, s45, 0x3b97b426")
        a.I("v_mov_b32 v93, s45")
        a.I("s_lshl_b32 s45, s44, 3")
        a.I(f"s_add_u32 s45, s45, {L_LNST}")
        a.I("v_mov_b32 v94, s45")
        a.I("s_mul_i32 s45, s87, 24")
        a.I(f"s_add_u32 s45, s45, {L_LNST}")
        a.I("v_mov_b32 v95, s45")
        a.I("s_waitcnt vmcnt(0)")
        a.I("s_barrier")
        self.stamp(9)
        self.mfma_preread(7, 28, 2048, 256, 96)
        a.I("v_lshrrev_b32 v9, 4, v5")
        a.I("v_bfe_u32 v8, v5, 2, 2")
        a.I("v_lshl_add_u32 v9, v9, 3, v8")
        a.I("v_mul_u32_u24 v9, 1280, v9")
        a.I("v_and_b32 v8, 3, v5")
        a.I("v_lshl_add_u32 v9, v8, 3, v9")
        a.I("s_lshl_b32 s45, s44, 5")
        a.I(f"s_add_u32 s45, s45, {L_WD}")
        a.I("v_add_u32 v9, s45, v9")
        for t in range(4):
            b = 124 + 4 * t
            off = 384 * t
            a.I(f"ds_read_b64_tr_b16 v[{b}:{b+1}], v9 offset:{off}")
            a.I(f"ds_read_b64_tr_b16 v[{b+2}:{b+3}], v9 offset:{off + 4*1280}")
        if self.cfg.ygate:
            a.I("s_and_b32 s45, s44, 7")
            a.I("s_mul_i32 s45, s45, 10240")
            a.I("v_add_u32 v6, s45, v32")
            self.poll(["buffer_load_dwordx4 v[44:47], v6, s[40:43], s86 offen sc1"], [44, 45, 46, 47], "L_pyg", pre=7)
        self.poll_sel(yloads, "L_py", 6)
        self.stamp(10)
        for (o_, d, q) in ((48, 48, 52), (56, 56, 60), (64, 64, 68), (72, 72, 76), (48, 48, 56), (64, 64, 72), (40, 48, 64)):
            a.I(f"v_pk_add_f32 v[{o_}:{o_+1}], v[{d}:{d+1}], v[{q}:{q+1}]")
            a.I(f"v_pk_add_f32 v[{o_+2}:{o_+3}], v[{d+2}:{d+3}], v[{q+2}:{q+3}]")
        o = [40, 41, 42, 43]
        self.bf16_round(o, 6)
        a.I("v_pk_mul_f32 v[40:41], v[40:41], v[84:85]")
        a.I("v_pk_mul_f32 v[42:43], v[42:43], v[86:87]")
        self.bf16_round(o, 6)
        a.I("v_pk_add_f32 v[40:41], v[40:41], v[88:89]")
        a.I("v_pk_add_f32 v[42:43], v[42:43], v[90:91]")
        a.I("v_cvt_pk_bf16_f32 v36, v40, v41")
        a.I("v_cvt_pk_bf16_f32 v37, v42, v43")
        self.unpack(36, 32, 33)
        self.unpack(37, 34, 35)
        a.I("s_mov_b64 exec, s[50:51]")
        a.I("ds_write_b64 v92, v[36:37]")
        a.I("s_mov_b64 exec, -1")
        a.I("v_readfirstlane_b32 s46, v32")
        for k in range(4):
            a.I(f"v_subrev_f32 v{40+k}, s46, v{32+k}")
        a.I("v_add_f32 v36, v40, v41")
        a.I("v_mul_f32 v37, v40, v40")
        a.I("v_add_f32 v38, v42, v43")
        a.I("v_fmac_f32 v37, v41, v41")
        a.I("v_add_f32 v36, v36, v38")
        a.I("v_fmac_f32 v37, v42, v42")
        a.I("v_fmac_f32 v37, v43, v43")
        a.I("v_cndmask_b32 v36, 0, v36, s[50:51]")
        a.I("v_cndmask_b32 v37, 0, v37, s[50:51]")
        for r in (8, 4, 2, 1):
            for v in (36, 37):
                a.I(f"v_add_f32_dpp v{v}, v{v}, v{v} row_ror:{r} row_mask:0xf bank_mask:0xf")
        for m in ("row_bcast:15 row_mask:0xa", "row_bcast:31 row_mask:0xc"):
            for v in (36, 37):
                a.I(f"v_add_f32_dpp v{v}, v{v}, v{v} {m} bank_mask:0xf")
        a.I("v_readlane_b32 s47, v36, 63")
        a.I("v_readlane_b32 s45, v37, 63")
        a.I("v_mul_f32 v38, s47, v93")
        a.I("v_mov_b32 v39, s45")
        a.I("v_add_f32 v37, s46, v38")
        a.I("v_mul_f32 v38, s47, v38")
        a.I("v_sub_f32 v38, v39, v38")
        a.I("ds_write_b32 v94, v37")
        a.I("ds_write_b32 v94, v38 offset:4")
        a.I("s_waitcnt lgkmcnt(0)")
        a.I("s_barrier")
        a.I("ds_read_b64 v[40:41], v95")
        a.I("ds_read_b64 v[42:43], v95 offset:8")
        a.I("ds_read_b64 v[44:45], v95 offset:16")
        a.I("s_waitcnt lgkmcnt(0)")
        a.I("v_add_f32 v46, v40, v42")
        a.I("v_mul_f32 v46, 0x43580000, v46")
        a.I("v_mov_b32 v47, 0x43500000")
        a.I("v_fmac_f32 v46, v47, v44")
        a.I("v_mul_f32 v46, 0x3acccccd, v46")
        a.I("v_sub_f32 v40, v40, v46")
        a.I("v_sub_f32 v42, v42, v46")
        a.I("v_sub_f32 v44, v44, v46")
        a.I("v_mul_f32 v40, v40, v40")
        a.I("v_fmac_f32 v40, v42, v42")
        a.I("v_mul_f32 v40, 0x43580000, v40")
        a.I("v_mul_f32 v44, v44, v44")
        a.I("v_fmac_f32 v40, v47, v44")
        a.I("v_add_f32 v40, v40, v41")
        a.I("v_add_f32 v40, v40, v43")
        a.I("v_add_f32 v40, v40, v45")
        a.I("v_mul_f32 v40, 0x3acccccd, v40")
        self.ln_denom(40, 48)
        a.I("v_cvt_pk_bf16_f32 v46, v46, v46")
        a.I("v_lshlrev_b32 v46, 16, v46")
        a.I("v_rcp_f32 v41, v40")
        o = [32, 33, 34, 35]
        for r in o:
            a.I(f"v_sub_f32 v{r}, v{r}, v46")
        self.bf16_round(o, 6)
        for r in o:
            self.div_by(r, 40, 41, 7)
        self.bf16_round(o, 6)
        for k, r in enumerate(o):
            a.I(f"v_mul_f32 v{r}, v{r}, v{20+k}")
        self.bf16_round(o, 6)
        for k, r in enumerate(o):
            a.I(f"v_add_f32 v{r}, v{r}, v{24+k}")
        a.I("v_cvt_pk_bf16_f32 v32, v32, v33")
        a.I("v_cvt_pk_bf16_f32 v33, v34, v35")
        a.I("s_mov_b64 exec, s[50:51]")
        a.I("ds_write_b64 v31, v[32:33]")
        a.I("s_mov_b64 exec, -1")
        a.I("s_waitcnt lgkmcnt(0)")
        a.I("s_barrier")
        a.I("s_cmp_ge_u32 s44, 8")
        a.I("s_cbranch_scc1 L_gu_m6")
        self.mfma_with_b(7, 96, 29, 40, 20)
        a.I("s_branch L_gu_mdone")
        a.label("L_gu_m6")
        a.fence(2)
        self.mfma_with_b(6, 96, 29, 40, 20)
        a.label("L_gu_mdone")
        a.fence(8)
        self.write_red(20, 30)
        a.I("s_cmp_lg_u32 s44, 0")
        a.I("s_cbranch_scc1 L_gu_done")
        a.I("v_lshlrev_b32 v6, 4, v5")
        for kt in range(3):
            a.I(f"ds_read_b128 v[{20+4*kt}:{23+4*kt}], v6 offset:{L_RED + 1024*kt}")
        a.I("s_waitcnt lgkmcnt(0)")
        for k in range(4):
            a.I(f"v_add_f32 v{20+k}, v{20+k}, v{24+k}")
        for k in range(4):
            a.I(f"v_add_f32 v{20+k}, v{20+k}, v{28+k}")
        self.bf16_round([20, 21, 22, 23], 6)
        for k in range(4):
            a.I(f"v_mov_b32 v{24+k}, v{20+k}")
        for k in range(4):
            a.I(f"v_permlane32_swap_b32 v{20+k}, v{24+k}")
        for k in range(4):
            a.I(f"v_mul_f32 v{20+k}, v{20+k}, v{24+k}")
        a.I("v_cvt_pk_bf16_f32 v20, v20, v21")
        a.I("v_cvt_pk_bf16_f32 v21, v22, v23")
        a.I("v_and_b32 v6, 3, v5")
        a.I("v_lshlrev_b32 v6, 6, v6")
        a.I("v_bfe_u32 v7, v5, 2, 3")
        a.I("v_lshl_add_u32 v6, v7, 3, v6")
        a.I("s_mov_b32 exec_lo, -1"); a.I("s_mov_b32 exec_hi, 0")
        a.I(f"ds_write_b64 v6, v[20:21] offset:{L_QV}")
        a.I("s_mov_b64 exec, -1")
        a.I("s_waitcnt lgkmcnt(0)")
        a.label("L_gu_done")
        a.I("s_barrier")
        a.I("v_and_b32 v6, 3, v5")
        a.I("v_lshlrev_b32 v6, 6, v6")
        a.I("v_lshrrev_b32 v7, 4, v5")
        a.I("v_lshl_add_u32 v6, v7, 4, v6")
        a.I(f"ds_read_b128 v[40:43], v6 offset:{L_QV}")
        a.I("v_and_b32 v6, 3, v5")
        a.I("v_lshlrev_b32 v6, 6, v6")
        a.I("v_lshl_add_u32 v6, v7, 4, v6")
        a.I("s_mul_i32 s45, s44, 12288")
        a.I(f"s_lshl_b32 s46, s{S_NB}, 8")
        a.I("s_add_u32 s45, s45, s46")
        a.I(f"s_add_u32 s45, s45, {WS_PD}")
        a.I("s_waitcnt lgkmcnt(0)")
        for t in range(4):
            a.I(f"v_mfma_f32_16x16x32_bf16 v[{44+4*t}:{47+4*t}], v[{124+4*t}:{127+4*t}], v[40:43], 0")
        a.I(f"s_mov_b32 exec_lo, 0x{MASK_N4_LO:x}")
        a.I(f"s_mov_b32 exec_hi, 0x{MASK_N4_LO:x}")
        for t in range(4):
            if t == 3:
                a.I("s_cmp_ge_u32 s44, 4")
                a.I("s_cbranch_scc1 L_gu_st_done")
            self.canon([44+4*t+k for k in range(4)], 12)
            a.I(f"buffer_store_dwordx4 v[{44+4*t}:{47+4*t}], v6, s[40:43], s45 offen sc1")
            if t < 3:
                a.I(f"s_add_u32 s45, s45, {12*12288}")
        a.label("L_gu_st_done")
        a.I("s_mov_b64 exec, -1")
        self.stamp(11)

    def post_final(self):
        a = self.a
        a.fence(2)
        a.I("v_lshlrev_b32 v10, 4, v5")
        a.I(f"s_mul_i32 s47, s{S_DT}, 12288")
        a.I("s_lshl_b32 s45, s44, 10")
        a.I("s_add_u32 s47, s47, s45")
        a.I(f"s_add_u32 s47, s47, {WS_PD}")
        a.I("v_bfe_u32 v12, v5, 2, 2")
        a.I("v_and_b32 v13, 3, v5")
        a.I("v_mul_u32_u24 v14, 7680, v12")
        a.I("v_lshl_add_u32 v14, v13, 3, v14")
        a.I(f"s_lshl_b32 s45, s{S_DT}, 5")
        a.I(f"s_add_u32 s46, s45, {WS_MOD + 6400}")
        a.I("v_mul_u32_u24 v31, 1280, v12")
        a.I("v_lshl_add_u32 v31, v13, 3, v31")
        a.I(f"s_add_u32 s45, s45, {L_OPART}")
        a.I("v_add_u32 v31, s45, v31")
        a.I("v_and_b32 v30, 15, v5")
        a.I("v_lshlrev_b32 v30, 4, v30")
        a.I("s_lshl_b32 s45, s44, 8")
        a.I(f"s_add_u32 s45, s45, {L_RED}")
        a.I("v_add_u32 v29, s45, v30")
        self.stamp(19)
        self.poll(["buffer_load_dwordx4 v[40:43], v10, s[40:43], s47 offen sc1",
                   "buffer_load_dwordx2 v[22:23], v14, s[40:43], s46 offen sc1"], [40, 41, 42, 43, 22, 23], "L_ph", pre=6)
        self.stamp(20)
        for sw in ("v_permlane32_swap_b32", "v_permlane16_swap_b32"):
            for k in range(4):
                a.I(f"v_mov_b32 v{44+k}, v{40+k}")
            for k in range(4):
                a.I(f"{sw} v{40+k}, v{44+k}")
            for k in range(4):
                a.I(f"v_add_f32 v{40+k}, v{40+k}, v{44+k}")
        a.I("s_mov_b32 exec_lo, 0xffff"); a.I("s_mov_b32 exec_hi, 0")
        a.I("ds_write_b128 v29, v[40:43]")
        a.I("s_mov_b64 exec, -1")
        a.I("s_waitcnt lgkmcnt(0)")
        a.I("s_barrier")
        a.I("s_cmp_lg_u32 s44, 0")
        a.I("s_cbranch_scc1 L_dn_done")
        a.I("v_lshrrev_b32 v6, 4, v5")
        a.I("v_mul_u32_u24 v6, 768, v6")
        a.I("v_add_u32 v6, v6, v30")
        for k in range(3):
            a.I(f"ds_read_b128 v[{40+4*k}:{43+4*k}], v6 offset:{L_RED + 256*k}")
        a.I("ds_read_b64 v[32:33], v31")
        self.srd(36, 26, 5120)
        a.I("s_waitcnt lgkmcnt(0)")
        for k in range(4):
            a.I(f"v_add_f32 v{40+k}, v{40+k}, v{44+k}")
        for k in range(4):
            a.I(f"v_add_f32 v{40+k}, v{40+k}, v{48+k}")
        for sw in ("v_permlane32_swap_b32", "v_permlane16_swap_b32"):
            for k in range(4):
                a.I(f"v_mov_b32 v{44+k}, v{40+k}")
            for k in range(4):
                a.I(f"{sw} v{40+k}, v{44+k}")
            for k in range(4):
                a.I(f"v_add_f32 v{40+k}, v{40+k}, v{44+k}")
        o = [40, 41, 42, 43]
        self.bf16_round(o, 6)
        self.unpack(22, 24, 25)
        self.unpack(23, 26, 27)
        for k in range(4):
            a.I(f"v_mul_f32 v{40+k}, v{40+k}, v{24+k}")
        self.bf16_round(o, 6)
        self.unpack(32, 24, 25)
        self.unpack(33, 26, 27)
        for k in range(4):
            a.I(f"v_add_f32 v{40+k}, v{40+k}, v{24+k}")
        a.I("v_cvt_pk_bf16_f32 v40, v40, v41")
        a.I("v_cvt_pk_bf16_f32 v41, v42, v43")
        a.I("v_mul_u32_u24 v6, 1280, v12")
        a.I("v_lshl_add_u32 v6, v13, 3, v6")
        a.I(f"s_lshl_b32 s45, s{S_DT}, 5")
        a.I("s_mov_b32 exec_lo, 0xffff"); a.I("s_mov_b32 exec_hi, 0")
        a.I("buffer_store_dwordx2 v[40:41], v6, s[36:39], s45 offen")
        a.I("s_mov_b64 exec, -1")
        a.label("L_dn_done")
        self.stamp(21)

    def tail(self):
        a = self.a
        a.label("L_tail")
        if self.cfg.dbgt:
            a.fence(4)
            a.I("s_cmp_eq_u32 s44, 0")
            a.I("s_cbranch_scc0 L_end")
            self.stamp(13)
            a.I("s_mov_b64 exec, 1")
            a.I("s_not_b32 s98, s98")
            for i, r in enumerate((98, 77, 72, 66, 64 + 4, 64 + 6)):
                a.I(f"v_mov_b32 v6, {16 + 4*i}")
                a.I(f"v_mov_b32 v7, s{r}")
                a.I("global_atomic_umax v6, v7, s[28:29] sc1")
            a.I("s_branch L_end")
        if self.diag and not self.cfg.dbgt:
            a.fence(4)
            self.stamp(13)
            a.I(f"s_lshl_b32 s79, s{S_PRE}, 4")
            a.I(f"s_or_b32 s79, s79, s{S_POST}")
            a.I("s_mul_i32 s45, s2, 12")
            a.I("s_add_u32 s45, s45, s44")
            a.I("s_lshl_b32 s45, s45, 7")
            a.I(f"s_add_u32 s45, s45, {WS_DBG}")
            a.I("s_mov_b64 exec, 1")
            a.I("v_mov_b32 v6, 0")
            regs = [64 + k for k in range(16)] + [93 + k for k in range(8)]
            for q in range(6):
                for k in range(4):
                    a.I(f"v_mov_b32 v{8+k}, s{regs[4*q+k]}")
                a.I(f"buffer_store_dwordx4 v[8:11], v6, s[40:43], s45 offen offset:{16*q}")
                a.I("s_nop 1")
        a.label("L_end")
        a.I("s_endpgm")
        a.raw(f""".section .rodata,"a"
.p2align 6
.amdhsa_kernel {self.name}
  .amdhsa_next_free_vgpr 168
  .amdhsa_next_free_sgpr 102
  .amdhsa_accum_offset 168
  .amdhsa_group_segment_fixed_size 0
  .amdhsa_float_denorm_mode_32 3
  .amdhsa_kernarg_size 112
  .amdhsa_user_sgpr_count 2
  .amdhsa_user_sgpr_kernarg_segment_ptr 1
  .amdhsa_system_sgpr_workgroup_id_x 1
.end_amdhsa_kernel""")

    def build(self):
        self.entry()
        self.helper()
        self.a.I("s_branch L_post")
        self.stream()
        self.post()
        self.tail()
        return self.a.text()


def make(path, diag=False, name=KNAME, **kw):
    cfg = StreamCfg()
    for k, v in kw.items():
        setattr(cfg, k, v)
    g = Gen(cfg, diag=diag, name=name)
    txt = g.build()
    open(path, 'w').write(txt)
    return g


if __name__ == '__main__':
    out = sys.argv[1]
    kw = {}
    diag = False
    name = KNAME
    for kv in sys.argv[2:]:
        k, v = kv.split('=')
        if k == 'diag': diag = bool(int(v))
        elif k == 'name': name = v
        else: kw[k] = v.replace('_', ' ').replace('none', '') if k in ('nt', 'pfpol', 'ntV', 'ntW') else int(v)
    g = make(out, diag=diag, name=name, **kw)
    print(out, 'nops', g.a.nops)
```

```python
from asmdsl import Asm

LOG2E = 0x3fb8aa3b
SCALE = 0x3d93cd3a

R0 = 8
D = 38


def slot(i):
    return R0 + 4 * (i % D)


def hole(i):
    return R0 + 4 * i + 3


V_OFF = 1
V_Q = (2, 3, 4)
V_LANE = 5
V_T0, V_T1 = 6, 7
A_ = (hole(0), hole(1))
B_ = (hole(2), hole(3))
C_ = (hole(4), hole(5))
D_ = (hole(6), hole(7), hole(8), hole(9))
E_ = (hole(10), hole(11))
TT = (hole(12), hole(13))
V_PADDR = hole(14)
V_PW = hole(15)
V_X = [hole(16 + i) for i in range(6)]
SC = tuple(hole(22 + i) for i in range(4))
ACC = tuple(hole(26 + i) for i in range(6))
PG = (160, 164)
PTX = (hole(32), hole(33), hole(34), hole(35))
V_TK = hole(0)
PT = PTX


def set_depth(d):
    global D
    assert 36 <= d <= 38 or d == 32
    D = d


class StreamCfg:
    D = 32
    NB0 = 0
    W = 12
    W0 = 5
    late_skip = True
    WV = 64
    nt = 'nt'
    ntV = None
    ntW = 'nt'
    codepf = 0
    N1 = 4
    outpol = ''
    pfs = 0
    xp = 0
    dbgt = 0
    pad = 0
    pf = 0
    pfpol = ''
    PW = 2
    ygate = 0
    early_w = 0
    WW = 3
    WX = 12
    DX = 24
    hop = 14
    TJ = 44
    pw_early = 0
    gate = 0
    pretouch = 0


def emit_issue(a, cfg, u, S):
    srd = S['srdK'] if u < 128 else S['srdV']
    if u == 128:
        a.I(f"s_mov_b32 s{S['soff']}, 0")
    s = slot(u)
    pol = cfg.nt if u < 128 else (cfg.ntV if cfg.ntV is not None else cfg.nt)
    a.vmem(f"buffer_load_dwordx3 v[{s}:{s+2}], v{V_OFF}, s[{srd}:{srd+3}], s{S['soff']} offen {pol}", ('ld', u))
    if u not in (127, 255):
        a.I(f"s_addk_i32 s{S['soff']}, 6144")


def stream_prologue(a, cfg, S):
    a.comment('stream prologue')
    a.I(f"v_and_b32 v{V_LANE}, 63, v0")
    a.I(f"s_mul_i32 s{S['tmp']}, s{S['wave']}, 768")
    a.I(f"v_mul_u32_u24 v{V_OFF}, 12, v{V_LANE}")
    a.I(f"v_add_u32 v{V_OFF}, s{S['tmp']}, v{V_OFF}")
    a.I(f"s_mov_b32 s{S['soff']}, 0")
    a.vm_reset()
    for u in range(D):
        if u in S.get('hook_before', {}):
            S['hook_before'][u]()
        if u >= cfg.W0:
            a.vm_window(cfg.W0 - 1)
        emit_issue(a, cfg, u, S)
        if u == S.get('b0_after', -1):
            a.I('s_barrier')
    return D


def k_tree(a, t, S):
    i = t % 32
    if i % 2 == 1:
        a.I(f"v_permlane16_swap_b32 v{A_[0]}, v{A_[1]}")
        a.I(f"v_add_f32 v{B_[(i >> 1) & 1]}, v{A_[0]}, v{A_[1]}")
    if i % 4 == 3:
        c = C_[(i >> 2) & 1]
        a.I(f"v_add_f32_dpp v{c}, v{B_[0]}, v{B_[0]} row_ror:8 row_mask:0xf bank_mask:0x3")
        a.I(f"v_add_f32_dpp v{c}, v{B_[1]}, v{B_[1]} row_ror:8 row_mask:0xf bank_mask:0xc")
    if i % 8 == 7:
        d = D_[i >> 3]
        a.I(f"v_add_f32_dpp v{d}, v{C_[0]}, v{C_[0]} row_half_mirror row_mask:0xf bank_mask:0x5")
        a.I(f"v_add_f32_dpp v{d}, v{C_[1]}, v{C_[1]} row_half_mirror row_mask:0xf bank_mask:0xa")
    if i % 16 == 15:
        k = i >> 4
        d0, d1 = D_[2 * k], D_[2 * k + 1]
        a.I(f"v_add_f32_dpp v{TT[0]}, v{d0}, v{d0} quad_perm:[1,0,3,2] row_mask:0xf bank_mask:0xf")
        a.I(f"v_add_f32_dpp v{TT[1]}, v{d1}, v{d1} quad_perm:[1,0,3,2] row_mask:0xf bank_mask:0xf")
        a.I(f"v_cndmask_b32 v{E_[k]}, v{TT[0]}, v{TT[1]}, s[{S['mask0']}:{S['mask0']+1}]")
    if i == 31:
        a.I(f"v_add_f32_dpp v{TT[0]}, v{E_[0]}, v{E_[0]} quad_perm:[2,3,0,1] row_mask:0xf bank_mask:0xf")
        a.I(f"v_add_f32_dpp v{TT[1]}, v{E_[1]}, v{E_[1]} quad_perm:[2,3,0,1] row_mask:0xf bank_mask:0xf")
        a.I(f"v_cndmask_b32 v{SC[t // 32]}, v{TT[0]}, v{TT[1]}, s[{S['mask1']}:{S['mask1']+1}]")


def wave_reduce(a, op, v, sdst):
    for r in (8, 4, 2, 1):
        a.I(f"{op}_dpp v{v}, v{v}, v{v} row_ror:{r} row_mask:0xf bank_mask:0xf")
    a.I(f"{op}_dpp v{v}, v{v}, v{v} row_bcast:15 row_mask:0xa bank_mask:0xf")
    a.I(f"{op}_dpp v{v}, v{v}, v{v} row_bcast:31 row_mask:0xc bank_mask:0xf")
    a.I(f"v_readlane_b32 s{sdst}, v{v}, 63")


def round_bf16_pairs(a, regs, tmp):
    a.I(f"v_cvt_pk_bf16_f32 v{tmp[0]}, v{regs[0]}, v{regs[1]}")
    a.I(f"v_cvt_pk_bf16_f32 v{tmp[1]}, v{regs[2]}, v{regs[3]}")
    a.I(f"v_lshlrev_b32 v{regs[0]}, 16, v{tmp[0]}")
    a.I(f"v_and_b32 v{regs[1]}, 0xffff0000, v{tmp[0]}")
    a.I(f"v_lshlrev_b32 v{regs[2]}, 16, v{tmp[1]}")
    a.I(f"v_and_b32 v{regs[3]}, 0xffff0000, v{tmp[1]}")


def stream_main(a, cfg, S, L, issued, stamp=None):
    stamp = stamp or (lambda k: None)
    a.I(f"s_mov_b32 s{S['mask0']}, 0xaaaaaaaa")
    a.I(f"s_mov_b32 s{S['mask0']+1}, 0xaaaaaaaa")
    a.I(f"s_mov_b32 s{S['mask1']}, 0xcccccccc")
    a.I(f"s_mov_b32 s{S['mask1']+1}, 0xcccccccc")
    a.I(f"s_mov_b32 s{S['sello']}, 0x05040100")
    a.I(f"s_mov_b32 s{S['selhi']}, 0x07060302")
    a.I(f"s_mov_b32 s{S['log2e']}, 0x{LOG2E:x}")
    a.I(f"v_and_b32 v{V_T0}, 31, v{V_LANE}")
    a.I(f"v_mul_u32_u24 v{V_T0}, 12, v{V_T0}")
    a.I(f"v_lshrrev_b32 v{V_T1}, 5, v{V_LANE}")
    a.I(f"v_lshlrev_b32 v{V_PADDR}, 8, v{V_T1}")
    a.I(f"s_lshl_b32 s{S['tmp']}, s{S['wave']}, 9")
    a.I(f"s_add_u32 s{S['tmp']}, s{S['tmp']}, {L['P']}")
    a.I(f"v_add_u32 v{V_PADDR}, s{S['tmp']}, v{V_PADDR}")
    x = V_X
    a.I(f"v_bfe_u32 v{x[0]}, v{V_LANE}, 4, 1")
    a.I(f"v_lshl_add_u32 v{V_PW}, v{x[0]}, 1, v{V_PADDR}")
    a.I(f"v_bfe_u32 v{x[0]}, v{V_LANE}, 3, 1")
    a.I(f"v_lshl_add_u32 v{V_PW}, v{x[0]}, 2, v{V_PW}")
    a.I(f"v_bfe_u32 v{x[0]}, v{V_LANE}, 2, 1")
    a.I(f"v_lshl_add_u32 v{V_PW}, v{x[0]}, 3, v{V_PW}")
    a.I(f"v_bfe_u32 v{x[0]}, v{V_LANE}, 0, 1")
    a.I(f"v_lshl_add_u32 v{V_PW}, v{x[0]}, 4, v{V_PW}")
    a.I(f"v_bfe_u32 v{x[0]}, v{V_LANE}, 1, 1")
    a.I(f"v_lshl_add_u32 v{V_PW}, v{x[0]}, 5, v{V_PW}")
    for k in range(6):
        a.I(f"v_mov_b32 v{ACC[k]}, 0")
    stamp(1)
    a.I('s_barrier')
    stamp(2)
    a.I(f"ds_read_b32 v{V_Q[0]}, v{V_T0} offset:{L['QV']}")
    a.I(f"ds_read_b32 v{V_Q[1]}, v{V_T0} offset:{L['QV']+4}")
    a.I(f"ds_read_b32 v{V_Q[2]}, v{V_T0} offset:{L['QV']+8}")
    a.I('s_waitcnt lgkmcnt(0)')

    W = cfg.W
    pend = None
    for t in range(128):
        s = slot(t)
        a.vm_wait(('ld', t))
        leaf = A_[t & 1]
        a.I(f"v_dot2_f32_bf16 v{leaf}, v{s}, v{V_Q[0]}, 0")
        a.I(f"v_dot2c_f32_bf16 v{leaf}, v{s+1}, v{V_Q[1]}") if False else a.I(f"v_dot2_f32_bf16 v{leaf}, v{s+1}, v{V_Q[1]}, v{leaf}")
        a.I(f"v_dot2_f32_bf16 v{leaf}, v{s+2}, v{V_Q[2]}, v{leaf}")
        if cfg.late_skip:
            target = min(t + D, 127 + W)
        else:
            target = max(D - 1, t + W)
        while issued <= target:
            emit_issue(a, cfg, issued, S)
            issued += 1
        k_tree(a, t, S)
        for _ in range(cfg.pad):
            a.I("s_mov_b32 s63, 0x12345")
    stamp(3)
    sc = list(SC)
    round_bf16_pairs(a, sc, (V_T0, V_T1))
    a.I(f"s_mov_b32 s{S['tmp']}, 0x{SCALE:x}")
    for r in sc:
        a.I(f"v_mul_f32 v{r}, s{S['tmp']}, v{r}")
    round_bf16_pairs(a, sc, (V_T0, V_T1))
    a.I(f"v_max_f32 v{V_T0}, v{sc[0]}, v{sc[1]}")
    a.I(f"v_max3_f32 v{V_T0}, v{V_T0}, v{sc[2]}, v{sc[3]}")
    wave_reduce(a, 'v_max_f32', V_T0, S['m'])
    for k, r in enumerate(sc):
        a.I(f"v_subrev_f32 v{x[k]}, s{S['m']}, v{r}")
    for k in range(4):
        a.I(f"v_mul_f32 v{x[k]}, s{S['log2e']}, v{x[k]}")
    for k in range(4):
        a.I(f"v_exp_f32 v{x[k]}, v{x[k]}")
    a.I(f"v_add_f32 v{V_T0}, v{x[0]}, v{x[1]}")
    a.I(f"v_add_f32 v{V_T1}, v{x[2]}, v{x[3]}")
    a.I(f"v_add_f32 v{V_T0}, v{V_T0}, v{V_T1}")
    wave_reduce(a, 'v_add_f32', V_T0, S['l'])
    a.I(f"s_lshl_b32 s{S['tmp']}, s{S['wave']}, 3")
    a.I(f"s_add_u32 s{S['tmp']}, s{S['tmp']}, {L['STATS']}")
    a.I(f"v_mov_b32 v{x[4]}, s{S['m']}")
    a.I(f"v_mov_b32 v{x[5]}, s{S['l']}")
    a.I(f"v_mov_b32 v{V_T0}, s{S['tmp']}")
    a.I(f"ds_write_b32 v{V_T0}, v{x[4]}")
    a.I(f"ds_write_b32 v{V_T0}, v{x[5]} offset:4")
    a.I('s_waitcnt lgkmcnt(0)')
    a.I('s_barrier')
    stamp(4)
    while issued <= 127 + min(D, cfg.DX):
        a.vm_window(cfg.WX - 1)
        emit_issue(a, cfg, issued, S)
        issued += 1
    stamp(5)
    a.I('s_barrier')
    stamp(6)
    a.I(f"v_mov_b32 v{V_T0}, {L['FIN']}")
    a.I(f"ds_read_b64 v[{PG[1]}:{PG[1]+1}], v{V_T0}")
    a.I('s_waitcnt lgkmcnt(0)')
    for k, r in enumerate(sc):
        a.I(f"v_sub_f32 v{x[k]}, v{r}, v{PG[1]}")
    for k in range(4):
        a.I(f"v_mul_f32 v{x[k]}, s{S['log2e']}, v{x[k]}")
    for k in range(4):
        a.I(f"v_exp_f32 v{x[k]}, v{x[k]}")
    for k in range(4):
        a.I(f"v_mul_f32 v{x[k]}, v{x[k]}, v{PG[1]+1}")
    a.I(f"v_cvt_pk_bf16_f32 v{x[4]}, v{x[0]}, v{x[1]}")
    a.I(f"v_cvt_pk_bf16_f32 v{x[5]}, v{x[2]}, v{x[3]}")
    a.I(f"ds_write_b16 v{V_PW}, v{x[4]}")
    a.I(f"ds_write_b16_d16_hi v{V_PW}, v{x[4]} offset:64")
    a.I(f"ds_write_b16 v{V_PW}, v{x[5]} offset:128")
    a.I(f"ds_write_b16_d16_hi v{V_PW}, v{x[5]} offset:192")
    a.I(f"ds_read_b128 v[{PG[0]}:{PG[0]+3}], v{V_PADDR}")
    a.I(f"ds_read_b128 v[{PG[1]}:{PG[1]+3}], v{V_PADDR} offset:16")

    for j in range(64):
        g = j // 4
        if j % 4 == 0:
            a.I('s_waitcnt lgkmcnt(1)' if g + 1 < 16 else 's_waitcnt lgkmcnt(0)')
        P = PG[g & 1] + (j % 4)
        t0, t1 = 128 + 2 * j, 128 + 2 * j + 1
        s0, s1 = slot(t0), slot(t1)
        a.vm_wait(('ld', t1))
        for k in range(3):
            tl, th = PT[(2 * k) % 4], PT[(2 * k + 1) % 4]
            a.I(f"v_perm_b32 v{tl}, v{s1+k}, v{s0+k}, s{S['sello']}")
            a.I(f"v_perm_b32 v{th}, v{s1+k}, v{s0+k}, s{S['selhi']}")
            a.I(f"v_dot2c_f32_bf16 v{ACC[2*k]}, v{tl}, v{P}")
            a.I(f"v_dot2c_f32_bf16 v{ACC[2*k+1]}, v{th}, v{P}")
        if j % 4 == 3 and g + 2 < 16:
            a.I(f"ds_read_b128 v[{PG[g & 1]}:{PG[g & 1]+3}], v{V_PADDR} offset:{16*(g+2)}")
        if j == cfg.TJ and not cfg.early_w:
            lab = a.newlabel('tk')
            a.I(f"s_cmp_eq_u32 s{S['wave']}, 0")
            a.I(f"s_cbranch_scc0 {lab}")
            a.I(f"v_mov_b32 v{V_T0}, {L['TICKET'] + 4}")
            a.I(f"v_mov_b32 v{V_T1}, 1")
            a.I(f"ds_write_b32 v{V_T0}, v{V_T1}")
            a.label(lab)
            lg_extra = True
        for _ in range(2 * cfg.pad):
            a.I("s_mov_b32 s63, 0x12345")
        target = min(255, t1 + min(cfg.WV, D))
        while issued <= target:
            emit_issue(a, cfg, issued, S)
            issued += 1
    stamp(7)
    for k in range(3):
        a.I(f"v_permlane32_swap_b32 v{ACC[k]}, v{ACC[k+3]}")
        a.I(f"v_add_f32 v{ACC[k]}, v{ACC[k]}, v{ACC[k+3]}")
    a.I(f"v_and_b32 v{V_T0}, 31, v{V_LANE}")
    a.I(f"v_mul_u32_u24 v{V_T0}, 24, v{V_T0}")
    a.I(f"v_lshrrev_b32 v{V_T1}, 5, v{V_LANE}")
    a.I(f"v_mad_u32_u24 v{V_T0}, v{V_T1}, 12, v{V_T0}")
    a.I(f"s_mul_i32 s{S['tmp']}, s{S['wave']}, 768")
    a.I(f"s_add_u32 s{S['tmp']}, s{S['tmp']}, {L['OPART']}")
    a.I(f"v_add_u32 v{V_T0}, s{S['tmp']}, v{V_T0}")
    for k in range(3):
        a.I(f"ds_write_b32 v{V_T0}, v{ACC[k]} offset:{4*k}")
    a.I('s_waitcnt lgkmcnt(0)')
    a.I('s_barrier')
    stamp(8)
```

```python
import sys
sys.path.insert(0, 'gen')
from asmdsl import Asm
import stream as st
from stream import StreamCfg, LOG2E

KNAME = 'adaLN_cond__gqa_block_cached__glu_gated_bilinear__decode_kernel'

WS_MOD, WS_Q, WS_ML, WS_O, WS_Y, WS_PD, WS_DBG = 0, 0x8000, 0x38000, 0x40000, 0x70000, 0x84000, 0x100000
WS_SIZE = 0x200000
L_ACT = 0x0000
L_RED = 0x3200
L_QV = 0x4200
L_STATS = 0x4400
L_FIN = 0x4480
L_HFLAG = 0x4500
L_LNST = 0x4540
L_P = 0x4600
L_OPART = 0x5600
L_W = 0x7000
L_WD = L_W + 81920
L_X1 = 0x6E00
LDS_BYTES = L_W + 81920 + 40960 + 512
LDS = dict(QV=L_QV, STATS=L_STATS, FIN=L_FIN, P=L_P, OPART=L_OPART, TICKET=L_FIN + 8)

SPIN_MAX = 1 << 16
NANF = 0x7fc00000
NANB = 0x7fc07fc0
EPS = 0x3727c5ac

S = dict(srdK=32, srdV=36, srdW=40, wave=44, tmp=45, soff=46, mask0=48, mask1=50, sello=52, selhi=53, log2e=54,
         m=55, l=56, b=57, h=58, half=59, spin=62)
S_PRE, S_BAND, S_POST, S_NB, S_KG = 80, 81, 82, 83, 84
S_KH, S_LATE, S_PHASE, S_DT = 89, 90, 91, 92
MASK_N4_LO = 0x000f000f


class Gen:
    def __init__(self, cfg, diag=False, name=KNAME):
        self.a = Asm()
        self.cfg = cfg
        self.diag = diag
        self.name = name

    def stamp(self, k):
        if not self.diag:
            return
        a = self.a
        a.I("s_memrealtime s[60:61]")
        a.I("s_waitcnt lgkmcnt(0)")
        a.I(f"s_mov_b32 s{64+k if k < 16 else 93+k-16}, s60")

    def srd(self, dst, ptr, size, off=None):
        a = self.a
        if off is None:
            a.I(f"s_mov_b32 s{dst}, s{ptr}")
            a.I(f"s_mov_b32 s{dst+1}, s{ptr+1}")
        else:
            a.I(f"s_add_u32 s{dst}, s{ptr}, s{off}")
            a.I(f"s_addc_u32 s{dst+1}, s{ptr+1}, 0")
        a.I(f"s_mov_b32 s{dst+2}, {size}")
        a.I(f"s_mov_b32 s{dst+3}, 0x20000")

    def canon(self, regs, nanreg=None):
        a = self.a
        for r in regs:
            a.I(f"v_min_u32 v{r}, -2, v{r}")

    def poll_sel(self, loads, label, t, first_issued=False):
        a = self.a
        n = len(loads)
        a.I(f"s_mov_b32 s63, {(1 << n) - 1}")
        a.I("s_mov_b32 s62, 0")
        if first_issued:
            a.I(f"s_branch {label}_chk")
        a.label(label)
        for i, (ld, regs) in enumerate(loads):
            a.I(f"s_bitcmp1_b32 s63, {i}")
            a.I(f"s_cbranch_scc0 {label}_s{i}")
            a.I(ld)
            a.label(f"{label}_s{i}")
        a.label(f"{label}_chk")
        a.I("s_add_u32 s62, s62, 1")
        a.I("s_waitcnt vmcnt(0)")
        for i, (ld, regs) in enumerate(loads):
            r = regs
            a.I(f"v_max3_u32 v{t}, v{r[0]}, v{r[1]}, v{r[2]}")
            a.I(f"v_max_u32 v{t}, v{t}, v{r[3]}")
            a.I(f"v_cmp_eq_u32 vcc, -1, v{t}")
            a.I("s_cmp_eq_u64 vcc, 0")
            a.I(f"s_cbranch_scc0 {label}_p{i}")
            a.I(f"s_bitset0_b32 s63, {i}")
            a.label(f"{label}_p{i}")
        a.I("s_cmp_eq_u32 s63, 0")
        a.I(f"s_cbranch_scc1 {label}_ok")
        a.I(f"s_cmp_lt_u32 s62, {SPIN_MAX}")
        a.I(f"s_cbranch_scc1 {label}")
        a.label(f"{label}_ok")

    def poll(self, loads, regs, label, pre=None):
        a = self.a
        a.I("s_mov_b32 s62, 0")
        a.label(label)
        for ld in loads:
            a.I(ld)
        a.I("s_add_u32 s62, s62, 1")
        a.I("s_waitcnt vmcnt(0)")
        rs = list(regs)
        t = pre
        first = True
        i = 0
        while i < len(rs):
            if first:
                if len(rs) >= 3:
                    a.I(f"v_max3_u32 v{t}, v{rs[0]}, v{rs[1]}, v{rs[2]}"); i = 3
                elif len(rs) == 2:
                    a.I(f"v_max_u32 v{t}, v{rs[0]}, v{rs[1]}"); i = 2
                else:
                    a.I(f"v_mov_b32 v{t}, v{rs[0]}"); i = 1
                first = False
            elif i + 1 < len(rs):
                a.I(f"v_max3_u32 v{t}, v{t}, v{rs[i]}, v{rs[i+1]}"); i += 2
            else:
                a.I(f"v_max_u32 v{t}, v{t}, v{rs[i]}"); i += 1
        a.I(f"v_cmp_eq_u32 vcc, -1, v{t}")
        a.I("s_cmp_eq_u64 vcc, 0")
        a.I(f"s_cbranch_scc1 {label}_ok")
        a.I(f"s_cmp_lt_u32 s62, {SPIN_MAX}")
        a.I(f"s_cbranch_scc1 {label}")
        a.label(f"{label}_ok")

    def poll_counter(self, off, expect, label, vz, vt):
        a = self.a
        a.I(f"v_mov_b32 v{vz}, {off}")
        a.I("s_mov_b32 s62, 0")
        a.I("s_mov_b64 exec, 1")
        a.label(label)
        a.I(f"global_load_dword v{vt}, v{vz}, s[28:29] sc1")
        a.I("s_add_u32 s62, s62, 1")
        a.I("s_waitcnt vmcnt(0)")
        a.I(f"v_readfirstlane_b32 s45, v{vt}")
        a.I(f"s_cmp_ge_u32 s45, {expect}")
        a.I(f"s_cbranch_scc1 {label}_ok")
        a.I(f"s_cmp_lt_u32 s62, {SPIN_MAX}")
        a.I(f"s_cbranch_scc1 {label}")
        a.label(f"{label}_ok")
        a.I("s_mov_b64 exec, -1")

    def hsync(self, k, label, vz, vt):
        a = self.a
        a.I("s_waitcnt lgkmcnt(0)")
        a.I("s_lshl_b32 s45, s44, 2")
        a.I(f"s_add_u32 s45, s45, {L_HFLAG}")
        a.I(f"v_mov_b32 v{vz}, s45")
        a.I(f"v_mov_b32 v{vt}, {k}")
        a.I(f"ds_write_b32 v{vz}, v{vt}")
        a.I(f"v_mov_b32 v{vz}, {L_HFLAG}")
        a.I("s_mov_b32 s62, 0")
        a.label(label)
        a.I(f"ds_read_b128 v[{vt}:{vt+3}], v{vz}")
        a.I("s_add_u32 s62, s62, 1")
        a.I("s_waitcnt lgkmcnt(0)")
        a.I(f"v_min3_u32 v{vt}, v{vt}, v{vt+1}, v{vt+2}")
        a.I(f"v_min_u32 v{vt}, v{vt}, v{vt+3}")
        a.I(f"v_readfirstlane_b32 s45, v{vt}")
        a.I(f"s_cmp_ge_u32 s45, {k}")
        a.I(f"s_cbranch_scc1 {label}_ok")
        a.I(f"s_cmp_lt_u32 s62, {SPIN_MAX*4}")
        a.I(f"s_cbranch_scc1 {label}")
        a.label(f"{label}_ok")

    def bf16_round(self, regs, tmp):
        a = self.a
        for i in range(0, len(regs), 2):
            a.I(f"v_cvt_pk_bf16_f32 v{tmp}, v{regs[i]}, v{regs[i+1]}")
            a.I(f"v_lshlrev_b32 v{regs[i]}, 16, v{tmp}")
            a.I(f"v_and_b32 v{regs[i+1]}, 0xffff0000, v{tmp}")

    def unpack(self, src, lo, hi):
        a = self.a
        a.I(f"v_lshlrev_b32 v{lo}, 16, v{src}")
        a.I(f"v_and_b32 v{hi}, 0xffff0000, v{src}")

    def wave_sum_bcast(self, v, sdst):
        st.wave_reduce(self.a, 'v_add_f32', v, sdst)

    def ln_denom(self, vvar, vt):
        a = self.a
        a.I(f"v_cvt_pk_bf16_f32 v{vt}, v{vvar}, v{vvar}")
        a.I(f"v_lshlrev_b32 v{vvar}, 16, v{vt}")
        a.I(f"v_add_f32 v{vvar}, 0x{EPS:x}, v{vvar}")
        a.I(f"v_cvt_pk_bf16_f32 v{vt}, v{vvar}, v{vvar}")
        a.I(f"v_lshlrev_b32 v{vvar}, 16, v{vt}")
        a.I(f"v_sqrt_f32 v{vt}, v{vvar}")
        a.I(f"v_rcp_f32 v{vt+1}, v{vt}")
        a.I(f"v_fma_f32 v{vt+2}, -v{vt}, v{vt}, v{vvar}")
        a.I(f"v_mul_f32 v{vt+1}, 0.5, v{vt+1}")
        a.I(f"v_fma_f32 v{vt}, v{vt+2}, v{vt+1}, v{vt}")
        a.I(f"v_cvt_pk_bf16_f32 v{vt}, v{vt}, v{vt}")
        a.I(f"v_lshlrev_b32 v{vvar}, 16, v{vt}")

    def div_by(self, num, den, rcp, t):
        a = self.a
        a.I(f"v_mul_f32 v{t}, v{num}, v{rcp}")
        a.I(f"v_fma_f32 v{num}, -v{t}, v{den}, v{num}")
        a.I(f"v_fma_f32 v{num}, v{num}, v{rcp}, v{t}")

    def entry(self):
        a = self.a
        a.raw(f"; @launch grid=(256,1,1) block=(768,1,1) lds={LDS_BYTES}")
        a.raw('.amdgcn_target "amdgcn-amd-amdhsa--gfx950"\n.text')
        a.raw(f".globl {self.name}\n.p2align 8\n.type {self.name},@function\n{self.name}:")
        a.I("s_cmp_ge_u32 s2, 256")
        a.I("s_cbranch_scc1 L_end")
        if self.cfg.dbgt:
            a.I("s_memrealtime s[98:99]")
        a.I("s_load_dwordx16 s[4:19], s[0:1], 0")
        a.I("s_load_dwordx8 s[20:27], s[0:1], 64")
        a.I("s_load_dwordx4 s[28:31], s[0:1], 96")
        a.I("v_lshrrev_b32 v1, 6, v0")
        a.I("v_and_b32 v5, 63, v0")
        a.I("v_readfirstlane_b32 s44, v1")
        a.I("s_lshr_b32 s45, s2, 1")
        a.I(f"s_mov_b32 s{S_PRE}, 2")
        a.I("s_bitcmp1_b32 s2, 0")
        a.I("s_cbranch_scc1 L_early_q")
        a.I(f"s_sub_u32 s{S_BAND}, s45, 4")
        a.I(f"s_cmp_lt_u32 s{S_BAND}, 60")
        a.I(f"s_cselect_b32 s{S_PRE}, 1, 0")
        a.I("s_cmp_lt_u32 s45, 64")
        a.I("s_cbranch_scc1 L_early_done")
        a.I(f"s_mov_b32 s{S_PRE}, 2")
        a.I("s_add_u32 s45, s45, 64")
        a.label("L_early_q")
        a.I(f"s_lshr_b32 s{S_BAND}, s45, 1")
        a.I(f"s_and_b32 s{S_KH}, s45, 1")
        a.label("L_early_done")
        a.I("s_cmp_lt_u32 s44, 4")
        a.I("s_cbranch_scc0 L_stream")

    def pair_unit(self, sv, sdst):
        a = self.a
        a.I(f"s_and_b32 s46, s{sv}, 7")
        a.I(f"s_lshr_b32 s47, s{sv}, 4")
        a.I("s_lshl_b32 s47, s47, 3")
        a.I("s_add_u32 s46, s46, s47")
        a.I(f"s_bfe_u32 s47, s{sv}, 0x10003")
        a.I(f"s_lshl_b32 s{sdst}, s46, 1")
        a.I(f"s_add_u32 s{sdst}, s{sdst}, s47")

    def roles_rest(self):
        a = self.a
        if self.cfg.xp == 0:
            a.I("s_and_b32 s45, s2, 7")
            a.I("s_lshr_b32 s46, s2, 3")
            a.I("s_and_b32 s47, s46, 3")
            a.I("s_lshl_b32 s47, s47, 3")
            a.I("s_add_u32 s58, s45, s47")
            a.I("s_lshr_b32 s46, s2, 5")
            a.I("s_lshr_b32 s57, s46, 1")
            a.I("s_and_b32 s59, s46, 1")
        else:
            a.I("s_and_b32 s59, s2, 1")
            a.I(f"s_xor_b32 s45, s2, {self.cfg.xp}")
            a.I("s_cmp_eq_u32 s59, 0")
            a.I("s_cselect_b32 s45, s2, s45")
            a.I("s_bfe_u32 s45, s45, 0x20001")
            a.I("s_lshr_b32 s46, s2, 3")
            a.I("s_lshr_b32 s57, s46, 3")
            a.I("s_and_b32 s46, s46, 7")
            a.I("s_lshl_b32 s46, s46, 2")
            a.I("s_add_u32 s58, s46, s45")
        a.I(f"s_mov_b32 s{S_POST}, 0")
        a.I("s_lshr_b32 s45, s2, 1")
        a.I("s_mul_i32 s46, s45, 6554")
        a.I("s_lshr_b32 s46, s46, 16")
        a.I(f"s_mov_b32 s{S_KG}, s46")
        a.I("s_mul_i32 s47, s46, 10")
        a.I(f"s_sub_u32 s{S_NB}, s45, s47")
        a.I("s_cmp_lt_u32 s45, 80")
        a.I(f"s_cselect_b32 s{S_POST}, 1, 0")
        lab = a.newlabel('roles_done')
        a.I("s_bitcmp1_b32 s2, 0")
        a.I(f"s_cbranch_scc0 {lab}")
        a.I(f"s_mov_b32 s{S_NB}, s45")
        a.I("s_cmp_lt_u32 s45, 48")
        a.I(f"s_cselect_b32 s{S_POST}, 2, 0")
        a.label(lab)

    def prefetch_weights(self):
        a = self.a
        pol = self.cfg.pfpol
        lab = a.newlabel('pf')
        a.I("s_cmp_eq_u32 s44, 0")
        a.I(f"s_cbranch_scc1 {lab}_done")
        a.I("v_lshlrev_b32 v8, 4, v5")
        a.I("s_cmp_eq_u32 s44, 3")
        a.I(f"s_cbranch_scc1 {lab}_small")
        a.I("s_mul_i32 s45, s2, 30720")
        self.srd(32, 12, 30720, off=45)
        a.I("s_sub_u32 s46, s44, 1")
        a.I("s_mul_i32 s46, s46, 15360")
        a.I("s_mov_b32 s63, 15")
        a.label(f"{lab}_l1")
        a.I(f"s_waitcnt vmcnt({self.cfg.PW - 1})")
        a.I(f"buffer_load_dwordx4 v[12:15], v8, s[32:35], s46 offen {pol}")
        a.I("s_add_u32 s46, s46, 1024")
        a.I("s_sub_u32 s63, s63, 1")
        a.I("s_cmp_lg_u32 s63, 0")
        a.I(f"s_cbranch_scc1 {lab}_l1")
        a.I(f"s_branch {lab}_done")
        a.label(f"{lab}_small")
        for i, p in enumerate((16, 18, 20)):
            a.I("s_mul_i32 s45, s2, 7680")
            self.srd(32, p, 7680, off=45)
            a.I("s_mov_b32 s46, 0")
            a.I("s_mov_b32 s63, 8")
            a.label(f"{lab}_s{i}")
            a.I(f"s_waitcnt vmcnt({self.cfg.PW - 1})")
            a.I(f"buffer_load_dwordx4 v[12:15], v8, s[32:35], s46 offen {pol}")
            a.I("s_add_u32 s46, s46, 1024")
            a.I("s_sub_u32 s63, s63, 1")
            a.I("s_cmp_lg_u32 s63, 0")
            a.I(f"s_cbranch_scc1 {lab}_s{i}")
        a.label(f"{lab}_done")
        a.fence(2)

    def v_weights(self):
        a = self.a
        WN = self.cfg.WW
        a.I(f"s_cmp_eq_u32 s{S_POST}, 1")
        a.I("s_cbranch_scc0 L_vw_gu")
        a.I(f"s_mul_i32 s45, s{S_KG}, {768*1280}")
        a.I(f"s_lshl_b32 s46, s{S_NB}, 7")
        a.I("s_add_u32 s47, s45, s46")
        self.srd(32, 12, 768 * 1280, off=47)
        self.dma_voff128(1280, 8, 9, 6, 7)
        a.I("s_sub_u32 s63, s44, 1")
        a.I(f"s_mul_i32 s46, s63, {256*1280}")
        a.I("s_lshl_b32 s47, s63, 15")
        a.I(f"s_add_u32 s47, s47, {L_W}")
        self.dma_loop(32, 32, 8, 9, 47, 46, 8 * 1280, "L_vw_wo_loop", window=WN + 1)
        a.I("s_branch L_vw_done")
        a.label("L_vw_gu")
        a.I(f"s_cmp_eq_u32 s{S_POST}, 2")
        a.I("s_cbranch_scc0 L_vw_done")
        a.I("s_cmp_eq_u32 s44, 3")
        a.I("s_cbranch_scc1 L_vw_dn")
        a.I(f"s_lshl_b32 s47, s{S_NB}, 6")
        a.I("s_cmp_eq_u32 s44, 2")
        a.I("s_cselect_b32 s48, s18, s16")
        a.I("s_cselect_b32 s49, s19, s17")
        self.srd(32, 48, 640 * 3072, off=47)
        self.dma_voff64(3072, 8, 6, 7)
        a.I("s_mov_b32 s46, 0")
        a.I("s_sub_u32 s47, s44, 1")
        a.I("s_mul_i32 s47, s47, 40960")
        a.I(f"s_add_u32 s47, s47, {L_W}")
        self.dma_loop(32, 40, 8, 8, 47, 46, 16 * 3072, "L_vw_gu_loop", window=WN)
        a.I("s_branch L_vw_done")
        a.label("L_vw_dn")
        a.I(f"s_mul_i32 s45, s{S_NB}, 40960")
        self.srd(32, 20, 40960, off=45)
        a.I("v_lshlrev_b32 v8, 4, v5")
        a.I("s_mov_b32 s46, 0")
        a.I(f"s_mov_b32 s47, {L_WD}")
        self.dma_loop(32, 40, 8, 8, 47, 46, 1024, "L_vw_dn_loop", window=WN)

    def roles_from_ticket(self, sfx=""):
        a = self.a
        a.I(f"v_mov_b32 v6, {L_FIN + 8}")
        a.I("ds_read_b32 v7, v6")
        a.I("s_waitcnt lgkmcnt(0)")
        a.I("v_readfirstlane_b32 s45, v7")
        a.I("s_cmp_lt_u32 s45, 40")
        a.I(f"s_cselect_b32 s{S_DT}, s45, -1")
        a.I(f"s_mov_b32 s{S_NB}, s45")
        a.I("s_cmp_lt_u32 s45, 48")
        a.I(f"s_cselect_b32 s{S_POST}, 2, 0")
        a.I(f"s_cbranch_scc1 L_ticket_done{sfx}")
        a.I("s_sub_u32 s45, s45, 48")
        a.I("s_cmp_lt_u32 s45, 80")
        a.I(f"s_cselect_b32 s{S_POST}, 1, 0")
        a.I("s_mul_i32 s46, s45, 6554")
        a.I("s_lshr_b32 s46, s46, 16")
        a.I(f"s_mov_b32 s{S_KG}, s46")
        a.I("s_mul_i32 s47, s46, 10")
        a.I(f"s_sub_u32 s{S_NB}, s45, s47")
        a.label(f"L_ticket_done{sfx}")

    def code_prefetch(self, wave):
        a = self.a
        a.I(f"s_cmp_eq_u32 s44, {wave}")
        a.I("s_cbranch_scc0 L_nopf")
        a.I("s_getpc_b64 s[46:47]")
        a.label("L_pc")
        a.I(f"s_sub_u32 s46, s46, (L_pc-{self.name})")
        a.I("s_subb_u32 s47, s47, 0")
        a.I("s_lshr_b32 s45, s2, 3")
        a.I("s_lshl_b32 s45, s45, 10")
        a.I("v_lshlrev_b32 v6, 4, v5")
        a.I("v_add_u32 v6, s45, v6")
        a.I("v_mov_b32 v7, 0")
        a.I("v_mov_b32 v9, s47")
        a.I("v_add_co_u32 v8, vcc, s46, v6")
        a.I("v_addc_co_u32 v9, vcc, v9, v7, vcc")
        a.I(f"s_mov_b32 s45, (L_end-{self.name}-12)")
        a.I("v_cmp_gt_u32 vcc, s45, v6")
        a.I("s_and_saveexec_b64 s[46:47], vcc")
        a.I("s_cbranch_execz L_pfskip")
        a.I("global_load_dwordx4 v[12:15], v[8:9], off")
        a.label("L_pfskip")
        a.I("s_mov_b64 exec, s[46:47]")
        a.label("L_nopf")

    def pretouch(self):
        a = self.a
        a.I("s_cmp_eq_u32 s44, 10")
        a.I("s_cbranch_scc0 L_nopt")
        a.I("v_lshlrev_b32 v6, 21, v5")
        bufs = [(24, 640*7680), (10, 640*12288), (30, WS_SIZE), (28, 256), (4, 5120), (22, 5120),
                (12, 6144*1280), (16, 640*3072), (18, 640*3072), (20, 1536*1280), (26, 5120)]
        if self.cfg.pretouch >= 2:
            pass
        for i, (p, size) in enumerate(bufs):
            self.srd(32, p, size)
            a.I(f"buffer_load_dword v{12+i}, v6, s[32:35], 0 offen")
        a.label("L_nopt")

    def resets(self):
        a = self.a
        a.I("v_mov_b32 v8, -1")
        a.I("v_mov_b32 v9, -1")
        a.I("v_mov_b32 v10, -1")
        a.I("v_mov_b32 v11, -1")
        a.I("v_lshlrev_b32 v6, 4, v5")
        a.I("s_lshl_b32 s45, s57, 5")
        a.I("s_add_u32 s45, s45, s58")
        a.I("s_lshl_b32 s45, s45, 1")
        a.I("s_add_u32 s45, s45, s59")
        a.I("s_mul_i32 s45, s45, 768")
        a.I(f"s_add_u32 s45, s45, {WS_O}")
        a.I("s_mov_b32 exec_lo, -1"); a.I("s_mov_b32 exec_hi, 0xffff")
        a.I("buffer_store_dwordx4 v[8:11], v6, s[40:43], s45 offen sc1")
        a.I("s_lshl_b32 s45, s2, 7")
        a.I(f"s_add_u32 s45, s45, {WS_ML}")
        a.I("s_mov_b64 exec, 0x11")
        a.I("buffer_store_dwordx4 v[8:11], v6, s[40:43], s45 offen sc1")
        a.I("s_mov_b64 exec, -1")
        a.I("v_lshrrev_b32 v7, 4, v5")
        a.I("v_and_b32 v12, 15, v5")
        a.I("v_lshlrev_b32 v12, 4, v12")

        def rows(cmp, rowbytes, base, bandbytes, band_reg, nchunk, lab, extra=None):
            a.I(cmp)
            a.I(f"s_cbranch_scc0 {lab}")
            a.I(f"v_mul_u32_u24 v13, {rowbytes}, v7")
            a.I("v_add_u32 v13, v13, v12")
            a.I(f"s_mul_i32 s45, s{band_reg}, {bandbytes}")
            if extra:
                a.I(f"s_mul_i32 s46, s{extra}, {4*rowbytes}")
                a.I("s_add_u32 s45, s45, s46")
            a.I(f"s_add_u32 s45, s45, {base}")
            m = (1 << nchunk) - 1
            m32 = m | (m << 16)
            a.I(f"s_mov_b32 exec_lo, 0x{m32:x}")
            a.I(f"s_mov_b32 exec_hi, 0x{m32:x}")
            a.I("buffer_store_dwordx4 v[8:11], v13, s[40:43], s45 offen sc1")
            a.I("s_mov_b64 exec, -1")
            a.label(lab)
        rows(f"s_cmp_eq_u32 s{S_PRE}, 2", 24576, WS_Q, 256, S_BAND, 16, 'L_rs2', extra=S_KH)
        rows(f"s_cmp_eq_u32 s{S_PRE}, 1", 7680, WS_MOD, 128, S_BAND, 8, 'L_rs1')
        rows(f"s_cmp_eq_u32 s{S_POST}, 1", 2560, WS_Y, 256, S_NB, 16, 'L_rs3', extra=S_KG)
        a.I(f"s_cmp_eq_u32 s{S_POST}, 2")
        a.I("s_cbranch_scc0 L_rs4")
        a.I("v_mul_u32_u24 v13, 12288, v7")
        a.I("v_add_u32 v13, v13, v12")
        a.I(f"s_lshl_b32 s45, s{S_NB}, 8")
        a.I(f"s_add_u32 s45, s45, {WS_PD}")
        for k in range(10):
            a.I("buffer_store_dwordx4 v[8:11], v13, s[40:43], s45 offen sc1")
            if k < 9:
                a.I(f"s_add_u32 s45, s45, {4*12288}")
        a.label("L_rs4")

    def resets_arrive(self):
        a = self.a
        a.I("s_waitcnt vmcnt(0)")
        self.stamp(16)
        a.I("s_mov_b64 exec, 1")
        a.I("v_mov_b32 v8, 1")
        a.I("s_and_b32 s45, s2, 1")
        a.I("s_lshl_b32 s45, s45, 7")
        a.I("v_mov_b32 v9, s45")
        a.I("global_atomic_add v9, v8, s[28:29] sc1")
        a.I(f"s_cmp_eq_u32 s{S_PRE}, 1")
        a.I("s_cbranch_scc0 L_noc1")
        a.I(f"s_cmp_lt_u32 s{S_BAND}, 20")
        a.I("s_cbranch_scc0 L_noc1")
        a.I("v_mov_b32 v9, 132")
        a.I("global_atomic_add v9, v8, s[28:29] sc1")
        a.label("L_noc1")
        a.I("s_mov_b64 exec, -1")

    def master(self):
        a = self.a
        a.I("s_cmp_eq_u32 s44, 1")
        a.I("s_cbranch_scc0 L_notmaster")
        a.I("s_cmp_eq_u32 s2, 0")
        a.I("s_cbranch_scc0 L_notmaster")
        def go(val):
            a.I("s_mov_b64 exec, -1")
            a.I("v_lshlrev_b32 v7, 7, v5")
            a.I(f"v_mov_b32 v6, {val}")
            for k in range(4):
                a.I(f"s_mov_b32 s45, {WS_ML + 64 + 8192*k}")
                a.I("buffer_store_dword v6, v7, s[40:43], s45 offen sc1")
        a.I("v_mov_b32 v7, 132")
        a.I("s_mov_b32 s62, 0")
        a.I("s_mov_b64 exec, 1")
        a.label("L_master1")
        a.I("global_load_dword v6, v7, s[28:29] sc1")
        a.I("s_add_u32 s62, s62, 1")
        a.I("s_waitcnt vmcnt(0)")
        a.I("v_readfirstlane_b32 s45, v6")
        a.I("s_cmp_ge_u32 s45, 20")
        a.I("s_cbranch_scc1 L_master1_ok")
        a.I(f"s_cmp_lt_u32 s62, {SPIN_MAX}")
        a.I("s_cbranch_scc1 L_master1")
        a.label("L_master1_ok")
        go(1)
        self.stamp(17)
        a.I("v_and_b32 v7, 1, v5")
        a.I("v_lshlrev_b32 v7, 7, v7")
        a.I("s_mov_b32 s62, 0")
        a.I("s_mov_b64 exec, 3")
        a.label("L_master")
        a.I("global_load_dword v6, v7, s[28:29] sc1")
        a.I("s_add_u32 s62, s62, 1")
        a.I("s_waitcnt vmcnt(0)")
        a.I("v_lshrrev_b32 v6, 7, v6")
        a.I("v_cmp_eq_u32 vcc, 0, v6")
        a.I("s_cmp_eq_u64 vcc, 0")
        a.I("s_cbranch_scc1 L_master_ok")
        a.I(f"s_cmp_lt_u32 s62, {SPIN_MAX}")
        a.I("s_cbranch_scc1 L_master")
        a.label("L_master_ok")
        go(2)
        self.stamp(18)
        a.label("L_notmaster")

    def poll_go(self, label, vz, vt, level):
        a = self.a
        a.I("s_lshl_b32 s45, s2, 7")
        a.I(f"s_add_u32 s46, s45, {WS_ML + 64}")
        a.I(f"v_mov_b32 v{vz}, 0")
        a.I("s_mov_b32 s62, 0")
        a.I("s_mov_b64 exec, 1")
        a.label(label)
        a.I(f"buffer_load_dword v{vt}, v{vz}, s[40:43], s46 offen sc1")
        a.I("s_add_u32 s62, s62, 1")
        a.I("s_waitcnt vmcnt(0)")
        a.I(f"v_readfirstlane_b32 s45, v{vt}")
        a.I(f"s_sub_u32 s45, s45, {level}")
        a.I(f"s_cmp_le_u32 s45, {2-level}")
        a.I(f"s_cbranch_scc1 {label}_ok")
        a.I(f"s_cmp_lt_u32 s62, {SPIN_MAX}")
        a.I(f"s_cbranch_scc1 {label}")
        a.label(f"{label}_ok")
        a.I("s_mov_b64 exec, -1")

    def stream(self):
        a = self.a
        cfg = self.cfg
        a.label("L_stream")
        a.fence(2)
        self.roles_rest()
        if self.cfg.codepf:
            self.code_prefetch(10)
        a.I("s_waitcnt lgkmcnt(0)")
        self.stamp(0)
        self.srd(40, 30, WS_SIZE)
        if self.cfg.pretouch:
            self.pretouch()
        a.I("s_sub_u32 s44, s44, 4")
        a.I("s_lshl_b32 s45, s57, 5")
        a.I("s_add_u32 s45, s45, s58")
        a.I("s_mul_i32 s45, s45, 1572864")
        a.I("s_mul_i32 s46, s59, 786432")
        a.I("s_add_u32 s47, s45, s46")
        self.srd(32, 6, 786432, off=47)
        self.srd(36, 8, 786432, off=47)
        a.I("s_cmp_eq_u32 s44, 7")
        a.I("s_cbranch_scc0 L_noreset")
        self.resets()
        self.resets_arrive()
        a.label("L_noreset")
        a.fence(2)
        st.set_depth(cfg.D)

        def b0():
            a.I("s_barrier")
        S2 = dict(S); S2['b0_after'] = cfg.N1 - 1 if cfg.gate else -1
        S2['hook_before'] = {cfg.NB0: b0}
        issued = st.stream_prologue(a, cfg, S2)
        st.stream_main(a, cfg, S2, LDS, issued, self.stamp)
        a.I("s_add_u32 s44, s44, 4")
        a.I("s_branch L_post")

    def u_layout(self, n, per):
        a = self.a
        magic = {80: 52429, 40: 104858}[per]
        a.I(f"s_mov_b32 s47, {magic}")
        for jj in range(n):
            a.I(f"v_add_u32 v6, {64*jj}, v5")
            a.I("v_mul_u32_u24 v7, s47, v6")
            a.I(f"v_lshrrev_b32 v{20+jj}, 22, v7")
            a.I(f"v_mul_u32_u24 v7, {per}, v{20+jj}")
            a.I("v_sub_u32 v6, v6, v7")
            a.I(f"v_lshlrev_b32 v{25+jj}, 2, v6")

    def helper(self):
        a = self.a
        a.label("L_helper")
        a.I("s_setprio 3")
        a.I("s_lshl_b32 s45, s44, 2")
        a.I(f"s_add_u32 s45, s45, {L_HFLAG}")
        a.I("v_mov_b32 v6, s45")
        a.I("v_mov_b32 v7, 0")
        a.I("ds_write_b32 v6, v7")
        a.I(f"s_cmp_eq_u32 s{S_PRE}, 2")
        a.I("s_cbranch_scc0 L_h_notq")
        a.I("v_lshrrev_b32 v6, 3, v5")
        a.I("v_bfe_u32 v7, v5, 4, 1")
        a.I("v_lshlrev_b32 v7, 5, v7")
        a.I("v_and_b32 v8, 7, v5")
        a.I("v_lshlrev_b32 v8, 4, v8")
        a.I("v_xor_b32 v8, v8, v7")
        a.I("v_xor_b32 v9, 64, v8")
        a.I("v_mul_u32_u24 v6, 12288, v6")
        a.I("v_add_u32 v8, v8, v6")
        a.I("v_add_u32 v9, v9, v6")
        a.I(f"s_mul_i32 s46, s44, {80*12288}")
        a.I(f"s_mov_b32 s86, {8*12288}")
        a.I(f"s_mul_i32 s47, s{S_KH}, {320*12288}")
        a.I(f"s_lshl_b32 s45, s{S_BAND}, 7")
        a.I("s_add_u32 s85, s47, s45")
        self.u_layout(3, 40)
        a.I(f"s_mul_i32 s63, s{S_KH}, 640")
        a.I("s_mul_i32 s45, s44, 160")
        a.I("s_add_u32 s63, s63, s45")
        a.I("v_lshlrev_b32 v16, 2, v5")
        for jj in range(3):
            a.I(f"v_mul_u32_u24 v{40+jj}, 1280, v{20+jj}")
            a.I(f"v_add_u32 v{40+jj}, v{40+jj}, v{25+jj}")
        a.I("s_mul_i32 s48, s44, 1280")
        a.I("s_waitcnt lgkmcnt(0)")
        self.stamp(0)
        self.srd(36, 4, 5120)
        for jj in range(5):
            a.I(f"buffer_load_dword v{35+jj}, v16, s[36:39], s48 offen offset:{256*jj}")
        for jj in range(3):
            a.I(f"buffer_load_dword v{30+jj}, v{40+jj}, s[36:39], s63 offen")
        self.srd(32, 10, 320 * 12288, off=85)
        a.I("s_branch L_h_dma")
        a.label("L_h_notq")
        a.I(f"s_cmp_eq_u32 s{S_PRE}, 1")
        a.I("s_cbranch_scc1 L_modunit")
        a.I("s_waitcnt lgkmcnt(0)")
        self.stamp(0)
        self.srd(40, 30, WS_SIZE)
        a.I("s_barrier")
        self.master()
        a.I("s_branch L_h_go")
        a.label("L_modunit")
        a.fence(2)
        self.dma_voff128(7680, 8, 9, 6, 7)
        a.I(f"s_mul_i32 s46, s44, {160*7680}")
        a.I(f"s_lshl_b32 s85, s{S_BAND}, 7")
        self.u_layout(5, 80)
        a.I("s_mul_i32 s63, s44, 320")
        for jj in range(5):
            a.I(f"v_mul_u32_u24 v{40+jj}, 1280, v{20+jj}")
            a.I(f"v_add_u32 v{40+jj}, v{40+jj}, v{25+jj}")
        a.I("s_mul_i32 s47, s44, 20480")
        a.I(f"s_add_u32 s47, s47, {L_W}")
        a.I("s_waitcnt lgkmcnt(0)")
        self.stamp(0)
        self.srd(36, 22, 5120)
        for jj in range(5):
            a.I(f"buffer_load_dword v{30+jj}, v{40+jj}, s[36:39], s63 offen")
        self.srd(32, 24, 640 * 7680, off=85)
        self.dma_loop(32, 20, 8, 9, 47, 46, 8 * 7680, "L_mod_dma", cnt=85)
        self.stamp(3)
        self.srd(40, 30, WS_SIZE)
        a.I(f"s_mov_b32 s54, 0x{LOG2E:x}")
        a.I("s_mul_i32 s47, s44, 320")
        a.I(f"s_add_u32 s47, s47, {L_ACT}")
        for jj in range(5):
            a.I(f"v_mul_u32_u24 v{40+jj}, 1344, v{20+jj}")
            a.I(f"v_add3_u32 v{40+jj}, v{40+jj}, v{25+jj}, s47")
        a.I("s_waitcnt vmcnt(20)")
        for jj in range(5):
            lo, hi = 46, 47
            self.unpack(30 + jj, lo, hi)
            for r in (lo, hi):
                a.I(f"v_mul_f32 v48, s54, v{r}")
                a.I("v_exp_f32 v48, -v48")
                a.I("v_add_f32 v48, 1.0, v48")
                a.I("v_min_f32 v48, 0x7f7fffff, v48")
                a.I("v_rcp_f32 v49, v48")
                self.div_by(r, 48, 49, 50)
            a.I(f"v_cvt_pk_bf16_f32 v46, v46, v47")
            a.I(f"ds_write_b32 v{40+jj}, v46")
        self.tr_addr128(10, 6, 7)
        a.I("s_lshl_b32 s45, s44, 5")
        a.I("v_xor_b32 v10, s45, v10")
        a.I(f"v_add_u32 v10, {L_W}, v10")
        a.I(f"v_add_u32 v11, {10*4096}, v10")
        self.act_addr(14, 1344, 6)
        a.I("s_waitcnt vmcnt(0) lgkmcnt(0)")
        self.stamp(7)
        a.I("s_barrier")
        self.mfma_chain2(10, 10, 11, 4096, 512, 14, 64, 68)
        for k in range(4):
            a.I(f"v_add_f32 v{64+k}, v{64+k}, v{68+k}")
        a.I("v_cvt_pk_bf16_f32 v64, v64, v65")
        a.I("v_cvt_pk_bf16_f32 v65, v66, v67")
        self.canon([64, 65], 44)
        a.I("v_and_b32 v6, 3, v5")
        a.I("v_mul_u32_u24 v6, 7680, v6")
        a.I("v_lshrrev_b32 v7, 4, v5")
        a.I("v_lshl_add_u32 v6, v7, 3, v6")
        a.I(f"s_lshl_b32 s45, s{S_BAND}, 7")
        a.I("s_lshl_b32 s47, s44, 5")
        a.I("s_add_u32 s47, s47, s45")
        a.I(f"s_mov_b32 exec_lo, 0x{MASK_N4_LO:x}")
        a.I(f"s_mov_b32 exec_hi, 0x{MASK_N4_LO:x}")
        a.I("buffer_store_dwordx2 v[64:65], v6, s[40:43], s47 offen sc1")
        a.I("s_mov_b64 exec, -1")
        self.stamp(12)
        a.label("L_h_go")
        a.fence(2)
        a.I("s_cmp_lg_u32 s44, 0")
        a.I("s_cbranch_scc1 L_go_skip")
        self.poll_go("L_go1", 6, 7, 2)
        a.label("L_go_skip")
        if self.cfg.gate:
            a.I("s_barrier")
        a.I("s_branch L_h_q")
        a.label("L_h_dma")
        a.I("s_mul_i32 s47, s44, 10240")
        a.I(f"s_add_u32 s47, s47, {L_W}")
        for i in range(10):
            a.I("s_mov_b32 m0, s47")
            a.I("s_add_u32 s47, s47, 1024")
            a.I(f"buffer_load_dwordx4 v{9 if i & 1 else 8}, s[32:35], s46 offen {self.cfg.ntW} lds")
            if i < 9:
                a.I("s_add_u32 s46, s46, s86")
        self.stamp(3)
        self.srd(40, 30, WS_SIZE)
        a.I("s_waitcnt vmcnt(13)")
        for jj in range(5):
            self.unpack(35 + jj, 40 + 2 * jj, 41 + 2 * jj)
        a.I("v_add_f32 v6, v40, v41")
        for k in range(42, 50):
            a.I(f"v_add_f32 v6, v6, v{k}")
        self.wave_sum_bcast(6, 46)
        a.I("v_mov_b32 v6, 0x3acccccd")
        a.I("v_mul_f32 v50, s46, v6")
        a.I("v_mov_b32 v7, 0")
        for k in range(40, 50):
            a.I(f"v_sub_f32 v51, v{k}, v50")
            a.I("v_fmac_f32 v7, v51, v51")
        self.wave_sum_bcast(7, 46)
        a.I("v_mul_f32 v52, s46, v6")
        self.ln_denom(52, 53)
        a.I("v_cvt_pk_bf16_f32 v50, v50, v50")
        a.I("v_lshlrev_b32 v50, 16, v50")
        a.I("s_lshl_b32 s45, s44, 3")
        a.I(f"s_add_u32 s45, s45, {L_LNST}")
        a.I("v_mov_b32 v6, s45")
        a.I("ds_write_b32 v6, v50")
        a.I("ds_write_b32 v6, v52 offset:4")
        a.I("s_waitcnt vmcnt(0) lgkmcnt(0)")
        self.stamp(7)
        a.I("s_barrier")
        a.I("s_waitcnt vmcnt(10)")
        for jj in range(3):
            a.I(f"v_min_u32 v6, 3, v{20+jj}")
            a.I(f"v_lshlrev_b32 v6, 3, v6")
            a.I(f"ds_read_b64 v[56:57], v6 offset:{L_LNST}")
            lo, hi = 60 + 2 * jj, 61 + 2 * jj
            self.unpack(30 + jj, lo, hi)
            a.I("s_waitcnt lgkmcnt(0)")
            a.I(f"v_sub_f32 v{lo}, v{lo}, v56")
            a.I(f"v_sub_f32 v{hi}, v{hi}, v56")
            self.bf16_round([lo, hi], 58)
            a.I("v_rcp_f32 v58, v57")
            self.div_by(lo, 57, 58, 59)
            self.div_by(hi, 57, 58, 59)
            self.bf16_round([lo, hi], 58)
        for jj in range(3):
            a.I(f"v_min_u32 v6, 3, v{20+jj}")
            a.I(f"v_mul_u32_u24 v{40+jj}, 7680, v6")
            a.I(f"v_add_u32 v{40+jj}, v{40+jj}, v{25+jj}")
        a.I("s_mul_i32 s47, s44, 160")
        a.I(f"s_add_u32 s47, s47, {L_ACT}")
        for jj in range(3):
            a.I(f"v_mul_u32_u24 v{43+jj}, 704, v{20+jj}")
            a.I(f"v_add3_u32 v{43+jj}, v{43+jj}, v{25+jj}, s47")
        self.tr_addr128(10, 6, 7)
        a.I("s_lshl_b32 s45, s44, 5")
        a.I("v_xor_b32 v10, s45, v10")
        a.I(f"v_add_u32 v10, {L_W}, v10")
        self.act_addr(14, 704, 6)
        a.I(f"v_add_u32 v14, {L_ACT}, v14") if L_ACT else None
        self.stamp(16)
        self.poll_go("L_go2", 6, 7, 1)
        self.stamp(18)
        a.I(f"s_add_u32 s46, s63, {WS_MOD}")
        a.I(f"s_add_u32 s47, s63, {WS_MOD + 1280}")
        loads = [f"buffer_load_dword v{30+jj}, v{40+jj}, s[40:43], s46 offen sc1" for jj in range(3)] + \
                [f"buffer_load_dword v{35+jj}, v{40+jj}, s[40:43], s47 offen sc1" for jj in range(3)]
        self.poll(loads, [30, 31, 32, 35, 36, 37], "L_pmod", pre=6)
        self.stamp(14)
        for jj in range(3):
            lo, hi = 60 + 2 * jj, 61 + 2 * jj
            self.unpack(35 + jj, 46, 47)
            a.I("v_add_f32 v46, 1.0, v46")
            a.I("v_add_f32 v47, 1.0, v47")
            self.bf16_round([46, 47], 48)
            a.I(f"v_mul_f32 v{lo}, v{lo}, v46")
            a.I(f"v_mul_f32 v{hi}, v{hi}, v47")
            self.bf16_round([lo, hi], 48)
            self.unpack(30 + jj, 46, 47)
            a.I(f"v_add_f32 v{lo}, v{lo}, v46")
            a.I(f"v_add_f32 v{hi}, v{hi}, v47")
            a.I(f"v_cvt_pk_bf16_f32 v46, v{lo}, v{hi}")
            if jj == 2:
                a.I("s_mov_b32 exec_hi, 0")
            a.I(f"ds_write_b32 v{43+jj}, v46")
        a.I("s_mov_b64 exec, -1")
        if self.cfg.gate:
            a.I("s_waitcnt lgkmcnt(0)")
            a.I("s_barrier")
        else:
            self.hsync(2, "L_hs2", 6, 16)
        self.stamp(17)
        self.mfma_chain(10, 10, 4096, 512, 14, 64)
        self.canon([64, 65, 66, 67], 44)
        a.I("v_and_b32 v6, 3, v5")
        a.I("v_mul_u32_u24 v6, 24576, v6")
        a.I("v_lshrrev_b32 v7, 4, v5")
        a.I("v_lshl_add_u32 v6, v7, 4, v6")
        a.I(f"s_mul_i32 s45, s{S_KH}, {4*24576}")
        a.I(f"s_lshl_b32 s47, s{S_BAND}, 8")
        a.I("s_add_u32 s47, s47, s45")
        a.I("s_lshl_b32 s45, s44, 6")
        a.I("s_add_u32 s47, s47, s45")
        a.I(f"s_add_u32 s47, s47, {WS_Q}")
        a.I(f"s_mov_b32 exec_lo, 0x{MASK_N4_LO:x}")
        a.I(f"s_mov_b32 exec_hi, 0x{MASK_N4_LO:x}")
        a.I("buffer_store_dwordx4 v[64:67], v6, s[40:43], s47 offen sc1")
        a.I("s_mov_b64 exec, -1")
        self.stamp(12)
        a.label("L_h_q")
        a.fence(2)
        self.roles_rest()
        self.srd(40, 30, WS_SIZE)
        a.I("s_cmp_lg_u32 s44, 0")
        a.I("s_cbranch_scc1 L_hb1")
        self.poll_go("L_go3", 6, 7, 2)
        self.stamp(19)
        a.I("v_and_b32 v6, 31, v5")
        a.I("v_mul_u32_u24 v11, 12, v6")
        a.I("v_lshlrev_b32 v6, 1, v11")
        a.I("s_mul_i32 s45, s57, 24576")
        a.I("s_mul_i32 s46, s58, 768")
        a.I("s_add_u32 s46, s45, s46")
        a.I(f"s_add_u32 s46, s46, {WS_Q}")
        a.I(f"s_add_u32 s47, s46, {4*24576}")
        self.poll(["buffer_load_dwordx3 v[12:14], v6, s[40:43], s46 offen sc1",
                   "buffer_load_dwordx3 v[16:18], v6, s[40:43], s46 offen offset:12 sc1",
                   "buffer_load_dwordx3 v[20:22], v6, s[40:43], s47 offen sc1",
                   "buffer_load_dwordx3 v[24:26], v6, s[40:43], s47 offen offset:12 sc1"],
                  [12, 13, 14, 16, 17, 18, 20, 21, 22, 24, 25, 26], "L_pq", pre=7)
        for k in range(3):
            a.I(f"v_add_f32 v{12+k}, v{12+k}, v{20+k}")
            a.I(f"v_add_f32 v{16+k}, v{16+k}, v{24+k}")
        a.I("v_cvt_pk_bf16_f32 v8, v12, v13")
        a.I("v_cvt_pk_bf16_f32 v9, v14, v16")
        a.I("v_cvt_pk_bf16_f32 v10, v17, v18")
        a.I(f"ds_write_b32 v11, v8 offset:{L_QV}")
        a.I(f"ds_write_b32 v11, v9 offset:{L_QV+4}")
        a.I(f"ds_write_b32 v11, v10 offset:{L_QV+8}")
        a.I("s_waitcnt lgkmcnt(0)")
        a.label("L_hb1")
        self.stamp(1)
        a.I("s_barrier")
        self.stamp(2)
        if self.cfg.hop:
            a.I("s_cmp_eq_u32 s44, 0")
            a.I("s_cbranch_scc1 L_late_done")
            a.I("s_mov_b64 exec, 0")
            a.I("s_cmp_eq_u32 s44, 1")
            a.I("s_cbranch_scc1 L_hopA_0")
            a.I("s_cmp_eq_u32 s44, 2")
            a.I("s_cbranch_scc1 L_hopB_0")
            a.I("s_branch L_hopC_0")
            a.label("L_warm_ret")
            a.I("s_mov_b64 exec, -1")
            self.stamp(22)
        if self.cfg.pf == 2:
            a.label("L_late_pf")
            self.prefetch_weights()
        a.label("L_late_done")
        a.fence(2)
        a.I("s_barrier")
        self.stamp(4)
        a.I("s_cmp_lg_u32 s44, 0")
        a.I("s_cbranch_scc1 L_hb3")
        self.ml_exchange()
        a.label("L_hb3")
        self.stamp(5)
        a.I("s_barrier")
        self.stamp(6)
        if not self.cfg.early_w:
            a.I("s_cmp_lg_u32 s44, 0")
            a.I("s_cbranch_scc1 L_tk_done")
            a.I(f"v_mov_b32 v6, {L_FIN}")
            a.I("s_mov_b32 s62, 0")
            a.label("L_tk_wait")
            a.I("ds_read_b32 v7, v6 offset:12")
            a.I("s_add_u32 s62, s62, 1")
            a.I("s_waitcnt lgkmcnt(0)")
            a.I("v_readfirstlane_b32 s45, v7")
            a.I("s_cmp_eq_u32 s45, 1")
            a.I("s_cbranch_scc1 L_tk_go")
            a.I(f"s_cmp_lt_u32 s62, {SPIN_MAX*16}")
            a.I("s_cbranch_scc1 L_tk_wait")
            a.label("L_tk_go")
            a.I("s_mov_b64 exec, 1")
            a.I("v_mov_b32 v7, 8")
            a.I("v_mov_b32 v8, 1")
            a.I("global_atomic_add v9, v7, v8, s[28:29] sc0 sc1")
            a.I("s_waitcnt vmcnt(0)")
            a.I("ds_write_b32 v6, v9 offset:8")
            a.I("s_waitcnt lgkmcnt(0)")
            a.I("s_mov_b64 exec, -1")
            a.label("L_tk_done")
            a.fence(2)
        if self.cfg.pf == 1:
            self.prefetch_weights()
        if self.cfg.early_w:
            a.I("s_cmp_eq_u32 s44, 0")
            a.I("s_cbranch_scc1 L_vw_done")
            self.roles_from_ticket("v")
            self.v_weights()
            a.label("L_vw_done")
            a.fence(2)
        a.I("s_barrier")
        self.stamp(8)

    def dma_loop(self, srd, n, vE, vO, lds_reg, soff_reg, step, label, cnt=63, window=0):
        a = self.a
        a.I(f"s_mov_b32 s{cnt}, {n // 2}")
        a.label(label)
        for v in (vE, vO):
            if window:
                a.I(f"s_waitcnt vmcnt({window - 1})")
            a.I(f"s_mov_b32 m0, s{lds_reg}")
            a.I(f"s_add_u32 s{lds_reg}, s{lds_reg}, 1024")
            a.I(f"buffer_load_dwordx4 v{v}, s[{srd}:{srd+3}], s{soff_reg} offen {self.cfg.ntW} lds")
            a.I(f"s_add_u32 s{soff_reg}, s{soff_reg}, {step}")
        a.I(f"s_sub_u32 s{cnt}, s{cnt}, 1")
        a.I(f"s_cmp_lg_u32 s{cnt}, 0")
        a.I(f"s_cbranch_scc1 {label}")

    def mfma_chain2(self, nks, vA0, vA1, stepA, half_off, vB, d0, d1):
        a = self.a
        DEPTH = 2

        def issue(ks):
            b = 80 + 16 * (ks % DEPTH)
            a.I(f"ds_read_b64_tr_b16 v[{b}:{b+1}], v{vA0} offset:{stepA*ks}")
            a.I(f"ds_read_b64_tr_b16 v[{b+2}:{b+3}], v{vA0} offset:{stepA*ks + half_off}")
            a.I(f"ds_read_b128 v[{b+4}:{b+7}], v{vB} offset:{64*ks}")
            a.I(f"ds_read_b64_tr_b16 v[{b+8}:{b+9}], v{vA1} offset:{stepA*ks}")
            a.I(f"ds_read_b64_tr_b16 v[{b+10}:{b+11}], v{vA1} offset:{stepA*ks + half_off}")
            a.I(f"ds_read_b128 v[{b+12}:{b+15}], v{vB} offset:{64*(nks+ks)}")
        for ks in range(DEPTH):
            issue(ks)
        for ks in range(nks):
            left = min(nks - 1 - ks, DEPTH - 1)
            a.I(f"s_waitcnt lgkmcnt({6*left})")
            b = 80 + 16 * (ks % DEPTH)
            c0 = "0" if ks == 0 else f"v[{d0}:{d0+3}]"
            c1 = "0" if ks == 0 else f"v[{d1}:{d1+3}]"
            a.I(f"v_mfma_f32_16x16x32_bf16 v[{d0}:{d0+3}], v[{b}:{b+3}], v[{b+4}:{b+7}], {c0}")
            a.I(f"v_mfma_f32_16x16x32_bf16 v[{d1}:{d1+3}], v[{b+8}:{b+11}], v[{b+12}:{b+15}], {c1}")
            if ks + DEPTH < nks:
                issue(ks + DEPTH)

    def mfma_chain(self, nks, vA, stepA, half_off, vB, dreg):
        a = self.a
        DEPTH = 4

        def issue(ks):
            b = 80 + 8 * (ks % DEPTH)
            a.I(f"ds_read_b64_tr_b16 v[{b}:{b+1}], v{vA} offset:{stepA*ks}")
            a.I(f"ds_read_b64_tr_b16 v[{b+2}:{b+3}], v{vA} offset:{stepA*ks + half_off}")
            a.I(f"ds_read_b128 v[{b+4}:{b+7}], v{vB} offset:{64*ks}")
        for ks in range(min(DEPTH, nks)):
            issue(ks)
        for ks in range(nks):
            left = min(nks - 1 - ks, DEPTH - 1)
            a.I(f"s_waitcnt lgkmcnt({3*left})")
            b = 80 + 8 * (ks % DEPTH)
            c = "0" if ks == 0 else f"v[{dreg}:{dreg+3}]"
            a.I(f"v_mfma_f32_16x16x32_bf16 v[{dreg}:{dreg+3}], v[{b}:{b+3}], v[{b+4}:{b+7}], {c}")
            if ks + DEPTH < nks:
                issue(ks + DEPTH)

    def dma_band128(self, srd, rowstride, ninstr, vE, vO, lds_base_sreg, soff_reg, tag):
        a = self.a
        for i in range(ninstr):
            a.I(f"s_mov_b32 m0, s{lds_base_sreg}")
            v = vO if i & 1 else vE
            a.I(f"s_add_u32 s{lds_base_sreg}, s{lds_base_sreg}, 1024")
            a.I(f"buffer_load_dwordx4 v{v}, s[{srd}:{srd+3}], s{soff_reg} offen {self.cfg.ntW} lds")
            if i + 1 < ninstr:
                a.I(f"s_add_u32 s{soff_reg}, s{soff_reg}, {8*rowstride}")

    def dma_voff128(self, rowstride, vE, vO, t0, t1):
        a = self.a
        a.I(f"v_lshrrev_b32 v{t0}, 3, v5")
        a.I(f"v_bfe_u32 v{t1}, v5, 4, 1")
        a.I(f"v_lshlrev_b32 v{t1}, 5, v{t1}")
        a.I(f"v_and_b32 v{vE}, 7, v5")
        a.I(f"v_lshlrev_b32 v{vE}, 4, v{vE}")
        a.I(f"v_xor_b32 v{vE}, v{vE}, v{t1}")
        a.I(f"v_xor_b32 v{vO}, 64, v{vE}")
        a.I(f"s_mov_b32 s45, {rowstride}")
        a.I(f"v_mul_lo_u32 v{t0}, s45, v{t0}")
        a.I(f"v_add_u32 v{vE}, v{vE}, v{t0}")
        a.I(f"v_add_u32 v{vO}, v{vO}, v{t0}")

    def tr_addr128(self, vdst, t0, t1):
        a = self.a
        a.I(f"v_lshrrev_b32 v{t0}, 4, v5")
        a.I(f"v_bfe_u32 v{t1}, v5, 2, 2")
        a.I(f"v_lshl_add_u32 v{vdst}, v{t0}, 3, v{t1}")
        a.I(f"v_lshlrev_b32 v{vdst}, 7, v{vdst}")
        a.I(f"v_and_b32 v{t0}, 1, v{t0}")
        a.I(f"v_lshlrev_b32 v{t0}, 6, v{t0}")
        a.I(f"v_bfe_u32 v{t1}, v5, 3, 1")
        a.I(f"v_lshlrev_b32 v{t1}, 5, v{t1}")
        a.I(f"v_or3_b32 v{vdst}, v{vdst}, v{t0}, v{t1}")
        a.I(f"v_and_b32 v{t0}, 3, v5")
        a.I(f"v_lshl_add_u32 v{vdst}, v{t0}, 3, v{vdst}")

    def act_addr(self, vdst, stride, t0):
        a = self.a
        a.I(f"v_and_b32 v{t0}, 3, v5")
        a.I(f"v_mul_u32_u24 v{vdst}, {stride}, v{t0}")
        a.I(f"v_lshrrev_b32 v{t0}, 4, v5")
        a.I(f"v_lshl_add_u32 v{vdst}, v{t0}, 4, v{vdst}")

    def ml_exchange(self):
        a = self.a
        a.I("v_and_b32 v6, 7, v5")
        a.I("v_lshlrev_b32 v6, 3, v6")
        a.I(f"ds_read_b64 v[8:9], v6 offset:{L_STATS}")
        a.I(f"s_mov_b32 s54, 0x{LOG2E:x}")
        a.I("s_waitcnt lgkmcnt(0)")
        a.I("v_mov_b32 v10, v8")
        a.I("v_max_f32_dpp v10, v10, v10 quad_perm:[1,0,3,2] row_mask:0xf bank_mask:0xf")
        a.I("v_max_f32_dpp v10, v10, v10 quad_perm:[2,3,0,1] row_mask:0xf bank_mask:0xf")
        a.I("v_max_f32_dpp v10, v10, v10 row_half_mirror row_mask:0xf bank_mask:0xf")
        a.I("v_sub_f32 v11, v8, v10")
        a.I("v_mul_f32 v11, s54, v11")
        a.I("v_exp_f32 v11, v11")
        a.I("v_mul_f32 v11, v11, v9")
        a.I("v_add_f32_dpp v11, v11, v11 quad_perm:[1,0,3,2] row_mask:0xf bank_mask:0xf")
        a.I("v_add_f32_dpp v11, v11, v11 quad_perm:[2,3,0,1] row_mask:0xf bank_mask:0xf")
        a.I("v_add_f32_dpp v11, v11, v11 row_half_mirror row_mask:0xf bank_mask:0xf")
        self.canon([10, 11], 12)
        a.I("s_lshl_b32 s45, s2, 7")
        a.I(f"s_add_u32 s45, s45, {WS_ML}")
        a.I("v_mov_b32 v6, 0")
        a.I("s_mov_b64 exec, 1")
        a.I("buffer_store_dwordx2 v[10:11], v6, s[40:43], s45 offen sc1")
        if self.cfg.early_w:
            a.I("v_mov_b32 v7, 8")
            a.I("v_mov_b32 v18, 1")
            a.I("global_atomic_add v19, v7, v18, s[28:29] sc0 sc1")
        a.I("s_mov_b64 exec, -1")
        a.I(f"s_xor_b32 s46, s2, {self.cfg.xp or 32}")
        a.I("s_lshl_b32 s46, s46, 7")
        a.I(f"s_add_u32 s46, s46, {WS_ML}")
        self.poll(["buffer_load_dwordx2 v[12:13], v6, s[40:43], s46 offen sc1"], [12, 13], "L_pml", pre=7)
        a.I("v_max_f32 v14, v10, v12")
        a.I("v_sub_f32 v15, v10, v14")
        a.I("v_sub_f32 v16, v12, v14")
        a.I("v_mul_f32 v15, s54, v15")
        a.I("v_mul_f32 v16, s54, v16")
        a.I("v_exp_f32 v15, v15")
        a.I("v_exp_f32 v16, v16")
        a.I("v_mul_f32 v15, v15, v11")
        a.I("v_mul_f32 v16, v16, v13")
        a.I("v_add_f32 v15, v15, v16")
        a.I("v_rcp_f32 v16, v15")
        a.I("v_fma_f32 v17, -v15, v16, 1.0")
        a.I("v_fma_f32 v16, v17, v16, v16")
        a.I(f"v_mov_b32 v6, {L_FIN}")
        a.I("ds_write_b32 v6, v14")
        a.I("ds_write_b32 v6, v16 offset:4")
        if not self.cfg.early_w:
            a.I("v_mov_b32 v17, 0")
            a.I("ds_write_b32 v6, v17 offset:12")
        if self.cfg.early_w:
            a.I("s_mov_b64 exec, 1")
            a.I("ds_write_b32 v6, v19 offset:8")
            a.I("s_mov_b64 exec, -1")
        a.I("s_waitcnt lgkmcnt(0)")

    def post(self):
        a = self.a
        a.label("L_post")
        a.hops_begin("L_hopA", self.cfg.hop)
        a.fence(4)
        a.I("s_setprio 0")
        a.I("v_and_b32 v5, 63, v0")
        a.I("s_cmp_lg_u32 s44, 0")
        a.I("s_cbranch_scc1 L_o_done")
        a.I("v_lshlrev_b32 v6, 4, v5")
        a.I("s_mov_b32 exec_lo, -1"); a.I("s_mov_b32 exec_hi, 0xffff")
        for w in range(8):
            a.I(f"ds_read_b128 v[{8+4*w}:{11+4*w}], v6 offset:{L_OPART+768*w}")
        for w in range(1, 8):
            a.I(f"s_waitcnt lgkmcnt({7-w})")
            for k in range(4):
                a.I(f"v_add_f32 v{8+k}, v{8+k}, v{8+4*w+k}")
        self.canon([8, 9, 10, 11], 12)
        a.I("s_lshl_b32 s45, s57, 5")
        a.I("s_add_u32 s45, s45, s58")
        a.I("s_lshl_b32 s45, s45, 1")
        a.I("s_add_u32 s45, s45, s59")
        a.I("s_mul_i32 s45, s45, 768")
        a.I(f"s_add_u32 s45, s45, {WS_O}")
        a.I("buffer_store_dwordx4 v[8:11], v6, s[40:43], s45 offen sc1")
        a.I("s_mov_b64 exec, -1")
        a.label("L_o_done")
        a.fence(2)
        self.roles_from_ticket()
        a.I(f"s_cmp_eq_u32 s{S_POST}, 0")
        a.I("s_cbranch_scc1 L_tail")
        a.I("s_barrier")
        a.I(f"s_cmp_eq_u32 s{S_POST}, 1")
        a.I("s_cbranch_scc0 L_post23")
        self.post_wo()
        a.I("s_branch L_tail")
        a.hops_end("L_warm_ret")
        a.label("L_post23")
        a.hops_begin("L_hopB", self.cfg.hop)
        a.fence(2)
        self.post_gu()
        a.I(f"s_cmp_lt_u32 s{S_DT}, 40")
        a.I("s_cbranch_scc0 L_tail")
        a.hops_end("L_warm_ret")
        a.hops_begin("L_hopC", self.cfg.hop)
        self.post_final()
        a.hops_end("L_warm_ret")

    def red_lane_addr(self, vdst, t):
        a = self.a
        a.I(f"v_lshrrev_b32 v{vdst}, 4, v5")
        a.I(f"v_and_b32 v{t}, 3, v5")
        a.I(f"v_lshl_add_u32 v{vdst}, v{vdst}, 2, v{t}")
        a.I(f"v_lshlrev_b32 v{vdst}, 4, v{vdst}")

    def write_red(self, dreg, vaddr):
        a = self.a
        a.I("s_lshl_b32 s45, s44, 8")
        a.I(f"s_add_u32 s45, s45, {L_RED}")
        a.I(f"v_add_u32 v{vaddr}, s45, v{vaddr}")
        a.I(f"s_mov_b32 exec_lo, 0x{MASK_N4_LO:x}")
        a.I(f"s_mov_b32 exec_hi, 0x{MASK_N4_LO:x}")
        a.I(f"ds_write_b128 v{vaddr}, v[{dreg}:{dreg+3}]")
        a.I("s_mov_b64 exec, -1")
        a.I("s_waitcnt lgkmcnt(0)")
        a.I("s_barrier")

    def mfma_run(self, nks, vA, offA, stepA, half_off, vB, dreg, first_reg=40):
        a = self.a
        for ks in range(nks):
            b = first_reg + 8 * ks
            a.I(f"ds_read_b64_tr_b16 v[{b}:{b+1}], v{vA} offset:{offA + stepA*ks}")
            a.I(f"ds_read_b64_tr_b16 v[{b+2}:{b+3}], v{vA} offset:{offA + stepA*ks + half_off}")
            a.I(f"ds_read_b128 v[{b+4}:{b+7}], v{vB} offset:{64*ks}")
        for ks in range(nks):
            b = first_reg + 8 * ks
            a.I(f"s_waitcnt lgkmcnt({min(15, 3*(nks-1-ks))})")
            c = "0" if ks == 0 else f"v[{dreg}:{dreg+3}]"
            a.I(f"v_mfma_f32_16x16x32_bf16 v[{dreg}:{dreg+3}], v[{b}:{b+3}], v[{b+4}:{b+7}], {c}")

    def mfma_preread(self, n, vA, stepA, half_off, first):
        a = self.a
        for ks in range(n):
            b = first + 4 * ks
            a.I(f"ds_read_b64_tr_b16 v[{b}:{b+1}], v{vA} offset:{stepA*ks}")
            a.I(f"ds_read_b64_tr_b16 v[{b+2}:{b+3}], v{vA} offset:{stepA*ks + half_off}")

    def mfma_with_b(self, n, firstA, vB, firstB, dreg):
        a = self.a
        for ks in range(n):
            b = firstB + 4 * ks
            a.I(f"ds_read_b128 v[{b}:{b+3}], v{vB} offset:{64*ks}")
        for ks in range(n):
            a.I(f"s_waitcnt lgkmcnt({n-1-ks})")
            c = "0" if ks == 0 else f"v[{dreg}:{dreg+3}]"
            a.I(f"v_mfma_f32_16x16x32_bf16 v[{dreg}:{dreg+3}], v[{firstA+4*ks}:{firstA+4*ks+3}], v[{firstB+4*ks}:{firstB+4*ks+3}], {c}")

    def post_wo(self):
        a = self.a
        if not self.cfg.early_w:
            a.I(f"s_mul_i32 s45, s{S_KG}, {768*1280}")
            a.I(f"s_lshl_b32 s46, s{S_NB}, 7")
            a.I("s_add_u32 s47, s45, s46")
            self.srd(32, 12, 768 * 1280, off=47)
            self.dma_voff128(1280, 8, 9, 6, 7)
            a.I(f"s_mul_i32 s46, s44, {64*1280}")
            a.I("s_lshl_b32 s47, s44, 13")
            a.I(f"s_add_u32 s47, s47, {L_W}")
            self.dma_loop(32, 8, 8, 9, 47, 46, 8 * 1280, "L_wo_dma")
        a.I("s_mul_i32 s45, s44, 21846")
        a.I("s_lshr_b32 s45, s45, 16")
        a.I("s_mul_i32 s46, s45, 3")
        a.I("s_sub_u32 s46, s44, s46")
        a.I("s_lshl_b32 s46, s46, 6")
        a.I("v_add_u32 v10, s46, v5")
        a.I("v_mul_u32_u24 v11, 1366, v10")
        a.I("v_lshrrev_b32 v11, 16, v11")
        a.I("v_mul_u32_u24 v12, 48, v11")
        a.I("v_sub_u32 v12, v10, v12")
        a.I("v_mul_u32_u24 v11, 1536, v11")
        a.I("v_lshl_add_u32 v11, v12, 4, v11")
        a.I("s_lshl_b32 s63, s45, 5")
        a.I(f"s_lshl_b32 s46, s{S_KG}, 2")
        a.I("s_add_u32 s63, s63, s46")
        a.I("s_mul_i32 s63, s63, 1536")
        a.I(f"s_add_u32 s63, s63, {WS_O}")
        a.I("s_mul_i32 s46, s45, 1600")
        a.I(f"s_add_u32 s46, s46, {L_ACT}")
        a.I("v_lshl_add_u32 v13, v10, 3, s46")
        self.tr_addr128(14, 6, 7)
        a.I("s_and_b32 s45, s44, 3")
        a.I("s_lshl_b32 s45, s45, 5")
        a.I("v_xor_b32 v14, s45, v14")
        a.I("s_lshr_b32 s45, s44, 2")
        a.I("s_lshl_b32 s46, s45, 15")
        a.I(f"s_add_u32 s46, s46, {L_W}")
        a.I("v_add_u32 v14, s46, v14")
        self.act_addr(15, 1600, 6)
        a.I("s_lshl_b32 s46, s45, 9")
        a.I(f"s_add_u32 s46, s46, {L_ACT}")
        a.I("v_add_u32 v15, s46, v15")
        self.red_lane_addr(16, 6)
        a.I("v_and_b32 v17, 3, v5")
        a.I("v_mul_u32_u24 v17, 2560, v17")
        a.I("v_lshrrev_b32 v7, 2, v5")
        a.I("v_lshl_add_u32 v17, v7, 4, v17")
        a.I("s_waitcnt vmcnt(0)")
        a.I("s_barrier")
        self.stamp(9)
        self.mfma_preread(8, 14, 4096, 512, 40)
        self.poll(["buffer_load_dwordx4 v[20:23], v11, s[40:43], s63 offen sc1",
                   "buffer_load_dwordx4 v[24:27], v11, s[40:43], s63 offen offset:768 sc1"],
                  list(range(20, 28)), "L_po", pre=6)
        self.stamp(10)
        for k in range(4):
            a.I(f"v_add_f32 v{20+k}, v{20+k}, v{24+k}")
        a.I("v_cvt_pk_bf16_f32 v20, v20, v21")
        a.I("v_cvt_pk_bf16_f32 v21, v22, v23")
        a.I("ds_write_b64 v13, v[20:21]")
        a.I("s_waitcnt lgkmcnt(0)")
        a.I("s_barrier")
        self.mfma_with_b(8, 40, 15, 72, 20)
        self.write_red(20, 16)
        a.I("s_cmp_lg_u32 s44, 0")
        a.I("s_cbranch_scc1 L_wo_done")
        a.I("v_lshlrev_b32 v6, 4, v5")
        for kt in range(3):
            a.I(f"ds_read_b128 v[{20+4*kt}:{23+4*kt}], v6 offset:{L_RED + 1024*kt}")
        a.I(f"s_mul_i32 s45, s{S_KG}, 10240")
        a.I(f"s_lshl_b32 s46, s{S_NB}, 8")
        a.I("s_add_u32 s45, s45, s46")
        a.I(f"s_add_u32 s45, s45, {WS_Y}")
        a.I("s_waitcnt lgkmcnt(0)")
        for k in range(4):
            a.I(f"v_add_f32 v{20+k}, v{20+k}, v{24+k}")
        for k in range(4):
            a.I(f"v_add_f32 v{20+k}, v{20+k}, v{28+k}")
        self.canon([20, 21, 22, 23], 12)
        a.I("buffer_store_dwordx4 v[20:23], v17, s[40:43], s45 offen sc1")
        a.label("L_wo_done")
        self.stamp(11)

    def dma_band64(self, srd, rowstride, ninstr, v, lds_reg, soff_reg):
        a = self.a
        for i in range(ninstr):
            a.I(f"s_mov_b32 m0, s{lds_reg}")
            a.I(f"s_add_u32 s{lds_reg}, s{lds_reg}, 1024")
            a.I(f"buffer_load_dwordx4 v{v}, s[{srd}:{srd+3}], s{soff_reg} offen {self.cfg.ntW} lds")
            if i + 1 < ninstr:
                a.I(f"s_add_u32 s{soff_reg}, s{soff_reg}, {16*rowstride}")

    def dma_voff64(self, rowstride, v, t0, t1):
        a = self.a
        a.I(f"v_lshrrev_b32 v{t0}, 2, v5")
        a.I(f"v_bfe_u32 v{t1}, v5, 5, 1")
        a.I(f"v_lshlrev_b32 v{t1}, 5, v{t1}")
        a.I(f"v_and_b32 v{v}, 3, v5")
        a.I(f"v_lshlrev_b32 v{v}, 4, v{v}")
        a.I(f"v_xor_b32 v{v}, v{v}, v{t1}")
        a.I(f"v_mul_u32_u24 v{t0}, {rowstride}, v{t0}")
        a.I(f"v_add_u32 v{v}, v{v}, v{t0}")

    def tr_addr64(self, vdst, t0, t1):
        a = self.a
        a.I(f"v_lshrrev_b32 v{t0}, 4, v5")
        a.I(f"v_bfe_u32 v{t1}, v5, 2, 2")
        a.I(f"v_lshl_add_u32 v{vdst}, v{t0}, 3, v{t1}")
        a.I(f"v_lshlrev_b32 v{vdst}, 6, v{vdst}")
        a.I(f"v_and_b32 v{t0}, 1, v{t0}")
        a.I(f"v_lshl_or_b32 v{vdst}, v{t0}, 5, v{vdst}")
        a.I(f"v_and_b32 v{t0}, 3, v5")
        a.I(f"v_lshl_add_u32 v{vdst}, v{t0}, 3, v{vdst}")

    def x1_from_y(self, vy_addr_soff, yregs, ga, xr, out, t):
        a = self.a
        for k in range(4):
            a.I(f"v_add_f32 v{out+k}, v{yregs+k}, v{yregs+4+k}")
        for w in range(2, 8):
            for k in range(4):
                a.I(f"v_add_f32 v{out+k}, v{out+k}, v{yregs+4*w+k}")
        o = [out + k for k in range(4)]
        self.bf16_round(o, t)
        for p in range(2):
            self.unpack(ga + p, t + 1, t + 2)
            a.I(f"v_mul_f32 v{o[2*p]}, v{o[2*p]}, v{t+1}")
            a.I(f"v_mul_f32 v{o[2*p+1]}, v{o[2*p+1]}, v{t+2}")
        self.bf16_round(o, t)
        for p in range(2):
            self.unpack(xr + p, t + 1, t + 2)
            a.I(f"v_add_f32 v{o[2*p]}, v{o[2*p]}, v{t+1}")
            a.I(f"v_add_f32 v{o[2*p+1]}, v{o[2*p+1]}, v{t+2}")
        self.bf16_round(o, t)

    def post_gu(self):
        a = self.a
        a.I("s_mul_i32 s45, s44, 21846")
        a.I("s_lshr_b32 s87, s45, 16")
        a.I("s_mul_i32 s46, s87, 3")
        a.I("s_sub_u32 s88, s44, s46")
        a.I("s_mul_i32 s46, s88, 54")
        a.I("v_add_u32 v10, s46, v5")
        a.I("v_cmp_gt_u32 vcc, 54, v5")
        a.I("s_mov_b64 s[50:51], vcc")
        a.I("v_mov_b32 v6, 160")
        a.I("v_cmp_lt_u32 vcc, v10, v6")
        a.I("s_and_b64 s[50:51], s[50:51], vcc")
        a.I("v_min_u32 v10, 159, v10")
        a.I("v_lshlrev_b32 v11, 3, v10")
        a.I("s_mul_i32 s46, s87, 7680")
        a.I(f"s_add_u32 s46, s46, {WS_MOD}")
        self.srd(36, 4, 5120)
        a.I("s_mul_i32 s47, s87, 1280")
        a.I("buffer_load_dwordx2 v[18:19], v11, s[36:39], s47 offen")
        a.I("v_add_u32 v40, 2560, v11")
        a.I("v_add_u32 v41, 3840, v11")
        a.I("v_add_u32 v42, 5120, v11")
        a.I("s_mul_i32 s85, s87, 7680")
        a.I(f"s_add_u32 s85, s85, {WS_MOD}")
        a.I("v_lshlrev_b32 v32, 4, v10")
        a.I("s_mul_i32 s86, s87, 2560")
        a.I(f"s_add_u32 s86, s86, {WS_Y}")
        yloads = []
        for w in range(8):
            yloads.append((f"buffer_load_dwordx4 v[{48+4*w}:{51+4*w}], v{80+w if False else 140+w}, s[40:43], s86 offen sc1", [48+4*w+k for k in range(4)]))
            a.I(f"v_add_u32 v{140+w}, {10240*w}, v32")
        modloads = ["buffer_load_dwordx2 v[12:13], v40, s[40:43], s85 offen sc1",
                    "buffer_load_dwordx2 v[14:15], v41, s[40:43], s85 offen sc1",
                    "buffer_load_dwordx2 v[16:17], v42, s[40:43], s85 offen sc1"]
        for ld in modloads:
            a.I(ld)
        if not self.cfg.early_w:
            a.I("s_cmp_ge_u32 s44, 10")
            a.I("s_cbranch_scc1 L_gu_dn")
            a.I(f"s_lshl_b32 s47, s{S_NB}, 6")
            a.I("s_cmp_ge_u32 s44, 5")
            a.I("s_cselect_b32 s48, s18, s16")
            a.I("s_cselect_b32 s49, s19, s17")
            a.I("s_cselect_b32 s63, 5, 0")
            self.srd(32, 48, 640 * 3072, off=47)
            self.dma_voff64(3072, 8, 6, 7)
            a.I("s_sub_u32 s63, s44, s63")
            a.I(f"s_mul_i32 s46, s63, {128*3072}")
            a.I("s_lshl_b32 s47, s44, 13")
            a.I(f"s_add_u32 s47, s47, {L_W}")
            self.dma_loop(32, 8, 8, 8, 47, 46, 16 * 3072, "L_gu_dma")
            a.I("s_waitcnt vmcnt(8)")
            a.I("s_branch L_gu_dma_done")
            a.label("L_gu_dn")
            a.I(f"s_mul_i32 s45, s{S_NB}, 40960")
            self.srd(32, 20, 40960, off=45)
            for m in range(5):
                a.I(f"v_lshlrev_b32 v6, 4, v5")
                a.I(f"v_add_u32 v6, {1024*m}, v6")
                a.I("v_mul_u32_u24 v7, 3277, v6")
                a.I("v_lshrrev_b32 v7, 22, v7")
                a.I("v_mul_u32_u24 v8, 1280, v7")
                a.I("v_sub_u32 v6, v6, v8")
                a.I("v_lshlrev_b32 v7, 5, v7")
                a.I("v_xor_b32 v9, v6, v7")
                a.I(f"v_add_u32 v{148+m}, v8, v9")
                a.I("v_xor_b32 v9, 128, v9")
                a.I(f"v_add_u32 v{153+m}, v8, v9")
            a.I("s_sub_u32 s63, s44, 10")
            a.I("s_mul_i32 s46, s63, 20480")
            a.I(f"s_add_u32 s47, s46, {L_WD}")
            for q in range(4):
                for m in range(5):
                    a.I("s_mov_b32 m0, s47")
                    a.I("s_add_u32 s47, s47, 1024")
                    a.I(f"buffer_load_dwordx4 v{(153 if (q >> 1) & 1 else 148) + m}, s[32:35], s46 offen {self.cfg.ntW} lds")
                if q < 3:
                    a.I("s_add_u32 s46, s46, 5120")
            a.I("s_waitcnt vmcnt(20)")
            a.label("L_gu_dma_done")
            a.fence(2)
        else:
            a.I("s_waitcnt vmcnt(0)")
        self.stamp(22)
        a.I("v_max3_u32 v6, v12, v13, v14")
        a.I("v_max3_u32 v6, v6, v15, v16")
        a.I("v_max_u32 v6, v6, v17")
        a.I("v_cmp_eq_u32 vcc, -1, v6")
        a.I("s_cmp_eq_u64 vcc, 0")
        a.I("s_cbranch_scc1 L_pm2_skip")
        self.poll(modloads, list(range(12, 18)), "L_pm2", pre=6)
        a.label("L_pm2_skip")
        self.stamp(23)
        self.unpack(16, 20, 21)
        self.unpack(17, 22, 23)
        for k in range(4):
            a.I(f"v_add_f32 v{20+k}, 1.0, v{20+k}")
        self.bf16_round([20, 21, 22, 23], 6)
        self.unpack(14, 24, 25)
        self.unpack(15, 26, 27)
        self.unpack(12, 84, 85)
        self.unpack(13, 86, 87)
        self.unpack(18, 88, 89)
        self.unpack(19, 90, 91)
        self.tr_addr64(28, 6, 7)
        a.I("s_and_b32 s45, s44, 1")
        a.I("s_lshl_b32 s45, s45, 5")
        a.I("v_xor_b32 v28, s45, v28")
        a.I("s_bfe_u32 s45, s44, 0x10001")
        a.I("s_mul_i32 s45, s45, 40960")
        a.I("s_lshr_b32 s46, s44, 2")
        a.I(f"s_mul_i32 s47, s46, {7*2048}")
        a.I("s_add_u32 s45, s45, s47")
        a.I(f"s_add_u32 s45, s45, {L_W}")
        a.I("v_add_u32 v28, s45, v28")
        self.act_addr(29, 1344, 6)
        a.I(f"s_mul_i32 s47, s46, {7*64}")
        a.I(f"s_add_u32 s47, s47, {L_ACT}")
        a.I("v_add_u32 v29, s47, v29")
        self.red_lane_addr(30, 6)
        a.I("s_mul_i32 s47, s87, 1344")
        a.I(f"s_add_u32 s47, s47, {L_ACT}")
        a.I("v_lshl_add_u32 v31, v10, 3, s47")
        a.I("s_mul_i32 s45, s87, 1280")
        a.I(f"s_add_u32 s45, s45, {L_OPART}")
        a.I("v_lshl_add_u32 v92, v10, 3, s45")
        a.I("s_cmp_eq_u32 s88, 2")
        a.I("s_mov_b32 s45, 0x3b9d89d9")
        a.I("s_cselect_b32 s45, s45, 0x3b97b426")
        a.I("v_mov_b32 v93, s45")
        a.I("s_lshl_b32 s45, s44, 3")
        a.I(f"s_add_u32 s45, s45, {L_LNST}")
        a.I("v_mov_b32 v94, s45")
        a.I("s_mul_i32 s45, s87, 24")
        a.I(f"s_add_u32 s45, s45, {L_LNST}")
        a.I("v_mov_b32 v95, s45")
        a.I("s_cmp_ge_u32 s44, 10")
        a.I("s_cbranch_scc1 L_gu_nowait")
        a.I("s_waitcnt vmcnt(0)")
        a.label("L_gu_nowait")
        a.I("s_barrier")
        self.stamp(9)
        self.mfma_preread(7, 28, 2048, 256, 96)
        a.I("v_lshrrev_b32 v6, 4, v5")
        a.I("v_bfe_u32 v7, v5, 2, 2")
        a.I("v_lshl_add_u32 v8, v6, 3, v7")
        a.I("v_mul_u32_u24 v8, 1280, v8")
        a.I("v_and_b32 v9, 3, v5")
        a.I("v_lshl_add_u32 v8, v9, 3, v8")
        a.I(f"v_add_u32 v8, {L_WD}, v8")
        a.I("v_and_b32 v6, 1, v6")
        a.I("v_lshl_or_b32 v7, v6, 2, v7")
        a.I("v_lshlrev_b32 v7, 5, v7")
        for t in range(4):
            a.I(f"s_add_u32 s45, s44, {12*t}")
            a.I("s_lshl_b32 s45, s45, 5")
            a.I(f"v_xor_b32 v9, s45, v7")
            a.I(f"v_add_u32 v{148+t}, v8, v9")
        if self.cfg.ygate:
            a.I("s_and_b32 s45, s44, 7")
            a.I("s_mul_i32 s45, s45, 10240")
            a.I("v_add_u32 v6, s45, v32")
            self.poll(["buffer_load_dwordx4 v[44:47], v6, s[40:43], s86 offen sc1"], [44, 45, 46, 47], "L_pyg", pre=7)
        self.poll_sel(yloads, "L_py", 6)
        self.stamp(10)
        for (o_, d, q) in ((48, 48, 52), (56, 56, 60), (64, 64, 68), (72, 72, 76), (48, 48, 56), (64, 64, 72), (40, 48, 64)):
            a.I(f"v_pk_add_f32 v[{o_}:{o_+1}], v[{d}:{d+1}], v[{q}:{q+1}]")
            a.I(f"v_pk_add_f32 v[{o_+2}:{o_+3}], v[{d+2}:{d+3}], v[{q+2}:{q+3}]")
        o = [40, 41, 42, 43]
        self.bf16_round(o, 6)
        a.I("v_pk_mul_f32 v[40:41], v[40:41], v[84:85]")
        a.I("v_pk_mul_f32 v[42:43], v[42:43], v[86:87]")
        self.bf16_round(o, 6)
        a.I("v_pk_add_f32 v[40:41], v[40:41], v[88:89]")
        a.I("v_pk_add_f32 v[42:43], v[42:43], v[90:91]")
        a.I("v_cvt_pk_bf16_f32 v36, v40, v41")
        a.I("v_cvt_pk_bf16_f32 v37, v42, v43")
        self.unpack(36, 32, 33)
        self.unpack(37, 34, 35)
        a.I("s_mov_b64 exec, s[50:51]")
        a.I("ds_write_b64 v92, v[36:37]")
        a.I("s_mov_b64 exec, -1")
        a.I("v_readfirstlane_b32 s46, v32")
        for k in range(4):
            a.I(f"v_subrev_f32 v{40+k}, s46, v{32+k}")
        a.I("v_add_f32 v36, v40, v41")
        a.I("v_mul_f32 v37, v40, v40")
        a.I("v_add_f32 v38, v42, v43")
        a.I("v_fmac_f32 v37, v41, v41")
        a.I("v_add_f32 v36, v36, v38")
        a.I("v_fmac_f32 v37, v42, v42")
        a.I("v_fmac_f32 v37, v43, v43")
        a.I("v_cndmask_b32 v36, 0, v36, s[50:51]")
        a.I("v_cndmask_b32 v37, 0, v37, s[50:51]")
        for r in (8, 4, 2, 1):
            for v in (36, 37):
                a.I(f"v_add_f32_dpp v{v}, v{v}, v{v} row_ror:{r} row_mask:0xf bank_mask:0xf")
        for m in ("row_bcast:15 row_mask:0xa", "row_bcast:31 row_mask:0xc"):
            for v in (36, 37):
                a.I(f"v_add_f32_dpp v{v}, v{v}, v{v} {m} bank_mask:0xf")
        a.I("v_readlane_b32 s47, v36, 63")
        a.I("v_readlane_b32 s45, v37, 63")
        a.I("v_mul_f32 v38, s47, v93")
        a.I("v_mov_b32 v39, s45")
        a.I("v_add_f32 v37, s46, v38")
        a.I("v_mul_f32 v38, s47, v38")
        a.I("v_sub_f32 v38, v39, v38")
        a.I("ds_write_b32 v94, v37")
        a.I("ds_write_b32 v94, v38 offset:4")
        a.I("s_waitcnt lgkmcnt(0)")
        a.I("s_barrier")
        for t in range(4):
            b = 124 + 4 * t
            a.I(f"ds_read_b64_tr_b16 v[{b}:{b+1}], v{148+t}")
            a.I(f"ds_read_b64_tr_b16 v[{b+2}:{b+3}], v{148+t} offset:{4*1280}")
        a.I("ds_read_b64 v[40:41], v95")
        a.I("ds_read_b64 v[42:43], v95 offset:8")
        a.I("ds_read_b64 v[44:45], v95 offset:16")
        a.I("s_waitcnt lgkmcnt(0)")
        a.I("v_add_f32 v46, v40, v42")
        a.I("v_mul_f32 v46, 0x43580000, v46")
        a.I("v_mov_b32 v47, 0x43500000")
        a.I("v_fmac_f32 v46, v47, v44")
        a.I("v_mul_f32 v46, 0x3acccccd, v46")
        a.I("v_sub_f32 v40, v40, v46")
        a.I("v_sub_f32 v42, v42, v46")
        a.I("v_sub_f32 v44, v44, v46")
        a.I("v_mul_f32 v40, v40, v40")
        a.I("v_fmac_f32 v40, v42, v42")
        a.I("v_mul_f32 v40, 0x43580000, v40")
        a.I("v_mul_f32 v44, v44, v44")
        a.I("v_fmac_f32 v40, v47, v44")
        a.I("v_add_f32 v40, v40, v41")
        a.I("v_add_f32 v40, v40, v43")
        a.I("v_add_f32 v40, v40, v45")
        a.I("v_mul_f32 v40, 0x3acccccd, v40")
        self.ln_denom(40, 48)
        a.I("v_cvt_pk_bf16_f32 v46, v46, v46")
        a.I("v_lshlrev_b32 v46, 16, v46")
        a.I("v_rcp_f32 v41, v40")
        o = [32, 33, 34, 35]
        for r in o:
            a.I(f"v_sub_f32 v{r}, v{r}, v46")
        self.bf16_round(o, 6)
        for r in o:
            self.div_by(r, 40, 41, 7)
        self.bf16_round(o, 6)
        for k, r in enumerate(o):
            a.I(f"v_mul_f32 v{r}, v{r}, v{20+k}")
        self.bf16_round(o, 6)
        for k, r in enumerate(o):
            a.I(f"v_add_f32 v{r}, v{r}, v{24+k}")
        a.I("v_cvt_pk_bf16_f32 v32, v32, v33")
        a.I("v_cvt_pk_bf16_f32 v33, v34, v35")
        a.I("s_mov_b64 exec, s[50:51]")
        a.I("ds_write_b64 v31, v[32:33]")
        a.I("s_mov_b64 exec, -1")
        a.I("s_waitcnt lgkmcnt(0)")
        a.I("s_barrier")
        a.I("s_cmp_ge_u32 s44, 8")
        a.I("s_cbranch_scc1 L_gu_m6")
        self.mfma_with_b(7, 96, 29, 40, 20)
        a.I("s_branch L_gu_mdone")
        a.label("L_gu_m6")
        a.fence(2)
        self.mfma_with_b(6, 96, 29, 40, 20)
        a.label("L_gu_mdone")
        a.fence(8)
        self.write_red(20, 30)
        a.I("s_cmp_lg_u32 s44, 0")
        a.I("s_cbranch_scc1 L_gu_done")
        a.I("v_lshlrev_b32 v6, 4, v5")
        for kt in range(3):
            a.I(f"ds_read_b128 v[{20+4*kt}:{23+4*kt}], v6 offset:{L_RED + 1024*kt}")
        a.I("s_waitcnt lgkmcnt(0)")
        for k in range(4):
            a.I(f"v_add_f32 v{20+k}, v{20+k}, v{24+k}")
        for k in range(4):
            a.I(f"v_add_f32 v{20+k}, v{20+k}, v{28+k}")
        self.bf16_round([20, 21, 22, 23], 6)
        for k in range(4):
            a.I(f"v_mov_b32 v{24+k}, v{20+k}")
        for k in range(4):
            a.I(f"v_permlane32_swap_b32 v{20+k}, v{24+k}")
        for k in range(4):
            a.I(f"v_mul_f32 v{20+k}, v{20+k}, v{24+k}")
        a.I("v_cvt_pk_bf16_f32 v20, v20, v21")
        a.I("v_cvt_pk_bf16_f32 v21, v22, v23")
        a.I("v_and_b32 v6, 3, v5")
        a.I("v_lshlrev_b32 v6, 6, v6")
        a.I("v_bfe_u32 v7, v5, 2, 3")
        a.I("v_lshl_add_u32 v6, v7, 3, v6")
        a.I("s_mov_b32 exec_lo, -1"); a.I("s_mov_b32 exec_hi, 0")
        a.I(f"ds_write_b64 v6, v[20:21] offset:{L_QV}")
        a.I("s_mov_b64 exec, -1")
        a.I("s_waitcnt lgkmcnt(0)")
        a.label("L_gu_done")
        a.I("s_barrier")
        a.I("v_and_b32 v6, 3, v5")
        a.I("v_lshlrev_b32 v6, 6, v6")
        a.I("v_lshrrev_b32 v7, 4, v5")
        a.I("v_lshl_add_u32 v6, v7, 4, v6")
        a.I(f"ds_read_b128 v[40:43], v6 offset:{L_QV}")
        a.I("v_and_b32 v6, 3, v5")
        a.I("v_lshlrev_b32 v6, 6, v6")
        a.I("v_lshl_add_u32 v6, v7, 4, v6")
        a.I("s_mul_i32 s45, s44, 12288")
        a.I(f"s_lshl_b32 s46, s{S_NB}, 8")
        a.I("s_add_u32 s45, s45, s46")
        a.I(f"s_add_u32 s45, s45, {WS_PD}")
        a.I("s_waitcnt lgkmcnt(0)")
        for t in range(4):
            a.I(f"v_mfma_f32_16x16x32_bf16 v[{44+4*t}:{47+4*t}], v[{124+4*t}:{127+4*t}], v[40:43], 0")
        a.I(f"s_mov_b32 exec_lo, 0x{MASK_N4_LO:x}")
        a.I(f"s_mov_b32 exec_hi, 0x{MASK_N4_LO:x}")
        for t in range(4):
            if t == 3:
                a.I("s_cmp_ge_u32 s44, 4")
                a.I("s_cbranch_scc1 L_gu_st_done")
            self.canon([44+4*t+k for k in range(4)], 12)
            a.I(f"buffer_store_dwordx4 v[{44+4*t}:{47+4*t}], v6, s[40:43], s45 offen sc1")
            if t < 3:
                a.I(f"s_add_u32 s45, s45, {12*12288}")
        a.label("L_gu_st_done")
        a.I("s_mov_b64 exec, -1")
        self.stamp(11)

    def post_final(self):
        a = self.a
        a.fence(2)
        a.I("v_lshlrev_b32 v10, 4, v5")
        a.I(f"s_mul_i32 s47, s{S_DT}, 12288")
        a.I("s_lshl_b32 s45, s44, 10")
        a.I("s_add_u32 s47, s47, s45")
        a.I(f"s_add_u32 s47, s47, {WS_PD}")
        a.I("v_bfe_u32 v12, v5, 2, 2")
        a.I("v_and_b32 v13, 3, v5")
        a.I("v_mul_u32_u24 v14, 7680, v12")
        a.I("v_lshl_add_u32 v14, v13, 3, v14")
        a.I(f"s_lshl_b32 s45, s{S_DT}, 5")
        a.I(f"s_add_u32 s46, s45, {WS_MOD + 6400}")
        a.I("v_mul_u32_u24 v31, 1280, v12")
        a.I("v_lshl_add_u32 v31, v13, 3, v31")
        a.I(f"s_add_u32 s45, s45, {L_OPART}")
        a.I("v_add_u32 v31, s45, v31")
        a.I("v_and_b32 v30, 15, v5")
        a.I("v_lshlrev_b32 v30, 4, v30")
        a.I("s_lshl_b32 s45, s44, 8")
        a.I(f"s_add_u32 s45, s45, {L_RED}")
        a.I("v_add_u32 v29, s45, v30")
        self.stamp(19)
        self.poll(["buffer_load_dwordx4 v[40:43], v10, s[40:43], s47 offen sc1",
                   "buffer_load_dwordx2 v[22:23], v14, s[40:43], s46 offen sc1"], [40, 41, 42, 43, 22, 23], "L_ph", pre=6)
        self.stamp(20)
        for sw in ("v_permlane32_swap_b32", "v_permlane16_swap_b32"):
            for k in range(4):
                a.I(f"v_mov_b32 v{44+k}, v{40+k}")
            for k in range(4):
                a.I(f"{sw} v{40+k}, v{44+k}")
            for k in range(4):
                a.I(f"v_add_f32 v{40+k}, v{40+k}, v{44+k}")
        a.I("s_mov_b32 exec_lo, 0xffff"); a.I("s_mov_b32 exec_hi, 0")
        a.I("ds_write_b128 v29, v[40:43]")
        a.I("s_mov_b64 exec, -1")
        a.I("s_waitcnt lgkmcnt(0)")
        a.I("s_barrier")
        a.I("s_cmp_lg_u32 s44, 0")
        a.I("s_cbranch_scc1 L_dn_done")
        a.I("v_lshrrev_b32 v6, 4, v5")
        a.I("v_mul_u32_u24 v6, 768, v6")
        a.I("v_add_u32 v6, v6, v30")
        for k in range(3):
            a.I(f"ds_read_b128 v[{40+4*k}:{43+4*k}], v6 offset:{L_RED + 256*k}")
        a.I("ds_read_b64 v[32:33], v31")
        self.srd(36, 26, 5120)
        a.I("s_waitcnt lgkmcnt(0)")
        for k in range(4):
            a.I(f"v_add_f32 v{40+k}, v{40+k}, v{44+k}")
        for k in range(4):
            a.I(f"v_add_f32 v{40+k}, v{40+k}, v{48+k}")
        for sw in ("v_permlane32_swap_b32", "v_permlane16_swap_b32"):
            for k in range(4):
                a.I(f"v_mov_b32 v{44+k}, v{40+k}")
            for k in range(4):
                a.I(f"{sw} v{40+k}, v{44+k}")
            for k in range(4):
                a.I(f"v_add_f32 v{40+k}, v{40+k}, v{44+k}")
        o = [40, 41, 42, 43]
        self.bf16_round(o, 6)
        self.unpack(22, 24, 25)
        self.unpack(23, 26, 27)
        for k in range(4):
            a.I(f"v_mul_f32 v{40+k}, v{40+k}, v{24+k}")
        self.bf16_round(o, 6)
        self.unpack(32, 24, 25)
        self.unpack(33, 26, 27)
        for k in range(4):
            a.I(f"v_add_f32 v{40+k}, v{40+k}, v{24+k}")
        a.I("v_cvt_pk_bf16_f32 v40, v40, v41")
        a.I("v_cvt_pk_bf16_f32 v41, v42, v43")
        a.I("v_mul_u32_u24 v6, 1280, v12")
        a.I("v_lshl_add_u32 v6, v13, 3, v6")
        a.I(f"s_lshl_b32 s45, s{S_DT}, 5")
        a.I("s_mov_b32 exec_lo, 0xffff"); a.I("s_mov_b32 exec_hi, 0")
        a.I("buffer_store_dwordx2 v[40:41], v6, s[36:39], s45 offen")
        a.I("s_mov_b64 exec, -1")
        a.label("L_dn_done")
        self.stamp(21)

    def tail(self):
        a = self.a
        a.label("L_tail")
        if self.cfg.dbgt:
            a.fence(4)
            a.I("s_cmp_eq_u32 s44, 0")
            a.I("s_cbranch_scc0 L_end")
            self.stamp(13)
            a.I("s_mov_b64 exec, 1")
            a.I("s_not_b32 s98, s98")
            for i, r in enumerate((98, 77, 72, 66, 64 + 4, 64 + 6)):
                a.I(f"v_mov_b32 v6, {16 + 4*i}")
                a.I(f"v_mov_b32 v7, s{r}")
                a.I("global_atomic_umax v6, v7, s[28:29] sc1")
            a.I("s_branch L_end")
        if self.diag and not self.cfg.dbgt:
            a.fence(4)
            self.stamp(13)
            a.I(f"s_lshl_b32 s79, s{S_PRE}, 4")
            a.I(f"s_or_b32 s79, s79, s{S_POST}")
            a.I("s_mul_i32 s45, s2, 12")
            a.I("s_add_u32 s45, s45, s44")
            a.I("s_lshl_b32 s45, s45, 7")
            a.I(f"s_add_u32 s45, s45, {WS_DBG}")
            a.I("s_mov_b64 exec, 1")
            a.I("v_mov_b32 v6, 0")
            regs = [64 + k for k in range(16)] + [93 + k for k in range(8)]
            for q in range(6):
                for k in range(4):
                    a.I(f"v_mov_b32 v{8+k}, s{regs[4*q+k]}")
                a.I(f"buffer_store_dwordx4 v[8:11], v6, s[40:43], s45 offen offset:{16*q}")
                a.I("s_nop 1")
        a.label("L_end")
        a.I("s_endpgm")
        a.raw(f""".section .rodata,"a"
.p2align 6
.amdhsa_kernel {self.name}
  .amdhsa_next_free_vgpr 168
  .amdhsa_next_free_sgpr 102
  .amdhsa_accum_offset 168
  .amdhsa_group_segment_fixed_size 0
  .amdhsa_float_denorm_mode_32 3
  .amdhsa_kernarg_size 112
  .amdhsa_user_sgpr_count 2
  .amdhsa_user_sgpr_kernarg_segment_ptr 1
  .amdhsa_system_sgpr_workgroup_id_x 1
.end_amdhsa_kernel""")

    def build(self):
        self.entry()
        self.helper()
        self.a.I("s_branch L_post")
        self.stream()
        self.post()
        self.tail()
        return self.a.text()


def make(path, diag=False, name=KNAME, **kw):
    cfg = StreamCfg()
    for k, v in kw.items():
        setattr(cfg, k, v)
    g = Gen(cfg, diag=diag, name=name)
    txt = g.build()
    open(path, 'w').write(txt)
    return g


if __name__ == '__main__':
    out = sys.argv[1]
    kw = {}
    diag = False
    name = KNAME
    for kv in sys.argv[2:]:
        k, v = kv.split('=')
        if k == 'diag': diag = bool(int(v))
        elif k == 'name': name = v
        else: kw[k] = v.replace('_', ' ').replace('none', '') if k in ('nt', 'pfpol', 'ntV', 'ntW') else int(v)
    g = make(out, diag=diag, name=name, **kw)
    print(out, 'nops', g.a.nops)
```

```python
import sys
sys.path.insert(0, 'gen')
from asmdsl import Asm
import stream as st
from stream import StreamCfg, LOG2E

KNAME = 'adaLN_cond__gqa_block_cached__glu_gated_bilinear__decode_kernel'

WS_MOD, WS_Q, WS_ML, WS_O, WS_Y, WS_PD, WS_DBG = 0, 0x8000, 0x38000, 0x40000, 0x70000, 0x84000, 0x100000
WS_SIZE = 0x200000
L_ACT = 0x0000
L_RED = 0x3200
L_QV = 0x4200
L_STATS = 0x4400
L_FIN = 0x4480
L_HFLAG = 0x4500
L_LNST = 0x4540
L_P = 0x4600
L_OPART = 0x5600
L_W = 0x7000
L_WD = L_W + 81920
L_X1 = 0x6E00
LDS_BYTES = L_W + 81920 + 40960 + 512
LDS = dict(QV=L_QV, STATS=L_STATS, FIN=L_FIN, P=L_P, OPART=L_OPART, TICKET=L_FIN + 8)

SPIN_MAX = 1 << 16
NANF = 0x7fc00000
NANB = 0x7fc07fc0
EPS = 0x3727c5ac

S = dict(srdK=32, srdV=36, srdW=40, wave=44, tmp=45, soff=46, mask0=48, mask1=50, sello=52, selhi=53, log2e=54,
         m=55, l=56, b=57, h=58, half=59, spin=62)
S_PRE, S_BAND, S_POST, S_NB, S_KG = 80, 81, 82, 83, 84
S_KH, S_LATE, S_PHASE, S_DT = 89, 90, 91, 92
MASK_N4_LO = 0x000f000f


class Gen:
    def __init__(self, cfg, diag=False, name=KNAME):
        self.a = Asm()
        self.cfg = cfg
        self.diag = diag
        self.name = name

    def stamp(self, k):
        if not self.diag:
            return
        a = self.a
        a.I("s_memrealtime s[60:61]")
        a.I("s_waitcnt lgkmcnt(0)")
        a.I(f"s_mov_b32 s{64+k if k < 16 else 93+k-16}, s60")

    def srd(self, dst, ptr, size, off=None):
        a = self.a
        if off is None:
            a.I(f"s_mov_b32 s{dst}, s{ptr}")
            a.I(f"s_mov_b32 s{dst+1}, s{ptr+1}")
        else:
            a.I(f"s_add_u32 s{dst}, s{ptr}, s{off}")
            a.I(f"s_addc_u32 s{dst+1}, s{ptr+1}, 0")
        a.I(f"s_mov_b32 s{dst+2}, {size}")
        a.I(f"s_mov_b32 s{dst+3}, 0x20000")

    def canon(self, regs, nanreg=None):
        a = self.a
        for r in regs:
            a.I(f"v_min_u32 v{r}, -2, v{r}")

    def poll_sel(self, loads, label, t, first_issued=False):
        a = self.a
        n = len(loads)
        a.I(f"s_mov_b32 s63, {(1 << n) - 1}")
        a.I("s_mov_b32 s62, 0")
        if first_issued:
            a.I(f"s_branch {label}_chk")
        a.label(label)
        for i, (ld, regs) in enumerate(loads):
            a.I(f"s_bitcmp1_b32 s63, {i}")
            a.I(f"s_cbranch_scc0 {label}_s{i}")
            a.I(ld)
            a.label(f"{label}_s{i}")
        a.label(f"{label}_chk")
        a.I("s_add_u32 s62, s62, 1")
        a.I("s_waitcnt vmcnt(0)")
        for i, (ld, regs) in enumerate(loads):
            r = regs
            a.I(f"v_max3_u32 v{t}, v{r[0]}, v{r[1]}, v{r[2]}")
            a.I(f"v_max_u32 v{t}, v{t}, v{r[3]}")
            a.I(f"v_cmp_eq_u32 vcc, -1, v{t}")
            a.I("s_cmp_eq_u64 vcc, 0")
            a.I(f"s_cbranch_scc0 {label}_p{i}")
            a.I(f"s_bitset0_b32 s63, {i}")
            a.label(f"{label}_p{i}")
        a.I("s_cmp_eq_u32 s63, 0")
        a.I(f"s_cbranch_scc1 {label}_ok")
        a.I(f"s_cmp_lt_u32 s62, {SPIN_MAX}")
        a.I(f"s_cbranch_scc1 {label}")
        a.label(f"{label}_ok")

    def poll(self, loads, regs, label, pre=None):
        a = self.a
        a.I("s_mov_b32 s62, 0")
        a.label(label)
        for ld in loads:
            a.I(ld)
        a.I("s_add_u32 s62, s62, 1")
        a.I("s_waitcnt vmcnt(0)")
        rs = list(regs)
        t = pre
        first = True
        i = 0
        while i < len(rs):
            if first:
                if len(rs) >= 3:
                    a.I(f"v_max3_u32 v{t}, v{rs[0]}, v{rs[1]}, v{rs[2]}"); i = 3
                elif len(rs) == 2:
                    a.I(f"v_max_u32 v{t}, v{rs[0]}, v{rs[1]}"); i = 2
                else:
                    a.I(f"v_mov_b32 v{t}, v{rs[0]}"); i = 1
                first = False
            elif i + 1 < len(rs):
                a.I(f"v_max3_u32 v{t}, v{t}, v{rs[i]}, v{rs[i+1]}"); i += 2
            else:
                a.I(f"v_max_u32 v{t}, v{t}, v{rs[i]}"); i += 1
        a.I(f"v_cmp_eq_u32 vcc, -1, v{t}")
        a.I("s_cmp_eq_u64 vcc, 0")
        a.I(f"s_cbranch_scc1 {label}_ok")
        a.I(f"s_cmp_lt_u32 s62, {SPIN_MAX}")
        a.I(f"s_cbranch_scc1 {label}")
        a.label(f"{label}_ok")

    def poll_counter(self, off, expect, label, vz, vt):
        a = self.a
        a.I(f"v_mov_b32 v{vz}, {off}")
        a.I("s_mov_b32 s62, 0")
        a.I("s_mov_b64 exec, 1")
        a.label(label)
        a.I(f"global_load_dword v{vt}, v{vz}, s[28:29] sc1")
        a.I("s_add_u32 s62, s62, 1")
        a.I("s_waitcnt vmcnt(0)")
        a.I(f"v_readfirstlane_b32 s45, v{vt}")
        a.I(f"s_cmp_ge_u32 s45, {expect}")
        a.I(f"s_cbranch_scc1 {label}_ok")
        a.I(f"s_cmp_lt_u32 s62, {SPIN_MAX}")
        a.I(f"s_cbranch_scc1 {label}")
        a.label(f"{label}_ok")
        a.I("s_mov_b64 exec, -1")

    def hsync(self, k, label, vz, vt):
        a = self.a
        a.I("s_waitcnt lgkmcnt(0)")
        a.I("s_lshl_b32 s45, s44, 2")
        a.I(f"s_add_u32 s45, s45, {L_HFLAG}")
        a.I(f"v_mov_b32 v{vz}, s45")
        a.I(f"v_mov_b32 v{vt}, {k}")
        a.I(f"ds_write_b32 v{vz}, v{vt}")
        a.I(f"v_mov_b32 v{vz}, {L_HFLAG}")
        a.I("s_mov_b32 s62, 0")
        a.label(label)
        a.I(f"ds_read_b128 v[{vt}:{vt+3}], v{vz}")
        a.I("s_add_u32 s62, s62, 1")
        a.I("s_waitcnt lgkmcnt(0)")
        a.I(f"v_min3_u32 v{vt}, v{vt}, v{vt+1}, v{vt+2}")
        a.I(f"v_min_u32 v{vt}, v{vt}, v{vt+3}")
        a.I(f"v_readfirstlane_b32 s45, v{vt}")
        a.I(f"s_cmp_ge_u32 s45, {k}")
        a.I(f"s_cbranch_scc1 {label}_ok")
        a.I(f"s_cmp_lt_u32 s62, {SPIN_MAX*4}")
        a.I(f"s_cbranch_scc1 {label}")
        a.label(f"{label}_ok")

    def bf16_round(self, regs, tmp):
        a = self.a
        for i in range(0, len(regs), 2):
            a.I(f"v_cvt_pk_bf16_f32 v{tmp}, v{regs[i]}, v{regs[i+1]}")
            a.I(f"v_lshlrev_b32 v{regs[i]}, 16, v{tmp}")
            a.I(f"v_and_b32 v{regs[i+1]}, 0xffff0000, v{tmp}")

    def unpack(self, src, lo, hi):
        a = self.a
        a.I(f"v_lshlrev_b32 v{lo}, 16, v{src}")
        a.I(f"v_and_b32 v{hi}, 0xffff0000, v{src}")

    def wave_sum_bcast(self, v, sdst):
        st.wave_reduce(self.a, 'v_add_f32', v, sdst)

    def ln_denom(self, vvar, vt):
        a = self.a
        a.I(f"v_cvt_pk_bf16_f32 v{vt}, v{vvar}, v{vvar}")
        a.I(f"v_lshlrev_b32 v{vvar}, 16, v{vt}")
        a.I(f"v_add_f32 v{vvar}, 0x{EPS:x}, v{vvar}")
        a.I(f"v_cvt_pk_bf16_f32 v{vt}, v{vvar}, v{vvar}")
        a.I(f"v_lshlrev_b32 v{vvar}, 16, v{vt}")
        a.I(f"v_sqrt_f32 v{vt}, v{vvar}")
        a.I(f"v_rcp_f32 v{vt+1}, v{vt}")
        a.I(f"v_fma_f32 v{vt+2}, -v{vt}, v{vt}, v{vvar}")
        a.I(f"v_mul_f32 v{vt+1}, 0.5, v{vt+1}")
        a.I(f"v_fma_f32 v{vt}, v{vt+2}, v{vt+1}, v{vt}")
        a.I(f"v_cvt_pk_bf16_f32 v{vt}, v{vt}, v{vt}")
        a.I(f"v_lshlrev_b32 v{vvar}, 16, v{vt}")

    def div_by(self, num, den, rcp, t):
        a = self.a
        a.I(f"v_mul_f32 v{t}, v{num}, v{rcp}")
        a.I(f"v_fma_f32 v{num}, -v{t}, v{den}, v{num}")
        a.I(f"v_fma_f32 v{num}, v{num}, v{rcp}, v{t}")

    def entry(self):
        a = self.a
        a.raw(f"; @launch grid=(256,1,1) block=(768,1,1) lds={LDS_BYTES}")
        a.raw('.amdgcn_target "amdgcn-amd-amdhsa--gfx950"\n.text')
        a.raw(f".globl {self.name}\n.p2align 8\n.type {self.name},@function\n{self.name}:")
        a.I("s_cmp_ge_u32 s2, 256")
        a.I("s_cbranch_scc1 L_end")
        if self.cfg.dbgt:
            a.I("s_memrealtime s[98:99]")
        a.I("s_load_dwordx16 s[4:19], s[0:1], 0")
        a.I("s_load_dwordx8 s[20:27], s[0:1], 64")
        a.I("s_load_dwordx4 s[28:31], s[0:1], 96")
        a.I("v_lshrrev_b32 v1, 6, v0")
        a.I("v_and_b32 v5, 63, v0")
        a.I("v_readfirstlane_b32 s44, v1")
        a.I("s_lshr_b32 s45, s2, 1")
        a.I(f"s_mov_b32 s{S_PRE}, 2")
        a.I("s_bitcmp1_b32 s2, 0")
        a.I("s_cbranch_scc1 L_early_q")
        a.I(f"s_sub_u32 s{S_BAND}, s45, 4")
        a.I(f"s_cmp_lt_u32 s{S_BAND}, 60")
        a.I(f"s_cselect_b32 s{S_PRE}, 1, 0")
        a.I("s_cmp_lt_u32 s45, 64")
        a.I("s_cbranch_scc1 L_early_done")
        a.I(f"s_mov_b32 s{S_PRE}, 2")
        a.I("s_add_u32 s45, s45, 64")
        a.label("L_early_q")
        a.I(f"s_lshr_b32 s{S_BAND}, s45, 1")
        a.I(f"s_and_b32 s{S_KH}, s45, 1")
        a.label("L_early_done")
        a.I("s_cmp_lt_u32 s44, 4")
        a.I("s_cbranch_scc0 L_stream")

    def pair_unit(self, sv, sdst):
        a = self.a
        a.I(f"s_and_b32 s46, s{sv}, 7")
        a.I(f"s_lshr_b32 s47, s{sv}, 4")
        a.I("s_lshl_b32 s47, s47, 3")
        a.I("s_add_u32 s46, s46, s47")
        a.I(f"s_bfe_u32 s47, s{sv}, 0x10003")
        a.I(f"s_lshl_b32 s{sdst}, s46, 1")
        a.I(f"s_add_u32 s{sdst}, s{sdst}, s47")

    def roles_rest(self):
        a = self.a
        if self.cfg.xp == 0:
            a.I("s_and_b32 s45, s2, 7")
            a.I("s_lshr_b32 s46, s2, 3")
            a.I("s_and_b32 s47, s46, 3")
            a.I("s_lshl_b32 s47, s47, 3")
            a.I("s_add_u32 s58, s45, s47")
            a.I("s_lshr_b32 s46, s2, 5")
            a.I("s_lshr_b32 s57, s46, 1")
            a.I("s_and_b32 s59, s46, 1")
        else:
            a.I("s_and_b32 s59, s2, 1")
            a.I(f"s_xor_b32 s45, s2, {self.cfg.xp}")
            a.I("s_cmp_eq_u32 s59, 0")
            a.I("s_cselect_b32 s45, s2, s45")
            a.I("s_bfe_u32 s45, s45, 0x20001")
            a.I("s_lshr_b32 s46, s2, 3")
            a.I("s_lshr_b32 s57, s46, 3")
            a.I("s_and_b32 s46, s46, 7")
            a.I("s_lshl_b32 s46, s46, 2")
            a.I("s_add_u32 s58, s46, s45")
        a.I(f"s_mov_b32 s{S_POST}, 0")
        a.I("s_lshr_b32 s45, s2, 1")
        a.I("s_mul_i32 s46, s45, 6554")
        a.I("s_lshr_b32 s46, s46, 16")
        a.I(f"s_mov_b32 s{S_KG}, s46")
        a.I("s_mul_i32 s47, s46, 10")
        a.I(f"s_sub_u32 s{S_NB}, s45, s47")
        a.I("s_cmp_lt_u32 s45, 80")
        a.I(f"s_cselect_b32 s{S_POST}, 1, 0")
        lab = a.newlabel('roles_done')
        a.I("s_bitcmp1_b32 s2, 0")
        a.I(f"s_cbranch_scc0 {lab}")
        a.I(f"s_mov_b32 s{S_NB}, s45")
        a.I("s_cmp_lt_u32 s45, 48")
        a.I(f"s_cselect_b32 s{S_POST}, 2, 0")
        a.label(lab)

    def prefetch_weights(self):
        a = self.a
        pol = self.cfg.pfpol
        lab = a.newlabel('pf')
        a.I("s_cmp_eq_u32 s44, 0")
        a.I(f"s_cbranch_scc1 {lab}_done")
        a.I("v_lshlrev_b32 v8, 4, v5")
        if self.cfg.pfs:
            for i, p in enumerate((16, 18, 20)):
                a.I(f"s_cmp_eq_u32 s44, {i+1}")
                a.I(f"s_cbranch_scc0 {lab}_n{i}")
                a.I("s_mul_i32 s45, s2, 7680")
                self.srd(32, p, 7680, off=45)
                a.I("s_mov_b32 s46, 0")
                a.I("s_mov_b32 s63, 8")
                a.label(f"{lab}_t{i}")
                a.I(f"s_waitcnt vmcnt({self.cfg.PW - 1})")
                a.I(f"buffer_load_dwordx4 v[12:15], v8, s[32:35], s46 offen {pol}")
                a.I("s_add_u32 s46, s46, 1024")
                a.I("s_sub_u32 s63, s63, 1")
                a.I("s_cmp_lg_u32 s63, 0")
                a.I(f"s_cbranch_scc1 {lab}_t{i}")
                a.label(f"{lab}_n{i}")
            a.I(f"s_branch {lab}_done")
        a.I("s_cmp_eq_u32 s44, 3")
        a.I(f"s_cbranch_scc1 {lab}_small")
        a.I("s_mul_i32 s45, s2, 30720")
        self.srd(32, 12, 30720, off=45)
        a.I("s_sub_u32 s46, s44, 1")
        a.I("s_mul_i32 s46, s46, 15360")
        a.I("s_mov_b32 s63, 15")
        a.label(f"{lab}_l1")
        a.I(f"s_waitcnt vmcnt({self.cfg.PW - 1})")
        a.I(f"buffer_load_dwordx4 v[12:15], v8, s[32:35], s46 offen {pol}")
        a.I("s_add_u32 s46, s46, 1024")
        a.I("s_sub_u32 s63, s63, 1")
        a.I("s_cmp_lg_u32 s63, 0")
        a.I(f"s_cbranch_scc1 {lab}_l1")
        a.I(f"s_branch {lab}_done")
        a.label(f"{lab}_small")
        for i, p in enumerate((16, 18, 20)):
            a.I("s_mul_i32 s45, s2, 7680")
            self.srd(32, p, 7680, off=45)
            a.I("s_mov_b32 s46, 0")
            a.I("s_mov_b32 s63, 8")
            a.label(f"{lab}_s{i}")
            a.I(f"s_waitcnt vmcnt({self.cfg.PW - 1})")
            a.I(f"buffer_load_dwordx4 v[12:15], v8, s[32:35], s46 offen {pol}")
            a.I("s_add_u32 s46, s46, 1024")
            a.I("s_sub_u32 s63, s63, 1")
            a.I("s_cmp_lg_u32 s63, 0")
            a.I(f"s_cbranch_scc1 {lab}_s{i}")
        a.label(f"{lab}_done")
        a.fence(2)

    def v_weights(self):
        a = self.a
        WN = self.cfg.WW
        a.I(f"s_cmp_eq_u32 s{S_POST}, 1")
        a.I("s_cbranch_scc0 L_vw_gu")
        a.I(f"s_mul_i32 s45, s{S_KG}, {768*1280}")
        a.I(f"s_lshl_b32 s46, s{S_NB}, 7")
        a.I("s_add_u32 s47, s45, s46")
        self.srd(32, 12, 768 * 1280, off=47)
        self.dma_voff128(1280, 8, 9, 6, 7)
        a.I("s_sub_u32 s63, s44, 1")
        a.I(f"s_mul_i32 s46, s63, {256*1280}")
        a.I("s_lshl_b32 s47, s63, 15")
        a.I(f"s_add_u32 s47, s47, {L_W}")
        self.dma_loop(32, 32, 8, 9, 47, 46, 8 * 1280, "L_vw_wo_loop", window=WN + 1)
        a.I("s_branch L_vw_done")
        a.label("L_vw_gu")
        a.I(f"s_cmp_eq_u32 s{S_POST}, 2")
        a.I("s_cbranch_scc0 L_vw_done")
        a.I("s_cmp_eq_u32 s44, 3")
        a.I("s_cbranch_scc1 L_vw_dn")
        a.I(f"s_lshl_b32 s47, s{S_NB}, 6")
        a.I("s_cmp_eq_u32 s44, 2")
        a.I("s_cselect_b32 s48, s18, s16")
        a.I("s_cselect_b32 s49, s19, s17")
        self.srd(32, 48, 640 * 3072, off=47)
        self.dma_voff64(3072, 8, 6, 7)
        a.I("s_mov_b32 s46, 0")
        a.I("s_sub_u32 s47, s44, 1")
        a.I("s_mul_i32 s47, s47, 40960")
        a.I(f"s_add_u32 s47, s47, {L_W}")
        self.dma_loop(32, 40, 8, 8, 47, 46, 16 * 3072, "L_vw_gu_loop", window=WN)
        a.I("s_branch L_vw_done")
        a.label("L_vw_dn")
        a.I(f"s_mul_i32 s45, s{S_NB}, 40960")
        self.srd(32, 20, 40960, off=45)
        a.I("v_lshlrev_b32 v8, 4, v5")
        a.I("s_mov_b32 s46, 0")
        a.I(f"s_mov_b32 s47, {L_WD}")
        self.dma_loop(32, 40, 8, 8, 47, 46, 1024, "L_vw_dn_loop", window=WN)

    def roles_from_ticket(self, sfx=""):
        a = self.a
        a.I(f"v_mov_b32 v6, {L_FIN + 8}")
        a.I("ds_read_b32 v7, v6")
        a.I("s_waitcnt lgkmcnt(0)")
        a.I("v_readfirstlane_b32 s45, v7")
        a.I("s_cmp_lt_u32 s45, 40")
        a.I(f"s_cselect_b32 s{S_DT}, s45, -1")
        a.I(f"s_mov_b32 s{S_NB}, s45")
        a.I("s_cmp_lt_u32 s45, 48")
        a.I(f"s_cselect_b32 s{S_POST}, 2, 0")
        a.I(f"s_cbranch_scc1 L_ticket_done{sfx}")
        a.I("s_sub_u32 s45, s45, 48")
        a.I("s_cmp_lt_u32 s45, 80")
        a.I(f"s_cselect_b32 s{S_POST}, 1, 0")
        a.I("s_mul_i32 s46, s45, 6554")
        a.I("s_lshr_b32 s46, s46, 16")
        a.I(f"s_mov_b32 s{S_KG}, s46")
        a.I("s_mul_i32 s47, s46, 10")
        a.I(f"s_sub_u32 s{S_NB}, s45, s47")
        a.label(f"L_ticket_done{sfx}")

    def code_prefetch(self, wave):
        a = self.a
        a.I(f"s_cmp_eq_u32 s44, {wave}")
        a.I("s_cbranch_scc0 L_nopf")
        a.I("s_getpc_b64 s[46:47]")
        a.label("L_pc")
        a.I(f"s_sub_u32 s46, s46, (L_pc-{self.name})")
        a.I("s_subb_u32 s47, s47, 0")
        a.I("s_lshr_b32 s45, s2, 3")
        a.I("s_lshl_b32 s45, s45, 10")
        a.I("v_lshlrev_b32 v6, 4, v5")
        a.I("v_add_u32 v6, s45, v6")
        a.I("v_mov_b32 v7, 0")
        a.I("v_mov_b32 v9, s47")
        a.I("v_add_co_u32 v8, vcc, s46, v6")
        a.I("v_addc_co_u32 v9, vcc, v9, v7, vcc")
        a.I(f"s_mov_b32 s45, (L_end-{self.name}-12)")
        a.I("v_cmp_gt_u32 vcc, s45, v6")
        a.I("s_and_saveexec_b64 s[46:47], vcc")
        a.I("s_cbranch_execz L_pfskip")
        a.I("global_load_dwordx4 v[12:15], v[8:9], off")
        a.label("L_pfskip")
        a.I("s_mov_b64 exec, s[46:47]")
        a.label("L_nopf")

    def pretouch(self):
        a = self.a
        a.I("s_cmp_eq_u32 s44, 10")
        a.I("s_cbranch_scc0 L_nopt")
        a.I("v_lshlrev_b32 v6, 21, v5")
        bufs = [(24, 640*7680), (10, 640*12288), (30, WS_SIZE), (28, 256), (4, 5120), (22, 5120),
                (12, 6144*1280), (16, 640*3072), (18, 640*3072), (20, 1536*1280), (26, 5120)]
        if self.cfg.pretouch >= 2:
            pass
        for i, (p, size) in enumerate(bufs):
            self.srd(32, p, size)
            a.I(f"buffer_load_dword v{12+i}, v6, s[32:35], 0 offen")
        a.label("L_nopt")

    def resets(self):
        a = self.a
        a.I("v_mov_b32 v8, -1")
        a.I("v_mov_b32 v9, -1")
        a.I("v_mov_b32 v10, -1")
        a.I("v_mov_b32 v11, -1")
        a.I("v_lshlrev_b32 v6, 4, v5")
        a.I("s_lshl_b32 s45, s57, 5")
        a.I("s_add_u32 s45, s45, s58")
        a.I("s_lshl_b32 s45, s45, 1")
        a.I("s_add_u32 s45, s45, s59")
        a.I("s_mul_i32 s45, s45, 768")
        a.I(f"s_add_u32 s45, s45, {WS_O}")
        a.I("s_mov_b32 exec_lo, -1"); a.I("s_mov_b32 exec_hi, 0xffff")
        a.I("buffer_store_dwordx4 v[8:11], v6, s[40:43], s45 offen sc1")
        a.I("s_lshl_b32 s45, s2, 7")
        a.I(f"s_add_u32 s45, s45, {WS_ML}")
        a.I("s_mov_b64 exec, 0x11")
        a.I("buffer_store_dwordx4 v[8:11], v6, s[40:43], s45 offen sc1")
        a.I("s_mov_b64 exec, -1")
        a.I("v_lshrrev_b32 v7, 4, v5")
        a.I("v_and_b32 v12, 15, v5")
        a.I("v_lshlrev_b32 v12, 4, v12")

        def rows(cmp, rowbytes, base, bandbytes, band_reg, nchunk, lab, extra=None):
            a.I(cmp)
            a.I(f"s_cbranch_scc0 {lab}")
            a.I(f"v_mul_u32_u24 v13, {rowbytes}, v7")
            a.I("v_add_u32 v13, v13, v12")
            a.I(f"s_mul_i32 s45, s{band_reg}, {bandbytes}")
            if extra:
                a.I(f"s_mul_i32 s46, s{extra}, {4*rowbytes}")
                a.I("s_add_u32 s45, s45, s46")
            a.I(f"s_add_u32 s45, s45, {base}")
            m = (1 << nchunk) - 1
            m32 = m | (m << 16)
            a.I(f"s_mov_b32 exec_lo, 0x{m32:x}")
            a.I(f"s_mov_b32 exec_hi, 0x{m32:x}")
            a.I("buffer_store_dwordx4 v[8:11], v13, s[40:43], s45 offen sc1")
            a.I("s_mov_b64 exec, -1")
            a.label(lab)
        rows(f"s_cmp_eq_u32 s{S_PRE}, 2", 24576, WS_Q, 256, S_BAND, 16, 'L_rs2', extra=S_KH)
        rows(f"s_cmp_eq_u32 s{S_PRE}, 1", 7680, WS_MOD, 128, S_BAND, 8, 'L_rs1')
        rows(f"s_cmp_eq_u32 s{S_POST}, 1", 2560, WS_Y, 256, S_NB, 16, 'L_rs3', extra=S_KG)
        a.I(f"s_cmp_eq_u32 s{S_POST}, 2")
        a.I("s_cbranch_scc0 L_rs4")
        a.I("v_mul_u32_u24 v13, 12288, v7")
        a.I("v_add_u32 v13, v13, v12")
        a.I(f"s_lshl_b32 s45, s{S_NB}, 8")
        a.I(f"s_add_u32 s45, s45, {WS_PD}")
        for k in range(10):
            a.I("buffer_store_dwordx4 v[8:11], v13, s[40:43], s45 offen sc1")
            if k < 9:
                a.I(f"s_add_u32 s45, s45, {4*12288}")
        a.label("L_rs4")

    def resets_arrive(self):
        a = self.a
        a.I("s_waitcnt vmcnt(0)")
        self.stamp(16)
        a.I("s_mov_b64 exec, 1")
        a.I("v_mov_b32 v8, 1")
        a.I("s_and_b32 s45, s2, 1")
        a.I("s_lshl_b32 s45, s45, 7")
        a.I("v_mov_b32 v9, s45")
        a.I("global_atomic_add v9, v8, s[28:29] sc1")
        a.I(f"s_cmp_eq_u32 s{S_PRE}, 1")
        a.I("s_cbranch_scc0 L_noc1")
        a.I(f"s_cmp_lt_u32 s{S_BAND}, 20")
        a.I("s_cbranch_scc0 L_noc1")
        a.I("v_mov_b32 v9, 132")
        a.I("global_atomic_add v9, v8, s[28:29] sc1")
        a.label("L_noc1")
        a.I("s_mov_b64 exec, -1")

    def master(self):
        a = self.a
        a.I("s_cmp_eq_u32 s44, 1")
        a.I("s_cbranch_scc0 L_notmaster")
        a.I("s_cmp_eq_u32 s2, 0")
        a.I("s_cbranch_scc0 L_notmaster")
        def go(val):
            a.I("s_mov_b64 exec, -1")
            a.I("v_lshlrev_b32 v8, 7, v5")
            a.I(f"v_mov_b32 v9, {val}")
            for k in range(4):
                a.I(f"s_mov_b32 s45, {WS_ML + 64 + 8192*k}")
                a.I("buffer_store_dword v9, v8, s[40:43], s45 offen sc1")
        a.I("v_lshlrev_b32 v7, 7, v5")
        a.I("v_mov_b32 v6, 132")
        a.I("v_cmp_eq_u32 vcc, 2, v5")
        a.I("v_cndmask_b32 v7, v7, v6, vcc")
        a.I("s_mov_b32 s62, 0")
        a.I("s_mov_b32 s63, 0")
        a.label("L_master")
        a.I("s_mov_b64 exec, 7")
        a.I("global_load_dword v6, v7, s[28:29] sc1")
        a.I("s_add_u32 s62, s62, 1")
        a.I("s_waitcnt vmcnt(0)")
        a.I("v_readlane_b32 s45, v6, 0")
        a.I("v_readlane_b32 s46, v6, 1")
        a.I("v_readlane_b32 s47, v6, 2")
        a.I("s_min_u32 s45, s45, s46")
        a.I("s_cmp_ge_u32 s45, 128")
        a.I("s_cbranch_scc1 L_master_ok")
        a.I("s_cmp_lt_u32 s47, 20")
        a.I("s_cbranch_scc1 L_master_next")
        a.I("s_cmp_eq_u32 s63, 0")
        a.I("s_cbranch_scc0 L_master_next")
        a.I("s_mov_b32 s63, 1")
        go(1)
        self.stamp(17)
        a.label("L_master_next")
        a.I(f"s_cmp_lt_u32 s62, {SPIN_MAX}")
        a.I("s_cbranch_scc1 L_master")
        a.label("L_master_ok")
        go(2)
        a.I("s_mov_b64 exec, -1")
        self.stamp(18)
        a.label("L_notmaster")

    def poll_go(self, label, vz, vt, level):
        a = self.a
        a.I("s_lshl_b32 s45, s2, 7")
        a.I(f"s_add_u32 s46, s45, {WS_ML + 64}")
        a.I(f"v_mov_b32 v{vz}, 0")
        a.I("s_mov_b32 s62, 0")
        a.I("s_mov_b64 exec, 1")
        a.label(label)
        a.I(f"buffer_load_dword v{vt}, v{vz}, s[40:43], s46 offen sc1")
        a.I("s_add_u32 s62, s62, 1")
        a.I("s_waitcnt vmcnt(0)")
        a.I(f"v_readfirstlane_b32 s{S_LATE}, v{vt}")
        a.I(f"s_sub_u32 s45, s{S_LATE}, {level}")
        a.I(f"s_cmp_le_u32 s45, {2-level}")
        a.I(f"s_cbranch_scc1 {label}_ok")
        a.I(f"s_cmp_lt_u32 s62, {SPIN_MAX}")
        a.I(f"s_cbranch_scc1 {label}")
        a.label(f"{label}_ok")
        a.I("s_mov_b64 exec, -1")

    def stream(self):
        a = self.a
        cfg = self.cfg
        a.label("L_stream")
        a.I("s_cmp_eq_u32 s44, 11")
        a.I("s_cbranch_scc0 L_noprio")
        a.I("s_setprio 3")
        a.label("L_noprio")
        self.roles_rest()
        a.I("s_waitcnt lgkmcnt(0)")
        self.stamp(0)
        self.srd(40, 30, WS_SIZE)
        a.I("s_cmp_eq_u32 s44, 11")
        a.I("s_cbranch_scc0 L_noreset")
        self.resets()
        self.resets_arrive()
        a.I("s_setprio 0")
        a.label("L_noreset")
        a.fence(2)
        a.I("s_sub_u32 s44, s44, 4")
        a.I("s_lshl_b32 s45, s57, 5")
        a.I("s_add_u32 s45, s45, s58")
        a.I("s_mul_i32 s45, s45, 1572864")
        a.I("s_mul_i32 s46, s59, 786432")
        a.I("s_add_u32 s47, s45, s46")
        self.srd(32, 6, 786432, off=47)
        self.srd(36, 8, 786432, off=47)
        a.I("s_branch L_stream_main")

    def stream_bulk(self):
        a = self.a
        cfg = self.cfg
        a.label("L_stream_main")
        a.fence(2)
        st.set_depth(cfg.D)

        def b0():
            a.I("s_barrier")
        S2 = dict(S); S2['b0_after'] = cfg.N1 - 1 if cfg.gate else -1
        S2['hook_before'] = {cfg.NB0: b0}
        issued = st.stream_prologue(a, cfg, S2)
        st.stream_main(a, cfg, S2, LDS, issued, self.stamp)
        a.I("s_add_u32 s44, s44, 4")
        a.I("s_branch L_post")

    def zero_flag(self):
        a = self.a
        a.I("s_lshl_b32 s45, s44, 2")
        a.I(f"s_add_u32 s45, s45, {L_HFLAG}")
        a.I("v_mov_b32 v6, s45")
        a.I("v_mov_b32 v7, 0")
        a.I("ds_write_b32 v6, v7")

    def u_layout(self, n, per):
        a = self.a
        magic = {80: 52429, 40: 104858}[per]
        a.I(f"s_mov_b32 s47, {magic}")
        for jj in range(n):
            a.I(f"v_add_u32 v6, {64*jj}, v5")
            a.I("v_mul_u32_u24 v7, s47, v6")
            a.I(f"v_lshrrev_b32 v{20+jj}, 22, v7")
            a.I(f"v_mul_u32_u24 v7, {per}, v{20+jj}")
            a.I("v_sub_u32 v6, v6, v7")
            a.I(f"v_lshlrev_b32 v{25+jj}, 2, v6")

    def helper_front(self):
        a = self.a
        a.label("L_helper")
        a.I("s_setprio 2")
        a.I("v_lshrrev_b32 v17, 4, v5")
        a.I("v_and_b32 v18, 15, v5")
        a.I(f"s_cmp_eq_u32 s{S_PRE}, 1")
        a.I("s_cbranch_scc0 L_hq0")
        self.dma_voff128(7680, 8, 9, 6, 7)
        a.I(f"s_mul_i32 s46, s44, {160*7680}")
        a.I(f"s_lshl_b32 s85, s{S_BAND}, 7")
        a.I("s_mul_i32 s47, s44, 20480")
        a.I(f"s_add_u32 s47, s47, {L_W}")
        a.I("v_mul_u32_u24 v16, 1280, v17")
        a.I("v_mad_u32_u24 v16, v18, 20, v16")
        a.I("s_mul_i32 s63, s44, 320")
        a.I("s_waitcnt lgkmcnt(0)")
        self.stamp(0)
        self.srd(36, 22, 5120)
        self.srd(32, 24, 640 * 7680, off=85)
        a.I("buffer_load_dwordx4 v[30:33], v16, s[36:39], s63 offen")
        a.I("buffer_load_dword v34, v16, s[36:39], s63 offen offset:16")
        self.dma_loop(32, 20, 8, 9, 47, 46, 8 * 7680, "L_mod_dma", cnt=85)
        self.stamp(3)
        a.I("s_branch L_modrest")
        a.label("L_hq0")
        a.I(f"s_cmp_eq_u32 s{S_PRE}, 2")
        a.I("s_cbranch_scc0 L_hnone")
        self.dma_voff128(12288, 8, 9, 6, 7)
        a.I(f"s_mul_i32 s46, s44, {80*12288}")
        a.I(f"s_mul_i32 s47, s{S_KH}, {320*12288}")
        a.I(f"s_lshl_b32 s45, s{S_BAND}, 7")
        a.I("s_add_u32 s85, s47, s45")
        a.I("s_mul_i32 s47, s44, 10240")
        a.I(f"s_add_u32 s47, s47, {L_W}")
        a.I("v_min_u32 v18, 9, v18")
        a.I("v_mul_u32_u24 v16, 1280, v17")
        a.I("v_lshl_add_u32 v16, v18, 4, v16")
        a.I(f"s_mul_i32 s63, s{S_KH}, 640")
        a.I("s_mul_i32 s45, s44, 160")
        a.I("s_add_u32 s63, s63, s45")
        a.I("v_lshlrev_b32 v19, 2, v5")
        a.I("s_mul_i32 s48, s44, 1280")
        a.I("s_waitcnt lgkmcnt(0)")
        self.stamp(0)
        self.srd(36, 4, 5120)
        self.srd(32, 10, 320 * 12288, off=85)
        for jj in range(5):
            a.I(f"buffer_load_dword v{35+jj}, v19, s[36:39], s48 offen offset:{256*jj}")
        a.I("buffer_load_dwordx4 v[28:31], v16, s[36:39], s63 offen")
        self.dma_loop(32, 10, 8, 9, 47, 46, 8 * 12288, "L_q_dma", cnt=85)
        self.stamp(3)
        a.I("s_branch L_qrest")

    def helper(self):
        a = self.a
        a.label("L_hnone")
        self.zero_flag()
        a.I("s_waitcnt lgkmcnt(0)")
        self.stamp(0)
        self.srd(40, 30, WS_SIZE)
        a.I("s_barrier")
        self.master()
        a.I("s_branch L_h_go")
        a.label("L_modrest")
        a.fence(2)
        self.zero_flag()
        self.srd(40, 30, WS_SIZE)
        a.I(f"s_mov_b32 s54, 0x{LOG2E:x}")
        a.I("s_mul_i32 s47, s44, 320")
        a.I(f"s_add_u32 s47, s47, {L_ACT}")
        a.I("v_mul_u32_u24 v40, 1344, v17")
        a.I("v_mad_u32_u24 v40, v18, 20, v40")
        a.I("v_add_u32 v40, s47, v40")
        a.I("s_waitcnt vmcnt(20)")
        for jj in range(5):
            lo, hi = 46, 47
            self.unpack(30 + jj, lo, hi)
            for r in (lo, hi):
                a.I(f"v_mul_f32 v48, s54, v{r}")
                a.I("v_exp_f32 v48, -v48")
                a.I("v_add_f32 v48, 1.0, v48")
                a.I("v_min_f32 v48, 0x7f7fffff, v48")
                a.I("v_rcp_f32 v49, v48")
                self.div_by(r, 48, 49, 50)
            a.I(f"v_cvt_pk_bf16_f32 v46, v46, v47")
            a.I(f"ds_write_b32 v40, v46 offset:{4*jj}")
        self.tr_addr128(10, 6, 7)
        a.I("s_lshl_b32 s45, s44, 5")
        a.I("v_xor_b32 v10, s45, v10")
        a.I(f"v_add_u32 v10, {L_W}, v10")
        a.I(f"v_add_u32 v11, {10*4096}, v10")
        self.act_addr(14, 1344, 6)
        a.I("s_waitcnt vmcnt(0) lgkmcnt(0)")
        self.stamp(7)
        a.I("s_barrier")
        self.mfma_chain2(10, 10, 11, 4096, 512, 14, 64, 68)
        for k in range(4):
            a.I(f"v_add_f32 v{64+k}, v{64+k}, v{68+k}")
        a.I("v_cvt_pk_bf16_f32 v64, v64, v65")
        a.I("v_cvt_pk_bf16_f32 v65, v66, v67")
        self.canon([64, 65], 44)
        a.I("v_and_b32 v6, 3, v5")
        a.I("v_mul_u32_u24 v6, 7680, v6")
        a.I("v_lshrrev_b32 v7, 4, v5")
        a.I("v_lshl_add_u32 v6, v7, 3, v6")
        a.I(f"s_lshl_b32 s45, s{S_BAND}, 7")
        a.I("s_lshl_b32 s47, s44, 5")
        a.I("s_add_u32 s47, s47, s45")
        a.I(f"s_mov_b32 exec_lo, 0x{MASK_N4_LO:x}")
        a.I(f"s_mov_b32 exec_hi, 0x{MASK_N4_LO:x}")
        a.I("buffer_store_dwordx2 v[64:65], v6, s[40:43], s47 offen sc1")
        a.I("s_mov_b64 exec, -1")
        self.stamp(12)
        a.label("L_h_go")
        a.fence(2)
        a.I("s_cmp_lg_u32 s44, 0")
        a.I("s_cbranch_scc1 L_go_skip")
        self.poll_go("L_go1", 6, 7, 1 if self.cfg.gate == 2 else 2)
        a.label("L_go_skip")
        if self.cfg.gate:
            a.I("s_barrier")
        a.I("s_branch L_h_q")
        a.label("L_qrest")
        a.fence(2)
        self.zero_flag()
        self.srd(40, 30, WS_SIZE)
        a.I("s_waitcnt vmcnt(11)")
        for jj in range(5):
            self.unpack(35 + jj, 40 + 2 * jj, 41 + 2 * jj)
        a.I("v_add_f32 v6, v40, v41")
        for k in range(42, 50):
            a.I(f"v_add_f32 v6, v6, v{k}")
        self.wave_sum_bcast(6, 46)
        a.I("v_mov_b32 v6, 0x3acccccd")
        a.I("v_mul_f32 v50, s46, v6")
        a.I("v_mov_b32 v7, 0")
        for k in range(40, 50):
            a.I(f"v_sub_f32 v51, v{k}, v50")
            a.I("v_fmac_f32 v7, v51, v51")
        self.wave_sum_bcast(7, 46)
        a.I("v_mul_f32 v52, s46, v6")
        self.ln_denom(52, 53)
        a.I("v_cvt_pk_bf16_f32 v50, v50, v50")
        a.I("v_lshlrev_b32 v50, 16, v50")
        a.I("s_lshl_b32 s45, s44, 3")
        a.I(f"s_add_u32 s45, s45, {L_LNST}")
        a.I("v_mov_b32 v6, s45")
        a.I("ds_write_b32 v6, v50")
        a.I("ds_write_b32 v6, v52 offset:4")
        a.I("s_waitcnt vmcnt(0) lgkmcnt(0)")
        self.stamp(7)
        a.I("s_barrier")
        a.I("v_lshlrev_b32 v6, 3, v17")
        a.I(f"ds_read_b64 v[56:57], v6 offset:{L_LNST}")
        xr = list(range(60, 68))
        for k in range(4):
            self.unpack(28 + k, 60 + 2 * k, 61 + 2 * k)
        a.I("v_mul_u32_u24 v40, 7680, v17")
        a.I("v_lshl_add_u32 v40, v18, 4, v40")
        a.I("s_mul_i32 s47, s44, 160")
        a.I(f"s_add_u32 s47, s47, {L_ACT}")
        a.I("v_mul_u32_u24 v41, 704, v17")
        a.I("v_lshl_add_u32 v41, v18, 4, v41")
        a.I("v_add_u32 v41, s47, v41")
        a.I("s_waitcnt lgkmcnt(0)")
        for r in xr:
            a.I(f"v_sub_f32 v{r}, v{r}, v56")
        self.bf16_round(xr, 58)
        a.I("v_rcp_f32 v58, v57")
        for r in xr:
            self.div_by(r, 57, 58, 59)
        self.bf16_round(xr, 58)
        self.tr_addr128(10, 6, 7)
        a.I("s_lshl_b32 s45, s44, 5")
        a.I("v_xor_b32 v10, s45, v10")
        a.I(f"v_add_u32 v10, {L_W}, v10")
        self.act_addr(14, 704, 6)
        a.I("v_and_b32 v6, 15, v5")
        a.I("v_cmp_gt_u32 s[50:51], 10, v6")
        self.stamp(16)
        self.poll_go("L_go2", 6, 7, 1)
        if self.cfg.gate == 2:
            a.I("s_barrier")
        self.stamp(18)
        a.I(f"s_add_u32 s46, s63, {WS_MOD}")
        a.I(f"s_add_u32 s47, s63, {WS_MOD + 1280}")
        loads = ["buffer_load_dwordx4 v[28:31], v40, s[40:43], s46 offen sc1",
                 "buffer_load_dwordx4 v[32:35], v40, s[40:43], s47 offen sc1"]
        self.poll(loads, list(range(28, 36)), "L_pmod", pre=6)
        self.stamp(14)
        ca = list(range(44, 52))
        for k in range(4):
            self.unpack(32 + k, 44 + 2 * k, 45 + 2 * k)
        for r in ca:
            a.I(f"v_add_f32 v{r}, 1.0, v{r}")
        self.bf16_round(ca, 6)
        for k in range(8):
            a.I(f"v_mul_f32 v{60+k}, v{60+k}, v{44+k}")
        self.bf16_round(xr, 6)
        for k in range(4):
            self.unpack(28 + k, 44 + 2 * k, 45 + 2 * k)
        for k in range(8):
            a.I(f"v_add_f32 v{60+k}, v{60+k}, v{44+k}")
        for k in range(4):
            a.I(f"v_cvt_pk_bf16_f32 v{44+k}, v{60+2*k}, v{61+2*k}")
        a.I("s_mov_b64 exec, s[50:51]")
        a.I("ds_write_b128 v41, v[44:47]")
        a.I("s_mov_b64 exec, -1")
        if self.cfg.gate == 1:
            a.I("s_waitcnt lgkmcnt(0)")
            a.I("s_barrier")
        else:
            self.hsync(2, "L_hs2", 6, 16)
        self.stamp(17)
        self.mfma_chain(10, 10, 4096, 512, 14, 64)
        self.canon([64, 65, 66, 67], 44)
        a.I("v_and_b32 v6, 3, v5")
        a.I("v_mul_u32_u24 v6, 24576, v6")
        a.I("v_lshrrev_b32 v7, 4, v5")
        a.I("v_lshl_add_u32 v6, v7, 4, v6")
        a.I(f"s_mul_i32 s45, s{S_KH}, {4*24576}")
        a.I(f"s_lshl_b32 s47, s{S_BAND}, 8")
        a.I("s_add_u32 s47, s47, s45")
        a.I("s_lshl_b32 s45, s44, 6")
        a.I("s_add_u32 s47, s47, s45")
        a.I(f"s_add_u32 s47, s47, {WS_Q}")
        a.I(f"s_mov_b32 exec_lo, 0x{MASK_N4_LO:x}")
        a.I(f"s_mov_b32 exec_hi, 0x{MASK_N4_LO:x}")
        a.I("buffer_store_dwordx4 v[64:67], v6, s[40:43], s47 offen sc1")
        a.I("s_mov_b64 exec, -1")
        self.stamp(12)
        a.label("L_h_q")
        a.fence(2)
        self.roles_rest()
        self.srd(40, 30, WS_SIZE)
        a.I("s_cmp_lg_u32 s44, 0")
        a.I("s_cbranch_scc1 L_hb1")
        a.I(f"s_cmp_eq_u32 s{S_LATE}, 2")
        a.I("s_cbranch_scc1 L_go3_skip")
        self.poll_go("L_go3", 6, 7, 2)
        a.label("L_go3_skip")
        self.stamp(19)
        a.I("v_and_b32 v6, 31, v5")
        a.I("v_mul_u32_u24 v11, 12, v6")
        a.I("v_lshlrev_b32 v6, 1, v11")
        a.I("s_mul_i32 s45, s57, 24576")
        a.I("s_mul_i32 s46, s58, 768")
        a.I("s_add_u32 s46, s45, s46")
        a.I(f"s_add_u32 s46, s46, {WS_Q}")
        a.I(f"s_add_u32 s47, s46, {4*24576}")
        self.poll(["buffer_load_dwordx3 v[12:14], v6, s[40:43], s46 offen sc1",
                   "buffer_load_dwordx3 v[16:18], v6, s[40:43], s46 offen offset:12 sc1",
                   "buffer_load_dwordx3 v[20:22], v6, s[40:43], s47 offen sc1",
                   "buffer_load_dwordx3 v[24:26], v6, s[40:43], s47 offen offset:12 sc1"],
                  [12, 13, 14, 16, 17, 18, 20, 21, 22, 24, 25, 26], "L_pq", pre=7)
        for k in range(3):
            a.I(f"v_add_f32 v{12+k}, v{12+k}, v{20+k}")
            a.I(f"v_add_f32 v{16+k}, v{16+k}, v{24+k}")
        a.I("v_cvt_pk_bf16_f32 v8, v12, v13")
        a.I("v_cvt_pk_bf16_f32 v9, v14, v16")
        a.I("v_cvt_pk_bf16_f32 v10, v17, v18")
        a.I(f"ds_write_b32 v11, v8 offset:{L_QV}")
        a.I(f"ds_write_b32 v11, v9 offset:{L_QV+4}")
        a.I(f"ds_write_b32 v11, v10 offset:{L_QV+8}")
        a.I("s_waitcnt lgkmcnt(0)")
        a.label("L_hb1")
        self.stamp(1)
        a.I("s_barrier")
        self.stamp(2)
        if self.cfg.hop:
            a.I("s_cmp_eq_u32 s44, 0")
            a.I("s_cbranch_scc1 L_late_done")
            a.I("s_mov_b64 exec, 0")
            a.I("s_cmp_eq_u32 s44, 1")
            a.I("s_cbranch_scc1 L_hopA_0")
            a.I("s_cmp_eq_u32 s44, 2")
            a.I("s_cbranch_scc1 L_hopB_0")
            a.I("s_branch L_hopC_0")
            a.label("L_warm_ret")
            a.I("s_mov_b64 exec, -1")
            self.stamp(22)
        if self.cfg.pf == 2:
            a.label("L_late_pf")
            self.prefetch_weights()
        a.label("L_late_done")
        a.fence(2)
        a.I("s_barrier")
        self.stamp(4)
        a.I("s_cmp_lg_u32 s44, 0")
        a.I("s_cbranch_scc1 L_hb3")
        self.ml_exchange()
        a.label("L_hb3")
        self.stamp(5)
        a.I("s_barrier")
        self.stamp(6)
        if not self.cfg.early_w:
            a.I("s_cmp_lg_u32 s44, 0")
            a.I("s_cbranch_scc1 L_tk_done")
            a.I(f"v_mov_b32 v6, {L_FIN}")
            a.I("s_mov_b32 s62, 0")
            a.label("L_tk_wait")
            a.I("ds_read_b32 v7, v6 offset:12")
            a.I("s_add_u32 s62, s62, 1")
            a.I("s_waitcnt lgkmcnt(0)")
            a.I("v_readfirstlane_b32 s45, v7")
            a.I("s_cmp_eq_u32 s45, 1")
            a.I("s_cbranch_scc1 L_tk_go")
            a.I(f"s_cmp_lt_u32 s62, {SPIN_MAX*16}")
            a.I("s_cbranch_scc1 L_tk_wait")
            a.label("L_tk_go")
            a.I("s_mov_b64 exec, 1")
            a.I("v_mov_b32 v7, 8")
            a.I("v_mov_b32 v8, 1")
            a.I("global_atomic_add v9, v7, v8, s[28:29] sc0 sc1")
            a.I("s_waitcnt vmcnt(0)")
            a.I("ds_write_b32 v6, v9 offset:8")
            a.I("s_waitcnt lgkmcnt(0)")
            a.I("s_mov_b64 exec, -1")
            a.label("L_tk_done")
            a.fence(2)
        if self.cfg.pf == 1:
            self.prefetch_weights()
        if self.cfg.early_w:
            a.I("s_cmp_eq_u32 s44, 0")
            a.I("s_cbranch_scc1 L_vw_done")
            self.roles_from_ticket("v")
            self.v_weights()
            a.label("L_vw_done")
            a.fence(2)
        a.I("s_barrier")
        self.stamp(8)

    def dma_loop(self, srd, n, vE, vO, lds_reg, soff_reg, step, label, cnt=63, window=0):
        a = self.a
        a.I(f"s_mov_b32 s{cnt}, {n // 2}")
        a.label(label)
        for v in (vE, vO):
            if window:
                a.I(f"s_waitcnt vmcnt({window - 1})")
            a.I(f"s_mov_b32 m0, s{lds_reg}")
            a.I(f"s_add_u32 s{lds_reg}, s{lds_reg}, 1024")
            a.I(f"buffer_load_dwordx4 v{v}, s[{srd}:{srd+3}], s{soff_reg} offen {self.cfg.ntW} lds")
            a.I(f"s_add_u32 s{soff_reg}, s{soff_reg}, {step}")
        a.I(f"s_sub_u32 s{cnt}, s{cnt}, 1")
        a.I(f"s_cmp_lg_u32 s{cnt}, 0")
        a.I(f"s_cbranch_scc1 {label}")

    def mfma_chain2(self, nks, vA0, vA1, stepA, half_off, vB, d0, d1):
        a = self.a
        DEPTH = 2

        def issue(ks):
            b = 80 + 16 * (ks % DEPTH)
            a.I(f"ds_read_b64_tr_b16 v[{b}:{b+1}], v{vA0} offset:{stepA*ks}")
            a.I(f"ds_read_b64_tr_b16 v[{b+2}:{b+3}], v{vA0} offset:{stepA*ks + half_off}")
            a.I(f"ds_read_b128 v[{b+4}:{b+7}], v{vB} offset:{64*ks}")
            a.I(f"ds_read_b64_tr_b16 v[{b+8}:{b+9}], v{vA1} offset:{stepA*ks}")
            a.I(f"ds_read_b64_tr_b16 v[{b+10}:{b+11}], v{vA1} offset:{stepA*ks + half_off}")
            a.I(f"ds_read_b128 v[{b+12}:{b+15}], v{vB} offset:{64*(nks+ks)}")
        for ks in range(DEPTH):
            issue(ks)
        for ks in range(nks):
            left = min(nks - 1 - ks, DEPTH - 1)
            a.I(f"s_waitcnt lgkmcnt({6*left})")
            b = 80 + 16 * (ks % DEPTH)
            c0 = "0" if ks == 0 else f"v[{d0}:{d0+3}]"
            c1 = "0" if ks == 0 else f"v[{d1}:{d1+3}]"
            a.I(f"v_mfma_f32_16x16x32_bf16 v[{d0}:{d0+3}], v[{b}:{b+3}], v[{b+4}:{b+7}], {c0}")
            a.I(f"v_mfma_f32_16x16x32_bf16 v[{d1}:{d1+3}], v[{b+8}:{b+11}], v[{b+12}:{b+15}], {c1}")
            if ks + DEPTH < nks:
                issue(ks + DEPTH)

    def mfma_chain(self, nks, vA, stepA, half_off, vB, dreg):
        a = self.a
        DEPTH = 4

        def issue(ks):
            b = 80 + 8 * (ks % DEPTH)
            a.I(f"ds_read_b64_tr_b16 v[{b}:{b+1}], v{vA} offset:{stepA*ks}")
            a.I(f"ds_read_b64_tr_b16 v[{b+2}:{b+3}], v{vA} offset:{stepA*ks + half_off}")
            a.I(f"ds_read_b128 v[{b+4}:{b+7}], v{vB} offset:{64*ks}")
        for ks in range(min(DEPTH, nks)):
            issue(ks)
        for ks in range(nks):
            left = min(nks - 1 - ks, DEPTH - 1)
            a.I(f"s_waitcnt lgkmcnt({3*left})")
            b = 80 + 8 * (ks % DEPTH)
            c = "0" if ks == 0 else f"v[{dreg}:{dreg+3}]"
            a.I(f"v_mfma_f32_16x16x32_bf16 v[{dreg}:{dreg+3}], v[{b}:{b+3}], v[{b+4}:{b+7}], {c}")
            if ks + DEPTH < nks:
                issue(ks + DEPTH)

    def dma_band128(self, srd, rowstride, ninstr, vE, vO, lds_base_sreg, soff_reg, tag):
        a = self.a
        for i in range(ninstr):
            a.I(f"s_mov_b32 m0, s{lds_base_sreg}")
            v = vO if i & 1 else vE
            a.I(f"s_add_u32 s{lds_base_sreg}, s{lds_base_sreg}, 1024")
            a.I(f"buffer_load_dwordx4 v{v}, s[{srd}:{srd+3}], s{soff_reg} offen {self.cfg.ntW} lds")
            if i + 1 < ninstr:
                a.I(f"s_add_u32 s{soff_reg}, s{soff_reg}, {8*rowstride}")

    def dma_voff128(self, rowstride, vE, vO, t0, t1):
        a = self.a
        a.I(f"v_lshrrev_b32 v{t0}, 3, v5")
        a.I(f"v_bfe_u32 v{t1}, v5, 4, 1")
        a.I(f"v_lshlrev_b32 v{t1}, 5, v{t1}")
        a.I(f"v_and_b32 v{vE}, 7, v5")
        a.I(f"v_lshlrev_b32 v{vE}, 4, v{vE}")
        a.I(f"v_xor_b32 v{vE}, v{vE}, v{t1}")
        a.I(f"v_xor_b32 v{vO}, 64, v{vE}")
        a.I(f"s_mov_b32 s45, {rowstride}")
        a.I(f"v_mul_lo_u32 v{t0}, s45, v{t0}")
        a.I(f"v_add_u32 v{vE}, v{vE}, v{t0}")
        a.I(f"v_add_u32 v{vO}, v{vO}, v{t0}")

    def tr_addr128(self, vdst, t0, t1):
        a = self.a
        a.I(f"v_lshrrev_b32 v{t0}, 4, v5")
        a.I(f"v_bfe_u32 v{t1}, v5, 2, 2")
        a.I(f"v_lshl_add_u32 v{vdst}, v{t0}, 3, v{t1}")
        a.I(f"v_lshlrev_b32 v{vdst}, 7, v{vdst}")
        a.I(f"v_and_b32 v{t0}, 1, v{t0}")
        a.I(f"v_lshlrev_b32 v{t0}, 6, v{t0}")
        a.I(f"v_bfe_u32 v{t1}, v5, 3, 1")
        a.I(f"v_lshlrev_b32 v{t1}, 5, v{t1}")
        a.I(f"v_or3_b32 v{vdst}, v{vdst}, v{t0}, v{t1}")
        a.I(f"v_and_b32 v{t0}, 3, v5")
        a.I(f"v_lshl_add_u32 v{vdst}, v{t0}, 3, v{vdst}")

    def act_addr(self, vdst, stride, t0):
        a = self.a
        a.I(f"v_and_b32 v{t0}, 3, v5")
        a.I(f"v_mul_u32_u24 v{vdst}, {stride}, v{t0}")
        a.I(f"v_lshrrev_b32 v{t0}, 4, v5")
        a.I(f"v_lshl_add_u32 v{vdst}, v{t0}, 4, v{vdst}")

    def ml_exchange(self):
        a = self.a
        a.I("v_and_b32 v6, 7, v5")
        a.I("v_lshlrev_b32 v6, 3, v6")
        a.I(f"ds_read_b64 v[8:9], v6 offset:{L_STATS}")
        a.I(f"s_mov_b32 s54, 0x{LOG2E:x}")
        a.I("s_waitcnt lgkmcnt(0)")
        a.I("v_mov_b32 v10, v8")
        a.I("v_max_f32_dpp v10, v10, v10 quad_perm:[1,0,3,2] row_mask:0xf bank_mask:0xf")
        a.I("v_max_f32_dpp v10, v10, v10 quad_perm:[2,3,0,1] row_mask:0xf bank_mask:0xf")
        a.I("v_max_f32_dpp v10, v10, v10 row_half_mirror row_mask:0xf bank_mask:0xf")
        a.I("v_sub_f32 v11, v8, v10")
        a.I("v_mul_f32 v11, s54, v11")
        a.I("v_exp_f32 v11, v11")
        a.I("v_mul_f32 v11, v11, v9")
        a.I("v_add_f32_dpp v11, v11, v11 quad_perm:[1,0,3,2] row_mask:0xf bank_mask:0xf")
        a.I("v_add_f32_dpp v11, v11, v11 quad_perm:[2,3,0,1] row_mask:0xf bank_mask:0xf")
        a.I("v_add_f32_dpp v11, v11, v11 row_half_mirror row_mask:0xf bank_mask:0xf")
        self.canon([10, 11], 12)
        a.I("s_lshl_b32 s45, s2, 7")
        a.I(f"s_add_u32 s45, s45, {WS_ML}")
        a.I("v_mov_b32 v6, 0")
        a.I("s_mov_b64 exec, 1")
        a.I("buffer_store_dwordx2 v[10:11], v6, s[40:43], s45 offen sc1")
        if self.cfg.early_w:
            a.I("v_mov_b32 v7, 8")
            a.I("v_mov_b32 v18, 1")
            a.I("global_atomic_add v19, v7, v18, s[28:29] sc0 sc1")
        a.I("s_mov_b64 exec, -1")
        a.I(f"s_xor_b32 s46, s2, {self.cfg.xp or 32}")
        a.I("s_lshl_b32 s46, s46, 7")
        a.I(f"s_add_u32 s46, s46, {WS_ML}")
        self.poll(["buffer_load_dwordx2 v[12:13], v6, s[40:43], s46 offen sc1"], [12, 13], "L_pml", pre=7)
        a.I("v_max_f32 v14, v10, v12")
        a.I("v_sub_f32 v15, v10, v14")
        a.I("v_sub_f32 v16, v12, v14")
        a.I("v_mul_f32 v15, s54, v15")
        a.I("v_mul_f32 v16, s54, v16")
        a.I("v_exp_f32 v15, v15")
        a.I("v_exp_f32 v16, v16")
        a.I("v_mul_f32 v15, v15, v11")
        a.I("v_mul_f32 v16, v16, v13")
        a.I("v_add_f32 v15, v15, v16")
        a.I("v_rcp_f32 v16, v15")
        a.I("v_fma_f32 v17, -v15, v16, 1.0")
        a.I("v_fma_f32 v16, v17, v16, v16")
        a.I(f"v_mov_b32 v6, {L_FIN}")
        a.I("ds_write_b32 v6, v14")
        a.I("ds_write_b32 v6, v16 offset:4")
        if not self.cfg.early_w:
            a.I("v_mov_b32 v17, 0")
            a.I("ds_write_b32 v6, v17 offset:12")
        if self.cfg.early_w:
            a.I("s_mov_b64 exec, 1")
            a.I("ds_write_b32 v6, v19 offset:8")
            a.I("s_mov_b64 exec, -1")
        a.I("s_waitcnt lgkmcnt(0)")

    def post(self):
        a = self.a
        a.label("L_post")
        a.hops_begin("L_hopA", self.cfg.hop)
        a.fence(4)
        a.I("s_setprio 0")
        a.I("v_and_b32 v5, 63, v0")
        a.I("s_cmp_lg_u32 s44, 0")
        a.I("s_cbranch_scc1 L_o_done")
        a.I("v_lshlrev_b32 v6, 4, v5")
        a.I("s_mov_b32 exec_lo, -1"); a.I("s_mov_b32 exec_hi, 0xffff")
        for w in range(8):
            a.I(f"ds_read_b128 v[{8+4*w}:{11+4*w}], v6 offset:{L_OPART+768*w}")
        for w in range(1, 8):
            a.I(f"s_waitcnt lgkmcnt({7-w})")
            for k in range(4):
                a.I(f"v_add_f32 v{8+k}, v{8+k}, v{8+4*w+k}")
        self.canon([8, 9, 10, 11], 12)
        a.I("s_lshl_b32 s45, s57, 5")
        a.I("s_add_u32 s45, s45, s58")
        a.I("s_lshl_b32 s45, s45, 1")
        a.I("s_add_u32 s45, s45, s59")
        a.I("s_mul_i32 s45, s45, 768")
        a.I(f"s_add_u32 s45, s45, {WS_O}")
        a.I("buffer_store_dwordx4 v[8:11], v6, s[40:43], s45 offen sc1")
        a.I("s_mov_b64 exec, -1")
        a.label("L_o_done")
        a.fence(2)
        self.roles_from_ticket()
        a.I(f"s_cmp_eq_u32 s{S_POST}, 0")
        a.I("s_cbranch_scc1 L_tail")
        a.I("s_barrier")
        a.I(f"s_cmp_eq_u32 s{S_POST}, 1")
        a.I("s_cbranch_scc0 L_post23")
        self.post_wo()
        a.I("s_branch L_tail")
        a.hops_end("L_warm_ret")
        a.label("L_post23")
        a.hops_begin("L_hopB", self.cfg.hop)
        a.fence(2)
        self.post_gu()
        a.I(f"s_cmp_lt_u32 s{S_DT}, 40")
        a.I("s_cbranch_scc0 L_tail")
        a.hops_end("L_warm_ret")
        a.hops_begin("L_hopC", self.cfg.hop)
        self.post_final()
        a.hops_end("L_warm_ret")

    def red_lane_addr(self, vdst, t):
        a = self.a
        a.I(f"v_lshrrev_b32 v{vdst}, 4, v5")
        a.I(f"v_and_b32 v{t}, 3, v5")
        a.I(f"v_lshl_add_u32 v{vdst}, v{vdst}, 2, v{t}")
        a.I(f"v_lshlrev_b32 v{vdst}, 4, v{vdst}")

    def write_red(self, dreg, vaddr):
        a = self.a
        a.I("s_lshl_b32 s45, s44, 8")
        a.I(f"s_add_u32 s45, s45, {L_RED}")
        a.I(f"v_add_u32 v{vaddr}, s45, v{vaddr}")
        a.I(f"s_mov_b32 exec_lo, 0x{MASK_N4_LO:x}")
        a.I(f"s_mov_b32 exec_hi, 0x{MASK_N4_LO:x}")
        a.I(f"ds_write_b128 v{vaddr}, v[{dreg}:{dreg+3}]")
        a.I("s_mov_b64 exec, -1")
        a.I("s_waitcnt lgkmcnt(0)")
        a.I("s_barrier")

    def mfma_run(self, nks, vA, offA, stepA, half_off, vB, dreg, first_reg=40):
        a = self.a
        for ks in range(nks):
            b = first_reg + 8 * ks
            a.I(f"ds_read_b64_tr_b16 v[{b}:{b+1}], v{vA} offset:{offA + stepA*ks}")
            a.I(f"ds_read_b64_tr_b16 v[{b+2}:{b+3}], v{vA} offset:{offA + stepA*ks + half_off}")
            a.I(f"ds_read_b128 v[{b+4}:{b+7}], v{vB} offset:{64*ks}")
        for ks in range(nks):
            b = first_reg + 8 * ks
            a.I(f"s_waitcnt lgkmcnt({min(15, 3*(nks-1-ks))})")
            c = "0" if ks == 0 else f"v[{dreg}:{dreg+3}]"
            a.I(f"v_mfma_f32_16x16x32_bf16 v[{dreg}:{dreg+3}], v[{b}:{b+3}], v[{b+4}:{b+7}], {c}")

    def mfma_preread(self, n, vA, stepA, half_off, first):
        a = self.a
        for ks in range(n):
            b = first + 4 * ks
            a.I(f"ds_read_b64_tr_b16 v[{b}:{b+1}], v{vA} offset:{stepA*ks}")
            a.I(f"ds_read_b64_tr_b16 v[{b+2}:{b+3}], v{vA} offset:{stepA*ks + half_off}")

    def mfma_with_b(self, n, firstA, vB, firstB, dreg):
        a = self.a
        for ks in range(n):
            b = firstB + 4 * ks
            a.I(f"ds_read_b128 v[{b}:{b+3}], v{vB} offset:{64*ks}")
        for ks in range(n):
            a.I(f"s_waitcnt lgkmcnt({n-1-ks})")
            c = "0" if ks == 0 else f"v[{dreg}:{dreg+3}]"
            a.I(f"v_mfma_f32_16x16x32_bf16 v[{dreg}:{dreg+3}], v[{firstA+4*ks}:{firstA+4*ks+3}], v[{firstB+4*ks}:{firstB+4*ks+3}], {c}")

    def post_wo(self):
        a = self.a
        if not self.cfg.early_w:
            a.I(f"s_mul_i32 s45, s{S_KG}, {768*1280}")
            a.I(f"s_lshl_b32 s46, s{S_NB}, 7")
            a.I("s_add_u32 s47, s45, s46")
            self.srd(32, 12, 768 * 1280, off=47)
            self.dma_voff128(1280, 8, 9, 6, 7)
            a.I(f"s_mul_i32 s46, s44, {64*1280}")
            a.I("s_lshl_b32 s47, s44, 13")
            a.I(f"s_add_u32 s47, s47, {L_W}")
            self.dma_loop(32, 8, 8, 9, 47, 46, 8 * 1280, "L_wo_dma")
        a.I("s_mul_i32 s45, s44, 21846")
        a.I("s_lshr_b32 s45, s45, 16")
        a.I("s_mul_i32 s46, s45, 3")
        a.I("s_sub_u32 s46, s44, s46")
        a.I("s_lshl_b32 s46, s46, 6")
        a.I("v_add_u32 v10, s46, v5")
        a.I("v_mul_u32_u24 v11, 1366, v10")
        a.I("v_lshrrev_b32 v11, 16, v11")
        a.I("v_mul_u32_u24 v12, 48, v11")
        a.I("v_sub_u32 v12, v10, v12")
        a.I("v_mul_u32_u24 v11, 1536, v11")
        a.I("v_lshl_add_u32 v11, v12, 4, v11")
        a.I("s_lshl_b32 s63, s45, 5")
        a.I(f"s_lshl_b32 s46, s{S_KG}, 2")
        a.I("s_add_u32 s63, s63, s46")
        a.I("s_mul_i32 s63, s63, 1536")
        a.I(f"s_add_u32 s63, s63, {WS_O}")
        a.I("s_mul_i32 s46, s45, 1600")
        a.I(f"s_add_u32 s46, s46, {L_ACT}")
        a.I("v_lshl_add_u32 v13, v10, 3, s46")
        self.tr_addr128(14, 6, 7)
        a.I("s_and_b32 s45, s44, 3")
        a.I("s_lshl_b32 s45, s45, 5")
        a.I("v_xor_b32 v14, s45, v14")
        a.I("s_lshr_b32 s45, s44, 2")
        a.I("s_lshl_b32 s46, s45, 15")
        a.I(f"s_add_u32 s46, s46, {L_W}")
        a.I("v_add_u32 v14, s46, v14")
        self.act_addr(15, 1600, 6)
        a.I("s_lshl_b32 s46, s45, 9")
        a.I(f"s_add_u32 s46, s46, {L_ACT}")
        a.I("v_add_u32 v15, s46, v15")
        self.red_lane_addr(16, 6)
        a.I("v_and_b32 v17, 3, v5")
        a.I("v_mul_u32_u24 v17, 2560, v17")
        a.I("v_lshrrev_b32 v7, 2, v5")
        a.I("v_lshl_add_u32 v17, v7, 4, v17")
        a.I("s_waitcnt vmcnt(0)")
        a.I("s_barrier")
        self.stamp(9)
        self.mfma_preread(8, 14, 4096, 512, 40)
        self.poll(["buffer_load_dwordx4 v[20:23], v11, s[40:43], s63 offen sc1",
                   "buffer_load_dwordx4 v[24:27], v11, s[40:43], s63 offen offset:768 sc1"],
                  list(range(20, 28)), "L_po", pre=6)
        self.stamp(10)
        for k in range(4):
            a.I(f"v_add_f32 v{20+k}, v{20+k}, v{24+k}")
        a.I("v_cvt_pk_bf16_f32 v20, v20, v21")
        a.I("v_cvt_pk_bf16_f32 v21, v22, v23")
        a.I("ds_write_b64 v13, v[20:21]")
        a.I("s_waitcnt lgkmcnt(0)")
        a.I("s_barrier")
        self.mfma_with_b(8, 40, 15, 72, 20)
        self.write_red(20, 16)
        a.I("s_cmp_lg_u32 s44, 0")
        a.I("s_cbranch_scc1 L_wo_done")
        a.I("v_lshlrev_b32 v6, 4, v5")
        for kt in range(3):
            a.I(f"ds_read_b128 v[{20+4*kt}:{23+4*kt}], v6 offset:{L_RED + 1024*kt}")
        a.I(f"s_mul_i32 s45, s{S_KG}, 10240")
        a.I(f"s_lshl_b32 s46, s{S_NB}, 8")
        a.I("s_add_u32 s45, s45, s46")
        a.I(f"s_add_u32 s45, s45, {WS_Y}")
        a.I("s_waitcnt lgkmcnt(0)")
        for k in range(4):
            a.I(f"v_add_f32 v{20+k}, v{20+k}, v{24+k}")
        for k in range(4):
            a.I(f"v_add_f32 v{20+k}, v{20+k}, v{28+k}")
        self.canon([20, 21, 22, 23], 12)
        a.I("buffer_store_dwordx4 v[20:23], v17, s[40:43], s45 offen sc1")
        a.label("L_wo_done")
        self.stamp(11)

    def dma_band64(self, srd, rowstride, ninstr, v, lds_reg, soff_reg):
        a = self.a
        for i in range(ninstr):
            a.I(f"s_mov_b32 m0, s{lds_reg}")
            a.I(f"s_add_u32 s{lds_reg}, s{lds_reg}, 1024")
            a.I(f"buffer_load_dwordx4 v{v}, s[{srd}:{srd+3}], s{soff_reg} offen {self.cfg.ntW} lds")
            if i + 1 < ninstr:
                a.I(f"s_add_u32 s{soff_reg}, s{soff_reg}, {16*rowstride}")

    def dma_voff64(self, rowstride, v, t0, t1):
        a = self.a
        a.I(f"v_lshrrev_b32 v{t0}, 2, v5")
        a.I(f"v_bfe_u32 v{t1}, v5, 5, 1")
        a.I(f"v_lshlrev_b32 v{t1}, 5, v{t1}")
        a.I(f"v_and_b32 v{v}, 3, v5")
        a.I(f"v_lshlrev_b32 v{v}, 4, v{v}")
        a.I(f"v_xor_b32 v{v}, v{v}, v{t1}")
        a.I(f"v_mul_u32_u24 v{t0}, {rowstride}, v{t0}")
        a.I(f"v_add_u32 v{v}, v{v}, v{t0}")

    def tr_addr64(self, vdst, t0, t1):
        a = self.a
        a.I(f"v_lshrrev_b32 v{t0}, 4, v5")
        a.I(f"v_bfe_u32 v{t1}, v5, 2, 2")
        a.I(f"v_lshl_add_u32 v{vdst}, v{t0}, 3, v{t1}")
        a.I(f"v_lshlrev_b32 v{vdst}, 6, v{vdst}")
        a.I(f"v_and_b32 v{t0}, 1, v{t0}")
        a.I(f"v_lshl_or_b32 v{vdst}, v{t0}, 5, v{vdst}")
        a.I(f"v_and_b32 v{t0}, 3, v5")
        a.I(f"v_lshl_add_u32 v{vdst}, v{t0}, 3, v{vdst}")

    def x1_from_y(self, vy_addr_soff, yregs, ga, xr, out, t):
        a = self.a
        for k in range(4):
            a.I(f"v_add_f32 v{out+k}, v{yregs+k}, v{yregs+4+k}")
        for w in range(2, 8):
            for k in range(4):
                a.I(f"v_add_f32 v{out+k}, v{out+k}, v{yregs+4*w+k}")
        o = [out + k for k in range(4)]
        self.bf16_round(o, t)
        for p in range(2):
            self.unpack(ga + p, t + 1, t + 2)
            a.I(f"v_mul_f32 v{o[2*p]}, v{o[2*p]}, v{t+1}")
            a.I(f"v_mul_f32 v{o[2*p+1]}, v{o[2*p+1]}, v{t+2}")
        self.bf16_round(o, t)
        for p in range(2):
            self.unpack(xr + p, t + 1, t + 2)
            a.I(f"v_add_f32 v{o[2*p]}, v{o[2*p]}, v{t+1}")
            a.I(f"v_add_f32 v{o[2*p+1]}, v{o[2*p+1]}, v{t+2}")
        self.bf16_round(o, t)

    def post_gu(self):
        a = self.a
        a.I("s_mul_i32 s45, s44, 21846")
        a.I("s_lshr_b32 s87, s45, 16")
        a.I("s_mul_i32 s46, s87, 3")
        a.I("s_sub_u32 s88, s44, s46")
        a.I("s_mul_i32 s46, s88, 54")
        a.I("v_add_u32 v10, s46, v5")
        a.I("v_cmp_gt_u32 vcc, 54, v5")
        a.I("s_mov_b64 s[50:51], vcc")
        a.I("v_mov_b32 v6, 160")
        a.I("v_cmp_lt_u32 vcc, v10, v6")
        a.I("s_and_b64 s[50:51], s[50:51], vcc")
        a.I("v_min_u32 v10, 159, v10")
        a.I("v_lshlrev_b32 v11, 3, v10")
        a.I("s_mul_i32 s46, s87, 7680")
        a.I(f"s_add_u32 s46, s46, {WS_MOD}")
        self.srd(36, 4, 5120)
        a.I("s_mul_i32 s47, s87, 1280")
        a.I("buffer_load_dwordx2 v[18:19], v11, s[36:39], s47 offen")
        a.I("v_add_u32 v40, 2560, v11")
        a.I("v_add_u32 v41, 3840, v11")
        a.I("v_add_u32 v42, 5120, v11")
        a.I("s_mul_i32 s85, s87, 7680")
        a.I(f"s_add_u32 s85, s85, {WS_MOD}")
        a.I("v_lshlrev_b32 v32, 4, v10")
        a.I("s_mul_i32 s86, s87, 2560")
        a.I(f"s_add_u32 s86, s86, {WS_Y}")
        yloads = []
        for w in range(8):
            yloads.append((f"buffer_load_dwordx4 v[{48+4*w}:{51+4*w}], v{80+w if False else 140+w}, s[40:43], s86 offen sc1", [48+4*w+k for k in range(4)]))
            a.I(f"v_add_u32 v{140+w}, {10240*w}, v32")
        modloads = ["buffer_load_dwordx2 v[12:13], v40, s[40:43], s85 offen sc1",
                    "buffer_load_dwordx2 v[14:15], v41, s[40:43], s85 offen sc1",
                    "buffer_load_dwordx2 v[16:17], v42, s[40:43], s85 offen sc1"]
        for ld in modloads:
            a.I(ld)
        if not self.cfg.early_w:
            a.I("s_cmp_ge_u32 s44, 10")
            a.I("s_cbranch_scc1 L_gu_dn")
            a.I(f"s_lshl_b32 s47, s{S_NB}, 6")
            a.I("s_cmp_ge_u32 s44, 5")
            a.I("s_cselect_b32 s48, s18, s16")
            a.I("s_cselect_b32 s49, s19, s17")
            a.I("s_cselect_b32 s63, 5, 0")
            self.srd(32, 48, 640 * 3072, off=47)
            self.dma_voff64(3072, 8, 6, 7)
            a.I("s_sub_u32 s63, s44, s63")
            a.I(f"s_mul_i32 s46, s63, {128*3072}")
            a.I("s_lshl_b32 s47, s44, 13")
            a.I(f"s_add_u32 s47, s47, {L_W}")
            self.dma_loop(32, 8, 8, 8, 47, 46, 16 * 3072, "L_gu_dma")
            a.I("s_waitcnt vmcnt(8)")
            a.I("s_branch L_gu_dma_done")
            a.label("L_gu_dn")
            a.I(f"s_mul_i32 s45, s{S_NB}, 40960")
            self.srd(32, 20, 40960, off=45)
            for m in range(5):
                a.I(f"v_lshlrev_b32 v6, 4, v5")
                a.I(f"v_add_u32 v6, {1024*m}, v6")
                a.I("v_mul_u32_u24 v7, 3277, v6")
                a.I("v_lshrrev_b32 v7, 22, v7")
                a.I("v_mul_u32_u24 v8, 1280, v7")
                a.I("v_sub_u32 v6, v6, v8")
                a.I("v_lshlrev_b32 v7, 5, v7")
                a.I("v_xor_b32 v9, v6, v7")
                a.I(f"v_add_u32 v{148+m}, v8, v9")
                a.I("v_xor_b32 v9, 128, v9")
                a.I(f"v_add_u32 v{153+m}, v8, v9")
            a.I("s_sub_u32 s63, s44, 10")
            a.I("s_mul_i32 s46, s63, 20480")
            a.I(f"s_add_u32 s47, s46, {L_WD}")
            for q in range(4):
                for m in range(5):
                    a.I("s_mov_b32 m0, s47")
                    a.I("s_add_u32 s47, s47, 1024")
                    a.I(f"buffer_load_dwordx4 v{(153 if (q >> 1) & 1 else 148) + m}, s[32:35], s46 offen {self.cfg.ntW} lds")
                if q < 3:
                    a.I("s_add_u32 s46, s46, 5120")
            a.I("s_waitcnt vmcnt(20)")
            a.label("L_gu_dma_done")
            a.fence(2)
        else:
            a.I("s_waitcnt vmcnt(0)")
        self.stamp(22)
        a.I("v_max3_u32 v6, v12, v13, v14")
        a.I("v_max3_u32 v6, v6, v15, v16")
        a.I("v_max_u32 v6, v6, v17")
        a.I("v_cmp_eq_u32 vcc, -1, v6")
        a.I("s_cmp_eq_u64 vcc, 0")
        a.I("s_cbranch_scc1 L_pm2_skip")
        self.poll(modloads, list(range(12, 18)), "L_pm2", pre=6)
        a.label("L_pm2_skip")
        self.stamp(23)
        self.unpack(16, 20, 21)
        self.unpack(17, 22, 23)
        for k in range(4):
            a.I(f"v_add_f32 v{20+k}, 1.0, v{20+k}")
        self.bf16_round([20, 21, 22, 23], 6)
        self.unpack(14, 24, 25)
        self.unpack(15, 26, 27)
        self.unpack(12, 84, 85)
        self.unpack(13, 86, 87)
        self.unpack(18, 88, 89)
        self.unpack(19, 90, 91)
        self.tr_addr64(28, 6, 7)
        a.I("s_and_b32 s45, s44, 1")
        a.I("s_lshl_b32 s45, s45, 5")
        a.I("v_xor_b32 v28, s45, v28")
        a.I("s_bfe_u32 s45, s44, 0x10001")
        a.I("s_mul_i32 s45, s45, 40960")
        a.I("s_lshr_b32 s46, s44, 2")
        a.I(f"s_mul_i32 s47, s46, {7*2048}")
        a.I("s_add_u32 s45, s45, s47")
        a.I(f"s_add_u32 s45, s45, {L_W}")
        a.I("v_add_u32 v28, s45, v28")
        self.act_addr(29, 1344, 6)
        a.I(f"s_mul_i32 s47, s46, {7*64}")
        a.I(f"s_add_u32 s47, s47, {L_ACT}")
        a.I("v_add_u32 v29, s47, v29")
        self.red_lane_addr(30, 6)
        a.I("s_mul_i32 s47, s87, 1344")
        a.I(f"s_add_u32 s47, s47, {L_ACT}")
        a.I("v_lshl_add_u32 v31, v10, 3, s47")
        a.I("s_mul_i32 s45, s87, 1280")
        a.I(f"s_add_u32 s45, s45, {L_OPART}")
        a.I("v_lshl_add_u32 v92, v10, 3, s45")
        a.I("s_cmp_eq_u32 s88, 2")
        a.I("s_mov_b32 s45, 0x3b9d89d9")
        a.I("s_cselect_b32 s45, s45, 0x3b97b426")
        a.I("v_mov_b32 v93, s45")
        a.I("s_lshl_b32 s45, s44, 3")
        a.I(f"s_add_u32 s45, s45, {L_LNST}")
        a.I("v_mov_b32 v94, s45")
        a.I("s_mul_i32 s45, s87, 24")
        a.I(f"s_add_u32 s45, s45, {L_LNST}")
        a.I("v_mov_b32 v95, s45")
        a.I("s_cmp_ge_u32 s44, 10")
        a.I("s_cbranch_scc1 L_gu_nowait")
        a.I("s_waitcnt vmcnt(0)")
        a.label("L_gu_nowait")
        a.I("s_barrier")
        self.stamp(9)
        self.mfma_preread(7, 28, 2048, 256, 96)
        a.I("v_lshrrev_b32 v6, 4, v5")
        a.I("v_bfe_u32 v7, v5, 2, 2")
        a.I("v_lshl_add_u32 v8, v6, 3, v7")
        a.I("v_mul_u32_u24 v8, 1280, v8")
        a.I("v_and_b32 v9, 3, v5")
        a.I("v_lshl_add_u32 v8, v9, 3, v8")
        a.I(f"v_add_u32 v8, {L_WD}, v8")
        a.I("v_and_b32 v6, 1, v6")
        a.I("v_lshl_or_b32 v7, v6, 2, v7")
        a.I("v_lshlrev_b32 v7, 5, v7")
        for t in range(4):
            a.I(f"s_add_u32 s45, s44, {12*t}")
            a.I("s_lshl_b32 s45, s45, 5")
            a.I(f"v_xor_b32 v9, s45, v7")
            a.I(f"v_add_u32 v{148+t}, v8, v9")
        if self.cfg.ygate:
            a.I("s_and_b32 s45, s44, 7")
            a.I("s_mul_i32 s45, s45, 10240")
            a.I("v_add_u32 v6, s45, v32")
            self.poll(["buffer_load_dwordx4 v[44:47], v6, s[40:43], s86 offen sc1"], [44, 45, 46, 47], "L_pyg", pre=7)
        self.poll_sel(yloads, "L_py", 6)
        self.stamp(10)
        for (o_, d, q) in ((48, 48, 52), (56, 56, 60), (64, 64, 68), (72, 72, 76), (48, 48, 56), (64, 64, 72), (40, 48, 64)):
            a.I(f"v_pk_add_f32 v[{o_}:{o_+1}], v[{d}:{d+1}], v[{q}:{q+1}]")
            a.I(f"v_pk_add_f32 v[{o_+2}:{o_+3}], v[{d+2}:{d+3}], v[{q+2}:{q+3}]")
        o = [40, 41, 42, 43]
        self.bf16_round(o, 6)
        a.I("v_pk_mul_f32 v[40:41], v[40:41], v[84:85]")
        a.I("v_pk_mul_f32 v[42:43], v[42:43], v[86:87]")
        self.bf16_round(o, 6)
        a.I("v_pk_add_f32 v[40:41], v[40:41], v[88:89]")
        a.I("v_pk_add_f32 v[42:43], v[42:43], v[90:91]")
        a.I("v_cvt_pk_bf16_f32 v36, v40, v41")
        a.I("v_cvt_pk_bf16_f32 v37, v42, v43")
        self.unpack(36, 32, 33)
        self.unpack(37, 34, 35)
        a.I("s_mov_b64 exec, s[50:51]")
        a.I("ds_write_b64 v92, v[36:37]")
        a.I("s_mov_b64 exec, -1")
        a.I("v_readfirstlane_b32 s46, v32")
        for k in range(4):
            a.I(f"v_subrev_f32 v{40+k}, s46, v{32+k}")
        a.I("v_add_f32 v36, v40, v41")
        a.I("v_mul_f32 v37, v40, v40")
        a.I("v_add_f32 v38, v42, v43")
        a.I("v_fmac_f32 v37, v41, v41")
        a.I("v_add_f32 v36, v36, v38")
        a.I("v_fmac_f32 v37, v42, v42")
        a.I("v_fmac_f32 v37, v43, v43")
        a.I("v_cndmask_b32 v36, 0, v36, s[50:51]")
        a.I("v_cndmask_b32 v37, 0, v37, s[50:51]")
        for r in (8, 4, 2, 1):
            for v in (36, 37):
                a.I(f"v_add_f32_dpp v{v}, v{v}, v{v} row_ror:{r} row_mask:0xf bank_mask:0xf")
        for m in ("row_bcast:15 row_mask:0xa", "row_bcast:31 row_mask:0xc"):
            for v in (36, 37):
                a.I(f"v_add_f32_dpp v{v}, v{v}, v{v} {m} bank_mask:0xf")
        a.I("v_readlane_b32 s47, v36, 63")
        a.I("v_readlane_b32 s45, v37, 63")
        a.I("v_mul_f32 v38, s47, v93")
        a.I("v_mov_b32 v39, s45")
        a.I("v_add_f32 v37, s46, v38")
        a.I("v_mul_f32 v38, s47, v38")
        a.I("v_sub_f32 v38, v39, v38")
        a.I("ds_write_b32 v94, v37")
        a.I("ds_write_b32 v94, v38 offset:4")
        a.I("s_waitcnt lgkmcnt(0)")
        a.I("s_barrier")
        for t in range(4):
            b = 124 + 4 * t
            a.I(f"ds_read_b64_tr_b16 v[{b}:{b+1}], v{148+t}")
            a.I(f"ds_read_b64_tr_b16 v[{b+2}:{b+3}], v{148+t} offset:{4*1280}")
        a.I("ds_read_b64 v[40:41], v95")
        a.I("ds_read_b64 v[42:43], v95 offset:8")
        a.I("ds_read_b64 v[44:45], v95 offset:16")
        a.I("s_waitcnt lgkmcnt(0)")
        a.I("v_add_f32 v46, v40, v42")
        a.I("v_mul_f32 v46, 0x43580000, v46")
        a.I("v_mov_b32 v47, 0x43500000")
        a.I("v_fmac_f32 v46, v47, v44")
        a.I("v_mul_f32 v46, 0x3acccccd, v46")
        a.I("v_sub_f32 v40, v40, v46")
        a.I("v_sub_f32 v42, v42, v46")
        a.I("v_sub_f32 v44, v44, v46")
        a.I("v_mul_f32 v40, v40, v40")
        a.I("v_fmac_f32 v40, v42, v42")
        a.I("v_mul_f32 v40, 0x43580000, v40")
        a.I("v_mul_f32 v44, v44, v44")
        a.I("v_fmac_f32 v40, v47, v44")
        a.I("v_add_f32 v40, v40, v41")
        a.I("v_add_f32 v40, v40, v43")
        a.I("v_add_f32 v40, v40, v45")
        a.I("v_mul_f32 v40, 0x3acccccd, v40")
        self.ln_denom(40, 48)
        a.I("v_cvt_pk_bf16_f32 v46, v46, v46")
        a.I("v_lshlrev_b32 v46, 16, v46")
        a.I("v_rcp_f32 v41, v40")
        o = [32, 33, 34, 35]
        for r in o:
            a.I(f"v_sub_f32 v{r}, v{r}, v46")
        self.bf16_round(o, 6)
        for r in o:
            self.div_by(r, 40, 41, 7)
        self.bf16_round(o, 6)
        for k, r in enumerate(o):
            a.I(f"v_mul_f32 v{r}, v{r}, v{20+k}")
        self.bf16_round(o, 6)
        for k, r in enumerate(o):
            a.I(f"v_add_f32 v{r}, v{r}, v{24+k}")
        a.I("v_cvt_pk_bf16_f32 v32, v32, v33")
        a.I("v_cvt_pk_bf16_f32 v33, v34, v35")
        a.I("s_mov_b64 exec, s[50:51]")
        a.I("ds_write_b64 v31, v[32:33]")
        a.I("s_mov_b64 exec, -1")
        a.I("s_waitcnt lgkmcnt(0)")
        a.I("s_barrier")
        a.I("s_cmp_ge_u32 s44, 8")
        a.I("s_cbranch_scc1 L_gu_m6")
        self.mfma_with_b(7, 96, 29, 40, 20)
        a.I("s_branch L_gu_mdone")
        a.label("L_gu_m6")
        a.fence(2)
        self.mfma_with_b(6, 96, 29, 40, 20)
        a.label("L_gu_mdone")
        a.fence(8)
        self.write_red(20, 30)
        a.I("s_cmp_lg_u32 s44, 0")
        a.I("s_cbranch_scc1 L_gu_done")
        a.I("v_lshlrev_b32 v6, 4, v5")
        for kt in range(3):
            a.I(f"ds_read_b128 v[{20+4*kt}:{23+4*kt}], v6 offset:{L_RED + 1024*kt}")
        a.I("s_waitcnt lgkmcnt(0)")
        for k in range(4):
            a.I(f"v_add_f32 v{20+k}, v{20+k}, v{24+k}")
        for k in range(4):
            a.I(f"v_add_f32 v{20+k}, v{20+k}, v{28+k}")
        self.bf16_round([20, 21, 22, 23], 6)
        for k in range(4):
            a.I(f"v_mov_b32 v{24+k}, v{20+k}")
        for k in range(4):
            a.I(f"v_permlane32_swap_b32 v{20+k}, v{24+k}")
        for k in range(4):
            a.I(f"v_mul_f32 v{20+k}, v{20+k}, v{24+k}")
        a.I("v_cvt_pk_bf16_f32 v20, v20, v21")
        a.I("v_cvt_pk_bf16_f32 v21, v22, v23")
        a.I("v_and_b32 v6, 3, v5")
        a.I("v_lshlrev_b32 v6, 6, v6")
        a.I("v_bfe_u32 v7, v5, 2, 3")
        a.I("v_lshl_add_u32 v6, v7, 3, v6")
        a.I("s_mov_b32 exec_lo, -1"); a.I("s_mov_b32 exec_hi, 0")
        a.I(f"ds_write_b64 v6, v[20:21] offset:{L_QV}")
        a.I("s_mov_b64 exec, -1")
        a.I("s_waitcnt lgkmcnt(0)")
        a.label("L_gu_done")
        a.I("s_barrier")
        a.I("v_and_b32 v6, 3, v5")
        a.I("v_lshlrev_b32 v6, 6, v6")
        a.I("v_lshrrev_b32 v7, 4, v5")
        a.I("v_lshl_add_u32 v6, v7, 4, v6")
        a.I(f"ds_read_b128 v[40:43], v6 offset:{L_QV}")
        a.I("v_and_b32 v6, 3, v5")
        a.I("v_lshlrev_b32 v6, 6, v6")
        a.I("v_lshl_add_u32 v6, v7, 4, v6")
        a.I("s_mul_i32 s45, s44, 12288")
        a.I(f"s_lshl_b32 s46, s{S_NB}, 8")
        a.I("s_add_u32 s45, s45, s46")
        a.I(f"s_add_u32 s45, s45, {WS_PD}")
        a.I("s_waitcnt lgkmcnt(0)")
        for t in range(4):
            a.I(f"v_mfma_f32_16x16x32_bf16 v[{44+4*t}:{47+4*t}], v[{124+4*t}:{127+4*t}], v[40:43], 0")
        a.I(f"s_mov_b32 exec_lo, 0x{MASK_N4_LO:x}")
        a.I(f"s_mov_b32 exec_hi, 0x{MASK_N4_LO:x}")
        for t in range(4):
            if t == 3:
                a.I("s_cmp_ge_u32 s44, 4")
                a.I("s_cbranch_scc1 L_gu_st_done")
            self.canon([44+4*t+k for k in range(4)], 12)
            a.I(f"buffer_store_dwordx4 v[{44+4*t}:{47+4*t}], v6, s[40:43], s45 offen sc1")
            if t < 3:
                a.I(f"s_add_u32 s45, s45, {12*12288}")
        a.label("L_gu_st_done")
        a.I("s_mov_b64 exec, -1")
        self.stamp(11)

    def post_final(self):
        a = self.a
        a.fence(2)
        a.I("v_lshlrev_b32 v10, 4, v5")
        a.I(f"s_mul_i32 s47, s{S_DT}, 12288")
        a.I("s_lshl_b32 s45, s44, 10")
        a.I("s_add_u32 s47, s47, s45")
        a.I(f"s_add_u32 s47, s47, {WS_PD}")
        a.I("v_bfe_u32 v12, v5, 2, 2")
        a.I("v_and_b32 v13, 3, v5")
        a.I("v_mul_u32_u24 v14, 7680, v12")
        a.I("v_lshl_add_u32 v14, v13, 3, v14")
        a.I(f"s_lshl_b32 s45, s{S_DT}, 5")
        a.I(f"s_add_u32 s46, s45, {WS_MOD + 6400}")
        a.I("v_mul_u32_u24 v31, 1280, v12")
        a.I("v_lshl_add_u32 v31, v13, 3, v31")
        a.I(f"s_add_u32 s45, s45, {L_OPART}")
        a.I("v_add_u32 v31, s45, v31")
        a.I("v_and_b32 v30, 15, v5")
        a.I("v_lshlrev_b32 v30, 4, v30")
        a.I("s_lshl_b32 s45, s44, 8")
        a.I(f"s_add_u32 s45, s45, {L_RED}")
        a.I("v_add_u32 v29, s45, v30")
        self.stamp(19)
        self.poll(["buffer_load_dwordx4 v[40:43], v10, s[40:43], s47 offen sc1",
                   "buffer_load_dwordx2 v[22:23], v14, s[40:43], s46 offen sc1"], [40, 41, 42, 43, 22, 23], "L_ph", pre=6)
        self.stamp(20)
        for sw in ("v_permlane32_swap_b32", "v_permlane16_swap_b32"):
            for k in range(4):
                a.I(f"v_mov_b32 v{44+k}, v{40+k}")
            for k in range(4):
                a.I(f"{sw} v{40+k}, v{44+k}")
            for k in range(4):
                a.I(f"v_add_f32 v{40+k}, v{40+k}, v{44+k}")
        a.I("s_mov_b32 exec_lo, 0xffff"); a.I("s_mov_b32 exec_hi, 0")
        a.I("ds_write_b128 v29, v[40:43]")
        a.I("s_mov_b64 exec, -1")
        a.I("s_waitcnt lgkmcnt(0)")
        a.I("s_barrier")
        a.I("s_cmp_lg_u32 s44, 0")
        a.I("s_cbranch_scc1 L_dn_done")
        a.I("v_lshrrev_b32 v6, 4, v5")
        a.I("v_mul_u32_u24 v6, 768, v6")
        a.I("v_add_u32 v6, v6, v30")
        for k in range(3):
            a.I(f"ds_read_b128 v[{40+4*k}:{43+4*k}], v6 offset:{L_RED + 256*k}")
        a.I("ds_read_b64 v[32:33], v31")
        self.srd(36, 26, 5120)
        a.I("s_waitcnt lgkmcnt(0)")
        for k in range(4):
            a.I(f"v_add_f32 v{40+k}, v{40+k}, v{44+k}")
        for k in range(4):
            a.I(f"v_add_f32 v{40+k}, v{40+k}, v{48+k}")
        for sw in ("v_permlane32_swap_b32", "v_permlane16_swap_b32"):
            for k in range(4):
                a.I(f"v_mov_b32 v{44+k}, v{40+k}")
            for k in range(4):
                a.I(f"{sw} v{40+k}, v{44+k}")
            for k in range(4):
                a.I(f"v_add_f32 v{40+k}, v{40+k}, v{44+k}")
        o = [40, 41, 42, 43]
        self.bf16_round(o, 6)
        self.unpack(22, 24, 25)
        self.unpack(23, 26, 27)
        for k in range(4):
            a.I(f"v_mul_f32 v{40+k}, v{40+k}, v{24+k}")
        self.bf16_round(o, 6)
        self.unpack(32, 24, 25)
        self.unpack(33, 26, 27)
        for k in range(4):
            a.I(f"v_add_f32 v{40+k}, v{40+k}, v{24+k}")
        a.I("v_cvt_pk_bf16_f32 v40, v40, v41")
        a.I("v_cvt_pk_bf16_f32 v41, v42, v43")
        a.I("v_mul_u32_u24 v6, 1280, v12")
        a.I("v_lshl_add_u32 v6, v13, 3, v6")
        a.I(f"s_lshl_b32 s45, s{S_DT}, 5")
        a.I("s_mov_b32 exec_lo, 0xffff"); a.I("s_mov_b32 exec_hi, 0")
        a.I(f"buffer_store_dwordx2 v[40:41], v6, s[36:39], s45 offen {self.cfg.outpol}")
        a.I("s_mov_b64 exec, -1")
        a.label("L_dn_done")
        self.stamp(21)

    def tail(self):
        a = self.a
        a.label("L_tail")
        if self.cfg.dbgt:
            a.fence(4)
            a.I("s_cmp_eq_u32 s44, 0")
            a.I("s_cbranch_scc0 L_end")
            self.stamp(13)
            a.I("s_mov_b64 exec, 1")
            a.I("s_not_b32 s98, s98")
            for i, r in enumerate((98, 77, 72, 66, 64 + 4, 64 + 6)):
                a.I(f"v_mov_b32 v6, {16 + 4*i}")
                a.I(f"v_mov_b32 v7, s{r}")
                a.I("global_atomic_umax v6, v7, s[28:29] sc1")
            a.I("s_branch L_end")
        if self.diag and not self.cfg.dbgt:
            a.fence(4)
            self.stamp(13)
            a.I(f"s_lshl_b32 s79, s{S_PRE}, 4")
            a.I(f"s_or_b32 s79, s79, s{S_POST}")
            a.I("s_mul_i32 s45, s2, 12")
            a.I("s_add_u32 s45, s45, s44")
            a.I("s_lshl_b32 s45, s45, 7")
            a.I(f"s_add_u32 s45, s45, {WS_DBG}")
            a.I("s_mov_b64 exec, 1")
            a.I("v_mov_b32 v6, 0")
            regs = [64 + k for k in range(16)] + [93 + k for k in range(8)]
            for q in range(6):
                for k in range(4):
                    a.I(f"v_mov_b32 v{8+k}, s{regs[4*q+k]}")
                a.I(f"buffer_store_dwordx4 v[8:11], v6, s[40:43], s45 offen offset:{16*q}")
                a.I("s_nop 1")
        a.label("L_end")
        a.I("s_endpgm")
        a.raw(f""".section .rodata,"a"
.p2align 6
.amdhsa_kernel {self.name}
  .amdhsa_next_free_vgpr 168
  .amdhsa_next_free_sgpr 102
  .amdhsa_accum_offset 168
  .amdhsa_group_segment_fixed_size 0
  .amdhsa_float_denorm_mode_32 3
  .amdhsa_kernarg_size 112
  .amdhsa_user_sgpr_count 2
  .amdhsa_user_sgpr_kernarg_segment_ptr 1
  .amdhsa_system_sgpr_workgroup_id_x 1
.end_amdhsa_kernel""")

    def build(self):
        self.entry()
        self.helper_front()
        self.stream()
        self.helper()
        self.a.I("s_branch L_post")
        self.stream_bulk()
        self.post()
        self.tail()
        return self.a.text()


def make(path, diag=False, name=KNAME, **kw):
    cfg = StreamCfg()
    for k, v in kw.items():
        setattr(cfg, k, v)
    g = Gen(cfg, diag=diag, name=name)
    txt = g.build()
    open(path, 'w').write(txt)
    return g


if __name__ == '__main__':
    out = sys.argv[1]
    kw = {}
    diag = False
    name = KNAME
    for kv in sys.argv[2:]:
        k, v = kv.split('=')
        if k == 'diag': diag = bool(int(v))
        elif k == 'name': name = v
        else: kw[k] = v.replace('_', ' ').replace('none', '') if k in ('nt', 'pfpol', 'ntV', 'ntW', 'outpol') else int(v)
    g = make(out, diag=diag, name=name, **kw)
    print(out, 'nops', g.a.nops)
```

```python
from asmdsl import Asm

LOG2E = 0x3fb8aa3b
SCALE = 0x3d93cd3a

R0 = 8
D = 38


def slot(i):
    return R0 + 4 * (i % D)


def hole(i):
    return R0 + 4 * i + 3


V_OFF = 1
V_Q = (2, 3, 4)
V_LANE = 5
V_T0, V_T1 = 6, 7
A_ = (hole(0), hole(1))
B_ = (hole(2), hole(3))
C_ = (hole(4), hole(5))
D_ = (hole(6), hole(7), hole(8), hole(9))
E_ = (hole(10), hole(11))
TT = (hole(12), hole(13))
V_PADDR = hole(14)
V_PW = hole(15)
V_X = [hole(16 + i) for i in range(6)]
SC = tuple(hole(22 + i) for i in range(4))
ACC = tuple(hole(26 + i) for i in range(6))
PG = (160, 164)
PTX = (hole(32), hole(33), hole(34), hole(35))
V_TK = hole(0)
PT = PTX


def set_depth(d):
    global D
    assert 36 <= d <= 38 or d == 32
    D = d


class StreamCfg:
    D = 32
    NB0 = 0
    W = 12
    W0 = 5
    late_skip = True
    WV = 64
    nt = 'nt'
    ntV = None
    ntW = 'nt'
    codepf = 0
    N1 = 12
    ntG = 'nt'
    obar = 1
    kx = 0
    TD = 47
    step = 6144
    wstride = 768
    outpol = ''
    pfs = 0
    xp = 5
    dbgt = 0
    pad = 0
    pf = 0
    pfpol = ''
    PW = 2
    ygate = 0
    early_w = 0
    WW = 3
    WX = 12
    DX = 24
    hop = 14
    TJ = 44
    pw_early = 0
    gate = 2
    pretouch = 0


def emit_issue(a, cfg, u, S):
    NK = 128 + cfg.kx
    srd = S['srdK'] if u < NK else S['srdV']
    if u == NK:
        a.I(f"s_mov_b32 s{S['soff']}, 0")
    s = slot(u)
    pol = cfg.nt if u < NK else (cfg.ntV if cfg.ntV is not None else cfg.nt)
    a.vmem(f"buffer_load_dwordx3 v[{s}:{s+2}], v{V_OFF}, s[{srd}:{srd+3}], s{S['soff']} offen {pol}", ('ld', u))
    if u not in (NK - 1, 2 * NK - 1):
        a.I(f"s_addk_i32 s{S['soff']}, {cfg.step}")


def stream_prologue(a, cfg, S):
    a.comment('stream prologue')
    a.I(f"v_and_b32 v{V_LANE}, 63, v0")
    a.I(f"s_mul_i32 s{S['tmp']}, s{S['wave']}, {cfg.wstride}")
    a.I(f"v_mul_u32_u24 v{V_OFF}, 12, v{V_LANE}")
    a.I(f"v_add_u32 v{V_OFF}, s{S['tmp']}, v{V_OFF}")
    a.I(f"s_mov_b32 s{S['soff']}, 0")
    a.vm_reset()
    for u in range(D):
        if u in S.get('hook_before', {}):
            S['hook_before'][u]()
        if u >= cfg.W0:
            a.vm_window(cfg.W0 - 1)
        emit_issue(a, cfg, u, S)
        if u == S.get('b0_after', -1):
            a.I('s_barrier')
    return D


def k_tree(a, t, S, dst=None, skip_below=0):
    i = t % 32
    if i % 2 == 1 and skip_below <= 1:
        a.I(f"v_permlane16_swap_b32 v{A_[0]}, v{A_[1]}")
        a.I(f"v_add_f32 v{B_[(i >> 1) & 1]}, v{A_[0]}, v{A_[1]}")
    if i % 4 == 3 and skip_below <= 2:
        c = C_[(i >> 2) & 1]
        a.I(f"v_add_f32_dpp v{c}, v{B_[0]}, v{B_[0]} row_ror:8 row_mask:0xf bank_mask:0x3")
        a.I(f"v_add_f32_dpp v{c}, v{B_[1]}, v{B_[1]} row_ror:8 row_mask:0xf bank_mask:0xc")
    if i % 8 == 7 and skip_below <= 3:
        d = D_[i >> 3]
        a.I(f"v_add_f32_dpp v{d}, v{C_[0]}, v{C_[0]} row_half_mirror row_mask:0xf bank_mask:0x5")
        a.I(f"v_add_f32_dpp v{d}, v{C_[1]}, v{C_[1]} row_half_mirror row_mask:0xf bank_mask:0xa")
    if i % 16 == 15 and skip_below <= 4:
        k = i >> 4
        d0, d1 = D_[2 * k], D_[2 * k + 1]
        a.I(f"v_add_f32_dpp v{TT[0]}, v{d0}, v{d0} quad_perm:[1,0,3,2] row_mask:0xf bank_mask:0xf")
        a.I(f"v_add_f32_dpp v{TT[1]}, v{d1}, v{d1} quad_perm:[1,0,3,2] row_mask:0xf bank_mask:0xf")
        a.I(f"v_cndmask_b32 v{E_[k]}, v{TT[0]}, v{TT[1]}, s[{S['mask0']}:{S['mask0']+1}]")
    if i == 31:
        a.I(f"v_add_f32_dpp v{TT[0]}, v{E_[0]}, v{E_[0]} quad_perm:[2,3,0,1] row_mask:0xf bank_mask:0xf")
        a.I(f"v_add_f32_dpp v{TT[1]}, v{E_[1]}, v{E_[1]} quad_perm:[2,3,0,1] row_mask:0xf bank_mask:0xf")
        a.I(f"v_cndmask_b32 v{dst if dst is not None else SC[t // 32]}, v{TT[0]}, v{TT[1]}, s[{S['mask1']}:{S['mask1']+1}]")


def wave_reduce(a, op, v, sdst):
    for r in (8, 4, 2, 1):
        a.I(f"{op}_dpp v{v}, v{v}, v{v} row_ror:{r} row_mask:0xf bank_mask:0xf")
    a.I(f"{op}_dpp v{v}, v{v}, v{v} row_bcast:15 row_mask:0xa bank_mask:0xf")
    a.I(f"{op}_dpp v{v}, v{v}, v{v} row_bcast:31 row_mask:0xc bank_mask:0xf")
    a.I(f"v_readlane_b32 s{sdst}, v{v}, 63")


def round_bf16_pairs(a, regs, tmp):
    a.I(f"v_cvt_pk_bf16_f32 v{tmp[0]}, v{regs[0]}, v{regs[1]}")
    a.I(f"v_cvt_pk_bf16_f32 v{tmp[1]}, v{regs[2]}, v{regs[3]}")
    a.I(f"v_lshlrev_b32 v{regs[0]}, 16, v{tmp[0]}")
    a.I(f"v_and_b32 v{regs[1]}, 0xffff0000, v{tmp[0]}")
    a.I(f"v_lshlrev_b32 v{regs[2]}, 16, v{tmp[1]}")
    a.I(f"v_and_b32 v{regs[3]}, 0xffff0000, v{tmp[1]}")


def stream_main(a, cfg, S, L, issued, stamp=None):
    stamp = stamp or (lambda k: None)
    a.I(f"s_mov_b32 s{S['mask0']}, 0xaaaaaaaa")
    a.I(f"s_mov_b32 s{S['mask0']+1}, 0xaaaaaaaa")
    a.I(f"s_mov_b32 s{S['mask1']}, 0xcccccccc")
    a.I(f"s_mov_b32 s{S['mask1']+1}, 0xcccccccc")
    a.I(f"s_mov_b32 s{S['sello']}, 0x05040100")
    a.I(f"s_mov_b32 s{S['selhi']}, 0x07060302")
    a.I(f"s_mov_b32 s{S['log2e']}, 0x{LOG2E:x}")
    a.I(f"v_and_b32 v{V_T0}, 31, v{V_LANE}")
    a.I(f"v_mul_u32_u24 v{V_T0}, 12, v{V_T0}")
    a.I(f"v_lshrrev_b32 v{V_T1}, 5, v{V_LANE}")
    NK = 128 + cfg.kx
    SC4, VI = 156, 157
    if cfg.kx:
        assert D == 32 and cfg.kx in (2, 4)
        a.I(f"v_mul_u32_u24 v{V_PADDR}, 320, v{V_T1}")
        a.I(f"s_mul_i32 s{S['tmp']}, s{S['wave']}, 640")
    else:
        a.I(f"v_lshlrev_b32 v{V_PADDR}, 8, v{V_T1}")
        a.I(f"s_lshl_b32 s{S['tmp']}, s{S['wave']}, 9")
    a.I(f"s_add_u32 s{S['tmp']}, s{S['tmp']}, {L['P']}")
    a.I(f"v_add_u32 v{V_PADDR}, s{S['tmp']}, v{V_PADDR}")
    x = V_X
    a.I(f"v_bfe_u32 v{x[0]}, v{V_LANE}, 4, 1")
    a.I(f"v_lshl_add_u32 v{V_PW}, v{x[0]}, 1, v{V_PADDR}")
    a.I(f"v_bfe_u32 v{x[0]}, v{V_LANE}, 3, 1")
    a.I(f"v_lshl_add_u32 v{V_PW}, v{x[0]}, 2, v{V_PW}")
    a.I(f"v_bfe_u32 v{x[0]}, v{V_LANE}, 2, 1")
    a.I(f"v_lshl_add_u32 v{V_PW}, v{x[0]}, 3, v{V_PW}")
    a.I(f"v_bfe_u32 v{x[0]}, v{V_LANE}, 0, 1")
    a.I(f"v_lshl_add_u32 v{V_PW}, v{x[0]}, 4, v{V_PW}")
    a.I(f"v_bfe_u32 v{x[0]}, v{V_LANE}, 1, 1")
    a.I(f"v_lshl_add_u32 v{V_PW}, v{x[0]}, 5, v{V_PW}")
    if cfg.kx:
        a.I(f"v_bfe_u32 v{VI}, v{V_LANE}, 4, 1")
        for bit, sh in ((3, 1), (2, 2), (0, 3), (1, 4)):
            a.I(f"v_bfe_u32 v{x[0]}, v{V_LANE}, {bit}, 1")
            a.I(f"v_lshl_or_b32 v{VI}, v{x[0]}, {sh}, v{VI}")
    for k in range(6):
        a.I(f"v_mov_b32 v{ACC[k]}, 0")
    stamp(1)
    a.I('s_barrier')
    stamp(2)
    a.I(f"ds_read_b32 v{V_Q[0]}, v{V_T0} offset:{L['QV']}")
    a.I(f"ds_read_b32 v{V_Q[1]}, v{V_T0} offset:{L['QV']+4}")
    a.I(f"ds_read_b32 v{V_Q[2]}, v{V_T0} offset:{L['QV']+8}")
    a.I('s_waitcnt lgkmcnt(0)')

    W = cfg.W
    pend = None
    for t in range(NK):
        s = slot(t)
        a.vm_wait(('ld', t))
        leaf = A_[t & 1]
        a.I(f"v_dot2_f32_bf16 v{leaf}, v{s}, v{V_Q[0]}, 0")
        a.I(f"v_dot2c_f32_bf16 v{leaf}, v{s+1}, v{V_Q[1]}") if False else a.I(f"v_dot2_f32_bf16 v{leaf}, v{s+1}, v{V_Q[1]}, v{leaf}")
        a.I(f"v_dot2_f32_bf16 v{leaf}, v{s+2}, v{V_Q[2]}, v{leaf}")
        if cfg.late_skip:
            target = min(t + D, NK - 1 + W)
        else:
            target = max(D - 1, t + W)
        while issued <= target:
            emit_issue(a, cfg, issued, S)
            issued += 1
        k_tree(a, t, S, dst=SC4 if t >= 128 else None)
        for _ in range(cfg.pad):
            a.I("s_mov_b32 s63, 0x12345")
    if cfg.kx:
        last = (NK - 1) % 32
        for i_, lvl in ((3, 2), (7, 3), (15, 4), (31, 5)):
            if i_ > last:
                k_tree(a, 128 + i_, S, dst=SC4, skip_below=lvl)
    stamp(3)
    sc = list(SC)
    round_bf16_pairs(a, sc, (V_T0, V_T1))
    a.I(f"s_mov_b32 s{S['tmp']}, 0x{SCALE:x}")
    for r in sc:
        a.I(f"v_mul_f32 v{r}, s{S['tmp']}, v{r}")
    round_bf16_pairs(a, sc, (V_T0, V_T1))
    if cfg.kx:
        a.I(f"v_cvt_pk_bf16_f32 v{V_T0}, v{SC4}, v{SC4}")
        a.I(f"v_lshlrev_b32 v{SC4}, 16, v{V_T0}")
        a.I(f"v_mul_f32 v{SC4}, s{S['tmp']}, v{SC4}")
        a.I(f"v_cvt_pk_bf16_f32 v{V_T0}, v{SC4}, v{SC4}")
        a.I(f"v_lshlrev_b32 v{SC4}, 16, v{V_T0}")
        a.I(f"v_mov_b32 v{V_T1}, 0xff800000")
        a.I(f"s_cmp_eq_u32 s{S['half']}, 0")
        a.I(f"s_cselect_b32 s{S['tmp']}, {NK - 96}, {256 - NK - 96}")
        a.I(f"v_cmp_gt_u32 vcc, s{S['tmp']}, v{VI}")
        a.I(f"v_cndmask_b32 v{SC[3]}, v{V_T1}, v{SC[3]}, vcc")
        a.I(f"s_cmp_eq_u32 s{S['half']}, 0")
        a.I(f"s_cselect_b32 s{S['tmp']}, {NK - 128}, 0")
        a.I(f"v_cmp_gt_u32 vcc, s{S['tmp']}, v{VI}")
        a.I(f"v_cndmask_b32 v{SC4}, v{V_T1}, v{SC4}, vcc")
    a.I(f"v_max_f32 v{V_T0}, v{sc[0]}, v{sc[1]}")
    a.I(f"v_max3_f32 v{V_T0}, v{V_T0}, v{sc[2]}, v{sc[3]}")
    if cfg.kx:
        a.I(f"v_max_f32 v{V_T0}, v{V_T0}, v{SC4}")
    wave_reduce(a, 'v_max_f32', V_T0, S['m'])
    for k, r in enumerate(sc):
        a.I(f"v_subrev_f32 v{x[k]}, s{S['m']}, v{r}")
    for k in range(4):
        a.I(f"v_mul_f32 v{x[k]}, s{S['log2e']}, v{x[k]}")
    for k in range(4):
        a.I(f"v_exp_f32 v{x[k]}, v{x[k]}")
    a.I(f"v_add_f32 v{V_T0}, v{x[0]}, v{x[1]}")
    a.I(f"v_add_f32 v{V_T1}, v{x[2]}, v{x[3]}")
    a.I(f"v_add_f32 v{V_T0}, v{V_T0}, v{V_T1}")
    if cfg.kx:
        a.I(f"v_subrev_f32 v{x[4]}, s{S['m']}, v{SC4}")
        a.I(f"v_mul_f32 v{x[4]}, s{S['log2e']}, v{x[4]}")
        a.I(f"v_exp_f32 v{x[4]}, v{x[4]}")
        a.I(f"v_add_f32 v{V_T0}, v{V_T0}, v{x[4]}")
    wave_reduce(a, 'v_add_f32', V_T0, S['l'])
    a.I(f"s_lshl_b32 s{S['tmp']}, s{S['wave']}, 3")
    a.I(f"s_add_u32 s{S['tmp']}, s{S['tmp']}, {L['STATS']}")
    a.I(f"v_mov_b32 v{x[4]}, s{S['m']}")
    a.I(f"v_mov_b32 v{x[5]}, s{S['l']}")
    a.I(f"v_mov_b32 v{V_T0}, s{S['tmp']}")
    a.I(f"ds_write_b32 v{V_T0}, v{x[4]}")
    a.I(f"ds_write_b32 v{V_T0}, v{x[5]} offset:4")
    a.I('s_waitcnt lgkmcnt(0)')
    a.I('s_barrier')
    stamp(4)
    while issued <= NK - 1 + min(D, cfg.DX):
        a.vm_window(cfg.WX - 1)
        emit_issue(a, cfg, issued, S)
        issued += 1
    stamp(5)
    a.I('s_barrier')
    stamp(6)
    a.I(f"v_mov_b32 v{V_T0}, {L['FIN']}")
    a.I(f"ds_read_b64 v[{PG[1]}:{PG[1]+1}], v{V_T0}")
    a.I('s_waitcnt lgkmcnt(0)')
    for k, r in enumerate(sc):
        a.I(f"v_sub_f32 v{x[k]}, v{r}, v{PG[1]}")
    for k in range(4):
        a.I(f"v_mul_f32 v{x[k]}, s{S['log2e']}, v{x[k]}")
    for k in range(4):
        a.I(f"v_exp_f32 v{x[k]}, v{x[k]}")
    for k in range(4):
        a.I(f"v_mul_f32 v{x[k]}, v{x[k]}, v{PG[1]+1}")
    a.I(f"v_cvt_pk_bf16_f32 v{x[4]}, v{x[0]}, v{x[1]}")
    a.I(f"v_cvt_pk_bf16_f32 v{x[5]}, v{x[2]}, v{x[3]}")
    a.I(f"ds_write_b16 v{V_PW}, v{x[4]}")
    a.I(f"ds_write_b16_d16_hi v{V_PW}, v{x[4]} offset:64")
    a.I(f"ds_write_b16 v{V_PW}, v{x[5]} offset:128")
    a.I(f"ds_write_b16_d16_hi v{V_PW}, v{x[5]} offset:192")
    if cfg.kx:
        a.I(f"v_sub_f32 v{x[0]}, v{SC4}, v{PG[1]}")
        a.I(f"v_mul_f32 v{x[0]}, s{S['log2e']}, v{x[0]}")
        a.I(f"v_exp_f32 v{x[0]}, v{x[0]}")
        a.I(f"v_mul_f32 v{x[0]}, v{x[0]}, v{PG[1]+1}")
        a.I(f"v_cvt_pk_bf16_f32 v{x[4]}, v{x[0]}, v{x[0]}")
        a.I(f"ds_write_b16 v{V_PW}, v{x[4]} offset:256")
    a.I(f"ds_read_b128 v[{PG[0]}:{PG[0]+3}], v{V_PADDR}")
    a.I(f"ds_read_b128 v[{PG[1]}:{PG[1]+3}], v{V_PADDR} offset:16")

    if cfg.early_w == 2:
        a.I("s_setprio 1")
    NP = NK // 2
    NG = (NP + 3) // 4
    for j in range(NP):
        g = j // 4
        if j % 4 == 0:
            a.I('s_waitcnt lgkmcnt(1)' if g + 1 < NG else 's_waitcnt lgkmcnt(0)')
        P = PG[g & 1] + (j % 4)
        t0, t1 = NK + 2 * j, NK + 2 * j + 1
        s0, s1 = slot(t0), slot(t1)
        a.vm_wait(('ld', t1))
        for k in range(3):
            tl, th = PT[(2 * k) % 4], PT[(2 * k + 1) % 4]
            a.I(f"v_perm_b32 v{tl}, v{s1+k}, v{s0+k}, s{S['sello']}")
            a.I(f"v_perm_b32 v{th}, v{s1+k}, v{s0+k}, s{S['selhi']}")
            a.I(f"v_dot2c_f32_bf16 v{ACC[2*k]}, v{tl}, v{P}")
            a.I(f"v_dot2c_f32_bf16 v{ACC[2*k+1]}, v{th}, v{P}")
        if j % 4 == 3 and g + 2 < NG:
            a.I(f"ds_read_b128 v[{PG[g & 1]}:{PG[g & 1]+3}], v{V_PADDR} offset:{16*(g+2)}")
        if j == cfg.TJ and cfg.early_w != 1:
            lab = a.newlabel('tk')
            a.I(f"s_cmp_eq_u32 s{S['wave']}, 0")
            a.I(f"s_cbranch_scc0 {lab}")
            a.I(f"v_mov_b32 v{V_T0}, {L['TICKET'] + 4}")
            a.I(f"v_mov_b32 v{V_T1}, 1")
            a.I(f"ds_write_b32 v{V_T0}, v{V_T1}")
            a.label(lab)
            lg_extra = True
        for _ in range(2 * cfg.pad):
            a.I("s_mov_b32 s63, 0x12345")
        target = min(2 * NK - 1, t1 + min(cfg.WV, D))
        while issued <= target:
            emit_issue(a, cfg, issued, S)
            issued += 1
        if j == cfg.TD and cfg.early_w == 2:
            lab = a.newlabel('td')
            a.I(f"s_cmp_eq_u32 s{S['wave']}, 7")
            a.I(f"s_cbranch_scc0 {lab}")
            a.I(f"v_mov_b32 v{V_T0}, {L['TICKET'] + 8}")
            a.I(f"v_mov_b32 v{V_T1}, 1")
            a.I(f"ds_write_b32 v{V_T0}, v{V_T1}")
            a.label(lab)
    stamp(7)
    for k in range(3):
        a.I(f"v_permlane32_swap_b32 v{ACC[k]}, v{ACC[k+3]}")
        a.I(f"v_add_f32 v{ACC[k]}, v{ACC[k]}, v{ACC[k+3]}")
    a.I(f"v_and_b32 v{V_T0}, 31, v{V_LANE}")
    a.I(f"v_mul_u32_u24 v{V_T0}, 24, v{V_T0}")
    a.I(f"v_lshrrev_b32 v{V_T1}, 5, v{V_LANE}")
    a.I(f"v_mad_u32_u24 v{V_T0}, v{V_T1}, 12, v{V_T0}")
    a.I(f"s_mul_i32 s{S['tmp']}, s{S['wave']}, 768")
    a.I(f"s_add_u32 s{S['tmp']}, s{S['tmp']}, {L['OPART']}")
    a.I(f"v_add_u32 v{V_T0}, s{S['tmp']}, v{V_T0}")
    for k in range(3):
        a.I(f"ds_write_b32 v{V_T0}, v{ACC[k]} offset:{4*k}")
    a.I('s_waitcnt lgkmcnt(0)')
    a.I('s_barrier')
    stamp(8)
```

```python
import sys
sys.path.insert(0, 'gen')
from asmdsl import Asm
import stream as st
from stream import StreamCfg, LOG2E

KNAME = 'adaLN_cond__gqa_block_cached__glu_gated_bilinear__decode_kernel'

WS_MOD, WS_Q, WS_ML, WS_O, WS_Y, WS_PD, WS_DBG = 0, 0x8000, 0x38000, 0x40000, 0x70000, 0x84000, 0x100000
WS_SIZE = 0x200000
L_ACT = 0x0000
L_RED = 0x3200
L_QV = 0x4200
L_STATS = 0x4400
L_FIN = 0x4480
L_HFLAG = 0x4500
L_LNST = 0x4540
L_P = 0x4600
L_OPART = 0x5A00
L_W = 0x7200
L_WD = L_W + 81920
L_X1 = 0x6E00
LDS_BYTES = L_W + 81920 + 40960 + 512
LDS = dict(QV=L_QV, STATS=L_STATS, FIN=L_FIN, P=L_P, OPART=L_OPART, TICKET=L_FIN + 8)

SPIN_MAX = 1 << 16
NANF = 0x7fc00000
NANB = 0x7fc07fc0
EPS = 0x3727c5ac

S = dict(srdK=32, srdV=36, srdW=40, wave=44, tmp=45, soff=46, mask0=48, mask1=50, sello=52, selhi=53, log2e=54,
         m=55, l=56, b=57, h=58, half=59, spin=62)
S_PRE, S_BAND, S_POST, S_NB, S_KG = 80, 81, 82, 83, 84
S_KH, S_LATE, S_PHASE, S_DT = 89, 90, 91, 92
MASK_N4_LO = 0x000f000f


class Gen:
    def __init__(self, cfg, diag=False, name=KNAME):
        self.a = Asm()
        self.cfg = cfg
        self.diag = diag
        self.name = name

    def stamp(self, k):
        if not self.diag:
            return
        a = self.a
        a.I("s_memrealtime s[60:61]")
        a.I("s_waitcnt lgkmcnt(0)")
        a.I(f"s_mov_b32 s{64+k if k < 16 else 93+k-16}, s60")

    def srd(self, dst, ptr, size, off=None):
        a = self.a
        if off is None:
            a.I(f"s_mov_b32 s{dst}, s{ptr}")
            a.I(f"s_mov_b32 s{dst+1}, s{ptr+1}")
        else:
            a.I(f"s_add_u32 s{dst}, s{ptr}, s{off}")
            a.I(f"s_addc_u32 s{dst+1}, s{ptr+1}, 0")
        a.I(f"s_mov_b32 s{dst+2}, {size}")
        a.I(f"s_mov_b32 s{dst+3}, 0x20000")

    def canon(self, regs, nanreg=None):
        a = self.a
        for r in regs:
            a.I(f"v_min_u32 v{r}, -2, v{r}")

    def poll_sel(self, loads, label, t, first_issued=False):
        a = self.a
        n = len(loads)
        a.I(f"s_mov_b32 s63, {(1 << n) - 1}")
        a.I("s_mov_b32 s62, 0")
        if first_issued:
            a.I(f"s_branch {label}_chk")
        a.label(label)
        for i, (ld, regs) in enumerate(loads):
            a.I(f"s_bitcmp1_b32 s63, {i}")
            a.I(f"s_cbranch_scc0 {label}_s{i}")
            a.I(ld)
            a.label(f"{label}_s{i}")
        a.label(f"{label}_chk")
        a.I("s_add_u32 s62, s62, 1")
        a.I("s_waitcnt vmcnt(0)")
        for i, (ld, regs) in enumerate(loads):
            r = regs
            a.I(f"v_max3_u32 v{t}, v{r[0]}, v{r[1]}, v{r[2]}")
            a.I(f"v_max_u32 v{t}, v{t}, v{r[3]}")
            a.I(f"v_cmp_eq_u32 vcc, -1, v{t}")
            a.I("s_cmp_eq_u64 vcc, 0")
            a.I(f"s_cbranch_scc0 {label}_p{i}")
            a.I(f"s_bitset0_b32 s63, {i}")
            a.label(f"{label}_p{i}")
        a.I("s_cmp_eq_u32 s63, 0")
        a.I(f"s_cbranch_scc1 {label}_ok")
        a.I(f"s_cmp_lt_u32 s62, {SPIN_MAX}")
        a.I(f"s_cbranch_scc1 {label}")
        a.label(f"{label}_ok")

    def poll(self, loads, regs, label, pre=None):
        a = self.a
        a.I("s_mov_b32 s62, 0")
        a.label(label)
        for ld in loads:
            a.I(ld)
        a.I("s_add_u32 s62, s62, 1")
        a.I("s_waitcnt vmcnt(0)")
        rs = list(regs)
        t = pre
        first = True
        i = 0
        while i < len(rs):
            if first:
                if len(rs) >= 3:
                    a.I(f"v_max3_u32 v{t}, v{rs[0]}, v{rs[1]}, v{rs[2]}"); i = 3
                elif len(rs) == 2:
                    a.I(f"v_max_u32 v{t}, v{rs[0]}, v{rs[1]}"); i = 2
                else:
                    a.I(f"v_mov_b32 v{t}, v{rs[0]}"); i = 1
                first = False
            elif i + 1 < len(rs):
                a.I(f"v_max3_u32 v{t}, v{t}, v{rs[i]}, v{rs[i+1]}"); i += 2
            else:
                a.I(f"v_max_u32 v{t}, v{t}, v{rs[i]}"); i += 1
        a.I(f"v_cmp_eq_u32 vcc, -1, v{t}")
        a.I("s_cmp_eq_u64 vcc, 0")
        a.I(f"s_cbranch_scc1 {label}_ok")
        a.I(f"s_cmp_lt_u32 s62, {SPIN_MAX}")
        a.I(f"s_cbranch_scc1 {label}")
        a.label(f"{label}_ok")

    def poll_counter(self, off, expect, label, vz, vt):
        a = self.a
        a.I(f"v_mov_b32 v{vz}, {off}")
        a.I("s_mov_b32 s62, 0")
        a.I("s_mov_b64 exec, 1")
        a.label(label)
        a.I(f"global_load_dword v{vt}, v{vz}, s[28:29] sc1")
        a.I("s_add_u32 s62, s62, 1")
        a.I("s_waitcnt vmcnt(0)")
        a.I(f"v_readfirstlane_b32 s45, v{vt}")
        a.I(f"s_cmp_ge_u32 s45, {expect}")
        a.I(f"s_cbranch_scc1 {label}_ok")
        a.I(f"s_cmp_lt_u32 s62, {SPIN_MAX}")
        a.I(f"s_cbranch_scc1 {label}")
        a.label(f"{label}_ok")
        a.I("s_mov_b64 exec, -1")

    def hsync(self, k, label, vz, vt):
        a = self.a
        a.I("s_waitcnt lgkmcnt(0)")
        a.I("s_lshl_b32 s45, s44, 2")
        a.I(f"s_add_u32 s45, s45, {L_HFLAG}")
        a.I(f"v_mov_b32 v{vz}, s45")
        a.I(f"v_mov_b32 v{vt}, {k}")
        a.I(f"ds_write_b32 v{vz}, v{vt}")
        a.I(f"v_mov_b32 v{vz}, {L_HFLAG}")
        a.I("s_mov_b32 s62, 0")
        a.label(label)
        a.I(f"ds_read_b128 v[{vt}:{vt+3}], v{vz}")
        a.I("s_add_u32 s62, s62, 1")
        a.I("s_waitcnt lgkmcnt(0)")
        a.I(f"v_min3_u32 v{vt}, v{vt}, v{vt+1}, v{vt+2}")
        a.I(f"v_min_u32 v{vt}, v{vt}, v{vt+3}")
        a.I(f"v_readfirstlane_b32 s45, v{vt}")
        a.I(f"s_cmp_ge_u32 s45, {k}")
        a.I(f"s_cbranch_scc1 {label}_ok")
        a.I(f"s_cmp_lt_u32 s62, {SPIN_MAX*4}")
        a.I(f"s_cbranch_scc1 {label}")
        a.label(f"{label}_ok")

    def bf16_round(self, regs, tmp):
        a = self.a
        for i in range(0, len(regs), 2):
            a.I(f"v_cvt_pk_bf16_f32 v{tmp}, v{regs[i]}, v{regs[i+1]}")
            a.I(f"v_lshlrev_b32 v{regs[i]}, 16, v{tmp}")
            a.I(f"v_and_b32 v{regs[i+1]}, 0xffff0000, v{tmp}")

    def unpack(self, src, lo, hi):
        a = self.a
        a.I(f"v_lshlrev_b32 v{lo}, 16, v{src}")
        a.I(f"v_and_b32 v{hi}, 0xffff0000, v{src}")

    def wave_sum_bcast(self, v, sdst):
        st.wave_reduce(self.a, 'v_add_f32', v, sdst)

    def ln_denom(self, vvar, vt):
        a = self.a
        a.I(f"v_cvt_pk_bf16_f32 v{vt}, v{vvar}, v{vvar}")
        a.I(f"v_lshlrev_b32 v{vvar}, 16, v{vt}")
        a.I(f"v_add_f32 v{vvar}, 0x{EPS:x}, v{vvar}")
        a.I(f"v_cvt_pk_bf16_f32 v{vt}, v{vvar}, v{vvar}")
        a.I(f"v_lshlrev_b32 v{vvar}, 16, v{vt}")
        a.I(f"v_sqrt_f32 v{vt}, v{vvar}")
        a.I(f"v_rcp_f32 v{vt+1}, v{vt}")
        a.I(f"v_fma_f32 v{vt+2}, -v{vt}, v{vt}, v{vvar}")
        a.I(f"v_mul_f32 v{vt+1}, 0.5, v{vt+1}")
        a.I(f"v_fma_f32 v{vt}, v{vt+2}, v{vt+1}, v{vt}")
        a.I(f"v_cvt_pk_bf16_f32 v{vt}, v{vt}, v{vt}")
        a.I(f"v_lshlrev_b32 v{vvar}, 16, v{vt}")

    def div_by(self, num, den, rcp, t):
        a = self.a
        a.I(f"v_mul_f32 v{t}, v{num}, v{rcp}")
        a.I(f"v_fma_f32 v{num}, -v{t}, v{den}, v{num}")
        a.I(f"v_fma_f32 v{num}, v{num}, v{rcp}, v{t}")

    def entry(self):
        a = self.a
        a.raw(f"; @launch grid=(256,1,1) block=(768,1,1) lds={LDS_BYTES}")
        a.raw('.amdgcn_target "amdgcn-amd-amdhsa--gfx950"\n.text')
        a.raw(f".globl {self.name}\n.p2align 8\n.type {self.name},@function\n{self.name}:")
        a.I("s_cmp_ge_u32 s2, 256")
        a.I("s_cbranch_scc1 L_end")
        if self.cfg.dbgt:
            a.I("s_memrealtime s[98:99]")
        a.I("s_load_dwordx16 s[4:19], s[0:1], 0")
        a.I("s_load_dwordx8 s[20:27], s[0:1], 64")
        a.I("s_load_dwordx4 s[28:31], s[0:1], 96")
        a.I("v_lshrrev_b32 v1, 6, v0")
        a.I("v_and_b32 v5, 63, v0")
        a.I("v_readfirstlane_b32 s44, v1")
        a.I("s_lshr_b32 s45, s2, 1")
        a.I(f"s_mov_b32 s{S_PRE}, 2")
        a.I("s_bitcmp1_b32 s2, 0")
        a.I("s_cbranch_scc1 L_early_q")
        a.I(f"s_sub_u32 s{S_BAND}, s45, 4")
        a.I(f"s_cmp_lt_u32 s{S_BAND}, 60")
        a.I(f"s_cselect_b32 s{S_PRE}, 1, 0")
        a.I("s_cmp_lt_u32 s45, 64")
        a.I("s_cbranch_scc1 L_early_done")
        a.I(f"s_mov_b32 s{S_PRE}, 2")
        a.I("s_add_u32 s45, s45, 64")
        a.label("L_early_q")
        a.I(f"s_lshr_b32 s{S_BAND}, s45, 1")
        a.I(f"s_and_b32 s{S_KH}, s45, 1")
        a.label("L_early_done")
        a.I("s_cmp_lt_u32 s44, 4")
        a.I("s_cbranch_scc0 L_stream")

    def pair_unit(self, sv, sdst):
        a = self.a
        a.I(f"s_and_b32 s46, s{sv}, 7")
        a.I(f"s_lshr_b32 s47, s{sv}, 4")
        a.I("s_lshl_b32 s47, s47, 3")
        a.I("s_add_u32 s46, s46, s47")
        a.I(f"s_bfe_u32 s47, s{sv}, 0x10003")
        a.I(f"s_lshl_b32 s{sdst}, s46, 1")
        a.I(f"s_add_u32 s{sdst}, s{sdst}, s47")

    def roles_rest(self):
        a = self.a
        if self.cfg.xp == 0:
            a.I("s_and_b32 s45, s2, 7")
            a.I("s_lshr_b32 s46, s2, 3")
            a.I("s_and_b32 s47, s46, 3")
            a.I("s_lshl_b32 s47, s47, 3")
            a.I("s_add_u32 s58, s45, s47")
            a.I("s_lshr_b32 s46, s2, 5")
            a.I("s_lshr_b32 s57, s46, 1")
            a.I("s_and_b32 s59, s46, 1")
        else:
            a.I("s_and_b32 s59, s2, 1")
            a.I(f"s_xor_b32 s45, s2, {self.cfg.xp}")
            a.I("s_cmp_eq_u32 s59, 0")
            a.I("s_cselect_b32 s45, s2, s45")
            a.I("s_bfe_u32 s45, s45, 0x20001")
            a.I("s_lshr_b32 s46, s2, 3")
            a.I("s_lshr_b32 s57, s46, 3")
            a.I("s_and_b32 s46, s46, 7")
            a.I("s_lshl_b32 s46, s46, 2")
            a.I("s_add_u32 s58, s46, s45")
        a.I(f"s_mov_b32 s{S_POST}, 0")
        a.I("s_lshr_b32 s45, s2, 1")
        a.I("s_mul_i32 s46, s45, 6554")
        a.I("s_lshr_b32 s46, s46, 16")
        a.I(f"s_mov_b32 s{S_KG}, s46")
        a.I("s_mul_i32 s47, s46, 10")
        a.I(f"s_sub_u32 s{S_NB}, s45, s47")
        a.I("s_cmp_lt_u32 s45, 80")
        a.I(f"s_cselect_b32 s{S_POST}, 1, 0")
        lab = a.newlabel('roles_done')
        a.I("s_bitcmp1_b32 s2, 0")
        a.I(f"s_cbranch_scc0 {lab}")
        a.I(f"s_mov_b32 s{S_NB}, s45")
        a.I("s_cmp_lt_u32 s45, 48")
        a.I(f"s_cselect_b32 s{S_POST}, 2, 0")
        a.label(lab)

    def prefetch_weights(self):
        a = self.a
        pol = self.cfg.pfpol
        lab = a.newlabel('pf')
        a.I("s_cmp_eq_u32 s44, 0")
        a.I(f"s_cbranch_scc1 {lab}_done")
        a.I("v_lshlrev_b32 v8, 4, v5")
        if self.cfg.pfs:
            for i, p in enumerate((16, 18, 20)):
                a.I(f"s_cmp_eq_u32 s44, {i+1}")
                a.I(f"s_cbranch_scc0 {lab}_n{i}")
                a.I("s_mul_i32 s45, s2, 7680")
                self.srd(32, p, 7680, off=45)
                a.I("s_mov_b32 s46, 0")
                a.I("s_mov_b32 s63, 8")
                a.label(f"{lab}_t{i}")
                a.I(f"s_waitcnt vmcnt({self.cfg.PW - 1})")
                a.I(f"buffer_load_dwordx4 v[12:15], v8, s[32:35], s46 offen {pol}")
                a.I("s_add_u32 s46, s46, 1024")
                a.I("s_sub_u32 s63, s63, 1")
                a.I("s_cmp_lg_u32 s63, 0")
                a.I(f"s_cbranch_scc1 {lab}_t{i}")
                a.label(f"{lab}_n{i}")
            a.I(f"s_branch {lab}_done")
        a.I("s_cmp_eq_u32 s44, 3")
        a.I(f"s_cbranch_scc1 {lab}_small")
        a.I("s_mul_i32 s45, s2, 30720")
        self.srd(32, 12, 30720, off=45)
        a.I("s_sub_u32 s46, s44, 1")
        a.I("s_mul_i32 s46, s46, 15360")
        a.I("s_mov_b32 s63, 15")
        a.label(f"{lab}_l1")
        a.I(f"s_waitcnt vmcnt({self.cfg.PW - 1})")
        a.I(f"buffer_load_dwordx4 v[12:15], v8, s[32:35], s46 offen {pol}")
        a.I("s_add_u32 s46, s46, 1024")
        a.I("s_sub_u32 s63, s63, 1")
        a.I("s_cmp_lg_u32 s63, 0")
        a.I(f"s_cbranch_scc1 {lab}_l1")
        a.I(f"s_branch {lab}_done")
        a.label(f"{lab}_small")
        for i, p in enumerate((16, 18, 20)):
            a.I("s_mul_i32 s45, s2, 7680")
            self.srd(32, p, 7680, off=45)
            a.I("s_mov_b32 s46, 0")
            a.I("s_mov_b32 s63, 8")
            a.label(f"{lab}_s{i}")
            a.I(f"s_waitcnt vmcnt({self.cfg.PW - 1})")
            a.I(f"buffer_load_dwordx4 v[12:15], v8, s[32:35], s46 offen {pol}")
            a.I("s_add_u32 s46, s46, 1024")
            a.I("s_sub_u32 s63, s63, 1")
            a.I("s_cmp_lg_u32 s63, 0")
            a.I(f"s_cbranch_scc1 {lab}_s{i}")
        a.label(f"{lab}_done")
        a.fence(2)

    def v_weights(self):
        a = self.a
        WN = self.cfg.WW
        a.I(f"s_cmp_eq_u32 s{S_POST}, 1")
        a.I("s_cbranch_scc0 L_vw_gu")
        a.I(f"s_mul_i32 s45, s{S_KG}, {768*1280}")
        a.I(f"s_lshl_b32 s46, s{S_NB}, 7")
        a.I("s_add_u32 s47, s45, s46")
        self.srd(32, 12, 768 * 1280, off=47)
        self.dma_voff128(1280, 8, 9, 6, 7)
        a.I("s_sub_u32 s63, s44, 1")
        a.I(f"s_mul_i32 s46, s63, {256*1280}")
        a.I("s_lshl_b32 s47, s63, 15")
        a.I(f"s_add_u32 s47, s47, {L_W}")
        self.dma_loop(32, 32, 8, 9, 47, 46, 8 * 1280, "L_vw_wo_loop", window=WN + 1)
        a.I("s_branch L_vw_done")
        a.label("L_vw_gu")
        a.I(f"s_cmp_eq_u32 s{S_POST}, 2")
        a.I("s_cbranch_scc0 L_vw_done")
        a.I("s_cmp_eq_u32 s44, 3")
        a.I("s_cbranch_scc1 L_vw_dn")
        a.I(f"s_lshl_b32 s47, s{S_NB}, 6")
        a.I("s_cmp_eq_u32 s44, 2")
        a.I("s_cselect_b32 s48, s18, s16")
        a.I("s_cselect_b32 s49, s19, s17")
        self.srd(32, 48, 640 * 3072, off=47)
        self.dma_voff64(3072, 8, 6, 7)
        a.I("s_mov_b32 s46, 0")
        a.I("s_sub_u32 s47, s44, 1")
        a.I("s_mul_i32 s47, s47, 40960")
        a.I(f"s_add_u32 s47, s47, {L_W}")
        self.dma_loop(32, 40, 8, 8, 47, 46, 16 * 3072, "L_vw_gu_loop", window=WN)
        a.I("s_branch L_vw_done")
        a.label("L_vw_dn")
        a.I(f"s_mul_i32 s45, s{S_NB}, 40960")
        self.srd(32, 20, 40960, off=45)
        self.wdown_offsets()
        a.I("s_mov_b32 s46, 0")
        a.I(f"s_mov_b32 s47, {L_WD}")
        for q in range(8):
            for m in range(5):
                a.I("s_mov_b32 m0, s47")
                a.I("s_add_u32 s47, s47, 1024")
                a.I(f"buffer_load_dwordx4 v{(153 if (q >> 1) & 1 else 148) + m}, s[32:35], s46 offen {self.cfg.ntW} lds")
            if q < 7:
                a.I("s_add_u32 s46, s46, 5120")

    def wdown_offsets(self):
        a = self.a
        for m in range(5):
            a.I(f"v_lshlrev_b32 v6, 4, v5")
            a.I(f"v_add_u32 v6, {1024*m}, v6")
            a.I("v_mul_u32_u24 v7, 3277, v6")
            a.I("v_lshrrev_b32 v7, 22, v7")
            a.I("v_mul_u32_u24 v8, 1280, v7")
            a.I("v_sub_u32 v6, v6, v8")
            a.I("v_lshlrev_b32 v7, 5, v7")
            a.I("v_xor_b32 v9, v6, v7")
            a.I(f"v_add_u32 v{148+m}, v8, v9")
            a.I("v_xor_b32 v9, 128, v9")
            a.I(f"v_add_u32 v{153+m}, v8, v9")

    def roles_from_ticket(self, sfx=""):
        a = self.a
        a.I(f"v_mov_b32 v6, {L_FIN + 8}")
        a.I("ds_read_b32 v7, v6")
        a.I("s_waitcnt lgkmcnt(0)")
        a.I("v_readfirstlane_b32 s45, v7")
        a.I("s_cmp_lt_u32 s45, 40")
        a.I(f"s_cselect_b32 s{S_DT}, s45, -1")
        a.I(f"s_mov_b32 s{S_NB}, s45")
        a.I("s_cmp_lt_u32 s45, 48")
        a.I(f"s_cselect_b32 s{S_POST}, 2, 0")
        a.I(f"s_cbranch_scc1 L_ticket_done{sfx}")
        a.I("s_sub_u32 s45, s45, 48")
        a.I("s_cmp_lt_u32 s45, 80")
        a.I(f"s_cselect_b32 s{S_POST}, 1, 0")
        a.I("s_mul_i32 s46, s45, 6554")
        a.I("s_lshr_b32 s46, s46, 16")
        a.I(f"s_mov_b32 s{S_KG}, s46")
        a.I("s_mul_i32 s47, s46, 10")
        a.I(f"s_sub_u32 s{S_NB}, s45, s47")
        a.label(f"L_ticket_done{sfx}")

    def code_prefetch(self, wave):
        a = self.a
        a.I(f"s_cmp_eq_u32 s44, {wave}")
        a.I("s_cbranch_scc0 L_nopf")
        a.I("s_getpc_b64 s[46:47]")
        a.label("L_pc")
        a.I(f"s_sub_u32 s46, s46, (L_pc-{self.name})")
        a.I("s_subb_u32 s47, s47, 0")
        a.I("s_lshr_b32 s45, s2, 3")
        a.I("s_lshl_b32 s45, s45, 10")
        a.I("v_lshlrev_b32 v6, 4, v5")
        a.I("v_add_u32 v6, s45, v6")
        a.I("v_mov_b32 v7, 0")
        a.I("v_mov_b32 v9, s47")
        a.I("v_add_co_u32 v8, vcc, s46, v6")
        a.I("v_addc_co_u32 v9, vcc, v9, v7, vcc")
        a.I(f"s_mov_b32 s45, (L_end-{self.name}-12)")
        a.I("v_cmp_gt_u32 vcc, s45, v6")
        a.I("s_and_saveexec_b64 s[46:47], vcc")
        a.I("s_cbranch_execz L_pfskip")
        a.I("global_load_dwordx4 v[12:15], v[8:9], off")
        a.label("L_pfskip")
        a.I("s_mov_b64 exec, s[46:47]")
        a.label("L_nopf")

    def pretouch(self):
        a = self.a
        a.I("s_cmp_eq_u32 s44, 10")
        a.I("s_cbranch_scc0 L_nopt")
        a.I("v_lshlrev_b32 v6, 21, v5")
        bufs = [(24, 640*7680), (10, 640*12288), (30, WS_SIZE), (28, 256), (4, 5120), (22, 5120),
                (12, 6144*1280), (16, 640*3072), (18, 640*3072), (20, 1536*1280), (26, 5120)]
        if self.cfg.pretouch >= 2:
            pass
        for i, (p, size) in enumerate(bufs):
            self.srd(32, p, size)
            a.I(f"buffer_load_dword v{12+i}, v6, s[32:35], 0 offen")
        a.label("L_nopt")

    def resets(self):
        a = self.a
        a.I("v_mov_b32 v8, -1")
        a.I("v_mov_b32 v9, -1")
        a.I("v_mov_b32 v10, -1")
        a.I("v_mov_b32 v11, -1")
        a.I("v_lshlrev_b32 v6, 4, v5")
        a.I("s_lshl_b32 s45, s57, 5")
        a.I("s_add_u32 s45, s45, s58")
        a.I("s_lshl_b32 s45, s45, 1")
        a.I("s_add_u32 s45, s45, s59")
        a.I("s_mul_i32 s45, s45, 768")
        a.I(f"s_add_u32 s45, s45, {WS_O}")
        a.I("s_mov_b32 exec_lo, -1"); a.I("s_mov_b32 exec_hi, 0xffff")
        a.I("buffer_store_dwordx4 v[8:11], v6, s[40:43], s45 offen sc1")
        a.I("s_lshl_b32 s45, s2, 7")
        a.I(f"s_add_u32 s45, s45, {WS_ML}")
        a.I("s_mov_b64 exec, 0x11")
        a.I("buffer_store_dwordx4 v[8:11], v6, s[40:43], s45 offen sc1")
        a.I("s_mov_b64 exec, -1")
        a.I("v_lshrrev_b32 v7, 4, v5")
        a.I("v_and_b32 v12, 15, v5")
        a.I("v_lshlrev_b32 v12, 4, v12")

        def rows(cmp, rowbytes, base, bandbytes, band_reg, nchunk, lab, extra=None):
            a.I(cmp)
            a.I(f"s_cbranch_scc0 {lab}")
            a.I(f"v_mul_u32_u24 v13, {rowbytes}, v7")
            a.I("v_add_u32 v13, v13, v12")
            a.I(f"s_mul_i32 s45, s{band_reg}, {bandbytes}")
            if extra:
                a.I(f"s_mul_i32 s46, s{extra}, {4*rowbytes}")
                a.I("s_add_u32 s45, s45, s46")
            a.I(f"s_add_u32 s45, s45, {base}")
            m = (1 << nchunk) - 1
            m32 = m | (m << 16)
            a.I(f"s_mov_b32 exec_lo, 0x{m32:x}")
            a.I(f"s_mov_b32 exec_hi, 0x{m32:x}")
            a.I("buffer_store_dwordx4 v[8:11], v13, s[40:43], s45 offen sc1")
            a.I("s_mov_b64 exec, -1")
            a.label(lab)
        rows(f"s_cmp_eq_u32 s{S_PRE}, 2", 24576, WS_Q, 256, S_BAND, 16, 'L_rs2', extra=S_KH)
        rows(f"s_cmp_eq_u32 s{S_PRE}, 1", 7680, WS_MOD, 128, S_BAND, 8, 'L_rs1')
        rows(f"s_cmp_eq_u32 s{S_POST}, 1", 2560, WS_Y, 256, S_NB, 16, 'L_rs3', extra=S_KG)
        a.I(f"s_cmp_eq_u32 s{S_POST}, 2")
        a.I("s_cbranch_scc0 L_rs4")
        a.I("v_mul_u32_u24 v13, 12288, v7")
        a.I("v_add_u32 v13, v13, v12")
        a.I(f"s_lshl_b32 s45, s{S_NB}, 8")
        a.I(f"s_add_u32 s45, s45, {WS_PD}")
        for k in range(10):
            a.I("buffer_store_dwordx4 v[8:11], v13, s[40:43], s45 offen sc1")
            if k < 9:
                a.I(f"s_add_u32 s45, s45, {4*12288}")
        a.label("L_rs4")

    def resets_arrive(self):
        a = self.a
        a.I("s_waitcnt vmcnt(0)")
        self.stamp(16)
        a.I("s_mov_b64 exec, 1")
        a.I("v_mov_b32 v8, 1")
        a.I("s_and_b32 s45, s2, 1")
        a.I("s_lshl_b32 s45, s45, 7")
        a.I("v_mov_b32 v9, s45")
        a.I("global_atomic_add v9, v8, s[28:29] sc1")
        a.I(f"s_cmp_eq_u32 s{S_PRE}, 1")
        a.I("s_cbranch_scc0 L_noc1")
        a.I(f"s_cmp_lt_u32 s{S_BAND}, 20")
        a.I("s_cbranch_scc0 L_noc1")
        a.I("v_mov_b32 v9, 132")
        a.I("global_atomic_add v9, v8, s[28:29] sc1")
        a.label("L_noc1")
        a.I("s_mov_b64 exec, -1")

    def master(self):
        a = self.a
        a.I("s_cmp_eq_u32 s44, 1")
        a.I("s_cbranch_scc0 L_notmaster")
        a.I("s_cmp_eq_u32 s2, 0")
        a.I("s_cbranch_scc0 L_notmaster")
        def go(val):
            a.I("s_mov_b64 exec, -1")
            a.I("v_lshlrev_b32 v8, 7, v5")
            a.I(f"v_mov_b32 v9, {val}")
            for k in range(4):
                a.I(f"s_mov_b32 s45, {WS_ML + 64 + 8192*k}")
                a.I("buffer_store_dword v9, v8, s[40:43], s45 offen sc1")
        a.I("v_lshlrev_b32 v7, 7, v5")
        a.I("v_mov_b32 v6, 132")
        a.I("v_cmp_eq_u32 vcc, 2, v5")
        a.I("v_cndmask_b32 v7, v7, v6, vcc")
        a.I("s_mov_b32 s62, 0")
        a.I("s_mov_b32 s63, 0")
        a.label("L_master")
        a.I("s_mov_b64 exec, 7")
        a.I("global_load_dword v6, v7, s[28:29] sc1")
        a.I("s_add_u32 s62, s62, 1")
        a.I("s_waitcnt vmcnt(0)")
        a.I("v_readlane_b32 s45, v6, 0")
        a.I("v_readlane_b32 s46, v6, 1")
        a.I("v_readlane_b32 s47, v6, 2")
        a.I("s_min_u32 s45, s45, s46")
        a.I("s_cmp_ge_u32 s45, 128")
        a.I("s_cbranch_scc1 L_master_ok")
        a.I("s_cmp_lt_u32 s47, 20")
        a.I("s_cbranch_scc1 L_master_next")
        a.I("s_cmp_eq_u32 s63, 0")
        a.I("s_cbranch_scc0 L_master_next")
        a.I("s_mov_b32 s63, 1")
        go(1)
        self.stamp(17)
        a.label("L_master_next")
        a.I(f"s_cmp_lt_u32 s62, {SPIN_MAX}")
        a.I("s_cbranch_scc1 L_master")
        a.label("L_master_ok")
        go(2)
        a.I("s_mov_b64 exec, -1")
        self.stamp(18)
        a.label("L_notmaster")

    def poll_go(self, label, vz, vt, level):
        a = self.a
        a.I("s_lshl_b32 s45, s2, 7")
        a.I(f"s_add_u32 s46, s45, {WS_ML + 64}")
        a.I(f"v_mov_b32 v{vz}, 0")
        a.I("s_mov_b32 s62, 0")
        a.I("s_mov_b64 exec, 1")
        a.label(label)
        a.I(f"buffer_load_dword v{vt}, v{vz}, s[40:43], s46 offen sc1")
        a.I("s_add_u32 s62, s62, 1")
        a.I("s_waitcnt vmcnt(0)")
        a.I(f"v_readfirstlane_b32 s{S_LATE}, v{vt}")
        a.I(f"s_sub_u32 s45, s{S_LATE}, {level}")
        a.I(f"s_cmp_le_u32 s45, {2-level}")
        a.I(f"s_cbranch_scc1 {label}_ok")
        a.I(f"s_cmp_lt_u32 s62, {SPIN_MAX}")
        a.I(f"s_cbranch_scc1 {label}")
        a.label(f"{label}_ok")
        a.I("s_mov_b64 exec, -1")

    def stream(self):
        a = self.a
        cfg = self.cfg
        a.label("L_stream")
        a.I("s_cmp_eq_u32 s44, 11")
        a.I("s_cbranch_scc0 L_noprio")
        a.I("s_setprio 3")
        a.label("L_noprio")
        self.roles_rest()
        a.I("s_waitcnt lgkmcnt(0)")
        self.stamp(0)
        self.srd(40, 30, WS_SIZE)
        a.I("s_cmp_eq_u32 s44, 11")
        a.I("s_cbranch_scc0 L_noreset")
        self.resets()
        self.resets_arrive()
        a.I("s_setprio 0")
        a.label("L_noreset")
        a.fence(2)
        a.I("s_sub_u32 s44, s44, 4")
        a.I("s_lshl_b32 s45, s57, 5")
        a.I("s_add_u32 s45, s45, s58")
        a.I("s_mul_i32 s45, s45, 1572864")
        n0 = (128 + cfg.kx) * 6144
        a.I(f"s_mul_i32 s46, s59, {n0}")
        a.I("s_add_u32 s47, s45, s46")
        self.srd(32, 6, n0, off=47)
        self.srd(36, 8, n0, off=47)
        if cfg.kx:
            a.I("s_cmp_eq_u32 s59, 0")
            a.I(f"s_mov_b32 s45, {n0}")
            a.I(f"s_cselect_b32 s34, s45, {1572864 - n0}")
            a.I("s_mov_b32 s38, s34")
        a.I("s_branch L_stream_main")

    def stream_bulk(self):
        a = self.a
        cfg = self.cfg
        a.label("L_stream_main")
        a.fence(2)
        st.set_depth(cfg.D)

        def b0():
            a.I("s_barrier")
        S2 = dict(S); S2['b0_after'] = cfg.N1 - 1 if cfg.gate else -1
        S2['hook_before'] = {cfg.NB0: b0}
        issued = st.stream_prologue(a, cfg, S2)
        st.stream_main(a, cfg, S2, LDS, issued, self.stamp)
        a.I("s_add_u32 s44, s44, 4")
        a.I("s_branch L_post")

    def zero_flag(self):
        a = self.a
        a.I("s_lshl_b32 s45, s44, 2")
        a.I(f"s_add_u32 s45, s45, {L_HFLAG}")
        a.I("v_mov_b32 v6, s45")
        a.I("v_mov_b32 v7, 0")
        a.I("ds_write_b32 v6, v7")

    def u_layout(self, n, per):
        a = self.a
        magic = {80: 52429, 40: 104858}[per]
        a.I(f"s_mov_b32 s47, {magic}")
        for jj in range(n):
            a.I(f"v_add_u32 v6, {64*jj}, v5")
            a.I("v_mul_u32_u24 v7, s47, v6")
            a.I(f"v_lshrrev_b32 v{20+jj}, 22, v7")
            a.I(f"v_mul_u32_u24 v7, {per}, v{20+jj}")
            a.I("v_sub_u32 v6, v6, v7")
            a.I(f"v_lshlrev_b32 v{25+jj}, 2, v6")

    def helper_front(self):
        a = self.a
        a.label("L_helper")
        a.I("s_setprio 2")
        a.I("v_lshrrev_b32 v17, 4, v5")
        a.I("v_and_b32 v18, 15, v5")
        a.I(f"s_cmp_eq_u32 s{S_PRE}, 1")
        a.I("s_cbranch_scc0 L_hq0")
        self.dma_voff128(7680, 8, 9, 6, 7)
        a.I(f"s_mul_i32 s46, s44, {160*7680}")
        a.I(f"s_lshl_b32 s85, s{S_BAND}, 7")
        a.I("s_mul_i32 s47, s44, 20480")
        a.I(f"s_add_u32 s47, s47, {L_W}")
        a.I("v_mul_u32_u24 v16, 1280, v17")
        a.I("v_mad_u32_u24 v16, v18, 20, v16")
        a.I("s_mul_i32 s63, s44, 320")
        a.I("s_waitcnt lgkmcnt(0)")
        self.stamp(0)
        self.srd(36, 22, 5120)
        self.srd(32, 24, 640 * 7680, off=85)
        a.I("buffer_load_dwordx4 v[30:33], v16, s[36:39], s63 offen")
        a.I("buffer_load_dword v34, v16, s[36:39], s63 offen offset:16")
        self.dma_loop(32, 20, 8, 9, 47, 46, 8 * 7680, "L_mod_dma", cnt=85)
        self.stamp(3)
        a.I("s_branch L_modrest")
        a.label("L_hq0")
        a.I(f"s_cmp_eq_u32 s{S_PRE}, 2")
        a.I("s_cbranch_scc0 L_hnone")
        self.dma_voff128(12288, 8, 9, 6, 7)
        a.I(f"s_mul_i32 s46, s44, {80*12288}")
        a.I(f"s_mul_i32 s47, s{S_KH}, {320*12288}")
        a.I(f"s_lshl_b32 s45, s{S_BAND}, 7")
        a.I("s_add_u32 s85, s47, s45")
        a.I("s_mul_i32 s47, s44, 10240")
        a.I(f"s_add_u32 s47, s47, {L_W}")
        a.I("v_min_u32 v18, 9, v18")
        a.I("v_mul_u32_u24 v16, 1280, v17")
        a.I("v_lshl_add_u32 v16, v18, 4, v16")
        a.I(f"s_mul_i32 s63, s{S_KH}, 640")
        a.I("s_mul_i32 s45, s44, 160")
        a.I("s_add_u32 s63, s63, s45")
        a.I("v_lshlrev_b32 v19, 2, v5")
        a.I("s_mul_i32 s48, s44, 1280")
        a.I("s_waitcnt lgkmcnt(0)")
        self.stamp(0)
        self.srd(36, 4, 5120)
        self.srd(32, 10, 320 * 12288, off=85)
        for jj in range(5):
            a.I(f"buffer_load_dword v{35+jj}, v19, s[36:39], s48 offen offset:{256*jj}")
        a.I("buffer_load_dwordx4 v[28:31], v16, s[36:39], s63 offen")
        self.dma_loop(32, 10, 8, 9, 47, 46, 8 * 12288, "L_q_dma", cnt=85)
        self.stamp(3)
        a.I("s_branch L_qrest")

    def helper(self):
        a = self.a
        a.label("L_hnone")
        self.zero_flag()
        a.I("s_waitcnt lgkmcnt(0)")
        self.stamp(0)
        self.srd(40, 30, WS_SIZE)
        a.I("s_barrier")
        self.master()
        a.I("s_branch L_h_go")
        a.label("L_modrest")
        a.fence(2)
        self.zero_flag()
        self.srd(40, 30, WS_SIZE)
        a.I(f"s_mov_b32 s54, 0x{LOG2E:x}")
        a.I("s_mul_i32 s47, s44, 320")
        a.I(f"s_add_u32 s47, s47, {L_ACT}")
        a.I("v_mul_u32_u24 v40, 1344, v17")
        a.I("v_mad_u32_u24 v40, v18, 20, v40")
        a.I("v_add_u32 v40, s47, v40")
        a.I("s_waitcnt vmcnt(20)")
        for jj in range(5):
            lo, hi = 46, 47
            self.unpack(30 + jj, lo, hi)
            for r in (lo, hi):
                a.I(f"v_mul_f32 v48, s54, v{r}")
                a.I("v_exp_f32 v48, -v48")
                a.I("v_add_f32 v48, 1.0, v48")
                a.I("v_min_f32 v48, 0x7f7fffff, v48")
                a.I("v_rcp_f32 v49, v48")
                self.div_by(r, 48, 49, 50)
            a.I(f"v_cvt_pk_bf16_f32 v46, v46, v47")
            a.I(f"ds_write_b32 v40, v46 offset:{4*jj}")
        self.tr_addr128(10, 6, 7)
        a.I("s_lshl_b32 s45, s44, 5")
        a.I("v_xor_b32 v10, s45, v10")
        a.I(f"v_add_u32 v10, {L_W}, v10")
        a.I(f"v_add_u32 v11, {10*4096}, v10")
        self.act_addr(14, 1344, 6)
        a.I("s_waitcnt vmcnt(0) lgkmcnt(0)")
        self.stamp(7)
        a.I("s_barrier")
        self.mfma_chain2(10, 10, 11, 4096, 512, 14, 64, 68)
        for k in range(4):
            a.I(f"v_add_f32 v{64+k}, v{64+k}, v{68+k}")
        a.I("v_cvt_pk_bf16_f32 v64, v64, v65")
        a.I("v_cvt_pk_bf16_f32 v65, v66, v67")
        self.canon([64, 65], 44)
        a.I("v_and_b32 v6, 3, v5")
        a.I("v_mul_u32_u24 v6, 7680, v6")
        a.I("v_lshrrev_b32 v7, 4, v5")
        a.I("v_lshl_add_u32 v6, v7, 3, v6")
        a.I(f"s_lshl_b32 s45, s{S_BAND}, 7")
        a.I("s_lshl_b32 s47, s44, 5")
        a.I("s_add_u32 s47, s47, s45")
        a.I(f"s_mov_b32 exec_lo, 0x{MASK_N4_LO:x}")
        a.I(f"s_mov_b32 exec_hi, 0x{MASK_N4_LO:x}")
        a.I("buffer_store_dwordx2 v[64:65], v6, s[40:43], s47 offen sc1")
        a.I("s_mov_b64 exec, -1")
        self.stamp(12)
        a.label("L_h_go")
        a.fence(2)
        a.I("s_cmp_lg_u32 s44, 0")
        a.I("s_cbranch_scc1 L_go_skip")
        self.poll_go("L_go1", 6, 7, 1 if self.cfg.gate == 2 else 2)
        a.label("L_go_skip")
        if self.cfg.gate:
            a.I("s_barrier")
        a.I("s_branch L_h_q")
        a.label("L_qrest")
        a.fence(2)
        self.zero_flag()
        self.srd(40, 30, WS_SIZE)
        a.I("s_waitcnt vmcnt(11)")
        for jj in range(5):
            self.unpack(35 + jj, 40 + 2 * jj, 41 + 2 * jj)
        a.I("v_add_f32 v6, v40, v41")
        for k in range(42, 50):
            a.I(f"v_add_f32 v6, v6, v{k}")
        self.wave_sum_bcast(6, 46)
        a.I("v_mov_b32 v6, 0x3acccccd")
        a.I("v_mul_f32 v50, s46, v6")
        a.I("v_mov_b32 v7, 0")
        for k in range(40, 50):
            a.I(f"v_sub_f32 v51, v{k}, v50")
            a.I("v_fmac_f32 v7, v51, v51")
        self.wave_sum_bcast(7, 46)
        a.I("v_mul_f32 v52, s46, v6")
        self.ln_denom(52, 53)
        a.I("v_cvt_pk_bf16_f32 v50, v50, v50")
        a.I("v_lshlrev_b32 v50, 16, v50")
        a.I("s_lshl_b32 s45, s44, 3")
        a.I(f"s_add_u32 s45, s45, {L_LNST}")
        a.I("v_mov_b32 v6, s45")
        a.I("ds_write_b32 v6, v50")
        a.I("ds_write_b32 v6, v52 offset:4")
        a.I("s_waitcnt vmcnt(0) lgkmcnt(0)")
        self.stamp(7)
        a.I("s_barrier")
        a.I("v_lshlrev_b32 v6, 3, v17")
        a.I(f"ds_read_b64 v[56:57], v6 offset:{L_LNST}")
        xr = list(range(60, 68))
        for k in range(4):
            self.unpack(28 + k, 60 + 2 * k, 61 + 2 * k)
        a.I("v_mul_u32_u24 v40, 7680, v17")
        a.I("v_lshl_add_u32 v40, v18, 4, v40")
        a.I("s_mul_i32 s47, s44, 160")
        a.I(f"s_add_u32 s47, s47, {L_ACT}")
        a.I("v_mul_u32_u24 v41, 704, v17")
        a.I("v_lshl_add_u32 v41, v18, 4, v41")
        a.I("v_add_u32 v41, s47, v41")
        a.I("s_waitcnt lgkmcnt(0)")
        for r in xr:
            a.I(f"v_sub_f32 v{r}, v{r}, v56")
        self.bf16_round(xr, 58)
        a.I("v_rcp_f32 v58, v57")
        for r in xr:
            self.div_by(r, 57, 58, 59)
        self.bf16_round(xr, 58)
        self.tr_addr128(10, 6, 7)
        a.I("s_lshl_b32 s45, s44, 5")
        a.I("v_xor_b32 v10, s45, v10")
        a.I(f"v_add_u32 v10, {L_W}, v10")
        self.act_addr(14, 704, 6)
        a.I("v_and_b32 v6, 15, v5")
        a.I("v_cmp_gt_u32 s[50:51], 10, v6")
        self.stamp(16)
        self.poll_go("L_go2", 6, 7, 1)
        if self.cfg.gate == 2:
            a.I("s_barrier")
        self.stamp(18)
        a.I(f"s_add_u32 s46, s63, {WS_MOD}")
        a.I(f"s_add_u32 s47, s63, {WS_MOD + 1280}")
        loads = ["buffer_load_dwordx4 v[28:31], v40, s[40:43], s46 offen sc1",
                 "buffer_load_dwordx4 v[32:35], v40, s[40:43], s47 offen sc1"]
        self.poll(loads, list(range(28, 36)), "L_pmod", pre=6)
        self.stamp(14)
        ca = list(range(44, 52))
        for k in range(4):
            self.unpack(32 + k, 44 + 2 * k, 45 + 2 * k)
        for r in ca:
            a.I(f"v_add_f32 v{r}, 1.0, v{r}")
        self.bf16_round(ca, 6)
        for k in range(8):
            a.I(f"v_mul_f32 v{60+k}, v{60+k}, v{44+k}")
        self.bf16_round(xr, 6)
        for k in range(4):
            self.unpack(28 + k, 44 + 2 * k, 45 + 2 * k)
        for k in range(8):
            a.I(f"v_add_f32 v{60+k}, v{60+k}, v{44+k}")
        for k in range(4):
            a.I(f"v_cvt_pk_bf16_f32 v{44+k}, v{60+2*k}, v{61+2*k}")
        a.I("s_mov_b64 exec, s[50:51]")
        a.I("ds_write_b128 v41, v[44:47]")
        a.I("s_mov_b64 exec, -1")
        if self.cfg.gate == 1:
            a.I("s_waitcnt lgkmcnt(0)")
            a.I("s_barrier")
        else:
            self.hsync(2, "L_hs2", 6, 16)
        self.stamp(17)
        self.mfma_chain(10, 10, 4096, 512, 14, 64)
        self.canon([64, 65, 66, 67], 44)
        a.I("v_and_b32 v6, 3, v5")
        a.I("v_mul_u32_u24 v6, 24576, v6")
        a.I("v_lshrrev_b32 v7, 4, v5")
        a.I("v_lshl_add_u32 v6, v7, 4, v6")
        a.I(f"s_mul_i32 s45, s{S_KH}, {4*24576}")
        a.I(f"s_lshl_b32 s47, s{S_BAND}, 8")
        a.I("s_add_u32 s47, s47, s45")
        a.I("s_lshl_b32 s45, s44, 6")
        a.I("s_add_u32 s47, s47, s45")
        a.I(f"s_add_u32 s47, s47, {WS_Q}")
        a.I(f"s_mov_b32 exec_lo, 0x{MASK_N4_LO:x}")
        a.I(f"s_mov_b32 exec_hi, 0x{MASK_N4_LO:x}")
        a.I("buffer_store_dwordx4 v[64:67], v6, s[40:43], s47 offen sc1")
        a.I("s_mov_b64 exec, -1")
        self.stamp(12)
        a.label("L_h_q")
        a.fence(2)
        self.roles_rest()
        self.srd(40, 30, WS_SIZE)
        a.I("s_cmp_lg_u32 s44, 0")
        a.I("s_cbranch_scc1 L_hb1")
        a.I(f"s_cmp_eq_u32 s{S_LATE}, 2")
        a.I("s_cbranch_scc1 L_go3_skip")
        self.poll_go("L_go3", 6, 7, 2)
        a.label("L_go3_skip")
        self.stamp(19)
        a.I("v_and_b32 v6, 31, v5")
        a.I("v_mul_u32_u24 v11, 12, v6")
        a.I("v_lshlrev_b32 v6, 1, v11")
        a.I("s_mul_i32 s45, s57, 24576")
        a.I("s_mul_i32 s46, s58, 768")
        a.I("s_add_u32 s46, s45, s46")
        a.I(f"s_add_u32 s46, s46, {WS_Q}")
        a.I(f"s_add_u32 s47, s46, {4*24576}")
        self.poll(["buffer_load_dwordx3 v[12:14], v6, s[40:43], s46 offen sc1",
                   "buffer_load_dwordx3 v[16:18], v6, s[40:43], s46 offen offset:12 sc1",
                   "buffer_load_dwordx3 v[20:22], v6, s[40:43], s47 offen sc1",
                   "buffer_load_dwordx3 v[24:26], v6, s[40:43], s47 offen offset:12 sc1"],
                  [12, 13, 14, 16, 17, 18, 20, 21, 22, 24, 25, 26], "L_pq", pre=7)
        for k in range(3):
            a.I(f"v_add_f32 v{12+k}, v{12+k}, v{20+k}")
            a.I(f"v_add_f32 v{16+k}, v{16+k}, v{24+k}")
        a.I("v_cvt_pk_bf16_f32 v8, v12, v13")
        a.I("v_cvt_pk_bf16_f32 v9, v14, v16")
        a.I("v_cvt_pk_bf16_f32 v10, v17, v18")
        a.I(f"ds_write_b32 v11, v8 offset:{L_QV}")
        a.I(f"ds_write_b32 v11, v9 offset:{L_QV+4}")
        a.I(f"ds_write_b32 v11, v10 offset:{L_QV+8}")
        a.I("s_waitcnt lgkmcnt(0)")
        a.label("L_hb1")
        self.stamp(1)
        a.I("s_barrier")
        self.stamp(2)
        if self.cfg.hop:
            a.I("s_cmp_eq_u32 s44, 0")
            a.I("s_cbranch_scc1 L_late_done")
            a.I("s_mov_b64 exec, 0")
            a.I("s_cmp_eq_u32 s44, 1")
            a.I("s_cbranch_scc1 L_hopA_0")
            a.I("s_cmp_eq_u32 s44, 2")
            a.I("s_cbranch_scc1 L_hopB_0")
            a.I("s_branch L_hopC_0")
            a.label("L_warm_ret")
            a.I("s_mov_b64 exec, -1")
            self.stamp(22)
        if self.cfg.pf == 2:
            a.label("L_late_pf")
            self.prefetch_weights()
        a.label("L_late_done")
        a.fence(2)
        a.I("s_barrier")
        self.stamp(4)
        a.I("s_cmp_lg_u32 s44, 0")
        a.I("s_cbranch_scc1 L_hb3")
        self.ml_exchange()
        a.label("L_hb3")
        self.stamp(5)
        a.I("s_barrier")
        self.stamp(6)
        if self.cfg.early_w != 1:
            a.I("s_cmp_lg_u32 s44, 0")
            a.I("s_cbranch_scc1 L_tk_done")
            a.I(f"v_mov_b32 v6, {L_FIN}")
            a.I("s_mov_b32 s62, 0")
            a.label("L_tk_wait")
            a.I("ds_read_b32 v7, v6 offset:12")
            a.I("s_add_u32 s62, s62, 1")
            a.I("s_waitcnt lgkmcnt(0)")
            a.I("v_readfirstlane_b32 s45, v7")
            a.I("s_cmp_eq_u32 s45, 1")
            a.I("s_cbranch_scc1 L_tk_go")
            a.I(f"s_cmp_lt_u32 s62, {SPIN_MAX*16}")
            a.I("s_cbranch_scc1 L_tk_wait")
            a.label("L_tk_go")
            a.I("s_mov_b64 exec, 1")
            a.I("v_mov_b32 v7, 8")
            a.I("v_mov_b32 v8, 1")
            a.I("global_atomic_add v9, v7, v8, s[28:29] sc0 sc1")
            a.I("s_waitcnt vmcnt(0)")
            a.I("ds_write_b32 v6, v9 offset:8")
            a.I("s_waitcnt lgkmcnt(0)")
            a.I("s_mov_b64 exec, -1")
            a.label("L_tk_done")
            a.fence(2)
        if self.cfg.pf == 1:
            self.prefetch_weights()
        if self.cfg.early_w:
            a.I("s_cmp_eq_u32 s44, 0")
            a.I("s_cbranch_scc1 L_vw_done")
            if self.cfg.early_w == 2:
                a.I("s_setprio 0")
                a.I(f"v_mov_b32 v6, {L_FIN}")
                a.I("s_mov_b32 s62, 0")
                a.label("L_tkw")
                a.I("ds_read_b32 v7, v6 offset:8")
                a.I("ds_read_b32 v8, v6 offset:16")
                a.I("s_add_u32 s62, s62, 1")
                a.I("s_waitcnt lgkmcnt(0)")
                a.I("v_readfirstlane_b32 s45, v7")
                a.I("v_readfirstlane_b32 s46, v8")
                a.I("s_cmp_eq_u32 s45, -1")
                a.I("s_cselect_b32 s46, 0, s46")
                a.I("s_cmp_eq_u32 s46, 1")
                a.I("s_cbranch_scc1 L_tkw_ok")
                a.I(f"s_cmp_lt_u32 s62, {SPIN_MAX*16}")
                a.I("s_cbranch_scc1 L_tkw")
                a.label("L_tkw_ok")
            self.roles_from_ticket("v")
            self.v_weights()
            a.label("L_vw_done")
            a.fence(2)
        a.I("s_barrier")
        self.stamp(8)

    def dma_loop(self, srd, n, vE, vO, lds_reg, soff_reg, step, label, cnt=63, window=0, pol=None):
        a = self.a
        a.I(f"s_mov_b32 s{cnt}, {n // 2}")
        a.label(label)
        for v in (vE, vO):
            if window:
                a.I(f"s_waitcnt vmcnt({window - 1})")
            a.I(f"s_mov_b32 m0, s{lds_reg}")
            a.I(f"s_add_u32 s{lds_reg}, s{lds_reg}, 1024")
            a.I(f"buffer_load_dwordx4 v{v}, s[{srd}:{srd+3}], s{soff_reg} offen {self.cfg.ntW if pol is None else pol} lds")
            a.I(f"s_add_u32 s{soff_reg}, s{soff_reg}, {step}")
        a.I(f"s_sub_u32 s{cnt}, s{cnt}, 1")
        a.I(f"s_cmp_lg_u32 s{cnt}, 0")
        a.I(f"s_cbranch_scc1 {label}")

    def mfma_chain2(self, nks, vA0, vA1, stepA, half_off, vB, d0, d1):
        a = self.a
        DEPTH = 2

        def issue(ks):
            b = 80 + 16 * (ks % DEPTH)
            a.I(f"ds_read_b64_tr_b16 v[{b}:{b+1}], v{vA0} offset:{stepA*ks}")
            a.I(f"ds_read_b64_tr_b16 v[{b+2}:{b+3}], v{vA0} offset:{stepA*ks + half_off}")
            a.I(f"ds_read_b128 v[{b+4}:{b+7}], v{vB} offset:{64*ks}")
            a.I(f"ds_read_b64_tr_b16 v[{b+8}:{b+9}], v{vA1} offset:{stepA*ks}")
            a.I(f"ds_read_b64_tr_b16 v[{b+10}:{b+11}], v{vA1} offset:{stepA*ks + half_off}")
            a.I(f"ds_read_b128 v[{b+12}:{b+15}], v{vB} offset:{64*(nks+ks)}")
        for ks in range(DEPTH):
            issue(ks)
        for ks in range(nks):
            left = min(nks - 1 - ks, DEPTH - 1)
            a.I(f"s_waitcnt lgkmcnt({6*left})")
            b = 80 + 16 * (ks % DEPTH)
            c0 = "0" if ks == 0 else f"v[{d0}:{d0+3}]"
            c1 = "0" if ks == 0 else f"v[{d1}:{d1+3}]"
            a.I(f"v_mfma_f32_16x16x32_bf16 v[{d0}:{d0+3}], v[{b}:{b+3}], v[{b+4}:{b+7}], {c0}")
            a.I(f"v_mfma_f32_16x16x32_bf16 v[{d1}:{d1+3}], v[{b+8}:{b+11}], v[{b+12}:{b+15}], {c1}")
            if ks + DEPTH < nks:
                issue(ks + DEPTH)

    def mfma_chain(self, nks, vA, stepA, half_off, vB, dreg):
        a = self.a
        DEPTH = 4

        def issue(ks):
            b = 80 + 8 * (ks % DEPTH)
            a.I(f"ds_read_b64_tr_b16 v[{b}:{b+1}], v{vA} offset:{stepA*ks}")
            a.I(f"ds_read_b64_tr_b16 v[{b+2}:{b+3}], v{vA} offset:{stepA*ks + half_off}")
            a.I(f"ds_read_b128 v[{b+4}:{b+7}], v{vB} offset:{64*ks}")
        for ks in range(min(DEPTH, nks)):
            issue(ks)
        for ks in range(nks):
            left = min(nks - 1 - ks, DEPTH - 1)
            a.I(f"s_waitcnt lgkmcnt({3*left})")
            b = 80 + 8 * (ks % DEPTH)
            c = "0" if ks == 0 else f"v[{dreg}:{dreg+3}]"
            a.I(f"v_mfma_f32_16x16x32_bf16 v[{dreg}:{dreg+3}], v[{b}:{b+3}], v[{b+4}:{b+7}], {c}")
            if ks + DEPTH < nks:
                issue(ks + DEPTH)

    def dma_band128(self, srd, rowstride, ninstr, vE, vO, lds_base_sreg, soff_reg, tag):
        a = self.a
        for i in range(ninstr):
            a.I(f"s_mov_b32 m0, s{lds_base_sreg}")
            v = vO if i & 1 else vE
            a.I(f"s_add_u32 s{lds_base_sreg}, s{lds_base_sreg}, 1024")
            a.I(f"buffer_load_dwordx4 v{v}, s[{srd}:{srd+3}], s{soff_reg} offen {self.cfg.ntW} lds")
            if i + 1 < ninstr:
                a.I(f"s_add_u32 s{soff_reg}, s{soff_reg}, {8*rowstride}")

    def dma_voff128(self, rowstride, vE, vO, t0, t1):
        a = self.a
        a.I(f"v_lshrrev_b32 v{t0}, 3, v5")
        a.I(f"v_bfe_u32 v{t1}, v5, 4, 1")
        a.I(f"v_lshlrev_b32 v{t1}, 5, v{t1}")
        a.I(f"v_and_b32 v{vE}, 7, v5")
        a.I(f"v_lshlrev_b32 v{vE}, 4, v{vE}")
        a.I(f"v_xor_b32 v{vE}, v{vE}, v{t1}")
        a.I(f"v_xor_b32 v{vO}, 64, v{vE}")
        a.I(f"s_mov_b32 s45, {rowstride}")
        a.I(f"v_mul_lo_u32 v{t0}, s45, v{t0}")
        a.I(f"v_add_u32 v{vE}, v{vE}, v{t0}")
        a.I(f"v_add_u32 v{vO}, v{vO}, v{t0}")

    def tr_addr128(self, vdst, t0, t1):
        a = self.a
        a.I(f"v_lshrrev_b32 v{t0}, 4, v5")
        a.I(f"v_bfe_u32 v{t1}, v5, 2, 2")
        a.I(f"v_lshl_add_u32 v{vdst}, v{t0}, 3, v{t1}")
        a.I(f"v_lshlrev_b32 v{vdst}, 7, v{vdst}")
        a.I(f"v_and_b32 v{t0}, 1, v{t0}")
        a.I(f"v_lshlrev_b32 v{t0}, 6, v{t0}")
        a.I(f"v_bfe_u32 v{t1}, v5, 3, 1")
        a.I(f"v_lshlrev_b32 v{t1}, 5, v{t1}")
        a.I(f"v_or3_b32 v{vdst}, v{vdst}, v{t0}, v{t1}")
        a.I(f"v_and_b32 v{t0}, 3, v5")
        a.I(f"v_lshl_add_u32 v{vdst}, v{t0}, 3, v{vdst}")

    def act_addr(self, vdst, stride, t0):
        a = self.a
        a.I(f"v_and_b32 v{t0}, 3, v5")
        a.I(f"v_mul_u32_u24 v{vdst}, {stride}, v{t0}")
        a.I(f"v_lshrrev_b32 v{t0}, 4, v5")
        a.I(f"v_lshl_add_u32 v{vdst}, v{t0}, 4, v{vdst}")

    def ml_exchange(self):
        a = self.a
        a.I("v_and_b32 v6, 7, v5")
        a.I("v_lshlrev_b32 v6, 3, v6")
        a.I(f"ds_read_b64 v[8:9], v6 offset:{L_STATS}")
        a.I(f"s_mov_b32 s54, 0x{LOG2E:x}")
        a.I("s_waitcnt lgkmcnt(0)")
        a.I("v_mov_b32 v10, v8")
        a.I("v_max_f32_dpp v10, v10, v10 quad_perm:[1,0,3,2] row_mask:0xf bank_mask:0xf")
        a.I("v_max_f32_dpp v10, v10, v10 quad_perm:[2,3,0,1] row_mask:0xf bank_mask:0xf")
        a.I("v_max_f32_dpp v10, v10, v10 row_half_mirror row_mask:0xf bank_mask:0xf")
        a.I("v_sub_f32 v11, v8, v10")
        a.I("v_mul_f32 v11, s54, v11")
        a.I("v_exp_f32 v11, v11")
        a.I("v_mul_f32 v11, v11, v9")
        a.I("v_add_f32_dpp v11, v11, v11 quad_perm:[1,0,3,2] row_mask:0xf bank_mask:0xf")
        a.I("v_add_f32_dpp v11, v11, v11 quad_perm:[2,3,0,1] row_mask:0xf bank_mask:0xf")
        a.I("v_add_f32_dpp v11, v11, v11 row_half_mirror row_mask:0xf bank_mask:0xf")
        self.canon([10, 11], 12)
        a.I("s_lshl_b32 s45, s2, 7")
        a.I(f"s_add_u32 s45, s45, {WS_ML}")
        a.I("v_mov_b32 v6, 0")
        a.I("s_mov_b64 exec, 1")
        a.I("buffer_store_dwordx2 v[10:11], v6, s[40:43], s45 offen sc1")
        if self.cfg.early_w == 1:
            a.I("v_mov_b32 v7, 8")
            a.I("v_mov_b32 v18, 1")
            a.I("global_atomic_add v19, v7, v18, s[28:29] sc0 sc1")
        a.I("s_mov_b64 exec, -1")
        a.I(f"s_xor_b32 s46, s2, {self.cfg.xp or 32}")
        a.I("s_lshl_b32 s46, s46, 7")
        a.I(f"s_add_u32 s46, s46, {WS_ML}")
        self.poll(["buffer_load_dwordx2 v[12:13], v6, s[40:43], s46 offen sc1"], [12, 13], "L_pml", pre=7)
        a.I("v_max_f32 v14, v10, v12")
        a.I("v_sub_f32 v15, v10, v14")
        a.I("v_sub_f32 v16, v12, v14")
        a.I("v_mul_f32 v15, s54, v15")
        a.I("v_mul_f32 v16, s54, v16")
        a.I("v_exp_f32 v15, v15")
        a.I("v_exp_f32 v16, v16")
        a.I("v_mul_f32 v15, v15, v11")
        a.I("v_mul_f32 v16, v16, v13")
        a.I("v_add_f32 v15, v15, v16")
        a.I("v_rcp_f32 v16, v15")
        a.I("v_fma_f32 v17, -v15, v16, 1.0")
        a.I("v_fma_f32 v16, v17, v16, v16")
        a.I(f"v_mov_b32 v6, {L_FIN}")
        a.I("ds_write_b32 v6, v14")
        a.I("ds_write_b32 v6, v16 offset:4")
        if self.cfg.early_w != 1:
            a.I("v_mov_b32 v17, 0")
            a.I("ds_write_b32 v6, v17 offset:12")
            a.I("ds_write_b32 v6, v17 offset:16")
            a.I("v_mov_b32 v17, -1")
            a.I("ds_write_b32 v6, v17 offset:8")
        if self.cfg.early_w == 1:
            a.I("s_mov_b64 exec, 1")
            a.I("ds_write_b32 v6, v19 offset:8")
            a.I("s_mov_b64 exec, -1")
        a.I("s_waitcnt lgkmcnt(0)")

    def post(self):
        a = self.a
        a.label("L_post")
        a.hops_begin("L_hopA", self.cfg.hop)
        a.fence(4)
        a.I("s_setprio 0")
        a.I("v_and_b32 v5, 63, v0")
        a.I("s_cmp_lg_u32 s44, 0")
        a.I("s_cbranch_scc1 L_o_done")
        a.I("v_lshlrev_b32 v6, 4, v5")
        a.I("s_mov_b32 exec_lo, -1"); a.I("s_mov_b32 exec_hi, 0xffff")
        for w in range(8):
            a.I(f"ds_read_b128 v[{8+4*w}:{11+4*w}], v6 offset:{L_OPART+768*w}")
        for w in range(1, 8):
            a.I(f"s_waitcnt lgkmcnt({7-w})")
            for k in range(4):
                a.I(f"v_add_f32 v{8+k}, v{8+k}, v{8+4*w+k}")
        self.canon([8, 9, 10, 11], 12)
        a.I("s_lshl_b32 s45, s57, 5")
        a.I("s_add_u32 s45, s45, s58")
        a.I("s_lshl_b32 s45, s45, 1")
        a.I("s_add_u32 s45, s45, s59")
        a.I("s_mul_i32 s45, s45, 768")
        a.I(f"s_add_u32 s45, s45, {WS_O}")
        a.I("buffer_store_dwordx4 v[8:11], v6, s[40:43], s45 offen sc1")
        a.I("s_mov_b64 exec, -1")
        a.label("L_o_done")
        a.fence(2)
        self.roles_from_ticket()
        a.I(f"s_cmp_eq_u32 s{S_POST}, 0")
        a.I("s_cbranch_scc1 L_tail")
        if self.cfg.obar:
            a.I("s_barrier")
        a.I(f"s_cmp_eq_u32 s{S_POST}, 1")
        a.I("s_cbranch_scc0 L_post23")
        self.post_wo()
        a.I("s_branch L_tail")
        a.hops_end("L_warm_ret")
        a.label("L_post23")
        a.hops_begin("L_hopB", self.cfg.hop)
        a.fence(2)
        self.post_gu()
        a.I(f"s_cmp_lt_u32 s{S_DT}, 40")
        a.I("s_cbranch_scc0 L_tail")
        a.hops_end("L_warm_ret")
        a.hops_begin("L_hopC", self.cfg.hop)
        self.post_final()
        a.hops_end("L_warm_ret")

    def red_lane_addr(self, vdst, t):
        a = self.a
        a.I(f"v_lshrrev_b32 v{vdst}, 4, v5")
        a.I(f"v_and_b32 v{t}, 3, v5")
        a.I(f"v_lshl_add_u32 v{vdst}, v{vdst}, 2, v{t}")
        a.I(f"v_lshlrev_b32 v{vdst}, 4, v{vdst}")

    def write_red(self, dreg, vaddr):
        a = self.a
        a.I("s_lshl_b32 s45, s44, 8")
        a.I(f"s_add_u32 s45, s45, {L_RED}")
        a.I(f"v_add_u32 v{vaddr}, s45, v{vaddr}")
        a.I(f"s_mov_b32 exec_lo, 0x{MASK_N4_LO:x}")
        a.I(f"s_mov_b32 exec_hi, 0x{MASK_N4_LO:x}")
        a.I(f"ds_write_b128 v{vaddr}, v[{dreg}:{dreg+3}]")
        a.I("s_mov_b64 exec, -1")
        a.I("s_waitcnt lgkmcnt(0)")
        a.I("s_barrier")

    def mfma_run(self, nks, vA, offA, stepA, half_off, vB, dreg, first_reg=40):
        a = self.a
        for ks in range(nks):
            b = first_reg + 8 * ks
            a.I(f"ds_read_b64_tr_b16 v[{b}:{b+1}], v{vA} offset:{offA + stepA*ks}")
            a.I(f"ds_read_b64_tr_b16 v[{b+2}:{b+3}], v{vA} offset:{offA + stepA*ks + half_off}")
            a.I(f"ds_read_b128 v[{b+4}:{b+7}], v{vB} offset:{64*ks}")
        for ks in range(nks):
            b = first_reg + 8 * ks
            a.I(f"s_waitcnt lgkmcnt({min(15, 3*(nks-1-ks))})")
            c = "0" if ks == 0 else f"v[{dreg}:{dreg+3}]"
            a.I(f"v_mfma_f32_16x16x32_bf16 v[{dreg}:{dreg+3}], v[{b}:{b+3}], v[{b+4}:{b+7}], {c}")

    def mfma_preread(self, n, vA, stepA, half_off, first):
        a = self.a
        for ks in range(n):
            b = first + 4 * ks
            a.I(f"ds_read_b64_tr_b16 v[{b}:{b+1}], v{vA} offset:{stepA*ks}")
            a.I(f"ds_read_b64_tr_b16 v[{b+2}:{b+3}], v{vA} offset:{stepA*ks + half_off}")

    def mfma_with_b(self, n, firstA, vB, firstB, dreg):
        a = self.a
        for ks in range(n):
            b = firstB + 4 * ks
            a.I(f"ds_read_b128 v[{b}:{b+3}], v{vB} offset:{64*ks}")
        for ks in range(n):
            a.I(f"s_waitcnt lgkmcnt({n-1-ks})")
            c = "0" if ks == 0 else f"v[{dreg}:{dreg+3}]"
            a.I(f"v_mfma_f32_16x16x32_bf16 v[{dreg}:{dreg+3}], v[{firstA+4*ks}:{firstA+4*ks+3}], v[{firstB+4*ks}:{firstB+4*ks+3}], {c}")

    def post_wo(self):
        a = self.a
        if not self.cfg.early_w:
            a.I(f"s_mul_i32 s45, s{S_KG}, {768*1280}")
            a.I(f"s_lshl_b32 s46, s{S_NB}, 7")
            a.I("s_add_u32 s47, s45, s46")
            self.srd(32, 12, 768 * 1280, off=47)
            self.dma_voff128(1280, 8, 9, 6, 7)
            a.I(f"s_mul_i32 s46, s44, {64*1280}")
            a.I("s_lshl_b32 s47, s44, 13")
            a.I(f"s_add_u32 s47, s47, {L_W}")
            self.dma_loop(32, 8, 8, 9, 47, 46, 8 * 1280, "L_wo_dma")
        a.I("s_mul_i32 s45, s44, 21846")
        a.I("s_lshr_b32 s45, s45, 16")
        a.I("s_mul_i32 s46, s45, 3")
        a.I("s_sub_u32 s46, s44, s46")
        a.I("s_lshl_b32 s46, s46, 6")
        a.I("v_add_u32 v10, s46, v5")
        a.I("v_mul_u32_u24 v11, 1366, v10")
        a.I("v_lshrrev_b32 v11, 16, v11")
        a.I("v_mul_u32_u24 v12, 48, v11")
        a.I("v_sub_u32 v12, v10, v12")
        a.I("v_mul_u32_u24 v11, 1536, v11")
        a.I("v_lshl_add_u32 v11, v12, 4, v11")
        a.I("s_lshl_b32 s63, s45, 5")
        a.I(f"s_lshl_b32 s46, s{S_KG}, 2")
        a.I("s_add_u32 s63, s63, s46")
        a.I("s_mul_i32 s63, s63, 1536")
        a.I(f"s_add_u32 s63, s63, {WS_O}")
        a.I("s_mul_i32 s46, s45, 1600")
        a.I(f"s_add_u32 s46, s46, {L_ACT}")
        a.I("v_lshl_add_u32 v13, v10, 3, s46")
        self.tr_addr128(14, 6, 7)
        a.I("s_and_b32 s45, s44, 3")
        a.I("s_lshl_b32 s45, s45, 5")
        a.I("v_xor_b32 v14, s45, v14")
        a.I("s_lshr_b32 s45, s44, 2")
        a.I("s_lshl_b32 s46, s45, 15")
        a.I(f"s_add_u32 s46, s46, {L_W}")
        a.I("v_add_u32 v14, s46, v14")
        self.act_addr(15, 1600, 6)
        a.I("s_lshl_b32 s46, s45, 9")
        a.I(f"s_add_u32 s46, s46, {L_ACT}")
        a.I("v_add_u32 v15, s46, v15")
        self.red_lane_addr(16, 6)
        a.I("v_and_b32 v17, 3, v5")
        a.I("v_mul_u32_u24 v17, 2560, v17")
        a.I("v_lshrrev_b32 v7, 2, v5")
        a.I("v_lshl_add_u32 v17, v7, 4, v17")
        a.I("s_waitcnt vmcnt(0)")
        a.I("s_barrier")
        self.stamp(9)
        self.mfma_preread(8, 14, 4096, 512, 40)
        self.poll(["buffer_load_dwordx4 v[20:23], v11, s[40:43], s63 offen sc1",
                   "buffer_load_dwordx4 v[24:27], v11, s[40:43], s63 offen offset:768 sc1"],
                  list(range(20, 28)), "L_po", pre=6)
        self.stamp(10)
        for k in range(4):
            a.I(f"v_add_f32 v{20+k}, v{20+k}, v{24+k}")
        a.I("v_cvt_pk_bf16_f32 v20, v20, v21")
        a.I("v_cvt_pk_bf16_f32 v21, v22, v23")
        a.I("ds_write_b64 v13, v[20:21]")
        a.I("s_waitcnt lgkmcnt(0)")
        a.I("s_barrier")
        self.mfma_with_b(8, 40, 15, 72, 20)
        self.write_red(20, 16)
        a.I("s_cmp_lg_u32 s44, 0")
        a.I("s_cbranch_scc1 L_wo_done")
        a.I("v_lshlrev_b32 v6, 4, v5")
        for kt in range(3):
            a.I(f"ds_read_b128 v[{20+4*kt}:{23+4*kt}], v6 offset:{L_RED + 1024*kt}")
        a.I(f"s_mul_i32 s45, s{S_KG}, 10240")
        a.I(f"s_lshl_b32 s46, s{S_NB}, 8")
        a.I("s_add_u32 s45, s45, s46")
        a.I(f"s_add_u32 s45, s45, {WS_Y}")
        a.I("s_waitcnt lgkmcnt(0)")
        for k in range(4):
            a.I(f"v_add_f32 v{20+k}, v{20+k}, v{24+k}")
        for k in range(4):
            a.I(f"v_add_f32 v{20+k}, v{20+k}, v{28+k}")
        self.canon([20, 21, 22, 23], 12)
        a.I("buffer_store_dwordx4 v[20:23], v17, s[40:43], s45 offen sc1")
        a.label("L_wo_done")
        self.stamp(11)

    def dma_band64(self, srd, rowstride, ninstr, v, lds_reg, soff_reg):
        a = self.a
        for i in range(ninstr):
            a.I(f"s_mov_b32 m0, s{lds_reg}")
            a.I(f"s_add_u32 s{lds_reg}, s{lds_reg}, 1024")
            a.I(f"buffer_load_dwordx4 v{v}, s[{srd}:{srd+3}], s{soff_reg} offen {self.cfg.ntW} lds")
            if i + 1 < ninstr:
                a.I(f"s_add_u32 s{soff_reg}, s{soff_reg}, {16*rowstride}")

    def dma_voff64(self, rowstride, v, t0, t1):
        a = self.a
        a.I(f"v_lshrrev_b32 v{t0}, 2, v5")
        a.I(f"v_bfe_u32 v{t1}, v5, 5, 1")
        a.I(f"v_lshlrev_b32 v{t1}, 5, v{t1}")
        a.I(f"v_and_b32 v{v}, 3, v5")
        a.I(f"v_lshlrev_b32 v{v}, 4, v{v}")
        a.I(f"v_xor_b32 v{v}, v{v}, v{t1}")
        a.I(f"v_mul_u32_u24 v{t0}, {rowstride}, v{t0}")
        a.I(f"v_add_u32 v{v}, v{v}, v{t0}")

    def tr_addr64(self, vdst, t0, t1):
        a = self.a
        a.I(f"v_lshrrev_b32 v{t0}, 4, v5")
        a.I(f"v_bfe_u32 v{t1}, v5, 2, 2")
        a.I(f"v_lshl_add_u32 v{vdst}, v{t0}, 3, v{t1}")
        a.I(f"v_lshlrev_b32 v{vdst}, 6, v{vdst}")
        a.I(f"v_and_b32 v{t0}, 1, v{t0}")
        a.I(f"v_lshl_or_b32 v{vdst}, v{t0}, 5, v{vdst}")
        a.I(f"v_and_b32 v{t0}, 3, v5")
        a.I(f"v_lshl_add_u32 v{vdst}, v{t0}, 3, v{vdst}")

    def x1_from_y(self, vy_addr_soff, yregs, ga, xr, out, t):
        a = self.a
        for k in range(4):
            a.I(f"v_add_f32 v{out+k}, v{yregs+k}, v{yregs+4+k}")
        for w in range(2, 8):
            for k in range(4):
                a.I(f"v_add_f32 v{out+k}, v{out+k}, v{yregs+4*w+k}")
        o = [out + k for k in range(4)]
        self.bf16_round(o, t)
        for p in range(2):
            self.unpack(ga + p, t + 1, t + 2)
            a.I(f"v_mul_f32 v{o[2*p]}, v{o[2*p]}, v{t+1}")
            a.I(f"v_mul_f32 v{o[2*p+1]}, v{o[2*p+1]}, v{t+2}")
        self.bf16_round(o, t)
        for p in range(2):
            self.unpack(xr + p, t + 1, t + 2)
            a.I(f"v_add_f32 v{o[2*p]}, v{o[2*p]}, v{t+1}")
            a.I(f"v_add_f32 v{o[2*p+1]}, v{o[2*p+1]}, v{t+2}")
        self.bf16_round(o, t)

    def post_gu(self):
        a = self.a
        a.I("s_mul_i32 s45, s44, 21846")
        a.I("s_lshr_b32 s87, s45, 16")
        a.I("s_mul_i32 s46, s87, 3")
        a.I("s_sub_u32 s88, s44, s46")
        a.I("s_mul_i32 s46, s88, 54")
        a.I("v_add_u32 v10, s46, v5")
        a.I("v_cmp_gt_u32 vcc, 54, v5")
        a.I("s_mov_b64 s[50:51], vcc")
        a.I("v_mov_b32 v6, 160")
        a.I("v_cmp_lt_u32 vcc, v10, v6")
        a.I("s_and_b64 s[50:51], s[50:51], vcc")
        a.I("v_min_u32 v10, 159, v10")
        a.I("v_lshlrev_b32 v11, 3, v10")
        a.I("s_mul_i32 s46, s87, 7680")
        a.I(f"s_add_u32 s46, s46, {WS_MOD}")
        self.srd(36, 4, 5120)
        a.I("s_mul_i32 s47, s87, 1280")
        a.I("buffer_load_dwordx2 v[18:19], v11, s[36:39], s47 offen")
        a.I("v_add_u32 v40, 2560, v11")
        a.I("v_add_u32 v41, 3840, v11")
        a.I("v_add_u32 v42, 5120, v11")
        a.I("s_mul_i32 s85, s87, 7680")
        a.I(f"s_add_u32 s85, s85, {WS_MOD}")
        a.I("v_lshlrev_b32 v32, 4, v10")
        a.I("s_mul_i32 s86, s87, 2560")
        a.I(f"s_add_u32 s86, s86, {WS_Y}")
        yloads = []
        for w in range(8):
            yloads.append((f"buffer_load_dwordx4 v[{48+4*w}:{51+4*w}], v{80+w if False else 140+w}, s[40:43], s86 offen sc1", [48+4*w+k for k in range(4)]))
            a.I(f"v_add_u32 v{140+w}, {10240*w}, v32")
        modloads = ["buffer_load_dwordx2 v[12:13], v40, s[40:43], s85 offen sc1",
                    "buffer_load_dwordx2 v[14:15], v41, s[40:43], s85 offen sc1",
                    "buffer_load_dwordx2 v[16:17], v42, s[40:43], s85 offen sc1"]
        for ld in modloads:
            a.I(ld)
        if not self.cfg.early_w:
            a.I("s_cmp_ge_u32 s44, 10")
            a.I("s_cbranch_scc1 L_gu_dn")
            a.I(f"s_lshl_b32 s47, s{S_NB}, 6")
            a.I("s_cmp_ge_u32 s44, 5")
            a.I("s_cselect_b32 s48, s18, s16")
            a.I("s_cselect_b32 s49, s19, s17")
            a.I("s_cselect_b32 s63, 5, 0")
            self.srd(32, 48, 640 * 3072, off=47)
            self.dma_voff64(3072, 8, 6, 7)
            a.I("s_sub_u32 s63, s44, s63")
            a.I(f"s_mul_i32 s46, s63, {128*3072}")
            a.I("s_lshl_b32 s47, s44, 13")
            a.I(f"s_add_u32 s47, s47, {L_W}")
            self.dma_loop(32, 8, 8, 8, 47, 46, 16 * 3072, "L_gu_dma", pol=self.cfg.ntG)
            a.I("s_waitcnt vmcnt(8)")
            a.I("s_branch L_gu_dma_done")
            a.label("L_gu_dn")
            a.I(f"s_mul_i32 s45, s{S_NB}, 40960")
            self.srd(32, 20, 40960, off=45)
            for m in range(5):
                a.I(f"v_lshlrev_b32 v6, 4, v5")
                a.I(f"v_add_u32 v6, {1024*m}, v6")
                a.I("v_mul_u32_u24 v7, 3277, v6")
                a.I("v_lshrrev_b32 v7, 22, v7")
                a.I("v_mul_u32_u24 v8, 1280, v7")
                a.I("v_sub_u32 v6, v6, v8")
                a.I("v_lshlrev_b32 v7, 5, v7")
                a.I("v_xor_b32 v9, v6, v7")
                a.I(f"v_add_u32 v{148+m}, v8, v9")
                a.I("v_xor_b32 v9, 128, v9")
                a.I(f"v_add_u32 v{153+m}, v8, v9")
            a.I("s_sub_u32 s63, s44, 10")
            a.I("s_mul_i32 s46, s63, 20480")
            a.I(f"s_add_u32 s47, s46, {L_WD}")
            for q in range(4):
                for m in range(5):
                    a.I("s_mov_b32 m0, s47")
                    a.I("s_add_u32 s47, s47, 1024")
                    a.I(f"buffer_load_dwordx4 v{(153 if (q >> 1) & 1 else 148) + m}, s[32:35], s46 offen {self.cfg.ntW} lds")
                if q < 3:
                    a.I("s_add_u32 s46, s46, 5120")
            a.I("s_waitcnt vmcnt(20)")
            a.label("L_gu_dma_done")
            a.fence(2)
        else:
            a.I("s_waitcnt vmcnt(0)")
        self.stamp(22)
        a.I("v_max3_u32 v6, v12, v13, v14")
        a.I("v_max3_u32 v6, v6, v15, v16")
        a.I("v_max_u32 v6, v6, v17")
        a.I("v_cmp_eq_u32 vcc, -1, v6")
        a.I("s_cmp_eq_u64 vcc, 0")
        a.I("s_cbranch_scc1 L_pm2_skip")
        self.poll(modloads, list(range(12, 18)), "L_pm2", pre=6)
        a.label("L_pm2_skip")
        self.stamp(23)
        self.unpack(16, 20, 21)
        self.unpack(17, 22, 23)
        for k in range(4):
            a.I(f"v_add_f32 v{20+k}, 1.0, v{20+k}")
        self.bf16_round([20, 21, 22, 23], 6)
        self.unpack(14, 24, 25)
        self.unpack(15, 26, 27)
        self.unpack(12, 84, 85)
        self.unpack(13, 86, 87)
        self.unpack(18, 88, 89)
        self.unpack(19, 90, 91)
        self.tr_addr64(28, 6, 7)
        a.I("s_and_b32 s45, s44, 1")
        a.I("s_lshl_b32 s45, s45, 5")
        a.I("v_xor_b32 v28, s45, v28")
        a.I("s_bfe_u32 s45, s44, 0x10001")
        a.I("s_mul_i32 s45, s45, 40960")
        a.I("s_lshr_b32 s46, s44, 2")
        a.I(f"s_mul_i32 s47, s46, {7*2048}")
        a.I("s_add_u32 s45, s45, s47")
        a.I(f"s_add_u32 s45, s45, {L_W}")
        a.I("v_add_u32 v28, s45, v28")
        self.act_addr(29, 1344, 6)
        a.I(f"s_mul_i32 s47, s46, {7*64}")
        a.I(f"s_add_u32 s47, s47, {L_ACT}")
        a.I("v_add_u32 v29, s47, v29")
        self.red_lane_addr(30, 6)
        a.I("s_mul_i32 s47, s87, 1344")
        a.I(f"s_add_u32 s47, s47, {L_ACT}")
        a.I("v_lshl_add_u32 v31, v10, 3, s47")
        a.I("s_mul_i32 s45, s87, 1280")
        a.I(f"s_add_u32 s45, s45, {L_OPART}")
        a.I("v_lshl_add_u32 v92, v10, 3, s45")
        a.I("s_cmp_eq_u32 s88, 2")
        a.I("s_mov_b32 s45, 0x3b9d89d9")
        a.I("s_cselect_b32 s45, s45, 0x3b97b426")
        a.I("v_mov_b32 v93, s45")
        a.I("s_lshl_b32 s45, s44, 3")
        a.I(f"s_add_u32 s45, s45, {L_LNST}")
        a.I("v_mov_b32 v94, s45")
        a.I("s_mul_i32 s45, s87, 24")
        a.I(f"s_add_u32 s45, s45, {L_LNST}")
        a.I("v_mov_b32 v95, s45")
        if self.cfg.early_w:
            a.I("s_cmp_eq_u32 s44, 3")
        else:
            a.I("s_cmp_ge_u32 s44, 10")
        a.I("s_cbranch_scc1 L_gu_nowait")
        a.I("s_waitcnt vmcnt(0)")
        a.label("L_gu_nowait")
        a.I("s_barrier")
        self.stamp(9)
        self.mfma_preread(7, 28, 2048, 256, 96)
        a.I("v_lshrrev_b32 v6, 4, v5")
        a.I("v_bfe_u32 v7, v5, 2, 2")
        a.I("v_lshl_add_u32 v8, v6, 3, v7")
        a.I("v_mul_u32_u24 v8, 1280, v8")
        a.I("v_and_b32 v9, 3, v5")
        a.I("v_lshl_add_u32 v8, v9, 3, v8")
        a.I(f"v_add_u32 v8, {L_WD}, v8")
        a.I("v_and_b32 v6, 1, v6")
        a.I("v_lshl_or_b32 v7, v6, 2, v7")
        a.I("v_lshlrev_b32 v7, 5, v7")
        for t in range(4):
            a.I(f"s_add_u32 s45, s44, {12*t}")
            a.I("s_lshl_b32 s45, s45, 5")
            a.I(f"v_xor_b32 v9, s45, v7")
            a.I(f"v_add_u32 v{148+t}, v8, v9")
        if self.cfg.ygate:
            a.I("s_and_b32 s45, s44, 7")
            a.I("s_mul_i32 s45, s45, 10240")
            a.I("v_add_u32 v6, s45, v32")
            self.poll(["buffer_load_dwordx4 v[44:47], v6, s[40:43], s86 offen sc1"], [44, 45, 46, 47], "L_pyg", pre=7)
        self.poll_sel(yloads, "L_py", 6)
        self.stamp(10)
        for (o_, d, q) in ((48, 48, 52), (56, 56, 60), (64, 64, 68), (72, 72, 76), (48, 48, 56), (64, 64, 72), (40, 48, 64)):
            a.I(f"v_pk_add_f32 v[{o_}:{o_+1}], v[{d}:{d+1}], v[{q}:{q+1}]")
            a.I(f"v_pk_add_f32 v[{o_+2}:{o_+3}], v[{d+2}:{d+3}], v[{q+2}:{q+3}]")
        o = [40, 41, 42, 43]
        self.bf16_round(o, 6)
        a.I("v_pk_mul_f32 v[40:41], v[40:41], v[84:85]")
        a.I("v_pk_mul_f32 v[42:43], v[42:43], v[86:87]")
        self.bf16_round(o, 6)
        a.I("v_pk_add_f32 v[40:41], v[40:41], v[88:89]")
        a.I("v_pk_add_f32 v[42:43], v[42:43], v[90:91]")
        a.I("v_cvt_pk_bf16_f32 v36, v40, v41")
        a.I("v_cvt_pk_bf16_f32 v37, v42, v43")
        self.unpack(36, 32, 33)
        self.unpack(37, 34, 35)
        a.I("s_mov_b64 exec, s[50:51]")
        a.I("ds_write_b64 v92, v[36:37]")
        a.I("s_mov_b64 exec, -1")
        a.I("v_readfirstlane_b32 s46, v32")
        for k in range(4):
            a.I(f"v_subrev_f32 v{40+k}, s46, v{32+k}")
        a.I("v_add_f32 v36, v40, v41")
        a.I("v_mul_f32 v37, v40, v40")
        a.I("v_add_f32 v38, v42, v43")
        a.I("v_fmac_f32 v37, v41, v41")
        a.I("v_add_f32 v36, v36, v38")
        a.I("v_fmac_f32 v37, v42, v42")
        a.I("v_fmac_f32 v37, v43, v43")
        a.I("v_cndmask_b32 v36, 0, v36, s[50:51]")
        a.I("v_cndmask_b32 v37, 0, v37, s[50:51]")
        for r in (8, 4, 2, 1):
            for v in (36, 37):
                a.I(f"v_add_f32_dpp v{v}, v{v}, v{v} row_ror:{r} row_mask:0xf bank_mask:0xf")
        for m in ("row_bcast:15 row_mask:0xa", "row_bcast:31 row_mask:0xc"):
            for v in (36, 37):
                a.I(f"v_add_f32_dpp v{v}, v{v}, v{v} {m} bank_mask:0xf")
        a.I("v_readlane_b32 s47, v36, 63")
        a.I("v_readlane_b32 s45, v37, 63")
        a.I("v_mul_f32 v38, s47, v93")
        a.I("v_mov_b32 v39, s45")
        a.I("v_add_f32 v37, s46, v38")
        a.I("v_mul_f32 v38, s47, v38")
        a.I("v_sub_f32 v38, v39, v38")
        a.I("ds_write_b32 v94, v37")
        a.I("ds_write_b32 v94, v38 offset:4")
        a.I("s_waitcnt lgkmcnt(0)")
        a.I("s_barrier")
        for t in range(4):
            b = 124 + 4 * t
            a.I(f"ds_read_b64_tr_b16 v[{b}:{b+1}], v{148+t}")
            a.I(f"ds_read_b64_tr_b16 v[{b+2}:{b+3}], v{148+t} offset:{4*1280}")
        a.I("ds_read_b64 v[40:41], v95")
        a.I("ds_read_b64 v[42:43], v95 offset:8")
        a.I("ds_read_b64 v[44:45], v95 offset:16")
        a.I("s_waitcnt lgkmcnt(0)")
        a.I("v_add_f32 v46, v40, v42")
        a.I("v_mul_f32 v46, 0x43580000, v46")
        a.I("v_mov_b32 v47, 0x43500000")
        a.I("v_fmac_f32 v46, v47, v44")
        a.I("v_mul_f32 v46, 0x3acccccd, v46")
        a.I("v_sub_f32 v40, v40, v46")
        a.I("v_sub_f32 v42, v42, v46")
        a.I("v_sub_f32 v44, v44, v46")
        a.I("v_mul_f32 v40, v40, v40")
        a.I("v_fmac_f32 v40, v42, v42")
        a.I("v_mul_f32 v40, 0x43580000, v40")
        a.I("v_mul_f32 v44, v44, v44")
        a.I("v_fmac_f32 v40, v47, v44")
        a.I("v_add_f32 v40, v40, v41")
        a.I("v_add_f32 v40, v40, v43")
        a.I("v_add_f32 v40, v40, v45")
        a.I("v_mul_f32 v40, 0x3acccccd, v40")
        self.ln_denom(40, 48)
        a.I("v_cvt_pk_bf16_f32 v46, v46, v46")
        a.I("v_lshlrev_b32 v46, 16, v46")
        a.I("v_rcp_f32 v41, v40")
        o = [32, 33, 34, 35]
        for r in o:
            a.I(f"v_sub_f32 v{r}, v{r}, v46")
        self.bf16_round(o, 6)
        for r in o:
            self.div_by(r, 40, 41, 7)
        self.bf16_round(o, 6)
        for k, r in enumerate(o):
            a.I(f"v_mul_f32 v{r}, v{r}, v{20+k}")
        self.bf16_round(o, 6)
        for k, r in enumerate(o):
            a.I(f"v_add_f32 v{r}, v{r}, v{24+k}")
        a.I("v_cvt_pk_bf16_f32 v32, v32, v33")
        a.I("v_cvt_pk_bf16_f32 v33, v34, v35")
        a.I("s_mov_b64 exec, s[50:51]")
        a.I("ds_write_b64 v31, v[32:33]")
        a.I("s_mov_b64 exec, -1")
        a.I("s_waitcnt lgkmcnt(0)")
        a.I("s_barrier")
        a.I("s_cmp_ge_u32 s44, 8")
        a.I("s_cbranch_scc1 L_gu_m6")
        self.mfma_with_b(7, 96, 29, 40, 20)
        a.I("s_branch L_gu_mdone")
        a.label("L_gu_m6")
        a.fence(2)
        self.mfma_with_b(6, 96, 29, 40, 20)
        a.label("L_gu_mdone")
        a.fence(8)
        self.write_red(20, 30)
        a.I("s_cmp_lg_u32 s44, 0")
        a.I("s_cbranch_scc1 L_gu_done")
        a.I("v_lshlrev_b32 v6, 4, v5")
        for kt in range(3):
            a.I(f"ds_read_b128 v[{20+4*kt}:{23+4*kt}], v6 offset:{L_RED + 1024*kt}")
        a.I("s_waitcnt lgkmcnt(0)")
        for k in range(4):
            a.I(f"v_add_f32 v{20+k}, v{20+k}, v{24+k}")
        for k in range(4):
            a.I(f"v_add_f32 v{20+k}, v{20+k}, v{28+k}")
        self.bf16_round([20, 21, 22, 23], 6)
        for k in range(4):
            a.I(f"v_mov_b32 v{24+k}, v{20+k}")
        for k in range(4):
            a.I(f"v_permlane32_swap_b32 v{20+k}, v{24+k}")
        for k in range(4):
            a.I(f"v_mul_f32 v{20+k}, v{20+k}, v{24+k}")
        a.I("v_cvt_pk_bf16_f32 v20, v20, v21")
        a.I("v_cvt_pk_bf16_f32 v21, v22, v23")
        a.I("v_and_b32 v6, 3, v5")
        a.I("v_lshlrev_b32 v6, 6, v6")
        a.I("v_bfe_u32 v7, v5, 2, 3")
        a.I("v_lshl_add_u32 v6, v7, 3, v6")
        a.I("s_mov_b32 exec_lo, -1"); a.I("s_mov_b32 exec_hi, 0")
        a.I(f"ds_write_b64 v6, v[20:21] offset:{L_QV}")
        a.I("s_mov_b64 exec, -1")
        a.I("s_waitcnt lgkmcnt(0)")
        a.label("L_gu_done")
        a.I("s_barrier")
        a.I("v_and_b32 v6, 3, v5")
        a.I("v_lshlrev_b32 v6, 6, v6")
        a.I("v_lshrrev_b32 v7, 4, v5")
        a.I("v_lshl_add_u32 v6, v7, 4, v6")
        a.I(f"ds_read_b128 v[40:43], v6 offset:{L_QV}")
        a.I("v_and_b32 v6, 3, v5")
        a.I("v_lshlrev_b32 v6, 6, v6")
        a.I("v_lshl_add_u32 v6, v7, 4, v6")
        a.I("s_mul_i32 s45, s44, 12288")
        a.I(f"s_lshl_b32 s46, s{S_NB}, 8")
        a.I("s_add_u32 s45, s45, s46")
        a.I(f"s_add_u32 s45, s45, {WS_PD}")
        a.I("s_waitcnt lgkmcnt(0)")
        for t in range(4):
            a.I(f"v_mfma_f32_16x16x32_bf16 v[{44+4*t}:{47+4*t}], v[{124+4*t}:{127+4*t}], v[40:43], 0")
        a.I(f"s_mov_b32 exec_lo, 0x{MASK_N4_LO:x}")
        a.I(f"s_mov_b32 exec_hi, 0x{MASK_N4_LO:x}")
        for t in range(4):
            if t == 3:
                a.I("s_cmp_ge_u32 s44, 4")
                a.I("s_cbranch_scc1 L_gu_st_done")
            self.canon([44+4*t+k for k in range(4)], 12)
            a.I(f"buffer_store_dwordx4 v[{44+4*t}:{47+4*t}], v6, s[40:43], s45 offen sc1")
            if t < 3:
                a.I(f"s_add_u32 s45, s45, {12*12288}")
        a.label("L_gu_st_done")
        a.I("s_mov_b64 exec, -1")
        self.stamp(11)

    def post_final(self):
        a = self.a
        a.fence(2)
        a.I("v_lshlrev_b32 v10, 4, v5")
        a.I(f"s_mul_i32 s47, s{S_DT}, 12288")
        a.I("s_lshl_b32 s45, s44, 10")
        a.I("s_add_u32 s47, s47, s45")
        a.I(f"s_add_u32 s47, s47, {WS_PD}")
        a.I("v_bfe_u32 v12, v5, 2, 2")
        a.I("v_and_b32 v13, 3, v5")
        a.I("v_mul_u32_u24 v14, 7680, v12")
        a.I("v_lshl_add_u32 v14, v13, 3, v14")
        a.I(f"s_lshl_b32 s45, s{S_DT}, 5")
        a.I(f"s_add_u32 s46, s45, {WS_MOD + 6400}")
        a.I("v_mul_u32_u24 v31, 1280, v12")
        a.I("v_lshl_add_u32 v31, v13, 3, v31")
        a.I(f"s_add_u32 s45, s45, {L_OPART}")
        a.I("v_add_u32 v31, s45, v31")
        a.I("v_and_b32 v30, 15, v5")
        a.I("v_lshlrev_b32 v30, 4, v30")
        a.I("s_lshl_b32 s45, s44, 8")
        a.I(f"s_add_u32 s45, s45, {L_RED}")
        a.I("v_add_u32 v29, s45, v30")
        self.stamp(19)
        self.poll(["buffer_load_dwordx4 v[40:43], v10, s[40:43], s47 offen sc1",
                   "buffer_load_dwordx2 v[22:23], v14, s[40:43], s46 offen sc1"], [40, 41, 42, 43, 22, 23], "L_ph", pre=6)
        self.stamp(20)
        for sw in ("v_permlane32_swap_b32", "v_permlane16_swap_b32"):
            for k in range(4):
                a.I(f"v_mov_b32 v{44+k}, v{40+k}")
            for k in range(4):
                a.I(f"{sw} v{40+k}, v{44+k}")
            for k in range(4):
                a.I(f"v_add_f32 v{40+k}, v{40+k}, v{44+k}")
        a.I("s_mov_b32 exec_lo, 0xffff"); a.I("s_mov_b32 exec_hi, 0")
        a.I("ds_write_b128 v29, v[40:43]")
        a.I("s_mov_b64 exec, -1")
        a.I("s_waitcnt lgkmcnt(0)")
        a.I("s_barrier")
        a.I("s_cmp_lg_u32 s44, 0")
        a.I("s_cbranch_scc1 L_dn_done")
        a.I("v_lshrrev_b32 v6, 4, v5")
        a.I("v_mul_u32_u24 v6, 768, v6")
        a.I("v_add_u32 v6, v6, v30")
        for k in range(3):
            a.I(f"ds_read_b128 v[{40+4*k}:{43+4*k}], v6 offset:{L_RED + 256*k}")
        a.I("ds_read_b64 v[32:33], v31")
        self.srd(36, 26, 5120)
        a.I("s_waitcnt lgkmcnt(0)")
        for k in range(4):
            a.I(f"v_add_f32 v{40+k}, v{40+k}, v{44+k}")
        for k in range(4):
            a.I(f"v_add_f32 v{40+k}, v{40+k}, v{48+k}")
        for sw in ("v_permlane32_swap_b32", "v_permlane16_swap_b32"):
            for k in range(4):
                a.I(f"v_mov_b32 v{44+k}, v{40+k}")
            for k in range(4):
                a.I(f"{sw} v{40+k}, v{44+k}")
            for k in range(4):
                a.I(f"v_add_f32 v{40+k}, v{40+k}, v{44+k}")
        o = [40, 41, 42, 43]
        self.bf16_round(o, 6)
        self.unpack(22, 24, 25)
        self.unpack(23, 26, 27)
        for k in range(4):
            a.I(f"v_mul_f32 v{40+k}, v{40+k}, v{24+k}")
        self.bf16_round(o, 6)
        self.unpack(32, 24, 25)
        self.unpack(33, 26, 27)
        for k in range(4):
            a.I(f"v_add_f32 v{40+k}, v{40+k}, v{24+k}")
        a.I("v_cvt_pk_bf16_f32 v40, v40, v41")
        a.I("v_cvt_pk_bf16_f32 v41, v42, v43")
        a.I("v_mul_u32_u24 v6, 1280, v12")
        a.I("v_lshl_add_u32 v6, v13, 3, v6")
        a.I(f"s_lshl_b32 s45, s{S_DT}, 5")
        a.I("s_mov_b32 exec_lo, 0xffff"); a.I("s_mov_b32 exec_hi, 0")
        a.I(f"buffer_store_dwordx2 v[40:41], v6, s[36:39], s45 offen {self.cfg.outpol}")
        a.I("s_mov_b64 exec, -1")
        a.label("L_dn_done")
        self.stamp(21)

    def tail(self):
        a = self.a
        a.label("L_tail")
        if self.cfg.dbgt:
            a.fence(4)
            a.I("s_cmp_eq_u32 s44, 0")
            a.I("s_cbranch_scc0 L_end")
            self.stamp(13)
            a.I("s_mov_b64 exec, 1")
            a.I("s_not_b32 s98, s98")
            for i, r in enumerate((98, 77, 72, 66, 64 + 4, 64 + 6)):
                a.I(f"v_mov_b32 v6, {16 + 4*i}")
                a.I(f"v_mov_b32 v7, s{r}")
                a.I("global_atomic_umax v6, v7, s[28:29] sc1")
            a.I("s_branch L_end")
        if self.diag and not self.cfg.dbgt:
            a.fence(4)
            self.stamp(13)
            a.I(f"s_lshl_b32 s79, s{S_PRE}, 4")
            a.I(f"s_or_b32 s79, s79, s{S_POST}")
            a.I("s_mul_i32 s45, s2, 12")
            a.I("s_add_u32 s45, s45, s44")
            a.I("s_lshl_b32 s45, s45, 7")
            a.I(f"s_add_u32 s45, s45, {WS_DBG}")
            a.I("s_mov_b64 exec, 1")
            a.I("v_mov_b32 v6, 0")
            regs = [64 + k for k in range(16)] + [93 + k for k in range(8)]
            for q in range(6):
                for k in range(4):
                    a.I(f"v_mov_b32 v{8+k}, s{regs[4*q+k]}")
                a.I(f"buffer_store_dwordx4 v[8:11], v6, s[40:43], s45 offen offset:{16*q}")
                a.I("s_nop 1")
        a.label("L_end")
        a.I("s_endpgm")
        a.raw(f""".section .rodata,"a"
.p2align 6
.amdhsa_kernel {self.name}
  .amdhsa_next_free_vgpr 168
  .amdhsa_next_free_sgpr 102
  .amdhsa_accum_offset 168
  .amdhsa_group_segment_fixed_size 0
  .amdhsa_float_denorm_mode_32 3
  .amdhsa_kernarg_size 112
  .amdhsa_user_sgpr_count 2
  .amdhsa_user_sgpr_kernarg_segment_ptr 1
  .amdhsa_system_sgpr_workgroup_id_x 1
.end_amdhsa_kernel""")

    def build(self):
        self.entry()
        self.helper_front()
        self.stream()
        self.helper()
        self.a.I("s_branch L_post")
        self.stream_bulk()
        self.post()
        self.tail()
        return self.a.text()


def make(path, diag=False, name=KNAME, **kw):
    cfg = StreamCfg()
    for k, v in kw.items():
        setattr(cfg, k, v)
    g = Gen(cfg, diag=diag, name=name)
    txt = g.build()
    open(path, 'w').write(txt)
    return g


if __name__ == '__main__':
    out = sys.argv[1]
    kw = {}
    diag = False
    name = KNAME
    for kv in sys.argv[2:]:
        k, v = kv.split('=')
        if k == 'diag': diag = bool(int(v))
        elif k == 'name': name = v
        else: kw[k] = v.replace('_', ' ').replace('none', '') if k in ('nt', 'pfpol', 'ntV', 'ntW', 'outpol', 'ntG') else int(v)
    g = make(out, diag=diag, name=name, **kw)
    print(out, 'nops', g.a.nops)
```

```python
from asmdsl import Asm

LOG2E = 0x3fb8aa3b
SCALE = 0x3d93cd3a

R0 = 8
D = 38


def slot(i):
    return R0 + 4 * (i % D)


def hole(i):
    return R0 + 4 * i + 3


V_OFF = 1
V_Q = (2, 3, 4)
V_LANE = 5
V_T0, V_T1 = 6, 7
A_ = (hole(0), hole(1))
B_ = (hole(2), hole(3))
C_ = (hole(4), hole(5))
D_ = (hole(6), hole(7), hole(8), hole(9))
E_ = (hole(10), hole(11))
TT = (hole(12), hole(13))
V_PADDR = hole(14)
V_PW = hole(15)
V_X = [hole(16 + i) for i in range(6)]
SC = tuple(hole(22 + i) for i in range(4))
ACC = tuple(hole(26 + i) for i in range(6))
PG = (160, 164)
PTX = (hole(32), hole(33), hole(34), hole(35))
V_TK = hole(0)
PT = PTX


def set_depth(d):
    global D
    assert 36 <= d <= 38 or d == 32
    D = d


class StreamCfg:
    D = 32
    NB0 = 0
    W = 12
    W0 = 5
    late_skip = True
    WV = 64
    nt = 'nt'
    ntV = None
    ntW = 'nt'
    codepf = 0
    N1 = 12
    ntG = 'nt'
    obar = 1
    kx = 0
    TD = 47
    step = 6144
    wstride = 768
    outpol = ''
    pfs = 0
    xp = 5
    dbgt = 0
    pad = 0
    pf = 0
    pfpol = ''
    PW = 2
    ygate = 0
    early_w = 0
    WW = 3
    WX = 12
    DX = 24
    hop = 14
    TJ = 44
    pw_early = 0
    gate = 2
    pretouch = 0


def emit_issue(a, cfg, u, S):
    NK = 128 + cfg.kx
    srd = S['srdK'] if u < NK else S['srdV']
    if u == NK:
        a.I(f"s_mov_b32 s{S['soff']}, 0")
    s = slot(u)
    pol = cfg.nt if u < NK else (cfg.ntV if cfg.ntV is not None else cfg.nt)
    a.vmem(f"buffer_load_dwordx3 v[{s}:{s+2}], v{V_OFF}, s[{srd}:{srd+3}], s{S['soff']} offen {pol}", ('ld', u))
    if u not in (NK - 1, 2 * NK - 1):
        a.I(f"s_addk_i32 s{S['soff']}, {cfg.step}")


def stream_prologue(a, cfg, S):
    a.comment('stream prologue')
    a.I(f"v_and_b32 v{V_LANE}, 63, v0")
    a.I(f"s_mul_i32 s{S['tmp']}, s{S['wave']}, {cfg.wstride}")
    a.I(f"v_mul_u32_u24 v{V_OFF}, 12, v{V_LANE}")
    a.I(f"v_add_u32 v{V_OFF}, s{S['tmp']}, v{V_OFF}")
    a.I(f"s_mov_b32 s{S['soff']}, 0")
    a.vm_reset()
    for u in range(D):
        if u in S.get('hook_before', {}):
            S['hook_before'][u]()
        if u >= cfg.W0:
            a.vm_window(cfg.W0 - 1)
        emit_issue(a, cfg, u, S)
        if u == S.get('b0_after', -1):
            a.I('s_barrier')
    return D


def k_tree(a, t, S, dst=None, only=0):
    i = t % 32
    if i % 2 == 1 and only in (0, 1):
        a.I(f"v_permlane16_swap_b32 v{A_[0]}, v{A_[1]}")
        a.I(f"v_add_f32 v{B_[(i >> 1) & 1]}, v{A_[0]}, v{A_[1]}")
    if i % 4 == 3 and only in (0, 2):
        c = C_[(i >> 2) & 1]
        a.I(f"v_add_f32_dpp v{c}, v{B_[0]}, v{B_[0]} row_ror:8 row_mask:0xf bank_mask:0x3")
        a.I(f"v_add_f32_dpp v{c}, v{B_[1]}, v{B_[1]} row_ror:8 row_mask:0xf bank_mask:0xc")
    if i % 8 == 7 and only in (0, 3):
        d = D_[i >> 3]
        a.I(f"v_add_f32_dpp v{d}, v{C_[0]}, v{C_[0]} row_half_mirror row_mask:0xf bank_mask:0x5")
        a.I(f"v_add_f32_dpp v{d}, v{C_[1]}, v{C_[1]} row_half_mirror row_mask:0xf bank_mask:0xa")
    if i % 16 == 15 and only in (0, 4):
        k = i >> 4
        d0, d1 = D_[2 * k], D_[2 * k + 1]
        a.I(f"v_add_f32_dpp v{TT[0]}, v{d0}, v{d0} quad_perm:[1,0,3,2] row_mask:0xf bank_mask:0xf")
        a.I(f"v_add_f32_dpp v{TT[1]}, v{d1}, v{d1} quad_perm:[1,0,3,2] row_mask:0xf bank_mask:0xf")
        a.I(f"v_cndmask_b32 v{E_[k]}, v{TT[0]}, v{TT[1]}, s[{S['mask0']}:{S['mask0']+1}]")
    if i == 31 and only in (0, 5):
        a.I(f"v_add_f32_dpp v{TT[0]}, v{E_[0]}, v{E_[0]} quad_perm:[2,3,0,1] row_mask:0xf bank_mask:0xf")
        a.I(f"v_add_f32_dpp v{TT[1]}, v{E_[1]}, v{E_[1]} quad_perm:[2,3,0,1] row_mask:0xf bank_mask:0xf")
        a.I(f"v_cndmask_b32 v{dst if dst is not None else SC[t // 32]}, v{TT[0]}, v{TT[1]}, s[{S['mask1']}:{S['mask1']+1}]")


def wave_reduce(a, op, v, sdst):
    for r in (8, 4, 2, 1):
        a.I(f"{op}_dpp v{v}, v{v}, v{v} row_ror:{r} row_mask:0xf bank_mask:0xf")
    a.I(f"{op}_dpp v{v}, v{v}, v{v} row_bcast:15 row_mask:0xa bank_mask:0xf")
    a.I(f"{op}_dpp v{v}, v{v}, v{v} row_bcast:31 row_mask:0xc bank_mask:0xf")
    a.I(f"v_readlane_b32 s{sdst}, v{v}, 63")


def round_bf16_pairs(a, regs, tmp):
    a.I(f"v_cvt_pk_bf16_f32 v{tmp[0]}, v{regs[0]}, v{regs[1]}")
    a.I(f"v_cvt_pk_bf16_f32 v{tmp[1]}, v{regs[2]}, v{regs[3]}")
    a.I(f"v_lshlrev_b32 v{regs[0]}, 16, v{tmp[0]}")
    a.I(f"v_and_b32 v{regs[1]}, 0xffff0000, v{tmp[0]}")
    a.I(f"v_lshlrev_b32 v{regs[2]}, 16, v{tmp[1]}")
    a.I(f"v_and_b32 v{regs[3]}, 0xffff0000, v{tmp[1]}")


def stream_main(a, cfg, S, L, issued, stamp=None):
    stamp = stamp or (lambda k: None)
    a.I(f"s_mov_b32 s{S['mask0']}, 0xaaaaaaaa")
    a.I(f"s_mov_b32 s{S['mask0']+1}, 0xaaaaaaaa")
    a.I(f"s_mov_b32 s{S['mask1']}, 0xcccccccc")
    a.I(f"s_mov_b32 s{S['mask1']+1}, 0xcccccccc")
    a.I(f"s_mov_b32 s{S['sello']}, 0x05040100")
    a.I(f"s_mov_b32 s{S['selhi']}, 0x07060302")
    a.I(f"s_mov_b32 s{S['log2e']}, 0x{LOG2E:x}")
    a.I(f"v_and_b32 v{V_T0}, 31, v{V_LANE}")
    a.I(f"v_mul_u32_u24 v{V_T0}, 12, v{V_T0}")
    a.I(f"v_lshrrev_b32 v{V_T1}, 5, v{V_LANE}")
    NK = 128 + cfg.kx
    SC4, VI = 156, 157
    if cfg.kx:
        assert D == 32 and cfg.kx in (2, 4, 6, 8)
        a.I(f"v_mul_u32_u24 v{V_PADDR}, 320, v{V_T1}")
        a.I(f"s_mul_i32 s{S['tmp']}, s{S['wave']}, 640")
    else:
        a.I(f"v_lshlrev_b32 v{V_PADDR}, 8, v{V_T1}")
        a.I(f"s_lshl_b32 s{S['tmp']}, s{S['wave']}, 9")
    a.I(f"s_add_u32 s{S['tmp']}, s{S['tmp']}, {L['P']}")
    a.I(f"v_add_u32 v{V_PADDR}, s{S['tmp']}, v{V_PADDR}")
    x = V_X
    a.I(f"v_bfe_u32 v{x[0]}, v{V_LANE}, 4, 1")
    a.I(f"v_lshl_add_u32 v{V_PW}, v{x[0]}, 1, v{V_PADDR}")
    a.I(f"v_bfe_u32 v{x[0]}, v{V_LANE}, 3, 1")
    a.I(f"v_lshl_add_u32 v{V_PW}, v{x[0]}, 2, v{V_PW}")
    a.I(f"v_bfe_u32 v{x[0]}, v{V_LANE}, 2, 1")
    a.I(f"v_lshl_add_u32 v{V_PW}, v{x[0]}, 3, v{V_PW}")
    a.I(f"v_bfe_u32 v{x[0]}, v{V_LANE}, 0, 1")
    a.I(f"v_lshl_add_u32 v{V_PW}, v{x[0]}, 4, v{V_PW}")
    a.I(f"v_bfe_u32 v{x[0]}, v{V_LANE}, 1, 1")
    a.I(f"v_lshl_add_u32 v{V_PW}, v{x[0]}, 5, v{V_PW}")
    if cfg.kx:
        a.I(f"v_bfe_u32 v{VI}, v{V_LANE}, 4, 1")
        for bit, sh in ((3, 1), (2, 2), (0, 3), (1, 4)):
            a.I(f"v_bfe_u32 v{x[0]}, v{V_LANE}, {bit}, 1")
            a.I(f"v_lshl_or_b32 v{VI}, v{x[0]}, {sh}, v{VI}")
    for k in range(6):
        a.I(f"v_mov_b32 v{ACC[k]}, 0")
    stamp(1)
    a.I('s_barrier')
    stamp(2)
    a.I(f"ds_read_b32 v{V_Q[0]}, v{V_T0} offset:{L['QV']}")
    a.I(f"ds_read_b32 v{V_Q[1]}, v{V_T0} offset:{L['QV']+4}")
    a.I(f"ds_read_b32 v{V_Q[2]}, v{V_T0} offset:{L['QV']+8}")
    a.I('s_waitcnt lgkmcnt(0)')

    W = cfg.W
    pend = None
    for t in range(NK):
        s = slot(t)
        a.vm_wait(('ld', t))
        leaf = A_[t & 1]
        a.I(f"v_dot2_f32_bf16 v{leaf}, v{s}, v{V_Q[0]}, 0")
        a.I(f"v_dot2c_f32_bf16 v{leaf}, v{s+1}, v{V_Q[1]}") if False else a.I(f"v_dot2_f32_bf16 v{leaf}, v{s+1}, v{V_Q[1]}, v{leaf}")
        a.I(f"v_dot2_f32_bf16 v{leaf}, v{s+2}, v{V_Q[2]}, v{leaf}")
        if cfg.late_skip:
            target = min(t + D, NK - 1 + W)
        else:
            target = max(D - 1, t + W)
        while issued <= target:
            emit_issue(a, cfg, issued, S)
            issued += 1
        k_tree(a, t, S, dst=SC4 if t >= 128 else None)
        for _ in range(cfg.pad):
            a.I("s_mov_b32 s63, 0x12345")
    if cfg.kx:
        last = (NK - 1) % 32
        for lvl in range(1, 6):
            end = (((last >> lvl) + 1) << lvl) - 1
            if end > last:
                k_tree(a, 128 + end, S, dst=SC4, only=lvl)
    stamp(3)
    sc = list(SC)
    round_bf16_pairs(a, sc, (V_T0, V_T1))
    a.I(f"s_mov_b32 s{S['tmp']}, 0x{SCALE:x}")
    for r in sc:
        a.I(f"v_mul_f32 v{r}, s{S['tmp']}, v{r}")
    round_bf16_pairs(a, sc, (V_T0, V_T1))
    if cfg.kx:
        a.I(f"v_cvt_pk_bf16_f32 v{V_T0}, v{SC4}, v{SC4}")
        a.I(f"v_lshlrev_b32 v{SC4}, 16, v{V_T0}")
        a.I(f"v_mul_f32 v{SC4}, s{S['tmp']}, v{SC4}")
        a.I(f"v_cvt_pk_bf16_f32 v{V_T0}, v{SC4}, v{SC4}")
        a.I(f"v_lshlrev_b32 v{SC4}, 16, v{V_T0}")
        a.I(f"v_mov_b32 v{V_T1}, 0xff800000")
        a.I(f"s_cmp_eq_u32 s{S['half']}, 0")
        a.I(f"s_cselect_b32 s{S['tmp']}, {NK - 96}, {256 - NK - 96}")
        a.I(f"v_cmp_gt_u32 vcc, s{S['tmp']}, v{VI}")
        a.I(f"v_cndmask_b32 v{SC[3]}, v{V_T1}, v{SC[3]}, vcc")
        a.I(f"s_cmp_eq_u32 s{S['half']}, 0")
        a.I(f"s_cselect_b32 s{S['tmp']}, {NK - 128}, 0")
        a.I(f"v_cmp_gt_u32 vcc, s{S['tmp']}, v{VI}")
        a.I(f"v_cndmask_b32 v{SC4}, v{V_T1}, v{SC4}, vcc")
    a.I(f"v_max_f32 v{V_T0}, v{sc[0]}, v{sc[1]}")
    a.I(f"v_max3_f32 v{V_T0}, v{V_T0}, v{sc[2]}, v{sc[3]}")
    if cfg.kx:
        a.I(f"v_max_f32 v{V_T0}, v{V_T0}, v{SC4}")
    wave_reduce(a, 'v_max_f32', V_T0, S['m'])
    for k, r in enumerate(sc):
        a.I(f"v_subrev_f32 v{x[k]}, s{S['m']}, v{r}")
    for k in range(4):
        a.I(f"v_mul_f32 v{x[k]}, s{S['log2e']}, v{x[k]}")
    for k in range(4):
        a.I(f"v_exp_f32 v{x[k]}, v{x[k]}")
    a.I(f"v_add_f32 v{V_T0}, v{x[0]}, v{x[1]}")
    a.I(f"v_add_f32 v{V_T1}, v{x[2]}, v{x[3]}")
    a.I(f"v_add_f32 v{V_T0}, v{V_T0}, v{V_T1}")
    if cfg.kx:
        a.I(f"v_subrev_f32 v{x[4]}, s{S['m']}, v{SC4}")
        a.I(f"v_mul_f32 v{x[4]}, s{S['log2e']}, v{x[4]}")
        a.I(f"v_exp_f32 v{x[4]}, v{x[4]}")
        a.I(f"v_add_f32 v{V_T0}, v{V_T0}, v{x[4]}")
    wave_reduce(a, 'v_add_f32', V_T0, S['l'])
    a.I(f"s_lshl_b32 s{S['tmp']}, s{S['wave']}, 3")
    a.I(f"s_add_u32 s{S['tmp']}, s{S['tmp']}, {L['STATS']}")
    a.I(f"v_mov_b32 v{x[4]}, s{S['m']}")
    a.I(f"v_mov_b32 v{x[5]}, s{S['l']}")
    a.I(f"v_mov_b32 v{V_T0}, s{S['tmp']}")
    a.I(f"ds_write_b32 v{V_T0}, v{x[4]}")
    a.I(f"ds_write_b32 v{V_T0}, v{x[5]} offset:4")
    a.I('s_waitcnt lgkmcnt(0)')
    a.I('s_barrier')
    stamp(4)
    while issued <= NK - 1 + min(D, cfg.DX):
        a.vm_window(cfg.WX - 1)
        emit_issue(a, cfg, issued, S)
        issued += 1
    stamp(5)
    a.I('s_barrier')
    stamp(6)
    a.I(f"v_mov_b32 v{V_T0}, {L['FIN']}")
    a.I(f"ds_read_b64 v[{PG[1]}:{PG[1]+1}], v{V_T0}")
    a.I('s_waitcnt lgkmcnt(0)')
    for k, r in enumerate(sc):
        a.I(f"v_sub_f32 v{x[k]}, v{r}, v{PG[1]}")
    for k in range(4):
        a.I(f"v_mul_f32 v{x[k]}, s{S['log2e']}, v{x[k]}")
    for k in range(4):
        a.I(f"v_exp_f32 v{x[k]}, v{x[k]}")
    for k in range(4):
        a.I(f"v_mul_f32 v{x[k]}, v{x[k]}, v{PG[1]+1}")
    a.I(f"v_cvt_pk_bf16_f32 v{x[4]}, v{x[0]}, v{x[1]}")
    a.I(f"v_cvt_pk_bf16_f32 v{x[5]}, v{x[2]}, v{x[3]}")
    a.I(f"ds_write_b16 v{V_PW}, v{x[4]}")
    a.I(f"ds_write_b16_d16_hi v{V_PW}, v{x[4]} offset:64")
    a.I(f"ds_write_b16 v{V_PW}, v{x[5]} offset:128")
    a.I(f"ds_write_b16_d16_hi v{V_PW}, v{x[5]} offset:192")
    if cfg.kx:
        a.I(f"v_sub_f32 v{x[0]}, v{SC4}, v{PG[1]}")
        a.I(f"v_mul_f32 v{x[0]}, s{S['log2e']}, v{x[0]}")
        a.I(f"v_exp_f32 v{x[0]}, v{x[0]}")
        a.I(f"v_mul_f32 v{x[0]}, v{x[0]}, v{PG[1]+1}")
        a.I(f"v_cvt_pk_bf16_f32 v{x[4]}, v{x[0]}, v{x[0]}")
        a.I(f"ds_write_b16 v{V_PW}, v{x[4]} offset:256")
    a.I(f"ds_read_b128 v[{PG[0]}:{PG[0]+3}], v{V_PADDR}")
    a.I(f"ds_read_b128 v[{PG[1]}:{PG[1]+3}], v{V_PADDR} offset:16")

    if cfg.early_w == 2:
        a.I("s_setprio 1")
    NP = NK // 2
    NG = (NP + 3) // 4
    for j in range(NP):
        g = j // 4
        if j % 4 == 0:
            a.I('s_waitcnt lgkmcnt(1)' if g + 1 < NG else 's_waitcnt lgkmcnt(0)')
        P = PG[g & 1] + (j % 4)
        t0, t1 = NK + 2 * j, NK + 2 * j + 1
        s0, s1 = slot(t0), slot(t1)
        a.vm_wait(('ld', t1))
        for k in range(3):
            tl, th = PT[(2 * k) % 4], PT[(2 * k + 1) % 4]
            a.I(f"v_perm_b32 v{tl}, v{s1+k}, v{s0+k}, s{S['sello']}")
            a.I(f"v_perm_b32 v{th}, v{s1+k}, v{s0+k}, s{S['selhi']}")
            a.I(f"v_dot2c_f32_bf16 v{ACC[2*k]}, v{tl}, v{P}")
            a.I(f"v_dot2c_f32_bf16 v{ACC[2*k+1]}, v{th}, v{P}")
        if j % 4 == 3 and g + 2 < NG:
            a.I(f"ds_read_b128 v[{PG[g & 1]}:{PG[g & 1]+3}], v{V_PADDR} offset:{16*(g+2)}")
        if j == cfg.TJ and cfg.early_w != 1:
            lab = a.newlabel('tk')
            a.I(f"s_cmp_eq_u32 s{S['wave']}, 0")
            a.I(f"s_cbranch_scc0 {lab}")
            a.I(f"v_mov_b32 v{V_T0}, {L['TICKET'] + 4}")
            a.I(f"v_mov_b32 v{V_T1}, 1")
            a.I(f"ds_write_b32 v{V_T0}, v{V_T1}")
            a.label(lab)
            lg_extra = True
        for _ in range(2 * cfg.pad):
            a.I("s_mov_b32 s63, 0x12345")
        target = min(2 * NK - 1, t1 + min(cfg.WV, D))
        while issued <= target:
            emit_issue(a, cfg, issued, S)
            issued += 1
        if j == cfg.TD and cfg.early_w == 2:
            lab = a.newlabel('td')
            a.I(f"s_cmp_eq_u32 s{S['wave']}, 7")
            a.I(f"s_cbranch_scc0 {lab}")
            a.I(f"v_mov_b32 v{V_T0}, {L['TICKET'] + 8}")
            a.I(f"v_mov_b32 v{V_T1}, 1")
            a.I(f"ds_write_b32 v{V_T0}, v{V_T1}")
            a.label(lab)
    stamp(7)
    for k in range(3):
        a.I(f"v_permlane32_swap_b32 v{ACC[k]}, v{ACC[k+3]}")
        a.I(f"v_add_f32 v{ACC[k]}, v{ACC[k]}, v{ACC[k+3]}")
    a.I(f"v_and_b32 v{V_T0}, 31, v{V_LANE}")
    a.I(f"v_mul_u32_u24 v{V_T0}, 24, v{V_T0}")
    a.I(f"v_lshrrev_b32 v{V_T1}, 5, v{V_LANE}")
    a.I(f"v_mad_u32_u24 v{V_T0}, v{V_T1}, 12, v{V_T0}")
    a.I(f"s_mul_i32 s{S['tmp']}, s{S['wave']}, 768")
    a.I(f"s_add_u32 s{S['tmp']}, s{S['tmp']}, {L['OPART']}")
    a.I(f"v_add_u32 v{V_T0}, s{S['tmp']}, v{V_T0}")
    for k in range(3):
        a.I(f"ds_write_b32 v{V_T0}, v{ACC[k]} offset:{4*k}")
    a.I('s_waitcnt lgkmcnt(0)')
    a.I('s_barrier')
    stamp(8)
```

```python
import re

_REG = re.compile(r'^(-?|\|)?(v|s|a)(\d+|\[(\d+):(\d+)\])\|?$')


def regs_of(tok):
    tok = tok.strip()
    tok = tok.replace('abs(', '').replace(')', '') if tok.startswith(('abs(', '-abs(')) else tok
    tok = tok.lstrip('-')
    tok = tok.strip('|')
    if tok == 'vcc':
        return {('s', 'vcc_lo'), ('s', 'vcc_hi')}
    if tok == 'exec':
        return {('s', 'exec_lo'), ('s', 'exec_hi')}
    if tok in ('m0', 'vcc_lo', 'vcc_hi', 'exec_lo', 'exec_hi'):
        return {('s', tok)}
    m = re.match(r'^(v|s|a)(\d+)$', tok)
    if m:
        return {(m.group(1), int(m.group(2)))}
    m = re.match(r'^(v|s|a)\[(\d+):(\d+)\]$', tok)
    if m:
        return {(m.group(1), i) for i in range(int(m.group(2)), int(m.group(3)) + 1)}
    return set()


TRANS = ('v_exp_f32', 'v_log_f32', 'v_rcp_f32', 'v_rsq_f32', 'v_sqrt_f32', 'v_sin_f32', 'v_cos_f32', 'v_rcp_iflag_f32')


class Ins:
    __slots__ = ('text', 'op', 'cls', 'w', 'r', 'dpp', 'dppsrc', 'states', 'srcc', 'ab', 'lanesel', 'storedata')

    def __init__(self, text):
        self.text = text
        t = text.split(';')[0].strip()
        parts = t.split(None, 1)
        self.op = parts[0]
        rest = parts[1] if len(parts) > 1 else ''
        ops = [o.strip() for o in re.split(r',(?![^\[]*\])', rest)] if rest else []
        mods = ''
        if ops:
            last = ops[-1].split(None, 1)
            if last:
                ops[-1] = last[0]
                mods = last[1] if len(last) > 1 else ''
        op = self.op
        self.w = set(); self.r = set(); self.dpp = False; self.dppsrc = set(); self.states = 1
        self.srcc = set(); self.ab = set(); self.lanesel = set(); self.storedata = set()
        R = regs_of
        if op == 's_nop':
            self.cls = 'nop'; self.states = int(ops[0], 0) + 1
        elif op.startswith('v_mfma'):
            self.cls = 'mfma'
            self.w = R(ops[0]); self.ab = R(ops[1]) | R(ops[2]); self.srcc = R(ops[3]); self.r = self.ab | self.srcc
        elif op.startswith('v_'):
            self.cls = 'valu'
            base = op.replace('_e32', '').replace('_e64', '').replace('_dpp', '')
            if base.startswith('v_cmp'):
                self.w = R(ops[0])
                for o in ops[1:]: self.r |= R(o)
                if base.startswith('v_cmpx'): self.w |= R('exec')
            elif base in ('v_permlane16_swap_b32', 'v_permlane32_swap_b32'):
                self.cls = 'permlane'
                self.w = R(ops[0]) | R(ops[1]); self.r = set(self.w)
            elif base in ('v_readfirstlane_b32',):
                self.cls = 'readlane'
                self.w = R(ops[0]); self.r = R(ops[1])
            elif base == 'v_readlane_b32':
                self.cls = 'readlane'
                self.w = R(ops[0]); self.r = R(ops[1]) | R(ops[2]); self.lanesel = R(ops[2])
            elif base == 'v_writelane_b32':
                self.w = R(ops[0]); self.r = R(ops[1]) | R(ops[2]); self.lanesel = R(ops[2])
            elif base in ('v_add_co_u32', 'v_sub_co_u32', 'v_div_scale_f32'):
                self.w = R(ops[0]) | R(ops[1])
                for o in ops[2:]: self.r |= R(o)
            elif base in ('v_addc_co_u32', 'v_subb_co_u32'):
                self.w = R(ops[0]) | R(ops[1])
                for o in ops[2:]: self.r |= R(o)
            else:
                self.w = R(ops[0])
                for o in ops[1:]: self.r |= R(o)
                if base in ('v_fmac_f32', 'v_dot2c_f32_bf16', 'v_mac_f32', 'v_pk_fmac_f16', 'v_cvt_sr_pk_bf16_f32'):
                    self.r |= self.w
                if base in ('v_cndmask_b32',) and len(ops) == 3:
                    self.r |= R('vcc')
                if base == 'v_div_fmas_f32':
                    self.r |= R('vcc')
                if base.startswith('v_dot2'):
                    self.cls = 'dot'
                    if base == 'v_dot2c_f32_bf16':
                        self.srcc = set(self.w); self.ab = R(ops[1]) | R(ops[2])
                    else:
                        self.srcc = R(ops[3]); self.ab = R(ops[1]) | R(ops[2])
                if base in TRANS:
                    self.cls = 'trans'
            if 'quad_perm' in mods or 'row_' in mods or op.endswith('_dpp'):
                self.dpp = True; self.dppsrc = R(ops[1])
                self.r |= self.w
        elif op.startswith('ds_'):
            self.cls = 'ds'
            if op.startswith(('ds_read', 'ds_bpermute', 'ds_permute', 'ds_swizzle')) or '_rtn' in op:
                self.w = R(ops[0])
                for o in ops[1:]: self.r |= R(o)
            else:
                for o in ops: self.r |= R(o)
        elif op.startswith(('buffer_', 'global_')):
            self.cls = 'vmem'
            is_lds = (' lds' in (' ' + mods)) or op.startswith('global_load_lds')
            if 'load' in op and not is_lds:
                self.w = R(ops[0])
                for o in ops[1:]: self.r |= R(o)
            elif 'atomic' in op and 'sc0' in mods:
                self.w = R(ops[0])
                for o in ops[1:]: self.r |= R(o)
            else:
                for o in ops: self.r |= R(o)
                if 'store' in op and (op.endswith('x3') or op.endswith('x4')):
                    self.storedata = R(ops[0]) if op.startswith('buffer_') else R(ops[1])
            if is_lds:
                self.r |= {('s', 'm0')}
                self.cls = 'vmem_lds'
        elif op.startswith('s_'):
            self.cls = 'salu'
            if op.startswith(('s_cmp', 's_cbranch', 's_branch', 's_waitcnt', 's_barrier', 's_endpgm', 's_sleep', 's_setprio', 's_setpc', 's_bitcmp')):
                for o in ops: self.r |= R(o)
            else:
                if ops:
                    self.w = R(ops[0])
                    for o in ops[1:]: self.r |= R(o)
                if 'saveexec' in op:
                    self.w |= R('exec')
        else:
            raise ValueError('unknown instr ' + text)


def is_valu(c):
    return c in ('valu', 'trans', 'dot', 'permlane', 'readlane')


def vregs(s):
    return {x for x in s if x[0] in ('v', 'a')}


def sregs(s):
    return {x for x in s if x[0] == 's'}


def need_states(p, c):
    n = 0
    pv = vregs(p.w)
    if is_valu(p.cls):
        if c.dpp and pv & c.dppsrc: n = max(n, 2)
        if c.cls == 'permlane' and pv & c.r: n = max(n, 2)
        if c.cls == 'readlane' and pv & vregs(c.r): n = max(n, 1)
        if c.cls == 'mfma' and pv & c.r: n = max(n, 2)
        ps = sregs(p.w)
        if ps:
            if c.cls in ('vmem', 'vmem_lds') and ps & c.r: n = max(n, 5)
            if is_valu(c.cls) and ps & c.r: n = max(n, 2)
            if ps & c.lanesel: n = max(n, 4)
            if c.op.startswith('v_div_fmas') and ('s', 'vcc_lo') in ps: n = max(n, 4)
            if ('s', 'exec_lo') in ps:
                if c.dpp: n = max(n, 5)
                if c.cls in ('readlane', 'permlane', 'mfma'): n = max(n, 4)
    if p.cls == 'trans' and is_valu(c.cls) and c.cls != 'trans' and pv & (c.r | c.w): n = max(n, 1)
    if p.cls == 'trans' and c.cls in ('mfma',) and pv & c.r: n = max(n, 2)
    if p.cls == 'dot':
        if c.cls == 'dot' and c.op == p.op:
            if pv & c.ab: n = max(n, 3)
        elif pv & (c.r | c.w) and c.cls not in ('salu', 'nop'):
            n = max(n, 3)
    if p.cls == 'mfma':
        if c.cls == 'mfma':
            if pv & c.ab: n = max(n, 8)
            if pv & c.srcc and pv != vregs(c.srcc): n = max(n, 6)
        elif c.cls not in ('salu', 'nop') and pv & (c.r | c.w): n = max(n, 8)
        if is_valu(c.cls) and vregs(p.srcc) & vregs(c.w): n = max(n, 3)
    if p.storedata and (vregs(c.w) & p.storedata) and c.cls not in ('salu', 'nop'):
        n = max(n, 2)
    if p.cls == 'salu' and ('s', 'm0') in p.w and c.cls == 'vmem_lds': n = max(n, 1)
    return n


class Asm:
    def __init__(self):
        self.out = []
        self.hist = []
        self.nops = 0
        self.vm = []
        self.nlabel = 0
        self.hop_every = 0
        self.hop_cnt = 0
        self.hop_n = 0
        self.hop_name = ''

    def raw(self, text):
        self.out.append(text)

    def comment(self, t):
        self.out.append('  ; ' + t)

    def label(self, name):
        self.out.append(name + ':')

    def newlabel(self, base):
        self.nlabel += 1
        return f'L_{base}_{self.nlabel}'

    def hops_begin(self, name, every, seg=0, ret=None):
        self.hop_every = every
        self.hop_base = name
        self.hop_seg = seg
        self.hop_ret = ret
        self.hop_k = 0
        self.hop_name = name if not seg else f'{name}{self.hop_k}'
        self.hop_n = 0
        if every:
            self._hop()

    def _hop(self, target=None):
        self.out.append(f'{self.hop_name}_{self.hop_n}:')
        t = target or f'{self.hop_name}_{self.hop_n + 1}'
        text = f's_cbranch_execz {t}'
        self.out.append('  ' + text)
        self.hist.append(Ins(text))
        self.hop_n += 1
        self.hop_cnt = 0

    def hops_end(self, ret):
        if self.hop_every:
            self._hop(ret)
        self.hop_every = 0
        self.hop_seg = 0
        return getattr(self, 'hop_k', 0) + 1

    def I(self, text):
        if self.hop_every:
            self.hop_cnt += 1
            if self.hop_cnt > self.hop_every:
                if getattr(self, 'hop_seg', 0) and self.hop_n >= self.hop_seg:
                    self._hop(self.hop_ret)
                    self.hop_k += 1
                    self.hop_name = f'{self.hop_base}{self.hop_k}'
                    self.hop_n = 0
                self._hop()
                self.hop_cnt = 1
        ins = Ins(text)
        need = 0
        dist = 0
        for p in reversed(self.hist):
            req = need_states(p, ins)
            if req > dist:
                need = max(need, req - dist)
            dist += p.states
            if dist >= 24:
                break
        while need > 0:
            k = min(need, 16)
            nop = Ins(f's_nop {k-1}')
            self.out.append(f'  s_nop {k-1}')
            self.hist.append(nop)
            self.nops += 1
            need -= k
        self.out.append('  ' + text)
        self.hist.append(ins)
        if len(self.hist) > 64:
            self.hist = self.hist[-40:]

    def L(self, block):
        for ln in block.strip().split('\n'):
            ln = ln.strip()
            if not ln or ln.startswith(';'):
                continue
            if ln.endswith(':'):
                self.label(ln[:-1])
            else:
                self.I(ln)

    def fence(self, n=8):
        self.I(f's_nop {n-1}')

    def vm_reset(self, tags=()):
        self.vm = list(tags)

    def vmem(self, text, tag):
        self.I(text)
        self.vm.append(tag)

    def vm_wait(self, tag):
        if tag not in self.vm:
            return
        idx = self.vm.index(tag)
        n = len(self.vm) - 1 - idx
        assert n <= 63, n
        self.I(f's_waitcnt vmcnt({n})')
        self.vm = self.vm[idx + 1:]

    def vm_window(self, n):
        if len(self.vm) > n:
            self.I(f's_waitcnt vmcnt({n})')
            self.vm = self.vm[len(self.vm) - n:]

    def text(self):
        return '\n'.join(self.out) + '\n'
```

```python
from asmdsl import Asm

LOG2E = 0x3fb8aa3b
SCALE = 0x3d93cd3a

R0 = 8
D = 38


def slot(i):
    return R0 + 4 * (i % D)


def hole(i):
    return R0 + 4 * i + 3


V_OFF = 1
V_Q = (2, 3, 4)
V_LANE = 5
V_T0, V_T1 = 6, 7
A_ = (hole(0), hole(1))
B_ = (hole(2), hole(3))
C_ = (hole(4), hole(5))
D_ = (hole(6), hole(7), hole(8), hole(9))
E_ = (hole(10), hole(11))
TT = (hole(12), hole(13))
V_PADDR = hole(14)
V_PW = hole(15)
V_X = [hole(16 + i) for i in range(6)]
SC = tuple(hole(22 + i) for i in range(4))
ACC = tuple(hole(26 + i) for i in range(6))
PG = (160, 164)
PTX = (hole(32), hole(33), hole(34), hole(35))
V_TK = hole(0)
PT = PTX


def set_depth(d):
    global D
    assert 36 <= d <= 38 or d == 32
    D = d


class StreamCfg:
    D = 32
    NB0 = 0
    W = 12
    W0 = 5
    late_skip = True
    WV = 64
    nt = 'nt'
    ntV = None
    ntW = 'nt'
    codepf = 0
    N1 = 12
    hop2 = 0
    hop2seg = 8
    tkrot = 0
    ntG = ''
    obar = 1
    kx = 4
    TD = 47
    step = 6144
    wstride = 768
    outpol = ''
    pfs = 0
    xp = 5
    dbgt = 0
    pad = 0
    pf = 0
    pfpol = ''
    PW = 2
    ygate = 0
    early_w = 0
    WW = 3
    WX = 12
    DX = 24
    hop = 14
    TJ = 44
    pw_early = 0
    gate = 2
    pretouch = 0


def emit_issue(a, cfg, u, S):
    NK = 128 + cfg.kx
    srd = S['srdK'] if u < NK else S['srdV']
    if u == NK:
        a.I(f"s_mov_b32 s{S['soff']}, 0")
    s = slot(u)
    pol = cfg.nt if u < NK else (cfg.ntV if cfg.ntV is not None else cfg.nt)
    a.vmem(f"buffer_load_dwordx3 v[{s}:{s+2}], v{V_OFF}, s[{srd}:{srd+3}], s{S['soff']} offen {pol}", ('ld', u))
    if u not in (NK - 1, 2 * NK - 1):
        a.I(f"s_addk_i32 s{S['soff']}, {cfg.step}")


def stream_prologue(a, cfg, S):
    a.comment('stream prologue')
    a.I(f"v_and_b32 v{V_LANE}, 63, v0")
    a.I(f"s_mul_i32 s{S['tmp']}, s{S['wave']}, {cfg.wstride}")
    a.I(f"v_mul_u32_u24 v{V_OFF}, 12, v{V_LANE}")
    a.I(f"v_add_u32 v{V_OFF}, s{S['tmp']}, v{V_OFF}")
    a.I(f"s_mov_b32 s{S['soff']}, 0")
    a.vm_reset()
    for u in range(D):
        if u in S.get('hook_before', {}):
            S['hook_before'][u]()
        if u >= cfg.W0:
            a.vm_window(cfg.W0 - 1)
        emit_issue(a, cfg, u, S)
        if u == S.get('b0_after', -1):
            a.I('s_barrier')
    return D


def k_tree(a, t, S, dst=None, only=0):
    i = t % 32
    if i % 2 == 1 and only in (0, 1):
        a.I(f"v_permlane16_swap_b32 v{A_[0]}, v{A_[1]}")
        a.I(f"v_add_f32 v{B_[(i >> 1) & 1]}, v{A_[0]}, v{A_[1]}")
    if i % 4 == 3 and only in (0, 2):
        c = C_[(i >> 2) & 1]
        a.I(f"v_add_f32_dpp v{c}, v{B_[0]}, v{B_[0]} row_ror:8 row_mask:0xf bank_mask:0x3")
        a.I(f"v_add_f32_dpp v{c}, v{B_[1]}, v{B_[1]} row_ror:8 row_mask:0xf bank_mask:0xc")
    if i % 8 == 7 and only in (0, 3):
        d = D_[i >> 3]
        a.I(f"v_add_f32_dpp v{d}, v{C_[0]}, v{C_[0]} row_half_mirror row_mask:0xf bank_mask:0x5")
        a.I(f"v_add_f32_dpp v{d}, v{C_[1]}, v{C_[1]} row_half_mirror row_mask:0xf bank_mask:0xa")
    if i % 16 == 15 and only in (0, 4):
        k = i >> 4
        d0, d1 = D_[2 * k], D_[2 * k + 1]
        a.I(f"v_add_f32_dpp v{TT[0]}, v{d0}, v{d0} quad_perm:[1,0,3,2] row_mask:0xf bank_mask:0xf")
        a.I(f"v_add_f32_dpp v{TT[1]}, v{d1}, v{d1} quad_perm:[1,0,3,2] row_mask:0xf bank_mask:0xf")
        a.I(f"v_cndmask_b32 v{E_[k]}, v{TT[0]}, v{TT[1]}, s[{S['mask0']}:{S['mask0']+1}]")
    if i == 31 and only in (0, 5):
        a.I(f"v_add_f32_dpp v{TT[0]}, v{E_[0]}, v{E_[0]} quad_perm:[2,3,0,1] row_mask:0xf bank_mask:0xf")
        a.I(f"v_add_f32_dpp v{TT[1]}, v{E_[1]}, v{E_[1]} quad_perm:[2,3,0,1] row_mask:0xf bank_mask:0xf")
        a.I(f"v_cndmask_b32 v{dst if dst is not None else SC[t // 32]}, v{TT[0]}, v{TT[1]}, s[{S['mask1']}:{S['mask1']+1}]")


def wave_reduce(a, op, v, sdst):
    for r in (8, 4, 2, 1):
        a.I(f"{op}_dpp v{v}, v{v}, v{v} row_ror:{r} row_mask:0xf bank_mask:0xf")
    a.I(f"{op}_dpp v{v}, v{v}, v{v} row_bcast:15 row_mask:0xa bank_mask:0xf")
    a.I(f"{op}_dpp v{v}, v{v}, v{v} row_bcast:31 row_mask:0xc bank_mask:0xf")
    a.I(f"v_readlane_b32 s{sdst}, v{v}, 63")


def round_bf16_pairs(a, regs, tmp):
    a.I(f"v_cvt_pk_bf16_f32 v{tmp[0]}, v{regs[0]}, v{regs[1]}")
    a.I(f"v_cvt_pk_bf16_f32 v{tmp[1]}, v{regs[2]}, v{regs[3]}")
    a.I(f"v_lshlrev_b32 v{regs[0]}, 16, v{tmp[0]}")
    a.I(f"v_and_b32 v{regs[1]}, 0xffff0000, v{tmp[0]}")
    a.I(f"v_lshlrev_b32 v{regs[2]}, 16, v{tmp[1]}")
    a.I(f"v_and_b32 v{regs[3]}, 0xffff0000, v{tmp[1]}")


def stream_main(a, cfg, S, L, issued, stamp=None):
    stamp = stamp or (lambda k: None)
    a.I(f"s_mov_b32 s{S['mask0']}, 0xaaaaaaaa")
    a.I(f"s_mov_b32 s{S['mask0']+1}, 0xaaaaaaaa")
    a.I(f"s_mov_b32 s{S['mask1']}, 0xcccccccc")
    a.I(f"s_mov_b32 s{S['mask1']+1}, 0xcccccccc")
    a.I(f"s_mov_b32 s{S['sello']}, 0x05040100")
    a.I(f"s_mov_b32 s{S['selhi']}, 0x07060302")
    a.I(f"s_mov_b32 s{S['log2e']}, 0x{LOG2E:x}")
    a.I(f"v_and_b32 v{V_T0}, 31, v{V_LANE}")
    a.I(f"v_mul_u32_u24 v{V_T0}, 12, v{V_T0}")
    a.I(f"v_lshrrev_b32 v{V_T1}, 5, v{V_LANE}")
    NK = 128 + cfg.kx
    SC4, VI = 156, 157
    if cfg.kx:
        assert D == 32 and cfg.kx in (2, 4, 6, 8)
        a.I(f"v_mul_u32_u24 v{V_PADDR}, 320, v{V_T1}")
        a.I(f"s_mul_i32 s{S['tmp']}, s{S['wave']}, 640")
    else:
        a.I(f"v_lshlrev_b32 v{V_PADDR}, 8, v{V_T1}")
        a.I(f"s_lshl_b32 s{S['tmp']}, s{S['wave']}, 9")
    a.I(f"s_add_u32 s{S['tmp']}, s{S['tmp']}, {L['P']}")
    a.I(f"v_add_u32 v{V_PADDR}, s{S['tmp']}, v{V_PADDR}")
    x = V_X
    a.I(f"v_bfe_u32 v{x[0]}, v{V_LANE}, 4, 1")
    a.I(f"v_lshl_add_u32 v{V_PW}, v{x[0]}, 1, v{V_PADDR}")
    a.I(f"v_bfe_u32 v{x[0]}, v{V_LANE}, 3, 1")
    a.I(f"v_lshl_add_u32 v{V_PW}, v{x[0]}, 2, v{V_PW}")
    a.I(f"v_bfe_u32 v{x[0]}, v{V_LANE}, 2, 1")
    a.I(f"v_lshl_add_u32 v{V_PW}, v{x[0]}, 3, v{V_PW}")
    a.I(f"v_bfe_u32 v{x[0]}, v{V_LANE}, 0, 1")
    a.I(f"v_lshl_add_u32 v{V_PW}, v{x[0]}, 4, v{V_PW}")
    a.I(f"v_bfe_u32 v{x[0]}, v{V_LANE}, 1, 1")
    a.I(f"v_lshl_add_u32 v{V_PW}, v{x[0]}, 5, v{V_PW}")
    if cfg.kx:
        a.I(f"v_bfe_u32 v{VI}, v{V_LANE}, 4, 1")
        for bit, sh in ((3, 1), (2, 2), (0, 3), (1, 4)):
            a.I(f"v_bfe_u32 v{x[0]}, v{V_LANE}, {bit}, 1")
            a.I(f"v_lshl_or_b32 v{VI}, v{x[0]}, {sh}, v{VI}")
    for k in range(6):
        a.I(f"v_mov_b32 v{ACC[k]}, 0")
    stamp(1)
    a.I('s_barrier')
    stamp(2)
    a.I(f"ds_read_b32 v{V_Q[0]}, v{V_T0} offset:{L['QV']}")
    a.I(f"ds_read_b32 v{V_Q[1]}, v{V_T0} offset:{L['QV']+4}")
    a.I(f"ds_read_b32 v{V_Q[2]}, v{V_T0} offset:{L['QV']+8}")
    a.I('s_waitcnt lgkmcnt(0)')

    W = cfg.W
    pend = None
    for t in range(NK):
        s = slot(t)
        a.vm_wait(('ld', t))
        leaf = A_[t & 1]
        a.I(f"v_dot2_f32_bf16 v{leaf}, v{s}, v{V_Q[0]}, 0")
        a.I(f"v_dot2c_f32_bf16 v{leaf}, v{s+1}, v{V_Q[1]}") if False else a.I(f"v_dot2_f32_bf16 v{leaf}, v{s+1}, v{V_Q[1]}, v{leaf}")
        a.I(f"v_dot2_f32_bf16 v{leaf}, v{s+2}, v{V_Q[2]}, v{leaf}")
        if cfg.late_skip:
            target = min(t + D, NK - 1 + W)
        else:
            target = max(D - 1, t + W)
        while issued <= target:
            emit_issue(a, cfg, issued, S)
            issued += 1
        k_tree(a, t, S, dst=SC4 if t >= 128 else None)
        for _ in range(cfg.pad):
            a.I("s_mov_b32 s63, 0x12345")
    if cfg.kx:
        last = (NK - 1) % 32
        for lvl in range(1, 6):
            end = (((last >> lvl) + 1) << lvl) - 1
            if end > last:
                k_tree(a, 128 + end, S, dst=SC4, only=lvl)
    stamp(3)
    sc = list(SC)
    round_bf16_pairs(a, sc, (V_T0, V_T1))
    a.I(f"s_mov_b32 s{S['tmp']}, 0x{SCALE:x}")
    for r in sc:
        a.I(f"v_mul_f32 v{r}, s{S['tmp']}, v{r}")
    round_bf16_pairs(a, sc, (V_T0, V_T1))
    if cfg.kx:
        a.I(f"v_cvt_pk_bf16_f32 v{V_T0}, v{SC4}, v{SC4}")
        a.I(f"v_lshlrev_b32 v{SC4}, 16, v{V_T0}")
        a.I(f"v_mul_f32 v{SC4}, s{S['tmp']}, v{SC4}")
        a.I(f"v_cvt_pk_bf16_f32 v{V_T0}, v{SC4}, v{SC4}")
        a.I(f"v_lshlrev_b32 v{SC4}, 16, v{V_T0}")
        a.I(f"v_mov_b32 v{V_T1}, 0xff800000")
        a.I(f"s_cmp_eq_u32 s{S['half']}, 0")
        a.I(f"s_cselect_b32 s{S['tmp']}, {NK - 96}, {256 - NK - 96}")
        a.I(f"v_cmp_gt_u32 vcc, s{S['tmp']}, v{VI}")
        a.I(f"v_cndmask_b32 v{SC[3]}, v{V_T1}, v{SC[3]}, vcc")
        a.I(f"s_cmp_eq_u32 s{S['half']}, 0")
        a.I(f"s_cselect_b32 s{S['tmp']}, {NK - 128}, 0")
        a.I(f"v_cmp_gt_u32 vcc, s{S['tmp']}, v{VI}")
        a.I(f"v_cndmask_b32 v{SC4}, v{V_T1}, v{SC4}, vcc")
    a.I(f"v_max_f32 v{V_T0}, v{sc[0]}, v{sc[1]}")
    a.I(f"v_max3_f32 v{V_T0}, v{V_T0}, v{sc[2]}, v{sc[3]}")
    if cfg.kx:
        a.I(f"v_max_f32 v{V_T0}, v{V_T0}, v{SC4}")
    wave_reduce(a, 'v_max_f32', V_T0, S['m'])
    for k, r in enumerate(sc):
        a.I(f"v_subrev_f32 v{x[k]}, s{S['m']}, v{r}")
    for k in range(4):
        a.I(f"v_mul_f32 v{x[k]}, s{S['log2e']}, v{x[k]}")
    for k in range(4):
        a.I(f"v_exp_f32 v{x[k]}, v{x[k]}")
    a.I(f"v_add_f32 v{V_T0}, v{x[0]}, v{x[1]}")
    a.I(f"v_add_f32 v{V_T1}, v{x[2]}, v{x[3]}")
    a.I(f"v_add_f32 v{V_T0}, v{V_T0}, v{V_T1}")
    if cfg.kx:
        a.I(f"v_subrev_f32 v{x[4]}, s{S['m']}, v{SC4}")
        a.I(f"v_mul_f32 v{x[4]}, s{S['log2e']}, v{x[4]}")
        a.I(f"v_exp_f32 v{x[4]}, v{x[4]}")
        a.I(f"v_add_f32 v{V_T0}, v{V_T0}, v{x[4]}")
    wave_reduce(a, 'v_add_f32', V_T0, S['l'])
    a.I(f"s_lshl_b32 s{S['tmp']}, s{S['wave']}, 3")
    a.I(f"s_add_u32 s{S['tmp']}, s{S['tmp']}, {L['STATS']}")
    a.I(f"v_mov_b32 v{x[4]}, s{S['m']}")
    a.I(f"v_mov_b32 v{x[5]}, s{S['l']}")
    a.I(f"v_mov_b32 v{V_T0}, s{S['tmp']}")
    a.I(f"ds_write_b32 v{V_T0}, v{x[4]}")
    a.I(f"ds_write_b32 v{V_T0}, v{x[5]} offset:4")
    a.I('s_waitcnt lgkmcnt(0)')
    a.I('s_barrier')
    stamp(4)
    while issued <= NK - 1 + min(D, cfg.DX):
        a.vm_window(cfg.WX - 1)
        emit_issue(a, cfg, issued, S)
        issued += 1
    stamp(5)
    a.I('s_barrier')
    stamp(6)
    a.I(f"v_mov_b32 v{V_T0}, {L['FIN']}")
    a.I(f"ds_read_b64 v[{PG[1]}:{PG[1]+1}], v{V_T0}")
    a.I('s_waitcnt lgkmcnt(0)')
    for k, r in enumerate(sc):
        a.I(f"v_sub_f32 v{x[k]}, v{r}, v{PG[1]}")
    for k in range(4):
        a.I(f"v_mul_f32 v{x[k]}, s{S['log2e']}, v{x[k]}")
    for k in range(4):
        a.I(f"v_exp_f32 v{x[k]}, v{x[k]}")
    for k in range(4):
        a.I(f"v_mul_f32 v{x[k]}, v{x[k]}, v{PG[1]+1}")
    a.I(f"v_cvt_pk_bf16_f32 v{x[4]}, v{x[0]}, v{x[1]}")
    a.I(f"v_cvt_pk_bf16_f32 v{x[5]}, v{x[2]}, v{x[3]}")
    a.I(f"ds_write_b16 v{V_PW}, v{x[4]}")
    a.I(f"ds_write_b16_d16_hi v{V_PW}, v{x[4]} offset:64")
    a.I(f"ds_write_b16 v{V_PW}, v{x[5]} offset:128")
    a.I(f"ds_write_b16_d16_hi v{V_PW}, v{x[5]} offset:192")
    if cfg.kx:
        a.I(f"v_sub_f32 v{x[0]}, v{SC4}, v{PG[1]}")
        a.I(f"v_mul_f32 v{x[0]}, s{S['log2e']}, v{x[0]}")
        a.I(f"v_exp_f32 v{x[0]}, v{x[0]}")
        a.I(f"v_mul_f32 v{x[0]}, v{x[0]}, v{PG[1]+1}")
        a.I(f"v_cvt_pk_bf16_f32 v{x[4]}, v{x[0]}, v{x[0]}")
        a.I(f"ds_write_b16 v{V_PW}, v{x[4]} offset:256")
    a.I(f"ds_read_b128 v[{PG[0]}:{PG[0]+3}], v{V_PADDR}")
    a.I(f"ds_read_b128 v[{PG[1]}:{PG[1]+3}], v{V_PADDR} offset:16")

    if cfg.early_w == 2:
        a.I("s_setprio 1")
    NP = NK // 2
    NG = (NP + 3) // 4
    for j in range(NP):
        g = j // 4
        if j % 4 == 0:
            a.I('s_waitcnt lgkmcnt(1)' if g + 1 < NG else 's_waitcnt lgkmcnt(0)')
        P = PG[g & 1] + (j % 4)
        t0, t1 = NK + 2 * j, NK + 2 * j + 1
        s0, s1 = slot(t0), slot(t1)
        a.vm_wait(('ld', t1))
        for k in range(3):
            tl, th = PT[(2 * k) % 4], PT[(2 * k + 1) % 4]
            a.I(f"v_perm_b32 v{tl}, v{s1+k}, v{s0+k}, s{S['sello']}")
            a.I(f"v_perm_b32 v{th}, v{s1+k}, v{s0+k}, s{S['selhi']}")
            a.I(f"v_dot2c_f32_bf16 v{ACC[2*k]}, v{tl}, v{P}")
            a.I(f"v_dot2c_f32_bf16 v{ACC[2*k+1]}, v{th}, v{P}")
        if j % 4 == 3 and g + 2 < NG:
            a.I(f"ds_read_b128 v[{PG[g & 1]}:{PG[g & 1]+3}], v{V_PADDR} offset:{16*(g+2)}")
        if j == cfg.TJ and cfg.early_w != 1:
            lab = a.newlabel('tk')
            a.I(f"s_cmp_eq_u32 s{S['wave']}, 0")
            a.I(f"s_cbranch_scc0 {lab}")
            a.I(f"v_mov_b32 v{V_T0}, {L['TICKET'] + 4}")
            a.I(f"v_mov_b32 v{V_T1}, 1")
            a.I(f"ds_write_b32 v{V_T0}, v{V_T1}")
            a.label(lab)
            lg_extra = True
        for _ in range(2 * cfg.pad):
            a.I("s_mov_b32 s63, 0x12345")
        target = min(2 * NK - 1, t1 + min(cfg.WV, D))
        while issued <= target:
            emit_issue(a, cfg, issued, S)
            issued += 1
        if j == cfg.TD and cfg.early_w == 2:
            lab = a.newlabel('td')
            a.I(f"s_cmp_eq_u32 s{S['wave']}, 7")
            a.I(f"s_cbranch_scc0 {lab}")
            a.I(f"v_mov_b32 v{V_T0}, {L['TICKET'] + 8}")
            a.I(f"v_mov_b32 v{V_T1}, 1")
            a.I(f"ds_write_b32 v{V_T0}, v{V_T1}")
            a.label(lab)
    stamp(7)
    for k in range(3):
        a.I(f"v_permlane32_swap_b32 v{ACC[k]}, v{ACC[k+3]}")
        a.I(f"v_add_f32 v{ACC[k]}, v{ACC[k]}, v{ACC[k+3]}")
    a.I(f"v_and_b32 v{V_T0}, 31, v{V_LANE}")
    a.I(f"v_mul_u32_u24 v{V_T0}, 24, v{V_T0}")
    a.I(f"v_lshrrev_b32 v{V_T1}, 5, v{V_LANE}")
    a.I(f"v_mad_u32_u24 v{V_T0}, v{V_T1}, 12, v{V_T0}")
    a.I(f"s_mul_i32 s{S['tmp']}, s{S['wave']}, 768")
    a.I(f"s_add_u32 s{S['tmp']}, s{S['tmp']}, {L['OPART']}")
    a.I(f"v_add_u32 v{V_T0}, s{S['tmp']}, v{V_T0}")
    for k in range(3):
        a.I(f"ds_write_b32 v{V_T0}, v{ACC[k]} offset:{4*k}")
    a.I('s_waitcnt lgkmcnt(0)')
    a.I('s_barrier')
    stamp(8)
```

```python
import sys
sys.path.insert(0, 'gen')
from asmdsl import Asm
import stream as st
from stream import StreamCfg, LOG2E

KNAME = 'adaLN_cond__gqa_block_cached__glu_gated_bilinear__decode_kernel'

WS_MOD, WS_Q, WS_ML, WS_O, WS_Y, WS_PD, WS_DBG = 0, 0x8000, 0x38000, 0x40000, 0x70000, 0x84000, 0x100000
WS_SIZE = 0x200000
L_ACT = 0x0000
L_RED = 0x3200
L_QV = 0x4200
L_STATS = 0x4400
L_FIN = 0x4480
L_HFLAG = 0x4500
L_LNST = 0x4540
L_P = 0x4600
L_OPART = 0x5A00
L_W = 0x7200
L_WD = L_W + 81920
L_X1 = 0x6E00
LDS_BYTES = L_W + 81920 + 40960 + 512
LDS = dict(QV=L_QV, STATS=L_STATS, FIN=L_FIN, P=L_P, OPART=L_OPART, TICKET=L_FIN + 8)

SPIN_MAX = 1 << 16
NANF = 0x7fc00000
NANB = 0x7fc07fc0
EPS = 0x3727c5ac

S = dict(srdK=32, srdV=36, srdW=40, wave=44, tmp=45, soff=46, mask0=48, mask1=50, sello=52, selhi=53, log2e=54,
         m=55, l=56, b=57, h=58, half=59, spin=62)
S_PRE, S_BAND, S_POST, S_NB, S_KG = 80, 81, 82, 83, 84
S_KH, S_LATE, S_PHASE, S_DT = 89, 90, 91, 92
MASK_N4_LO = 0x000f000f


class Gen:
    def __init__(self, cfg, diag=False, name=KNAME):
        self.a = Asm()
        self.cfg = cfg
        self.diag = diag
        self.name = name

    def stamp(self, k):
        if not self.diag:
            return
        a = self.a
        a.I("s_memrealtime s[60:61]")
        a.I("s_waitcnt lgkmcnt(0)")
        a.I(f"s_mov_b32 s{64+k if k < 16 else 93+k-16}, s60")

    def srd(self, dst, ptr, size, off=None):
        a = self.a
        if off is None:
            a.I(f"s_mov_b32 s{dst}, s{ptr}")
            a.I(f"s_mov_b32 s{dst+1}, s{ptr+1}")
        else:
            a.I(f"s_add_u32 s{dst}, s{ptr}, s{off}")
            a.I(f"s_addc_u32 s{dst+1}, s{ptr+1}, 0")
        a.I(f"s_mov_b32 s{dst+2}, {size}")
        a.I(f"s_mov_b32 s{dst+3}, 0x20000")

    def canon(self, regs, nanreg=None):
        a = self.a
        for r in regs:
            a.I(f"v_min_u32 v{r}, -2, v{r}")

    def poll_sel(self, loads, label, t, first_issued=False):
        a = self.a
        n = len(loads)
        a.I(f"s_mov_b32 s63, {(1 << n) - 1}")
        a.I("s_mov_b32 s62, 0")
        if first_issued:
            a.I(f"s_branch {label}_chk")
        a.label(label)
        for i, (ld, regs) in enumerate(loads):
            a.I(f"s_bitcmp1_b32 s63, {i}")
            a.I(f"s_cbranch_scc0 {label}_s{i}")
            a.I(ld)
            a.label(f"{label}_s{i}")
        a.label(f"{label}_chk")
        a.I("s_add_u32 s62, s62, 1")
        a.I("s_waitcnt vmcnt(0)")
        for i, (ld, regs) in enumerate(loads):
            r = regs
            a.I(f"v_max3_u32 v{t}, v{r[0]}, v{r[1]}, v{r[2]}")
            a.I(f"v_max_u32 v{t}, v{t}, v{r[3]}")
            a.I(f"v_cmp_eq_u32 vcc, -1, v{t}")
            a.I("s_cmp_eq_u64 vcc, 0")
            a.I(f"s_cbranch_scc0 {label}_p{i}")
            a.I(f"s_bitset0_b32 s63, {i}")
            a.label(f"{label}_p{i}")
        a.I("s_cmp_eq_u32 s63, 0")
        a.I(f"s_cbranch_scc1 {label}_ok")
        a.I(f"s_cmp_lt_u32 s62, {SPIN_MAX}")
        a.I(f"s_cbranch_scc1 {label}")
        a.label(f"{label}_ok")

    def poll(self, loads, regs, label, pre=None):
        a = self.a
        a.I("s_mov_b32 s62, 0")
        a.label(label)
        for ld in loads:
            a.I(ld)
        a.I("s_add_u32 s62, s62, 1")
        a.I("s_waitcnt vmcnt(0)")
        rs = list(regs)
        t = pre
        first = True
        i = 0
        while i < len(rs):
            if first:
                if len(rs) >= 3:
                    a.I(f"v_max3_u32 v{t}, v{rs[0]}, v{rs[1]}, v{rs[2]}"); i = 3
                elif len(rs) == 2:
                    a.I(f"v_max_u32 v{t}, v{rs[0]}, v{rs[1]}"); i = 2
                else:
                    a.I(f"v_mov_b32 v{t}, v{rs[0]}"); i = 1
                first = False
            elif i + 1 < len(rs):
                a.I(f"v_max3_u32 v{t}, v{t}, v{rs[i]}, v{rs[i+1]}"); i += 2
            else:
                a.I(f"v_max_u32 v{t}, v{t}, v{rs[i]}"); i += 1
        a.I(f"v_cmp_eq_u32 vcc, -1, v{t}")
        a.I("s_cmp_eq_u64 vcc, 0")
        a.I(f"s_cbranch_scc1 {label}_ok")
        a.I(f"s_cmp_lt_u32 s62, {SPIN_MAX}")
        a.I(f"s_cbranch_scc1 {label}")
        a.label(f"{label}_ok")

    def poll_counter(self, off, expect, label, vz, vt):
        a = self.a
        a.I(f"v_mov_b32 v{vz}, {off}")
        a.I("s_mov_b32 s62, 0")
        a.I("s_mov_b64 exec, 1")
        a.label(label)
        a.I(f"global_load_dword v{vt}, v{vz}, s[28:29] sc1")
        a.I("s_add_u32 s62, s62, 1")
        a.I("s_waitcnt vmcnt(0)")
        a.I(f"v_readfirstlane_b32 s45, v{vt}")
        a.I(f"s_cmp_ge_u32 s45, {expect}")
        a.I(f"s_cbranch_scc1 {label}_ok")
        a.I(f"s_cmp_lt_u32 s62, {SPIN_MAX}")
        a.I(f"s_cbranch_scc1 {label}")
        a.label(f"{label}_ok")
        a.I("s_mov_b64 exec, -1")

    def hsync(self, k, label, vz, vt):
        a = self.a
        a.I("s_waitcnt lgkmcnt(0)")
        a.I("s_lshl_b32 s45, s44, 2")
        a.I(f"s_add_u32 s45, s45, {L_HFLAG}")
        a.I(f"v_mov_b32 v{vz}, s45")
        a.I(f"v_mov_b32 v{vt}, {k}")
        a.I(f"ds_write_b32 v{vz}, v{vt}")
        a.I(f"v_mov_b32 v{vz}, {L_HFLAG}")
        a.I("s_mov_b32 s62, 0")
        a.label(label)
        a.I(f"ds_read_b128 v[{vt}:{vt+3}], v{vz}")
        a.I("s_add_u32 s62, s62, 1")
        a.I("s_waitcnt lgkmcnt(0)")
        a.I(f"v_min3_u32 v{vt}, v{vt}, v{vt+1}, v{vt+2}")
        a.I(f"v_min_u32 v{vt}, v{vt}, v{vt+3}")
        a.I(f"v_readfirstlane_b32 s45, v{vt}")
        a.I(f"s_cmp_ge_u32 s45, {k}")
        a.I(f"s_cbranch_scc1 {label}_ok")
        a.I(f"s_cmp_lt_u32 s62, {SPIN_MAX*4}")
        a.I(f"s_cbranch_scc1 {label}")
        a.label(f"{label}_ok")

    def bf16_round(self, regs, tmp):
        a = self.a
        for i in range(0, len(regs), 2):
            a.I(f"v_cvt_pk_bf16_f32 v{tmp}, v{regs[i]}, v{regs[i+1]}")
            a.I(f"v_lshlrev_b32 v{regs[i]}, 16, v{tmp}")
            a.I(f"v_and_b32 v{regs[i+1]}, 0xffff0000, v{tmp}")

    def unpack(self, src, lo, hi):
        a = self.a
        a.I(f"v_lshlrev_b32 v{lo}, 16, v{src}")
        a.I(f"v_and_b32 v{hi}, 0xffff0000, v{src}")

    def wave_sum_bcast(self, v, sdst):
        st.wave_reduce(self.a, 'v_add_f32', v, sdst)

    def ln_denom(self, vvar, vt):
        a = self.a
        a.I(f"v_cvt_pk_bf16_f32 v{vt}, v{vvar}, v{vvar}")
        a.I(f"v_lshlrev_b32 v{vvar}, 16, v{vt}")
        a.I(f"v_add_f32 v{vvar}, 0x{EPS:x}, v{vvar}")
        a.I(f"v_cvt_pk_bf16_f32 v{vt}, v{vvar}, v{vvar}")
        a.I(f"v_lshlrev_b32 v{vvar}, 16, v{vt}")
        a.I(f"v_sqrt_f32 v{vt}, v{vvar}")
        a.I(f"v_rcp_f32 v{vt+1}, v{vt}")
        a.I(f"v_fma_f32 v{vt+2}, -v{vt}, v{vt}, v{vvar}")
        a.I(f"v_mul_f32 v{vt+1}, 0.5, v{vt+1}")
        a.I(f"v_fma_f32 v{vt}, v{vt+2}, v{vt+1}, v{vt}")
        a.I(f"v_cvt_pk_bf16_f32 v{vt}, v{vt}, v{vt}")
        a.I(f"v_lshlrev_b32 v{vvar}, 16, v{vt}")

    def div_by(self, num, den, rcp, t):
        a = self.a
        a.I(f"v_mul_f32 v{t}, v{num}, v{rcp}")
        a.I(f"v_fma_f32 v{num}, -v{t}, v{den}, v{num}")
        a.I(f"v_fma_f32 v{num}, v{num}, v{rcp}, v{t}")

    def entry(self):
        a = self.a
        a.raw(f"; @launch grid=(256,1,1) block=(768,1,1) lds={LDS_BYTES}")
        a.raw('.amdgcn_target "amdgcn-amd-amdhsa--gfx950"\n.text')
        a.raw(f".globl {self.name}\n.p2align 8\n.type {self.name},@function\n{self.name}:")
        a.I("s_cmp_ge_u32 s2, 256")
        a.I("s_cbranch_scc1 L_end")
        if self.cfg.dbgt:
            a.I("s_memrealtime s[98:99]")
        a.I("s_load_dwordx16 s[4:19], s[0:1], 0")
        a.I("s_load_dwordx8 s[20:27], s[0:1], 64")
        a.I("s_load_dwordx4 s[28:31], s[0:1], 96")
        a.I("v_lshrrev_b32 v1, 6, v0")
        a.I("v_and_b32 v5, 63, v0")
        a.I("v_readfirstlane_b32 s44, v1")
        a.I("s_lshr_b32 s45, s2, 1")
        a.I(f"s_mov_b32 s{S_PRE}, 2")
        a.I("s_bitcmp1_b32 s2, 0")
        a.I("s_cbranch_scc1 L_early_q")
        a.I(f"s_sub_u32 s{S_BAND}, s45, 4")
        a.I(f"s_cmp_lt_u32 s{S_BAND}, 60")
        a.I(f"s_cselect_b32 s{S_PRE}, 1, 0")
        a.I("s_cmp_lt_u32 s45, 64")
        a.I("s_cbranch_scc1 L_early_done")
        a.I(f"s_mov_b32 s{S_PRE}, 2")
        a.I("s_add_u32 s45, s45, 64")
        a.label("L_early_q")
        a.I(f"s_lshr_b32 s{S_BAND}, s45, 1")
        a.I(f"s_and_b32 s{S_KH}, s45, 1")
        a.label("L_early_done")
        a.I("s_cmp_lt_u32 s44, 4")
        a.I("s_cbranch_scc0 L_stream")

    def pair_unit(self, sv, sdst):
        a = self.a
        a.I(f"s_and_b32 s46, s{sv}, 7")
        a.I(f"s_lshr_b32 s47, s{sv}, 4")
        a.I("s_lshl_b32 s47, s47, 3")
        a.I("s_add_u32 s46, s46, s47")
        a.I(f"s_bfe_u32 s47, s{sv}, 0x10003")
        a.I(f"s_lshl_b32 s{sdst}, s46, 1")
        a.I(f"s_add_u32 s{sdst}, s{sdst}, s47")

    def roles_rest(self):
        a = self.a
        if self.cfg.xp == 0:
            a.I("s_and_b32 s45, s2, 7")
            a.I("s_lshr_b32 s46, s2, 3")
            a.I("s_and_b32 s47, s46, 3")
            a.I("s_lshl_b32 s47, s47, 3")
            a.I("s_add_u32 s58, s45, s47")
            a.I("s_lshr_b32 s46, s2, 5")
            a.I("s_lshr_b32 s57, s46, 1")
            a.I("s_and_b32 s59, s46, 1")
        else:
            a.I("s_and_b32 s59, s2, 1")
            a.I(f"s_xor_b32 s45, s2, {self.cfg.xp}")
            a.I("s_cmp_eq_u32 s59, 0")
            a.I("s_cselect_b32 s45, s2, s45")
            a.I("s_bfe_u32 s45, s45, 0x20001")
            a.I("s_lshr_b32 s46, s2, 3")
            a.I("s_lshr_b32 s57, s46, 3")
            a.I("s_and_b32 s46, s46, 7")
            a.I("s_lshl_b32 s46, s46, 2")
            a.I("s_add_u32 s58, s46, s45")
        a.I(f"s_mov_b32 s{S_POST}, 0")
        a.I("s_lshr_b32 s45, s2, 1")
        a.I("s_mul_i32 s46, s45, 6554")
        a.I("s_lshr_b32 s46, s46, 16")
        a.I(f"s_mov_b32 s{S_KG}, s46")
        a.I("s_mul_i32 s47, s46, 10")
        a.I(f"s_sub_u32 s{S_NB}, s45, s47")
        a.I("s_cmp_lt_u32 s45, 80")
        a.I(f"s_cselect_b32 s{S_POST}, 1, 0")
        lab = a.newlabel('roles_done')
        a.I("s_bitcmp1_b32 s2, 0")
        a.I(f"s_cbranch_scc0 {lab}")
        a.I(f"s_mov_b32 s{S_NB}, s45")
        a.I("s_cmp_lt_u32 s45, 48")
        a.I(f"s_cselect_b32 s{S_POST}, 2, 0")
        a.label(lab)

    def prefetch_weights(self):
        a = self.a
        pol = self.cfg.pfpol
        lab = a.newlabel('pf')
        a.I("s_cmp_eq_u32 s44, 0")
        a.I(f"s_cbranch_scc1 {lab}_done")
        a.I("v_lshlrev_b32 v8, 4, v5")
        if self.cfg.pfs:
            for i, p in enumerate((16, 18, 20)):
                a.I(f"s_cmp_eq_u32 s44, {i+1}")
                a.I(f"s_cbranch_scc0 {lab}_n{i}")
                a.I("s_mul_i32 s45, s2, 7680")
                self.srd(32, p, 7680, off=45)
                a.I("s_mov_b32 s46, 0")
                a.I("s_mov_b32 s63, 8")
                a.label(f"{lab}_t{i}")
                a.I(f"s_waitcnt vmcnt({self.cfg.PW - 1})")
                a.I(f"buffer_load_dwordx4 v[12:15], v8, s[32:35], s46 offen {pol}")
                a.I("s_add_u32 s46, s46, 1024")
                a.I("s_sub_u32 s63, s63, 1")
                a.I("s_cmp_lg_u32 s63, 0")
                a.I(f"s_cbranch_scc1 {lab}_t{i}")
                a.label(f"{lab}_n{i}")
            a.I(f"s_branch {lab}_done")
        a.I("s_cmp_eq_u32 s44, 3")
        a.I(f"s_cbranch_scc1 {lab}_small")
        a.I("s_mul_i32 s45, s2, 30720")
        self.srd(32, 12, 30720, off=45)
        a.I("s_sub_u32 s46, s44, 1")
        a.I("s_mul_i32 s46, s46, 15360")
        a.I("s_mov_b32 s63, 15")
        a.label(f"{lab}_l1")
        a.I(f"s_waitcnt vmcnt({self.cfg.PW - 1})")
        a.I(f"buffer_load_dwordx4 v[12:15], v8, s[32:35], s46 offen {pol}")
        a.I("s_add_u32 s46, s46, 1024")
        a.I("s_sub_u32 s63, s63, 1")
        a.I("s_cmp_lg_u32 s63, 0")
        a.I(f"s_cbranch_scc1 {lab}_l1")
        a.I(f"s_branch {lab}_done")
        a.label(f"{lab}_small")
        for i, p in enumerate((16, 18, 20)):
            a.I("s_mul_i32 s45, s2, 7680")
            self.srd(32, p, 7680, off=45)
            a.I("s_mov_b32 s46, 0")
            a.I("s_mov_b32 s63, 8")
            a.label(f"{lab}_s{i}")
            a.I(f"s_waitcnt vmcnt({self.cfg.PW - 1})")
            a.I(f"buffer_load_dwordx4 v[12:15], v8, s[32:35], s46 offen {pol}")
            a.I("s_add_u32 s46, s46, 1024")
            a.I("s_sub_u32 s63, s63, 1")
            a.I("s_cmp_lg_u32 s63, 0")
            a.I(f"s_cbranch_scc1 {lab}_s{i}")
        a.label(f"{lab}_done")
        a.fence(2)

    def v_weights(self):
        a = self.a
        WN = self.cfg.WW
        a.I(f"s_cmp_eq_u32 s{S_POST}, 1")
        a.I("s_cbranch_scc0 L_vw_gu")
        a.I(f"s_mul_i32 s45, s{S_KG}, {768*1280}")
        a.I(f"s_lshl_b32 s46, s{S_NB}, 7")
        a.I("s_add_u32 s47, s45, s46")
        self.srd(32, 12, 768 * 1280, off=47)
        self.dma_voff128(1280, 8, 9, 6, 7)
        a.I("s_sub_u32 s63, s44, 1")
        a.I(f"s_mul_i32 s46, s63, {256*1280}")
        a.I("s_lshl_b32 s47, s63, 15")
        a.I(f"s_add_u32 s47, s47, {L_W}")
        self.dma_loop(32, 32, 8, 9, 47, 46, 8 * 1280, "L_vw_wo_loop", window=WN + 1)
        a.I("s_branch L_vw_done")
        a.label("L_vw_gu")
        a.I(f"s_cmp_eq_u32 s{S_POST}, 2")
        a.I("s_cbranch_scc0 L_vw_done")
        a.I("s_cmp_eq_u32 s44, 3")
        a.I("s_cbranch_scc1 L_vw_dn")
        a.I(f"s_lshl_b32 s47, s{S_NB}, 6")
        a.I("s_cmp_eq_u32 s44, 2")
        a.I("s_cselect_b32 s48, s18, s16")
        a.I("s_cselect_b32 s49, s19, s17")
        self.srd(32, 48, 640 * 3072, off=47)
        self.dma_voff64(3072, 8, 6, 7)
        a.I("s_mov_b32 s46, 0")
        a.I("s_sub_u32 s47, s44, 1")
        a.I("s_mul_i32 s47, s47, 40960")
        a.I(f"s_add_u32 s47, s47, {L_W}")
        self.dma_loop(32, 40, 8, 8, 47, 46, 16 * 3072, "L_vw_gu_loop", window=WN)
        a.I("s_branch L_vw_done")
        a.label("L_vw_dn")
        a.I(f"s_mul_i32 s45, s{S_NB}, 40960")
        self.srd(32, 20, 40960, off=45)
        self.wdown_offsets()
        a.I("s_mov_b32 s46, 0")
        a.I(f"s_mov_b32 s47, {L_WD}")
        for q in range(8):
            for m in range(5):
                a.I("s_mov_b32 m0, s47")
                a.I("s_add_u32 s47, s47, 1024")
                a.I(f"buffer_load_dwordx4 v{(153 if (q >> 1) & 1 else 148) + m}, s[32:35], s46 offen {self.cfg.ntW} lds")
            if q < 7:
                a.I("s_add_u32 s46, s46, 5120")

    def wdown_offsets(self):
        a = self.a
        for m in range(5):
            a.I(f"v_lshlrev_b32 v6, 4, v5")
            a.I(f"v_add_u32 v6, {1024*m}, v6")
            a.I("v_mul_u32_u24 v7, 3277, v6")
            a.I("v_lshrrev_b32 v7, 22, v7")
            a.I("v_mul_u32_u24 v8, 1280, v7")
            a.I("v_sub_u32 v6, v6, v8")
            a.I("v_lshlrev_b32 v7, 5, v7")
            a.I("v_xor_b32 v9, v6, v7")
            a.I(f"v_add_u32 v{148+m}, v8, v9")
            a.I("v_xor_b32 v9, 128, v9")
            a.I(f"v_add_u32 v{153+m}, v8, v9")

    def roles_from_ticket(self, sfx=""):
        a = self.a
        a.I(f"v_mov_b32 v6, {L_FIN + 8}")
        a.I("ds_read_b32 v7, v6")
        a.I("s_waitcnt lgkmcnt(0)")
        a.I("v_readfirstlane_b32 s45, v7")
        if self.cfg.tkrot:
            r = self.cfg.tkrot
            a.I(f"s_add_u32 s46, s45, 48")
            a.I(f"s_sub_u32 s47, s45, {r}")
            a.I(f"s_cmp_lt_u32 s45, {r + 48}")
            a.I("s_cselect_b32 s47, s47, s45")
            a.I(f"s_cmp_lt_u32 s45, {r}")
            a.I("s_cselect_b32 s45, s46, s47")
        a.I("s_cmp_lt_u32 s45, 40")
        a.I(f"s_cselect_b32 s{S_DT}, s45, -1")
        a.I(f"s_mov_b32 s{S_NB}, s45")
        a.I("s_cmp_lt_u32 s45, 48")
        a.I(f"s_cselect_b32 s{S_POST}, 2, 0")
        a.I(f"s_cbranch_scc1 L_ticket_done{sfx}")
        a.I("s_sub_u32 s45, s45, 48")
        a.I("s_cmp_lt_u32 s45, 80")
        a.I(f"s_cselect_b32 s{S_POST}, 1, 0")
        a.I("s_mul_i32 s46, s45, 6554")
        a.I("s_lshr_b32 s46, s46, 16")
        a.I(f"s_mov_b32 s{S_KG}, s46")
        a.I("s_mul_i32 s47, s46, 10")
        a.I(f"s_sub_u32 s{S_NB}, s45, s47")
        a.label(f"L_ticket_done{sfx}")

    def code_prefetch(self, wave):
        a = self.a
        a.I(f"s_cmp_eq_u32 s44, {wave}")
        a.I("s_cbranch_scc0 L_nopf")
        a.I("s_getpc_b64 s[46:47]")
        a.label("L_pc")
        a.I(f"s_sub_u32 s46, s46, (L_pc-{self.name})")
        a.I("s_subb_u32 s47, s47, 0")
        a.I("s_lshr_b32 s45, s2, 3")
        a.I("s_lshl_b32 s45, s45, 10")
        a.I("v_lshlrev_b32 v6, 4, v5")
        a.I("v_add_u32 v6, s45, v6")
        a.I("v_mov_b32 v7, 0")
        a.I("v_mov_b32 v9, s47")
        a.I("v_add_co_u32 v8, vcc, s46, v6")
        a.I("v_addc_co_u32 v9, vcc, v9, v7, vcc")
        a.I(f"s_mov_b32 s45, (L_end-{self.name}-12)")
        a.I("v_cmp_gt_u32 vcc, s45, v6")
        a.I("s_and_saveexec_b64 s[46:47], vcc")
        a.I("s_cbranch_execz L_pfskip")
        a.I("global_load_dwordx4 v[12:15], v[8:9], off")
        a.label("L_pfskip")
        a.I("s_mov_b64 exec, s[46:47]")
        a.label("L_nopf")

    def pretouch(self):
        a = self.a
        a.I("s_cmp_eq_u32 s44, 10")
        a.I("s_cbranch_scc0 L_nopt")
        a.I("v_lshlrev_b32 v6, 21, v5")
        bufs = [(24, 640*7680), (10, 640*12288), (30, WS_SIZE), (28, 256), (4, 5120), (22, 5120),
                (12, 6144*1280), (16, 640*3072), (18, 640*3072), (20, 1536*1280), (26, 5120)]
        if self.cfg.pretouch >= 2:
            pass
        for i, (p, size) in enumerate(bufs):
            self.srd(32, p, size)
            a.I(f"buffer_load_dword v{12+i}, v6, s[32:35], 0 offen")
        a.label("L_nopt")

    def resets(self):
        a = self.a
        a.I("v_mov_b32 v8, -1")
        a.I("v_mov_b32 v9, -1")
        a.I("v_mov_b32 v10, -1")
        a.I("v_mov_b32 v11, -1")
        a.I("v_lshlrev_b32 v6, 4, v5")
        a.I("s_lshl_b32 s45, s57, 5")
        a.I("s_add_u32 s45, s45, s58")
        a.I("s_lshl_b32 s45, s45, 1")
        a.I("s_add_u32 s45, s45, s59")
        a.I("s_mul_i32 s45, s45, 768")
        a.I(f"s_add_u32 s45, s45, {WS_O}")
        a.I("s_mov_b32 exec_lo, -1"); a.I("s_mov_b32 exec_hi, 0xffff")
        a.I("buffer_store_dwordx4 v[8:11], v6, s[40:43], s45 offen sc1")
        a.I("s_lshl_b32 s45, s2, 7")
        a.I(f"s_add_u32 s45, s45, {WS_ML}")
        a.I("s_mov_b64 exec, 0x11")
        a.I("buffer_store_dwordx4 v[8:11], v6, s[40:43], s45 offen sc1")
        a.I("s_mov_b64 exec, -1")
        a.I("v_lshrrev_b32 v7, 4, v5")
        a.I("v_and_b32 v12, 15, v5")
        a.I("v_lshlrev_b32 v12, 4, v12")

        def rows(cmp, rowbytes, base, bandbytes, band_reg, nchunk, lab, extra=None):
            a.I(cmp)
            a.I(f"s_cbranch_scc0 {lab}")
            a.I(f"v_mul_u32_u24 v13, {rowbytes}, v7")
            a.I("v_add_u32 v13, v13, v12")
            a.I(f"s_mul_i32 s45, s{band_reg}, {bandbytes}")
            if extra:
                a.I(f"s_mul_i32 s46, s{extra}, {4*rowbytes}")
                a.I("s_add_u32 s45, s45, s46")
            a.I(f"s_add_u32 s45, s45, {base}")
            m = (1 << nchunk) - 1
            m32 = m | (m << 16)
            a.I(f"s_mov_b32 exec_lo, 0x{m32:x}")
            a.I(f"s_mov_b32 exec_hi, 0x{m32:x}")
            a.I("buffer_store_dwordx4 v[8:11], v13, s[40:43], s45 offen sc1")
            a.I("s_mov_b64 exec, -1")
            a.label(lab)
        rows(f"s_cmp_eq_u32 s{S_PRE}, 2", 24576, WS_Q, 256, S_BAND, 16, 'L_rs2', extra=S_KH)
        rows(f"s_cmp_eq_u32 s{S_PRE}, 1", 7680, WS_MOD, 128, S_BAND, 8, 'L_rs1')
        rows(f"s_cmp_eq_u32 s{S_POST}, 1", 2560, WS_Y, 256, S_NB, 16, 'L_rs3', extra=S_KG)
        a.I(f"s_cmp_eq_u32 s{S_POST}, 2")
        a.I("s_cbranch_scc0 L_rs4")
        a.I("v_mul_u32_u24 v13, 12288, v7")
        a.I("v_add_u32 v13, v13, v12")
        a.I(f"s_lshl_b32 s45, s{S_NB}, 8")
        a.I(f"s_add_u32 s45, s45, {WS_PD}")
        for k in range(10):
            a.I("buffer_store_dwordx4 v[8:11], v13, s[40:43], s45 offen sc1")
            if k < 9:
                a.I(f"s_add_u32 s45, s45, {4*12288}")
        a.label("L_rs4")

    def resets_arrive(self):
        a = self.a
        a.I("s_waitcnt vmcnt(0)")
        self.stamp(16)
        a.I("s_mov_b64 exec, 1")
        a.I("v_mov_b32 v8, 1")
        a.I("s_and_b32 s45, s2, 1")
        a.I("s_lshl_b32 s45, s45, 7")
        a.I("v_mov_b32 v9, s45")
        a.I("global_atomic_add v9, v8, s[28:29] sc1")
        a.I(f"s_cmp_eq_u32 s{S_PRE}, 1")
        a.I("s_cbranch_scc0 L_noc1")
        a.I(f"s_cmp_lt_u32 s{S_BAND}, 20")
        a.I("s_cbranch_scc0 L_noc1")
        a.I("v_mov_b32 v9, 132")
        a.I("global_atomic_add v9, v8, s[28:29] sc1")
        a.label("L_noc1")
        a.I("s_mov_b64 exec, -1")

    def master(self):
        a = self.a
        a.I("s_cmp_eq_u32 s44, 1")
        a.I("s_cbranch_scc0 L_notmaster")
        a.I("s_cmp_eq_u32 s2, 0")
        a.I("s_cbranch_scc0 L_notmaster")
        def go(val):
            a.I("s_mov_b64 exec, -1")
            a.I("v_lshlrev_b32 v8, 7, v5")
            a.I(f"v_mov_b32 v9, {val}")
            for k in range(4):
                a.I(f"s_mov_b32 s45, {WS_ML + 64 + 8192*k}")
                a.I("buffer_store_dword v9, v8, s[40:43], s45 offen sc1")
        a.I("v_lshlrev_b32 v7, 7, v5")
        a.I("v_mov_b32 v6, 132")
        a.I("v_cmp_eq_u32 vcc, 2, v5")
        a.I("v_cndmask_b32 v7, v7, v6, vcc")
        a.I("s_mov_b32 s62, 0")
        a.I("s_mov_b32 s63, 0")
        a.label("L_master")
        a.I("s_mov_b64 exec, 7")
        a.I("global_load_dword v6, v7, s[28:29] sc1")
        a.I("s_add_u32 s62, s62, 1")
        a.I("s_waitcnt vmcnt(0)")
        a.I("v_readlane_b32 s45, v6, 0")
        a.I("v_readlane_b32 s46, v6, 1")
        a.I("v_readlane_b32 s47, v6, 2")
        a.I("s_min_u32 s45, s45, s46")
        a.I("s_cmp_ge_u32 s45, 128")
        a.I("s_cbranch_scc1 L_master_ok")
        a.I("s_cmp_lt_u32 s47, 20")
        a.I("s_cbranch_scc1 L_master_next")
        a.I("s_cmp_eq_u32 s63, 0")
        a.I("s_cbranch_scc0 L_master_next")
        a.I("s_mov_b32 s63, 1")
        go(1)
        self.stamp(17)
        a.label("L_master_next")
        a.I(f"s_cmp_lt_u32 s62, {SPIN_MAX}")
        a.I("s_cbranch_scc1 L_master")
        a.label("L_master_ok")
        go(2)
        a.I("s_mov_b64 exec, -1")
        self.stamp(18)
        a.label("L_notmaster")

    def poll_go(self, label, vz, vt, level):
        a = self.a
        a.I("s_lshl_b32 s45, s2, 7")
        a.I(f"s_add_u32 s46, s45, {WS_ML + 64}")
        a.I(f"v_mov_b32 v{vz}, 0")
        a.I("s_mov_b32 s62, 0")
        a.I("s_mov_b64 exec, 1")
        a.label(label)
        a.I(f"buffer_load_dword v{vt}, v{vz}, s[40:43], s46 offen sc1")
        a.I("s_add_u32 s62, s62, 1")
        a.I("s_waitcnt vmcnt(0)")
        a.I(f"v_readfirstlane_b32 s{S_LATE}, v{vt}")
        a.I(f"s_sub_u32 s45, s{S_LATE}, {level}")
        a.I(f"s_cmp_le_u32 s45, {2-level}")
        a.I(f"s_cbranch_scc1 {label}_ok")
        a.I(f"s_cmp_lt_u32 s62, {SPIN_MAX}")
        a.I(f"s_cbranch_scc1 {label}")
        a.label(f"{label}_ok")
        a.I("s_mov_b64 exec, -1")

    def stream(self):
        a = self.a
        cfg = self.cfg
        a.label("L_stream")
        if self.cfg.hop2:
            a.raw("@@WARM2@@")
        a.I("s_cmp_eq_u32 s44, 11")
        a.I("s_cbranch_scc0 L_noprio")
        a.I("s_setprio 3")
        a.label("L_noprio")
        self.roles_rest()
        a.I("s_waitcnt lgkmcnt(0)")
        self.stamp(0)
        self.srd(40, 30, WS_SIZE)
        a.I("s_cmp_eq_u32 s44, 11")
        a.I("s_cbranch_scc0 L_noreset")
        self.resets()
        self.resets_arrive()
        a.I("s_setprio 0")
        a.label("L_noreset")
        a.fence(2)
        a.I("s_sub_u32 s44, s44, 4")
        a.I("s_lshl_b32 s45, s57, 5")
        a.I("s_add_u32 s45, s45, s58")
        a.I("s_mul_i32 s45, s45, 1572864")
        n0 = (128 + cfg.kx) * 6144
        a.I(f"s_mul_i32 s46, s59, {n0}")
        a.I("s_add_u32 s47, s45, s46")
        self.srd(32, 6, n0, off=47)
        self.srd(36, 8, n0, off=47)
        if cfg.kx:
            a.I("s_cmp_eq_u32 s59, 0")
            a.I(f"s_mov_b32 s45, {n0}")
            a.I(f"s_cselect_b32 s34, s45, {1572864 - n0}")
            a.I("s_mov_b32 s38, s34")
        a.I("s_branch L_stream_main")

    def stream_bulk(self):
        a = self.a
        cfg = self.cfg
        a.label("L_stream_main")
        a.fence(2)
        st.set_depth(cfg.D)

        def b0():
            a.I("s_barrier")
        S2 = dict(S); S2['b0_after'] = cfg.N1 - 1 if cfg.gate else -1
        S2['hook_before'] = {cfg.NB0: b0}
        issued = st.stream_prologue(a, cfg, S2)
        st.stream_main(a, cfg, S2, LDS, issued, self.stamp)
        a.I("s_add_u32 s44, s44, 4")
        a.I("s_branch L_post")

    def zero_flag(self):
        a = self.a
        a.I("s_lshl_b32 s45, s44, 2")
        a.I(f"s_add_u32 s45, s45, {L_HFLAG}")
        a.I("v_mov_b32 v6, s45")
        a.I("v_mov_b32 v7, 0")
        a.I("ds_write_b32 v6, v7")

    def u_layout(self, n, per):
        a = self.a
        magic = {80: 52429, 40: 104858}[per]
        a.I(f"s_mov_b32 s47, {magic}")
        for jj in range(n):
            a.I(f"v_add_u32 v6, {64*jj}, v5")
            a.I("v_mul_u32_u24 v7, s47, v6")
            a.I(f"v_lshrrev_b32 v{20+jj}, 22, v7")
            a.I(f"v_mul_u32_u24 v7, {per}, v{20+jj}")
            a.I("v_sub_u32 v6, v6, v7")
            a.I(f"v_lshlrev_b32 v{25+jj}, 2, v6")

    def helper_front(self):
        a = self.a
        a.label("L_helper")
        a.I("s_setprio 2")
        a.I("v_lshrrev_b32 v17, 4, v5")
        a.I("v_and_b32 v18, 15, v5")
        a.I(f"s_cmp_eq_u32 s{S_PRE}, 1")
        a.I("s_cbranch_scc0 L_hq0")
        self.dma_voff128(7680, 8, 9, 6, 7)
        a.I(f"s_mul_i32 s46, s44, {160*7680}")
        a.I(f"s_lshl_b32 s85, s{S_BAND}, 7")
        a.I("s_mul_i32 s47, s44, 20480")
        a.I(f"s_add_u32 s47, s47, {L_W}")
        a.I("v_mul_u32_u24 v16, 1280, v17")
        a.I("v_mad_u32_u24 v16, v18, 20, v16")
        a.I("s_mul_i32 s63, s44, 320")
        a.I("s_waitcnt lgkmcnt(0)")
        self.stamp(0)
        self.srd(36, 22, 5120)
        self.srd(32, 24, 640 * 7680, off=85)
        a.I("buffer_load_dwordx4 v[30:33], v16, s[36:39], s63 offen")
        a.I("buffer_load_dword v34, v16, s[36:39], s63 offen offset:16")
        self.dma_loop(32, 20, 8, 9, 47, 46, 8 * 7680, "L_mod_dma", cnt=85)
        self.stamp(3)
        a.I("s_branch L_modrest")
        a.label("L_hq0")
        a.I(f"s_cmp_eq_u32 s{S_PRE}, 2")
        a.I("s_cbranch_scc0 L_hnone")
        self.dma_voff128(12288, 8, 9, 6, 7)
        a.I(f"s_mul_i32 s46, s44, {80*12288}")
        a.I(f"s_mul_i32 s47, s{S_KH}, {320*12288}")
        a.I(f"s_lshl_b32 s45, s{S_BAND}, 7")
        a.I("s_add_u32 s85, s47, s45")
        a.I("s_mul_i32 s47, s44, 10240")
        a.I(f"s_add_u32 s47, s47, {L_W}")
        a.I("v_min_u32 v18, 9, v18")
        a.I("v_mul_u32_u24 v16, 1280, v17")
        a.I("v_lshl_add_u32 v16, v18, 4, v16")
        a.I(f"s_mul_i32 s63, s{S_KH}, 640")
        a.I("s_mul_i32 s45, s44, 160")
        a.I("s_add_u32 s63, s63, s45")
        a.I("v_lshlrev_b32 v19, 2, v5")
        a.I("s_mul_i32 s48, s44, 1280")
        a.I("s_waitcnt lgkmcnt(0)")
        self.stamp(0)
        self.srd(36, 4, 5120)
        self.srd(32, 10, 320 * 12288, off=85)
        for jj in range(5):
            a.I(f"buffer_load_dword v{35+jj}, v19, s[36:39], s48 offen offset:{256*jj}")
        a.I("buffer_load_dwordx4 v[28:31], v16, s[36:39], s63 offen")
        self.dma_loop(32, 10, 8, 9, 47, 46, 8 * 12288, "L_q_dma", cnt=85)
        self.stamp(3)
        a.I("s_branch L_qrest")

    def helper(self):
        a = self.a
        if self.cfg.hop2:
            a.hops_begin("L_hopP", self.cfg.hop2, seg=self.cfg.hop2seg, ret="L_warm2_ret")
        a.label("L_hnone")
        self.zero_flag()
        a.I("s_waitcnt lgkmcnt(0)")
        self.stamp(0)
        self.srd(40, 30, WS_SIZE)
        a.I("s_barrier")
        self.master()
        a.I("s_branch L_h_go")
        a.label("L_modrest")
        a.fence(2)
        self.zero_flag()
        self.srd(40, 30, WS_SIZE)
        a.I(f"s_mov_b32 s54, 0x{LOG2E:x}")
        a.I("s_mul_i32 s47, s44, 320")
        a.I(f"s_add_u32 s47, s47, {L_ACT}")
        a.I("v_mul_u32_u24 v40, 1344, v17")
        a.I("v_mad_u32_u24 v40, v18, 20, v40")
        a.I("v_add_u32 v40, s47, v40")
        a.I("s_waitcnt vmcnt(20)")
        for jj in range(5):
            lo, hi = 46, 47
            self.unpack(30 + jj, lo, hi)
            for r in (lo, hi):
                a.I(f"v_mul_f32 v48, s54, v{r}")
                a.I("v_exp_f32 v48, -v48")
                a.I("v_add_f32 v48, 1.0, v48")
                a.I("v_min_f32 v48, 0x7f7fffff, v48")
                a.I("v_rcp_f32 v49, v48")
                self.div_by(r, 48, 49, 50)
            a.I(f"v_cvt_pk_bf16_f32 v46, v46, v47")
            a.I(f"ds_write_b32 v40, v46 offset:{4*jj}")
        self.tr_addr128(10, 6, 7)
        a.I("s_lshl_b32 s45, s44, 5")
        a.I("v_xor_b32 v10, s45, v10")
        a.I(f"v_add_u32 v10, {L_W}, v10")
        a.I(f"v_add_u32 v11, {10*4096}, v10")
        self.act_addr(14, 1344, 6)
        a.I("s_waitcnt vmcnt(0) lgkmcnt(0)")
        self.stamp(7)
        a.I("s_barrier")
        self.mfma_chain2(10, 10, 11, 4096, 512, 14, 64, 68)
        for k in range(4):
            a.I(f"v_add_f32 v{64+k}, v{64+k}, v{68+k}")
        a.I("v_cvt_pk_bf16_f32 v64, v64, v65")
        a.I("v_cvt_pk_bf16_f32 v65, v66, v67")
        self.canon([64, 65], 44)
        a.I("v_and_b32 v6, 3, v5")
        a.I("v_mul_u32_u24 v6, 7680, v6")
        a.I("v_lshrrev_b32 v7, 4, v5")
        a.I("v_lshl_add_u32 v6, v7, 3, v6")
        a.I(f"s_lshl_b32 s45, s{S_BAND}, 7")
        a.I("s_lshl_b32 s47, s44, 5")
        a.I("s_add_u32 s47, s47, s45")
        a.I(f"s_mov_b32 exec_lo, 0x{MASK_N4_LO:x}")
        a.I(f"s_mov_b32 exec_hi, 0x{MASK_N4_LO:x}")
        a.I("buffer_store_dwordx2 v[64:65], v6, s[40:43], s47 offen sc1")
        a.I("s_mov_b64 exec, -1")
        self.stamp(12)
        a.label("L_h_go")
        a.fence(2)
        a.I("s_cmp_lg_u32 s44, 0")
        a.I("s_cbranch_scc1 L_go_skip")
        self.poll_go("L_go1", 6, 7, 1 if self.cfg.gate == 2 else 2)
        a.label("L_go_skip")
        if self.cfg.gate:
            a.I("s_barrier")
        a.I("s_branch L_h_q")
        a.label("L_qrest")
        a.fence(2)
        self.zero_flag()
        self.srd(40, 30, WS_SIZE)
        a.I("s_waitcnt vmcnt(11)")
        for jj in range(5):
            self.unpack(35 + jj, 40 + 2 * jj, 41 + 2 * jj)
        a.I("v_add_f32 v6, v40, v41")
        for k in range(42, 50):
            a.I(f"v_add_f32 v6, v6, v{k}")
        self.wave_sum_bcast(6, 46)
        a.I("v_mov_b32 v6, 0x3acccccd")
        a.I("v_mul_f32 v50, s46, v6")
        a.I("v_mov_b32 v7, 0")
        for k in range(40, 50):
            a.I(f"v_sub_f32 v51, v{k}, v50")
            a.I("v_fmac_f32 v7, v51, v51")
        self.wave_sum_bcast(7, 46)
        a.I("v_mul_f32 v52, s46, v6")
        self.ln_denom(52, 53)
        a.I("v_cvt_pk_bf16_f32 v50, v50, v50")
        a.I("v_lshlrev_b32 v50, 16, v50")
        a.I("s_lshl_b32 s45, s44, 3")
        a.I(f"s_add_u32 s45, s45, {L_LNST}")
        a.I("v_mov_b32 v6, s45")
        a.I("ds_write_b32 v6, v50")
        a.I("ds_write_b32 v6, v52 offset:4")
        a.I("s_waitcnt vmcnt(0) lgkmcnt(0)")
        self.stamp(7)
        a.I("s_barrier")
        a.I("v_lshlrev_b32 v6, 3, v17")
        a.I(f"ds_read_b64 v[56:57], v6 offset:{L_LNST}")
        xr = list(range(60, 68))
        for k in range(4):
            self.unpack(28 + k, 60 + 2 * k, 61 + 2 * k)
        a.I("v_mul_u32_u24 v40, 7680, v17")
        a.I("v_lshl_add_u32 v40, v18, 4, v40")
        a.I("s_mul_i32 s47, s44, 160")
        a.I(f"s_add_u32 s47, s47, {L_ACT}")
        a.I("v_mul_u32_u24 v41, 704, v17")
        a.I("v_lshl_add_u32 v41, v18, 4, v41")
        a.I("v_add_u32 v41, s47, v41")
        a.I("s_waitcnt lgkmcnt(0)")
        for r in xr:
            a.I(f"v_sub_f32 v{r}, v{r}, v56")
        self.bf16_round(xr, 58)
        a.I("v_rcp_f32 v58, v57")
        for r in xr:
            self.div_by(r, 57, 58, 59)
        self.bf16_round(xr, 58)
        self.tr_addr128(10, 6, 7)
        a.I("s_lshl_b32 s45, s44, 5")
        a.I("v_xor_b32 v10, s45, v10")
        a.I(f"v_add_u32 v10, {L_W}, v10")
        self.act_addr(14, 704, 6)
        a.I("v_and_b32 v6, 15, v5")
        a.I("v_cmp_gt_u32 s[50:51], 10, v6")
        self.stamp(16)
        self.poll_go("L_go2", 6, 7, 1)
        if self.cfg.gate == 2:
            a.I("s_barrier")
        self.stamp(18)
        a.I(f"s_add_u32 s46, s63, {WS_MOD}")
        a.I(f"s_add_u32 s47, s63, {WS_MOD + 1280}")
        loads = ["buffer_load_dwordx4 v[28:31], v40, s[40:43], s46 offen sc1",
                 "buffer_load_dwordx4 v[32:35], v40, s[40:43], s47 offen sc1"]
        self.poll(loads, list(range(28, 36)), "L_pmod", pre=6)
        self.stamp(14)
        ca = list(range(44, 52))
        for k in range(4):
            self.unpack(32 + k, 44 + 2 * k, 45 + 2 * k)
        for r in ca:
            a.I(f"v_add_f32 v{r}, 1.0, v{r}")
        self.bf16_round(ca, 6)
        for k in range(8):
            a.I(f"v_mul_f32 v{60+k}, v{60+k}, v{44+k}")
        self.bf16_round(xr, 6)
        for k in range(4):
            self.unpack(28 + k, 44 + 2 * k, 45 + 2 * k)
        for k in range(8):
            a.I(f"v_add_f32 v{60+k}, v{60+k}, v{44+k}")
        for k in range(4):
            a.I(f"v_cvt_pk_bf16_f32 v{44+k}, v{60+2*k}, v{61+2*k}")
        a.I("s_mov_b64 exec, s[50:51]")
        a.I("ds_write_b128 v41, v[44:47]")
        a.I("s_mov_b64 exec, -1")
        if self.cfg.gate == 1:
            a.I("s_waitcnt lgkmcnt(0)")
            a.I("s_barrier")
        else:
            self.hsync(2, "L_hs2", 6, 16)
        self.stamp(17)
        self.mfma_chain(10, 10, 4096, 512, 14, 64)
        self.canon([64, 65, 66, 67], 44)
        a.I("v_and_b32 v6, 3, v5")
        a.I("v_mul_u32_u24 v6, 24576, v6")
        a.I("v_lshrrev_b32 v7, 4, v5")
        a.I("v_lshl_add_u32 v6, v7, 4, v6")
        a.I(f"s_mul_i32 s45, s{S_KH}, {4*24576}")
        a.I(f"s_lshl_b32 s47, s{S_BAND}, 8")
        a.I("s_add_u32 s47, s47, s45")
        a.I("s_lshl_b32 s45, s44, 6")
        a.I("s_add_u32 s47, s47, s45")
        a.I(f"s_add_u32 s47, s47, {WS_Q}")
        a.I(f"s_mov_b32 exec_lo, 0x{MASK_N4_LO:x}")
        a.I(f"s_mov_b32 exec_hi, 0x{MASK_N4_LO:x}")
        a.I("buffer_store_dwordx4 v[64:67], v6, s[40:43], s47 offen sc1")
        a.I("s_mov_b64 exec, -1")
        self.stamp(12)
        a.label("L_h_q")
        a.fence(2)
        self.roles_rest()
        self.srd(40, 30, WS_SIZE)
        a.I("s_cmp_lg_u32 s44, 0")
        a.I("s_cbranch_scc1 L_hb1")
        a.I(f"s_cmp_eq_u32 s{S_LATE}, 2")
        a.I("s_cbranch_scc1 L_go3_skip")
        self.poll_go("L_go3", 6, 7, 2)
        a.label("L_go3_skip")
        self.stamp(19)
        a.I("v_and_b32 v6, 31, v5")
        a.I("v_mul_u32_u24 v11, 12, v6")
        a.I("v_lshlrev_b32 v6, 1, v11")
        a.I("s_mul_i32 s45, s57, 24576")
        a.I("s_mul_i32 s46, s58, 768")
        a.I("s_add_u32 s46, s45, s46")
        a.I(f"s_add_u32 s46, s46, {WS_Q}")
        a.I(f"s_add_u32 s47, s46, {4*24576}")
        self.poll(["buffer_load_dwordx3 v[12:14], v6, s[40:43], s46 offen sc1",
                   "buffer_load_dwordx3 v[16:18], v6, s[40:43], s46 offen offset:12 sc1",
                   "buffer_load_dwordx3 v[20:22], v6, s[40:43], s47 offen sc1",
                   "buffer_load_dwordx3 v[24:26], v6, s[40:43], s47 offen offset:12 sc1"],
                  [12, 13, 14, 16, 17, 18, 20, 21, 22, 24, 25, 26], "L_pq", pre=7)
        for k in range(3):
            a.I(f"v_add_f32 v{12+k}, v{12+k}, v{20+k}")
            a.I(f"v_add_f32 v{16+k}, v{16+k}, v{24+k}")
        a.I("v_cvt_pk_bf16_f32 v8, v12, v13")
        a.I("v_cvt_pk_bf16_f32 v9, v14, v16")
        a.I("v_cvt_pk_bf16_f32 v10, v17, v18")
        a.I(f"ds_write_b32 v11, v8 offset:{L_QV}")
        a.I(f"ds_write_b32 v11, v9 offset:{L_QV+4}")
        a.I(f"ds_write_b32 v11, v10 offset:{L_QV+8}")
        a.I("s_waitcnt lgkmcnt(0)")
        a.label("L_hb1")
        self.stamp(1)
        a.I("s_barrier")
        self.stamp(2)
        if self.cfg.hop2:
            self.nseg = a.hops_end("L_warm2_ret")
        if self.cfg.hop:
            a.I("s_cmp_eq_u32 s44, 0")
            a.I("s_cbranch_scc1 L_late_done")
            a.I("s_mov_b64 exec, 0")
            a.I("s_cmp_eq_u32 s44, 1")
            a.I("s_cbranch_scc1 L_hopA_0")
            a.I("s_cmp_eq_u32 s44, 2")
            a.I("s_cbranch_scc1 L_hopB_0")
            a.I("s_branch L_hopC_0")
            a.label("L_warm_ret")
            a.I("s_mov_b64 exec, -1")
            self.stamp(22)
        if self.cfg.pf == 2:
            a.label("L_late_pf")
            self.prefetch_weights()
        a.label("L_late_done")
        a.fence(2)
        a.I("s_barrier")
        self.stamp(4)
        a.I("s_cmp_lg_u32 s44, 0")
        a.I("s_cbranch_scc1 L_hb3")
        self.ml_exchange()
        a.label("L_hb3")
        self.stamp(5)
        a.I("s_barrier")
        self.stamp(6)
        if self.cfg.early_w != 1:
            a.I("s_cmp_lg_u32 s44, 0")
            a.I("s_cbranch_scc1 L_tk_done")
            a.I(f"v_mov_b32 v6, {L_FIN}")
            a.I("s_mov_b32 s62, 0")
            a.label("L_tk_wait")
            a.I("ds_read_b32 v7, v6 offset:12")
            a.I("s_add_u32 s62, s62, 1")
            a.I("s_waitcnt lgkmcnt(0)")
            a.I("v_readfirstlane_b32 s45, v7")
            a.I("s_cmp_eq_u32 s45, 1")
            a.I("s_cbranch_scc1 L_tk_go")
            a.I(f"s_cmp_lt_u32 s62, {SPIN_MAX*16}")
            a.I("s_cbranch_scc1 L_tk_wait")
            a.label("L_tk_go")
            a.I("s_mov_b64 exec, 1")
            a.I("v_mov_b32 v7, 8")
            a.I("v_mov_b32 v8, 1")
            a.I("global_atomic_add v9, v7, v8, s[28:29] sc0 sc1")
            a.I("s_waitcnt vmcnt(0)")
            a.I("ds_write_b32 v6, v9 offset:8")
            a.I("s_waitcnt lgkmcnt(0)")
            a.I("s_mov_b64 exec, -1")
            a.label("L_tk_done")
            a.fence(2)
        if self.cfg.pf == 1:
            self.prefetch_weights()
        if self.cfg.early_w:
            a.I("s_cmp_eq_u32 s44, 0")
            a.I("s_cbranch_scc1 L_vw_done")
            if self.cfg.early_w == 2:
                a.I("s_setprio 0")
                a.I(f"v_mov_b32 v6, {L_FIN}")
                a.I("s_mov_b32 s62, 0")
                a.label("L_tkw")
                a.I("ds_read_b32 v7, v6 offset:8")
                a.I("ds_read_b32 v8, v6 offset:16")
                a.I("s_add_u32 s62, s62, 1")
                a.I("s_waitcnt lgkmcnt(0)")
                a.I("v_readfirstlane_b32 s45, v7")
                a.I("v_readfirstlane_b32 s46, v8")
                a.I("s_cmp_eq_u32 s45, -1")
                a.I("s_cselect_b32 s46, 0, s46")
                a.I("s_cmp_eq_u32 s46, 1")
                a.I("s_cbranch_scc1 L_tkw_ok")
                a.I(f"s_cmp_lt_u32 s62, {SPIN_MAX*16}")
                a.I("s_cbranch_scc1 L_tkw")
                a.label("L_tkw_ok")
            self.roles_from_ticket("v")
            self.v_weights()
            a.label("L_vw_done")
            a.fence(2)
        a.I("s_barrier")
        self.stamp(8)

    def dma_loop(self, srd, n, vE, vO, lds_reg, soff_reg, step, label, cnt=63, window=0, pol=None):
        a = self.a
        a.I(f"s_mov_b32 s{cnt}, {n // 2}")
        a.label(label)
        for v in (vE, vO):
            if window:
                a.I(f"s_waitcnt vmcnt({window - 1})")
            a.I(f"s_mov_b32 m0, s{lds_reg}")
            a.I(f"s_add_u32 s{lds_reg}, s{lds_reg}, 1024")
            a.I(f"buffer_load_dwordx4 v{v}, s[{srd}:{srd+3}], s{soff_reg} offen {self.cfg.ntW if pol is None else pol} lds")
            a.I(f"s_add_u32 s{soff_reg}, s{soff_reg}, {step}")
        a.I(f"s_sub_u32 s{cnt}, s{cnt}, 1")
        a.I(f"s_cmp_lg_u32 s{cnt}, 0")
        a.I(f"s_cbranch_scc1 {label}")

    def mfma_chain2(self, nks, vA0, vA1, stepA, half_off, vB, d0, d1):
        a = self.a
        DEPTH = 2

        def issue(ks):
            b = 80 + 16 * (ks % DEPTH)
            a.I(f"ds_read_b64_tr_b16 v[{b}:{b+1}], v{vA0} offset:{stepA*ks}")
            a.I(f"ds_read_b64_tr_b16 v[{b+2}:{b+3}], v{vA0} offset:{stepA*ks + half_off}")
            a.I(f"ds_read_b128 v[{b+4}:{b+7}], v{vB} offset:{64*ks}")
            a.I(f"ds_read_b64_tr_b16 v[{b+8}:{b+9}], v{vA1} offset:{stepA*ks}")
            a.I(f"ds_read_b64_tr_b16 v[{b+10}:{b+11}], v{vA1} offset:{stepA*ks + half_off}")
            a.I(f"ds_read_b128 v[{b+12}:{b+15}], v{vB} offset:{64*(nks+ks)}")
        for ks in range(DEPTH):
            issue(ks)
        for ks in range(nks):
            left = min(nks - 1 - ks, DEPTH - 1)
            a.I(f"s_waitcnt lgkmcnt({6*left})")
            b = 80 + 16 * (ks % DEPTH)
            c0 = "0" if ks == 0 else f"v[{d0}:{d0+3}]"
            c1 = "0" if ks == 0 else f"v[{d1}:{d1+3}]"
            a.I(f"v_mfma_f32_16x16x32_bf16 v[{d0}:{d0+3}], v[{b}:{b+3}], v[{b+4}:{b+7}], {c0}")
            a.I(f"v_mfma_f32_16x16x32_bf16 v[{d1}:{d1+3}], v[{b+8}:{b+11}], v[{b+12}:{b+15}], {c1}")
            if ks + DEPTH < nks:
                issue(ks + DEPTH)

    def mfma_chain(self, nks, vA, stepA, half_off, vB, dreg):
        a = self.a
        DEPTH = 4

        def issue(ks):
            b = 80 + 8 * (ks % DEPTH)
            a.I(f"ds_read_b64_tr_b16 v[{b}:{b+1}], v{vA} offset:{stepA*ks}")
            a.I(f"ds_read_b64_tr_b16 v[{b+2}:{b+3}], v{vA} offset:{stepA*ks + half_off}")
            a.I(f"ds_read_b128 v[{b+4}:{b+7}], v{vB} offset:{64*ks}")
        for ks in range(min(DEPTH, nks)):
            issue(ks)
        for ks in range(nks):
            left = min(nks - 1 - ks, DEPTH - 1)
            a.I(f"s_waitcnt lgkmcnt({3*left})")
            b = 80 + 8 * (ks % DEPTH)
            c = "0" if ks == 0 else f"v[{dreg}:{dreg+3}]"
            a.I(f"v_mfma_f32_16x16x32_bf16 v[{dreg}:{dreg+3}], v[{b}:{b+3}], v[{b+4}:{b+7}], {c}")
            if ks + DEPTH < nks:
                issue(ks + DEPTH)

    def dma_band128(self, srd, rowstride, ninstr, vE, vO, lds_base_sreg, soff_reg, tag):
        a = self.a
        for i in range(ninstr):
            a.I(f"s_mov_b32 m0, s{lds_base_sreg}")
            v = vO if i & 1 else vE
            a.I(f"s_add_u32 s{lds_base_sreg}, s{lds_base_sreg}, 1024")
            a.I(f"buffer_load_dwordx4 v{v}, s[{srd}:{srd+3}], s{soff_reg} offen {self.cfg.ntW} lds")
            if i + 1 < ninstr:
                a.I(f"s_add_u32 s{soff_reg}, s{soff_reg}, {8*rowstride}")

    def dma_voff128(self, rowstride, vE, vO, t0, t1):
        a = self.a
        a.I(f"v_lshrrev_b32 v{t0}, 3, v5")
        a.I(f"v_bfe_u32 v{t1}, v5, 4, 1")
        a.I(f"v_lshlrev_b32 v{t1}, 5, v{t1}")
        a.I(f"v_and_b32 v{vE}, 7, v5")
        a.I(f"v_lshlrev_b32 v{vE}, 4, v{vE}")
        a.I(f"v_xor_b32 v{vE}, v{vE}, v{t1}")
        a.I(f"v_xor_b32 v{vO}, 64, v{vE}")
        a.I(f"s_mov_b32 s45, {rowstride}")
        a.I(f"v_mul_lo_u32 v{t0}, s45, v{t0}")
        a.I(f"v_add_u32 v{vE}, v{vE}, v{t0}")
        a.I(f"v_add_u32 v{vO}, v{vO}, v{t0}")

    def tr_addr128(self, vdst, t0, t1):
        a = self.a
        a.I(f"v_lshrrev_b32 v{t0}, 4, v5")
        a.I(f"v_bfe_u32 v{t1}, v5, 2, 2")
        a.I(f"v_lshl_add_u32 v{vdst}, v{t0}, 3, v{t1}")
        a.I(f"v_lshlrev_b32 v{vdst}, 7, v{vdst}")
        a.I(f"v_and_b32 v{t0}, 1, v{t0}")
        a.I(f"v_lshlrev_b32 v{t0}, 6, v{t0}")
        a.I(f"v_bfe_u32 v{t1}, v5, 3, 1")
        a.I(f"v_lshlrev_b32 v{t1}, 5, v{t1}")
        a.I(f"v_or3_b32 v{vdst}, v{vdst}, v{t0}, v{t1}")
        a.I(f"v_and_b32 v{t0}, 3, v5")
        a.I(f"v_lshl_add_u32 v{vdst}, v{t0}, 3, v{vdst}")

    def act_addr(self, vdst, stride, t0):
        a = self.a
        a.I(f"v_and_b32 v{t0}, 3, v5")
        a.I(f"v_mul_u32_u24 v{vdst}, {stride}, v{t0}")
        a.I(f"v_lshrrev_b32 v{t0}, 4, v5")
        a.I(f"v_lshl_add_u32 v{vdst}, v{t0}, 4, v{vdst}")

    def ml_exchange(self):
        a = self.a
        a.I("v_and_b32 v6, 7, v5")
        a.I("v_lshlrev_b32 v6, 3, v6")
        a.I(f"ds_read_b64 v[8:9], v6 offset:{L_STATS}")
        a.I(f"s_mov_b32 s54, 0x{LOG2E:x}")
        a.I("s_waitcnt lgkmcnt(0)")
        a.I("v_mov_b32 v10, v8")
        a.I("v_max_f32_dpp v10, v10, v10 quad_perm:[1,0,3,2] row_mask:0xf bank_mask:0xf")
        a.I("v_max_f32_dpp v10, v10, v10 quad_perm:[2,3,0,1] row_mask:0xf bank_mask:0xf")
        a.I("v_max_f32_dpp v10, v10, v10 row_half_mirror row_mask:0xf bank_mask:0xf")
        a.I("v_sub_f32 v11, v8, v10")
        a.I("v_mul_f32 v11, s54, v11")
        a.I("v_exp_f32 v11, v11")
        a.I("v_mul_f32 v11, v11, v9")
        a.I("v_add_f32_dpp v11, v11, v11 quad_perm:[1,0,3,2] row_mask:0xf bank_mask:0xf")
        a.I("v_add_f32_dpp v11, v11, v11 quad_perm:[2,3,0,1] row_mask:0xf bank_mask:0xf")
        a.I("v_add_f32_dpp v11, v11, v11 row_half_mirror row_mask:0xf bank_mask:0xf")
        self.canon([10, 11], 12)
        a.I("s_lshl_b32 s45, s2, 7")
        a.I(f"s_add_u32 s45, s45, {WS_ML}")
        a.I("v_mov_b32 v6, 0")
        a.I("s_mov_b64 exec, 1")
        a.I("buffer_store_dwordx2 v[10:11], v6, s[40:43], s45 offen sc1")
        if self.cfg.early_w == 1:
            a.I("v_mov_b32 v7, 8")
            a.I("v_mov_b32 v18, 1")
            a.I("global_atomic_add v19, v7, v18, s[28:29] sc0 sc1")
        a.I("s_mov_b64 exec, -1")
        a.I(f"s_xor_b32 s46, s2, {self.cfg.xp or 32}")
        a.I("s_lshl_b32 s46, s46, 7")
        a.I(f"s_add_u32 s46, s46, {WS_ML}")
        self.poll(["buffer_load_dwordx2 v[12:13], v6, s[40:43], s46 offen sc1"], [12, 13], "L_pml", pre=7)
        a.I("v_max_f32 v14, v10, v12")
        a.I("v_sub_f32 v15, v10, v14")
        a.I("v_sub_f32 v16, v12, v14")
        a.I("v_mul_f32 v15, s54, v15")
        a.I("v_mul_f32 v16, s54, v16")
        a.I("v_exp_f32 v15, v15")
        a.I("v_exp_f32 v16, v16")
        a.I("v_mul_f32 v15, v15, v11")
        a.I("v_mul_f32 v16, v16, v13")
        a.I("v_add_f32 v15, v15, v16")
        a.I("v_rcp_f32 v16, v15")
        a.I("v_fma_f32 v17, -v15, v16, 1.0")
        a.I("v_fma_f32 v16, v17, v16, v16")
        a.I(f"v_mov_b32 v6, {L_FIN}")
        a.I("ds_write_b32 v6, v14")
        a.I("ds_write_b32 v6, v16 offset:4")
        if self.cfg.early_w != 1:
            a.I("v_mov_b32 v17, 0")
            a.I("ds_write_b32 v6, v17 offset:12")
            a.I("ds_write_b32 v6, v17 offset:16")
            a.I("v_mov_b32 v17, -1")
            a.I("ds_write_b32 v6, v17 offset:8")
        if self.cfg.early_w == 1:
            a.I("s_mov_b64 exec, 1")
            a.I("ds_write_b32 v6, v19 offset:8")
            a.I("s_mov_b64 exec, -1")
        a.I("s_waitcnt lgkmcnt(0)")

    def post(self):
        a = self.a
        a.label("L_post")
        a.hops_begin("L_hopA", self.cfg.hop)
        a.fence(4)
        a.I("s_setprio 0")
        a.I("v_and_b32 v5, 63, v0")
        a.I("s_cmp_lg_u32 s44, 0")
        a.I("s_cbranch_scc1 L_o_done")
        a.I("v_lshlrev_b32 v6, 4, v5")
        a.I("s_mov_b32 exec_lo, -1"); a.I("s_mov_b32 exec_hi, 0xffff")
        for w in range(8):
            a.I(f"ds_read_b128 v[{8+4*w}:{11+4*w}], v6 offset:{L_OPART+768*w}")
        for w in range(1, 8):
            a.I(f"s_waitcnt lgkmcnt({7-w})")
            for k in range(4):
                a.I(f"v_add_f32 v{8+k}, v{8+k}, v{8+4*w+k}")
        self.canon([8, 9, 10, 11], 12)
        a.I("s_lshl_b32 s45, s57, 5")
        a.I("s_add_u32 s45, s45, s58")
        a.I("s_lshl_b32 s45, s45, 1")
        a.I("s_add_u32 s45, s45, s59")
        a.I("s_mul_i32 s45, s45, 768")
        a.I(f"s_add_u32 s45, s45, {WS_O}")
        a.I("buffer_store_dwordx4 v[8:11], v6, s[40:43], s45 offen sc1")
        a.I("s_mov_b64 exec, -1")
        a.label("L_o_done")
        a.fence(2)
        self.roles_from_ticket()
        a.I(f"s_cmp_eq_u32 s{S_POST}, 0")
        a.I("s_cbranch_scc1 L_tail")
        if self.cfg.obar:
            a.I("s_barrier")
        a.I(f"s_cmp_eq_u32 s{S_POST}, 1")
        a.I("s_cbranch_scc0 L_post23")
        self.post_wo()
        a.I("s_branch L_tail")
        a.hops_end("L_warm_ret")
        a.label("L_post23")
        a.hops_begin("L_hopB", self.cfg.hop)
        a.fence(2)
        self.post_gu()
        a.I(f"s_cmp_lt_u32 s{S_DT}, 40")
        a.I("s_cbranch_scc0 L_tail")
        a.hops_end("L_warm_ret")
        a.hops_begin("L_hopC", self.cfg.hop)
        self.post_final()
        a.hops_end("L_warm_ret")

    def red_lane_addr(self, vdst, t):
        a = self.a
        a.I(f"v_lshrrev_b32 v{vdst}, 4, v5")
        a.I(f"v_and_b32 v{t}, 3, v5")
        a.I(f"v_lshl_add_u32 v{vdst}, v{vdst}, 2, v{t}")
        a.I(f"v_lshlrev_b32 v{vdst}, 4, v{vdst}")

    def write_red(self, dreg, vaddr):
        a = self.a
        a.I("s_lshl_b32 s45, s44, 8")
        a.I(f"s_add_u32 s45, s45, {L_RED}")
        a.I(f"v_add_u32 v{vaddr}, s45, v{vaddr}")
        a.I(f"s_mov_b32 exec_lo, 0x{MASK_N4_LO:x}")
        a.I(f"s_mov_b32 exec_hi, 0x{MASK_N4_LO:x}")
        a.I(f"ds_write_b128 v{vaddr}, v[{dreg}:{dreg+3}]")
        a.I("s_mov_b64 exec, -1")
        a.I("s_waitcnt lgkmcnt(0)")
        a.I("s_barrier")

    def mfma_run(self, nks, vA, offA, stepA, half_off, vB, dreg, first_reg=40):
        a = self.a
        for ks in range(nks):
            b = first_reg + 8 * ks
            a.I(f"ds_read_b64_tr_b16 v[{b}:{b+1}], v{vA} offset:{offA + stepA*ks}")
            a.I(f"ds_read_b64_tr_b16 v[{b+2}:{b+3}], v{vA} offset:{offA + stepA*ks + half_off}")
            a.I(f"ds_read_b128 v[{b+4}:{b+7}], v{vB} offset:{64*ks}")
        for ks in range(nks):
            b = first_reg + 8 * ks
            a.I(f"s_waitcnt lgkmcnt({min(15, 3*(nks-1-ks))})")
            c = "0" if ks == 0 else f"v[{dreg}:{dreg+3}]"
            a.I(f"v_mfma_f32_16x16x32_bf16 v[{dreg}:{dreg+3}], v[{b}:{b+3}], v[{b+4}:{b+7}], {c}")

    def mfma_preread(self, n, vA, stepA, half_off, first):
        a = self.a
        for ks in range(n):
            b = first + 4 * ks
            a.I(f"ds_read_b64_tr_b16 v[{b}:{b+1}], v{vA} offset:{stepA*ks}")
            a.I(f"ds_read_b64_tr_b16 v[{b+2}:{b+3}], v{vA} offset:{stepA*ks + half_off}")

    def mfma_with_b(self, n, firstA, vB, firstB, dreg):
        a = self.a
        for ks in range(n):
            b = firstB + 4 * ks
            a.I(f"ds_read_b128 v[{b}:{b+3}], v{vB} offset:{64*ks}")
        for ks in range(n):
            a.I(f"s_waitcnt lgkmcnt({n-1-ks})")
            c = "0" if ks == 0 else f"v[{dreg}:{dreg+3}]"
            a.I(f"v_mfma_f32_16x16x32_bf16 v[{dreg}:{dreg+3}], v[{firstA+4*ks}:{firstA+4*ks+3}], v[{firstB+4*ks}:{firstB+4*ks+3}], {c}")

    def post_wo(self):
        a = self.a
        if not self.cfg.early_w:
            a.I(f"s_mul_i32 s45, s{S_KG}, {768*1280}")
            a.I(f"s_lshl_b32 s46, s{S_NB}, 7")
            a.I("s_add_u32 s47, s45, s46")
            self.srd(32, 12, 768 * 1280, off=47)
            self.dma_voff128(1280, 8, 9, 6, 7)
            a.I(f"s_mul_i32 s46, s44, {64*1280}")
            a.I("s_lshl_b32 s47, s44, 13")
            a.I(f"s_add_u32 s47, s47, {L_W}")
            self.dma_loop(32, 8, 8, 9, 47, 46, 8 * 1280, "L_wo_dma")
        a.I("s_mul_i32 s45, s44, 21846")
        a.I("s_lshr_b32 s45, s45, 16")
        a.I("s_mul_i32 s46, s45, 3")
        a.I("s_sub_u32 s46, s44, s46")
        a.I("s_lshl_b32 s46, s46, 6")
        a.I("v_add_u32 v10, s46, v5")
        a.I("v_mul_u32_u24 v11, 1366, v10")
        a.I("v_lshrrev_b32 v11, 16, v11")
        a.I("v_mul_u32_u24 v12, 48, v11")
        a.I("v_sub_u32 v12, v10, v12")
        a.I("v_mul_u32_u24 v11, 1536, v11")
        a.I("v_lshl_add_u32 v11, v12, 4, v11")
        a.I("s_lshl_b32 s63, s45, 5")
        a.I(f"s_lshl_b32 s46, s{S_KG}, 2")
        a.I("s_add_u32 s63, s63, s46")
        a.I("s_mul_i32 s63, s63, 1536")
        a.I(f"s_add_u32 s63, s63, {WS_O}")
        a.I("s_mul_i32 s46, s45, 1600")
        a.I(f"s_add_u32 s46, s46, {L_ACT}")
        a.I("v_lshl_add_u32 v13, v10, 3, s46")
        self.tr_addr128(14, 6, 7)
        a.I("s_and_b32 s45, s44, 3")
        a.I("s_lshl_b32 s45, s45, 5")
        a.I("v_xor_b32 v14, s45, v14")
        a.I("s_lshr_b32 s45, s44, 2")
        a.I("s_lshl_b32 s46, s45, 15")
        a.I(f"s_add_u32 s46, s46, {L_W}")
        a.I("v_add_u32 v14, s46, v14")
        self.act_addr(15, 1600, 6)
        a.I("s_lshl_b32 s46, s45, 9")
        a.I(f"s_add_u32 s46, s46, {L_ACT}")
        a.I("v_add_u32 v15, s46, v15")
        self.red_lane_addr(16, 6)
        a.I("v_and_b32 v17, 3, v5")
        a.I("v_mul_u32_u24 v17, 2560, v17")
        a.I("v_lshrrev_b32 v7, 2, v5")
        a.I("v_lshl_add_u32 v17, v7, 4, v17")
        a.I("s_waitcnt vmcnt(0)")
        a.I("s_barrier")
        self.stamp(9)
        self.mfma_preread(8, 14, 4096, 512, 40)
        self.poll(["buffer_load_dwordx4 v[20:23], v11, s[40:43], s63 offen sc1",
                   "buffer_load_dwordx4 v[24:27], v11, s[40:43], s63 offen offset:768 sc1"],
                  list(range(20, 28)), "L_po", pre=6)
        self.stamp(10)
        for k in range(4):
            a.I(f"v_add_f32 v{20+k}, v{20+k}, v{24+k}")
        a.I("v_cvt_pk_bf16_f32 v20, v20, v21")
        a.I("v_cvt_pk_bf16_f32 v21, v22, v23")
        a.I("ds_write_b64 v13, v[20:21]")
        a.I("s_waitcnt lgkmcnt(0)")
        a.I("s_barrier")
        self.mfma_with_b(8, 40, 15, 72, 20)
        self.write_red(20, 16)
        a.I("s_cmp_lg_u32 s44, 0")
        a.I("s_cbranch_scc1 L_wo_done")
        a.I("v_lshlrev_b32 v6, 4, v5")
        for kt in range(3):
            a.I(f"ds_read_b128 v[{20+4*kt}:{23+4*kt}], v6 offset:{L_RED + 1024*kt}")
        a.I(f"s_mul_i32 s45, s{S_KG}, 10240")
        a.I(f"s_lshl_b32 s46, s{S_NB}, 8")
        a.I("s_add_u32 s45, s45, s46")
        a.I(f"s_add_u32 s45, s45, {WS_Y}")
        a.I("s_waitcnt lgkmcnt(0)")
        for k in range(4):
            a.I(f"v_add_f32 v{20+k}, v{20+k}, v{24+k}")
        for k in range(4):
            a.I(f"v_add_f32 v{20+k}, v{20+k}, v{28+k}")
        self.canon([20, 21, 22, 23], 12)
        a.I("buffer_store_dwordx4 v[20:23], v17, s[40:43], s45 offen sc1")
        a.label("L_wo_done")
        self.stamp(11)

    def dma_band64(self, srd, rowstride, ninstr, v, lds_reg, soff_reg):
        a = self.a
        for i in range(ninstr):
            a.I(f"s_mov_b32 m0, s{lds_reg}")
            a.I(f"s_add_u32 s{lds_reg}, s{lds_reg}, 1024")
            a.I(f"buffer_load_dwordx4 v{v}, s[{srd}:{srd+3}], s{soff_reg} offen {self.cfg.ntW} lds")
            if i + 1 < ninstr:
                a.I(f"s_add_u32 s{soff_reg}, s{soff_reg}, {16*rowstride}")

    def dma_voff64(self, rowstride, v, t0, t1):
        a = self.a
        a.I(f"v_lshrrev_b32 v{t0}, 2, v5")
        a.I(f"v_bfe_u32 v{t1}, v5, 5, 1")
        a.I(f"v_lshlrev_b32 v{t1}, 5, v{t1}")
        a.I(f"v_and_b32 v{v}, 3, v5")
        a.I(f"v_lshlrev_b32 v{v}, 4, v{v}")
        a.I(f"v_xor_b32 v{v}, v{v}, v{t1}")
        a.I(f"v_mul_u32_u24 v{t0}, {rowstride}, v{t0}")
        a.I(f"v_add_u32 v{v}, v{v}, v{t0}")

    def tr_addr64(self, vdst, t0, t1):
        a = self.a
        a.I(f"v_lshrrev_b32 v{t0}, 4, v5")
        a.I(f"v_bfe_u32 v{t1}, v5, 2, 2")
        a.I(f"v_lshl_add_u32 v{vdst}, v{t0}, 3, v{t1}")
        a.I(f"v_lshlrev_b32 v{vdst}, 6, v{vdst}")
        a.I(f"v_and_b32 v{t0}, 1, v{t0}")
        a.I(f"v_lshl_or_b32 v{vdst}, v{t0}, 5, v{vdst}")
        a.I(f"v_and_b32 v{t0}, 3, v5")
        a.I(f"v_lshl_add_u32 v{vdst}, v{t0}, 3, v{vdst}")

    def x1_from_y(self, vy_addr_soff, yregs, ga, xr, out, t):
        a = self.a
        for k in range(4):
            a.I(f"v_add_f32 v{out+k}, v{yregs+k}, v{yregs+4+k}")
        for w in range(2, 8):
            for k in range(4):
                a.I(f"v_add_f32 v{out+k}, v{out+k}, v{yregs+4*w+k}")
        o = [out + k for k in range(4)]
        self.bf16_round(o, t)
        for p in range(2):
            self.unpack(ga + p, t + 1, t + 2)
            a.I(f"v_mul_f32 v{o[2*p]}, v{o[2*p]}, v{t+1}")
            a.I(f"v_mul_f32 v{o[2*p+1]}, v{o[2*p+1]}, v{t+2}")
        self.bf16_round(o, t)
        for p in range(2):
            self.unpack(xr + p, t + 1, t + 2)
            a.I(f"v_add_f32 v{o[2*p]}, v{o[2*p]}, v{t+1}")
            a.I(f"v_add_f32 v{o[2*p+1]}, v{o[2*p+1]}, v{t+2}")
        self.bf16_round(o, t)

    def post_gu(self):
        a = self.a
        a.I("s_mul_i32 s45, s44, 21846")
        a.I("s_lshr_b32 s87, s45, 16")
        a.I("s_mul_i32 s46, s87, 3")
        a.I("s_sub_u32 s88, s44, s46")
        a.I("s_mul_i32 s46, s88, 54")
        a.I("v_add_u32 v10, s46, v5")
        a.I("v_cmp_gt_u32 vcc, 54, v5")
        a.I("s_mov_b64 s[50:51], vcc")
        a.I("v_mov_b32 v6, 160")
        a.I("v_cmp_lt_u32 vcc, v10, v6")
        a.I("s_and_b64 s[50:51], s[50:51], vcc")
        a.I("v_min_u32 v10, 159, v10")
        a.I("v_lshlrev_b32 v11, 3, v10")
        a.I("s_mul_i32 s46, s87, 7680")
        a.I(f"s_add_u32 s46, s46, {WS_MOD}")
        self.srd(36, 4, 5120)
        a.I("s_mul_i32 s47, s87, 1280")
        a.I("buffer_load_dwordx2 v[18:19], v11, s[36:39], s47 offen")
        a.I("v_add_u32 v40, 2560, v11")
        a.I("v_add_u32 v41, 3840, v11")
        a.I("v_add_u32 v42, 5120, v11")
        a.I("s_mul_i32 s85, s87, 7680")
        a.I(f"s_add_u32 s85, s85, {WS_MOD}")
        a.I("v_lshlrev_b32 v32, 4, v10")
        a.I("s_mul_i32 s86, s87, 2560")
        a.I(f"s_add_u32 s86, s86, {WS_Y}")
        yloads = []
        for w in range(8):
            yloads.append((f"buffer_load_dwordx4 v[{48+4*w}:{51+4*w}], v{80+w if False else 140+w}, s[40:43], s86 offen sc1", [48+4*w+k for k in range(4)]))
            a.I(f"v_add_u32 v{140+w}, {10240*w}, v32")
        modloads = ["buffer_load_dwordx2 v[12:13], v40, s[40:43], s85 offen sc1",
                    "buffer_load_dwordx2 v[14:15], v41, s[40:43], s85 offen sc1",
                    "buffer_load_dwordx2 v[16:17], v42, s[40:43], s85 offen sc1"]
        for ld in modloads:
            a.I(ld)
        if not self.cfg.early_w:
            a.I("s_cmp_ge_u32 s44, 10")
            a.I("s_cbranch_scc1 L_gu_dn")
            a.I(f"s_lshl_b32 s47, s{S_NB}, 6")
            a.I("s_cmp_ge_u32 s44, 5")
            a.I("s_cselect_b32 s48, s18, s16")
            a.I("s_cselect_b32 s49, s19, s17")
            a.I("s_cselect_b32 s63, 5, 0")
            self.srd(32, 48, 640 * 3072, off=47)
            self.dma_voff64(3072, 8, 6, 7)
            a.I("s_sub_u32 s63, s44, s63")
            a.I(f"s_mul_i32 s46, s63, {128*3072}")
            a.I("s_lshl_b32 s47, s44, 13")
            a.I(f"s_add_u32 s47, s47, {L_W}")
            self.dma_loop(32, 8, 8, 8, 47, 46, 16 * 3072, "L_gu_dma", pol=self.cfg.ntG)
            a.I("s_waitcnt vmcnt(8)")
            a.I("s_branch L_gu_dma_done")
            a.label("L_gu_dn")
            a.I(f"s_mul_i32 s45, s{S_NB}, 40960")
            self.srd(32, 20, 40960, off=45)
            for m in range(5):
                a.I(f"v_lshlrev_b32 v6, 4, v5")
                a.I(f"v_add_u32 v6, {1024*m}, v6")
                a.I("v_mul_u32_u24 v7, 3277, v6")
                a.I("v_lshrrev_b32 v7, 22, v7")
                a.I("v_mul_u32_u24 v8, 1280, v7")
                a.I("v_sub_u32 v6, v6, v8")
                a.I("v_lshlrev_b32 v7, 5, v7")
                a.I("v_xor_b32 v9, v6, v7")
                a.I(f"v_add_u32 v{148+m}, v8, v9")
                a.I("v_xor_b32 v9, 128, v9")
                a.I(f"v_add_u32 v{153+m}, v8, v9")
            a.I("s_sub_u32 s63, s44, 10")
            a.I("s_mul_i32 s46, s63, 20480")
            a.I(f"s_add_u32 s47, s46, {L_WD}")
            for q in range(4):
                for m in range(5):
                    a.I("s_mov_b32 m0, s47")
                    a.I("s_add_u32 s47, s47, 1024")
                    a.I(f"buffer_load_dwordx4 v{(153 if (q >> 1) & 1 else 148) + m}, s[32:35], s46 offen {self.cfg.ntW} lds")
                if q < 3:
                    a.I("s_add_u32 s46, s46, 5120")
            a.I("s_waitcnt vmcnt(20)")
            a.label("L_gu_dma_done")
            a.fence(2)
        else:
            a.I("s_waitcnt vmcnt(0)")
        self.stamp(22)
        a.I("v_max3_u32 v6, v12, v13, v14")
        a.I("v_max3_u32 v6, v6, v15, v16")
        a.I("v_max_u32 v6, v6, v17")
        a.I("v_cmp_eq_u32 vcc, -1, v6")
        a.I("s_cmp_eq_u64 vcc, 0")
        a.I("s_cbranch_scc1 L_pm2_skip")
        self.poll(modloads, list(range(12, 18)), "L_pm2", pre=6)
        a.label("L_pm2_skip")
        self.stamp(23)
        self.unpack(16, 20, 21)
        self.unpack(17, 22, 23)
        for k in range(4):
            a.I(f"v_add_f32 v{20+k}, 1.0, v{20+k}")
        self.bf16_round([20, 21, 22, 23], 6)
        self.unpack(14, 24, 25)
        self.unpack(15, 26, 27)
        self.unpack(12, 84, 85)
        self.unpack(13, 86, 87)
        self.unpack(18, 88, 89)
        self.unpack(19, 90, 91)
        self.tr_addr64(28, 6, 7)
        a.I("s_and_b32 s45, s44, 1")
        a.I("s_lshl_b32 s45, s45, 5")
        a.I("v_xor_b32 v28, s45, v28")
        a.I("s_bfe_u32 s45, s44, 0x10001")
        a.I("s_mul_i32 s45, s45, 40960")
        a.I("s_lshr_b32 s46, s44, 2")
        a.I(f"s_mul_i32 s47, s46, {7*2048}")
        a.I("s_add_u32 s45, s45, s47")
        a.I(f"s_add_u32 s45, s45, {L_W}")
        a.I("v_add_u32 v28, s45, v28")
        self.act_addr(29, 1344, 6)
        a.I(f"s_mul_i32 s47, s46, {7*64}")
        a.I(f"s_add_u32 s47, s47, {L_ACT}")
        a.I("v_add_u32 v29, s47, v29")
        self.red_lane_addr(30, 6)
        a.I("s_mul_i32 s47, s87, 1344")
        a.I(f"s_add_u32 s47, s47, {L_ACT}")
        a.I("v_lshl_add_u32 v31, v10, 3, s47")
        a.I("s_mul_i32 s45, s87, 1280")
        a.I(f"s_add_u32 s45, s45, {L_OPART}")
        a.I("v_lshl_add_u32 v92, v10, 3, s45")
        a.I("s_cmp_eq_u32 s88, 2")
        a.I("s_mov_b32 s45, 0x3b9d89d9")
        a.I("s_cselect_b32 s45, s45, 0x3b97b426")
        a.I("v_mov_b32 v93, s45")
        a.I("s_lshl_b32 s45, s44, 3")
        a.I(f"s_add_u32 s45, s45, {L_LNST}")
        a.I("v_mov_b32 v94, s45")
        a.I("s_mul_i32 s45, s87, 24")
        a.I(f"s_add_u32 s45, s45, {L_LNST}")
        a.I("v_mov_b32 v95, s45")
        if self.cfg.early_w:
            a.I("s_cmp_eq_u32 s44, 3")
        else:
            a.I("s_cmp_ge_u32 s44, 10")
        a.I("s_cbranch_scc1 L_gu_nowait")
        a.I("s_waitcnt vmcnt(0)")
        a.label("L_gu_nowait")
        a.I("s_barrier")
        self.stamp(9)
        self.mfma_preread(7, 28, 2048, 256, 96)
        a.I("v_lshrrev_b32 v6, 4, v5")
        a.I("v_bfe_u32 v7, v5, 2, 2")
        a.I("v_lshl_add_u32 v8, v6, 3, v7")
        a.I("v_mul_u32_u24 v8, 1280, v8")
        a.I("v_and_b32 v9, 3, v5")
        a.I("v_lshl_add_u32 v8, v9, 3, v8")
        a.I(f"v_add_u32 v8, {L_WD}, v8")
        a.I("v_and_b32 v6, 1, v6")
        a.I("v_lshl_or_b32 v7, v6, 2, v7")
        a.I("v_lshlrev_b32 v7, 5, v7")
        for t in range(4):
            a.I(f"s_add_u32 s45, s44, {12*t}")
            a.I("s_lshl_b32 s45, s45, 5")
            a.I(f"v_xor_b32 v9, s45, v7")
            a.I(f"v_add_u32 v{148+t}, v8, v9")
        if self.cfg.ygate:
            a.I("s_and_b32 s45, s44, 7")
            a.I("s_mul_i32 s45, s45, 10240")
            a.I("v_add_u32 v6, s45, v32")
            self.poll(["buffer_load_dwordx4 v[44:47], v6, s[40:43], s86 offen sc1"], [44, 45, 46, 47], "L_pyg", pre=7)
        self.poll_sel(yloads, "L_py", 6)
        self.stamp(10)
        for (o_, d, q) in ((48, 48, 52), (56, 56, 60), (64, 64, 68), (72, 72, 76), (48, 48, 56), (64, 64, 72), (40, 48, 64)):
            a.I(f"v_pk_add_f32 v[{o_}:{o_+1}], v[{d}:{d+1}], v[{q}:{q+1}]")
            a.I(f"v_pk_add_f32 v[{o_+2}:{o_+3}], v[{d+2}:{d+3}], v[{q+2}:{q+3}]")
        o = [40, 41, 42, 43]
        self.bf16_round(o, 6)
        a.I("v_pk_mul_f32 v[40:41], v[40:41], v[84:85]")
        a.I("v_pk_mul_f32 v[42:43], v[42:43], v[86:87]")
        self.bf16_round(o, 6)
        a.I("v_pk_add_f32 v[40:41], v[40:41], v[88:89]")
        a.I("v_pk_add_f32 v[42:43], v[42:43], v[90:91]")
        a.I("v_cvt_pk_bf16_f32 v36, v40, v41")
        a.I("v_cvt_pk_bf16_f32 v37, v42, v43")
        self.unpack(36, 32, 33)
        self.unpack(37, 34, 35)
        a.I("s_mov_b64 exec, s[50:51]")
        a.I("ds_write_b64 v92, v[36:37]")
        a.I("s_mov_b64 exec, -1")
        a.I("v_readfirstlane_b32 s46, v32")
        for k in range(4):
            a.I(f"v_subrev_f32 v{40+k}, s46, v{32+k}")
        a.I("v_add_f32 v36, v40, v41")
        a.I("v_mul_f32 v37, v40, v40")
        a.I("v_add_f32 v38, v42, v43")
        a.I("v_fmac_f32 v37, v41, v41")
        a.I("v_add_f32 v36, v36, v38")
        a.I("v_fmac_f32 v37, v42, v42")
        a.I("v_fmac_f32 v37, v43, v43")
        a.I("v_cndmask_b32 v36, 0, v36, s[50:51]")
        a.I("v_cndmask_b32 v37, 0, v37, s[50:51]")
        for r in (8, 4, 2, 1):
            for v in (36, 37):
                a.I(f"v_add_f32_dpp v{v}, v{v}, v{v} row_ror:{r} row_mask:0xf bank_mask:0xf")
        for m in ("row_bcast:15 row_mask:0xa", "row_bcast:31 row_mask:0xc"):
            for v in (36, 37):
                a.I(f"v_add_f32_dpp v{v}, v{v}, v{v} {m} bank_mask:0xf")
        a.I("v_readlane_b32 s47, v36, 63")
        a.I("v_readlane_b32 s45, v37, 63")
        a.I("v_mul_f32 v38, s47, v93")
        a.I("v_mov_b32 v39, s45")
        a.I("v_add_f32 v37, s46, v38")
        a.I("v_mul_f32 v38, s47, v38")
        a.I("v_sub_f32 v38, v39, v38")
        a.I("ds_write_b32 v94, v37")
        a.I("ds_write_b32 v94, v38 offset:4")
        a.I("s_waitcnt lgkmcnt(0)")
        a.I("s_barrier")
        for t in range(4):
            b = 124 + 4 * t
            a.I(f"ds_read_b64_tr_b16 v[{b}:{b+1}], v{148+t}")
            a.I(f"ds_read_b64_tr_b16 v[{b+2}:{b+3}], v{148+t} offset:{4*1280}")
        a.I("ds_read_b64 v[40:41], v95")
        a.I("ds_read_b64 v[42:43], v95 offset:8")
        a.I("ds_read_b64 v[44:45], v95 offset:16")
        a.I("s_waitcnt lgkmcnt(0)")
        a.I("v_add_f32 v46, v40, v42")
        a.I("v_mul_f32 v46, 0x43580000, v46")
        a.I("v_mov_b32 v47, 0x43500000")
        a.I("v_fmac_f32 v46, v47, v44")
        a.I("v_mul_f32 v46, 0x3acccccd, v46")
        a.I("v_sub_f32 v40, v40, v46")
        a.I("v_sub_f32 v42, v42, v46")
        a.I("v_sub_f32 v44, v44, v46")
        a.I("v_mul_f32 v40, v40, v40")
        a.I("v_fmac_f32 v40, v42, v42")
        a.I("v_mul_f32 v40, 0x43580000, v40")
        a.I("v_mul_f32 v44, v44, v44")
        a.I("v_fmac_f32 v40, v47, v44")
        a.I("v_add_f32 v40, v40, v41")
        a.I("v_add_f32 v40, v40, v43")
        a.I("v_add_f32 v40, v40, v45")
        a.I("v_mul_f32 v40, 0x3acccccd, v40")
        self.ln_denom(40, 48)
        a.I("v_cvt_pk_bf16_f32 v46, v46, v46")
        a.I("v_lshlrev_b32 v46, 16, v46")
        a.I("v_rcp_f32 v41, v40")
        o = [32, 33, 34, 35]
        for r in o:
            a.I(f"v_sub_f32 v{r}, v{r}, v46")
        self.bf16_round(o, 6)
        for r in o:
            self.div_by(r, 40, 41, 7)
        self.bf16_round(o, 6)
        for k, r in enumerate(o):
            a.I(f"v_mul_f32 v{r}, v{r}, v{20+k}")
        self.bf16_round(o, 6)
        for k, r in enumerate(o):
            a.I(f"v_add_f32 v{r}, v{r}, v{24+k}")
        a.I("v_cvt_pk_bf16_f32 v32, v32, v33")
        a.I("v_cvt_pk_bf16_f32 v33, v34, v35")
        a.I("s_mov_b64 exec, s[50:51]")
        a.I("ds_write_b64 v31, v[32:33]")
        a.I("s_mov_b64 exec, -1")
        a.I("s_waitcnt lgkmcnt(0)")
        a.I("s_barrier")
        a.I("s_cmp_ge_u32 s44, 8")
        a.I("s_cbranch_scc1 L_gu_m6")
        self.mfma_with_b(7, 96, 29, 40, 20)
        a.I("s_branch L_gu_mdone")
        a.label("L_gu_m6")
        a.fence(2)
        self.mfma_with_b(6, 96, 29, 40, 20)
        a.label("L_gu_mdone")
        a.fence(8)
        self.write_red(20, 30)
        a.I("s_cmp_lg_u32 s44, 0")
        a.I("s_cbranch_scc1 L_gu_done")
        a.I("v_lshlrev_b32 v6, 4, v5")
        for kt in range(3):
            a.I(f"ds_read_b128 v[{20+4*kt}:{23+4*kt}], v6 offset:{L_RED + 1024*kt}")
        a.I("s_waitcnt lgkmcnt(0)")
        for k in range(4):
            a.I(f"v_add_f32 v{20+k}, v{20+k}, v{24+k}")
        for k in range(4):
            a.I(f"v_add_f32 v{20+k}, v{20+k}, v{28+k}")
        self.bf16_round([20, 21, 22, 23], 6)
        for k in range(4):
            a.I(f"v_mov_b32 v{24+k}, v{20+k}")
        for k in range(4):
            a.I(f"v_permlane32_swap_b32 v{20+k}, v{24+k}")
        for k in range(4):
            a.I(f"v_mul_f32 v{20+k}, v{20+k}, v{24+k}")
        a.I("v_cvt_pk_bf16_f32 v20, v20, v21")
        a.I("v_cvt_pk_bf16_f32 v21, v22, v23")
        a.I("v_and_b32 v6, 3, v5")
        a.I("v_lshlrev_b32 v6, 6, v6")
        a.I("v_bfe_u32 v7, v5, 2, 3")
        a.I("v_lshl_add_u32 v6, v7, 3, v6")
        a.I("s_mov_b32 exec_lo, -1"); a.I("s_mov_b32 exec_hi, 0")
        a.I(f"ds_write_b64 v6, v[20:21] offset:{L_QV}")
        a.I("s_mov_b64 exec, -1")
        a.I("s_waitcnt lgkmcnt(0)")
        a.label("L_gu_done")
        a.I("s_barrier")
        a.I("v_and_b32 v6, 3, v5")
        a.I("v_lshlrev_b32 v6, 6, v6")
        a.I("v_lshrrev_b32 v7, 4, v5")
        a.I("v_lshl_add_u32 v6, v7, 4, v6")
        a.I(f"ds_read_b128 v[40:43], v6 offset:{L_QV}")
        a.I("v_and_b32 v6, 3, v5")
        a.I("v_lshlrev_b32 v6, 6, v6")
        a.I("v_lshl_add_u32 v6, v7, 4, v6")
        a.I("s_mul_i32 s45, s44, 12288")
        a.I(f"s_lshl_b32 s46, s{S_NB}, 8")
        a.I("s_add_u32 s45, s45, s46")
        a.I(f"s_add_u32 s45, s45, {WS_PD}")
        a.I("s_waitcnt lgkmcnt(0)")
        for t in range(4):
            a.I(f"v_mfma_f32_16x16x32_bf16 v[{44+4*t}:{47+4*t}], v[{124+4*t}:{127+4*t}], v[40:43], 0")
        a.I(f"s_mov_b32 exec_lo, 0x{MASK_N4_LO:x}")
        a.I(f"s_mov_b32 exec_hi, 0x{MASK_N4_LO:x}")
        for t in range(4):
            if t == 3:
                a.I("s_cmp_ge_u32 s44, 4")
                a.I("s_cbranch_scc1 L_gu_st_done")
            self.canon([44+4*t+k for k in range(4)], 12)
            a.I(f"buffer_store_dwordx4 v[{44+4*t}:{47+4*t}], v6, s[40:43], s45 offen sc1")
            if t < 3:
                a.I(f"s_add_u32 s45, s45, {12*12288}")
        a.label("L_gu_st_done")
        a.I("s_mov_b64 exec, -1")
        self.stamp(11)

    def post_final(self):
        a = self.a
        a.fence(2)
        a.I("v_lshlrev_b32 v10, 4, v5")
        a.I(f"s_mul_i32 s47, s{S_DT}, 12288")
        a.I("s_lshl_b32 s45, s44, 10")
        a.I("s_add_u32 s47, s47, s45")
        a.I(f"s_add_u32 s47, s47, {WS_PD}")
        a.I("v_bfe_u32 v12, v5, 2, 2")
        a.I("v_and_b32 v13, 3, v5")
        a.I("v_mul_u32_u24 v14, 7680, v12")
        a.I("v_lshl_add_u32 v14, v13, 3, v14")
        a.I(f"s_lshl_b32 s45, s{S_DT}, 5")
        a.I(f"s_add_u32 s46, s45, {WS_MOD + 6400}")
        a.I("v_mul_u32_u24 v31, 1280, v12")
        a.I("v_lshl_add_u32 v31, v13, 3, v31")
        a.I(f"s_add_u32 s45, s45, {L_OPART}")
        a.I("v_add_u32 v31, s45, v31")
        a.I("v_and_b32 v30, 15, v5")
        a.I("v_lshlrev_b32 v30, 4, v30")
        a.I("s_lshl_b32 s45, s44, 8")
        a.I(f"s_add_u32 s45, s45, {L_RED}")
        a.I("v_add_u32 v29, s45, v30")
        self.stamp(19)
        self.poll(["buffer_load_dwordx4 v[40:43], v10, s[40:43], s47 offen sc1",
                   "buffer_load_dwordx2 v[22:23], v14, s[40:43], s46 offen sc1"], [40, 41, 42, 43, 22, 23], "L_ph", pre=6)
        self.stamp(20)
        for sw in ("v_permlane32_swap_b32", "v_permlane16_swap_b32"):
            for k in range(4):
                a.I(f"v_mov_b32 v{44+k}, v{40+k}")
            for k in range(4):
                a.I(f"{sw} v{40+k}, v{44+k}")
            for k in range(4):
                a.I(f"v_add_f32 v{40+k}, v{40+k}, v{44+k}")
        a.I("s_mov_b32 exec_lo, 0xffff"); a.I("s_mov_b32 exec_hi, 0")
        a.I("ds_write_b128 v29, v[40:43]")
        a.I("s_mov_b64 exec, -1")
        a.I("s_waitcnt lgkmcnt(0)")
        a.I("s_barrier")
        a.I("s_cmp_lg_u32 s44, 0")
        a.I("s_cbranch_scc1 L_dn_done")
        a.I("v_lshrrev_b32 v6, 4, v5")
        a.I("v_mul_u32_u24 v6, 768, v6")
        a.I("v_add_u32 v6, v6, v30")
        for k in range(3):
            a.I(f"ds_read_b128 v[{40+4*k}:{43+4*k}], v6 offset:{L_RED + 256*k}")
        a.I("ds_read_b64 v[32:33], v31")
        self.srd(36, 26, 5120)
        a.I("s_waitcnt lgkmcnt(0)")
        for k in range(4):
            a.I(f"v_add_f32 v{40+k}, v{40+k}, v{44+k}")
        for k in range(4):
            a.I(f"v_add_f32 v{40+k}, v{40+k}, v{48+k}")
        for sw in ("v_permlane32_swap_b32", "v_permlane16_swap_b32"):
            for k in range(4):
                a.I(f"v_mov_b32 v{44+k}, v{40+k}")
            for k in range(4):
                a.I(f"{sw} v{40+k}, v{44+k}")
            for k in range(4):
                a.I(f"v_add_f32 v{40+k}, v{40+k}, v{44+k}")
        o = [40, 41, 42, 43]
        self.bf16_round(o, 6)
        self.unpack(22, 24, 25)
        self.unpack(23, 26, 27)
        for k in range(4):
            a.I(f"v_mul_f32 v{40+k}, v{40+k}, v{24+k}")
        self.bf16_round(o, 6)
        self.unpack(32, 24, 25)
        self.unpack(33, 26, 27)
        for k in range(4):
            a.I(f"v_add_f32 v{40+k}, v{40+k}, v{24+k}")
        a.I("v_cvt_pk_bf16_f32 v40, v40, v41")
        a.I("v_cvt_pk_bf16_f32 v41, v42, v43")
        a.I("v_mul_u32_u24 v6, 1280, v12")
        a.I("v_lshl_add_u32 v6, v13, 3, v6")
        a.I(f"s_lshl_b32 s45, s{S_DT}, 5")
        a.I("s_mov_b32 exec_lo, 0xffff"); a.I("s_mov_b32 exec_hi, 0")
        a.I(f"buffer_store_dwordx2 v[40:41], v6, s[36:39], s45 offen {self.cfg.outpol}")
        a.I("s_mov_b64 exec, -1")
        a.label("L_dn_done")
        self.stamp(21)

    def tail(self):
        a = self.a
        a.label("L_tail")
        if self.cfg.dbgt:
            a.fence(4)
            a.I("s_cmp_eq_u32 s44, 0")
            a.I("s_cbranch_scc0 L_end")
            self.stamp(13)
            a.I("s_mov_b64 exec, 1")
            a.I("s_not_b32 s98, s98")
            for i, r in enumerate((98, 77, 72, 66, 64 + 4, 64 + 6)):
                a.I(f"v_mov_b32 v6, {16 + 4*i}")
                a.I(f"v_mov_b32 v7, s{r}")
                a.I("global_atomic_umax v6, v7, s[28:29] sc1")
            a.I("s_branch L_end")
        if self.diag and not self.cfg.dbgt:
            a.fence(4)
            self.stamp(13)
            a.I(f"s_lshl_b32 s79, s{S_PRE}, 4")
            a.I(f"s_or_b32 s79, s79, s{S_POST}")
            a.I("s_mul_i32 s45, s2, 12")
            a.I("s_add_u32 s45, s45, s44")
            a.I("s_lshl_b32 s45, s45, 7")
            a.I(f"s_add_u32 s45, s45, {WS_DBG}")
            a.I("s_mov_b64 exec, 1")
            a.I("v_mov_b32 v6, 0")
            regs = [64 + k for k in range(16)] + [93 + k for k in range(8)]
            for q in range(6):
                for k in range(4):
                    a.I(f"v_mov_b32 v{8+k}, s{regs[4*q+k]}")
                a.I(f"buffer_store_dwordx4 v[8:11], v6, s[40:43], s45 offen offset:{16*q}")
                a.I("s_nop 1")
        a.label("L_end")
        a.I("s_endpgm")
        a.raw(f""".section .rodata,"a"
.p2align 6
.amdhsa_kernel {self.name}
  .amdhsa_next_free_vgpr 168
  .amdhsa_next_free_sgpr 102
  .amdhsa_accum_offset 168
  .amdhsa_group_segment_fixed_size 0
  .amdhsa_float_denorm_mode_32 3
  .amdhsa_kernarg_size 112
  .amdhsa_user_sgpr_count 2
  .amdhsa_user_sgpr_kernarg_segment_ptr 1
  .amdhsa_system_sgpr_workgroup_id_x 1
.end_amdhsa_kernel""")

    def build(self):
        self.entry()
        self.helper_front()
        self.stream()
        self.helper()
        self.a.I("s_branch L_post")
        self.stream_bulk()
        self.post()
        self.tail()
        txt = self.a.text()
        if self.cfg.hop2:
            assert self.nseg <= 7, self.nseg
            w = ["  s_mov_b64 exec, 0"]
            for k in range(self.nseg):
                w += [f"  s_cmp_eq_u32 s44, {4 + k}", f"  s_cbranch_scc1 L_hopP{k}_0"]
            w += ["L_warm2_ret:", "  s_mov_b64 exec, -1"]
            txt = txt.replace("@@WARM2@@", "\n".join(w))
        return txt


def make(path, diag=False, name=KNAME, **kw):
    cfg = StreamCfg()
    for k, v in kw.items():
        setattr(cfg, k, v)
    g = Gen(cfg, diag=diag, name=name)
    txt = g.build()
    open(path, 'w').write(txt)
    return g


if __name__ == '__main__':
    out = sys.argv[1]
    kw = {}
    diag = False
    name = KNAME
    for kv in sys.argv[2:]:
        k, v = kv.split('=')
        if k == 'diag': diag = bool(int(v))
        elif k == 'name': name = v
        else: kw[k] = v.replace('_', ' ').replace('none', '') if k in ('nt', 'pfpol', 'ntV', 'ntW', 'outpol', 'ntG') else int(v)
    g = make(out, diag=diag, name=name, **kw)
    print(out, 'nops', g.a.nops)
```

```python
import sys
sys.path.insert(0, 'gen')
from asmdsl import Asm
import stream as st
from stream import StreamCfg, LOG2E

KNAME = 'adaLN_cond__gqa_block_cached__glu_gated_bilinear__decode_kernel'

WS_MOD, WS_Q, WS_ML, WS_O, WS_Y, WS_PD, WS_DBG = 0, 0x8000, 0x38000, 0x40000, 0x70000, 0x84000, 0x100000
WS_SIZE = 0x200000
L_ACT = 0x0000
L_RED = 0x3200
L_QV = 0x4200
L_STATS = 0x4400
L_FIN = 0x4480
L_HFLAG = 0x4500
L_LNST = 0x4540
L_P = 0x4600
L_OPART = 0x5A00
L_W = 0x7200
L_WD = L_W + 81920
L_X1 = 0x6E00
LDS_BYTES = L_W + 81920 + 40960 + 512
LDS = dict(QV=L_QV, STATS=L_STATS, FIN=L_FIN, P=L_P, OPART=L_OPART, TICKET=L_FIN + 8)

SPIN_MAX = 1 << 16
NANF = 0x7fc00000
NANB = 0x7fc07fc0
EPS = 0x3727c5ac

S = dict(srdK=32, srdV=36, srdW=40, wave=44, tmp=45, soff=46, mask0=48, mask1=50, sello=52, selhi=53, log2e=54,
         m=55, l=56, b=57, h=58, half=59, spin=62)
S_PRE, S_BAND, S_POST, S_NB, S_KG = 80, 81, 82, 83, 84
S_KH, S_LATE, S_PHASE, S_DT = 89, 90, 91, 92
MASK_N4_LO = 0x000f000f


class Gen:
    def __init__(self, cfg, diag=False, name=KNAME):
        self.a = Asm()
        self.cfg = cfg
        self.diag = diag
        self.name = name

    def stamp(self, k):
        if not self.diag:
            return
        a = self.a
        a.I("s_memrealtime s[60:61]")
        a.I("s_waitcnt lgkmcnt(0)")
        a.I(f"s_mov_b32 s{64+k if k < 16 else 93+k-16}, s60")

    def srd(self, dst, ptr, size, off=None):
        a = self.a
        if off is None:
            a.I(f"s_mov_b32 s{dst}, s{ptr}")
            a.I(f"s_mov_b32 s{dst+1}, s{ptr+1}")
        else:
            a.I(f"s_add_u32 s{dst}, s{ptr}, s{off}")
            a.I(f"s_addc_u32 s{dst+1}, s{ptr+1}, 0")
        a.I(f"s_mov_b32 s{dst+2}, {size}")
        a.I(f"s_mov_b32 s{dst+3}, 0x20000")

    def canon(self, regs, nanreg=None):
        a = self.a
        for r in regs:
            a.I(f"v_min_u32 v{r}, -2, v{r}")

    def poll_sel(self, loads, label, t, first_issued=False):
        a = self.a
        n = len(loads)
        a.I(f"s_mov_b32 s63, {(1 << n) - 1}")
        a.I("s_mov_b32 s62, 0")
        if first_issued:
            a.I(f"s_branch {label}_chk")
        a.label(label)
        for i, (ld, regs) in enumerate(loads):
            a.I(f"s_bitcmp1_b32 s63, {i}")
            a.I(f"s_cbranch_scc0 {label}_s{i}")
            a.I(ld)
            a.label(f"{label}_s{i}")
        a.label(f"{label}_chk")
        a.I("s_add_u32 s62, s62, 1")
        a.I("s_waitcnt vmcnt(0)")
        for i, (ld, regs) in enumerate(loads):
            r = regs
            a.I(f"v_max3_u32 v{t}, v{r[0]}, v{r[1]}, v{r[2]}")
            a.I(f"v_max_u32 v{t}, v{t}, v{r[3]}")
            a.I(f"v_cmp_eq_u32 vcc, -1, v{t}")
            a.I("s_cmp_eq_u64 vcc, 0")
            a.I(f"s_cbranch_scc0 {label}_p{i}")
            a.I(f"s_bitset0_b32 s63, {i}")
            a.label(f"{label}_p{i}")
        a.I("s_cmp_eq_u32 s63, 0")
        a.I(f"s_cbranch_scc1 {label}_ok")
        a.I(f"s_cmp_lt_u32 s62, {SPIN_MAX}")
        a.I(f"s_cbranch_scc1 {label}")
        a.label(f"{label}_ok")

    def poll(self, loads, regs, label, pre=None):
        a = self.a
        a.I("s_mov_b32 s62, 0")
        a.label(label)
        for ld in loads:
            a.I(ld)
        a.I("s_add_u32 s62, s62, 1")
        a.I("s_waitcnt vmcnt(0)")
        rs = list(regs)
        t = pre
        first = True
        i = 0
        while i < len(rs):
            if first:
                if len(rs) >= 3:
                    a.I(f"v_max3_u32 v{t}, v{rs[0]}, v{rs[1]}, v{rs[2]}"); i = 3
                elif len(rs) == 2:
                    a.I(f"v_max_u32 v{t}, v{rs[0]}, v{rs[1]}"); i = 2
                else:
                    a.I(f"v_mov_b32 v{t}, v{rs[0]}"); i = 1
                first = False
            elif i + 1 < len(rs):
                a.I(f"v_max3_u32 v{t}, v{t}, v{rs[i]}, v{rs[i+1]}"); i += 2
            else:
                a.I(f"v_max_u32 v{t}, v{t}, v{rs[i]}"); i += 1
        a.I(f"v_cmp_eq_u32 vcc, -1, v{t}")
        a.I("s_cmp_eq_u64 vcc, 0")
        a.I(f"s_cbranch_scc1 {label}_ok")
        a.I(f"s_cmp_lt_u32 s62, {SPIN_MAX}")
        a.I(f"s_cbranch_scc1 {label}")
        a.label(f"{label}_ok")

    def poll_counter(self, off, expect, label, vz, vt):
        a = self.a
        a.I(f"v_mov_b32 v{vz}, {off}")
        a.I("s_mov_b32 s62, 0")
        a.I("s_mov_b64 exec, 1")
        a.label(label)
        a.I(f"global_load_dword v{vt}, v{vz}, s[28:29] sc1")
        a.I("s_add_u32 s62, s62, 1")
        a.I("s_waitcnt vmcnt(0)")
        a.I(f"v_readfirstlane_b32 s45, v{vt}")
        a.I(f"s_cmp_ge_u32 s45, {expect}")
        a.I(f"s_cbranch_scc1 {label}_ok")
        a.I(f"s_cmp_lt_u32 s62, {SPIN_MAX}")
        a.I(f"s_cbranch_scc1 {label}")
        a.label(f"{label}_ok")
        a.I("s_mov_b64 exec, -1")

    def hsync(self, k, label, vz, vt):
        a = self.a
        a.I("s_waitcnt lgkmcnt(0)")
        a.I("s_lshl_b32 s45, s44, 2")
        a.I(f"s_add_u32 s45, s45, {L_HFLAG}")
        a.I(f"v_mov_b32 v{vz}, s45")
        a.I(f"v_mov_b32 v{vt}, {k}")
        a.I(f"ds_write_b32 v{vz}, v{vt}")
        a.I(f"v_mov_b32 v{vz}, {L_HFLAG}")
        a.I("s_mov_b32 s62, 0")
        a.label(label)
        a.I(f"ds_read_b128 v[{vt}:{vt+3}], v{vz}")
        a.I("s_add_u32 s62, s62, 1")
        a.I("s_waitcnt lgkmcnt(0)")
        a.I(f"v_min3_u32 v{vt}, v{vt}, v{vt+1}, v{vt+2}")
        a.I(f"v_min_u32 v{vt}, v{vt}, v{vt+3}")
        a.I(f"v_readfirstlane_b32 s45, v{vt}")
        a.I(f"s_cmp_ge_u32 s45, {k}")
        a.I(f"s_cbranch_scc1 {label}_ok")
        a.I(f"s_cmp_lt_u32 s62, {SPIN_MAX*4}")
        a.I(f"s_cbranch_scc1 {label}")
        a.label(f"{label}_ok")

    def bf16_round(self, regs, tmp):
        a = self.a
        for i in range(0, len(regs), 2):
            a.I(f"v_cvt_pk_bf16_f32 v{tmp}, v{regs[i]}, v{regs[i+1]}")
            a.I(f"v_lshlrev_b32 v{regs[i]}, 16, v{tmp}")
            a.I(f"v_and_b32 v{regs[i+1]}, 0xffff0000, v{tmp}")

    def unpack(self, src, lo, hi):
        a = self.a
        a.I(f"v_lshlrev_b32 v{lo}, 16, v{src}")
        a.I(f"v_and_b32 v{hi}, 0xffff0000, v{src}")

    def wave_sum_bcast(self, v, sdst):
        st.wave_reduce(self.a, 'v_add_f32', v, sdst)

    def ln_denom(self, vvar, vt):
        a = self.a
        a.I(f"v_cvt_pk_bf16_f32 v{vt}, v{vvar}, v{vvar}")
        a.I(f"v_lshlrev_b32 v{vvar}, 16, v{vt}")
        a.I(f"v_add_f32 v{vvar}, 0x{EPS:x}, v{vvar}")
        a.I(f"v_cvt_pk_bf16_f32 v{vt}, v{vvar}, v{vvar}")
        a.I(f"v_lshlrev_b32 v{vvar}, 16, v{vt}")
        a.I(f"v_sqrt_f32 v{vt}, v{vvar}")
        a.I(f"v_rcp_f32 v{vt+1}, v{vt}")
        a.I(f"v_fma_f32 v{vt+2}, -v{vt}, v{vt}, v{vvar}")
        a.I(f"v_mul_f32 v{vt+1}, 0.5, v{vt+1}")
        a.I(f"v_fma_f32 v{vt}, v{vt+2}, v{vt+1}, v{vt}")
        a.I(f"v_cvt_pk_bf16_f32 v{vt}, v{vt}, v{vt}")
        a.I(f"v_lshlrev_b32 v{vvar}, 16, v{vt}")

    def div_by(self, num, den, rcp, t):
        a = self.a
        a.I(f"v_mul_f32 v{t}, v{num}, v{rcp}")
        a.I(f"v_fma_f32 v{num}, -v{t}, v{den}, v{num}")
        a.I(f"v_fma_f32 v{num}, v{num}, v{rcp}, v{t}")

    def entry(self):
        a = self.a
        a.raw(f"; @launch grid=(256,1,1) block=(768,1,1) lds={LDS_BYTES}")
        a.raw('.amdgcn_target "amdgcn-amd-amdhsa--gfx950"\n.text')
        a.raw(f".globl {self.name}\n.p2align 8\n.type {self.name},@function\n{self.name}:")
        a.I("s_cmp_ge_u32 s2, 256")
        a.I("s_cbranch_scc1 L_end")
        if self.cfg.dbgt:
            a.I("s_memrealtime s[98:99]")
        a.I("s_load_dwordx16 s[4:19], s[0:1], 0")
        a.I("s_load_dwordx8 s[20:27], s[0:1], 64")
        a.I("s_load_dwordx4 s[28:31], s[0:1], 96")
        a.I("v_lshrrev_b32 v1, 6, v0")
        a.I("v_and_b32 v5, 63, v0")
        a.I("v_readfirstlane_b32 s44, v1")
        a.I("s_lshr_b32 s45, s2, 1")
        a.I(f"s_mov_b32 s{S_PRE}, 2")
        a.I("s_bitcmp1_b32 s2, 0")
        a.I("s_cbranch_scc1 L_early_q")
        a.I(f"s_sub_u32 s{S_BAND}, s45, 4")
        a.I(f"s_cmp_lt_u32 s{S_BAND}, 60")
        a.I(f"s_cselect_b32 s{S_PRE}, 1, 0")
        a.I("s_cmp_lt_u32 s45, 64")
        a.I("s_cbranch_scc1 L_early_done")
        a.I(f"s_mov_b32 s{S_PRE}, 2")
        a.I("s_add_u32 s45, s45, 64")
        a.label("L_early_q")
        a.I(f"s_lshr_b32 s{S_BAND}, s45, 1")
        a.I(f"s_and_b32 s{S_KH}, s45, 1")
        a.label("L_early_done")
        a.I("s_cmp_lt_u32 s44, 4")
        a.I("s_cbranch_scc0 L_stream")

    def pair_unit(self, sv, sdst):
        a = self.a
        a.I(f"s_and_b32 s46, s{sv}, 7")
        a.I(f"s_lshr_b32 s47, s{sv}, 4")
        a.I("s_lshl_b32 s47, s47, 3")
        a.I("s_add_u32 s46, s46, s47")
        a.I(f"s_bfe_u32 s47, s{sv}, 0x10003")
        a.I(f"s_lshl_b32 s{sdst}, s46, 1")
        a.I(f"s_add_u32 s{sdst}, s{sdst}, s47")

    def roles_rest(self):
        a = self.a
        if self.cfg.xp == 0:
            a.I("s_and_b32 s45, s2, 7")
            a.I("s_lshr_b32 s46, s2, 3")
            a.I("s_and_b32 s47, s46, 3")
            a.I("s_lshl_b32 s47, s47, 3")
            a.I("s_add_u32 s58, s45, s47")
            a.I("s_lshr_b32 s46, s2, 5")
            a.I("s_lshr_b32 s57, s46, 1")
            a.I("s_and_b32 s59, s46, 1")
        else:
            a.I("s_and_b32 s59, s2, 1")
            a.I(f"s_xor_b32 s45, s2, {self.cfg.xp}")
            a.I("s_cmp_eq_u32 s59, 0")
            a.I("s_cselect_b32 s45, s2, s45")
            a.I("s_bfe_u32 s45, s45, 0x20001")
            a.I("s_lshr_b32 s46, s2, 3")
            a.I("s_lshr_b32 s57, s46, 3")
            a.I("s_and_b32 s46, s46, 7")
            a.I("s_lshl_b32 s46, s46, 2")
            a.I("s_add_u32 s58, s46, s45")
        a.I(f"s_mov_b32 s{S_POST}, 0")
        a.I("s_lshr_b32 s45, s2, 1")
        a.I("s_mul_i32 s46, s45, 6554")
        a.I("s_lshr_b32 s46, s46, 16")
        a.I(f"s_mov_b32 s{S_KG}, s46")
        a.I("s_mul_i32 s47, s46, 10")
        a.I(f"s_sub_u32 s{S_NB}, s45, s47")
        a.I("s_cmp_lt_u32 s45, 80")
        a.I(f"s_cselect_b32 s{S_POST}, 1, 0")
        lab = a.newlabel('roles_done')
        a.I("s_bitcmp1_b32 s2, 0")
        a.I(f"s_cbranch_scc0 {lab}")
        a.I(f"s_mov_b32 s{S_NB}, s45")
        a.I("s_cmp_lt_u32 s45, 48")
        a.I(f"s_cselect_b32 s{S_POST}, 2, 0")
        a.label(lab)

    def prefetch_weights(self):
        a = self.a
        pol = self.cfg.pfpol
        lab = a.newlabel('pf')
        a.I("s_cmp_eq_u32 s44, 0")
        a.I(f"s_cbranch_scc1 {lab}_done")
        a.I("v_lshlrev_b32 v8, 4, v5")
        if self.cfg.pfs:
            for i, p in enumerate((16, 18, 20)):
                a.I(f"s_cmp_eq_u32 s44, {i+1}")
                a.I(f"s_cbranch_scc0 {lab}_n{i}")
                a.I("s_mul_i32 s45, s2, 7680")
                self.srd(32, p, 7680, off=45)
                a.I("s_mov_b32 s46, 0")
                a.I("s_mov_b32 s63, 8")
                a.label(f"{lab}_t{i}")
                a.I(f"s_waitcnt vmcnt({self.cfg.PW - 1})")
                a.I(f"buffer_load_dwordx4 v[12:15], v8, s[32:35], s46 offen {pol}")
                a.I("s_add_u32 s46, s46, 1024")
                a.I("s_sub_u32 s63, s63, 1")
                a.I("s_cmp_lg_u32 s63, 0")
                a.I(f"s_cbranch_scc1 {lab}_t{i}")
                a.label(f"{lab}_n{i}")
            a.I(f"s_branch {lab}_done")
        a.I("s_cmp_eq_u32 s44, 3")
        a.I(f"s_cbranch_scc1 {lab}_small")
        a.I("s_mul_i32 s45, s2, 30720")
        self.srd(32, 12, 30720, off=45)
        a.I("s_sub_u32 s46, s44, 1")
        a.I("s_mul_i32 s46, s46, 15360")
        a.I("s_mov_b32 s63, 15")
        a.label(f"{lab}_l1")
        a.I(f"s_waitcnt vmcnt({self.cfg.PW - 1})")
        a.I(f"buffer_load_dwordx4 v[12:15], v8, s[32:35], s46 offen {pol}")
        a.I("s_add_u32 s46, s46, 1024")
        a.I("s_sub_u32 s63, s63, 1")
        a.I("s_cmp_lg_u32 s63, 0")
        a.I(f"s_cbranch_scc1 {lab}_l1")
        a.I(f"s_branch {lab}_done")
        a.label(f"{lab}_small")
        for i, p in enumerate((16, 18, 20)):
            a.I("s_mul_i32 s45, s2, 7680")
            self.srd(32, p, 7680, off=45)
            a.I("s_mov_b32 s46, 0")
            a.I("s_mov_b32 s63, 8")
            a.label(f"{lab}_s{i}")
            a.I(f"s_waitcnt vmcnt({self.cfg.PW - 1})")
            a.I(f"buffer_load_dwordx4 v[12:15], v8, s[32:35], s46 offen {pol}")
            a.I("s_add_u32 s46, s46, 1024")
            a.I("s_sub_u32 s63, s63, 1")
            a.I("s_cmp_lg_u32 s63, 0")
            a.I(f"s_cbranch_scc1 {lab}_s{i}")
        a.label(f"{lab}_done")
        a.fence(2)

    def v_weights(self):
        a = self.a
        WN = self.cfg.WW
        a.I(f"s_cmp_eq_u32 s{S_POST}, 1")
        a.I("s_cbranch_scc0 L_vw_gu")
        a.I(f"s_mul_i32 s45, s{S_KG}, {768*1280}")
        a.I(f"s_lshl_b32 s46, s{S_NB}, 7")
        a.I("s_add_u32 s47, s45, s46")
        self.srd(32, 12, 768 * 1280, off=47)
        self.dma_voff128(1280, 8, 9, 6, 7)
        a.I("s_sub_u32 s63, s44, 1")
        a.I(f"s_mul_i32 s46, s63, {256*1280}")
        a.I("s_lshl_b32 s47, s63, 15")
        a.I(f"s_add_u32 s47, s47, {L_W}")
        self.dma_loop(32, 32, 8, 9, 47, 46, 8 * 1280, "L_vw_wo_loop", window=WN + 1)
        a.I("s_branch L_vw_done")
        a.label("L_vw_gu")
        a.I(f"s_cmp_eq_u32 s{S_POST}, 2")
        a.I("s_cbranch_scc0 L_vw_done")
        a.I("s_cmp_eq_u32 s44, 3")
        a.I("s_cbranch_scc1 L_vw_dn")
        a.I(f"s_lshl_b32 s47, s{S_NB}, 6")
        a.I("s_cmp_eq_u32 s44, 2")
        a.I("s_cselect_b32 s48, s18, s16")
        a.I("s_cselect_b32 s49, s19, s17")
        self.srd(32, 48, 640 * 3072, off=47)
        self.dma_voff64(3072, 8, 6, 7)
        a.I("s_mov_b32 s46, 0")
        a.I("s_sub_u32 s47, s44, 1")
        a.I("s_mul_i32 s47, s47, 40960")
        a.I(f"s_add_u32 s47, s47, {L_W}")
        self.dma_loop(32, 40, 8, 8, 47, 46, 16 * 3072, "L_vw_gu_loop", window=WN)
        a.I("s_branch L_vw_done")
        a.label("L_vw_dn")
        a.I(f"s_mul_i32 s45, s{S_NB}, 40960")
        self.srd(32, 20, 40960, off=45)
        self.wdown_offsets()
        a.I("s_mov_b32 s46, 0")
        a.I(f"s_mov_b32 s47, {L_WD}")
        for q in range(8):
            for m in range(5):
                a.I("s_mov_b32 m0, s47")
                a.I("s_add_u32 s47, s47, 1024")
                a.I(f"buffer_load_dwordx4 v{(153 if (q >> 1) & 1 else 148) + m}, s[32:35], s46 offen {self.cfg.ntW} lds")
            if q < 7:
                a.I("s_add_u32 s46, s46, 5120")

    def wdown_offsets(self):
        a = self.a
        for m in range(5):
            a.I(f"v_lshlrev_b32 v6, 4, v5")
            a.I(f"v_add_u32 v6, {1024*m}, v6")
            a.I("v_mul_u32_u24 v7, 3277, v6")
            a.I("v_lshrrev_b32 v7, 22, v7")
            a.I("v_mul_u32_u24 v8, 1280, v7")
            a.I("v_sub_u32 v6, v6, v8")
            a.I("v_lshlrev_b32 v7, 5, v7")
            a.I("v_xor_b32 v9, v6, v7")
            a.I(f"v_add_u32 v{148+m}, v8, v9")
            a.I("v_xor_b32 v9, 128, v9")
            a.I(f"v_add_u32 v{153+m}, v8, v9")

    def roles_from_ticket(self, sfx=""):
        a = self.a
        a.I(f"v_mov_b32 v6, {L_FIN + 8}")
        a.I("ds_read_b32 v7, v6")
        a.I("s_waitcnt lgkmcnt(0)")
        a.I("v_readfirstlane_b32 s45, v7")
        if self.cfg.tkrot:
            r = self.cfg.tkrot
            a.I(f"s_add_u32 s46, s45, 48")
            a.I(f"s_sub_u32 s47, s45, {r}")
            a.I(f"s_cmp_lt_u32 s45, {r + 48}")
            a.I("s_cselect_b32 s47, s47, s45")
            a.I(f"s_cmp_lt_u32 s45, {r}")
            a.I("s_cselect_b32 s45, s46, s47")
        a.I("s_cmp_lt_u32 s45, 40")
        a.I(f"s_cselect_b32 s{S_DT}, s45, -1")
        a.I(f"s_mov_b32 s{S_NB}, s45")
        a.I("s_cmp_lt_u32 s45, 48")
        a.I(f"s_cselect_b32 s{S_POST}, 2, 0")
        a.I(f"s_cbranch_scc1 L_ticket_done{sfx}")
        a.I("s_sub_u32 s45, s45, 48")
        a.I("s_cmp_lt_u32 s45, 80")
        a.I(f"s_cselect_b32 s{S_POST}, 1, 0")
        a.I("s_mul_i32 s46, s45, 6554")
        a.I("s_lshr_b32 s46, s46, 16")
        a.I(f"s_mov_b32 s{S_KG}, s46")
        a.I("s_mul_i32 s47, s46, 10")
        a.I(f"s_sub_u32 s{S_NB}, s45, s47")
        a.label(f"L_ticket_done{sfx}")

    def code_prefetch(self, wave):
        a = self.a
        a.I(f"s_cmp_eq_u32 s44, {wave}")
        a.I("s_cbranch_scc0 L_nopf")
        a.I("s_getpc_b64 s[46:47]")
        a.label("L_pc")
        a.I(f"s_sub_u32 s46, s46, (L_pc-{self.name})")
        a.I("s_subb_u32 s47, s47, 0")
        a.I("s_lshr_b32 s45, s2, 3")
        a.I("s_lshl_b32 s45, s45, 10")
        a.I("v_lshlrev_b32 v6, 4, v5")
        a.I("v_add_u32 v6, s45, v6")
        a.I("v_mov_b32 v7, 0")
        a.I("v_mov_b32 v9, s47")
        a.I("v_add_co_u32 v8, vcc, s46, v6")
        a.I("v_addc_co_u32 v9, vcc, v9, v7, vcc")
        a.I(f"s_mov_b32 s45, (L_end-{self.name}-12)")
        a.I("v_cmp_gt_u32 vcc, s45, v6")
        a.I("s_and_saveexec_b64 s[46:47], vcc")
        a.I("s_cbranch_execz L_pfskip")
        a.I("global_load_dwordx4 v[12:15], v[8:9], off")
        a.label("L_pfskip")
        a.I("s_mov_b64 exec, s[46:47]")
        a.label("L_nopf")

    def pretouch(self):
        a = self.a
        a.I("s_cmp_eq_u32 s44, 10")
        a.I("s_cbranch_scc0 L_nopt")
        a.I("v_lshlrev_b32 v6, 21, v5")
        bufs = [(24, 640*7680), (10, 640*12288), (30, WS_SIZE), (28, 256), (4, 5120), (22, 5120),
                (12, 6144*1280), (16, 640*3072), (18, 640*3072), (20, 1536*1280), (26, 5120)]
        if self.cfg.pretouch >= 2:
            pass
        for i, (p, size) in enumerate(bufs):
            self.srd(32, p, size)
            a.I(f"buffer_load_dword v{12+i}, v6, s[32:35], 0 offen")
        a.label("L_nopt")

    def resets(self):
        a = self.a
        a.I("v_mov_b32 v8, -1")
        a.I("v_mov_b32 v9, -1")
        a.I("v_mov_b32 v10, -1")
        a.I("v_mov_b32 v11, -1")
        a.I("v_lshlrev_b32 v6, 4, v5")
        a.I("s_lshl_b32 s45, s57, 5")
        a.I("s_add_u32 s45, s45, s58")
        a.I("s_lshl_b32 s45, s45, 1")
        a.I("s_add_u32 s45, s45, s59")
        a.I("s_mul_i32 s45, s45, 768")
        a.I(f"s_add_u32 s45, s45, {WS_O}")
        a.I("s_mov_b32 exec_lo, -1"); a.I("s_mov_b32 exec_hi, 0xffff")
        a.I("buffer_store_dwordx4 v[8:11], v6, s[40:43], s45 offen sc1")
        a.I("s_lshl_b32 s45, s2, 7")
        a.I(f"s_add_u32 s45, s45, {WS_ML}")
        a.I("s_mov_b64 exec, 0x11")
        a.I("buffer_store_dwordx4 v[8:11], v6, s[40:43], s45 offen sc1")
        a.I("s_mov_b64 exec, -1")
        a.I("v_lshrrev_b32 v7, 4, v5")
        a.I("v_and_b32 v12, 15, v5")
        a.I("v_lshlrev_b32 v12, 4, v12")

        def rows(cmp, rowbytes, base, bandbytes, band_reg, nchunk, lab, extra=None):
            a.I(cmp)
            a.I(f"s_cbranch_scc0 {lab}")
            a.I(f"v_mul_u32_u24 v13, {rowbytes}, v7")
            a.I("v_add_u32 v13, v13, v12")
            a.I(f"s_mul_i32 s45, s{band_reg}, {bandbytes}")
            if extra:
                a.I(f"s_mul_i32 s46, s{extra}, {4*rowbytes}")
                a.I("s_add_u32 s45, s45, s46")
            a.I(f"s_add_u32 s45, s45, {base}")
            m = (1 << nchunk) - 1
            m32 = m | (m << 16)
            a.I(f"s_mov_b32 exec_lo, 0x{m32:x}")
            a.I(f"s_mov_b32 exec_hi, 0x{m32:x}")
            a.I("buffer_store_dwordx4 v[8:11], v13, s[40:43], s45 offen sc1")
            a.I("s_mov_b64 exec, -1")
            a.label(lab)
        rows(f"s_cmp_eq_u32 s{S_PRE}, 2", 24576, WS_Q, 256, S_BAND, 16, 'L_rs2', extra=S_KH)
        rows(f"s_cmp_eq_u32 s{S_PRE}, 1", 7680, WS_MOD, 128, S_BAND, 8, 'L_rs1')
        rows(f"s_cmp_eq_u32 s{S_POST}, 1", 2560, WS_Y, 256, S_NB, 16, 'L_rs3', extra=S_KG)
        a.I(f"s_cmp_eq_u32 s{S_POST}, 2")
        a.I("s_cbranch_scc0 L_rs4")
        a.I("v_mul_u32_u24 v13, 12288, v7")
        a.I("v_add_u32 v13, v13, v12")
        a.I(f"s_lshl_b32 s45, s{S_NB}, 8")
        a.I(f"s_add_u32 s45, s45, {WS_PD}")
        for k in range(10):
            a.I("buffer_store_dwordx4 v[8:11], v13, s[40:43], s45 offen sc1")
            if k < 9:
                a.I(f"s_add_u32 s45, s45, {4*12288}")
        a.label("L_rs4")

    def resets_arrive(self):
        a = self.a
        a.I("s_waitcnt vmcnt(0)")
        self.stamp(16)
        a.I("s_mov_b64 exec, 1")
        a.I("v_mov_b32 v8, 1")
        a.I("s_and_b32 s45, s2, 1")
        a.I("s_lshl_b32 s45, s45, 7")
        a.I("v_mov_b32 v9, s45")
        a.I("global_atomic_add v9, v8, s[28:29] sc1")
        a.I(f"s_cmp_eq_u32 s{S_PRE}, 1")
        a.I("s_cbranch_scc0 L_noc1")
        a.I(f"s_cmp_lt_u32 s{S_BAND}, 20")
        a.I("s_cbranch_scc0 L_noc1")
        a.I("v_mov_b32 v9, 132")
        a.I("global_atomic_add v9, v8, s[28:29] sc1")
        a.label("L_noc1")
        a.I("s_mov_b64 exec, -1")

    def master(self):
        a = self.a
        a.I("s_cmp_eq_u32 s44, 1")
        a.I("s_cbranch_scc0 L_notmaster")
        a.I("s_cmp_eq_u32 s2, 0")
        a.I("s_cbranch_scc0 L_notmaster")
        def go(val):
            a.I("s_mov_b64 exec, -1")
            a.I("v_lshlrev_b32 v8, 7, v5")
            a.I(f"v_mov_b32 v9, {val}")
            for k in range(4):
                a.I(f"s_mov_b32 s45, {WS_ML + 64 + 8192*k}")
                a.I("buffer_store_dword v9, v8, s[40:43], s45 offen sc1")
        a.I("v_lshlrev_b32 v7, 7, v5")
        a.I("v_mov_b32 v6, 132")
        a.I("v_cmp_eq_u32 vcc, 2, v5")
        a.I("v_cndmask_b32 v7, v7, v6, vcc")
        a.I("s_mov_b32 s62, 0")
        a.I("s_mov_b32 s63, 0")
        a.label("L_master")
        a.I("s_mov_b64 exec, 7")
        a.I("global_load_dword v6, v7, s[28:29] sc1")
        a.I("s_add_u32 s62, s62, 1")
        a.I("s_waitcnt vmcnt(0)")
        a.I("v_readlane_b32 s45, v6, 0")
        a.I("v_readlane_b32 s46, v6, 1")
        a.I("v_readlane_b32 s47, v6, 2")
        a.I("s_min_u32 s45, s45, s46")
        a.I("s_cmp_ge_u32 s45, 128")
        a.I("s_cbranch_scc1 L_master_ok")
        a.I("s_cmp_lt_u32 s47, 20")
        a.I("s_cbranch_scc1 L_master_next")
        a.I("s_cmp_eq_u32 s63, 0")
        a.I("s_cbranch_scc0 L_master_next")
        a.I("s_mov_b32 s63, 1")
        go(1)
        self.stamp(17)
        a.label("L_master_next")
        a.I(f"s_cmp_lt_u32 s62, {SPIN_MAX}")
        a.I("s_cbranch_scc1 L_master")
        a.label("L_master_ok")
        go(2)
        a.I("s_mov_b64 exec, -1")
        self.stamp(18)
        a.label("L_notmaster")

    def poll_go(self, label, vz, vt, level):
        a = self.a
        a.I("s_lshl_b32 s45, s2, 7")
        a.I(f"s_add_u32 s46, s45, {WS_ML + 64}")
        a.I(f"v_mov_b32 v{vz}, 0")
        a.I("s_mov_b32 s62, 0")
        a.I("s_mov_b64 exec, 1")
        a.label(label)
        a.I(f"buffer_load_dword v{vt}, v{vz}, s[40:43], s46 offen sc1")
        a.I("s_add_u32 s62, s62, 1")
        a.I("s_waitcnt vmcnt(0)")
        a.I(f"v_readfirstlane_b32 s{S_LATE}, v{vt}")
        a.I(f"s_sub_u32 s45, s{S_LATE}, {level}")
        a.I(f"s_cmp_le_u32 s45, {2-level}")
        a.I(f"s_cbranch_scc1 {label}_ok")
        a.I(f"s_cmp_lt_u32 s62, {SPIN_MAX}")
        a.I(f"s_cbranch_scc1 {label}")
        a.label(f"{label}_ok")
        a.I("s_mov_b64 exec, -1")

    def stream(self):
        a = self.a
        cfg = self.cfg
        a.label("L_stream")
        if self.cfg.hop2:
            a.raw("@@WARM2@@")
        a.I("s_cmp_eq_u32 s44, 11")
        a.I("s_cbranch_scc0 L_noprio")
        a.I("s_setprio 3")
        a.label("L_noprio")
        self.roles_rest()
        a.I("s_waitcnt lgkmcnt(0)")
        self.stamp(0)
        self.srd(40, 30, WS_SIZE)
        a.I("s_cmp_eq_u32 s44, 11")
        a.I("s_cbranch_scc0 L_noreset")
        self.resets()
        self.resets_arrive()
        a.I("s_setprio 0")
        a.label("L_noreset")
        a.fence(2)
        a.I("s_sub_u32 s44, s44, 4")
        a.I("s_lshl_b32 s45, s57, 5")
        a.I("s_add_u32 s45, s45, s58")
        a.I("s_mul_i32 s45, s45, 1572864")
        n0 = (128 + cfg.kx) * 6144
        a.I(f"s_mul_i32 s46, s59, {n0}")
        a.I("s_add_u32 s47, s45, s46")
        self.srd(32, 6, n0, off=47)
        self.srd(36, 8, n0, off=47)
        if cfg.kx:
            a.I("s_cmp_eq_u32 s59, 0")
            a.I(f"s_mov_b32 s45, {n0}")
            a.I(f"s_cselect_b32 s34, s45, {1572864 - n0}")
            a.I("s_mov_b32 s38, s34")
        a.I("s_branch L_stream_main")

    def stream_bulk(self):
        a = self.a
        cfg = self.cfg
        a.label("L_stream_main")
        a.fence(2)
        st.set_depth(cfg.D)

        def b0():
            a.I("s_barrier")
        S2 = dict(S); S2['b0_after'] = cfg.N1 - 1 if cfg.gate else -1
        S2['hook_before'] = {cfg.NB0: b0}
        issued = st.stream_prologue(a, cfg, S2)
        st.stream_main(a, cfg, S2, LDS, issued, self.stamp)
        a.I("s_add_u32 s44, s44, 4")
        a.I("s_branch L_post")

    def zero_flag(self):
        a = self.a
        a.I("s_lshl_b32 s45, s44, 2")
        a.I(f"s_add_u32 s45, s45, {L_HFLAG}")
        a.I("v_mov_b32 v6, s45")
        a.I("v_mov_b32 v7, 0")
        a.I("ds_write_b32 v6, v7")

    def u_layout(self, n, per):
        a = self.a
        magic = {80: 52429, 40: 104858}[per]
        a.I(f"s_mov_b32 s47, {magic}")
        for jj in range(n):
            a.I(f"v_add_u32 v6, {64*jj}, v5")
            a.I("v_mul_u32_u24 v7, s47, v6")
            a.I(f"v_lshrrev_b32 v{20+jj}, 22, v7")
            a.I(f"v_mul_u32_u24 v7, {per}, v{20+jj}")
            a.I("v_sub_u32 v6, v6, v7")
            a.I(f"v_lshlrev_b32 v{25+jj}, 2, v6")

    def helper_front(self):
        a = self.a
        a.label("L_helper")
        a.I("s_setprio 2")
        a.I("v_lshrrev_b32 v17, 4, v5")
        a.I("v_and_b32 v18, 15, v5")
        a.I(f"s_cmp_eq_u32 s{S_PRE}, 1")
        a.I("s_cbranch_scc0 L_hq0")
        self.dma_voff128(7680, 8, 9, 6, 7)
        a.I(f"s_mul_i32 s46, s44, {160*7680}")
        a.I(f"s_lshl_b32 s85, s{S_BAND}, 7")
        a.I("s_mul_i32 s47, s44, 20480")
        a.I(f"s_add_u32 s47, s47, {L_W}")
        a.I("v_mul_u32_u24 v16, 1280, v17")
        a.I("v_mad_u32_u24 v16, v18, 20, v16")
        a.I("s_mul_i32 s63, s44, 320")
        a.I("s_waitcnt lgkmcnt(0)")
        self.stamp(0)
        self.srd(36, 22, 5120)
        self.srd(32, 24, 640 * 7680, off=85)
        a.I("buffer_load_dwordx4 v[30:33], v16, s[36:39], s63 offen")
        a.I("buffer_load_dword v34, v16, s[36:39], s63 offen offset:16")
        self.dma_loop(32, 20, 8, 9, 47, 46, 8 * 7680, "L_mod_dma", cnt=85)
        self.stamp(3)
        a.I("s_branch L_modrest")
        a.label("L_hq0")
        a.I(f"s_cmp_eq_u32 s{S_PRE}, 2")
        a.I("s_cbranch_scc0 L_hnone")
        self.dma_voff128(12288, 8, 9, 6, 7)
        a.I(f"s_mul_i32 s46, s44, {80*12288}")
        a.I(f"s_mul_i32 s47, s{S_KH}, {320*12288}")
        a.I(f"s_lshl_b32 s45, s{S_BAND}, 7")
        a.I("s_add_u32 s85, s47, s45")
        a.I("s_mul_i32 s47, s44, 10240")
        a.I(f"s_add_u32 s47, s47, {L_W}")
        a.I("v_min_u32 v18, 9, v18")
        a.I("v_mul_u32_u24 v16, 1280, v17")
        a.I("v_lshl_add_u32 v16, v18, 4, v16")
        a.I(f"s_mul_i32 s63, s{S_KH}, 640")
        a.I("s_mul_i32 s45, s44, 160")
        a.I("s_add_u32 s63, s63, s45")
        a.I("v_lshlrev_b32 v19, 2, v5")
        a.I("s_mul_i32 s48, s44, 1280")
        a.I("s_waitcnt lgkmcnt(0)")
        self.stamp(0)
        self.srd(36, 4, 5120)
        self.srd(32, 10, 320 * 12288, off=85)
        for jj in range(5):
            a.I(f"buffer_load_dword v{35+jj}, v19, s[36:39], s48 offen offset:{256*jj}")
        a.I("buffer_load_dwordx4 v[28:31], v16, s[36:39], s63 offen")
        self.dma_loop(32, 10, 8, 9, 47, 46, 8 * 12288, "L_q_dma", cnt=85)
        self.stamp(3)
        a.I("s_branch L_qrest")

    def helper(self):
        a = self.a
        if self.cfg.hop2:
            a.hops_begin("L_hopP", self.cfg.hop2, seg=self.cfg.hop2seg, ret="L_warm2_ret")
        a.label("L_hnone")
        self.zero_flag()
        a.I("s_waitcnt lgkmcnt(0)")
        self.stamp(0)
        self.srd(40, 30, WS_SIZE)
        a.I("s_barrier")
        self.master()
        a.I("s_branch L_h_go")
        a.label("L_modrest")
        a.fence(2)
        self.zero_flag()
        self.srd(40, 30, WS_SIZE)
        a.I(f"s_mov_b32 s54, 0x{LOG2E:x}")
        a.I("s_mul_i32 s47, s44, 320")
        a.I(f"s_add_u32 s47, s47, {L_ACT}")
        a.I("v_mul_u32_u24 v40, 1344, v17")
        a.I("v_mad_u32_u24 v40, v18, 20, v40")
        a.I("v_add_u32 v40, s47, v40")
        a.I("s_waitcnt vmcnt(20)")
        for jj in range(5):
            lo, hi = 46, 47
            self.unpack(30 + jj, lo, hi)
            for r in (lo, hi):
                a.I(f"v_mul_f32 v48, s54, v{r}")
                a.I("v_exp_f32 v48, -v48")
                a.I("v_add_f32 v48, 1.0, v48")
                a.I("v_min_f32 v48, 0x7f7fffff, v48")
                a.I("v_rcp_f32 v49, v48")
                self.div_by(r, 48, 49, 50)
            a.I(f"v_cvt_pk_bf16_f32 v46, v46, v47")
            a.I(f"ds_write_b32 v40, v46 offset:{4*jj}")
        self.tr_addr128(10, 6, 7)
        a.I("s_lshl_b32 s45, s44, 5")
        a.I("v_xor_b32 v10, s45, v10")
        a.I(f"v_add_u32 v10, {L_W}, v10")
        a.I(f"v_add_u32 v11, {10*4096}, v10")
        self.act_addr(14, 1344, 6)
        a.I("s_waitcnt vmcnt(0) lgkmcnt(0)")
        self.stamp(7)
        a.I("s_barrier")
        self.mfma_chain2(10, 10, 11, 4096, 512, 14, 64, 68)
        for k in range(4):
            a.I(f"v_add_f32 v{64+k}, v{64+k}, v{68+k}")
        a.I("v_cvt_pk_bf16_f32 v64, v64, v65")
        a.I("v_cvt_pk_bf16_f32 v65, v66, v67")
        self.canon([64, 65], 44)
        a.I("v_and_b32 v6, 3, v5")
        a.I("v_mul_u32_u24 v6, 7680, v6")
        a.I("v_lshrrev_b32 v7, 4, v5")
        a.I("v_lshl_add_u32 v6, v7, 3, v6")
        a.I(f"s_lshl_b32 s45, s{S_BAND}, 7")
        a.I("s_lshl_b32 s47, s44, 5")
        a.I("s_add_u32 s47, s47, s45")
        a.I(f"s_mov_b32 exec_lo, 0x{MASK_N4_LO:x}")
        a.I(f"s_mov_b32 exec_hi, 0x{MASK_N4_LO:x}")
        a.I("buffer_store_dwordx2 v[64:65], v6, s[40:43], s47 offen sc1")
        a.I("s_mov_b64 exec, -1")
        self.stamp(12)
        a.label("L_h_go")
        a.fence(2)
        a.I("s_cmp_lg_u32 s44, 0")
        a.I("s_cbranch_scc1 L_go_skip")
        self.poll_go("L_go1", 6, 7, 1 if self.cfg.gate == 2 else 2)
        a.label("L_go_skip")
        if self.cfg.gate:
            a.I("s_barrier")
        a.I("s_branch L_h_q")
        a.label("L_qrest")
        a.fence(2)
        self.zero_flag()
        self.srd(40, 30, WS_SIZE)
        a.I("s_waitcnt vmcnt(11)")
        for jj in range(5):
            self.unpack(35 + jj, 40 + 2 * jj, 41 + 2 * jj)
        a.I("v_add_f32 v6, v40, v41")
        for k in range(42, 50):
            a.I(f"v_add_f32 v6, v6, v{k}")
        self.wave_sum_bcast(6, 46)
        a.I("v_mov_b32 v6, 0x3acccccd")
        a.I("v_mul_f32 v50, s46, v6")
        a.I("v_mov_b32 v7, 0")
        for k in range(40, 50):
            a.I(f"v_sub_f32 v51, v{k}, v50")
            a.I("v_fmac_f32 v7, v51, v51")
        self.wave_sum_bcast(7, 46)
        a.I("v_mul_f32 v52, s46, v6")
        self.ln_denom(52, 53)
        a.I("v_cvt_pk_bf16_f32 v50, v50, v50")
        a.I("v_lshlrev_b32 v50, 16, v50")
        a.I("s_lshl_b32 s45, s44, 3")
        a.I(f"s_add_u32 s45, s45, {L_LNST}")
        a.I("v_mov_b32 v6, s45")
        a.I("ds_write_b32 v6, v50")
        a.I("ds_write_b32 v6, v52 offset:4")
        a.I("s_waitcnt vmcnt(0) lgkmcnt(0)")
        self.stamp(7)
        a.I("s_barrier")
        a.I("v_lshlrev_b32 v6, 3, v17")
        a.I(f"ds_read_b64 v[56:57], v6 offset:{L_LNST}")
        xr = list(range(60, 68))
        for k in range(4):
            self.unpack(28 + k, 60 + 2 * k, 61 + 2 * k)
        a.I("v_mul_u32_u24 v40, 7680, v17")
        a.I("v_lshl_add_u32 v40, v18, 4, v40")
        a.I("s_mul_i32 s47, s44, 160")
        a.I(f"s_add_u32 s47, s47, {L_ACT}")
        a.I("v_mul_u32_u24 v41, 704, v17")
        a.I("v_lshl_add_u32 v41, v18, 4, v41")
        a.I("v_add_u32 v41, s47, v41")
        a.I("s_waitcnt lgkmcnt(0)")
        for r in xr:
            a.I(f"v_sub_f32 v{r}, v{r}, v56")
        self.bf16_round(xr, 58)
        a.I("v_rcp_f32 v58, v57")
        for r in xr:
            self.div_by(r, 57, 58, 59)
        self.bf16_round(xr, 58)
        self.tr_addr128(10, 6, 7)
        a.I("s_lshl_b32 s45, s44, 5")
        a.I("v_xor_b32 v10, s45, v10")
        a.I(f"v_add_u32 v10, {L_W}, v10")
        self.act_addr(14, 704, 6)
        a.I("v_and_b32 v6, 15, v5")
        a.I("v_cmp_gt_u32 s[50:51], 10, v6")
        self.stamp(16)
        self.poll_go("L_go2", 6, 7, 1)
        if self.cfg.gate == 2:
            a.I("s_barrier")
        self.stamp(18)
        a.I(f"s_add_u32 s46, s63, {WS_MOD}")
        a.I(f"s_add_u32 s47, s63, {WS_MOD + 1280}")
        loads = ["buffer_load_dwordx4 v[28:31], v40, s[40:43], s46 offen sc1",
                 "buffer_load_dwordx4 v[32:35], v40, s[40:43], s47 offen sc1"]
        self.poll(loads, list(range(28, 36)), "L_pmod", pre=6)
        self.stamp(14)
        ca = list(range(44, 52))
        for k in range(4):
            self.unpack(32 + k, 44 + 2 * k, 45 + 2 * k)
        for r in ca:
            a.I(f"v_add_f32 v{r}, 1.0, v{r}")
        self.bf16_round(ca, 6)
        for k in range(8):
            a.I(f"v_mul_f32 v{60+k}, v{60+k}, v{44+k}")
        self.bf16_round(xr, 6)
        for k in range(4):
            self.unpack(28 + k, 44 + 2 * k, 45 + 2 * k)
        for k in range(8):
            a.I(f"v_add_f32 v{60+k}, v{60+k}, v{44+k}")
        for k in range(4):
            a.I(f"v_cvt_pk_bf16_f32 v{44+k}, v{60+2*k}, v{61+2*k}")
        a.I("s_mov_b64 exec, s[50:51]")
        a.I("ds_write_b128 v41, v[44:47]")
        a.I("s_mov_b64 exec, -1")
        if self.cfg.gate == 1:
            a.I("s_waitcnt lgkmcnt(0)")
            a.I("s_barrier")
        else:
            self.hsync(2, "L_hs2", 6, 16)
        self.stamp(17)
        self.mfma_chain(10, 10, 4096, 512, 14, 64)
        self.canon([64, 65, 66, 67], 44)
        a.I("v_and_b32 v6, 3, v5")
        a.I("v_mul_u32_u24 v6, 24576, v6")
        a.I("v_lshrrev_b32 v7, 4, v5")
        a.I("v_lshl_add_u32 v6, v7, 4, v6")
        a.I(f"s_mul_i32 s45, s{S_KH}, {4*24576}")
        a.I(f"s_lshl_b32 s47, s{S_BAND}, 8")
        a.I("s_add_u32 s47, s47, s45")
        a.I("s_lshl_b32 s45, s44, 6")
        a.I("s_add_u32 s47, s47, s45")
        a.I(f"s_add_u32 s47, s47, {WS_Q}")
        a.I(f"s_mov_b32 exec_lo, 0x{MASK_N4_LO:x}")
        a.I(f"s_mov_b32 exec_hi, 0x{MASK_N4_LO:x}")
        a.I("buffer_store_dwordx4 v[64:67], v6, s[40:43], s47 offen sc1")
        a.I("s_mov_b64 exec, -1")
        self.stamp(12)
        a.label("L_h_q")
        a.fence(2)
        self.roles_rest()
        self.srd(40, 30, WS_SIZE)
        a.I("s_cmp_lg_u32 s44, 0")
        a.I("s_cbranch_scc1 L_hb1")
        a.I(f"s_cmp_eq_u32 s{S_LATE}, 2")
        a.I("s_cbranch_scc1 L_go3_skip")
        self.poll_go("L_go3", 6, 7, 2)
        a.label("L_go3_skip")
        self.stamp(19)
        a.I("v_and_b32 v6, 31, v5")
        a.I("v_mul_u32_u24 v11, 12, v6")
        a.I("v_lshlrev_b32 v6, 1, v11")
        a.I("s_mul_i32 s45, s57, 24576")
        a.I("s_mul_i32 s46, s58, 768")
        a.I("s_add_u32 s46, s45, s46")
        a.I(f"s_add_u32 s46, s46, {WS_Q}")
        a.I(f"s_add_u32 s47, s46, {4*24576}")
        self.poll(["buffer_load_dwordx3 v[12:14], v6, s[40:43], s46 offen sc1",
                   "buffer_load_dwordx3 v[16:18], v6, s[40:43], s46 offen offset:12 sc1",
                   "buffer_load_dwordx3 v[20:22], v6, s[40:43], s47 offen sc1",
                   "buffer_load_dwordx3 v[24:26], v6, s[40:43], s47 offen offset:12 sc1"],
                  [12, 13, 14, 16, 17, 18, 20, 21, 22, 24, 25, 26], "L_pq", pre=7)
        for k in range(3):
            a.I(f"v_add_f32 v{12+k}, v{12+k}, v{20+k}")
            a.I(f"v_add_f32 v{16+k}, v{16+k}, v{24+k}")
        a.I("v_cvt_pk_bf16_f32 v8, v12, v13")
        a.I("v_cvt_pk_bf16_f32 v9, v14, v16")
        a.I("v_cvt_pk_bf16_f32 v10, v17, v18")
        a.I(f"ds_write_b32 v11, v8 offset:{L_QV}")
        a.I(f"ds_write_b32 v11, v9 offset:{L_QV+4}")
        a.I(f"ds_write_b32 v11, v10 offset:{L_QV+8}")
        a.I("s_waitcnt lgkmcnt(0)")
        a.label("L_hb1")
        self.stamp(1)
        a.I("s_barrier")
        self.stamp(2)
        if self.cfg.hop2:
            self.nseg = a.hops_end("L_warm2_ret")
        if self.cfg.hop:
            a.I("s_cmp_eq_u32 s44, 0")
            a.I("s_cbranch_scc1 L_late_done")
            a.I("s_mov_b64 exec, 0")
            a.I("s_cmp_eq_u32 s44, 1")
            a.I("s_cbranch_scc1 L_hopA_0")
            a.I("s_cmp_eq_u32 s44, 2")
            a.I("s_cbranch_scc1 L_hopB_0")
            a.I("s_branch L_hopC_0")
            a.label("L_warm_ret")
            a.I("s_mov_b64 exec, -1")
            self.stamp(22)
        if self.cfg.pf == 2:
            a.label("L_late_pf")
            self.prefetch_weights()
        a.label("L_late_done")
        a.fence(2)
        a.I("s_barrier")
        self.stamp(4)
        a.I("s_cmp_lg_u32 s44, 0")
        a.I("s_cbranch_scc1 L_hb3")
        self.ml_exchange()
        a.label("L_hb3")
        self.stamp(5)
        a.I("s_barrier")
        self.stamp(6)
        if self.cfg.early_w != 1:
            a.I("s_cmp_lg_u32 s44, 0")
            a.I("s_cbranch_scc1 L_tk_done")
            a.I(f"v_mov_b32 v6, {L_FIN}")
            a.I("s_mov_b32 s62, 0")
            a.label("L_tk_wait")
            a.I("ds_read_b32 v7, v6 offset:12")
            a.I("s_add_u32 s62, s62, 1")
            a.I("s_waitcnt lgkmcnt(0)")
            a.I("v_readfirstlane_b32 s45, v7")
            a.I("s_cmp_eq_u32 s45, 1")
            a.I("s_cbranch_scc1 L_tk_go")
            a.I(f"s_cmp_lt_u32 s62, {SPIN_MAX*16}")
            a.I("s_cbranch_scc1 L_tk_wait")
            a.label("L_tk_go")
            a.I("s_mov_b64 exec, 1")
            a.I("v_mov_b32 v7, 8")
            a.I("v_mov_b32 v8, 1")
            a.I("global_atomic_add v9, v7, v8, s[28:29] sc0 sc1")
            a.I("s_waitcnt vmcnt(0)")
            a.I("ds_write_b32 v6, v9 offset:8")
            a.I("s_waitcnt lgkmcnt(0)")
            a.I("s_mov_b64 exec, -1")
            a.label("L_tk_done")
            a.fence(2)
        if self.cfg.pf == 1:
            self.prefetch_weights()
        if self.cfg.early_w:
            a.I("s_cmp_eq_u32 s44, 0")
            a.I("s_cbranch_scc1 L_vw_done")
            if self.cfg.early_w == 2:
                a.I("s_setprio 0")
                a.I(f"v_mov_b32 v6, {L_FIN}")
                a.I("s_mov_b32 s62, 0")
                a.label("L_tkw")
                a.I("ds_read_b32 v7, v6 offset:8")
                a.I("ds_read_b32 v8, v6 offset:16")
                a.I("s_add_u32 s62, s62, 1")
                a.I("s_waitcnt lgkmcnt(0)")
                a.I("v_readfirstlane_b32 s45, v7")
                a.I("v_readfirstlane_b32 s46, v8")
                a.I("s_cmp_eq_u32 s45, -1")
                a.I("s_cselect_b32 s46, 0, s46")
                a.I("s_cmp_eq_u32 s46, 1")
                a.I("s_cbranch_scc1 L_tkw_ok")
                a.I(f"s_cmp_lt_u32 s62, {SPIN_MAX*16}")
                a.I("s_cbranch_scc1 L_tkw")
                a.label("L_tkw_ok")
            self.roles_from_ticket("v")
            self.v_weights()
            a.label("L_vw_done")
            a.fence(2)
        a.I("s_barrier")
        self.stamp(8)

    def dma_loop(self, srd, n, vE, vO, lds_reg, soff_reg, step, label, cnt=63, window=0, pol=None):
        a = self.a
        a.I(f"s_mov_b32 s{cnt}, {n // 2}")
        a.label(label)
        for v in (vE, vO):
            if window:
                a.I(f"s_waitcnt vmcnt({window - 1})")
            a.I(f"s_mov_b32 m0, s{lds_reg}")
            a.I(f"s_add_u32 s{lds_reg}, s{lds_reg}, 1024")
            a.I(f"buffer_load_dwordx4 v{v}, s[{srd}:{srd+3}], s{soff_reg} offen {self.cfg.ntW if pol is None else pol} lds")
            a.I(f"s_add_u32 s{soff_reg}, s{soff_reg}, {step}")
        a.I(f"s_sub_u32 s{cnt}, s{cnt}, 1")
        a.I(f"s_cmp_lg_u32 s{cnt}, 0")
        a.I(f"s_cbranch_scc1 {label}")

    def mfma_chain2(self, nks, vA0, vA1, stepA, half_off, vB, d0, d1):
        a = self.a
        DEPTH = 2

        def issue(ks):
            b = 80 + 16 * (ks % DEPTH)
            a.I(f"ds_read_b64_tr_b16 v[{b}:{b+1}], v{vA0} offset:{stepA*ks}")
            a.I(f"ds_read_b64_tr_b16 v[{b+2}:{b+3}], v{vA0} offset:{stepA*ks + half_off}")
            a.I(f"ds_read_b128 v[{b+4}:{b+7}], v{vB} offset:{64*ks}")
            a.I(f"ds_read_b64_tr_b16 v[{b+8}:{b+9}], v{vA1} offset:{stepA*ks}")
            a.I(f"ds_read_b64_tr_b16 v[{b+10}:{b+11}], v{vA1} offset:{stepA*ks + half_off}")
            a.I(f"ds_read_b128 v[{b+12}:{b+15}], v{vB} offset:{64*(nks+ks)}")
        for ks in range(DEPTH):
            issue(ks)
        for ks in range(nks):
            left = min(nks - 1 - ks, DEPTH - 1)
            a.I(f"s_waitcnt lgkmcnt({6*left})")
            b = 80 + 16 * (ks % DEPTH)
            c0 = "0" if ks == 0 else f"v[{d0}:{d0+3}]"
            c1 = "0" if ks == 0 else f"v[{d1}:{d1+3}]"
            a.I(f"v_mfma_f32_16x16x32_bf16 v[{d0}:{d0+3}], v[{b}:{b+3}], v[{b+4}:{b+7}], {c0}")
            a.I(f"v_mfma_f32_16x16x32_bf16 v[{d1}:{d1+3}], v[{b+8}:{b+11}], v[{b+12}:{b+15}], {c1}")
            if ks + DEPTH < nks:
                issue(ks + DEPTH)

    def mfma_chain(self, nks, vA, stepA, half_off, vB, dreg):
        a = self.a
        DEPTH = 4

        def issue(ks):
            b = 80 + 8 * (ks % DEPTH)
            a.I(f"ds_read_b64_tr_b16 v[{b}:{b+1}], v{vA} offset:{stepA*ks}")
            a.I(f"ds_read_b64_tr_b16 v[{b+2}:{b+3}], v{vA} offset:{stepA*ks + half_off}")
            a.I(f"ds_read_b128 v[{b+4}:{b+7}], v{vB} offset:{64*ks}")
        for ks in range(min(DEPTH, nks)):
            issue(ks)
        for ks in range(nks):
            left = min(nks - 1 - ks, DEPTH - 1)
            a.I(f"s_waitcnt lgkmcnt({3*left})")
            b = 80 + 8 * (ks % DEPTH)
            c = "0" if ks == 0 else f"v[{dreg}:{dreg+3}]"
            a.I(f"v_mfma_f32_16x16x32_bf16 v[{dreg}:{dreg+3}], v[{b}:{b+3}], v[{b+4}:{b+7}], {c}")
            if ks + DEPTH < nks:
                issue(ks + DEPTH)

    def dma_band128(self, srd, rowstride, ninstr, vE, vO, lds_base_sreg, soff_reg, tag):
        a = self.a
        for i in range(ninstr):
            a.I(f"s_mov_b32 m0, s{lds_base_sreg}")
            v = vO if i & 1 else vE
            a.I(f"s_add_u32 s{lds_base_sreg}, s{lds_base_sreg}, 1024")
            a.I(f"buffer_load_dwordx4 v{v}, s[{srd}:{srd+3}], s{soff_reg} offen {self.cfg.ntW} lds")
            if i + 1 < ninstr:
                a.I(f"s_add_u32 s{soff_reg}, s{soff_reg}, {8*rowstride}")

    def dma_voff128(self, rowstride, vE, vO, t0, t1):
        a = self.a
        a.I(f"v_lshrrev_b32 v{t0}, 3, v5")
        a.I(f"v_bfe_u32 v{t1}, v5, 4, 1")
        a.I(f"v_lshlrev_b32 v{t1}, 5, v{t1}")
        a.I(f"v_and_b32 v{vE}, 7, v5")
        a.I(f"v_lshlrev_b32 v{vE}, 4, v{vE}")
        a.I(f"v_xor_b32 v{vE}, v{vE}, v{t1}")
        a.I(f"v_xor_b32 v{vO}, 64, v{vE}")
        a.I(f"s_mov_b32 s45, {rowstride}")
        a.I(f"v_mul_lo_u32 v{t0}, s45, v{t0}")
        a.I(f"v_add_u32 v{vE}, v{vE}, v{t0}")
        a.I(f"v_add_u32 v{vO}, v{vO}, v{t0}")

    def tr_addr128(self, vdst, t0, t1):
        a = self.a
        a.I(f"v_lshrrev_b32 v{t0}, 4, v5")
        a.I(f"v_bfe_u32 v{t1}, v5, 2, 2")
        a.I(f"v_lshl_add_u32 v{vdst}, v{t0}, 3, v{t1}")
        a.I(f"v_lshlrev_b32 v{vdst}, 7, v{vdst}")
        a.I(f"v_and_b32 v{t0}, 1, v{t0}")
        a.I(f"v_lshlrev_b32 v{t0}, 6, v{t0}")
        a.I(f"v_bfe_u32 v{t1}, v5, 3, 1")
        a.I(f"v_lshlrev_b32 v{t1}, 5, v{t1}")
        a.I(f"v_or3_b32 v{vdst}, v{vdst}, v{t0}, v{t1}")
        a.I(f"v_and_b32 v{t0}, 3, v5")
        a.I(f"v_lshl_add_u32 v{vdst}, v{t0}, 3, v{vdst}")

    def act_addr(self, vdst, stride, t0):
        a = self.a
        a.I(f"v_and_b32 v{t0}, 3, v5")
        a.I(f"v_mul_u32_u24 v{vdst}, {stride}, v{t0}")
        a.I(f"v_lshrrev_b32 v{t0}, 4, v5")
        a.I(f"v_lshl_add_u32 v{vdst}, v{t0}, 4, v{vdst}")

    def ml_exchange(self):
        a = self.a
        a.I("v_and_b32 v6, 7, v5")
        a.I("v_lshlrev_b32 v6, 3, v6")
        a.I(f"ds_read_b64 v[8:9], v6 offset:{L_STATS}")
        a.I(f"s_mov_b32 s54, 0x{LOG2E:x}")
        a.I("s_waitcnt lgkmcnt(0)")
        a.I("v_mov_b32 v10, v8")
        a.I("v_max_f32_dpp v10, v10, v10 quad_perm:[1,0,3,2] row_mask:0xf bank_mask:0xf")
        a.I("v_max_f32_dpp v10, v10, v10 quad_perm:[2,3,0,1] row_mask:0xf bank_mask:0xf")
        a.I("v_max_f32_dpp v10, v10, v10 row_half_mirror row_mask:0xf bank_mask:0xf")
        a.I("v_sub_f32 v11, v8, v10")
        a.I("v_mul_f32 v11, s54, v11")
        a.I("v_exp_f32 v11, v11")
        a.I("v_mul_f32 v11, v11, v9")
        a.I("v_add_f32_dpp v11, v11, v11 quad_perm:[1,0,3,2] row_mask:0xf bank_mask:0xf")
        a.I("v_add_f32_dpp v11, v11, v11 quad_perm:[2,3,0,1] row_mask:0xf bank_mask:0xf")
        a.I("v_add_f32_dpp v11, v11, v11 row_half_mirror row_mask:0xf bank_mask:0xf")
        self.canon([10, 11], 12)
        a.I("s_lshl_b32 s45, s2, 7")
        a.I(f"s_add_u32 s45, s45, {WS_ML}")
        a.I("v_mov_b32 v6, 0")
        a.I("s_mov_b64 exec, 1")
        a.I("buffer_store_dwordx2 v[10:11], v6, s[40:43], s45 offen sc1")
        if self.cfg.early_w == 1:
            a.I("v_mov_b32 v7, 8")
            a.I("v_mov_b32 v18, 1")
            a.I("global_atomic_add v19, v7, v18, s[28:29] sc0 sc1")
        a.I("s_mov_b64 exec, -1")
        a.I(f"s_xor_b32 s46, s2, {self.cfg.xp or 32}")
        a.I("s_lshl_b32 s46, s46, 7")
        a.I(f"s_add_u32 s46, s46, {WS_ML}")
        self.poll(["buffer_load_dwordx2 v[12:13], v6, s[40:43], s46 offen sc1"], [12, 13], "L_pml", pre=7)
        a.I("v_max_f32 v14, v10, v12")
        a.I("v_sub_f32 v15, v10, v14")
        a.I("v_sub_f32 v16, v12, v14")
        a.I("v_mul_f32 v15, s54, v15")
        a.I("v_mul_f32 v16, s54, v16")
        a.I("v_exp_f32 v15, v15")
        a.I("v_exp_f32 v16, v16")
        a.I("v_mul_f32 v15, v15, v11")
        a.I("v_mul_f32 v16, v16, v13")
        a.I("v_add_f32 v15, v15, v16")
        a.I("v_rcp_f32 v16, v15")
        a.I("v_fma_f32 v17, -v15, v16, 1.0")
        a.I("v_fma_f32 v16, v17, v16, v16")
        a.I(f"v_mov_b32 v6, {L_FIN}")
        a.I("ds_write_b32 v6, v14")
        a.I("ds_write_b32 v6, v16 offset:4")
        if self.cfg.early_w != 1:
            a.I("v_mov_b32 v17, 0")
            a.I("ds_write_b32 v6, v17 offset:12")
            a.I("ds_write_b32 v6, v17 offset:16")
            a.I("v_mov_b32 v17, -1")
            a.I("ds_write_b32 v6, v17 offset:8")
        if self.cfg.early_w == 1:
            a.I("s_mov_b64 exec, 1")
            a.I("ds_write_b32 v6, v19 offset:8")
            a.I("s_mov_b64 exec, -1")
        a.I("s_waitcnt lgkmcnt(0)")

    def post(self):
        a = self.a
        a.label("L_post")
        a.hops_begin("L_hopA", self.cfg.hop)
        a.fence(4)
        a.I("s_setprio 0")
        a.I("v_and_b32 v5, 63, v0")
        a.I("s_cmp_lg_u32 s44, 0")
        a.I("s_cbranch_scc1 L_o_done")
        a.I("v_lshlrev_b32 v6, 4, v5")
        a.I("s_mov_b32 exec_lo, -1"); a.I("s_mov_b32 exec_hi, 0xffff")
        for w in range(8):
            a.I(f"ds_read_b128 v[{8+4*w}:{11+4*w}], v6 offset:{L_OPART+768*w}")
        for w in range(1, 8):
            a.I(f"s_waitcnt lgkmcnt({7-w})")
            for k in range(4):
                a.I(f"v_add_f32 v{8+k}, v{8+k}, v{8+4*w+k}")
        self.canon([8, 9, 10, 11], 12)
        a.I("s_lshl_b32 s45, s57, 5")
        a.I("s_add_u32 s45, s45, s58")
        a.I("s_lshl_b32 s45, s45, 1")
        a.I("s_add_u32 s45, s45, s59")
        a.I("s_mul_i32 s45, s45, 768")
        a.I(f"s_add_u32 s45, s45, {WS_O}")
        a.I("buffer_store_dwordx4 v[8:11], v6, s[40:43], s45 offen sc1")
        a.I("s_mov_b64 exec, -1")
        a.label("L_o_done")
        a.fence(2)
        self.roles_from_ticket()
        a.I(f"s_cmp_eq_u32 s{S_POST}, 0")
        a.I("s_cbranch_scc1 L_tail")
        if self.cfg.obar:
            a.I("s_barrier")
        a.I(f"s_cmp_eq_u32 s{S_POST}, 1")
        a.I("s_cbranch_scc0 L_post23")
        self.post_wo()
        a.I("s_branch L_tail")
        a.hops_end("L_warm_ret")
        a.label("L_post23")
        a.hops_begin("L_hopB", self.cfg.hop)
        a.fence(2)
        self.post_gu()
        a.I(f"s_cmp_lt_u32 s{S_DT}, 40")
        a.I("s_cbranch_scc0 L_tail")
        a.hops_end("L_warm_ret")
        a.hops_begin("L_hopC", self.cfg.hop)
        self.post_final()
        a.hops_end("L_warm_ret")

    def red_lane_addr(self, vdst, t):
        a = self.a
        a.I(f"v_lshrrev_b32 v{vdst}, 4, v5")
        a.I(f"v_and_b32 v{t}, 3, v5")
        a.I(f"v_lshl_add_u32 v{vdst}, v{vdst}, 2, v{t}")
        a.I(f"v_lshlrev_b32 v{vdst}, 4, v{vdst}")

    def write_red(self, dreg, vaddr):
        a = self.a
        a.I("s_lshl_b32 s45, s44, 8")
        a.I(f"s_add_u32 s45, s45, {L_RED}")
        a.I(f"v_add_u32 v{vaddr}, s45, v{vaddr}")
        a.I(f"s_mov_b32 exec_lo, 0x{MASK_N4_LO:x}")
        a.I(f"s_mov_b32 exec_hi, 0x{MASK_N4_LO:x}")
        a.I(f"ds_write_b128 v{vaddr}, v[{dreg}:{dreg+3}]")
        a.I("s_mov_b64 exec, -1")
        a.I("s_waitcnt lgkmcnt(0)")
        a.I("s_barrier")

    def mfma_run(self, nks, vA, offA, stepA, half_off, vB, dreg, first_reg=40):
        a = self.a
        for ks in range(nks):
            b = first_reg + 8 * ks
            a.I(f"ds_read_b64_tr_b16 v[{b}:{b+1}], v{vA} offset:{offA + stepA*ks}")
            a.I(f"ds_read_b64_tr_b16 v[{b+2}:{b+3}], v{vA} offset:{offA + stepA*ks + half_off}")
            a.I(f"ds_read_b128 v[{b+4}:{b+7}], v{vB} offset:{64*ks}")
        for ks in range(nks):
            b = first_reg + 8 * ks
            a.I(f"s_waitcnt lgkmcnt({min(15, 3*(nks-1-ks))})")
            c = "0" if ks == 0 else f"v[{dreg}:{dreg+3}]"
            a.I(f"v_mfma_f32_16x16x32_bf16 v[{dreg}:{dreg+3}], v[{b}:{b+3}], v[{b+4}:{b+7}], {c}")

    def mfma_preread(self, n, vA, stepA, half_off, first):
        a = self.a
        for ks in range(n):
            b = first + 4 * ks
            a.I(f"ds_read_b64_tr_b16 v[{b}:{b+1}], v{vA} offset:{stepA*ks}")
            a.I(f"ds_read_b64_tr_b16 v[{b+2}:{b+3}], v{vA} offset:{stepA*ks + half_off}")

    def mfma_with_b(self, n, firstA, vB, firstB, dreg):
        a = self.a
        for ks in range(n):
            b = firstB + 4 * ks
            a.I(f"ds_read_b128 v[{b}:{b+3}], v{vB} offset:{64*ks}")
        for ks in range(n):
            a.I(f"s_waitcnt lgkmcnt({n-1-ks})")
            c = "0" if ks == 0 else f"v[{dreg}:{dreg+3}]"
            a.I(f"v_mfma_f32_16x16x32_bf16 v[{dreg}:{dreg+3}], v[{firstA+4*ks}:{firstA+4*ks+3}], v[{firstB+4*ks}:{firstB+4*ks+3}], {c}")

    def post_wo(self):
        a = self.a
        if not self.cfg.early_w:
            a.I(f"s_mul_i32 s45, s{S_KG}, {768*1280}")
            a.I(f"s_lshl_b32 s46, s{S_NB}, 7")
            a.I("s_add_u32 s47, s45, s46")
            self.srd(32, 12, 768 * 1280, off=47)
            self.dma_voff128(1280, 8, 9, 6, 7)
            a.I(f"s_mul_i32 s46, s44, {64*1280}")
            a.I("s_lshl_b32 s47, s44, 13")
            a.I(f"s_add_u32 s47, s47, {L_W}")
            self.dma_loop(32, 8, 8, 9, 47, 46, 8 * 1280, "L_wo_dma")
        a.I("s_mul_i32 s45, s44, 21846")
        a.I("s_lshr_b32 s45, s45, 16")
        a.I("s_mul_i32 s46, s45, 3")
        a.I("s_sub_u32 s46, s44, s46")
        a.I("s_lshl_b32 s46, s46, 6")
        a.I("v_add_u32 v10, s46, v5")
        a.I("v_mul_u32_u24 v11, 1366, v10")
        a.I("v_lshrrev_b32 v11, 16, v11")
        a.I("v_mul_u32_u24 v12, 48, v11")
        a.I("v_sub_u32 v12, v10, v12")
        a.I("v_mul_u32_u24 v11, 1536, v11")
        a.I("v_lshl_add_u32 v11, v12, 4, v11")
        a.I("s_lshl_b32 s63, s45, 5")
        a.I(f"s_lshl_b32 s46, s{S_KG}, 2")
        a.I("s_add_u32 s63, s63, s46")
        a.I("s_mul_i32 s63, s63, 1536")
        a.I(f"s_add_u32 s63, s63, {WS_O}")
        a.I("s_mul_i32 s46, s45, 1600")
        a.I(f"s_add_u32 s46, s46, {L_ACT}")
        a.I("v_lshl_add_u32 v13, v10, 3, s46")
        self.tr_addr128(14, 6, 7)
        a.I("s_and_b32 s45, s44, 3")
        a.I("s_lshl_b32 s45, s45, 5")
        a.I("v_xor_b32 v14, s45, v14")
        a.I("s_lshr_b32 s45, s44, 2")
        a.I("s_lshl_b32 s46, s45, 15")
        a.I(f"s_add_u32 s46, s46, {L_W}")
        a.I("v_add_u32 v14, s46, v14")
        self.act_addr(15, 1600, 6)
        a.I("s_lshl_b32 s46, s45, 9")
        a.I(f"s_add_u32 s46, s46, {L_ACT}")
        a.I("v_add_u32 v15, s46, v15")
        self.red_lane_addr(16, 6)
        a.I("v_and_b32 v17, 3, v5")
        a.I("v_mul_u32_u24 v17, 2560, v17")
        a.I("v_lshrrev_b32 v7, 2, v5")
        a.I("v_lshl_add_u32 v17, v7, 4, v17")
        a.I("s_waitcnt vmcnt(0)")
        a.I("s_barrier")
        self.stamp(9)
        self.mfma_preread(8, 14, 4096, 512, 40)
        self.poll(["buffer_load_dwordx4 v[20:23], v11, s[40:43], s63 offen sc1",
                   "buffer_load_dwordx4 v[24:27], v11, s[40:43], s63 offen offset:768 sc1"],
                  list(range(20, 28)), "L_po", pre=6)
        self.stamp(10)
        for k in range(4):
            a.I(f"v_add_f32 v{20+k}, v{20+k}, v{24+k}")
        a.I("v_cvt_pk_bf16_f32 v20, v20, v21")
        a.I("v_cvt_pk_bf16_f32 v21, v22, v23")
        a.I("ds_write_b64 v13, v[20:21]")
        a.I("s_waitcnt lgkmcnt(0)")
        a.I("s_barrier")
        self.mfma_with_b(8, 40, 15, 72, 20)
        self.write_red(20, 16)
        a.I("s_cmp_lg_u32 s44, 0")
        a.I("s_cbranch_scc1 L_wo_done")
        a.I("v_lshlrev_b32 v6, 4, v5")
        for kt in range(3):
            a.I(f"ds_read_b128 v[{20+4*kt}:{23+4*kt}], v6 offset:{L_RED + 1024*kt}")
        a.I(f"s_mul_i32 s45, s{S_KG}, 10240")
        a.I(f"s_lshl_b32 s46, s{S_NB}, 8")
        a.I("s_add_u32 s45, s45, s46")
        a.I(f"s_add_u32 s45, s45, {WS_Y}")
        a.I("s_waitcnt lgkmcnt(0)")
        for k in range(4):
            a.I(f"v_add_f32 v{20+k}, v{20+k}, v{24+k}")
        for k in range(4):
            a.I(f"v_add_f32 v{20+k}, v{20+k}, v{28+k}")
        self.canon([20, 21, 22, 23], 12)
        a.I("buffer_store_dwordx4 v[20:23], v17, s[40:43], s45 offen sc1")
        a.label("L_wo_done")
        self.stamp(11)

    def dma_band64(self, srd, rowstride, ninstr, v, lds_reg, soff_reg):
        a = self.a
        for i in range(ninstr):
            a.I(f"s_mov_b32 m0, s{lds_reg}")
            a.I(f"s_add_u32 s{lds_reg}, s{lds_reg}, 1024")
            a.I(f"buffer_load_dwordx4 v{v}, s[{srd}:{srd+3}], s{soff_reg} offen {self.cfg.ntW} lds")
            if i + 1 < ninstr:
                a.I(f"s_add_u32 s{soff_reg}, s{soff_reg}, {16*rowstride}")

    def dma_voff64(self, rowstride, v, t0, t1):
        a = self.a
        a.I(f"v_lshrrev_b32 v{t0}, 2, v5")
        a.I(f"v_bfe_u32 v{t1}, v5, 5, 1")
        a.I(f"v_lshlrev_b32 v{t1}, 5, v{t1}")
        a.I(f"v_and_b32 v{v}, 3, v5")
        a.I(f"v_lshlrev_b32 v{v}, 4, v{v}")
        a.I(f"v_xor_b32 v{v}, v{v}, v{t1}")
        a.I(f"v_mul_u32_u24 v{t0}, {rowstride}, v{t0}")
        a.I(f"v_add_u32 v{v}, v{v}, v{t0}")

    def tr_addr64(self, vdst, t0, t1):
        a = self.a
        a.I(f"v_lshrrev_b32 v{t0}, 4, v5")
        a.I(f"v_bfe_u32 v{t1}, v5, 2, 2")
        a.I(f"v_lshl_add_u32 v{vdst}, v{t0}, 3, v{t1}")
        a.I(f"v_lshlrev_b32 v{vdst}, 6, v{vdst}")
        a.I(f"v_and_b32 v{t0}, 1, v{t0}")
        a.I(f"v_lshl_or_b32 v{vdst}, v{t0}, 5, v{vdst}")
        a.I(f"v_and_b32 v{t0}, 3, v5")
        a.I(f"v_lshl_add_u32 v{vdst}, v{t0}, 3, v{vdst}")

    def x1_from_y(self, vy_addr_soff, yregs, ga, xr, out, t):
        a = self.a
        for k in range(4):
            a.I(f"v_add_f32 v{out+k}, v{yregs+k}, v{yregs+4+k}")
        for w in range(2, 8):
            for k in range(4):
                a.I(f"v_add_f32 v{out+k}, v{out+k}, v{yregs+4*w+k}")
        o = [out + k for k in range(4)]
        self.bf16_round(o, t)
        for p in range(2):
            self.unpack(ga + p, t + 1, t + 2)
            a.I(f"v_mul_f32 v{o[2*p]}, v{o[2*p]}, v{t+1}")
            a.I(f"v_mul_f32 v{o[2*p+1]}, v{o[2*p+1]}, v{t+2}")
        self.bf16_round(o, t)
        for p in range(2):
            self.unpack(xr + p, t + 1, t + 2)
            a.I(f"v_add_f32 v{o[2*p]}, v{o[2*p]}, v{t+1}")
            a.I(f"v_add_f32 v{o[2*p+1]}, v{o[2*p+1]}, v{t+2}")
        self.bf16_round(o, t)

    def post_gu(self):
        a = self.a
        a.I("s_mul_i32 s45, s44, 21846")
        a.I("s_lshr_b32 s87, s45, 16")
        a.I("s_mul_i32 s46, s87, 3")
        a.I("s_sub_u32 s88, s44, s46")
        a.I("s_mul_i32 s46, s88, 54")
        a.I("v_add_u32 v10, s46, v5")
        a.I("v_cmp_gt_u32 vcc, 54, v5")
        a.I("s_mov_b64 s[50:51], vcc")
        a.I("v_mov_b32 v6, 160")
        a.I("v_cmp_lt_u32 vcc, v10, v6")
        a.I("s_and_b64 s[50:51], s[50:51], vcc")
        a.I("v_min_u32 v10, 159, v10")
        a.I("v_lshlrev_b32 v11, 3, v10")
        a.I("s_mul_i32 s46, s87, 7680")
        a.I(f"s_add_u32 s46, s46, {WS_MOD}")
        self.srd(36, 4, 5120)
        a.I("s_mul_i32 s47, s87, 1280")
        a.I("buffer_load_dwordx2 v[18:19], v11, s[36:39], s47 offen")
        a.I("v_add_u32 v40, 2560, v11")
        a.I("v_add_u32 v41, 3840, v11")
        a.I("v_add_u32 v42, 5120, v11")
        a.I("s_mul_i32 s85, s87, 7680")
        a.I(f"s_add_u32 s85, s85, {WS_MOD}")
        a.I("v_lshlrev_b32 v32, 4, v10")
        a.I("s_mul_i32 s86, s87, 2560")
        a.I(f"s_add_u32 s86, s86, {WS_Y}")
        yloads = []
        for w in range(8):
            yloads.append((f"buffer_load_dwordx4 v[{48+4*w}:{51+4*w}], v{80+w if False else 140+w}, s[40:43], s86 offen sc1", [48+4*w+k for k in range(4)]))
            a.I(f"v_add_u32 v{140+w}, {10240*w}, v32")
        modloads = ["buffer_load_dwordx2 v[12:13], v40, s[40:43], s85 offen sc1",
                    "buffer_load_dwordx2 v[14:15], v41, s[40:43], s85 offen sc1",
                    "buffer_load_dwordx2 v[16:17], v42, s[40:43], s85 offen sc1"]
        for ld in modloads:
            a.I(ld)
        if not self.cfg.early_w:
            a.I("s_cmp_ge_u32 s44, 10")
            a.I("s_cbranch_scc1 L_gu_dn")
            a.I(f"s_lshl_b32 s47, s{S_NB}, 6")
            a.I("s_cmp_ge_u32 s44, 5")
            a.I("s_cselect_b32 s48, s18, s16")
            a.I("s_cselect_b32 s49, s19, s17")
            a.I("s_cselect_b32 s63, 5, 0")
            self.srd(32, 48, 640 * 3072, off=47)
            self.dma_voff64(3072, 8, 6, 7)
            a.I("s_sub_u32 s63, s44, s63")
            a.I(f"s_mul_i32 s46, s63, {128*3072}")
            a.I("s_lshl_b32 s47, s44, 13")
            a.I(f"s_add_u32 s47, s47, {L_W}")
            self.dma_loop(32, 8, 8, 8, 47, 46, 16 * 3072, "L_gu_dma", pol=self.cfg.ntG)
            a.I("s_waitcnt vmcnt(8)")
            a.I("s_branch L_gu_dma_done")
            a.label("L_gu_dn")
            a.I(f"s_mul_i32 s45, s{S_NB}, 40960")
            self.srd(32, 20, 40960, off=45)
            for m in range(5):
                a.I(f"v_lshlrev_b32 v6, 4, v5")
                a.I(f"v_add_u32 v6, {1024*m}, v6")
                a.I("v_mul_u32_u24 v7, 3277, v6")
                a.I("v_lshrrev_b32 v7, 22, v7")
                a.I("v_mul_u32_u24 v8, 1280, v7")
                a.I("v_sub_u32 v6, v6, v8")
                a.I("v_lshlrev_b32 v7, 5, v7")
                a.I("v_xor_b32 v9, v6, v7")
                a.I(f"v_add_u32 v{148+m}, v8, v9")
                a.I("v_xor_b32 v9, 128, v9")
                a.I(f"v_add_u32 v{153+m}, v8, v9")
            a.I("s_sub_u32 s63, s44, 10")
            a.I("s_mul_i32 s46, s63, 20480")
            a.I(f"s_add_u32 s47, s46, {L_WD}")
            for q in range(4):
                for m in range(5):
                    a.I("s_mov_b32 m0, s47")
                    a.I("s_add_u32 s47, s47, 1024")
                    a.I(f"buffer_load_dwordx4 v{(153 if (q >> 1) & 1 else 148) + m}, s[32:35], s46 offen {self.cfg.ntW} lds")
                if q < 3:
                    a.I("s_add_u32 s46, s46, 5120")
            a.I("s_waitcnt vmcnt(20)")
            a.label("L_gu_dma_done")
            a.fence(2)
        else:
            a.I("s_waitcnt vmcnt(0)")
        self.stamp(22)
        a.I("v_max3_u32 v6, v12, v13, v14")
        a.I("v_max3_u32 v6, v6, v15, v16")
        a.I("v_max_u32 v6, v6, v17")
        a.I("v_cmp_eq_u32 vcc, -1, v6")
        a.I("s_cmp_eq_u64 vcc, 0")
        a.I("s_cbranch_scc1 L_pm2_skip")
        self.poll(modloads, list(range(12, 18)), "L_pm2", pre=6)
        a.label("L_pm2_skip")
        self.stamp(23)
        self.unpack(16, 20, 21)
        self.unpack(17, 22, 23)
        for k in range(4):
            a.I(f"v_add_f32 v{20+k}, 1.0, v{20+k}")
        self.bf16_round([20, 21, 22, 23], 6)
        self.unpack(14, 24, 25)
        self.unpack(15, 26, 27)
        self.unpack(12, 84, 85)
        self.unpack(13, 86, 87)
        self.unpack(18, 88, 89)
        self.unpack(19, 90, 91)
        self.tr_addr64(28, 6, 7)
        a.I("s_and_b32 s45, s44, 1")
        a.I("s_lshl_b32 s45, s45, 5")
        a.I("v_xor_b32 v28, s45, v28")
        a.I("s_bfe_u32 s45, s44, 0x10001")
        a.I("s_mul_i32 s45, s45, 40960")
        a.I("s_lshr_b32 s46, s44, 2")
        a.I(f"s_mul_i32 s47, s46, {7*2048}")
        a.I("s_add_u32 s45, s45, s47")
        a.I(f"s_add_u32 s45, s45, {L_W}")
        a.I("v_add_u32 v28, s45, v28")
        self.act_addr(29, 1344, 6)
        a.I(f"s_mul_i32 s47, s46, {7*64}")
        a.I(f"s_add_u32 s47, s47, {L_ACT}")
        a.I("v_add_u32 v29, s47, v29")
        self.red_lane_addr(30, 6)
        a.I("s_mul_i32 s47, s87, 1344")
        a.I(f"s_add_u32 s47, s47, {L_ACT}")
        a.I("v_lshl_add_u32 v31, v10, 3, s47")
        a.I("s_mul_i32 s45, s87, 1280")
        a.I(f"s_add_u32 s45, s45, {L_OPART}")
        a.I("v_lshl_add_u32 v92, v10, 3, s45")
        a.I("s_cmp_eq_u32 s88, 2")
        a.I("s_mov_b32 s45, 0x3b9d89d9")
        a.I("s_cselect_b32 s45, s45, 0x3b97b426")
        a.I("v_mov_b32 v93, s45")
        a.I("s_lshl_b32 s45, s44, 3")
        a.I(f"s_add_u32 s45, s45, {L_LNST}")
        a.I("v_mov_b32 v94, s45")
        a.I("s_mul_i32 s45, s87, 24")
        a.I(f"s_add_u32 s45, s45, {L_LNST}")
        a.I("v_mov_b32 v95, s45")
        if self.cfg.early_w:
            a.I("s_cmp_eq_u32 s44, 3")
        else:
            a.I("s_cmp_ge_u32 s44, 10")
        a.I("s_cbranch_scc1 L_gu_nowait")
        a.I("s_waitcnt vmcnt(0)")
        a.label("L_gu_nowait")
        a.I("s_barrier")
        self.stamp(9)
        self.mfma_preread(7, 28, 2048, 256, 96)
        a.I("v_lshrrev_b32 v6, 4, v5")
        a.I("v_bfe_u32 v7, v5, 2, 2")
        a.I("v_lshl_add_u32 v8, v6, 3, v7")
        a.I("v_mul_u32_u24 v8, 1280, v8")
        a.I("v_and_b32 v9, 3, v5")
        a.I("v_lshl_add_u32 v8, v9, 3, v8")
        a.I(f"v_add_u32 v8, {L_WD}, v8")
        a.I("v_and_b32 v6, 1, v6")
        a.I("v_lshl_or_b32 v7, v6, 2, v7")
        a.I("v_lshlrev_b32 v7, 5, v7")
        for t in range(4):
            a.I(f"s_add_u32 s45, s44, {12*t}")
            a.I("s_lshl_b32 s45, s45, 5")
            a.I(f"v_xor_b32 v9, s45, v7")
            a.I(f"v_add_u32 v{148+t}, v8, v9")
        if self.cfg.ygate:
            a.I("s_and_b32 s45, s44, 7")
            a.I("s_mul_i32 s45, s45, 10240")
            a.I("v_add_u32 v6, s45, v32")
            self.poll(["buffer_load_dwordx4 v[44:47], v6, s[40:43], s86 offen sc1"], [44, 45, 46, 47], "L_pyg", pre=7)
        self.poll_sel(yloads, "L_py", 6)
        self.stamp(10)
        for (o_, d, q) in ((48, 48, 52), (56, 56, 60), (64, 64, 68), (72, 72, 76), (48, 48, 56), (64, 64, 72), (40, 48, 64)):
            a.I(f"v_pk_add_f32 v[{o_}:{o_+1}], v[{d}:{d+1}], v[{q}:{q+1}]")
            a.I(f"v_pk_add_f32 v[{o_+2}:{o_+3}], v[{d+2}:{d+3}], v[{q+2}:{q+3}]")
        o = [40, 41, 42, 43]
        self.bf16_round(o, 6)
        a.I("v_pk_mul_f32 v[40:41], v[40:41], v[84:85]")
        a.I("v_pk_mul_f32 v[42:43], v[42:43], v[86:87]")
        self.bf16_round(o, 6)
        a.I("v_pk_add_f32 v[40:41], v[40:41], v[88:89]")
        a.I("v_pk_add_f32 v[42:43], v[42:43], v[90:91]")
        a.I("v_cvt_pk_bf16_f32 v36, v40, v41")
        a.I("v_cvt_pk_bf16_f32 v37, v42, v43")
        self.unpack(36, 32, 33)
        self.unpack(37, 34, 35)
        a.I("s_mov_b64 exec, s[50:51]")
        a.I("ds_write_b64 v92, v[36:37]")
        a.I("s_mov_b64 exec, -1")
        a.I("v_readfirstlane_b32 s46, v32")
        for k in range(4):
            a.I(f"v_subrev_f32 v{40+k}, s46, v{32+k}")
        a.I("v_add_f32 v36, v40, v41")
        a.I("v_mul_f32 v37, v40, v40")
        a.I("v_add_f32 v38, v42, v43")
        a.I("v_fmac_f32 v37, v41, v41")
        a.I("v_add_f32 v36, v36, v38")
        a.I("v_fmac_f32 v37, v42, v42")
        a.I("v_fmac_f32 v37, v43, v43")
        a.I("v_cndmask_b32 v36, 0, v36, s[50:51]")
        a.I("v_cndmask_b32 v37, 0, v37, s[50:51]")
        for r in (8, 4, 2, 1):
            for v in (36, 37):
                a.I(f"v_add_f32_dpp v{v}, v{v}, v{v} row_ror:{r} row_mask:0xf bank_mask:0xf")
        for m in ("row_bcast:15 row_mask:0xa", "row_bcast:31 row_mask:0xc"):
            for v in (36, 37):
                a.I(f"v_add_f32_dpp v{v}, v{v}, v{v} {m} bank_mask:0xf")
        a.I("v_readlane_b32 s47, v36, 63")
        a.I("v_readlane_b32 s45, v37, 63")
        a.I("v_mul_f32 v38, s47, v93")
        a.I("v_mov_b32 v39, s45")
        a.I("v_add_f32 v37, s46, v38")
        a.I("v_mul_f32 v38, s47, v38")
        a.I("v_sub_f32 v38, v39, v38")
        a.I("ds_write_b32 v94, v37")
        a.I("ds_write_b32 v94, v38 offset:4")
        a.I("s_waitcnt lgkmcnt(0)")
        a.I("s_barrier")
        self.stamp(16)
        a.I("ds_read_b64 v[40:41], v95")
        a.I("ds_read_b64 v[42:43], v95 offset:8")
        a.I("ds_read_b64 v[44:45], v95 offset:16")
        for t in range(4):
            b = 124 + 4 * t
            a.I(f"ds_read_b64_tr_b16 v[{b}:{b+1}], v{148+t}")
            a.I(f"ds_read_b64_tr_b16 v[{b+2}:{b+3}], v{148+t} offset:{4*1280}")
        a.I("s_waitcnt lgkmcnt(8)")
        a.I("v_add_f32 v46, v40, v42")
        a.I("v_mov_b32 v47, 0x43500000")
        a.I("v_mul_f32 v46, 0x43580000, v46")
        a.I("v_add_f32 v41, v41, v43")
        a.I("v_fmac_f32 v46, v47, v44")
        a.I("v_add_f32 v41, v41, v45")
        a.I("v_mul_f32 v46, 0x3acccccd, v46")
        a.I("v_sub_f32 v40, v40, v46")
        a.I("v_sub_f32 v42, v42, v46")
        a.I("v_sub_f32 v44, v44, v46")
        a.I("v_cvt_pk_bf16_f32 v52, v46, v46")
        a.I("v_mul_f32 v40, v40, v40")
        a.I("v_mul_f32 v44, v44, v44")
        a.I("v_lshlrev_b32 v52, 16, v52")
        a.I("v_fmac_f32 v40, v42, v42")
        a.I("v_mov_b32 v53, v52")
        a.I("v_mul_f32 v40, 0x43580000, v40")
        a.I("v_pk_add_f32 v[32:33], v[32:33], v[52:53] neg_lo:[0,1] neg_hi:[0,1]")
        a.I("v_fmac_f32 v40, v47, v44")
        a.I("v_pk_add_f32 v[34:35], v[34:35], v[52:53] neg_lo:[0,1] neg_hi:[0,1]")
        a.I("v_add_f32 v40, v40, v41")
        a.I("v_cvt_pk_bf16_f32 v6, v32, v33")
        a.I("v_mul_f32 v40, 0x3acccccd, v40")
        a.I("v_cvt_pk_bf16_f32 v7, v34, v35")
        a.I("v_cvt_pk_bf16_f32 v48, v40, v40")
        a.I("v_lshlrev_b32 v32, 16, v6")
        a.I("v_lshlrev_b32 v40, 16, v48")
        a.I("v_and_b32 v33, 0xffff0000, v6")
        a.I(f"v_add_f32 v40, 0x{EPS:x}, v40")
        a.I("v_lshlrev_b32 v34, 16, v7")
        a.I("v_cvt_pk_bf16_f32 v48, v40, v40")
        a.I("v_and_b32 v35, 0xffff0000, v7")
        a.I("v_lshlrev_b32 v40, 16, v48")
        a.I("v_sqrt_f32 v48, v40")
        a.I("v_rcp_f32 v49, v48")
        a.I("v_fma_f32 v50, -v48, v48, v40")
        a.I("v_mul_f32 v49, 0.5, v49")
        a.I("v_fma_f32 v48, v50, v49, v48")
        a.I("v_cvt_pk_bf16_f32 v48, v48, v48")
        a.I("v_lshlrev_b32 v40, 16, v48")
        a.I("v_rcp_f32 v42, v40")
        a.I("v_mov_b32 v41, v40")
        a.I("v_mov_b32 v43, v42")
        o = [32, 33, 34, 35]
        for p in (32, 34):
            t = 48 if p == 32 else 50
            a.I(f"v_pk_mul_f32 v[{t}:{t+1}], v[{p}:{p+1}], v[42:43]")
        for p in (32, 34):
            t = 48 if p == 32 else 50
            a.I(f"v_pk_fma_f32 v[{p}:{p+1}], v[{t}:{t+1}], v[40:41], v[{p}:{p+1}] neg_lo:[1,0,0] neg_hi:[1,0,0]")
        for p in (32, 34):
            t = 48 if p == 32 else 50
            a.I(f"v_pk_fma_f32 v[{p}:{p+1}], v[{p}:{p+1}], v[42:43], v[{t}:{t+1}]")
        self.bf16_round(o, 6)
        a.I("v_pk_mul_f32 v[32:33], v[32:33], v[20:21]")
        a.I("v_pk_mul_f32 v[34:35], v[34:35], v[22:23]")
        self.bf16_round(o, 6)
        a.I("v_pk_add_f32 v[32:33], v[32:33], v[24:25]")
        a.I("v_pk_add_f32 v[34:35], v[34:35], v[26:27]")
        a.I("v_cvt_pk_bf16_f32 v32, v32, v33")
        a.I("v_cvt_pk_bf16_f32 v33, v34, v35")
        a.I("s_mov_b64 exec, s[50:51]")
        a.I("ds_write_b64 v31, v[32:33]")
        a.I("s_mov_b64 exec, -1")
        a.I("s_waitcnt lgkmcnt(0)")
        a.I("s_barrier")
        self.stamp(17)
        a.I("s_cmp_ge_u32 s44, 8")
        a.I("s_cbranch_scc1 L_gu_m6")
        self.mfma_with_b(7, 96, 29, 40, 20)
        a.I("s_branch L_gu_mdone")
        a.label("L_gu_m6")
        a.fence(2)
        self.mfma_with_b(6, 96, 29, 40, 20)
        a.label("L_gu_mdone")
        a.fence(8)
        self.write_red(20, 30)
        self.stamp(18)
        a.I("s_cmp_lg_u32 s44, 0")
        a.I("s_cbranch_scc1 L_gu_done")
        a.I("v_lshlrev_b32 v6, 4, v5")
        for kt in range(3):
            a.I(f"ds_read_b128 v[{20+4*kt}:{23+4*kt}], v6 offset:{L_RED + 1024*kt}")
        a.I("s_waitcnt lgkmcnt(0)")
        for k in range(4):
            a.I(f"v_add_f32 v{20+k}, v{20+k}, v{24+k}")
        for k in range(4):
            a.I(f"v_add_f32 v{20+k}, v{20+k}, v{28+k}")
        self.bf16_round([20, 21, 22, 23], 6)
        for k in range(4):
            a.I(f"v_mov_b32 v{24+k}, v{20+k}")
        for k in range(4):
            a.I(f"v_permlane32_swap_b32 v{20+k}, v{24+k}")
        for k in range(4):
            a.I(f"v_mul_f32 v{20+k}, v{20+k}, v{24+k}")
        a.I("v_cvt_pk_bf16_f32 v20, v20, v21")
        a.I("v_cvt_pk_bf16_f32 v21, v22, v23")
        a.I("v_and_b32 v6, 3, v5")
        a.I("v_lshlrev_b32 v6, 6, v6")
        a.I("v_bfe_u32 v7, v5, 2, 3")
        a.I("v_lshl_add_u32 v6, v7, 3, v6")
        a.I("s_mov_b32 exec_lo, -1"); a.I("s_mov_b32 exec_hi, 0")
        a.I(f"ds_write_b64 v6, v[20:21] offset:{L_QV}")
        a.I("s_mov_b64 exec, -1")
        a.I("s_waitcnt lgkmcnt(0)")
        a.label("L_gu_done")
        a.I("s_barrier")
        self.stamp(14)
        a.I("v_and_b32 v6, 3, v5")
        a.I("v_lshlrev_b32 v6, 6, v6")
        a.I("v_lshrrev_b32 v7, 4, v5")
        a.I("v_lshl_add_u32 v6, v7, 4, v6")
        a.I(f"ds_read_b128 v[40:43], v6 offset:{L_QV}")
        a.I("v_and_b32 v6, 3, v5")
        a.I("v_lshlrev_b32 v6, 6, v6")
        a.I("v_lshl_add_u32 v6, v7, 4, v6")
        a.I("s_mul_i32 s45, s44, 12288")
        a.I(f"s_lshl_b32 s46, s{S_NB}, 8")
        a.I("s_add_u32 s45, s45, s46")
        a.I(f"s_add_u32 s45, s45, {WS_PD}")
        a.I("s_waitcnt lgkmcnt(0)")
        for t in range(4):
            a.I(f"v_mfma_f32_16x16x32_bf16 v[{44+4*t}:{47+4*t}], v[{124+4*t}:{127+4*t}], v[40:43], 0")
        a.I(f"s_mov_b32 exec_lo, 0x{MASK_N4_LO:x}")
        a.I(f"s_mov_b32 exec_hi, 0x{MASK_N4_LO:x}")
        for t in range(4):
            if t == 3:
                a.I("s_cmp_ge_u32 s44, 4")
                a.I("s_cbranch_scc1 L_gu_st_done")
            self.canon([44+4*t+k for k in range(4)], 12)
            a.I(f"buffer_store_dwordx4 v[{44+4*t}:{47+4*t}], v6, s[40:43], s45 offen sc1")
            if t < 3:
                a.I(f"s_add_u32 s45, s45, {12*12288}")
        a.label("L_gu_st_done")
        a.I("s_mov_b64 exec, -1")
        self.stamp(11)

    def post_final(self):
        a = self.a
        a.fence(2)
        a.I("v_lshlrev_b32 v10, 4, v5")
        a.I(f"s_mul_i32 s47, s{S_DT}, 12288")
        a.I("s_lshl_b32 s45, s44, 10")
        a.I("s_add_u32 s47, s47, s45")
        a.I(f"s_add_u32 s47, s47, {WS_PD}")
        a.I("v_bfe_u32 v12, v5, 2, 2")
        a.I("v_and_b32 v13, 3, v5")
        a.I("v_mul_u32_u24 v14, 7680, v12")
        a.I("v_lshl_add_u32 v14, v13, 3, v14")
        a.I(f"s_lshl_b32 s45, s{S_DT}, 5")
        a.I(f"s_add_u32 s46, s45, {WS_MOD + 6400}")
        a.I("v_mul_u32_u24 v31, 1280, v12")
        a.I("v_lshl_add_u32 v31, v13, 3, v31")
        a.I(f"s_add_u32 s45, s45, {L_OPART}")
        a.I("v_add_u32 v31, s45, v31")
        a.I("v_and_b32 v30, 15, v5")
        a.I("v_lshlrev_b32 v30, 4, v30")
        a.I("s_lshl_b32 s45, s44, 8")
        a.I(f"s_add_u32 s45, s45, {L_RED}")
        a.I("v_add_u32 v29, s45, v30")
        self.stamp(19)
        self.poll(["buffer_load_dwordx4 v[40:43], v10, s[40:43], s47 offen sc1",
                   "buffer_load_dwordx2 v[22:23], v14, s[40:43], s46 offen sc1"], [40, 41, 42, 43, 22, 23], "L_ph", pre=6)
        self.stamp(20)
        for sw in ("v_permlane32_swap_b32", "v_permlane16_swap_b32"):
            for k in range(4):
                a.I(f"v_mov_b32 v{44+k}, v{40+k}")
            for k in range(4):
                a.I(f"{sw} v{40+k}, v{44+k}")
            for k in range(4):
                a.I(f"v_add_f32 v{40+k}, v{40+k}, v{44+k}")
        a.I("s_mov_b32 exec_lo, 0xffff"); a.I("s_mov_b32 exec_hi, 0")
        a.I("ds_write_b128 v29, v[40:43]")
        a.I("s_mov_b64 exec, -1")
        a.I("s_waitcnt lgkmcnt(0)")
        a.I("s_barrier")
        a.I("s_cmp_lg_u32 s44, 0")
        a.I("s_cbranch_scc1 L_dn_done")
        a.I("v_lshrrev_b32 v6, 4, v5")
        a.I("v_mul_u32_u24 v6, 768, v6")
        a.I("v_add_u32 v6, v6, v30")
        for k in range(3):
            a.I(f"ds_read_b128 v[{40+4*k}:{43+4*k}], v6 offset:{L_RED + 256*k}")
        a.I("ds_read_b64 v[32:33], v31")
        self.srd(36, 26, 5120)
        a.I("s_waitcnt lgkmcnt(0)")
        for k in range(4):
            a.I(f"v_add_f32 v{40+k}, v{40+k}, v{44+k}")
        for k in range(4):
            a.I(f"v_add_f32 v{40+k}, v{40+k}, v{48+k}")
        for sw in ("v_permlane32_swap_b32", "v_permlane16_swap_b32"):
            for k in range(4):
                a.I(f"v_mov_b32 v{44+k}, v{40+k}")
            for k in range(4):
                a.I(f"{sw} v{40+k}, v{44+k}")
            for k in range(4):
                a.I(f"v_add_f32 v{40+k}, v{40+k}, v{44+k}")
        o = [40, 41, 42, 43]
        self.bf16_round(o, 6)
        self.unpack(22, 24, 25)
        self.unpack(23, 26, 27)
        for k in range(4):
            a.I(f"v_mul_f32 v{40+k}, v{40+k}, v{24+k}")
        self.bf16_round(o, 6)
        self.unpack(32, 24, 25)
        self.unpack(33, 26, 27)
        for k in range(4):
            a.I(f"v_add_f32 v{40+k}, v{40+k}, v{24+k}")
        a.I("v_cvt_pk_bf16_f32 v40, v40, v41")
        a.I("v_cvt_pk_bf16_f32 v41, v42, v43")
        a.I("v_mul_u32_u24 v6, 1280, v12")
        a.I("v_lshl_add_u32 v6, v13, 3, v6")
        a.I(f"s_lshl_b32 s45, s{S_DT}, 5")
        a.I("s_mov_b32 exec_lo, 0xffff"); a.I("s_mov_b32 exec_hi, 0")
        a.I(f"buffer_store_dwordx2 v[40:41], v6, s[36:39], s45 offen {self.cfg.outpol}")
        a.I("s_mov_b64 exec, -1")
        a.label("L_dn_done")
        self.stamp(21)

    def tail(self):
        a = self.a
        a.label("L_tail")
        if self.cfg.dbgt:
            a.fence(4)
            a.I("s_cmp_eq_u32 s44, 0")
            a.I("s_cbranch_scc0 L_end")
            self.stamp(13)
            a.I("s_mov_b64 exec, 1")
            a.I("s_not_b32 s98, s98")
            for i, r in enumerate((98, 77, 72, 66, 64 + 4, 64 + 6)):
                a.I(f"v_mov_b32 v6, {16 + 4*i}")
                a.I(f"v_mov_b32 v7, s{r}")
                a.I("global_atomic_umax v6, v7, s[28:29] sc1")
            a.I("s_branch L_end")
        if self.diag and not self.cfg.dbgt:
            a.fence(4)
            self.stamp(13)
            a.I(f"s_lshl_b32 s79, s{S_PRE}, 4")
            a.I(f"s_or_b32 s79, s79, s{S_POST}")
            a.I("s_mul_i32 s45, s2, 12")
            a.I("s_add_u32 s45, s45, s44")
            a.I("s_lshl_b32 s45, s45, 7")
            a.I(f"s_add_u32 s45, s45, {WS_DBG}")
            a.I("s_mov_b64 exec, 1")
            a.I("v_mov_b32 v6, 0")
            regs = [64 + k for k in range(16)] + [93 + k for k in range(8)]
            for q in range(6):
                for k in range(4):
                    a.I(f"v_mov_b32 v{8+k}, s{regs[4*q+k]}")
                a.I(f"buffer_store_dwordx4 v[8:11], v6, s[40:43], s45 offen offset:{16*q}")
                a.I("s_nop 1")
        a.label("L_end")
        a.I("s_endpgm")
        a.raw(f""".section .rodata,"a"
.p2align 6
.amdhsa_kernel {self.name}
  .amdhsa_next_free_vgpr 168
  .amdhsa_next_free_sgpr 102
  .amdhsa_accum_offset 168
  .amdhsa_group_segment_fixed_size 0
  .amdhsa_float_denorm_mode_32 3
  .amdhsa_kernarg_size 112
  .amdhsa_user_sgpr_count 2
  .amdhsa_user_sgpr_kernarg_segment_ptr 1
  .amdhsa_system_sgpr_workgroup_id_x 1
.end_amdhsa_kernel""")

    def build(self):
        self.entry()
        self.helper_front()
        self.stream()
        self.helper()
        self.a.I("s_branch L_post")
        self.stream_bulk()
        self.post()
        self.tail()
        txt = self.a.text()
        if self.cfg.hop2:
            assert self.nseg <= 7, self.nseg
            w = ["  s_mov_b64 exec, 0"]
            for k in range(self.nseg):
                w += [f"  s_cmp_eq_u32 s44, {4 + k}", f"  s_cbranch_scc1 L_hopP{k}_0"]
            w += ["L_warm2_ret:", "  s_mov_b64 exec, -1"]
            txt = txt.replace("@@WARM2@@", "\n".join(w))
        return txt


def make(path, diag=False, name=KNAME, **kw):
    cfg = StreamCfg()
    for k, v in kw.items():
        setattr(cfg, k, v)
    g = Gen(cfg, diag=diag, name=name)
    txt = g.build()
    open(path, 'w').write(txt)
    return g


if __name__ == '__main__':
    out = sys.argv[1]
    kw = {}
    diag = False
    name = KNAME
    for kv in sys.argv[2:]:
        k, v = kv.split('=')
        if k == 'diag': diag = bool(int(v))
        elif k == 'name': name = v
        else: kw[k] = v.replace('_', ' ').replace('none', '') if k in ('nt', 'pfpol', 'ntV', 'ntW', 'outpol', 'ntG') else int(v)
    g = make(out, diag=diag, name=name, **kw)
    print(out, 'nops', g.a.nops)
```

```python
import sys
sys.path.insert(0, 'gen')
from asmdsl import Asm
import stream as st
from stream import StreamCfg, LOG2E

KNAME = 'adaLN_cond__gqa_block_cached__glu_gated_bilinear__decode_kernel'

WS_MOD, WS_Q, WS_ML, WS_O, WS_Y, WS_PD, WS_DBG = 0, 0x8000, 0x38000, 0x40000, 0x70000, 0x84000, 0x100000
WS_SIZE = 0x200000
L_ACT = 0x0000
L_RED = 0x3200
L_QV = 0x4200
L_STATS = 0x4400
L_FIN = 0x4480
L_HFLAG = 0x4500
L_LNST = 0x4540
L_P = 0x4600
L_OPART = 0x5A00
L_W = 0x7200
L_WD = L_W + 81920
L_X1 = 0x6E00
LDS_BYTES = L_W + 81920 + 40960 + 512
LDS = dict(QV=L_QV, STATS=L_STATS, FIN=L_FIN, P=L_P, OPART=L_OPART, TICKET=L_FIN + 8)


HEADER = """; adaLN-conditioned decode block (attention over a 4096-key cache + GLU MLP), one fused persistent launch.
; Kernarg (112 bytes, pointers only, s[0:1]): 0 A_x, 8 A_k_cache, 16 A_v_cache, 24 A_wq, 32 A_wo, 40 B_x (unused by the reference),
;
; Hand-offs go through d_ws with write-through (sc1) stores and sc1 polls; every slot is first reset to a sentinel by a fixed owner,
; arrivals are counted in d_debug and workgroup 0 opens a private GO word per workgroup once all resets are done, so nothing an
; code into the instruction cache ahead of time.
"""

SPIN_MAX = 1 << 16
NANF = 0x7fc00000
NANB = 0x7fc07fc0
EPS = 0x3727c5ac

S = dict(srdK=32, srdV=36, srdW=40, wave=44, tmp=45, soff=46, mask0=48, mask1=50, sello=52, selhi=53, log2e=54,
         m=55, l=56, b=57, h=58, half=59, spin=62)
S_PRE, S_BAND, S_POST, S_NB, S_KG = 80, 81, 82, 83, 84
S_KH, S_LATE, S_PHASE, S_DT = 89, 90, 91, 92
MASK_N4_LO = 0x000f000f


class Gen:
    def __init__(self, cfg, diag=False, name=KNAME):
        self.a = Asm()
        self.cfg = cfg
        self.diag = diag
        self.name = name

    def stamp(self, k):
        if not self.diag:
            return
        a = self.a
        a.I("s_memrealtime s[60:61]")
        a.I("s_waitcnt lgkmcnt(0)")
        a.I(f"s_mov_b32 s{64+k if k < 16 else 93+k-16}, s60")

    def srd(self, dst, ptr, size, off=None):
        a = self.a
        if off is None:
            a.I(f"s_mov_b32 s{dst}, s{ptr}")
            a.I(f"s_mov_b32 s{dst+1}, s{ptr+1}")
        else:
            a.I(f"s_add_u32 s{dst}, s{ptr}, s{off}")
            a.I(f"s_addc_u32 s{dst+1}, s{ptr+1}, 0")
        a.I(f"s_mov_b32 s{dst+2}, {size}")
        a.I(f"s_mov_b32 s{dst+3}, 0x20000")

    def canon(self, regs, nanreg=None):
        a = self.a
        for r in regs:
            a.I(f"v_min_u32 v{r}, -2, v{r}")

    def poll_sel(self, loads, label, t, first_issued=False):
        a = self.a
        n = len(loads)
        a.I(f"s_mov_b32 s63, {(1 << n) - 1}")
        a.I("s_mov_b32 s62, 0")
        if first_issued:
            a.I(f"s_branch {label}_chk")
        a.label(label)
        for i, (ld, regs) in enumerate(loads):
            a.I(f"s_bitcmp1_b32 s63, {i}")
            a.I(f"s_cbranch_scc0 {label}_s{i}")
            a.I(ld)
            a.label(f"{label}_s{i}")
        a.label(f"{label}_chk")
        a.I("s_add_u32 s62, s62, 1")
        a.I("s_waitcnt vmcnt(0)")
        for i, (ld, regs) in enumerate(loads):
            r = regs
            a.I(f"v_max3_u32 v{t}, v{r[0]}, v{r[1]}, v{r[2]}")
            a.I(f"v_max_u32 v{t}, v{t}, v{r[3]}")
            a.I(f"v_cmp_eq_u32 vcc, -1, v{t}")
            a.I("s_cmp_eq_u64 vcc, 0")
            a.I(f"s_cbranch_scc0 {label}_p{i}")
            a.I(f"s_bitset0_b32 s63, {i}")
            a.label(f"{label}_p{i}")
        a.I("s_cmp_eq_u32 s63, 0")
        a.I(f"s_cbranch_scc1 {label}_ok")
        a.I(f"s_cmp_lt_u32 s62, {SPIN_MAX}")
        a.I(f"s_cbranch_scc1 {label}")
        a.label(f"{label}_ok")

    def poll(self, loads, regs, label, pre=None):
        a = self.a
        a.I("s_mov_b32 s62, 0")
        a.label(label)
        for ld in loads:
            a.I(ld)
        a.I("s_add_u32 s62, s62, 1")
        a.I("s_waitcnt vmcnt(0)")
        rs = list(regs)
        t = pre
        first = True
        i = 0
        while i < len(rs):
            if first:
                if len(rs) >= 3:
                    a.I(f"v_max3_u32 v{t}, v{rs[0]}, v{rs[1]}, v{rs[2]}"); i = 3
                elif len(rs) == 2:
                    a.I(f"v_max_u32 v{t}, v{rs[0]}, v{rs[1]}"); i = 2
                else:
                    a.I(f"v_mov_b32 v{t}, v{rs[0]}"); i = 1
                first = False
            elif i + 1 < len(rs):
                a.I(f"v_max3_u32 v{t}, v{t}, v{rs[i]}, v{rs[i+1]}"); i += 2
            else:
                a.I(f"v_max_u32 v{t}, v{t}, v{rs[i]}"); i += 1
        a.I(f"v_cmp_eq_u32 vcc, -1, v{t}")
        a.I("s_cmp_eq_u64 vcc, 0")
        a.I(f"s_cbranch_scc1 {label}_ok")
        a.I(f"s_cmp_lt_u32 s62, {SPIN_MAX}")
        a.I(f"s_cbranch_scc1 {label}")
        a.label(f"{label}_ok")

    def poll_counter(self, off, expect, label, vz, vt):
        a = self.a
        a.I(f"v_mov_b32 v{vz}, {off}")
        a.I("s_mov_b32 s62, 0")
        a.I("s_mov_b64 exec, 1")
        a.label(label)
        a.I(f"global_load_dword v{vt}, v{vz}, s[28:29] sc1")
        a.I("s_add_u32 s62, s62, 1")
        a.I("s_waitcnt vmcnt(0)")
        a.I(f"v_readfirstlane_b32 s45, v{vt}")
        a.I(f"s_cmp_ge_u32 s45, {expect}")
        a.I(f"s_cbranch_scc1 {label}_ok")
        a.I(f"s_cmp_lt_u32 s62, {SPIN_MAX}")
        a.I(f"s_cbranch_scc1 {label}")
        a.label(f"{label}_ok")
        a.I("s_mov_b64 exec, -1")

    def hsync(self, k, label, vz, vt):
        a = self.a
        a.I("s_waitcnt lgkmcnt(0)")
        a.I("s_lshl_b32 s45, s44, 2")
        a.I(f"s_add_u32 s45, s45, {L_HFLAG}")
        a.I(f"v_mov_b32 v{vz}, s45")
        a.I(f"v_mov_b32 v{vt}, {k}")
        a.I(f"ds_write_b32 v{vz}, v{vt}")
        a.I(f"v_mov_b32 v{vz}, {L_HFLAG}")
        a.I("s_mov_b32 s62, 0")
        a.label(label)
        a.I(f"ds_read_b128 v[{vt}:{vt+3}], v{vz}")
        a.I("s_add_u32 s62, s62, 1")
        a.I("s_waitcnt lgkmcnt(0)")
        a.I(f"v_min3_u32 v{vt}, v{vt}, v{vt+1}, v{vt+2}")
        a.I(f"v_min_u32 v{vt}, v{vt}, v{vt+3}")
        a.I(f"v_readfirstlane_b32 s45, v{vt}")
        a.I(f"s_cmp_ge_u32 s45, {k}")
        a.I(f"s_cbranch_scc1 {label}_ok")
        a.I(f"s_cmp_lt_u32 s62, {SPIN_MAX*4}")
        a.I(f"s_cbranch_scc1 {label}")
        a.label(f"{label}_ok")

    def bf16_round(self, regs, tmp):
        a = self.a
        for i in range(0, len(regs), 2):
            a.I(f"v_cvt_pk_bf16_f32 v{tmp}, v{regs[i]}, v{regs[i+1]}")
            a.I(f"v_lshlrev_b32 v{regs[i]}, 16, v{tmp}")
            a.I(f"v_and_b32 v{regs[i+1]}, 0xffff0000, v{tmp}")

    def unpack(self, src, lo, hi):
        a = self.a
        a.I(f"v_lshlrev_b32 v{lo}, 16, v{src}")
        a.I(f"v_and_b32 v{hi}, 0xffff0000, v{src}")

    def wave_sum_bcast(self, v, sdst):
        st.wave_reduce(self.a, 'v_add_f32', v, sdst)

    def ln_denom(self, vvar, vt):
        a = self.a
        a.I(f"v_cvt_pk_bf16_f32 v{vt}, v{vvar}, v{vvar}")
        a.I(f"v_lshlrev_b32 v{vvar}, 16, v{vt}")
        a.I(f"v_add_f32 v{vvar}, 0x{EPS:x}, v{vvar}")
        a.I(f"v_cvt_pk_bf16_f32 v{vt}, v{vvar}, v{vvar}")
        a.I(f"v_lshlrev_b32 v{vvar}, 16, v{vt}")
        a.I(f"v_sqrt_f32 v{vt}, v{vvar}")
        a.I(f"v_rcp_f32 v{vt+1}, v{vt}")
        a.I(f"v_fma_f32 v{vt+2}, -v{vt}, v{vt}, v{vvar}")
        a.I(f"v_mul_f32 v{vt+1}, 0.5, v{vt+1}")
        a.I(f"v_fma_f32 v{vt}, v{vt+2}, v{vt+1}, v{vt}")
        a.I(f"v_cvt_pk_bf16_f32 v{vt}, v{vt}, v{vt}")
        a.I(f"v_lshlrev_b32 v{vvar}, 16, v{vt}")

    def div_by(self, num, den, rcp, t):
        a = self.a
        a.I(f"v_mul_f32 v{t}, v{num}, v{rcp}")
        a.I(f"v_fma_f32 v{num}, -v{t}, v{den}, v{num}")
        a.I(f"v_fma_f32 v{num}, v{num}, v{rcp}, v{t}")

    def entry(self):
        a = self.a
        a.raw(HEADER.rstrip("\n"))
        a.raw(f"; @launch grid=(256,1,1) block=(768,1,1) lds={LDS_BYTES}")
        a.raw('.amdgcn_target "amdgcn-amd-amdhsa--gfx950"\n.text')
        a.raw(f".globl {self.name}\n.p2align 8\n.type {self.name},@function\n{self.name}:")
        a.I("s_cmp_ge_u32 s2, 256")
        a.I("s_cbranch_scc1 L_end")
        if self.cfg.dbgt:
            a.I("s_memrealtime s[98:99]")
        a.I("s_load_dwordx16 s[4:19], s[0:1], 0")
        a.I("s_load_dwordx8 s[20:27], s[0:1], 64")
        a.I("s_load_dwordx4 s[28:31], s[0:1], 96")
        a.I("v_lshrrev_b32 v1, 6, v0")
        a.I("v_and_b32 v5, 63, v0")
        a.I("v_readfirstlane_b32 s44, v1")
        a.I("s_lshr_b32 s45, s2, 1")
        a.I(f"s_mov_b32 s{S_PRE}, 2")
        a.I("s_bitcmp1_b32 s2, 0")
        a.I("s_cbranch_scc1 L_early_q")
        a.I(f"s_sub_u32 s{S_BAND}, s45, 4")
        a.I(f"s_cmp_lt_u32 s{S_BAND}, 60")
        a.I(f"s_cselect_b32 s{S_PRE}, 1, 0")
        a.I("s_cmp_lt_u32 s45, 64")
        a.I("s_cbranch_scc1 L_early_done")
        a.I(f"s_mov_b32 s{S_PRE}, 2")
        a.I("s_add_u32 s45, s45, 64")
        a.label("L_early_q")
        a.I(f"s_lshr_b32 s{S_BAND}, s45, 1")
        a.I(f"s_and_b32 s{S_KH}, s45, 1")
        a.label("L_early_done")
        a.I("s_cmp_lt_u32 s44, 4")
        a.I("s_cbranch_scc0 L_stream")

    def pair_unit(self, sv, sdst):
        a = self.a
        a.I(f"s_and_b32 s46, s{sv}, 7")
        a.I(f"s_lshr_b32 s47, s{sv}, 4")
        a.I("s_lshl_b32 s47, s47, 3")
        a.I("s_add_u32 s46, s46, s47")
        a.I(f"s_bfe_u32 s47, s{sv}, 0x10003")
        a.I(f"s_lshl_b32 s{sdst}, s46, 1")
        a.I(f"s_add_u32 s{sdst}, s{sdst}, s47")

    def roles_rest(self):
        a = self.a
        if self.cfg.xp == 0:
            a.I("s_and_b32 s45, s2, 7")
            a.I("s_lshr_b32 s46, s2, 3")
            a.I("s_and_b32 s47, s46, 3")
            a.I("s_lshl_b32 s47, s47, 3")
            a.I("s_add_u32 s58, s45, s47")
            a.I("s_lshr_b32 s46, s2, 5")
            a.I("s_lshr_b32 s57, s46, 1")
            a.I("s_and_b32 s59, s46, 1")
        else:
            a.I("s_and_b32 s59, s2, 1")
            a.I(f"s_xor_b32 s45, s2, {self.cfg.xp}")
            a.I("s_cmp_eq_u32 s59, 0")
            a.I("s_cselect_b32 s45, s2, s45")
            a.I("s_bfe_u32 s45, s45, 0x20001")
            a.I("s_lshr_b32 s46, s2, 3")
            a.I("s_lshr_b32 s57, s46, 3")
            a.I("s_and_b32 s46, s46, 7")
            a.I("s_lshl_b32 s46, s46, 2")
            a.I("s_add_u32 s58, s46, s45")
        a.I(f"s_mov_b32 s{S_POST}, 0")
        a.I("s_lshr_b32 s45, s2, 1")
        a.I("s_mul_i32 s46, s45, 6554")
        a.I("s_lshr_b32 s46, s46, 16")
        a.I(f"s_mov_b32 s{S_KG}, s46")
        a.I("s_mul_i32 s47, s46, 10")
        a.I(f"s_sub_u32 s{S_NB}, s45, s47")
        a.I("s_cmp_lt_u32 s45, 80")
        a.I(f"s_cselect_b32 s{S_POST}, 1, 0")
        lab = a.newlabel('roles_done')
        a.I("s_bitcmp1_b32 s2, 0")
        a.I(f"s_cbranch_scc0 {lab}")
        a.I(f"s_mov_b32 s{S_NB}, s45")
        a.I("s_cmp_lt_u32 s45, 48")
        a.I(f"s_cselect_b32 s{S_POST}, 2, 0")
        a.label(lab)

    def prefetch_weights(self):
        a = self.a
        pol = self.cfg.pfpol
        lab = a.newlabel('pf')
        a.I("s_cmp_eq_u32 s44, 0")
        a.I(f"s_cbranch_scc1 {lab}_done")
        a.I("v_lshlrev_b32 v8, 4, v5")
        if self.cfg.pfs:
            for i, p in enumerate((16, 18, 20)):
                a.I(f"s_cmp_eq_u32 s44, {i+1}")
                a.I(f"s_cbranch_scc0 {lab}_n{i}")
                a.I("s_mul_i32 s45, s2, 7680")
                self.srd(32, p, 7680, off=45)
                a.I("s_mov_b32 s46, 0")
                a.I("s_mov_b32 s63, 8")
                a.label(f"{lab}_t{i}")
                a.I(f"s_waitcnt vmcnt({self.cfg.PW - 1})")
                a.I(f"buffer_load_dwordx4 v[12:15], v8, s[32:35], s46 offen {pol}")
                a.I("s_add_u32 s46, s46, 1024")
                a.I("s_sub_u32 s63, s63, 1")
                a.I("s_cmp_lg_u32 s63, 0")
                a.I(f"s_cbranch_scc1 {lab}_t{i}")
                a.label(f"{lab}_n{i}")
            a.I(f"s_branch {lab}_done")
        a.I("s_cmp_eq_u32 s44, 3")
        a.I(f"s_cbranch_scc1 {lab}_small")
        a.I("s_mul_i32 s45, s2, 30720")
        self.srd(32, 12, 30720, off=45)
        a.I("s_sub_u32 s46, s44, 1")
        a.I("s_mul_i32 s46, s46, 15360")
        a.I("s_mov_b32 s63, 15")
        a.label(f"{lab}_l1")
        a.I(f"s_waitcnt vmcnt({self.cfg.PW - 1})")
        a.I(f"buffer_load_dwordx4 v[12:15], v8, s[32:35], s46 offen {pol}")
        a.I("s_add_u32 s46, s46, 1024")
        a.I("s_sub_u32 s63, s63, 1")
        a.I("s_cmp_lg_u32 s63, 0")
        a.I(f"s_cbranch_scc1 {lab}_l1")
        a.I(f"s_branch {lab}_done")
        a.label(f"{lab}_small")
        for i, p in enumerate((16, 18, 20)):
            a.I("s_mul_i32 s45, s2, 7680")
            self.srd(32, p, 7680, off=45)
            a.I("s_mov_b32 s46, 0")
            a.I("s_mov_b32 s63, 8")
            a.label(f"{lab}_s{i}")
            a.I(f"s_waitcnt vmcnt({self.cfg.PW - 1})")
            a.I(f"buffer_load_dwordx4 v[12:15], v8, s[32:35], s46 offen {pol}")
            a.I("s_add_u32 s46, s46, 1024")
            a.I("s_sub_u32 s63, s63, 1")
            a.I("s_cmp_lg_u32 s63, 0")
            a.I(f"s_cbranch_scc1 {lab}_s{i}")
        a.label(f"{lab}_done")
        a.fence(2)

    def v_weights(self):
        a = self.a
        WN = self.cfg.WW
        a.I(f"s_cmp_eq_u32 s{S_POST}, 1")
        a.I("s_cbranch_scc0 L_vw_gu")
        a.I(f"s_mul_i32 s45, s{S_KG}, {768*1280}")
        a.I(f"s_lshl_b32 s46, s{S_NB}, 7")
        a.I("s_add_u32 s47, s45, s46")
        self.srd(32, 12, 768 * 1280, off=47)
        self.dma_voff128(1280, 8, 9, 6, 7)
        a.I("s_sub_u32 s63, s44, 1")
        a.I(f"s_mul_i32 s46, s63, {256*1280}")
        a.I("s_lshl_b32 s47, s63, 15")
        a.I(f"s_add_u32 s47, s47, {L_W}")
        self.dma_loop(32, 32, 8, 9, 47, 46, 8 * 1280, "L_vw_wo_loop", window=WN + 1)
        a.I("s_branch L_vw_done")
        a.label("L_vw_gu")
        a.I(f"s_cmp_eq_u32 s{S_POST}, 2")
        a.I("s_cbranch_scc0 L_vw_done")
        a.I("s_cmp_eq_u32 s44, 3")
        a.I("s_cbranch_scc1 L_vw_dn")
        a.I(f"s_lshl_b32 s47, s{S_NB}, 6")
        a.I("s_cmp_eq_u32 s44, 2")
        a.I("s_cselect_b32 s48, s18, s16")
        a.I("s_cselect_b32 s49, s19, s17")
        self.srd(32, 48, 640 * 3072, off=47)
        self.dma_voff64(3072, 8, 6, 7)
        a.I("s_mov_b32 s46, 0")
        a.I("s_sub_u32 s47, s44, 1")
        a.I("s_mul_i32 s47, s47, 40960")
        a.I(f"s_add_u32 s47, s47, {L_W}")
        self.dma_loop(32, 40, 8, 8, 47, 46, 16 * 3072, "L_vw_gu_loop", window=WN)
        a.I("s_branch L_vw_done")
        a.label("L_vw_dn")
        a.I(f"s_mul_i32 s45, s{S_NB}, 40960")
        self.srd(32, 20, 40960, off=45)
        self.wdown_offsets()
        a.I("s_mov_b32 s46, 0")
        a.I(f"s_mov_b32 s47, {L_WD}")
        for q in range(8):
            for m in range(5):
                a.I("s_mov_b32 m0, s47")
                a.I("s_add_u32 s47, s47, 1024")
                a.I(f"buffer_load_dwordx4 v{(153 if (q >> 1) & 1 else 148) + m}, s[32:35], s46 offen {self.cfg.ntW} lds")
            if q < 7:
                a.I("s_add_u32 s46, s46, 5120")

    def wdown_offsets(self):
        a = self.a
        for m in range(5):
            a.I(f"v_lshlrev_b32 v6, 4, v5")
            a.I(f"v_add_u32 v6, {1024*m}, v6")
            a.I("v_mul_u32_u24 v7, 3277, v6")
            a.I("v_lshrrev_b32 v7, 22, v7")
            a.I("v_mul_u32_u24 v8, 1280, v7")
            a.I("v_sub_u32 v6, v6, v8")
            a.I("v_lshlrev_b32 v7, 5, v7")
            a.I("v_xor_b32 v9, v6, v7")
            a.I(f"v_add_u32 v{148+m}, v8, v9")
            a.I("v_xor_b32 v9, 128, v9")
            a.I(f"v_add_u32 v{153+m}, v8, v9")

    def roles_from_ticket(self, sfx=""):
        a = self.a
        a.I(f"v_mov_b32 v6, {L_FIN + 8}")
        a.I("ds_read_b32 v7, v6")
        a.I("s_waitcnt lgkmcnt(0)")
        a.I("v_readfirstlane_b32 s45, v7")
        if self.cfg.tkrot:
            r = self.cfg.tkrot
            a.I(f"s_add_u32 s46, s45, 48")
            a.I(f"s_sub_u32 s47, s45, {r}")
            a.I(f"s_cmp_lt_u32 s45, {r + 48}")
            a.I("s_cselect_b32 s47, s47, s45")
            a.I(f"s_cmp_lt_u32 s45, {r}")
            a.I("s_cselect_b32 s45, s46, s47")
        a.I("s_cmp_lt_u32 s45, 40")
        a.I(f"s_cselect_b32 s{S_DT}, s45, -1")
        a.I(f"s_mov_b32 s{S_NB}, s45")
        a.I("s_cmp_lt_u32 s45, 48")
        a.I(f"s_cselect_b32 s{S_POST}, 2, 0")
        a.I(f"s_cbranch_scc1 L_ticket_done{sfx}")
        a.I("s_sub_u32 s45, s45, 48")
        a.I("s_cmp_lt_u32 s45, 80")
        a.I(f"s_cselect_b32 s{S_POST}, 1, 0")
        a.I("s_mul_i32 s46, s45, 6554")
        a.I("s_lshr_b32 s46, s46, 16")
        a.I(f"s_mov_b32 s{S_KG}, s46")
        a.I("s_mul_i32 s47, s46, 10")
        a.I(f"s_sub_u32 s{S_NB}, s45, s47")
        a.label(f"L_ticket_done{sfx}")

    def code_prefetch(self, wave):
        a = self.a
        a.I(f"s_cmp_eq_u32 s44, {wave}")
        a.I("s_cbranch_scc0 L_nopf")
        a.I("s_getpc_b64 s[46:47]")
        a.label("L_pc")
        a.I(f"s_sub_u32 s46, s46, (L_pc-{self.name})")
        a.I("s_subb_u32 s47, s47, 0")
        a.I("s_lshr_b32 s45, s2, 3")
        a.I("s_lshl_b32 s45, s45, 10")
        a.I("v_lshlrev_b32 v6, 4, v5")
        a.I("v_add_u32 v6, s45, v6")
        a.I("v_mov_b32 v7, 0")
        a.I("v_mov_b32 v9, s47")
        a.I("v_add_co_u32 v8, vcc, s46, v6")
        a.I("v_addc_co_u32 v9, vcc, v9, v7, vcc")
        a.I(f"s_mov_b32 s45, (L_end-{self.name}-12)")
        a.I("v_cmp_gt_u32 vcc, s45, v6")
        a.I("s_and_saveexec_b64 s[46:47], vcc")
        a.I("s_cbranch_execz L_pfskip")
        a.I("global_load_dwordx4 v[12:15], v[8:9], off")
        a.label("L_pfskip")
        a.I("s_mov_b64 exec, s[46:47]")
        a.label("L_nopf")

    def pretouch(self):
        a = self.a
        a.I("s_cmp_eq_u32 s44, 10")
        a.I("s_cbranch_scc0 L_nopt")
        a.I("v_lshlrev_b32 v6, 21, v5")
        bufs = [(24, 640*7680), (10, 640*12288), (30, WS_SIZE), (28, 256), (4, 5120), (22, 5120),
                (12, 6144*1280), (16, 640*3072), (18, 640*3072), (20, 1536*1280), (26, 5120)]
        if self.cfg.pretouch >= 2:
            pass
        for i, (p, size) in enumerate(bufs):
            self.srd(32, p, size)
            a.I(f"buffer_load_dword v{12+i}, v6, s[32:35], 0 offen")
        a.label("L_nopt")

    def resets(self):
        a = self.a
        a.I("v_mov_b32 v8, -1")
        a.I("v_mov_b32 v9, -1")
        a.I("v_mov_b32 v10, -1")
        a.I("v_mov_b32 v11, -1")
        a.I("v_lshlrev_b32 v6, 4, v5")
        a.I("s_lshl_b32 s45, s57, 5")
        a.I("s_add_u32 s45, s45, s58")
        a.I("s_lshl_b32 s45, s45, 1")
        a.I("s_add_u32 s45, s45, s59")
        a.I("s_mul_i32 s45, s45, 768")
        a.I(f"s_add_u32 s45, s45, {WS_O}")
        a.I("s_mov_b32 exec_lo, -1"); a.I("s_mov_b32 exec_hi, 0xffff")
        a.I("buffer_store_dwordx4 v[8:11], v6, s[40:43], s45 offen sc1")
        a.I("s_lshl_b32 s45, s2, 7")
        a.I(f"s_add_u32 s45, s45, {WS_ML}")
        a.I("s_mov_b64 exec, 0x11")
        a.I("buffer_store_dwordx4 v[8:11], v6, s[40:43], s45 offen sc1")
        a.I("s_mov_b64 exec, -1")
        a.I("v_lshrrev_b32 v7, 4, v5")
        a.I("v_and_b32 v12, 15, v5")
        a.I("v_lshlrev_b32 v12, 4, v12")

        def rows(cmp, rowbytes, base, bandbytes, band_reg, nchunk, lab, extra=None):
            a.I(cmp)
            a.I(f"s_cbranch_scc0 {lab}")
            a.I(f"v_mul_u32_u24 v13, {rowbytes}, v7")
            a.I("v_add_u32 v13, v13, v12")
            a.I(f"s_mul_i32 s45, s{band_reg}, {bandbytes}")
            if extra:
                a.I(f"s_mul_i32 s46, s{extra}, {4*rowbytes}")
                a.I("s_add_u32 s45, s45, s46")
            a.I(f"s_add_u32 s45, s45, {base}")
            m = (1 << nchunk) - 1
            m32 = m | (m << 16)
            a.I(f"s_mov_b32 exec_lo, 0x{m32:x}")
            a.I(f"s_mov_b32 exec_hi, 0x{m32:x}")
            a.I("buffer_store_dwordx4 v[8:11], v13, s[40:43], s45 offen sc1")
            a.I("s_mov_b64 exec, -1")
            a.label(lab)
        rows(f"s_cmp_eq_u32 s{S_PRE}, 2", 24576, WS_Q, 256, S_BAND, 16, 'L_rs2', extra=S_KH)
        rows(f"s_cmp_eq_u32 s{S_PRE}, 1", 7680, WS_MOD, 128, S_BAND, 8, 'L_rs1')
        rows(f"s_cmp_eq_u32 s{S_POST}, 1", 2560, WS_Y, 256, S_NB, 16, 'L_rs3', extra=S_KG)
        a.I(f"s_cmp_eq_u32 s{S_POST}, 2")
        a.I("s_cbranch_scc0 L_rs4")
        a.I("v_mul_u32_u24 v13, 12288, v7")
        a.I("v_add_u32 v13, v13, v12")
        a.I(f"s_lshl_b32 s45, s{S_NB}, 8")
        a.I(f"s_add_u32 s45, s45, {WS_PD}")
        for k in range(10):
            a.I("buffer_store_dwordx4 v[8:11], v13, s[40:43], s45 offen sc1")
            if k < 9:
                a.I(f"s_add_u32 s45, s45, {4*12288}")
        a.label("L_rs4")

    def resets_arrive(self):
        a = self.a
        a.I("s_waitcnt vmcnt(0)")
        self.stamp(16)
        a.I("s_mov_b64 exec, 1")
        a.I("v_mov_b32 v8, 1")
        a.I("s_and_b32 s45, s2, 1")
        a.I("s_lshl_b32 s45, s45, 7")
        a.I("v_mov_b32 v9, s45")
        a.I("global_atomic_add v9, v8, s[28:29] sc1")
        a.I(f"s_cmp_eq_u32 s{S_PRE}, 1")
        a.I("s_cbranch_scc0 L_noc1")
        a.I(f"s_cmp_lt_u32 s{S_BAND}, 20")
        a.I("s_cbranch_scc0 L_noc1")
        a.I("v_mov_b32 v9, 132")
        a.I("global_atomic_add v9, v8, s[28:29] sc1")
        a.label("L_noc1")
        a.I("s_mov_b64 exec, -1")

    def master(self):
        a = self.a
        a.I("s_cmp_eq_u32 s44, 1")
        a.I("s_cbranch_scc0 L_notmaster")
        a.I("s_cmp_eq_u32 s2, 0")
        a.I("s_cbranch_scc0 L_notmaster")
        def go(val):
            a.I("s_mov_b64 exec, -1")
            a.I("v_lshlrev_b32 v8, 7, v5")
            a.I(f"v_mov_b32 v9, {val}")
            for k in range(4):
                a.I(f"s_mov_b32 s45, {WS_ML + 64 + 8192*k}")
                a.I("buffer_store_dword v9, v8, s[40:43], s45 offen sc1")
        a.I("v_lshlrev_b32 v7, 7, v5")
        a.I("v_mov_b32 v6, 132")
        a.I("v_cmp_eq_u32 vcc, 2, v5")
        a.I("v_cndmask_b32 v7, v7, v6, vcc")
        a.I("s_mov_b32 s62, 0")
        a.I("s_mov_b32 s63, 0")
        a.label("L_master")
        a.I("s_mov_b64 exec, 7")
        a.I("global_load_dword v6, v7, s[28:29] sc1")
        a.I("s_add_u32 s62, s62, 1")
        a.I("s_waitcnt vmcnt(0)")
        a.I("v_readlane_b32 s45, v6, 0")
        a.I("v_readlane_b32 s46, v6, 1")
        a.I("v_readlane_b32 s47, v6, 2")
        a.I("s_min_u32 s45, s45, s46")
        a.I("s_cmp_ge_u32 s45, 128")
        a.I("s_cbranch_scc1 L_master_ok")
        a.I("s_cmp_lt_u32 s47, 20")
        a.I("s_cbranch_scc1 L_master_next")
        a.I("s_cmp_eq_u32 s63, 0")
        a.I("s_cbranch_scc0 L_master_next")
        a.I("s_mov_b32 s63, 1")
        go(1)
        self.stamp(17)
        a.label("L_master_next")
        a.I(f"s_cmp_lt_u32 s62, {SPIN_MAX}")
        a.I("s_cbranch_scc1 L_master")
        a.label("L_master_ok")
        go(2)
        a.I("s_mov_b64 exec, -1")
        self.stamp(18)
        a.label("L_notmaster")

    def poll_go(self, label, vz, vt, level):
        a = self.a
        a.I("s_lshl_b32 s45, s2, 7")
        a.I(f"s_add_u32 s46, s45, {WS_ML + 64}")
        a.I(f"v_mov_b32 v{vz}, 0")
        a.I("s_mov_b32 s62, 0")
        a.I("s_mov_b64 exec, 1")
        a.label(label)
        a.I(f"buffer_load_dword v{vt}, v{vz}, s[40:43], s46 offen sc1")
        a.I("s_add_u32 s62, s62, 1")
        a.I("s_waitcnt vmcnt(0)")
        a.I(f"v_readfirstlane_b32 s{S_LATE}, v{vt}")
        a.I(f"s_sub_u32 s45, s{S_LATE}, {level}")
        a.I(f"s_cmp_le_u32 s45, {2-level}")
        a.I(f"s_cbranch_scc1 {label}_ok")
        a.I(f"s_cmp_lt_u32 s62, {SPIN_MAX}")
        a.I(f"s_cbranch_scc1 {label}")
        a.label(f"{label}_ok")
        a.I("s_mov_b64 exec, -1")

    def stream(self):
        a = self.a
        cfg = self.cfg
        a.label("L_stream")
        if self.cfg.hop2:
            a.raw("@@WARM2@@")
        a.I("s_cmp_eq_u32 s44, 11")
        a.I("s_cbranch_scc0 L_noprio")
        a.I("s_setprio 3")
        a.label("L_noprio")
        self.roles_rest()
        a.I("s_waitcnt lgkmcnt(0)")
        self.stamp(0)
        self.srd(40, 30, WS_SIZE)
        a.I("s_cmp_eq_u32 s44, 11")
        a.I("s_cbranch_scc0 L_noreset")
        self.resets()
        self.resets_arrive()
        a.I("s_setprio 0")
        a.label("L_noreset")
        a.fence(2)
        a.I("s_sub_u32 s44, s44, 4")
        a.I("s_lshl_b32 s45, s57, 5")
        a.I("s_add_u32 s45, s45, s58")
        a.I("s_mul_i32 s45, s45, 1572864")
        n0 = (128 + cfg.kx) * 6144
        a.I(f"s_mul_i32 s46, s59, {n0}")
        a.I("s_add_u32 s47, s45, s46")
        self.srd(32, 6, n0, off=47)
        self.srd(36, 8, n0, off=47)
        if cfg.kx:
            a.I("s_cmp_eq_u32 s59, 0")
            a.I(f"s_mov_b32 s45, {n0}")
            a.I(f"s_cselect_b32 s34, s45, {1572864 - n0}")
            a.I("s_mov_b32 s38, s34")
        a.I("s_branch L_stream_main")

    def stream_bulk(self):
        a = self.a
        cfg = self.cfg
        a.label("L_stream_main")
        a.fence(2)
        st.set_depth(cfg.D)

        def b0():
            a.I("s_barrier")
        S2 = dict(S); S2['b0_after'] = cfg.N1 - 1 if cfg.gate else -1
        S2['hook_before'] = {cfg.NB0: b0}
        issued = st.stream_prologue(a, cfg, S2)
        st.stream_main(a, cfg, S2, LDS, issued, self.stamp)
        a.I("s_add_u32 s44, s44, 4")
        a.I("s_branch L_post")

    def zero_flag(self):
        a = self.a
        a.I("s_lshl_b32 s45, s44, 2")
        a.I(f"s_add_u32 s45, s45, {L_HFLAG}")
        a.I("v_mov_b32 v6, s45")
        a.I("v_mov_b32 v7, 0")
        a.I("ds_write_b32 v6, v7")

    def u_layout(self, n, per):
        a = self.a
        magic = {80: 52429, 40: 104858}[per]
        a.I(f"s_mov_b32 s47, {magic}")
        for jj in range(n):
            a.I(f"v_add_u32 v6, {64*jj}, v5")
            a.I("v_mul_u32_u24 v7, s47, v6")
            a.I(f"v_lshrrev_b32 v{20+jj}, 22, v7")
            a.I(f"v_mul_u32_u24 v7, {per}, v{20+jj}")
            a.I("v_sub_u32 v6, v6, v7")
            a.I(f"v_lshlrev_b32 v{25+jj}, 2, v6")

    def helper_front(self):
        a = self.a
        a.label("L_helper")
        a.I("s_setprio 2")
        a.I("v_lshrrev_b32 v17, 4, v5")
        a.I("v_and_b32 v18, 15, v5")
        a.I(f"s_cmp_eq_u32 s{S_PRE}, 1")
        a.I("s_cbranch_scc0 L_hq0")
        self.dma_voff128(7680, 8, 9, 6, 7)
        a.I(f"s_mul_i32 s46, s44, {160*7680}")
        a.I(f"s_lshl_b32 s85, s{S_BAND}, 7")
        a.I("s_mul_i32 s47, s44, 20480")
        a.I(f"s_add_u32 s47, s47, {L_W}")
        a.I("v_mul_u32_u24 v16, 1280, v17")
        a.I("v_mad_u32_u24 v16, v18, 20, v16")
        a.I("s_mul_i32 s63, s44, 320")
        a.I("s_waitcnt lgkmcnt(0)")
        self.stamp(0)
        self.srd(36, 22, 5120)
        self.srd(32, 24, 640 * 7680, off=85)
        a.I("buffer_load_dwordx4 v[30:33], v16, s[36:39], s63 offen")
        a.I("buffer_load_dword v34, v16, s[36:39], s63 offen offset:16")
        self.dma_loop(32, 20, 8, 9, 47, 46, 8 * 7680, "L_mod_dma", cnt=85)
        self.stamp(3)
        a.I("s_branch L_modrest")
        a.label("L_hq0")
        a.I(f"s_cmp_eq_u32 s{S_PRE}, 2")
        a.I("s_cbranch_scc0 L_hnone")
        self.dma_voff128(12288, 8, 9, 6, 7)
        a.I(f"s_mul_i32 s46, s44, {80*12288}")
        a.I(f"s_mul_i32 s47, s{S_KH}, {320*12288}")
        a.I(f"s_lshl_b32 s45, s{S_BAND}, 7")
        a.I("s_add_u32 s85, s47, s45")
        a.I("s_mul_i32 s47, s44, 10240")
        a.I(f"s_add_u32 s47, s47, {L_W}")
        a.I("v_min_u32 v18, 9, v18")
        a.I("v_mul_u32_u24 v16, 1280, v17")
        a.I("v_lshl_add_u32 v16, v18, 4, v16")
        a.I(f"s_mul_i32 s63, s{S_KH}, 640")
        a.I("s_mul_i32 s45, s44, 160")
        a.I("s_add_u32 s63, s63, s45")
        a.I("v_lshlrev_b32 v19, 2, v5")
        a.I("s_mul_i32 s48, s44, 1280")
        a.I("s_waitcnt lgkmcnt(0)")
        self.stamp(0)
        self.srd(36, 4, 5120)
        self.srd(32, 10, 320 * 12288, off=85)
        for jj in range(5):
            a.I(f"buffer_load_dword v{35+jj}, v19, s[36:39], s48 offen offset:{256*jj}")
        a.I("buffer_load_dwordx4 v[28:31], v16, s[36:39], s63 offen")
        self.dma_loop(32, 10, 8, 9, 47, 46, 8 * 12288, "L_q_dma", cnt=85)
        self.stamp(3)
        a.I("s_branch L_qrest")

    def helper(self):
        a = self.a
        if self.cfg.hop2:
            a.hops_begin("L_hopP", self.cfg.hop2, seg=self.cfg.hop2seg, ret="L_warm2_ret")
        a.label("L_hnone")
        self.zero_flag()
        a.I("s_waitcnt lgkmcnt(0)")
        self.stamp(0)
        self.srd(40, 30, WS_SIZE)
        a.I("s_barrier")
        self.master()
        a.I("s_branch L_h_go")
        a.label("L_modrest")
        a.fence(2)
        self.zero_flag()
        self.srd(40, 30, WS_SIZE)
        a.I(f"s_mov_b32 s54, 0x{LOG2E:x}")
        a.I("s_mul_i32 s47, s44, 320")
        a.I(f"s_add_u32 s47, s47, {L_ACT}")
        a.I("v_mul_u32_u24 v40, 1344, v17")
        a.I("v_mad_u32_u24 v40, v18, 20, v40")
        a.I("v_add_u32 v40, s47, v40")
        a.I("s_waitcnt vmcnt(20)")
        for jj in range(5):
            lo, hi = 46, 47
            self.unpack(30 + jj, lo, hi)
            for r in (lo, hi):
                a.I(f"v_mul_f32 v48, s54, v{r}")
                a.I("v_exp_f32 v48, -v48")
                a.I("v_add_f32 v48, 1.0, v48")
                a.I("v_min_f32 v48, 0x7f7fffff, v48")
                a.I("v_rcp_f32 v49, v48")
                self.div_by(r, 48, 49, 50)
            a.I(f"v_cvt_pk_bf16_f32 v46, v46, v47")
            a.I(f"ds_write_b32 v40, v46 offset:{4*jj}")
        self.tr_addr128(10, 6, 7)
        a.I("s_lshl_b32 s45, s44, 5")
        a.I("v_xor_b32 v10, s45, v10")
        a.I(f"v_add_u32 v10, {L_W}, v10")
        a.I(f"v_add_u32 v11, {10*4096}, v10")
        self.act_addr(14, 1344, 6)
        a.I("s_waitcnt vmcnt(0) lgkmcnt(0)")
        self.stamp(7)
        a.I("s_barrier")
        self.mfma_chain2(10, 10, 11, 4096, 512, 14, 64, 68)
        for k in range(4):
            a.I(f"v_add_f32 v{64+k}, v{64+k}, v{68+k}")
        a.I("v_cvt_pk_bf16_f32 v64, v64, v65")
        a.I("v_cvt_pk_bf16_f32 v65, v66, v67")
        self.canon([64, 65], 44)
        a.I("v_and_b32 v6, 3, v5")
        a.I("v_mul_u32_u24 v6, 7680, v6")
        a.I("v_lshrrev_b32 v7, 4, v5")
        a.I("v_lshl_add_u32 v6, v7, 3, v6")
        a.I(f"s_lshl_b32 s45, s{S_BAND}, 7")
        a.I("s_lshl_b32 s47, s44, 5")
        a.I("s_add_u32 s47, s47, s45")
        a.I(f"s_mov_b32 exec_lo, 0x{MASK_N4_LO:x}")
        a.I(f"s_mov_b32 exec_hi, 0x{MASK_N4_LO:x}")
        a.I("buffer_store_dwordx2 v[64:65], v6, s[40:43], s47 offen sc1")
        a.I("s_mov_b64 exec, -1")
        self.stamp(12)
        a.label("L_h_go")
        a.fence(2)
        a.I("s_cmp_lg_u32 s44, 0")
        a.I("s_cbranch_scc1 L_go_skip")
        self.poll_go("L_go1", 6, 7, 1 if self.cfg.gate == 2 else 2)
        a.label("L_go_skip")
        if self.cfg.gate:
            a.I("s_barrier")
        a.I("s_branch L_h_q")
        a.label("L_qrest")
        a.fence(2)
        self.zero_flag()
        self.srd(40, 30, WS_SIZE)
        a.I("s_waitcnt vmcnt(11)")
        for jj in range(5):
            self.unpack(35 + jj, 40 + 2 * jj, 41 + 2 * jj)
        a.I("v_add_f32 v6, v40, v41")
        for k in range(42, 50):
            a.I(f"v_add_f32 v6, v6, v{k}")
        self.wave_sum_bcast(6, 46)
        a.I("v_mov_b32 v6, 0x3acccccd")
        a.I("v_mul_f32 v50, s46, v6")
        a.I("v_mov_b32 v7, 0")
        for k in range(40, 50):
            a.I(f"v_sub_f32 v51, v{k}, v50")
            a.I("v_fmac_f32 v7, v51, v51")
        self.wave_sum_bcast(7, 46)
        a.I("v_mul_f32 v52, s46, v6")
        self.ln_denom(52, 53)
        a.I("v_cvt_pk_bf16_f32 v50, v50, v50")
        a.I("v_lshlrev_b32 v50, 16, v50")
        a.I("s_lshl_b32 s45, s44, 3")
        a.I(f"s_add_u32 s45, s45, {L_LNST}")
        a.I("v_mov_b32 v6, s45")
        a.I("ds_write_b32 v6, v50")
        a.I("ds_write_b32 v6, v52 offset:4")
        a.I("s_waitcnt vmcnt(0) lgkmcnt(0)")
        self.stamp(7)
        a.I("s_barrier")
        a.I("v_lshlrev_b32 v6, 3, v17")
        a.I(f"ds_read_b64 v[56:57], v6 offset:{L_LNST}")
        xr = list(range(60, 68))
        for k in range(4):
            self.unpack(28 + k, 60 + 2 * k, 61 + 2 * k)
        a.I("v_mul_u32_u24 v40, 7680, v17")
        a.I("v_lshl_add_u32 v40, v18, 4, v40")
        a.I("s_mul_i32 s47, s44, 160")
        a.I(f"s_add_u32 s47, s47, {L_ACT}")
        a.I("v_mul_u32_u24 v41, 704, v17")
        a.I("v_lshl_add_u32 v41, v18, 4, v41")
        a.I("v_add_u32 v41, s47, v41")
        a.I("s_waitcnt lgkmcnt(0)")
        for r in xr:
            a.I(f"v_sub_f32 v{r}, v{r}, v56")
        self.bf16_round(xr, 58)
        a.I("v_rcp_f32 v58, v57")
        for r in xr:
            self.div_by(r, 57, 58, 59)
        self.bf16_round(xr, 58)
        self.tr_addr128(10, 6, 7)
        a.I("s_lshl_b32 s45, s44, 5")
        a.I("v_xor_b32 v10, s45, v10")
        a.I(f"v_add_u32 v10, {L_W}, v10")
        self.act_addr(14, 704, 6)
        a.I("v_and_b32 v6, 15, v5")
        a.I("v_cmp_gt_u32 s[50:51], 10, v6")
        self.stamp(16)
        self.poll_go("L_go2", 6, 7, 1)
        if self.cfg.gate == 2:
            a.I("s_barrier")
        self.stamp(18)
        a.I(f"s_add_u32 s46, s63, {WS_MOD}")
        a.I(f"s_add_u32 s47, s63, {WS_MOD + 1280}")
        loads = ["buffer_load_dwordx4 v[28:31], v40, s[40:43], s46 offen sc1",
                 "buffer_load_dwordx4 v[32:35], v40, s[40:43], s47 offen sc1"]
        self.poll(loads, list(range(28, 36)), "L_pmod", pre=6)
        self.stamp(14)
        ca = list(range(44, 52))
        for k in range(4):
            self.unpack(32 + k, 44 + 2 * k, 45 + 2 * k)
        for r in ca:
            a.I(f"v_add_f32 v{r}, 1.0, v{r}")
        self.bf16_round(ca, 6)
        for k in range(8):
            a.I(f"v_mul_f32 v{60+k}, v{60+k}, v{44+k}")
        self.bf16_round(xr, 6)
        for k in range(4):
            self.unpack(28 + k, 44 + 2 * k, 45 + 2 * k)
        for k in range(8):
            a.I(f"v_add_f32 v{60+k}, v{60+k}, v{44+k}")
        for k in range(4):
            a.I(f"v_cvt_pk_bf16_f32 v{44+k}, v{60+2*k}, v{61+2*k}")
        a.I("s_mov_b64 exec, s[50:51]")
        a.I("ds_write_b128 v41, v[44:47]")
        a.I("s_mov_b64 exec, -1")
        if self.cfg.gate == 1:
            a.I("s_waitcnt lgkmcnt(0)")
            a.I("s_barrier")
        else:
            self.hsync(2, "L_hs2", 6, 16)
        self.stamp(17)
        self.mfma_chain(10, 10, 4096, 512, 14, 64)
        self.canon([64, 65, 66, 67], 44)
        a.I("v_and_b32 v6, 3, v5")
        a.I("v_mul_u32_u24 v6, 24576, v6")
        a.I("v_lshrrev_b32 v7, 4, v5")
        a.I("v_lshl_add_u32 v6, v7, 4, v6")
        a.I(f"s_mul_i32 s45, s{S_KH}, {4*24576}")
        a.I(f"s_lshl_b32 s47, s{S_BAND}, 8")
        a.I("s_add_u32 s47, s47, s45")
        a.I("s_lshl_b32 s45, s44, 6")
        a.I("s_add_u32 s47, s47, s45")
        a.I(f"s_add_u32 s47, s47, {WS_Q}")
        a.I(f"s_mov_b32 exec_lo, 0x{MASK_N4_LO:x}")
        a.I(f"s_mov_b32 exec_hi, 0x{MASK_N4_LO:x}")
        a.I("buffer_store_dwordx4 v[64:67], v6, s[40:43], s47 offen sc1")
        a.I("s_mov_b64 exec, -1")
        self.stamp(12)
        a.label("L_h_q")
        a.fence(2)
        self.roles_rest()
        self.srd(40, 30, WS_SIZE)
        a.I("s_cmp_lg_u32 s44, 0")
        a.I("s_cbranch_scc1 L_hb1")
        a.I(f"s_cmp_eq_u32 s{S_LATE}, 2")
        a.I("s_cbranch_scc1 L_go3_skip")
        self.poll_go("L_go3", 6, 7, 2)
        a.label("L_go3_skip")
        self.stamp(19)
        a.I("v_and_b32 v6, 31, v5")
        a.I("v_mul_u32_u24 v11, 12, v6")
        a.I("v_lshlrev_b32 v6, 1, v11")
        a.I("s_mul_i32 s45, s57, 24576")
        a.I("s_mul_i32 s46, s58, 768")
        a.I("s_add_u32 s46, s45, s46")
        a.I(f"s_add_u32 s46, s46, {WS_Q}")
        a.I(f"s_add_u32 s47, s46, {4*24576}")
        self.poll(["buffer_load_dwordx3 v[12:14], v6, s[40:43], s46 offen sc1",
                   "buffer_load_dwordx3 v[16:18], v6, s[40:43], s46 offen offset:12 sc1",
                   "buffer_load_dwordx3 v[20:22], v6, s[40:43], s47 offen sc1",
                   "buffer_load_dwordx3 v[24:26], v6, s[40:43], s47 offen offset:12 sc1"],
                  [12, 13, 14, 16, 17, 18, 20, 21, 22, 24, 25, 26], "L_pq", pre=7)
        for k in range(3):
            a.I(f"v_add_f32 v{12+k}, v{12+k}, v{20+k}")
            a.I(f"v_add_f32 v{16+k}, v{16+k}, v{24+k}")
        a.I("v_cvt_pk_bf16_f32 v8, v12, v13")
        a.I("v_cvt_pk_bf16_f32 v9, v14, v16")
        a.I("v_cvt_pk_bf16_f32 v10, v17, v18")
        a.I(f"ds_write_b32 v11, v8 offset:{L_QV}")
        a.I(f"ds_write_b32 v11, v9 offset:{L_QV+4}")
        a.I(f"ds_write_b32 v11, v10 offset:{L_QV+8}")
        a.I("s_waitcnt lgkmcnt(0)")
        a.label("L_hb1")
        self.stamp(1)
        a.I("s_barrier")
        self.stamp(2)
        if self.cfg.hop2:
            self.nseg = a.hops_end("L_warm2_ret")
        if self.cfg.hop:
            a.I("s_cmp_eq_u32 s44, 0")
            a.I("s_cbranch_scc1 L_late_done")
            a.I("s_mov_b64 exec, 0")
            a.I("s_cmp_eq_u32 s44, 1")
            a.I("s_cbranch_scc1 L_hopA_0")
            a.I("s_cmp_eq_u32 s44, 2")
            a.I("s_cbranch_scc1 L_hopB_0")
            a.I("s_branch L_hopC_0")
            a.label("L_warm_ret")
            a.I("s_mov_b64 exec, -1")
            self.stamp(22)
        if self.cfg.pf == 2:
            a.label("L_late_pf")
            self.prefetch_weights()
        a.label("L_late_done")
        a.fence(2)
        a.I("s_barrier")
        self.stamp(4)
        a.I("s_cmp_lg_u32 s44, 0")
        a.I("s_cbranch_scc1 L_hb3")
        self.ml_exchange()
        a.label("L_hb3")
        self.stamp(5)
        a.I("s_barrier")
        self.stamp(6)
        if self.cfg.early_w != 1:
            a.I("s_cmp_lg_u32 s44, 0")
            a.I("s_cbranch_scc1 L_tk_done")
            a.I(f"v_mov_b32 v6, {L_FIN}")
            a.I("s_mov_b32 s62, 0")
            a.label("L_tk_wait")
            a.I("ds_read_b32 v7, v6 offset:12")
            a.I("s_add_u32 s62, s62, 1")
            a.I("s_waitcnt lgkmcnt(0)")
            a.I("v_readfirstlane_b32 s45, v7")
            a.I("s_cmp_eq_u32 s45, 1")
            a.I("s_cbranch_scc1 L_tk_go")
            a.I(f"s_cmp_lt_u32 s62, {SPIN_MAX*16}")
            a.I("s_cbranch_scc1 L_tk_wait")
            a.label("L_tk_go")
            a.I("s_mov_b64 exec, 1")
            a.I("v_mov_b32 v7, 8")
            a.I("v_mov_b32 v8, 1")
            a.I("global_atomic_add v9, v7, v8, s[28:29] sc0 sc1")
            a.I("s_waitcnt vmcnt(0)")
            a.I("ds_write_b32 v6, v9 offset:8")
            a.I("s_waitcnt lgkmcnt(0)")
            a.I("s_mov_b64 exec, -1")
            a.label("L_tk_done")
            a.fence(2)
        if self.cfg.pf == 1:
            self.prefetch_weights()
        if self.cfg.early_w:
            a.I("s_cmp_eq_u32 s44, 0")
            a.I("s_cbranch_scc1 L_vw_done")
            if self.cfg.early_w == 2:
                a.I("s_setprio 0")
                a.I(f"v_mov_b32 v6, {L_FIN}")
                a.I("s_mov_b32 s62, 0")
                a.label("L_tkw")
                a.I("ds_read_b32 v7, v6 offset:8")
                a.I("ds_read_b32 v8, v6 offset:16")
                a.I("s_add_u32 s62, s62, 1")
                a.I("s_waitcnt lgkmcnt(0)")
                a.I("v_readfirstlane_b32 s45, v7")
                a.I("v_readfirstlane_b32 s46, v8")
                a.I("s_cmp_eq_u32 s45, -1")
                a.I("s_cselect_b32 s46, 0, s46")
                a.I("s_cmp_eq_u32 s46, 1")
                a.I("s_cbranch_scc1 L_tkw_ok")
                a.I(f"s_cmp_lt_u32 s62, {SPIN_MAX*16}")
                a.I("s_cbranch_scc1 L_tkw")
                a.label("L_tkw_ok")
            self.roles_from_ticket("v")
            self.v_weights()
            a.label("L_vw_done")
            a.fence(2)
        a.I("s_barrier")
        self.stamp(8)

    def dma_loop(self, srd, n, vE, vO, lds_reg, soff_reg, step, label, cnt=63, window=0, pol=None):
        a = self.a
        a.I(f"s_mov_b32 s{cnt}, {n // 2}")
        a.label(label)
        for v in (vE, vO):
            if window:
                a.I(f"s_waitcnt vmcnt({window - 1})")
            a.I(f"s_mov_b32 m0, s{lds_reg}")
            a.I(f"s_add_u32 s{lds_reg}, s{lds_reg}, 1024")
            a.I(f"buffer_load_dwordx4 v{v}, s[{srd}:{srd+3}], s{soff_reg} offen {self.cfg.ntW if pol is None else pol} lds")
            a.I(f"s_add_u32 s{soff_reg}, s{soff_reg}, {step}")
        a.I(f"s_sub_u32 s{cnt}, s{cnt}, 1")
        a.I(f"s_cmp_lg_u32 s{cnt}, 0")
        a.I(f"s_cbranch_scc1 {label}")

    def mfma_chain2(self, nks, vA0, vA1, stepA, half_off, vB, d0, d1):
        a = self.a
        DEPTH = 2

        def issue(ks):
            b = 80 + 16 * (ks % DEPTH)
            a.I(f"ds_read_b64_tr_b16 v[{b}:{b+1}], v{vA0} offset:{stepA*ks}")
            a.I(f"ds_read_b64_tr_b16 v[{b+2}:{b+3}], v{vA0} offset:{stepA*ks + half_off}")
            a.I(f"ds_read_b128 v[{b+4}:{b+7}], v{vB} offset:{64*ks}")
            a.I(f"ds_read_b64_tr_b16 v[{b+8}:{b+9}], v{vA1} offset:{stepA*ks}")
            a.I(f"ds_read_b64_tr_b16 v[{b+10}:{b+11}], v{vA1} offset:{stepA*ks + half_off}")
            a.I(f"ds_read_b128 v[{b+12}:{b+15}], v{vB} offset:{64*(nks+ks)}")
        for ks in range(DEPTH):
            issue(ks)
        for ks in range(nks):
            left = min(nks - 1 - ks, DEPTH - 1)
            a.I(f"s_waitcnt lgkmcnt({6*left})")
            b = 80 + 16 * (ks % DEPTH)
            c0 = "0" if ks == 0 else f"v[{d0}:{d0+3}]"
            c1 = "0" if ks == 0 else f"v[{d1}:{d1+3}]"
            a.I(f"v_mfma_f32_16x16x32_bf16 v[{d0}:{d0+3}], v[{b}:{b+3}], v[{b+4}:{b+7}], {c0}")
            a.I(f"v_mfma_f32_16x16x32_bf16 v[{d1}:{d1+3}], v[{b+8}:{b+11}], v[{b+12}:{b+15}], {c1}")
            if ks + DEPTH < nks:
                issue(ks + DEPTH)

    def mfma_chain(self, nks, vA, stepA, half_off, vB, dreg):
        a = self.a
        DEPTH = 4

        def issue(ks):
            b = 80 + 8 * (ks % DEPTH)
            a.I(f"ds_read_b64_tr_b16 v[{b}:{b+1}], v{vA} offset:{stepA*ks}")
            a.I(f"ds_read_b64_tr_b16 v[{b+2}:{b+3}], v{vA} offset:{stepA*ks + half_off}")
            a.I(f"ds_read_b128 v[{b+4}:{b+7}], v{vB} offset:{64*ks}")
        for ks in range(min(DEPTH, nks)):
            issue(ks)
        for ks in range(nks):
            left = min(nks - 1 - ks, DEPTH - 1)
            a.I(f"s_waitcnt lgkmcnt({3*left})")
            b = 80 + 8 * (ks % DEPTH)
            c = "0" if ks == 0 else f"v[{dreg}:{dreg+3}]"
            a.I(f"v_mfma_f32_16x16x32_bf16 v[{dreg}:{dreg+3}], v[{b}:{b+3}], v[{b+4}:{b+7}], {c}")
            if ks + DEPTH < nks:
                issue(ks + DEPTH)

    def dma_band128(self, srd, rowstride, ninstr, vE, vO, lds_base_sreg, soff_reg, tag):
        a = self.a
        for i in range(ninstr):
            a.I(f"s_mov_b32 m0, s{lds_base_sreg}")
            v = vO if i & 1 else vE
            a.I(f"s_add_u32 s{lds_base_sreg}, s{lds_base_sreg}, 1024")
            a.I(f"buffer_load_dwordx4 v{v}, s[{srd}:{srd+3}], s{soff_reg} offen {self.cfg.ntW} lds")
            if i + 1 < ninstr:
                a.I(f"s_add_u32 s{soff_reg}, s{soff_reg}, {8*rowstride}")

    def dma_voff128(self, rowstride, vE, vO, t0, t1):
        a = self.a
        a.I(f"v_lshrrev_b32 v{t0}, 3, v5")
        a.I(f"v_bfe_u32 v{t1}, v5, 4, 1")
        a.I(f"v_lshlrev_b32 v{t1}, 5, v{t1}")
        a.I(f"v_and_b32 v{vE}, 7, v5")
        a.I(f"v_lshlrev_b32 v{vE}, 4, v{vE}")
        a.I(f"v_xor_b32 v{vE}, v{vE}, v{t1}")
        a.I(f"v_xor_b32 v{vO}, 64, v{vE}")
        a.I(f"s_mov_b32 s45, {rowstride}")
        a.I(f"v_mul_lo_u32 v{t0}, s45, v{t0}")
        a.I(f"v_add_u32 v{vE}, v{vE}, v{t0}")
        a.I(f"v_add_u32 v{vO}, v{vO}, v{t0}")

    def tr_addr128(self, vdst, t0, t1):
        a = self.a
        a.I(f"v_lshrrev_b32 v{t0}, 4, v5")
        a.I(f"v_bfe_u32 v{t1}, v5, 2, 2")
        a.I(f"v_lshl_add_u32 v{vdst}, v{t0}, 3, v{t1}")
        a.I(f"v_lshlrev_b32 v{vdst}, 7, v{vdst}")
        a.I(f"v_and_b32 v{t0}, 1, v{t0}")
        a.I(f"v_lshlrev_b32 v{t0}, 6, v{t0}")
        a.I(f"v_bfe_u32 v{t1}, v5, 3, 1")
        a.I(f"v_lshlrev_b32 v{t1}, 5, v{t1}")
        a.I(f"v_or3_b32 v{vdst}, v{vdst}, v{t0}, v{t1}")
        a.I(f"v_and_b32 v{t0}, 3, v5")
        a.I(f"v_lshl_add_u32 v{vdst}, v{t0}, 3, v{vdst}")

    def act_addr(self, vdst, stride, t0):
        a = self.a
        a.I(f"v_and_b32 v{t0}, 3, v5")
        a.I(f"v_mul_u32_u24 v{vdst}, {stride}, v{t0}")
        a.I(f"v_lshrrev_b32 v{t0}, 4, v5")
        a.I(f"v_lshl_add_u32 v{vdst}, v{t0}, 4, v{vdst}")

    def ml_exchange(self):
        a = self.a
        a.I("v_and_b32 v6, 7, v5")
        a.I("v_lshlrev_b32 v6, 3, v6")
        a.I(f"ds_read_b64 v[8:9], v6 offset:{L_STATS}")
        a.I(f"s_mov_b32 s54, 0x{LOG2E:x}")
        a.I("s_waitcnt lgkmcnt(0)")
        a.I("v_mov_b32 v10, v8")
        a.I("v_max_f32_dpp v10, v10, v10 quad_perm:[1,0,3,2] row_mask:0xf bank_mask:0xf")
        a.I("v_max_f32_dpp v10, v10, v10 quad_perm:[2,3,0,1] row_mask:0xf bank_mask:0xf")
        a.I("v_max_f32_dpp v10, v10, v10 row_half_mirror row_mask:0xf bank_mask:0xf")
        a.I("v_sub_f32 v11, v8, v10")
        a.I("v_mul_f32 v11, s54, v11")
        a.I("v_exp_f32 v11, v11")
        a.I("v_mul_f32 v11, v11, v9")
        a.I("v_add_f32_dpp v11, v11, v11 quad_perm:[1,0,3,2] row_mask:0xf bank_mask:0xf")
        a.I("v_add_f32_dpp v11, v11, v11 quad_perm:[2,3,0,1] row_mask:0xf bank_mask:0xf")
        a.I("v_add_f32_dpp v11, v11, v11 row_half_mirror row_mask:0xf bank_mask:0xf")
        self.canon([10, 11], 12)
        a.I("s_lshl_b32 s45, s2, 7")
        a.I(f"s_add_u32 s45, s45, {WS_ML}")
        a.I("v_mov_b32 v6, 0")
        a.I("s_mov_b64 exec, 1")
        a.I("buffer_store_dwordx2 v[10:11], v6, s[40:43], s45 offen sc1")
        if self.cfg.early_w == 1:
            a.I("v_mov_b32 v7, 8")
            a.I("v_mov_b32 v18, 1")
            a.I("global_atomic_add v19, v7, v18, s[28:29] sc0 sc1")
        a.I("s_mov_b64 exec, -1")
        a.I(f"s_xor_b32 s46, s2, {self.cfg.xp or 32}")
        a.I("s_lshl_b32 s46, s46, 7")
        a.I(f"s_add_u32 s46, s46, {WS_ML}")
        self.poll(["buffer_load_dwordx2 v[12:13], v6, s[40:43], s46 offen sc1"], [12, 13], "L_pml", pre=7)
        a.I("v_max_f32 v14, v10, v12")
        a.I("v_sub_f32 v15, v10, v14")
        a.I("v_sub_f32 v16, v12, v14")
        a.I("v_mul_f32 v15, s54, v15")
        a.I("v_mul_f32 v16, s54, v16")
        a.I("v_exp_f32 v15, v15")
        a.I("v_exp_f32 v16, v16")
        a.I("v_mul_f32 v15, v15, v11")
        a.I("v_mul_f32 v16, v16, v13")
        a.I("v_add_f32 v15, v15, v16")
        a.I("v_rcp_f32 v16, v15")
        a.I("v_fma_f32 v17, -v15, v16, 1.0")
        a.I("v_fma_f32 v16, v17, v16, v16")
        a.I(f"v_mov_b32 v6, {L_FIN}")
        a.I("ds_write_b32 v6, v14")
        a.I("ds_write_b32 v6, v16 offset:4")
        if self.cfg.early_w != 1:
            a.I("v_mov_b32 v17, 0")
            a.I("ds_write_b32 v6, v17 offset:12")
            a.I("ds_write_b32 v6, v17 offset:16")
            a.I("v_mov_b32 v17, -1")
            a.I("ds_write_b32 v6, v17 offset:8")
        if self.cfg.early_w == 1:
            a.I("s_mov_b64 exec, 1")
            a.I("ds_write_b32 v6, v19 offset:8")
            a.I("s_mov_b64 exec, -1")
        a.I("s_waitcnt lgkmcnt(0)")

    def post(self):
        a = self.a
        a.label("L_post")
        a.hops_begin("L_hopA", self.cfg.hop)
        a.fence(4)
        a.I("s_setprio 0")
        a.I("v_and_b32 v5, 63, v0")
        a.I("s_cmp_lg_u32 s44, 0")
        a.I("s_cbranch_scc1 L_o_done")
        a.I("v_lshlrev_b32 v6, 4, v5")
        a.I("s_mov_b32 exec_lo, -1"); a.I("s_mov_b32 exec_hi, 0xffff")
        for w in range(8):
            a.I(f"ds_read_b128 v[{8+4*w}:{11+4*w}], v6 offset:{L_OPART+768*w}")
        for w in range(1, 8):
            a.I(f"s_waitcnt lgkmcnt({7-w})")
            for k in range(4):
                a.I(f"v_add_f32 v{8+k}, v{8+k}, v{8+4*w+k}")
        self.canon([8, 9, 10, 11], 12)
        a.I("s_lshl_b32 s45, s57, 5")
        a.I("s_add_u32 s45, s45, s58")
        a.I("s_lshl_b32 s45, s45, 1")
        a.I("s_add_u32 s45, s45, s59")
        a.I("s_mul_i32 s45, s45, 768")
        a.I(f"s_add_u32 s45, s45, {WS_O}")
        a.I("buffer_store_dwordx4 v[8:11], v6, s[40:43], s45 offen sc1")
        a.I("s_mov_b64 exec, -1")
        a.label("L_o_done")
        a.fence(2)
        self.roles_from_ticket()
        a.I(f"s_cmp_eq_u32 s{S_POST}, 0")
        a.I("s_cbranch_scc1 L_tail")
        if self.cfg.obar:
            a.I("s_barrier")
        a.I(f"s_cmp_eq_u32 s{S_POST}, 1")
        a.I("s_cbranch_scc0 L_post23")
        self.post_wo()
        a.I("s_branch L_tail")
        a.hops_end("L_warm_ret")
        a.label("L_post23")
        a.hops_begin("L_hopB", self.cfg.hop)
        a.fence(2)
        self.post_gu()
        a.I(f"s_cmp_lt_u32 s{S_DT}, 40")
        a.I("s_cbranch_scc0 L_tail")
        a.hops_end("L_warm_ret")
        a.hops_begin("L_hopC", self.cfg.hop)
        self.post_final()
        a.hops_end("L_warm_ret")

    def red_lane_addr(self, vdst, t):
        a = self.a
        a.I(f"v_lshrrev_b32 v{vdst}, 4, v5")
        a.I(f"v_and_b32 v{t}, 3, v5")
        a.I(f"v_lshl_add_u32 v{vdst}, v{vdst}, 2, v{t}")
        a.I(f"v_lshlrev_b32 v{vdst}, 4, v{vdst}")

    def write_red(self, dreg, vaddr):
        a = self.a
        a.I("s_lshl_b32 s45, s44, 8")
        a.I(f"s_add_u32 s45, s45, {L_RED}")
        a.I(f"v_add_u32 v{vaddr}, s45, v{vaddr}")
        a.I(f"s_mov_b32 exec_lo, 0x{MASK_N4_LO:x}")
        a.I(f"s_mov_b32 exec_hi, 0x{MASK_N4_LO:x}")
        a.I(f"ds_write_b128 v{vaddr}, v[{dreg}:{dreg+3}]")
        a.I("s_mov_b64 exec, -1")
        a.I("s_waitcnt lgkmcnt(0)")
        a.I("s_barrier")

    def mfma_run(self, nks, vA, offA, stepA, half_off, vB, dreg, first_reg=40):
        a = self.a
        for ks in range(nks):
            b = first_reg + 8 * ks
            a.I(f"ds_read_b64_tr_b16 v[{b}:{b+1}], v{vA} offset:{offA + stepA*ks}")
            a.I(f"ds_read_b64_tr_b16 v[{b+2}:{b+3}], v{vA} offset:{offA + stepA*ks + half_off}")
            a.I(f"ds_read_b128 v[{b+4}:{b+7}], v{vB} offset:{64*ks}")
        for ks in range(nks):
            b = first_reg + 8 * ks
            a.I(f"s_waitcnt lgkmcnt({min(15, 3*(nks-1-ks))})")
            c = "0" if ks == 0 else f"v[{dreg}:{dreg+3}]"
            a.I(f"v_mfma_f32_16x16x32_bf16 v[{dreg}:{dreg+3}], v[{b}:{b+3}], v[{b+4}:{b+7}], {c}")

    def mfma_preread(self, n, vA, stepA, half_off, first):
        a = self.a
        for ks in range(n):
            b = first + 4 * ks
            a.I(f"ds_read_b64_tr_b16 v[{b}:{b+1}], v{vA} offset:{stepA*ks}")
            a.I(f"ds_read_b64_tr_b16 v[{b+2}:{b+3}], v{vA} offset:{stepA*ks + half_off}")

    def mfma_with_b(self, n, firstA, vB, firstB, dreg):
        a = self.a
        for ks in range(n):
            b = firstB + 4 * ks
            a.I(f"ds_read_b128 v[{b}:{b+3}], v{vB} offset:{64*ks}")
        for ks in range(n):
            a.I(f"s_waitcnt lgkmcnt({n-1-ks})")
            c = "0" if ks == 0 else f"v[{dreg}:{dreg+3}]"
            a.I(f"v_mfma_f32_16x16x32_bf16 v[{dreg}:{dreg+3}], v[{firstA+4*ks}:{firstA+4*ks+3}], v[{firstB+4*ks}:{firstB+4*ks+3}], {c}")

    def post_wo(self):
        a = self.a
        if not self.cfg.early_w:
            a.I(f"s_mul_i32 s45, s{S_KG}, {768*1280}")
            a.I(f"s_lshl_b32 s46, s{S_NB}, 7")
            a.I("s_add_u32 s47, s45, s46")
            self.srd(32, 12, 768 * 1280, off=47)
            self.dma_voff128(1280, 8, 9, 6, 7)
            a.I(f"s_mul_i32 s46, s44, {64*1280}")
            a.I("s_lshl_b32 s47, s44, 13")
            a.I(f"s_add_u32 s47, s47, {L_W}")
            self.dma_loop(32, 8, 8, 9, 47, 46, 8 * 1280, "L_wo_dma")
        a.I("s_mul_i32 s45, s44, 21846")
        a.I("s_lshr_b32 s45, s45, 16")
        a.I("s_mul_i32 s46, s45, 3")
        a.I("s_sub_u32 s46, s44, s46")
        a.I("s_lshl_b32 s46, s46, 6")
        a.I("v_add_u32 v10, s46, v5")
        a.I("v_mul_u32_u24 v11, 1366, v10")
        a.I("v_lshrrev_b32 v11, 16, v11")
        a.I("v_mul_u32_u24 v12, 48, v11")
        a.I("v_sub_u32 v12, v10, v12")
        a.I("v_mul_u32_u24 v11, 1536, v11")
        a.I("v_lshl_add_u32 v11, v12, 4, v11")
        a.I("s_lshl_b32 s63, s45, 5")
        a.I(f"s_lshl_b32 s46, s{S_KG}, 2")
        a.I("s_add_u32 s63, s63, s46")
        a.I("s_mul_i32 s63, s63, 1536")
        a.I(f"s_add_u32 s63, s63, {WS_O}")
        a.I("s_mul_i32 s46, s45, 1600")
        a.I(f"s_add_u32 s46, s46, {L_ACT}")
        a.I("v_lshl_add_u32 v13, v10, 3, s46")
        self.tr_addr128(14, 6, 7)
        a.I("s_and_b32 s45, s44, 3")
        a.I("s_lshl_b32 s45, s45, 5")
        a.I("v_xor_b32 v14, s45, v14")
        a.I("s_lshr_b32 s45, s44, 2")
        a.I("s_lshl_b32 s46, s45, 15")
        a.I(f"s_add_u32 s46, s46, {L_W}")
        a.I("v_add_u32 v14, s46, v14")
        self.act_addr(15, 1600, 6)
        a.I("s_lshl_b32 s46, s45, 9")
        a.I(f"s_add_u32 s46, s46, {L_ACT}")
        a.I("v_add_u32 v15, s46, v15")
        self.red_lane_addr(16, 6)
        a.I("v_and_b32 v17, 3, v5")
        a.I("v_mul_u32_u24 v17, 2560, v17")
        a.I("v_lshrrev_b32 v7, 2, v5")
        a.I("v_lshl_add_u32 v17, v7, 4, v17")
        a.I("s_waitcnt vmcnt(0)")
        a.I("s_barrier")
        self.stamp(9)
        self.mfma_preread(8, 14, 4096, 512, 40)
        self.poll(["buffer_load_dwordx4 v[20:23], v11, s[40:43], s63 offen sc1",
                   "buffer_load_dwordx4 v[24:27], v11, s[40:43], s63 offen offset:768 sc1"],
                  list(range(20, 28)), "L_po", pre=6)
        self.stamp(10)
        for k in range(4):
            a.I(f"v_add_f32 v{20+k}, v{20+k}, v{24+k}")
        a.I("v_cvt_pk_bf16_f32 v20, v20, v21")
        a.I("v_cvt_pk_bf16_f32 v21, v22, v23")
        a.I("ds_write_b64 v13, v[20:21]")
        a.I("s_waitcnt lgkmcnt(0)")
        a.I("s_barrier")
        self.mfma_with_b(8, 40, 15, 72, 20)
        self.write_red(20, 16)
        a.I("s_cmp_lg_u32 s44, 0")
        a.I("s_cbranch_scc1 L_wo_done")
        a.I("v_lshlrev_b32 v6, 4, v5")
        for kt in range(3):
            a.I(f"ds_read_b128 v[{20+4*kt}:{23+4*kt}], v6 offset:{L_RED + 1024*kt}")
        a.I(f"s_mul_i32 s45, s{S_KG}, 10240")
        a.I(f"s_lshl_b32 s46, s{S_NB}, 8")
        a.I("s_add_u32 s45, s45, s46")
        a.I(f"s_add_u32 s45, s45, {WS_Y}")
        a.I("s_waitcnt lgkmcnt(0)")
        for k in range(4):
            a.I(f"v_add_f32 v{20+k}, v{20+k}, v{24+k}")
        for k in range(4):
            a.I(f"v_add_f32 v{20+k}, v{20+k}, v{28+k}")
        self.canon([20, 21, 22, 23], 12)
        a.I("buffer_store_dwordx4 v[20:23], v17, s[40:43], s45 offen sc1")
        a.label("L_wo_done")
        self.stamp(11)

    def dma_band64(self, srd, rowstride, ninstr, v, lds_reg, soff_reg):
        a = self.a
        for i in range(ninstr):
            a.I(f"s_mov_b32 m0, s{lds_reg}")
            a.I(f"s_add_u32 s{lds_reg}, s{lds_reg}, 1024")
            a.I(f"buffer_load_dwordx4 v{v}, s[{srd}:{srd+3}], s{soff_reg} offen {self.cfg.ntW} lds")
            if i + 1 < ninstr:
                a.I(f"s_add_u32 s{soff_reg}, s{soff_reg}, {16*rowstride}")

    def dma_voff64(self, rowstride, v, t0, t1):
        a = self.a
        a.I(f"v_lshrrev_b32 v{t0}, 2, v5")
        a.I(f"v_bfe_u32 v{t1}, v5, 5, 1")
        a.I(f"v_lshlrev_b32 v{t1}, 5, v{t1}")
        a.I(f"v_and_b32 v{v}, 3, v5")
        a.I(f"v_lshlrev_b32 v{v}, 4, v{v}")
        a.I(f"v_xor_b32 v{v}, v{v}, v{t1}")
        a.I(f"v_mul_u32_u24 v{t0}, {rowstride}, v{t0}")
        a.I(f"v_add_u32 v{v}, v{v}, v{t0}")

    def tr_addr64(self, vdst, t0, t1):
        a = self.a
        a.I(f"v_lshrrev_b32 v{t0}, 4, v5")
        a.I(f"v_bfe_u32 v{t1}, v5, 2, 2")
        a.I(f"v_lshl_add_u32 v{vdst}, v{t0}, 3, v{t1}")
        a.I(f"v_lshlrev_b32 v{vdst}, 6, v{vdst}")
        a.I(f"v_and_b32 v{t0}, 1, v{t0}")
        a.I(f"v_lshl_or_b32 v{vdst}, v{t0}, 5, v{vdst}")
        a.I(f"v_and_b32 v{t0}, 3, v5")
        a.I(f"v_lshl_add_u32 v{vdst}, v{t0}, 3, v{vdst}")

    def x1_from_y(self, vy_addr_soff, yregs, ga, xr, out, t):
        a = self.a
        for k in range(4):
            a.I(f"v_add_f32 v{out+k}, v{yregs+k}, v{yregs+4+k}")
        for w in range(2, 8):
            for k in range(4):
                a.I(f"v_add_f32 v{out+k}, v{out+k}, v{yregs+4*w+k}")
        o = [out + k for k in range(4)]
        self.bf16_round(o, t)
        for p in range(2):
            self.unpack(ga + p, t + 1, t + 2)
            a.I(f"v_mul_f32 v{o[2*p]}, v{o[2*p]}, v{t+1}")
            a.I(f"v_mul_f32 v{o[2*p+1]}, v{o[2*p+1]}, v{t+2}")
        self.bf16_round(o, t)
        for p in range(2):
            self.unpack(xr + p, t + 1, t + 2)
            a.I(f"v_add_f32 v{o[2*p]}, v{o[2*p]}, v{t+1}")
            a.I(f"v_add_f32 v{o[2*p+1]}, v{o[2*p+1]}, v{t+2}")
        self.bf16_round(o, t)

    def post_gu(self):
        a = self.a
        a.I("s_mul_i32 s45, s44, 21846")
        a.I("s_lshr_b32 s87, s45, 16")
        a.I("s_mul_i32 s46, s87, 3")
        a.I("s_sub_u32 s88, s44, s46")
        a.I("s_mul_i32 s46, s88, 54")
        a.I("v_add_u32 v10, s46, v5")
        a.I("v_cmp_gt_u32 vcc, 54, v5")
        a.I("s_mov_b64 s[50:51], vcc")
        a.I("v_mov_b32 v6, 160")
        a.I("v_cmp_lt_u32 vcc, v10, v6")
        a.I("s_and_b64 s[50:51], s[50:51], vcc")
        a.I("v_min_u32 v10, 159, v10")
        a.I("v_lshlrev_b32 v11, 3, v10")
        a.I("s_mul_i32 s46, s87, 7680")
        a.I(f"s_add_u32 s46, s46, {WS_MOD}")
        self.srd(36, 4, 5120)
        a.I("s_mul_i32 s47, s87, 1280")
        a.I("buffer_load_dwordx2 v[18:19], v11, s[36:39], s47 offen")
        a.I("v_add_u32 v40, 2560, v11")
        a.I("v_add_u32 v41, 3840, v11")
        a.I("v_add_u32 v42, 5120, v11")
        a.I("s_mul_i32 s85, s87, 7680")
        a.I(f"s_add_u32 s85, s85, {WS_MOD}")
        a.I("v_lshlrev_b32 v32, 4, v10")
        a.I("s_mul_i32 s86, s87, 2560")
        a.I(f"s_add_u32 s86, s86, {WS_Y}")
        yloads = []
        for w in range(8):
            yloads.append((f"buffer_load_dwordx4 v[{48+4*w}:{51+4*w}], v{80+w if False else 140+w}, s[40:43], s86 offen sc1", [48+4*w+k for k in range(4)]))
            a.I(f"v_add_u32 v{140+w}, {10240*w}, v32")
        modloads = ["buffer_load_dwordx2 v[12:13], v40, s[40:43], s85 offen sc1",
                    "buffer_load_dwordx2 v[14:15], v41, s[40:43], s85 offen sc1",
                    "buffer_load_dwordx2 v[16:17], v42, s[40:43], s85 offen sc1"]
        for ld in modloads:
            a.I(ld)
        if not self.cfg.early_w:
            a.I("s_cmp_ge_u32 s44, 10")
            a.I("s_cbranch_scc1 L_gu_dn")
            a.I(f"s_lshl_b32 s47, s{S_NB}, 6")
            a.I("s_cmp_ge_u32 s44, 5")
            a.I("s_cselect_b32 s48, s18, s16")
            a.I("s_cselect_b32 s49, s19, s17")
            a.I("s_cselect_b32 s63, 5, 0")
            self.srd(32, 48, 640 * 3072, off=47)
            self.dma_voff64(3072, 8, 6, 7)
            a.I("s_sub_u32 s63, s44, s63")
            a.I(f"s_mul_i32 s46, s63, {128*3072}")
            a.I("s_lshl_b32 s47, s44, 13")
            a.I(f"s_add_u32 s47, s47, {L_W}")
            self.dma_loop(32, 8, 8, 8, 47, 46, 16 * 3072, "L_gu_dma", pol=self.cfg.ntG)
            a.I("s_waitcnt vmcnt(8)")
            a.I("s_branch L_gu_dma_done")
            a.label("L_gu_dn")
            a.I(f"s_mul_i32 s45, s{S_NB}, 40960")
            self.srd(32, 20, 40960, off=45)
            for m in range(5):
                a.I(f"v_lshlrev_b32 v6, 4, v5")
                a.I(f"v_add_u32 v6, {1024*m}, v6")
                a.I("v_mul_u32_u24 v7, 3277, v6")
                a.I("v_lshrrev_b32 v7, 22, v7")
                a.I("v_mul_u32_u24 v8, 1280, v7")
                a.I("v_sub_u32 v6, v6, v8")
                a.I("v_lshlrev_b32 v7, 5, v7")
                a.I("v_xor_b32 v9, v6, v7")
                a.I(f"v_add_u32 v{148+m}, v8, v9")
                a.I("v_xor_b32 v9, 128, v9")
                a.I(f"v_add_u32 v{153+m}, v8, v9")
            a.I("s_sub_u32 s63, s44, 10")
            a.I("s_mul_i32 s46, s63, 20480")
            a.I(f"s_add_u32 s47, s46, {L_WD}")
            for q in range(4):
                for m in range(5):
                    a.I("s_mov_b32 m0, s47")
                    a.I("s_add_u32 s47, s47, 1024")
                    a.I(f"buffer_load_dwordx4 v{(153 if (q >> 1) & 1 else 148) + m}, s[32:35], s46 offen {self.cfg.ntW} lds")
                if q < 3:
                    a.I("s_add_u32 s46, s46, 5120")
            a.I("s_waitcnt vmcnt(20)")
            a.label("L_gu_dma_done")
            a.fence(2)
        else:
            a.I("s_waitcnt vmcnt(0)")
        self.stamp(22)
        a.I("v_max3_u32 v6, v12, v13, v14")
        a.I("v_max3_u32 v6, v6, v15, v16")
        a.I("v_max_u32 v6, v6, v17")
        a.I("v_cmp_eq_u32 vcc, -1, v6")
        a.I("s_cmp_eq_u64 vcc, 0")
        a.I("s_cbranch_scc1 L_pm2_skip")
        self.poll(modloads, list(range(12, 18)), "L_pm2", pre=6)
        a.label("L_pm2_skip")
        self.stamp(23)
        self.unpack(16, 20, 21)
        self.unpack(17, 22, 23)
        for k in range(4):
            a.I(f"v_add_f32 v{20+k}, 1.0, v{20+k}")
        self.bf16_round([20, 21, 22, 23], 6)
        self.unpack(14, 24, 25)
        self.unpack(15, 26, 27)
        self.unpack(12, 84, 85)
        self.unpack(13, 86, 87)
        self.unpack(18, 88, 89)
        self.unpack(19, 90, 91)
        self.tr_addr64(28, 6, 7)
        a.I("s_and_b32 s45, s44, 1")
        a.I("s_lshl_b32 s45, s45, 5")
        a.I("v_xor_b32 v28, s45, v28")
        a.I("s_bfe_u32 s45, s44, 0x10001")
        a.I("s_mul_i32 s45, s45, 40960")
        a.I("s_lshr_b32 s46, s44, 2")
        a.I(f"s_mul_i32 s47, s46, {7*2048}")
        a.I("s_add_u32 s45, s45, s47")
        a.I(f"s_add_u32 s45, s45, {L_W}")
        a.I("v_add_u32 v28, s45, v28")
        self.act_addr(29, 1344, 6)
        a.I(f"s_mul_i32 s47, s46, {7*64}")
        a.I(f"s_add_u32 s47, s47, {L_ACT}")
        a.I("v_add_u32 v29, s47, v29")
        self.red_lane_addr(30, 6)
        a.I("s_mul_i32 s47, s87, 1344")
        a.I(f"s_add_u32 s47, s47, {L_ACT}")
        a.I("v_lshl_add_u32 v31, v10, 3, s47")
        a.I("s_mul_i32 s45, s87, 1280")
        a.I(f"s_add_u32 s45, s45, {L_OPART}")
        a.I("v_lshl_add_u32 v92, v10, 3, s45")
        a.I("s_cmp_eq_u32 s88, 2")
        a.I("s_mov_b32 s45, 0x3b9d89d9")
        a.I("s_cselect_b32 s45, s45, 0x3b97b426")
        a.I("v_mov_b32 v93, s45")
        a.I("s_lshl_b32 s45, s44, 3")
        a.I(f"s_add_u32 s45, s45, {L_LNST}")
        a.I("v_mov_b32 v94, s45")
        a.I("s_mul_i32 s45, s87, 24")
        a.I(f"s_add_u32 s45, s45, {L_LNST}")
        a.I("v_mov_b32 v95, s45")
        if self.cfg.early_w:
            a.I("s_cmp_eq_u32 s44, 3")
        else:
            a.I("s_cmp_ge_u32 s44, 10")
        a.I("s_cbranch_scc1 L_gu_nowait")
        a.I("s_waitcnt vmcnt(0)")
        a.label("L_gu_nowait")
        a.I("s_barrier")
        self.stamp(9)
        self.mfma_preread(7, 28, 2048, 256, 96)
        a.I("v_lshrrev_b32 v6, 4, v5")
        a.I("v_bfe_u32 v7, v5, 2, 2")
        a.I("v_lshl_add_u32 v8, v6, 3, v7")
        a.I("v_mul_u32_u24 v8, 1280, v8")
        a.I("v_and_b32 v9, 3, v5")
        a.I("v_lshl_add_u32 v8, v9, 3, v8")
        a.I(f"v_add_u32 v8, {L_WD}, v8")
        a.I("v_and_b32 v6, 1, v6")
        a.I("v_lshl_or_b32 v7, v6, 2, v7")
        a.I("v_lshlrev_b32 v7, 5, v7")
        for t in range(4):
            a.I(f"s_add_u32 s45, s44, {12*t}")
            a.I("s_lshl_b32 s45, s45, 5")
            a.I(f"v_xor_b32 v9, s45, v7")
            a.I(f"v_add_u32 v{148+t}, v8, v9")
        if self.cfg.ygate:
            a.I("s_and_b32 s45, s44, 7")
            a.I("s_mul_i32 s45, s45, 10240")
            a.I("v_add_u32 v6, s45, v32")
            self.poll(["buffer_load_dwordx4 v[44:47], v6, s[40:43], s86 offen sc1"], [44, 45, 46, 47], "L_pyg", pre=7)
        self.poll_sel(yloads, "L_py", 6)
        self.stamp(10)
        for (o_, d, q) in ((48, 48, 52), (56, 56, 60), (64, 64, 68), (72, 72, 76), (48, 48, 56), (64, 64, 72), (40, 48, 64)):
            a.I(f"v_pk_add_f32 v[{o_}:{o_+1}], v[{d}:{d+1}], v[{q}:{q+1}]")
            a.I(f"v_pk_add_f32 v[{o_+2}:{o_+3}], v[{d+2}:{d+3}], v[{q+2}:{q+3}]")
        o = [40, 41, 42, 43]
        self.bf16_round(o, 6)
        a.I("v_pk_mul_f32 v[40:41], v[40:41], v[84:85]")
        a.I("v_pk_mul_f32 v[42:43], v[42:43], v[86:87]")
        self.bf16_round(o, 6)
        a.I("v_pk_add_f32 v[40:41], v[40:41], v[88:89]")
        a.I("v_pk_add_f32 v[42:43], v[42:43], v[90:91]")
        a.I("v_cvt_pk_bf16_f32 v36, v40, v41")
        a.I("v_cvt_pk_bf16_f32 v37, v42, v43")
        self.unpack(36, 32, 33)
        self.unpack(37, 34, 35)
        a.I("s_mov_b64 exec, s[50:51]")
        a.I("ds_write_b64 v92, v[36:37]")
        a.I("s_mov_b64 exec, -1")
        a.I("v_readfirstlane_b32 s46, v32")
        for k in range(4):
            a.I(f"v_subrev_f32 v{40+k}, s46, v{32+k}")
        a.I("v_add_f32 v36, v40, v41")
        a.I("v_mul_f32 v37, v40, v40")
        a.I("v_add_f32 v38, v42, v43")
        a.I("v_fmac_f32 v37, v41, v41")
        a.I("v_add_f32 v36, v36, v38")
        a.I("v_fmac_f32 v37, v42, v42")
        a.I("v_fmac_f32 v37, v43, v43")
        a.I("v_cndmask_b32 v36, 0, v36, s[50:51]")
        a.I("v_cndmask_b32 v37, 0, v37, s[50:51]")
        for r in (8, 4, 2, 1):
            for v in (36, 37):
                a.I(f"v_add_f32_dpp v{v}, v{v}, v{v} row_ror:{r} row_mask:0xf bank_mask:0xf")
        for m in ("row_bcast:15 row_mask:0xa", "row_bcast:31 row_mask:0xc"):
            for v in (36, 37):
                a.I(f"v_add_f32_dpp v{v}, v{v}, v{v} {m} bank_mask:0xf")
        a.I("v_readlane_b32 s47, v36, 63")
        a.I("v_readlane_b32 s45, v37, 63")
        a.I("v_mul_f32 v38, s47, v93")
        a.I("v_mov_b32 v39, s45")
        a.I("v_add_f32 v37, s46, v38")
        a.I("v_mul_f32 v38, s47, v38")
        a.I("v_sub_f32 v38, v39, v38")
        a.I("ds_write_b32 v94, v37")
        a.I("ds_write_b32 v94, v38 offset:4")
        a.I("s_waitcnt lgkmcnt(0)")
        a.I("s_barrier")
        self.stamp(16)
        a.I("ds_read_b64 v[40:41], v95")
        a.I("ds_read_b64 v[42:43], v95 offset:8")
        a.I("ds_read_b64 v[44:45], v95 offset:16")
        for t in range(4):
            b = 124 + 4 * t
            a.I(f"ds_read_b64_tr_b16 v[{b}:{b+1}], v{148+t}")
            a.I(f"ds_read_b64_tr_b16 v[{b+2}:{b+3}], v{148+t} offset:{4*1280}")
        a.I("s_waitcnt lgkmcnt(8)")
        a.I("v_add_f32 v46, v40, v42")
        a.I("v_mov_b32 v47, 0x43500000")
        a.I("v_mul_f32 v46, 0x43580000, v46")
        a.I("v_add_f32 v41, v41, v43")
        a.I("v_fmac_f32 v46, v47, v44")
        a.I("v_add_f32 v41, v41, v45")
        a.I("v_mul_f32 v46, 0x3acccccd, v46")
        a.I("v_sub_f32 v40, v40, v46")
        a.I("v_sub_f32 v42, v42, v46")
        a.I("v_sub_f32 v44, v44, v46")
        a.I("v_cvt_pk_bf16_f32 v52, v46, v46")
        a.I("v_mul_f32 v40, v40, v40")
        a.I("v_mul_f32 v44, v44, v44")
        a.I("v_lshlrev_b32 v52, 16, v52")
        a.I("v_fmac_f32 v40, v42, v42")
        a.I("v_mov_b32 v53, v52")
        a.I("v_mul_f32 v40, 0x43580000, v40")
        a.I("v_pk_add_f32 v[32:33], v[32:33], v[52:53] neg_lo:[0,1] neg_hi:[0,1]")
        a.I("v_fmac_f32 v40, v47, v44")
        a.I("v_pk_add_f32 v[34:35], v[34:35], v[52:53] neg_lo:[0,1] neg_hi:[0,1]")
        a.I("v_add_f32 v40, v40, v41")
        a.I("v_cvt_pk_bf16_f32 v6, v32, v33")
        a.I("v_mul_f32 v40, 0x3acccccd, v40")
        a.I("v_cvt_pk_bf16_f32 v7, v34, v35")
        a.I("v_cvt_pk_bf16_f32 v48, v40, v40")
        a.I("v_lshlrev_b32 v32, 16, v6")
        a.I("v_lshlrev_b32 v40, 16, v48")
        a.I("v_and_b32 v33, 0xffff0000, v6")
        a.I(f"v_add_f32 v40, 0x{EPS:x}, v40")
        a.I("v_lshlrev_b32 v34, 16, v7")
        a.I("v_cvt_pk_bf16_f32 v48, v40, v40")
        a.I("v_and_b32 v35, 0xffff0000, v7")
        a.I("v_lshlrev_b32 v40, 16, v48")
        a.I("v_sqrt_f32 v48, v40")
        a.I("v_rcp_f32 v49, v48")
        a.I("v_fma_f32 v50, -v48, v48, v40")
        a.I("v_mul_f32 v49, 0.5, v49")
        a.I("v_fma_f32 v48, v50, v49, v48")
        a.I("v_cvt_pk_bf16_f32 v48, v48, v48")
        a.I("v_lshlrev_b32 v40, 16, v48")
        a.I("v_rcp_f32 v42, v40")
        a.I("v_mov_b32 v41, v40")
        a.I("v_mov_b32 v43, v42")
        o = [32, 33, 34, 35]
        for p in (32, 34):
            t = 48 if p == 32 else 50
            a.I(f"v_pk_mul_f32 v[{t}:{t+1}], v[{p}:{p+1}], v[42:43]")
        for p in (32, 34):
            t = 48 if p == 32 else 50
            a.I(f"v_pk_fma_f32 v[{p}:{p+1}], v[{t}:{t+1}], v[40:41], v[{p}:{p+1}] neg_lo:[1,0,0] neg_hi:[1,0,0]")
        for p in (32, 34):
            t = 48 if p == 32 else 50
            a.I(f"v_pk_fma_f32 v[{p}:{p+1}], v[{p}:{p+1}], v[42:43], v[{t}:{t+1}]")
        self.bf16_round(o, 6)
        a.I("v_pk_mul_f32 v[32:33], v[32:33], v[20:21]")
        a.I("v_pk_mul_f32 v[34:35], v[34:35], v[22:23]")
        self.bf16_round(o, 6)
        a.I("v_pk_add_f32 v[32:33], v[32:33], v[24:25]")
        a.I("v_pk_add_f32 v[34:35], v[34:35], v[26:27]")
        a.I("v_cvt_pk_bf16_f32 v32, v32, v33")
        a.I("v_cvt_pk_bf16_f32 v33, v34, v35")
        a.I("s_mov_b64 exec, s[50:51]")
        a.I("ds_write_b64 v31, v[32:33]")
        a.I("s_mov_b64 exec, -1")
        a.I("s_waitcnt lgkmcnt(0)")
        a.I("s_barrier")
        self.stamp(17)
        a.I("s_cmp_ge_u32 s44, 8")
        a.I("s_cbranch_scc1 L_gu_m6")
        self.mfma_with_b(7, 96, 29, 40, 20)
        a.I("s_branch L_gu_mdone")
        a.label("L_gu_m6")
        a.fence(2)
        self.mfma_with_b(6, 96, 29, 40, 20)
        a.label("L_gu_mdone")
        a.fence(8)
        self.write_red(20, 30)
        self.stamp(18)
        a.I("s_cmp_lg_u32 s44, 0")
        a.I("s_cbranch_scc1 L_gu_done")
        a.I("v_lshlrev_b32 v6, 4, v5")
        for kt in range(3):
            a.I(f"ds_read_b128 v[{20+4*kt}:{23+4*kt}], v6 offset:{L_RED + 1024*kt}")
        a.I("s_waitcnt lgkmcnt(0)")
        for k in range(4):
            a.I(f"v_add_f32 v{20+k}, v{20+k}, v{24+k}")
        for k in range(4):
            a.I(f"v_add_f32 v{20+k}, v{20+k}, v{28+k}")
        self.bf16_round([20, 21, 22, 23], 6)
        for k in range(4):
            a.I(f"v_mov_b32 v{24+k}, v{20+k}")
        for k in range(4):
            a.I(f"v_permlane32_swap_b32 v{20+k}, v{24+k}")
        for k in range(4):
            a.I(f"v_mul_f32 v{20+k}, v{20+k}, v{24+k}")
        a.I("v_cvt_pk_bf16_f32 v20, v20, v21")
        a.I("v_cvt_pk_bf16_f32 v21, v22, v23")
        a.I("v_and_b32 v6, 3, v5")
        a.I("v_lshlrev_b32 v6, 6, v6")
        a.I("v_bfe_u32 v7, v5, 2, 3")
        a.I("v_lshl_add_u32 v6, v7, 3, v6")
        a.I("s_mov_b32 exec_lo, -1"); a.I("s_mov_b32 exec_hi, 0")
        a.I(f"ds_write_b64 v6, v[20:21] offset:{L_QV}")
        a.I("s_mov_b64 exec, -1")
        a.I("s_waitcnt lgkmcnt(0)")
        a.label("L_gu_done")
        a.I("s_barrier")
        self.stamp(14)
        a.I("v_and_b32 v6, 3, v5")
        a.I("v_lshlrev_b32 v6, 6, v6")
        a.I("v_lshrrev_b32 v7, 4, v5")
        a.I("v_lshl_add_u32 v6, v7, 4, v6")
        a.I(f"ds_read_b128 v[40:43], v6 offset:{L_QV}")
        a.I("v_and_b32 v6, 3, v5")
        a.I("v_lshlrev_b32 v6, 6, v6")
        a.I("v_lshl_add_u32 v6, v7, 4, v6")
        a.I("s_mul_i32 s45, s44, 12288")
        a.I(f"s_lshl_b32 s46, s{S_NB}, 8")
        a.I("s_add_u32 s45, s45, s46")
        a.I(f"s_add_u32 s45, s45, {WS_PD}")
        a.I("s_waitcnt lgkmcnt(0)")
        for t in range(4):
            a.I(f"v_mfma_f32_16x16x32_bf16 v[{44+4*t}:{47+4*t}], v[{124+4*t}:{127+4*t}], v[40:43], 0")
        a.I(f"s_mov_b32 exec_lo, 0x{MASK_N4_LO:x}")
        a.I(f"s_mov_b32 exec_hi, 0x{MASK_N4_LO:x}")
        for t in range(4):
            if t == 3:
                a.I("s_cmp_ge_u32 s44, 4")
                a.I("s_cbranch_scc1 L_gu_st_done")
            self.canon([44+4*t+k for k in range(4)], 12)
            a.I(f"buffer_store_dwordx4 v[{44+4*t}:{47+4*t}], v6, s[40:43], s45 offen sc1")
            if t < 3:
                a.I(f"s_add_u32 s45, s45, {12*12288}")
        a.label("L_gu_st_done")
        a.I("s_mov_b64 exec, -1")
        self.stamp(11)

    def post_final(self):
        a = self.a
        a.fence(2)
        a.I("v_lshlrev_b32 v10, 4, v5")
        a.I(f"s_mul_i32 s47, s{S_DT}, 12288")
        a.I("s_lshl_b32 s45, s44, 10")
        a.I("s_add_u32 s47, s47, s45")
        a.I(f"s_add_u32 s47, s47, {WS_PD}")
        a.I("v_bfe_u32 v12, v5, 2, 2")
        a.I("v_and_b32 v13, 3, v5")
        a.I("v_mul_u32_u24 v14, 7680, v12")
        a.I("v_lshl_add_u32 v14, v13, 3, v14")
        a.I(f"s_lshl_b32 s45, s{S_DT}, 5")
        a.I(f"s_add_u32 s46, s45, {WS_MOD + 6400}")
        a.I("v_mul_u32_u24 v31, 1280, v12")
        a.I("v_lshl_add_u32 v31, v13, 3, v31")
        a.I(f"s_add_u32 s45, s45, {L_OPART}")
        a.I("v_add_u32 v31, s45, v31")
        a.I("v_and_b32 v30, 15, v5")
        a.I("v_lshlrev_b32 v30, 4, v30")
        a.I("s_lshl_b32 s45, s44, 8")
        a.I(f"s_add_u32 s45, s45, {L_RED}")
        a.I("v_add_u32 v29, s45, v30")
        self.stamp(19)
        self.poll(["buffer_load_dwordx4 v[40:43], v10, s[40:43], s47 offen sc1",
                   "buffer_load_dwordx2 v[22:23], v14, s[40:43], s46 offen sc1"], [40, 41, 42, 43, 22, 23], "L_ph", pre=6)
        self.stamp(20)
        for sw in ("v_permlane32_swap_b32", "v_permlane16_swap_b32"):
            for k in range(4):
                a.I(f"v_mov_b32 v{44+k}, v{40+k}")
            for k in range(4):
                a.I(f"{sw} v{40+k}, v{44+k}")
            for k in range(4):
                a.I(f"v_add_f32 v{40+k}, v{40+k}, v{44+k}")
        a.I("s_mov_b32 exec_lo, 0xffff"); a.I("s_mov_b32 exec_hi, 0")
        a.I("ds_write_b128 v29, v[40:43]")
        a.I("s_mov_b64 exec, -1")
        a.I("s_waitcnt lgkmcnt(0)")
        a.I("s_barrier")
        a.I("s_cmp_lg_u32 s44, 0")
        a.I("s_cbranch_scc1 L_dn_done")
        a.I("v_lshrrev_b32 v6, 4, v5")
        a.I("v_mul_u32_u24 v6, 768, v6")
        a.I("v_add_u32 v6, v6, v30")
        for k in range(3):
            a.I(f"ds_read_b128 v[{40+4*k}:{43+4*k}], v6 offset:{L_RED + 256*k}")
        a.I("ds_read_b64 v[32:33], v31")
        self.srd(36, 26, 5120)
        a.I("s_waitcnt lgkmcnt(0)")
        for k in range(4):
            a.I(f"v_add_f32 v{40+k}, v{40+k}, v{44+k}")
        for k in range(4):
            a.I(f"v_add_f32 v{40+k}, v{40+k}, v{48+k}")
        for sw in ("v_permlane32_swap_b32", "v_permlane16_swap_b32"):
            for k in range(4):
                a.I(f"v_mov_b32 v{44+k}, v{40+k}")
            for k in range(4):
                a.I(f"{sw} v{40+k}, v{44+k}")
            for k in range(4):
                a.I(f"v_add_f32 v{40+k}, v{40+k}, v{44+k}")
        o = [40, 41, 42, 43]
        self.bf16_round(o, 6)
        self.unpack(22, 24, 25)
        self.unpack(23, 26, 27)
        for k in range(4):
            a.I(f"v_mul_f32 v{40+k}, v{40+k}, v{24+k}")
        self.bf16_round(o, 6)
        self.unpack(32, 24, 25)
        self.unpack(33, 26, 27)
        for k in range(4):
            a.I(f"v_add_f32 v{40+k}, v{40+k}, v{24+k}")
        a.I("v_cvt_pk_bf16_f32 v40, v40, v41")
        a.I("v_cvt_pk_bf16_f32 v41, v42, v43")
        a.I("v_mul_u32_u24 v6, 1280, v12")
        a.I("v_lshl_add_u32 v6, v13, 3, v6")
        a.I(f"s_lshl_b32 s45, s{S_DT}, 5")
        a.I("s_mov_b32 exec_lo, 0xffff"); a.I("s_mov_b32 exec_hi, 0")
        a.I(f"buffer_store_dwordx2 v[40:41], v6, s[36:39], s45 offen {self.cfg.outpol}")
        a.I("s_mov_b64 exec, -1")
        a.label("L_dn_done")
        self.stamp(21)

    def tail(self):
        a = self.a
        a.label("L_tail")
        if self.cfg.dbgt:
            a.fence(4)
            a.I("s_cmp_eq_u32 s44, 0")
            a.I("s_cbranch_scc0 L_end")
            self.stamp(13)
            a.I("s_mov_b64 exec, 1")
            a.I("s_not_b32 s98, s98")
            for i, r in enumerate((98, 77, 72, 66, 64 + 4, 64 + 6)):
                a.I(f"v_mov_b32 v6, {16 + 4*i}")
                a.I(f"v_mov_b32 v7, s{r}")
                a.I("global_atomic_umax v6, v7, s[28:29] sc1")
            a.I("s_branch L_end")
        if self.diag and not self.cfg.dbgt:
            a.fence(4)
            self.stamp(13)
            a.I(f"s_lshl_b32 s79, s{S_PRE}, 4")
            a.I(f"s_or_b32 s79, s79, s{S_POST}")
            a.I("s_mul_i32 s45, s2, 12")
            a.I("s_add_u32 s45, s45, s44")
            a.I("s_lshl_b32 s45, s45, 7")
            a.I(f"s_add_u32 s45, s45, {WS_DBG}")
            a.I("s_mov_b64 exec, 1")
            a.I("v_mov_b32 v6, 0")
            regs = [64 + k for k in range(16)] + [93 + k for k in range(8)]
            for q in range(6):
                for k in range(4):
                    a.I(f"v_mov_b32 v{8+k}, s{regs[4*q+k]}")
                a.I(f"buffer_store_dwordx4 v[8:11], v6, s[40:43], s45 offen offset:{16*q}")
                a.I("s_nop 1")
        a.label("L_end")
        a.I("s_endpgm")
        a.raw(f""".section .rodata,"a"
.p2align 6
.amdhsa_kernel {self.name}
  .amdhsa_next_free_vgpr 168
  .amdhsa_next_free_sgpr 102
  .amdhsa_accum_offset 168
  .amdhsa_group_segment_fixed_size 0
  .amdhsa_float_denorm_mode_32 3
  .amdhsa_kernarg_size 112
  .amdhsa_user_sgpr_count 2
  .amdhsa_user_sgpr_kernarg_segment_ptr 1
  .amdhsa_system_sgpr_workgroup_id_x 1
.end_amdhsa_kernel""")

    def build(self):
        self.entry()
        self.helper_front()
        self.stream()
        self.helper()
        self.a.I("s_branch L_post")
        self.stream_bulk()
        self.post()
        self.tail()
        txt = self.a.text()
        if self.cfg.hop2:
            assert self.nseg <= 7, self.nseg
            w = ["  s_mov_b64 exec, 0"]
            for k in range(self.nseg):
                w += [f"  s_cmp_eq_u32 s44, {4 + k}", f"  s_cbranch_scc1 L_hopP{k}_0"]
            w += ["L_warm2_ret:", "  s_mov_b64 exec, -1"]
            txt = txt.replace("@@WARM2@@", "\n".join(w))
        return txt


def make(path, diag=False, name=KNAME, **kw):
    cfg = StreamCfg()
    for k, v in kw.items():
        setattr(cfg, k, v)
    g = Gen(cfg, diag=diag, name=name)
    txt = g.build()
    open(path, 'w').write(txt)
    return g


if __name__ == '__main__':
    out = sys.argv[1]
    kw = {}
    diag = False
    name = KNAME
    for kv in sys.argv[2:]:
        k, v = kv.split('=')
        if k == 'diag': diag = bool(int(v))
        elif k == 'name': name = v
        else: kw[k] = v.replace('_', ' ').replace('none', '') if k in ('nt', 'pfpol', 'ntV', 'ntW', 'outpol', 'ntG') else int(v)
    g = make(out, diag=diag, name=name, **kw)
    print(out, 'nops', g.a.nops)
```

```python
from asmdsl import Asm

LOG2E = 0x3fb8aa3b
SCALE = 0x3d93cd3a

R0 = 8
D = 38


def slot(i):
    return R0 + 4 * (i % D)


def hole(i):
    return R0 + 4 * i + 3


V_OFF = 1
V_Q = (2, 3, 4)
V_LANE = 5
V_T0, V_T1 = 6, 7
A_ = (hole(0), hole(1))
B_ = (hole(2), hole(3))
C_ = (hole(4), hole(5))
D_ = (hole(6), hole(7), hole(8), hole(9))
E_ = (hole(10), hole(11))
TT = (hole(12), hole(13))
V_PADDR = hole(14)
V_PW = hole(15)
V_X = [hole(16 + i) for i in range(6)]
SC = tuple(hole(22 + i) for i in range(4))
ACC = tuple(hole(26 + i) for i in range(6))
PG = (160, 164)
PTX = (hole(32), hole(33), hole(34), hole(35))
V_TK = hole(0)
PT = PTX


def set_depth(d):
    global D
    assert 36 <= d <= 38 or d == 32
    D = d


class StreamCfg:
    D = 32
    NB0 = 0
    W = 12
    W0 = 5
    late_skip = True
    WV = 64
    nt = 'nt'
    ntV = None
    ntW = 'nt'
    codepf = 0
    N1 = 16
    NM = 2
    wdl = 0
    TW = 7
    p2 = 0
    hop2 = 0
    hop2seg = 8
    tkrot = 0
    ntG = ''
    obar = 1
    kx = 4
    TD = 47
    step = 6144
    wstride = 768
    outpol = ''
    pfs = 0
    xp = 5
    dbgt = 0
    pad = 0
    pf = 0
    pfpol = ''
    PW = 2
    ygate = 0
    early_w = 0
    WW = 3
    WX = 12
    DX = 24
    hop = 14
    TJ = 46
    pw_early = 0
    gate = 2
    pretouch = 0


def emit_issue(a, cfg, u, S):
    NK = 128 + cfg.kx
    srd = S['srdK'] if u < NK else S['srdV']
    if u == NK:
        a.I(f"s_mov_b32 s{S['soff']}, 0")
    s = slot(u)
    pol = cfg.nt if u < NK else (cfg.ntV if cfg.ntV is not None else cfg.nt)
    a.vmem(f"buffer_load_dwordx3 v[{s}:{s+2}], v{V_OFF}, s[{srd}:{srd+3}], s{S['soff']} offen {pol}", ('ld', u))
    if u not in (NK - 1, 2 * NK - 1):
        a.I(f"s_addk_i32 s{S['soff']}, {cfg.step}")


def stream_prologue(a, cfg, S):
    a.comment('stream prologue')
    a.I(f"v_and_b32 v{V_LANE}, 63, v0")
    a.I(f"s_mul_i32 s{S['tmp']}, s{S['wave']}, {cfg.wstride}")
    a.I(f"v_mul_u32_u24 v{V_OFF}, 12, v{V_LANE}")
    a.I(f"v_add_u32 v{V_OFF}, s{S['tmp']}, v{V_OFF}")
    a.I(f"s_mov_b32 s{S['soff']}, 0")
    a.vm_reset()
    for u in range(D):
        if u in S.get('hook_before', {}):
            S['hook_before'][u]()
        if u >= cfg.W0:
            a.vm_window(cfg.W0 - 1)
        emit_issue(a, cfg, u, S)
        if u == S.get('b0_after', -1):
            a.I('s_barrier')
    return D


def k_tree(a, t, S, dst=None, only=0):
    i = t % 32
    if i % 2 == 1 and only in (0, 1):
        a.I(f"v_permlane16_swap_b32 v{A_[0]}, v{A_[1]}")
        a.I(f"v_add_f32 v{B_[(i >> 1) & 1]}, v{A_[0]}, v{A_[1]}")
    if i % 4 == 3 and only in (0, 2):
        c = C_[(i >> 2) & 1]
        a.I(f"v_add_f32_dpp v{c}, v{B_[0]}, v{B_[0]} row_ror:8 row_mask:0xf bank_mask:0x3")
        a.I(f"v_add_f32_dpp v{c}, v{B_[1]}, v{B_[1]} row_ror:8 row_mask:0xf bank_mask:0xc")
    if i % 8 == 7 and only in (0, 3):
        d = D_[i >> 3]
        a.I(f"v_add_f32_dpp v{d}, v{C_[0]}, v{C_[0]} row_half_mirror row_mask:0xf bank_mask:0x5")
        a.I(f"v_add_f32_dpp v{d}, v{C_[1]}, v{C_[1]} row_half_mirror row_mask:0xf bank_mask:0xa")
    if i % 16 == 15 and only in (0, 4):
        k = i >> 4
        d0, d1 = D_[2 * k], D_[2 * k + 1]
        a.I(f"v_add_f32_dpp v{TT[0]}, v{d0}, v{d0} quad_perm:[1,0,3,2] row_mask:0xf bank_mask:0xf")
        a.I(f"v_add_f32_dpp v{TT[1]}, v{d1}, v{d1} quad_perm:[1,0,3,2] row_mask:0xf bank_mask:0xf")
        a.I(f"v_cndmask_b32 v{E_[k]}, v{TT[0]}, v{TT[1]}, s[{S['mask0']}:{S['mask0']+1}]")
    if i == 31 and only in (0, 5):
        a.I(f"v_add_f32_dpp v{TT[0]}, v{E_[0]}, v{E_[0]} quad_perm:[2,3,0,1] row_mask:0xf bank_mask:0xf")
        a.I(f"v_add_f32_dpp v{TT[1]}, v{E_[1]}, v{E_[1]} quad_perm:[2,3,0,1] row_mask:0xf bank_mask:0xf")
        a.I(f"v_cndmask_b32 v{dst if dst is not None else SC[t // 32]}, v{TT[0]}, v{TT[1]}, s[{S['mask1']}:{S['mask1']+1}]")


def wave_reduce(a, op, v, sdst):
    for r in (8, 4, 2, 1):
        a.I(f"{op}_dpp v{v}, v{v}, v{v} row_ror:{r} row_mask:0xf bank_mask:0xf")
    a.I(f"{op}_dpp v{v}, v{v}, v{v} row_bcast:15 row_mask:0xa bank_mask:0xf")
    a.I(f"{op}_dpp v{v}, v{v}, v{v} row_bcast:31 row_mask:0xc bank_mask:0xf")
    a.I(f"v_readlane_b32 s{sdst}, v{v}, 63")


def round_bf16_pairs(a, regs, tmp):
    a.I(f"v_cvt_pk_bf16_f32 v{tmp[0]}, v{regs[0]}, v{regs[1]}")
    a.I(f"v_cvt_pk_bf16_f32 v{tmp[1]}, v{regs[2]}, v{regs[3]}")
    a.I(f"v_lshlrev_b32 v{regs[0]}, 16, v{tmp[0]}")
    a.I(f"v_and_b32 v{regs[1]}, 0xffff0000, v{tmp[0]}")
    a.I(f"v_lshlrev_b32 v{regs[2]}, 16, v{tmp[1]}")
    a.I(f"v_and_b32 v{regs[3]}, 0xffff0000, v{tmp[1]}")


def stream_main(a, cfg, S, L, issued, stamp=None):
    stamp = stamp or (lambda k: None)
    a.I(f"s_mov_b32 s{S['mask0']}, 0xaaaaaaaa")
    a.I(f"s_mov_b32 s{S['mask0']+1}, 0xaaaaaaaa")
    a.I(f"s_mov_b32 s{S['mask1']}, 0xcccccccc")
    a.I(f"s_mov_b32 s{S['mask1']+1}, 0xcccccccc")
    a.I(f"s_mov_b32 s{S['sello']}, 0x05040100")
    a.I(f"s_mov_b32 s{S['selhi']}, 0x07060302")
    a.I(f"s_mov_b32 s{S['log2e']}, 0x{LOG2E:x}")
    a.I(f"v_and_b32 v{V_T0}, 31, v{V_LANE}")
    a.I(f"v_mul_u32_u24 v{V_T0}, 12, v{V_T0}")
    a.I(f"v_lshrrev_b32 v{V_T1}, 5, v{V_LANE}")
    NK = 128 + cfg.kx
    SC4, VI = 156, 157
    if cfg.kx:
        assert D == 32 and cfg.kx in (2, 4, 6, 8)
        a.I(f"v_mul_u32_u24 v{V_PADDR}, 320, v{V_T1}")
        a.I(f"s_mul_i32 s{S['tmp']}, s{S['wave']}, 640")
    else:
        a.I(f"v_lshlrev_b32 v{V_PADDR}, 8, v{V_T1}")
        a.I(f"s_lshl_b32 s{S['tmp']}, s{S['wave']}, 9")
    a.I(f"s_add_u32 s{S['tmp']}, s{S['tmp']}, {L['P']}")
    a.I(f"v_add_u32 v{V_PADDR}, s{S['tmp']}, v{V_PADDR}")
    x = V_X
    a.I(f"v_bfe_u32 v{x[0]}, v{V_LANE}, 4, 1")
    a.I(f"v_lshl_add_u32 v{V_PW}, v{x[0]}, 1, v{V_PADDR}")
    a.I(f"v_bfe_u32 v{x[0]}, v{V_LANE}, 3, 1")
    a.I(f"v_lshl_add_u32 v{V_PW}, v{x[0]}, 2, v{V_PW}")
    a.I(f"v_bfe_u32 v{x[0]}, v{V_LANE}, 2, 1")
    a.I(f"v_lshl_add_u32 v{V_PW}, v{x[0]}, 3, v{V_PW}")
    a.I(f"v_bfe_u32 v{x[0]}, v{V_LANE}, 0, 1")
    a.I(f"v_lshl_add_u32 v{V_PW}, v{x[0]}, 4, v{V_PW}")
    a.I(f"v_bfe_u32 v{x[0]}, v{V_LANE}, 1, 1")
    a.I(f"v_lshl_add_u32 v{V_PW}, v{x[0]}, 5, v{V_PW}")
    if cfg.kx:
        a.I(f"v_bfe_u32 v{VI}, v{V_LANE}, 4, 1")
        for bit, sh in ((3, 1), (2, 2), (0, 3), (1, 4)):
            a.I(f"v_bfe_u32 v{x[0]}, v{V_LANE}, {bit}, 1")
            a.I(f"v_lshl_or_b32 v{VI}, v{x[0]}, {sh}, v{VI}")
    for k in range(6):
        a.I(f"v_mov_b32 v{ACC[k]}, 0")
    stamp(1)
    a.I('s_barrier')
    stamp(2)
    a.I(f"ds_read_b32 v{V_Q[0]}, v{V_T0} offset:{L['QV']}")
    a.I(f"ds_read_b32 v{V_Q[1]}, v{V_T0} offset:{L['QV']+4}")
    a.I(f"ds_read_b32 v{V_Q[2]}, v{V_T0} offset:{L['QV']+8}")
    a.I('s_waitcnt lgkmcnt(0)')

    W = cfg.W
    pend = None
    for t in range(NK):
        s = slot(t)
        a.vm_wait(('ld', t))
        leaf = A_[t & 1]
        a.I(f"v_dot2_f32_bf16 v{leaf}, v{s}, v{V_Q[0]}, 0")
        a.I(f"v_dot2c_f32_bf16 v{leaf}, v{s+1}, v{V_Q[1]}") if False else a.I(f"v_dot2_f32_bf16 v{leaf}, v{s+1}, v{V_Q[1]}, v{leaf}")
        a.I(f"v_dot2_f32_bf16 v{leaf}, v{s+2}, v{V_Q[2]}, v{leaf}")
        if cfg.late_skip:
            target = min(t + D, NK - 1 + W)
        else:
            target = max(D - 1, t + W)
        while issued <= target:
            emit_issue(a, cfg, issued, S)
            issued += 1
        k_tree(a, t, S, dst=SC4 if t >= 128 else None)
        for _ in range(cfg.pad):
            a.I("s_mov_b32 s63, 0x12345")
    if cfg.kx:
        last = (NK - 1) % 32
        for lvl in range(1, 6):
            end = (((last >> lvl) + 1) << lvl) - 1
            if end > last:
                k_tree(a, 128 + end, S, dst=SC4, only=lvl)
    stamp(3)
    sc = list(SC)
    round_bf16_pairs(a, sc, (V_T0, V_T1))
    a.I(f"s_mov_b32 s{S['tmp']}, 0x{SCALE:x}")
    for r in sc:
        a.I(f"v_mul_f32 v{r}, s{S['tmp']}, v{r}")
    round_bf16_pairs(a, sc, (V_T0, V_T1))
    if cfg.kx:
        a.I(f"v_cvt_pk_bf16_f32 v{V_T0}, v{SC4}, v{SC4}")
        a.I(f"v_lshlrev_b32 v{SC4}, 16, v{V_T0}")
        a.I(f"v_mul_f32 v{SC4}, s{S['tmp']}, v{SC4}")
        a.I(f"v_cvt_pk_bf16_f32 v{V_T0}, v{SC4}, v{SC4}")
        a.I(f"v_lshlrev_b32 v{SC4}, 16, v{V_T0}")
        a.I(f"v_mov_b32 v{V_T1}, 0xff800000")
        a.I(f"s_cmp_eq_u32 s{S['half']}, 0")
        a.I(f"s_cselect_b32 s{S['tmp']}, {NK - 96}, {256 - NK - 96}")
        a.I(f"v_cmp_gt_u32 vcc, s{S['tmp']}, v{VI}")
        a.I(f"v_cndmask_b32 v{SC[3]}, v{V_T1}, v{SC[3]}, vcc")
        a.I(f"s_cmp_eq_u32 s{S['half']}, 0")
        a.I(f"s_cselect_b32 s{S['tmp']}, {NK - 128}, 0")
        a.I(f"v_cmp_gt_u32 vcc, s{S['tmp']}, v{VI}")
        a.I(f"v_cndmask_b32 v{SC4}, v{V_T1}, v{SC4}, vcc")
    a.I(f"v_max_f32 v{V_T0}, v{sc[0]}, v{sc[1]}")
    a.I(f"v_max3_f32 v{V_T0}, v{V_T0}, v{sc[2]}, v{sc[3]}")
    if cfg.kx:
        a.I(f"v_max_f32 v{V_T0}, v{V_T0}, v{SC4}")
    wave_reduce(a, 'v_max_f32', V_T0, S['m'])
    for k, r in enumerate(sc):
        a.I(f"v_subrev_f32 v{x[k]}, s{S['m']}, v{r}")
    for k in range(4):
        a.I(f"v_mul_f32 v{x[k]}, s{S['log2e']}, v{x[k]}")
    for k in range(4):
        a.I(f"v_exp_f32 v{x[k]}, v{x[k]}")
    a.I(f"v_add_f32 v{V_T0}, v{x[0]}, v{x[1]}")
    a.I(f"v_add_f32 v{V_T1}, v{x[2]}, v{x[3]}")
    a.I(f"v_add_f32 v{V_T0}, v{V_T0}, v{V_T1}")
    if cfg.kx:
        a.I(f"v_subrev_f32 v{x[4]}, s{S['m']}, v{SC4}")
        a.I(f"v_mul_f32 v{x[4]}, s{S['log2e']}, v{x[4]}")
        a.I(f"v_exp_f32 v{x[4]}, v{x[4]}")
        a.I(f"v_add_f32 v{V_T0}, v{V_T0}, v{x[4]}")
    wave_reduce(a, 'v_add_f32', V_T0, S['l'])
    a.I(f"s_lshl_b32 s{S['tmp']}, s{S['wave']}, 3")
    a.I(f"s_add_u32 s{S['tmp']}, s{S['tmp']}, {L['STATS']}")
    a.I(f"v_mov_b32 v{x[4]}, s{S['m']}")
    a.I(f"v_mov_b32 v{x[5]}, s{S['l']}")
    a.I(f"v_mov_b32 v{V_T0}, s{S['tmp']}")
    a.I(f"ds_write_b32 v{V_T0}, v{x[4]}")
    a.I(f"ds_write_b32 v{V_T0}, v{x[5]} offset:4")
    a.I('s_waitcnt lgkmcnt(0)')
    a.I('s_barrier')
    stamp(4)
    while issued <= NK - 1 + min(D, cfg.DX):
        a.vm_window(cfg.WX - 1)
        emit_issue(a, cfg, issued, S)
        issued += 1
    stamp(5)
    a.I('s_barrier')
    stamp(6)
    a.I(f"v_mov_b32 v{V_T0}, {L['FIN']}")
    a.I(f"ds_read_b64 v[{PG[1]}:{PG[1]+1}], v{V_T0}")
    a.I('s_waitcnt lgkmcnt(0)')
    for k, r in enumerate(sc):
        a.I(f"v_sub_f32 v{x[k]}, v{r}, v{PG[1]}")
    for k in range(4):
        a.I(f"v_mul_f32 v{x[k]}, s{S['log2e']}, v{x[k]}")
    for k in range(4):
        a.I(f"v_exp_f32 v{x[k]}, v{x[k]}")
    for k in range(4):
        a.I(f"v_mul_f32 v{x[k]}, v{x[k]}, v{PG[1]+1}")
    a.I(f"v_cvt_pk_bf16_f32 v{x[4]}, v{x[0]}, v{x[1]}")
    a.I(f"v_cvt_pk_bf16_f32 v{x[5]}, v{x[2]}, v{x[3]}")
    a.I(f"ds_write_b16 v{V_PW}, v{x[4]}")
    a.I(f"ds_write_b16_d16_hi v{V_PW}, v{x[4]} offset:64")
    a.I(f"ds_write_b16 v{V_PW}, v{x[5]} offset:128")
    a.I(f"ds_write_b16_d16_hi v{V_PW}, v{x[5]} offset:192")
    if cfg.kx:
        a.I(f"v_sub_f32 v{x[0]}, v{SC4}, v{PG[1]}")
        a.I(f"v_mul_f32 v{x[0]}, s{S['log2e']}, v{x[0]}")
        a.I(f"v_exp_f32 v{x[0]}, v{x[0]}")
        a.I(f"v_mul_f32 v{x[0]}, v{x[0]}, v{PG[1]+1}")
        a.I(f"v_cvt_pk_bf16_f32 v{x[4]}, v{x[0]}, v{x[0]}")
        a.I(f"ds_write_b16 v{V_PW}, v{x[4]} offset:256")
    a.I(f"ds_read_b128 v[{PG[0]}:{PG[0]+3}], v{V_PADDR}")
    a.I(f"ds_read_b128 v[{PG[1]}:{PG[1]+3}], v{V_PADDR} offset:16")

    if cfg.early_w == 2:
        a.I("s_setprio 1")
    NP = NK // 2
    NG = (NP + 3) // 4
    for j in range(NP):
        g = j // 4
        if j % 4 == 0:
            a.I('s_waitcnt lgkmcnt(1)' if g + 1 < NG else 's_waitcnt lgkmcnt(0)')
        P = PG[g & 1] + (j % 4)
        t0, t1 = NK + 2 * j, NK + 2 * j + 1
        s0, s1 = slot(t0), slot(t1)
        a.vm_wait(('ld', t1))
        for k in range(3):
            tl, th = PT[(2 * k) % 4], PT[(2 * k + 1) % 4]
            a.I(f"v_perm_b32 v{tl}, v{s1+k}, v{s0+k}, s{S['sello']}")
            a.I(f"v_perm_b32 v{th}, v{s1+k}, v{s0+k}, s{S['selhi']}")
            a.I(f"v_dot2c_f32_bf16 v{ACC[2*k]}, v{tl}, v{P}")
            a.I(f"v_dot2c_f32_bf16 v{ACC[2*k+1]}, v{th}, v{P}")
        if j % 4 == 3 and g + 2 < NG:
            a.I(f"ds_read_b128 v[{PG[g & 1]}:{PG[g & 1]+3}], v{V_PADDR} offset:{16*(g+2)}")
        if j == cfg.TJ and cfg.early_w != 1:
            lab = a.newlabel('tk')
            a.I(f"s_cmp_eq_u32 s{S['wave']}, {cfg.TW}")
            a.I(f"s_cbranch_scc0 {lab}")
            a.I(f"v_mov_b32 v{V_T0}, {L['TICKET'] + 4}")
            a.I(f"v_mov_b32 v{V_T1}, 1")
            a.I(f"ds_write_b32 v{V_T0}, v{V_T1}")
            a.label(lab)
            lg_extra = True
        for _ in range(2 * cfg.pad):
            a.I("s_mov_b32 s63, 0x12345")
        target = min(2 * NK - 1, t1 + min(cfg.WV, D))
        while issued <= target:
            emit_issue(a, cfg, issued, S)
            issued += 1
        if j == cfg.TD and cfg.early_w == 2:
            lab = a.newlabel('td')
            a.I(f"s_cmp_eq_u32 s{S['wave']}, 7")
            a.I(f"s_cbranch_scc0 {lab}")
            a.I(f"v_mov_b32 v{V_T0}, {L['TICKET'] + 8}")
            a.I(f"v_mov_b32 v{V_T1}, 1")
            a.I(f"ds_write_b32 v{V_T0}, v{V_T1}")
            a.label(lab)
    stamp(7)
    for k in range(3):
        a.I(f"v_permlane32_swap_b32 v{ACC[k]}, v{ACC[k+3]}")
        a.I(f"v_add_f32 v{ACC[k]}, v{ACC[k]}, v{ACC[k+3]}")
    a.I(f"v_and_b32 v{V_T0}, 31, v{V_LANE}")
    a.I(f"v_mul_u32_u24 v{V_T0}, 24, v{V_T0}")
    a.I(f"v_lshrrev_b32 v{V_T1}, 5, v{V_LANE}")
    a.I(f"v_mad_u32_u24 v{V_T0}, v{V_T1}, 12, v{V_T0}")
    a.I(f"s_mul_i32 s{S['tmp']}, s{S['wave']}, 768")
    a.I(f"s_add_u32 s{S['tmp']}, s{S['tmp']}, {L['OPART']}")
    a.I(f"v_add_u32 v{V_T0}, s{S['tmp']}, v{V_T0}")
    for k in range(3):
        a.I(f"ds_write_b32 v{V_T0}, v{ACC[k]} offset:{4*k}")
    a.I('s_waitcnt lgkmcnt(0)')
    a.I('s_barrier')
    stamp(8)
```

```python
import sys
sys.path.insert(0, 'gen')
from asmdsl import Asm
import stream as st
from stream import StreamCfg, LOG2E

KNAME = 'adaLN_cond__gqa_block_cached__glu_gated_bilinear__decode_kernel'

WS_MOD, WS_Q, WS_ML, WS_O, WS_Y, WS_PD, WS_DBG = 0, 0x8000, 0x38000, 0x40000, 0x70000, 0x84000, 0x100000
WS_SIZE = 0x200000
L_ACT = 0x0000
L_RED = 0x3200
L_QV = 0x4200
L_STATS = 0x4400
L_FIN = 0x4480
L_HFLAG = 0x4500
L_LNST = 0x4540
L_P = 0x4600
L_OPART = 0x5A00
L_W = 0x7200
L_WD = L_W + 81920
L_X1 = 0x6E00
LDS_BYTES = L_W + 81920 + 40960 + 512
LDS = dict(QV=L_QV, STATS=L_STATS, FIN=L_FIN, P=L_P, OPART=L_OPART, TICKET=L_FIN + 8)


HEADER = """; adaLN-conditioned decode block (attention over a 4096-key cache + GLU MLP), one fused persistent launch.
; Kernarg (112 bytes, pointers only, s[0:1]): 0 A_x, 8 A_k_cache, 16 A_v_cache, 24 A_wq, 32 A_wo, 40 B_x (unused by the reference),
;
; Hand-offs go through d_ws with write-through (sc1) stores and sc1 polls; every slot is first reset to a sentinel by a fixed owner,
; arrivals are counted in d_debug and workgroup 0 opens a private GO word per workgroup once all resets are done, so nothing an
; code into the instruction cache ahead of time.
"""

SPIN_MAX = 1 << 16
NANF = 0x7fc00000
NANB = 0x7fc07fc0
EPS = 0x3727c5ac

S = dict(srdK=32, srdV=36, srdW=40, wave=44, tmp=45, soff=46, mask0=48, mask1=50, sello=52, selhi=53, log2e=54,
         m=55, l=56, b=57, h=58, half=59, spin=62)
S_PRE, S_BAND, S_POST, S_NB, S_KG = 80, 81, 82, 83, 84
S_KH, S_LATE, S_PHASE, S_DT = 89, 90, 91, 92
MASK_N4_LO = 0x000f000f


class Gen:
    def __init__(self, cfg, diag=False, name=KNAME):
        self.a = Asm()
        self.cfg = cfg
        self.diag = diag
        self.name = name

    def stamp(self, k):
        if not self.diag:
            return
        a = self.a
        a.I("s_memrealtime s[60:61]")
        a.I("s_waitcnt lgkmcnt(0)")
        a.I(f"s_mov_b32 s{64+k if k < 16 else 93+k-16}, s60")

    def srd(self, dst, ptr, size, off=None):
        a = self.a
        if off is None:
            a.I(f"s_mov_b32 s{dst}, s{ptr}")
            a.I(f"s_mov_b32 s{dst+1}, s{ptr+1}")
        else:
            a.I(f"s_add_u32 s{dst}, s{ptr}, s{off}")
            a.I(f"s_addc_u32 s{dst+1}, s{ptr+1}, 0")
        a.I(f"s_mov_b32 s{dst+2}, {size}")
        a.I(f"s_mov_b32 s{dst+3}, 0x20000")

    def canon(self, regs, nanreg=None):
        a = self.a
        for r in regs:
            a.I(f"v_min_u32 v{r}, -2, v{r}")

    def poll2(self, loadsA, regsA, loadsB, regsB, label, t, seed=None):
        a = self.a
        nA, nB = len(loadsA), len(loadsB)

        def check(regs, ok):
            rs = list(regs)
            a.I(f"v_max3_u32 v{t}, v{rs[0]}, v{rs[1]}, v{rs[2]}")
            i = 3
            while i < len(rs):
                if i + 1 < len(rs):
                    a.I(f"v_max3_u32 v{t}, v{t}, v{rs[i]}, v{rs[i+1]}"); i += 2
                else:
                    a.I(f"v_max_u32 v{t}, v{t}, v{rs[i]}"); i += 1
            a.I(f"v_cmp_eq_u32 vcc, -1, v{t}")
            a.I("s_cmp_eq_u64 vcc, 0")
            a.I(f"s_cbranch_scc1 {ok}")
        a.I("s_mov_b32 s62, 0")
        for ld in loadsA: a.I(ld)
        if seed: seed()
        for ld in loadsB: a.I(ld)
        a.label(label)
        a.I(f"s_waitcnt vmcnt({nB})")
        check(regsA, f"{label}_ok")
        for ld in loadsA: a.I(ld)
        a.I(f"s_waitcnt vmcnt({nA})")
        check(regsB, f"{label}_okB")
        for ld in loadsB: a.I(ld)
        a.I("s_add_u32 s62, s62, 1")
        a.I(f"s_cmp_lt_u32 s62, {SPIN_MAX}")
        a.I(f"s_cbranch_scc1 {label}")
        a.I(f"s_branch {label}_ok")
        a.label(f"{label}_okB")
        a.I("s_waitcnt vmcnt(0)")
        for ra, rb in zip(regsA, regsB):
            a.I(f"v_mov_b32 v{ra}, v{rb}")
        a.label(f"{label}_ok")

    def poll_sel(self, loads, label, t, first_issued=False):
        a = self.a
        n = len(loads)
        a.I(f"s_mov_b32 s63, {(1 << n) - 1}")
        a.I("s_mov_b32 s62, 0")
        if first_issued:
            a.I(f"s_branch {label}_chk")
        a.label(label)
        for i, (ld, regs) in enumerate(loads):
            a.I(f"s_bitcmp1_b32 s63, {i}")
            a.I(f"s_cbranch_scc0 {label}_s{i}")
            a.I(ld)
            a.label(f"{label}_s{i}")
        a.label(f"{label}_chk")
        a.I("s_add_u32 s62, s62, 1")
        a.I("s_waitcnt vmcnt(0)")
        for i, (ld, regs) in enumerate(loads):
            r = regs
            a.I(f"v_max3_u32 v{t}, v{r[0]}, v{r[1]}, v{r[2]}")
            a.I(f"v_max_u32 v{t}, v{t}, v{r[3]}")
            a.I(f"v_cmp_eq_u32 vcc, -1, v{t}")
            a.I("s_cmp_eq_u64 vcc, 0")
            a.I(f"s_cbranch_scc0 {label}_p{i}")
            a.I(f"s_bitset0_b32 s63, {i}")
            a.label(f"{label}_p{i}")
        a.I("s_cmp_eq_u32 s63, 0")
        a.I(f"s_cbranch_scc1 {label}_ok")
        a.I(f"s_cmp_lt_u32 s62, {SPIN_MAX}")
        a.I(f"s_cbranch_scc1 {label}")
        a.label(f"{label}_ok")

    def poll(self, loads, regs, label, pre=None):
        a = self.a
        a.I("s_mov_b32 s62, 0")
        a.label(label)
        for ld in loads:
            a.I(ld)
        a.I("s_add_u32 s62, s62, 1")
        a.I("s_waitcnt vmcnt(0)")
        rs = list(regs)
        t = pre
        first = True
        i = 0
        while i < len(rs):
            if first:
                if len(rs) >= 3:
                    a.I(f"v_max3_u32 v{t}, v{rs[0]}, v{rs[1]}, v{rs[2]}"); i = 3
                elif len(rs) == 2:
                    a.I(f"v_max_u32 v{t}, v{rs[0]}, v{rs[1]}"); i = 2
                else:
                    a.I(f"v_mov_b32 v{t}, v{rs[0]}"); i = 1
                first = False
            elif i + 1 < len(rs):
                a.I(f"v_max3_u32 v{t}, v{t}, v{rs[i]}, v{rs[i+1]}"); i += 2
            else:
                a.I(f"v_max_u32 v{t}, v{t}, v{rs[i]}"); i += 1
        a.I(f"v_cmp_eq_u32 vcc, -1, v{t}")
        a.I("s_cmp_eq_u64 vcc, 0")
        a.I(f"s_cbranch_scc1 {label}_ok")
        a.I(f"s_cmp_lt_u32 s62, {SPIN_MAX}")
        a.I(f"s_cbranch_scc1 {label}")
        a.label(f"{label}_ok")

    def poll_counter(self, off, expect, label, vz, vt):
        a = self.a
        a.I(f"v_mov_b32 v{vz}, {off}")
        a.I("s_mov_b32 s62, 0")
        a.I("s_mov_b64 exec, 1")
        a.label(label)
        a.I(f"global_load_dword v{vt}, v{vz}, s[28:29] sc1")
        a.I("s_add_u32 s62, s62, 1")
        a.I("s_waitcnt vmcnt(0)")
        a.I(f"v_readfirstlane_b32 s45, v{vt}")
        a.I(f"s_cmp_ge_u32 s45, {expect}")
        a.I(f"s_cbranch_scc1 {label}_ok")
        a.I(f"s_cmp_lt_u32 s62, {SPIN_MAX}")
        a.I(f"s_cbranch_scc1 {label}")
        a.label(f"{label}_ok")
        a.I("s_mov_b64 exec, -1")

    def hsync(self, k, label, vz, vt):
        a = self.a
        a.I("s_waitcnt lgkmcnt(0)")
        a.I("s_lshl_b32 s45, s44, 2")
        a.I(f"s_add_u32 s45, s45, {L_HFLAG}")
        a.I(f"v_mov_b32 v{vz}, s45")
        a.I(f"v_mov_b32 v{vt}, {k}")
        a.I(f"ds_write_b32 v{vz}, v{vt}")
        a.I(f"v_mov_b32 v{vz}, {L_HFLAG}")
        a.I("s_mov_b32 s62, 0")
        a.label(label)
        a.I(f"ds_read_b128 v[{vt}:{vt+3}], v{vz}")
        a.I("s_add_u32 s62, s62, 1")
        a.I("s_waitcnt lgkmcnt(0)")
        a.I(f"v_min3_u32 v{vt}, v{vt}, v{vt+1}, v{vt+2}")
        a.I(f"v_min_u32 v{vt}, v{vt}, v{vt+3}")
        a.I(f"v_readfirstlane_b32 s45, v{vt}")
        a.I(f"s_cmp_ge_u32 s45, {k}")
        a.I(f"s_cbranch_scc1 {label}_ok")
        a.I(f"s_cmp_lt_u32 s62, {SPIN_MAX*4}")
        a.I(f"s_cbranch_scc1 {label}")
        a.label(f"{label}_ok")

    def bf16_round(self, regs, tmp):
        a = self.a
        for i in range(0, len(regs), 2):
            a.I(f"v_cvt_pk_bf16_f32 v{tmp}, v{regs[i]}, v{regs[i+1]}")
            a.I(f"v_lshlrev_b32 v{regs[i]}, 16, v{tmp}")
            a.I(f"v_and_b32 v{regs[i+1]}, 0xffff0000, v{tmp}")

    def unpack(self, src, lo, hi):
        a = self.a
        a.I(f"v_lshlrev_b32 v{lo}, 16, v{src}")
        a.I(f"v_and_b32 v{hi}, 0xffff0000, v{src}")

    def wave_sum_bcast(self, v, sdst):
        st.wave_reduce(self.a, 'v_add_f32', v, sdst)

    def ln_denom(self, vvar, vt):
        a = self.a
        a.I(f"v_cvt_pk_bf16_f32 v{vt}, v{vvar}, v{vvar}")
        a.I(f"v_lshlrev_b32 v{vvar}, 16, v{vt}")
        a.I(f"v_add_f32 v{vvar}, 0x{EPS:x}, v{vvar}")
        a.I(f"v_cvt_pk_bf16_f32 v{vt}, v{vvar}, v{vvar}")
        a.I(f"v_lshlrev_b32 v{vvar}, 16, v{vt}")
        a.I(f"v_sqrt_f32 v{vt}, v{vvar}")
        a.I(f"v_rcp_f32 v{vt+1}, v{vt}")
        a.I(f"v_fma_f32 v{vt+2}, -v{vt}, v{vt}, v{vvar}")
        a.I(f"v_mul_f32 v{vt+1}, 0.5, v{vt+1}")
        a.I(f"v_fma_f32 v{vt}, v{vt+2}, v{vt+1}, v{vt}")
        a.I(f"v_cvt_pk_bf16_f32 v{vt}, v{vt}, v{vt}")
        a.I(f"v_lshlrev_b32 v{vvar}, 16, v{vt}")

    def div_by(self, num, den, rcp, t):
        a = self.a
        a.I(f"v_mul_f32 v{t}, v{num}, v{rcp}")
        a.I(f"v_fma_f32 v{num}, -v{t}, v{den}, v{num}")
        a.I(f"v_fma_f32 v{num}, v{num}, v{rcp}, v{t}")

    def entry(self):
        a = self.a
        a.raw(HEADER.rstrip("\n"))
        a.raw(f"; @launch grid=(256,1,1) block=(768,1,1) lds={LDS_BYTES}")
        a.raw('.amdgcn_target "amdgcn-amd-amdhsa--gfx950"\n.text')
        a.raw(f".globl {self.name}\n.p2align 8\n.type {self.name},@function\n{self.name}:")
        a.I("s_cmp_ge_u32 s2, 256")
        a.I("s_cbranch_scc1 L_end")
        if self.cfg.dbgt:
            a.I("s_memrealtime s[98:99]")
        a.I("s_load_dwordx16 s[4:19], s[0:1], 0")
        a.I("s_load_dwordx8 s[20:27], s[0:1], 64")
        a.I("s_load_dwordx4 s[28:31], s[0:1], 96")
        a.I("v_lshrrev_b32 v1, 6, v0")
        a.I("v_and_b32 v5, 63, v0")
        a.I("v_readfirstlane_b32 s44, v1")
        a.I("s_lshr_b32 s45, s2, 1")
        a.I(f"s_mov_b32 s{S_PRE}, 2")
        a.I("s_bitcmp1_b32 s2, 0")
        a.I("s_cbranch_scc1 L_early_q")
        a.I(f"s_sub_u32 s{S_BAND}, s45, 4")
        a.I(f"s_cmp_lt_u32 s{S_BAND}, 60")
        a.I(f"s_cselect_b32 s{S_PRE}, 1, 0")
        a.I("s_cmp_lt_u32 s45, 64")
        a.I("s_cbranch_scc1 L_early_done")
        a.I(f"s_mov_b32 s{S_PRE}, 2")
        a.I("s_add_u32 s45, s45, 64")
        a.label("L_early_q")
        a.I(f"s_lshr_b32 s{S_BAND}, s45, 1")
        a.I(f"s_and_b32 s{S_KH}, s45, 1")
        a.label("L_early_done")
        a.I("s_cmp_lt_u32 s44, 4")
        a.I("s_cbranch_scc0 L_stream")

    def pair_unit(self, sv, sdst):
        a = self.a
        a.I(f"s_and_b32 s46, s{sv}, 7")
        a.I(f"s_lshr_b32 s47, s{sv}, 4")
        a.I("s_lshl_b32 s47, s47, 3")
        a.I("s_add_u32 s46, s46, s47")
        a.I(f"s_bfe_u32 s47, s{sv}, 0x10003")
        a.I(f"s_lshl_b32 s{sdst}, s46, 1")
        a.I(f"s_add_u32 s{sdst}, s{sdst}, s47")

    def roles_rest(self):
        a = self.a
        if self.cfg.xp == 0:
            a.I("s_and_b32 s45, s2, 7")
            a.I("s_lshr_b32 s46, s2, 3")
            a.I("s_and_b32 s47, s46, 3")
            a.I("s_lshl_b32 s47, s47, 3")
            a.I("s_add_u32 s58, s45, s47")
            a.I("s_lshr_b32 s46, s2, 5")
            a.I("s_lshr_b32 s57, s46, 1")
            a.I("s_and_b32 s59, s46, 1")
        else:
            a.I("s_and_b32 s59, s2, 1")
            a.I(f"s_xor_b32 s45, s2, {self.cfg.xp}")
            a.I("s_cmp_eq_u32 s59, 0")
            a.I("s_cselect_b32 s45, s2, s45")
            a.I("s_bfe_u32 s45, s45, 0x20001")
            a.I("s_lshr_b32 s46, s2, 3")
            a.I("s_lshr_b32 s57, s46, 3")
            a.I("s_and_b32 s46, s46, 7")
            a.I("s_lshl_b32 s46, s46, 2")
            a.I("s_add_u32 s58, s46, s45")
        a.I(f"s_mov_b32 s{S_POST}, 0")
        a.I("s_lshr_b32 s45, s2, 1")
        a.I("s_mul_i32 s46, s45, 6554")
        a.I("s_lshr_b32 s46, s46, 16")
        a.I(f"s_mov_b32 s{S_KG}, s46")
        a.I("s_mul_i32 s47, s46, 10")
        a.I(f"s_sub_u32 s{S_NB}, s45, s47")
        a.I("s_cmp_lt_u32 s45, 80")
        a.I(f"s_cselect_b32 s{S_POST}, 1, 0")
        lab = a.newlabel('roles_done')
        a.I("s_bitcmp1_b32 s2, 0")
        a.I(f"s_cbranch_scc0 {lab}")
        a.I(f"s_mov_b32 s{S_NB}, s45")
        a.I("s_cmp_lt_u32 s45, 48")
        a.I(f"s_cselect_b32 s{S_POST}, 2, 0")
        a.label(lab)

    def prefetch_weights(self):
        a = self.a
        pol = self.cfg.pfpol
        lab = a.newlabel('pf')
        a.I("s_cmp_eq_u32 s44, 0")
        a.I(f"s_cbranch_scc1 {lab}_done")
        a.I("v_lshlrev_b32 v8, 4, v5")
        if self.cfg.pfs:
            for i, p in enumerate((16, 18, 20)):
                a.I(f"s_cmp_eq_u32 s44, {i+1}")
                a.I(f"s_cbranch_scc0 {lab}_n{i}")
                a.I("s_mul_i32 s45, s2, 7680")
                self.srd(32, p, 7680, off=45)
                a.I("s_mov_b32 s46, 0")
                a.I("s_mov_b32 s63, 8")
                a.label(f"{lab}_t{i}")
                a.I(f"s_waitcnt vmcnt({self.cfg.PW - 1})")
                a.I(f"buffer_load_dwordx4 v[12:15], v8, s[32:35], s46 offen {pol}")
                a.I("s_add_u32 s46, s46, 1024")
                a.I("s_sub_u32 s63, s63, 1")
                a.I("s_cmp_lg_u32 s63, 0")
                a.I(f"s_cbranch_scc1 {lab}_t{i}")
                a.label(f"{lab}_n{i}")
            a.I(f"s_branch {lab}_done")
        a.I("s_cmp_eq_u32 s44, 3")
        a.I(f"s_cbranch_scc1 {lab}_small")
        a.I("s_mul_i32 s45, s2, 30720")
        self.srd(32, 12, 30720, off=45)
        a.I("s_sub_u32 s46, s44, 1")
        a.I("s_mul_i32 s46, s46, 15360")
        a.I("s_mov_b32 s63, 15")
        a.label(f"{lab}_l1")
        a.I(f"s_waitcnt vmcnt({self.cfg.PW - 1})")
        a.I(f"buffer_load_dwordx4 v[12:15], v8, s[32:35], s46 offen {pol}")
        a.I("s_add_u32 s46, s46, 1024")
        a.I("s_sub_u32 s63, s63, 1")
        a.I("s_cmp_lg_u32 s63, 0")
        a.I(f"s_cbranch_scc1 {lab}_l1")
        a.I(f"s_branch {lab}_done")
        a.label(f"{lab}_small")
        for i, p in enumerate((16, 18, 20)):
            a.I("s_mul_i32 s45, s2, 7680")
            self.srd(32, p, 7680, off=45)
            a.I("s_mov_b32 s46, 0")
            a.I("s_mov_b32 s63, 8")
            a.label(f"{lab}_s{i}")
            a.I(f"s_waitcnt vmcnt({self.cfg.PW - 1})")
            a.I(f"buffer_load_dwordx4 v[12:15], v8, s[32:35], s46 offen {pol}")
            a.I("s_add_u32 s46, s46, 1024")
            a.I("s_sub_u32 s63, s63, 1")
            a.I("s_cmp_lg_u32 s63, 0")
            a.I(f"s_cbranch_scc1 {lab}_s{i}")
        a.label(f"{lab}_done")
        a.fence(2)

    def v_weights(self):
        a = self.a
        WN = self.cfg.WW
        a.I(f"s_cmp_eq_u32 s{S_POST}, 1")
        a.I("s_cbranch_scc0 L_vw_gu")
        a.I(f"s_mul_i32 s45, s{S_KG}, {768*1280}")
        a.I(f"s_lshl_b32 s46, s{S_NB}, 7")
        a.I("s_add_u32 s47, s45, s46")
        self.srd(32, 12, 768 * 1280, off=47)
        self.dma_voff128(1280, 8, 9, 6, 7)
        a.I("s_sub_u32 s63, s44, 1")
        a.I(f"s_mul_i32 s46, s63, {256*1280}")
        a.I("s_lshl_b32 s47, s63, 15")
        a.I(f"s_add_u32 s47, s47, {L_W}")
        self.dma_loop(32, 32, 8, 9, 47, 46, 8 * 1280, "L_vw_wo_loop", window=WN + 1)
        a.I("s_branch L_vw_done")
        a.label("L_vw_gu")
        a.I(f"s_cmp_eq_u32 s{S_POST}, 2")
        a.I("s_cbranch_scc0 L_vw_done")
        a.I("s_cmp_eq_u32 s44, 3")
        a.I("s_cbranch_scc1 L_vw_dn")
        a.I(f"s_lshl_b32 s47, s{S_NB}, 6")
        a.I("s_cmp_eq_u32 s44, 2")
        a.I("s_cselect_b32 s48, s18, s16")
        a.I("s_cselect_b32 s49, s19, s17")
        self.srd(32, 48, 640 * 3072, off=47)
        self.dma_voff64(3072, 8, 6, 7)
        a.I("s_mov_b32 s46, 0")
        a.I("s_sub_u32 s47, s44, 1")
        a.I("s_mul_i32 s47, s47, 40960")
        a.I(f"s_add_u32 s47, s47, {L_W}")
        self.dma_loop(32, 40, 8, 8, 47, 46, 16 * 3072, "L_vw_gu_loop", window=WN)
        a.I("s_branch L_vw_done")
        a.label("L_vw_dn")
        a.I(f"s_mul_i32 s45, s{S_NB}, 40960")
        self.srd(32, 20, 40960, off=45)
        self.wdown_offsets()
        a.I("s_mov_b32 s46, 0")
        a.I(f"s_mov_b32 s47, {L_WD}")
        for q in range(8):
            for m in range(5):
                a.I("s_mov_b32 m0, s47")
                a.I("s_add_u32 s47, s47, 1024")
                a.I(f"buffer_load_dwordx4 v{(153 if (q >> 1) & 1 else 148) + m}, s[32:35], s46 offen {self.cfg.ntW} lds")
            if q < 7:
                a.I("s_add_u32 s46, s46, 5120")

    def wdown_issue(self):
        a = self.a
        a.I("s_sub_u32 s63, s44, 10")
        a.I("s_mul_i32 s48, s63, 20480")
        a.I(f"s_add_u32 s49, s48, {L_WD}")
        for q in range(4):
            for m in range(5):
                a.I("s_mov_b32 m0, s49")
                a.I("s_add_u32 s49, s49, 1024")
                a.I(f"buffer_load_dwordx4 v{(153 if (q >> 1) & 1 else 148) + m}, s[32:35], s48 offen {self.cfg.ntW} lds")
            if q < 3:
                a.I("s_add_u32 s48, s48, 5120")

    def wdown_offsets(self):
        a = self.a
        for m in range(5):
            a.I(f"v_lshlrev_b32 v6, 4, v5")
            a.I(f"v_add_u32 v6, {1024*m}, v6")
            a.I("v_mul_u32_u24 v7, 3277, v6")
            a.I("v_lshrrev_b32 v7, 22, v7")
            a.I("v_mul_u32_u24 v8, 1280, v7")
            a.I("v_sub_u32 v6, v6, v8")
            a.I("v_lshlrev_b32 v7, 5, v7")
            a.I("v_xor_b32 v9, v6, v7")
            a.I(f"v_add_u32 v{148+m}, v8, v9")
            a.I("v_xor_b32 v9, 128, v9")
            a.I(f"v_add_u32 v{153+m}, v8, v9")

    def roles_from_ticket(self, sfx=""):
        a = self.a
        a.I(f"v_mov_b32 v6, {L_FIN + 8}")
        a.I("ds_read_b32 v7, v6")
        a.I("s_waitcnt lgkmcnt(0)")
        a.I("v_readfirstlane_b32 s45, v7")
        if self.cfg.tkrot:
            r = self.cfg.tkrot
            a.I(f"s_add_u32 s46, s45, 48")
            a.I(f"s_sub_u32 s47, s45, {r}")
            a.I(f"s_cmp_lt_u32 s45, {r + 48}")
            a.I("s_cselect_b32 s47, s47, s45")
            a.I(f"s_cmp_lt_u32 s45, {r}")
            a.I("s_cselect_b32 s45, s46, s47")
        a.I("s_cmp_lt_u32 s45, 40")
        a.I(f"s_cselect_b32 s{S_DT}, s45, -1")
        a.I(f"s_mov_b32 s{S_NB}, s45")
        a.I("s_cmp_lt_u32 s45, 48")
        a.I(f"s_cselect_b32 s{S_POST}, 2, 0")
        a.I(f"s_cbranch_scc1 L_ticket_done{sfx}")
        a.I("s_sub_u32 s45, s45, 48")
        a.I("s_cmp_lt_u32 s45, 80")
        a.I(f"s_cselect_b32 s{S_POST}, 1, 0")
        a.I("s_mul_i32 s46, s45, 6554")
        a.I("s_lshr_b32 s46, s46, 16")
        a.I(f"s_mov_b32 s{S_KG}, s46")
        a.I("s_mul_i32 s47, s46, 10")
        a.I(f"s_sub_u32 s{S_NB}, s45, s47")
        a.label(f"L_ticket_done{sfx}")

    def code_prefetch(self, wave):
        a = self.a
        a.I(f"s_cmp_eq_u32 s44, {wave}")
        a.I("s_cbranch_scc0 L_nopf")
        a.I("s_getpc_b64 s[46:47]")
        a.label("L_pc")
        a.I(f"s_sub_u32 s46, s46, (L_pc-{self.name})")
        a.I("s_subb_u32 s47, s47, 0")
        a.I("s_lshr_b32 s45, s2, 3")
        a.I("s_lshl_b32 s45, s45, 10")
        a.I("v_lshlrev_b32 v6, 4, v5")
        a.I("v_add_u32 v6, s45, v6")
        a.I("v_mov_b32 v7, 0")
        a.I("v_mov_b32 v9, s47")
        a.I("v_add_co_u32 v8, vcc, s46, v6")
        a.I("v_addc_co_u32 v9, vcc, v9, v7, vcc")
        a.I(f"s_mov_b32 s45, (L_end-{self.name}-12)")
        a.I("v_cmp_gt_u32 vcc, s45, v6")
        a.I("s_and_saveexec_b64 s[46:47], vcc")
        a.I("s_cbranch_execz L_pfskip")
        a.I("global_load_dwordx4 v[12:15], v[8:9], off")
        a.label("L_pfskip")
        a.I("s_mov_b64 exec, s[46:47]")
        a.label("L_nopf")

    def pretouch(self):
        a = self.a
        a.I("s_cmp_eq_u32 s44, 10")
        a.I("s_cbranch_scc0 L_nopt")
        a.I("v_lshlrev_b32 v6, 21, v5")
        bufs = [(24, 640*7680), (10, 640*12288), (30, WS_SIZE), (28, 256), (4, 5120), (22, 5120),
                (12, 6144*1280), (16, 640*3072), (18, 640*3072), (20, 1536*1280), (26, 5120)]
        if self.cfg.pretouch >= 2:
            pass
        for i, (p, size) in enumerate(bufs):
            self.srd(32, p, size)
            a.I(f"buffer_load_dword v{12+i}, v6, s[32:35], 0 offen")
        a.label("L_nopt")

    def resets(self):
        a = self.a
        a.I("v_mov_b32 v8, -1")
        a.I("v_mov_b32 v9, -1")
        a.I("v_mov_b32 v10, -1")
        a.I("v_mov_b32 v11, -1")
        a.I("v_lshlrev_b32 v6, 4, v5")
        a.I("s_lshl_b32 s45, s57, 5")
        a.I("s_add_u32 s45, s45, s58")
        a.I("s_lshl_b32 s45, s45, 1")
        a.I("s_add_u32 s45, s45, s59")
        a.I("s_mul_i32 s45, s45, 768")
        a.I(f"s_add_u32 s45, s45, {WS_O}")
        a.I("s_mov_b32 exec_lo, -1"); a.I("s_mov_b32 exec_hi, 0xffff")
        a.I("buffer_store_dwordx4 v[8:11], v6, s[40:43], s45 offen sc1")
        a.I("s_lshl_b32 s45, s2, 7")
        a.I(f"s_add_u32 s45, s45, {WS_ML}")
        a.I("s_mov_b64 exec, 0x11")
        a.I("buffer_store_dwordx4 v[8:11], v6, s[40:43], s45 offen sc1")
        a.I("s_mov_b64 exec, -1")
        a.I("v_lshrrev_b32 v7, 4, v5")
        a.I("v_and_b32 v12, 15, v5")
        a.I("v_lshlrev_b32 v12, 4, v12")

        def rows(cmp, rowbytes, base, bandbytes, band_reg, nchunk, lab, extra=None):
            a.I(cmp)
            a.I(f"s_cbranch_scc0 {lab}")
            a.I(f"v_mul_u32_u24 v13, {rowbytes}, v7")
            a.I("v_add_u32 v13, v13, v12")
            a.I(f"s_mul_i32 s45, s{band_reg}, {bandbytes}")
            if extra:
                a.I(f"s_mul_i32 s46, s{extra}, {4*rowbytes}")
                a.I("s_add_u32 s45, s45, s46")
            a.I(f"s_add_u32 s45, s45, {base}")
            m = (1 << nchunk) - 1
            m32 = m | (m << 16)
            a.I(f"s_mov_b32 exec_lo, 0x{m32:x}")
            a.I(f"s_mov_b32 exec_hi, 0x{m32:x}")
            a.I("buffer_store_dwordx4 v[8:11], v13, s[40:43], s45 offen sc1")
            a.I("s_mov_b64 exec, -1")
            a.label(lab)
        rows(f"s_cmp_eq_u32 s{S_PRE}, 2", 24576, WS_Q, 256, S_BAND, 16, 'L_rs2', extra=S_KH)
        rows(f"s_cmp_eq_u32 s{S_PRE}, 1", 7680, WS_MOD, 128, S_BAND, 8, 'L_rs1')
        rows(f"s_cmp_eq_u32 s{S_POST}, 1", 2560, WS_Y, 256, S_NB, 16, 'L_rs3', extra=S_KG)
        a.I(f"s_cmp_eq_u32 s{S_POST}, 2")
        a.I("s_cbranch_scc0 L_rs4")
        a.I("v_mul_u32_u24 v13, 12288, v7")
        a.I("v_add_u32 v13, v13, v12")
        a.I(f"s_lshl_b32 s45, s{S_NB}, 8")
        a.I(f"s_add_u32 s45, s45, {WS_PD}")
        for k in range(10):
            a.I("buffer_store_dwordx4 v[8:11], v13, s[40:43], s45 offen sc1")
            if k < 9:
                a.I(f"s_add_u32 s45, s45, {4*12288}")
        a.label("L_rs4")

    def resets_arrive(self):
        a = self.a
        a.I("s_waitcnt vmcnt(0)")
        self.stamp(16)
        a.I("s_mov_b64 exec, 1")
        a.I("v_mov_b32 v8, 1")
        a.I("s_and_b32 s45, s2, 1")
        a.I("s_lshl_b32 s45, s45, 7")
        a.I("v_mov_b32 v9, s45")
        a.I("global_atomic_add v9, v8, s[28:29] sc1")
        a.I(f"s_cmp_eq_u32 s{S_PRE}, 1")
        a.I("s_cbranch_scc0 L_noc1")
        a.I(f"s_cmp_lt_u32 s{S_BAND}, 20")
        a.I("s_cbranch_scc0 L_noc1")
        a.I("v_mov_b32 v9, 132")
        a.I("global_atomic_add v9, v8, s[28:29] sc1")
        a.label("L_noc1")
        a.I("s_mov_b64 exec, -1")

    def master(self):
        a = self.a
        a.I("s_cmp_eq_u32 s44, 1")
        a.I("s_cbranch_scc0 L_notmaster")
        a.I("s_cmp_eq_u32 s2, 0")
        a.I("s_cbranch_scc0 L_notmaster")
        def go(val):
            a.I("s_mov_b64 exec, -1")
            a.I("v_lshlrev_b32 v8, 7, v5")
            a.I(f"v_mov_b32 v9, {val}")
            for k in range(4):
                a.I(f"s_mov_b32 s45, {WS_ML + 64 + 8192*k}")
                a.I("buffer_store_dword v9, v8, s[40:43], s45 offen sc1")
        a.I("v_lshlrev_b32 v7, 7, v5")
        a.I("v_mov_b32 v6, 132")
        a.I("v_cmp_eq_u32 vcc, 2, v5")
        a.I("v_cndmask_b32 v7, v7, v6, vcc")
        a.I("s_mov_b32 s62, 0")
        a.I("s_mov_b32 s63, 0")
        a.label("L_master")
        a.I("s_mov_b64 exec, 7")
        a.I("global_load_dword v6, v7, s[28:29] sc1")
        a.I("s_add_u32 s62, s62, 1")
        a.I("s_waitcnt vmcnt(0)")
        a.I("v_readlane_b32 s45, v6, 0")
        a.I("v_readlane_b32 s46, v6, 1")
        a.I("v_readlane_b32 s47, v6, 2")
        a.I("s_min_u32 s45, s45, s46")
        a.I("s_cmp_ge_u32 s45, 128")
        a.I("s_cbranch_scc1 L_master_ok")
        a.I("s_cmp_lt_u32 s47, 20")
        a.I("s_cbranch_scc1 L_master_next")
        a.I("s_cmp_eq_u32 s63, 0")
        a.I("s_cbranch_scc0 L_master_next")
        a.I("s_mov_b32 s63, 1")
        go(1)
        self.stamp(17)
        a.label("L_master_next")
        a.I(f"s_cmp_lt_u32 s62, {SPIN_MAX}")
        a.I("s_cbranch_scc1 L_master")
        a.label("L_master_ok")
        go(2)
        a.I("s_mov_b64 exec, -1")
        self.stamp(18)
        a.label("L_notmaster")

    def poll_go(self, label, vz, vt, level):
        a = self.a
        a.I("s_lshl_b32 s45, s2, 7")
        a.I(f"s_add_u32 s46, s45, {WS_ML + 64}")
        a.I(f"v_mov_b32 v{vz}, 0")
        a.I("s_mov_b32 s62, 0")
        a.I("s_mov_b64 exec, 1")
        a.label(label)
        a.I(f"buffer_load_dword v{vt}, v{vz}, s[40:43], s46 offen sc1")
        a.I("s_add_u32 s62, s62, 1")
        a.I("s_waitcnt vmcnt(0)")
        a.I(f"v_readfirstlane_b32 s{S_LATE}, v{vt}")
        a.I(f"s_sub_u32 s45, s{S_LATE}, {level}")
        a.I(f"s_cmp_le_u32 s45, {2-level}")
        a.I(f"s_cbranch_scc1 {label}_ok")
        a.I(f"s_cmp_lt_u32 s62, {SPIN_MAX}")
        a.I(f"s_cbranch_scc1 {label}")
        a.label(f"{label}_ok")
        a.I("s_mov_b64 exec, -1")

    def stream(self):
        a = self.a
        cfg = self.cfg
        a.label("L_stream")
        if self.cfg.hop2:
            a.raw("@@WARM2@@")
        a.I("s_cmp_eq_u32 s44, 11")
        a.I("s_cbranch_scc0 L_noprio")
        a.I("s_setprio 3")
        a.label("L_noprio")
        self.roles_rest()
        a.I("s_waitcnt lgkmcnt(0)")
        self.stamp(0)
        self.srd(40, 30, WS_SIZE)
        a.I("s_cmp_eq_u32 s44, 11")
        a.I("s_cbranch_scc0 L_noreset")
        self.resets()
        self.resets_arrive()
        a.I("s_setprio 0")
        a.label("L_noreset")
        a.fence(2)
        a.I("s_sub_u32 s44, s44, 4")
        a.I("s_lshl_b32 s45, s57, 5")
        a.I("s_add_u32 s45, s45, s58")
        a.I("s_mul_i32 s45, s45, 1572864")
        n0 = (128 + cfg.kx) * 6144
        a.I(f"s_mul_i32 s46, s59, {n0}")
        a.I("s_add_u32 s47, s45, s46")
        self.srd(32, 6, n0, off=47)
        self.srd(36, 8, n0, off=47)
        if cfg.kx:
            a.I("s_cmp_eq_u32 s59, 0")
            a.I(f"s_mov_b32 s45, {n0}")
            a.I(f"s_cselect_b32 s34, s45, {1572864 - n0}")
            a.I("s_mov_b32 s38, s34")
        a.I("s_branch L_stream_main")

    def stream_bulk(self):
        a = self.a
        cfg = self.cfg
        a.label("L_stream_main")
        a.fence(2)
        st.set_depth(cfg.D)

        def b0():
            a.I("s_barrier")
        S2 = dict(S); S2['b0_after'] = cfg.N1 - 1 if cfg.gate else -1
        S2['hook_before'] = {cfg.NB0: b0}
        issued = st.stream_prologue(a, cfg, S2)
        st.stream_main(a, cfg, S2, LDS, issued, self.stamp)
        a.I("s_add_u32 s44, s44, 4")
        a.I("s_branch L_post")

    def zero_flag(self):
        a = self.a
        a.I("s_lshl_b32 s45, s44, 2")
        a.I(f"s_add_u32 s45, s45, {L_HFLAG}")
        a.I("v_mov_b32 v6, s45")
        a.I("v_mov_b32 v7, 0")
        a.I("ds_write_b32 v6, v7")

    def u_layout(self, n, per):
        a = self.a
        magic = {80: 52429, 40: 104858}[per]
        a.I(f"s_mov_b32 s47, {magic}")
        for jj in range(n):
            a.I(f"v_add_u32 v6, {64*jj}, v5")
            a.I("v_mul_u32_u24 v7, s47, v6")
            a.I(f"v_lshrrev_b32 v{20+jj}, 22, v7")
            a.I(f"v_mul_u32_u24 v7, {per}, v{20+jj}")
            a.I("v_sub_u32 v6, v6, v7")
            a.I(f"v_lshlrev_b32 v{25+jj}, 2, v6")

    def helper_front(self):
        a = self.a
        a.label("L_helper")
        a.I("s_setprio 2")
        a.I("v_lshrrev_b32 v17, 4, v5")
        a.I("v_and_b32 v18, 15, v5")
        a.I(f"s_cmp_eq_u32 s{S_PRE}, 1")
        a.I("s_cbranch_scc0 L_hq0")
        self.dma_voff128(7680, 8, 9, 6, 7)
        a.I(f"s_mul_i32 s46, s44, {160*7680}")
        a.I(f"s_lshl_b32 s85, s{S_BAND}, 7")
        a.I("s_mul_i32 s47, s44, 20480")
        a.I(f"s_add_u32 s47, s47, {L_W}")
        a.I("v_mul_u32_u24 v16, 1280, v17")
        a.I("v_mad_u32_u24 v16, v18, 20, v16")
        a.I("s_mul_i32 s63, s44, 320")
        a.I("s_waitcnt lgkmcnt(0)")
        self.stamp(0)
        self.srd(36, 22, 5120)
        self.srd(32, 24, 640 * 7680, off=85)
        a.I("buffer_load_dwordx4 v[30:33], v16, s[36:39], s63 offen")
        a.I("buffer_load_dword v34, v16, s[36:39], s63 offen offset:16")
        self.dma_loop(32, 20, 8, 9, 47, 46, 8 * 7680, "L_mod_dma", cnt=85)
        self.stamp(3)
        a.I("s_branch L_modrest")
        a.label("L_hq0")
        a.I(f"s_cmp_eq_u32 s{S_PRE}, 2")
        a.I("s_cbranch_scc0 L_hnone")
        self.dma_voff128(12288, 8, 9, 6, 7)
        a.I(f"s_mul_i32 s46, s44, {80*12288}")
        a.I(f"s_mul_i32 s47, s{S_KH}, {320*12288}")
        a.I(f"s_lshl_b32 s45, s{S_BAND}, 7")
        a.I("s_add_u32 s85, s47, s45")
        a.I("s_mul_i32 s47, s44, 10240")
        a.I(f"s_add_u32 s47, s47, {L_W}")
        a.I("v_min_u32 v18, 9, v18")
        a.I("v_mul_u32_u24 v16, 1280, v17")
        a.I("v_lshl_add_u32 v16, v18, 4, v16")
        a.I(f"s_mul_i32 s63, s{S_KH}, 640")
        a.I("s_mul_i32 s45, s44, 160")
        a.I("s_add_u32 s63, s63, s45")
        a.I("v_lshlrev_b32 v19, 2, v5")
        a.I("s_mul_i32 s48, s44, 1280")
        a.I("s_waitcnt lgkmcnt(0)")
        self.stamp(0)
        self.srd(36, 4, 5120)
        self.srd(32, 10, 320 * 12288, off=85)
        for jj in range(5):
            a.I(f"buffer_load_dword v{35+jj}, v19, s[36:39], s48 offen offset:{256*jj}")
        a.I("buffer_load_dwordx4 v[28:31], v16, s[36:39], s63 offen")
        self.dma_loop(32, 10, 8, 9, 47, 46, 8 * 12288, "L_q_dma", cnt=85)
        self.stamp(3)
        a.I("s_branch L_qrest")

    def helper(self):
        a = self.a
        if self.cfg.hop2:
            a.hops_begin("L_hopP", self.cfg.hop2, seg=self.cfg.hop2seg, ret="L_warm2_ret")
        a.label("L_hnone")
        self.zero_flag()
        a.I("s_waitcnt lgkmcnt(0)")
        self.stamp(0)
        self.srd(40, 30, WS_SIZE)
        a.I("s_barrier")
        self.master()
        a.I("s_branch L_h_go")
        a.label("L_modrest")
        a.fence(2)
        self.zero_flag()
        self.srd(40, 30, WS_SIZE)
        a.I(f"s_mov_b32 s54, 0x{LOG2E:x}")
        a.I("s_mul_i32 s47, s44, 320")
        a.I(f"s_add_u32 s47, s47, {L_ACT}")
        a.I("v_mul_u32_u24 v40, 1344, v17")
        a.I("v_mad_u32_u24 v40, v18, 20, v40")
        a.I("v_add_u32 v40, s47, v40")
        a.I("s_waitcnt vmcnt(20)")
        for jj in range(5):
            lo, hi = 46, 47
            self.unpack(30 + jj, lo, hi)
            for r in (lo, hi):
                a.I(f"v_mul_f32 v48, s54, v{r}")
                a.I("v_exp_f32 v48, -v48")
                a.I("v_add_f32 v48, 1.0, v48")
                a.I("v_min_f32 v48, 0x7f7fffff, v48")
                a.I("v_rcp_f32 v49, v48")
                self.div_by(r, 48, 49, 50)
            a.I(f"v_cvt_pk_bf16_f32 v46, v46, v47")
            a.I(f"ds_write_b32 v40, v46 offset:{4*jj}")
        self.tr_addr128(10, 6, 7)
        a.I("s_lshl_b32 s45, s44, 5")
        a.I("v_xor_b32 v10, s45, v10")
        a.I(f"v_add_u32 v10, {L_W}, v10")
        a.I(f"v_add_u32 v11, {10*4096}, v10")
        self.act_addr(14, 1344, 6)
        a.I("s_waitcnt vmcnt(0) lgkmcnt(0)")
        self.stamp(7)
        a.I("s_barrier")
        self.mfma_chain2(10, 10, 11, 4096, 512, 14, 64, 68)
        for k in range(4):
            a.I(f"v_add_f32 v{64+k}, v{64+k}, v{68+k}")
        a.I("v_cvt_pk_bf16_f32 v64, v64, v65")
        a.I("v_cvt_pk_bf16_f32 v65, v66, v67")
        self.canon([64, 65], 44)
        a.I("v_and_b32 v6, 3, v5")
        a.I("v_mul_u32_u24 v6, 7680, v6")
        a.I("v_lshrrev_b32 v7, 4, v5")
        a.I("v_lshl_add_u32 v6, v7, 3, v6")
        a.I(f"s_lshl_b32 s45, s{S_BAND}, 7")
        a.I("s_lshl_b32 s47, s44, 5")
        a.I("s_add_u32 s47, s47, s45")
        a.I(f"s_mov_b32 exec_lo, 0x{MASK_N4_LO:x}")
        a.I(f"s_mov_b32 exec_hi, 0x{MASK_N4_LO:x}")
        a.I("buffer_store_dwordx2 v[64:65], v6, s[40:43], s47 offen sc1")
        a.I("s_mov_b64 exec, -1")
        self.stamp(12)
        a.label("L_h_go")
        a.fence(2)
        a.I("s_cmp_lg_u32 s44, 0")
        a.I("s_cbranch_scc1 L_go_skip")
        self.poll_go("L_go1", 6, 7, 1 if self.cfg.gate == 2 else 2)
        a.label("L_go_skip")
        if self.cfg.gate:
            a.I("s_barrier")
        a.I("s_branch L_h_q")
        a.label("L_qrest")
        a.fence(2)
        self.zero_flag()
        self.srd(40, 30, WS_SIZE)
        a.I("s_waitcnt vmcnt(11)")
        for jj in range(5):
            self.unpack(35 + jj, 40 + 2 * jj, 41 + 2 * jj)
        a.I("v_add_f32 v6, v40, v41")
        for k in range(42, 50):
            a.I(f"v_add_f32 v6, v6, v{k}")
        self.wave_sum_bcast(6, 46)
        a.I("v_mov_b32 v6, 0x3acccccd")
        a.I("v_mul_f32 v50, s46, v6")
        a.I("v_mov_b32 v7, 0")
        for k in range(40, 50):
            a.I(f"v_sub_f32 v51, v{k}, v50")
            a.I("v_fmac_f32 v7, v51, v51")
        self.wave_sum_bcast(7, 46)
        a.I("v_mul_f32 v52, s46, v6")
        self.ln_denom(52, 53)
        a.I("v_cvt_pk_bf16_f32 v50, v50, v50")
        a.I("v_lshlrev_b32 v50, 16, v50")
        a.I("s_lshl_b32 s45, s44, 3")
        a.I(f"s_add_u32 s45, s45, {L_LNST}")
        a.I("v_mov_b32 v6, s45")
        a.I("ds_write_b32 v6, v50")
        a.I("ds_write_b32 v6, v52 offset:4")
        a.I("s_waitcnt vmcnt(0) lgkmcnt(0)")
        self.stamp(7)
        a.I("s_barrier")
        a.I("v_lshlrev_b32 v6, 3, v17")
        a.I(f"ds_read_b64 v[56:57], v6 offset:{L_LNST}")
        xr = list(range(60, 68))
        for k in range(4):
            self.unpack(28 + k, 60 + 2 * k, 61 + 2 * k)
        a.I("v_mul_u32_u24 v40, 7680, v17")
        a.I("v_lshl_add_u32 v40, v18, 4, v40")
        a.I("s_mul_i32 s47, s44, 160")
        a.I(f"s_add_u32 s47, s47, {L_ACT}")
        a.I("v_mul_u32_u24 v41, 704, v17")
        a.I("v_lshl_add_u32 v41, v18, 4, v41")
        a.I("v_add_u32 v41, s47, v41")
        a.I("s_waitcnt lgkmcnt(0)")
        for r in xr:
            a.I(f"v_sub_f32 v{r}, v{r}, v56")
        self.bf16_round(xr, 58)
        a.I("v_rcp_f32 v58, v57")
        for r in xr:
            self.div_by(r, 57, 58, 59)
        self.bf16_round(xr, 58)
        self.tr_addr128(10, 6, 7)
        a.I("s_lshl_b32 s45, s44, 5")
        a.I("v_xor_b32 v10, s45, v10")
        a.I(f"v_add_u32 v10, {L_W}, v10")
        self.act_addr(14, 704, 6)
        a.I("v_and_b32 v6, 15, v5")
        a.I("v_cmp_gt_u32 s[50:51], 10, v6")
        self.stamp(16)
        self.poll_go("L_go2", 6, 7, 1)
        if self.cfg.gate == 2:
            a.I("s_barrier")
        self.stamp(18)
        a.I(f"s_add_u32 s46, s63, {WS_MOD}")
        a.I(f"s_add_u32 s47, s63, {WS_MOD + 1280}")
        loads = ["buffer_load_dwordx4 v[28:31], v40, s[40:43], s46 offen sc1",
                 "buffer_load_dwordx4 v[32:35], v40, s[40:43], s47 offen sc1"]
        self.poll(loads, list(range(28, 36)), "L_pmod", pre=6)
        self.stamp(14)
        ca = list(range(44, 52))
        for k in range(4):
            self.unpack(32 + k, 44 + 2 * k, 45 + 2 * k)
        for r in ca:
            a.I(f"v_add_f32 v{r}, 1.0, v{r}")
        self.bf16_round(ca, 6)
        for k in range(8):
            a.I(f"v_mul_f32 v{60+k}, v{60+k}, v{44+k}")
        self.bf16_round(xr, 6)
        for k in range(4):
            self.unpack(28 + k, 44 + 2 * k, 45 + 2 * k)
        for k in range(8):
            a.I(f"v_add_f32 v{60+k}, v{60+k}, v{44+k}")
        for k in range(4):
            a.I(f"v_cvt_pk_bf16_f32 v{44+k}, v{60+2*k}, v{61+2*k}")
        a.I("s_mov_b64 exec, s[50:51]")
        a.I("ds_write_b128 v41, v[44:47]")
        a.I("s_mov_b64 exec, -1")
        if self.cfg.gate == 1:
            a.I("s_waitcnt lgkmcnt(0)")
            a.I("s_barrier")
        else:
            self.hsync(2, "L_hs2", 6, 16)
        self.stamp(17)
        self.mfma_chain(10, 10, 4096, 512, 14, 64)
        self.canon([64, 65, 66, 67], 44)
        a.I("v_and_b32 v6, 3, v5")
        a.I("v_mul_u32_u24 v6, 24576, v6")
        a.I("v_lshrrev_b32 v7, 4, v5")
        a.I("v_lshl_add_u32 v6, v7, 4, v6")
        a.I(f"s_mul_i32 s45, s{S_KH}, {4*24576}")
        a.I(f"s_lshl_b32 s47, s{S_BAND}, 8")
        a.I("s_add_u32 s47, s47, s45")
        a.I("s_lshl_b32 s45, s44, 6")
        a.I("s_add_u32 s47, s47, s45")
        a.I(f"s_add_u32 s47, s47, {WS_Q}")
        a.I(f"s_mov_b32 exec_lo, 0x{MASK_N4_LO:x}")
        a.I(f"s_mov_b32 exec_hi, 0x{MASK_N4_LO:x}")
        a.I("buffer_store_dwordx4 v[64:67], v6, s[40:43], s47 offen sc1")
        a.I("s_mov_b64 exec, -1")
        self.stamp(12)
        a.label("L_h_q")
        a.fence(2)
        self.roles_rest()
        self.srd(40, 30, WS_SIZE)
        a.I("s_cmp_lg_u32 s44, 0")
        a.I("s_cbranch_scc1 L_hb1")
        a.I(f"s_cmp_eq_u32 s{S_LATE}, 2")
        a.I("s_cbranch_scc1 L_go3_skip")
        self.poll_go("L_go3", 6, 7, 2)
        a.label("L_go3_skip")
        self.stamp(19)
        a.I("v_and_b32 v6, 31, v5")
        a.I("v_mul_u32_u24 v11, 12, v6")
        a.I("v_lshlrev_b32 v6, 1, v11")
        a.I("s_mul_i32 s45, s57, 24576")
        a.I("s_mul_i32 s46, s58, 768")
        a.I("s_add_u32 s46, s45, s46")
        a.I(f"s_add_u32 s46, s46, {WS_Q}")
        a.I(f"s_add_u32 s47, s46, {4*24576}")
        self.poll(["buffer_load_dwordx3 v[12:14], v6, s[40:43], s46 offen sc1",
                   "buffer_load_dwordx3 v[16:18], v6, s[40:43], s46 offen offset:12 sc1",
                   "buffer_load_dwordx3 v[20:22], v6, s[40:43], s47 offen sc1",
                   "buffer_load_dwordx3 v[24:26], v6, s[40:43], s47 offen offset:12 sc1"],
                  [12, 13, 14, 16, 17, 18, 20, 21, 22, 24, 25, 26], "L_pq", pre=7)
        for k in range(3):
            a.I(f"v_add_f32 v{12+k}, v{12+k}, v{20+k}")
            a.I(f"v_add_f32 v{16+k}, v{16+k}, v{24+k}")
        a.I("v_cvt_pk_bf16_f32 v8, v12, v13")
        a.I("v_cvt_pk_bf16_f32 v9, v14, v16")
        a.I("v_cvt_pk_bf16_f32 v10, v17, v18")
        a.I(f"ds_write_b32 v11, v8 offset:{L_QV}")
        a.I(f"ds_write_b32 v11, v9 offset:{L_QV+4}")
        a.I(f"ds_write_b32 v11, v10 offset:{L_QV+8}")
        a.I("s_waitcnt lgkmcnt(0)")
        a.label("L_hb1")
        self.stamp(1)
        a.I("s_barrier")
        self.stamp(2)
        if self.cfg.hop2:
            self.nseg = a.hops_end("L_warm2_ret")
        if self.cfg.hop:
            a.I("s_cmp_eq_u32 s44, 0")
            a.I("s_cbranch_scc1 L_late_done")
            a.I("s_mov_b64 exec, 0")
            a.I("s_cmp_eq_u32 s44, 1")
            a.I("s_cbranch_scc1 L_hopA_0")
            a.I("s_cmp_eq_u32 s44, 2")
            a.I("s_cbranch_scc1 L_hopB_0")
            a.I("s_branch L_hopC_0")
            a.label("L_warm_ret")
            a.I("s_mov_b64 exec, -1")
            self.stamp(22)
        if self.cfg.pf == 2:
            a.label("L_late_pf")
            self.prefetch_weights()
        a.label("L_late_done")
        a.fence(2)
        a.I("s_barrier")
        self.stamp(4)
        a.I("s_cmp_lg_u32 s44, 0")
        a.I("s_cbranch_scc1 L_hb3")
        self.ml_exchange()
        a.label("L_hb3")
        self.stamp(5)
        a.I("s_barrier")
        self.stamp(6)
        if self.cfg.early_w != 1:
            a.I("s_cmp_lg_u32 s44, 0")
            a.I("s_cbranch_scc1 L_tk_done")
            a.I(f"v_mov_b32 v6, {L_FIN}")
            a.I("s_mov_b32 s62, 0")
            a.label("L_tk_wait")
            a.I("ds_read_b32 v7, v6 offset:12")
            a.I("s_add_u32 s62, s62, 1")
            a.I("s_waitcnt lgkmcnt(0)")
            a.I("v_readfirstlane_b32 s45, v7")
            a.I("s_cmp_eq_u32 s45, 1")
            a.I("s_cbranch_scc1 L_tk_go")
            a.I(f"s_cmp_lt_u32 s62, {SPIN_MAX*16}")
            a.I("s_cbranch_scc1 L_tk_wait")
            a.label("L_tk_go")
            a.I("s_mov_b64 exec, 1")
            a.I("v_mov_b32 v7, 8")
            a.I("v_mov_b32 v8, 1")
            a.I("global_atomic_add v9, v7, v8, s[28:29] sc0 sc1")
            a.I("s_waitcnt vmcnt(0)")
            a.I("ds_write_b32 v6, v9 offset:8")
            a.I("s_waitcnt lgkmcnt(0)")
            a.I("s_mov_b64 exec, -1")
            a.label("L_tk_done")
            a.fence(2)
        if self.cfg.pf == 1:
            self.prefetch_weights()
        if self.cfg.early_w:
            a.I("s_cmp_eq_u32 s44, 0")
            a.I("s_cbranch_scc1 L_vw_done")
            if self.cfg.early_w == 2:
                a.I("s_setprio 0")
                a.I(f"v_mov_b32 v6, {L_FIN}")
                a.I("s_mov_b32 s62, 0")
                a.label("L_tkw")
                a.I("ds_read_b32 v7, v6 offset:8")
                a.I("ds_read_b32 v8, v6 offset:16")
                a.I("s_add_u32 s62, s62, 1")
                a.I("s_waitcnt lgkmcnt(0)")
                a.I("v_readfirstlane_b32 s45, v7")
                a.I("v_readfirstlane_b32 s46, v8")
                a.I("s_cmp_eq_u32 s45, -1")
                a.I("s_cselect_b32 s46, 0, s46")
                a.I("s_cmp_eq_u32 s46, 1")
                a.I("s_cbranch_scc1 L_tkw_ok")
                a.I(f"s_cmp_lt_u32 s62, {SPIN_MAX*16}")
                a.I("s_cbranch_scc1 L_tkw")
                a.label("L_tkw_ok")
            self.roles_from_ticket("v")
            self.v_weights()
            a.label("L_vw_done")
            a.fence(2)
        a.I("s_barrier")
        self.stamp(8)

    def dma_loop(self, srd, n, vE, vO, lds_reg, soff_reg, step, label, cnt=63, window=0, pol=None):
        a = self.a
        a.I(f"s_mov_b32 s{cnt}, {n // 2}")
        a.label(label)
        for v in (vE, vO):
            if window:
                a.I(f"s_waitcnt vmcnt({window - 1})")
            a.I(f"s_mov_b32 m0, s{lds_reg}")
            a.I(f"s_add_u32 s{lds_reg}, s{lds_reg}, 1024")
            a.I(f"buffer_load_dwordx4 v{v}, s[{srd}:{srd+3}], s{soff_reg} offen {self.cfg.ntW if pol is None else pol} lds")
            a.I(f"s_add_u32 s{soff_reg}, s{soff_reg}, {step}")
        a.I(f"s_sub_u32 s{cnt}, s{cnt}, 1")
        a.I(f"s_cmp_lg_u32 s{cnt}, 0")
        a.I(f"s_cbranch_scc1 {label}")

    def mfma_chain2(self, nks, vA0, vA1, stepA, half_off, vB, d0, d1):
        a = self.a
        DEPTH = 2

        def issue(ks):
            b = 80 + 16 * (ks % DEPTH)
            a.I(f"ds_read_b64_tr_b16 v[{b}:{b+1}], v{vA0} offset:{stepA*ks}")
            a.I(f"ds_read_b64_tr_b16 v[{b+2}:{b+3}], v{vA0} offset:{stepA*ks + half_off}")
            a.I(f"ds_read_b128 v[{b+4}:{b+7}], v{vB} offset:{64*ks}")
            a.I(f"ds_read_b64_tr_b16 v[{b+8}:{b+9}], v{vA1} offset:{stepA*ks}")
            a.I(f"ds_read_b64_tr_b16 v[{b+10}:{b+11}], v{vA1} offset:{stepA*ks + half_off}")
            a.I(f"ds_read_b128 v[{b+12}:{b+15}], v{vB} offset:{64*(nks+ks)}")
        for ks in range(DEPTH):
            issue(ks)
        for ks in range(nks):
            left = min(nks - 1 - ks, DEPTH - 1)
            a.I(f"s_waitcnt lgkmcnt({6*left})")
            b = 80 + 16 * (ks % DEPTH)
            c0 = "0" if ks == 0 else f"v[{d0}:{d0+3}]"
            c1 = "0" if ks == 0 else f"v[{d1}:{d1+3}]"
            a.I(f"v_mfma_f32_16x16x32_bf16 v[{d0}:{d0+3}], v[{b}:{b+3}], v[{b+4}:{b+7}], {c0}")
            a.I(f"v_mfma_f32_16x16x32_bf16 v[{d1}:{d1+3}], v[{b+8}:{b+11}], v[{b+12}:{b+15}], {c1}")
            if ks + DEPTH < nks:
                issue(ks + DEPTH)

    def mfma_chain(self, nks, vA, stepA, half_off, vB, dreg):
        a = self.a
        DEPTH = 4

        def issue(ks):
            b = 80 + 8 * (ks % DEPTH)
            a.I(f"ds_read_b64_tr_b16 v[{b}:{b+1}], v{vA} offset:{stepA*ks}")
            a.I(f"ds_read_b64_tr_b16 v[{b+2}:{b+3}], v{vA} offset:{stepA*ks + half_off}")
            a.I(f"ds_read_b128 v[{b+4}:{b+7}], v{vB} offset:{64*ks}")
        for ks in range(min(DEPTH, nks)):
            issue(ks)
        for ks in range(nks):
            left = min(nks - 1 - ks, DEPTH - 1)
            a.I(f"s_waitcnt lgkmcnt({3*left})")
            b = 80 + 8 * (ks % DEPTH)
            c = "0" if ks == 0 else f"v[{dreg}:{dreg+3}]"
            a.I(f"v_mfma_f32_16x16x32_bf16 v[{dreg}:{dreg+3}], v[{b}:{b+3}], v[{b+4}:{b+7}], {c}")
            if ks + DEPTH < nks:
                issue(ks + DEPTH)

    def dma_band128(self, srd, rowstride, ninstr, vE, vO, lds_base_sreg, soff_reg, tag):
        a = self.a
        for i in range(ninstr):
            a.I(f"s_mov_b32 m0, s{lds_base_sreg}")
            v = vO if i & 1 else vE
            a.I(f"s_add_u32 s{lds_base_sreg}, s{lds_base_sreg}, 1024")
            a.I(f"buffer_load_dwordx4 v{v}, s[{srd}:{srd+3}], s{soff_reg} offen {self.cfg.ntW} lds")
            if i + 1 < ninstr:
                a.I(f"s_add_u32 s{soff_reg}, s{soff_reg}, {8*rowstride}")

    def dma_voff128(self, rowstride, vE, vO, t0, t1):
        a = self.a
        a.I(f"v_lshrrev_b32 v{t0}, 3, v5")
        a.I(f"v_bfe_u32 v{t1}, v5, 4, 1")
        a.I(f"v_lshlrev_b32 v{t1}, 5, v{t1}")
        a.I(f"v_and_b32 v{vE}, 7, v5")
        a.I(f"v_lshlrev_b32 v{vE}, 4, v{vE}")
        a.I(f"v_xor_b32 v{vE}, v{vE}, v{t1}")
        a.I(f"v_xor_b32 v{vO}, 64, v{vE}")
        a.I(f"s_mov_b32 s45, {rowstride}")
        a.I(f"v_mul_lo_u32 v{t0}, s45, v{t0}")
        a.I(f"v_add_u32 v{vE}, v{vE}, v{t0}")
        a.I(f"v_add_u32 v{vO}, v{vO}, v{t0}")

    def tr_addr128(self, vdst, t0, t1):
        a = self.a
        a.I(f"v_lshrrev_b32 v{t0}, 4, v5")
        a.I(f"v_bfe_u32 v{t1}, v5, 2, 2")
        a.I(f"v_lshl_add_u32 v{vdst}, v{t0}, 3, v{t1}")
        a.I(f"v_lshlrev_b32 v{vdst}, 7, v{vdst}")
        a.I(f"v_and_b32 v{t0}, 1, v{t0}")
        a.I(f"v_lshlrev_b32 v{t0}, 6, v{t0}")
        a.I(f"v_bfe_u32 v{t1}, v5, 3, 1")
        a.I(f"v_lshlrev_b32 v{t1}, 5, v{t1}")
        a.I(f"v_or3_b32 v{vdst}, v{vdst}, v{t0}, v{t1}")
        a.I(f"v_and_b32 v{t0}, 3, v5")
        a.I(f"v_lshl_add_u32 v{vdst}, v{t0}, 3, v{vdst}")

    def act_addr(self, vdst, stride, t0):
        a = self.a
        a.I(f"v_and_b32 v{t0}, 3, v5")
        a.I(f"v_mul_u32_u24 v{vdst}, {stride}, v{t0}")
        a.I(f"v_lshrrev_b32 v{t0}, 4, v5")
        a.I(f"v_lshl_add_u32 v{vdst}, v{t0}, 4, v{vdst}")

    def ml_exchange(self):
        a = self.a
        a.I("v_and_b32 v6, 7, v5")
        a.I("v_lshlrev_b32 v6, 3, v6")
        a.I(f"ds_read_b64 v[8:9], v6 offset:{L_STATS}")
        a.I(f"s_mov_b32 s54, 0x{LOG2E:x}")
        a.I("s_waitcnt lgkmcnt(0)")
        a.I("v_mov_b32 v10, v8")
        a.I("v_max_f32_dpp v10, v10, v10 quad_perm:[1,0,3,2] row_mask:0xf bank_mask:0xf")
        a.I("v_max_f32_dpp v10, v10, v10 quad_perm:[2,3,0,1] row_mask:0xf bank_mask:0xf")
        a.I("v_max_f32_dpp v10, v10, v10 row_half_mirror row_mask:0xf bank_mask:0xf")
        a.I("v_sub_f32 v11, v8, v10")
        a.I("v_mul_f32 v11, s54, v11")
        a.I("v_exp_f32 v11, v11")
        a.I("v_mul_f32 v11, v11, v9")
        a.I("v_add_f32_dpp v11, v11, v11 quad_perm:[1,0,3,2] row_mask:0xf bank_mask:0xf")
        a.I("v_add_f32_dpp v11, v11, v11 quad_perm:[2,3,0,1] row_mask:0xf bank_mask:0xf")
        a.I("v_add_f32_dpp v11, v11, v11 row_half_mirror row_mask:0xf bank_mask:0xf")
        self.canon([10, 11], 12)
        a.I("s_lshl_b32 s45, s2, 7")
        a.I(f"s_add_u32 s45, s45, {WS_ML}")
        a.I("v_mov_b32 v6, 0")
        a.I("s_mov_b64 exec, 1")
        a.I("buffer_store_dwordx2 v[10:11], v6, s[40:43], s45 offen sc1")
        if self.cfg.early_w == 1:
            a.I("v_mov_b32 v7, 8")
            a.I("v_mov_b32 v18, 1")
            a.I("global_atomic_add v19, v7, v18, s[28:29] sc0 sc1")
        a.I("s_mov_b64 exec, -1")
        a.I(f"s_xor_b32 s46, s2, {self.cfg.xp or 32}")
        a.I("s_lshl_b32 s46, s46, 7")
        a.I(f"s_add_u32 s46, s46, {WS_ML}")
        self.poll(["buffer_load_dwordx2 v[12:13], v6, s[40:43], s46 offen sc1"], [12, 13], "L_pml", pre=7)
        a.I("v_max_f32 v14, v10, v12")
        a.I("v_sub_f32 v15, v10, v14")
        a.I("v_sub_f32 v16, v12, v14")
        a.I("v_mul_f32 v15, s54, v15")
        a.I("v_mul_f32 v16, s54, v16")
        a.I("v_exp_f32 v15, v15")
        a.I("v_exp_f32 v16, v16")
        a.I("v_mul_f32 v15, v15, v11")
        a.I("v_mul_f32 v16, v16, v13")
        a.I("v_add_f32 v15, v15, v16")
        a.I("v_rcp_f32 v16, v15")
        a.I("v_fma_f32 v17, -v15, v16, 1.0")
        a.I("v_fma_f32 v16, v17, v16, v16")
        a.I(f"v_mov_b32 v6, {L_FIN}")
        a.I("ds_write_b32 v6, v14")
        a.I("ds_write_b32 v6, v16 offset:4")
        if self.cfg.early_w != 1:
            a.I("v_mov_b32 v17, 0")
            a.I("ds_write_b32 v6, v17 offset:12")
            a.I("ds_write_b32 v6, v17 offset:16")
            a.I("v_mov_b32 v17, -1")
            a.I("ds_write_b32 v6, v17 offset:8")
        if self.cfg.early_w == 1:
            a.I("s_mov_b64 exec, 1")
            a.I("ds_write_b32 v6, v19 offset:8")
            a.I("s_mov_b64 exec, -1")
        a.I("s_waitcnt lgkmcnt(0)")

    def post(self):
        a = self.a
        a.label("L_post")
        a.hops_begin("L_hopA", self.cfg.hop)
        a.fence(4)
        a.I("s_setprio 0")
        a.I("v_and_b32 v5, 63, v0")
        a.I("s_cmp_lg_u32 s44, 0")
        a.I("s_cbranch_scc1 L_o_done")
        a.I("v_lshlrev_b32 v6, 4, v5")
        a.I("s_mov_b32 exec_lo, -1"); a.I("s_mov_b32 exec_hi, 0xffff")
        for w in range(8):
            a.I(f"ds_read_b128 v[{8+4*w}:{11+4*w}], v6 offset:{L_OPART+768*w}")
        for w in range(1, 8):
            a.I(f"s_waitcnt lgkmcnt({7-w})")
            for k in range(4):
                a.I(f"v_add_f32 v{8+k}, v{8+k}, v{8+4*w+k}")
        self.canon([8, 9, 10, 11], 12)
        a.I("s_lshl_b32 s45, s57, 5")
        a.I("s_add_u32 s45, s45, s58")
        a.I("s_lshl_b32 s45, s45, 1")
        a.I("s_add_u32 s45, s45, s59")
        a.I("s_mul_i32 s45, s45, 768")
        a.I(f"s_add_u32 s45, s45, {WS_O}")
        a.I("buffer_store_dwordx4 v[8:11], v6, s[40:43], s45 offen sc1")
        a.I("s_mov_b64 exec, -1")
        a.label("L_o_done")
        a.fence(2)
        self.roles_from_ticket()
        a.I(f"s_cmp_eq_u32 s{S_POST}, 0")
        a.I("s_cbranch_scc1 L_tail")
        if self.cfg.obar:
            a.I("s_barrier")
        a.I(f"s_cmp_eq_u32 s{S_POST}, 1")
        a.I("s_cbranch_scc0 L_post23")
        self.post_wo()
        a.I("s_branch L_tail")
        a.hops_end("L_warm_ret")
        a.label("L_post23")
        a.hops_begin("L_hopB", self.cfg.hop)
        a.fence(2)
        self.post_gu()
        a.I(f"s_cmp_lt_u32 s{S_DT}, 40")
        a.I("s_cbranch_scc0 L_tail")
        a.hops_end("L_warm_ret")
        a.hops_begin("L_hopC", self.cfg.hop)
        self.post_final()
        a.hops_end("L_warm_ret")

    def red_lane_addr(self, vdst, t):
        a = self.a
        a.I(f"v_lshrrev_b32 v{vdst}, 4, v5")
        a.I(f"v_and_b32 v{t}, 3, v5")
        a.I(f"v_lshl_add_u32 v{vdst}, v{vdst}, 2, v{t}")
        a.I(f"v_lshlrev_b32 v{vdst}, 4, v{vdst}")

    def write_red(self, dreg, vaddr):
        a = self.a
        a.I("s_lshl_b32 s45, s44, 8")
        a.I(f"s_add_u32 s45, s45, {L_RED}")
        a.I(f"v_add_u32 v{vaddr}, s45, v{vaddr}")
        a.I(f"s_mov_b32 exec_lo, 0x{MASK_N4_LO:x}")
        a.I(f"s_mov_b32 exec_hi, 0x{MASK_N4_LO:x}")
        a.I(f"ds_write_b128 v{vaddr}, v[{dreg}:{dreg+3}]")
        a.I("s_mov_b64 exec, -1")
        a.I("s_waitcnt lgkmcnt(0)")
        a.I("s_barrier")

    def mfma_run(self, nks, vA, offA, stepA, half_off, vB, dreg, first_reg=40):
        a = self.a
        for ks in range(nks):
            b = first_reg + 8 * ks
            a.I(f"ds_read_b64_tr_b16 v[{b}:{b+1}], v{vA} offset:{offA + stepA*ks}")
            a.I(f"ds_read_b64_tr_b16 v[{b+2}:{b+3}], v{vA} offset:{offA + stepA*ks + half_off}")
            a.I(f"ds_read_b128 v[{b+4}:{b+7}], v{vB} offset:{64*ks}")
        for ks in range(nks):
            b = first_reg + 8 * ks
            a.I(f"s_waitcnt lgkmcnt({min(15, 3*(nks-1-ks))})")
            c = "0" if ks == 0 else f"v[{dreg}:{dreg+3}]"
            a.I(f"v_mfma_f32_16x16x32_bf16 v[{dreg}:{dreg+3}], v[{b}:{b+3}], v[{b+4}:{b+7}], {c}")

    def mfma_preread(self, n, vA, stepA, half_off, first):
        a = self.a
        for ks in range(n):
            b = first + 4 * ks
            a.I(f"ds_read_b64_tr_b16 v[{b}:{b+1}], v{vA} offset:{stepA*ks}")
            a.I(f"ds_read_b64_tr_b16 v[{b+2}:{b+3}], v{vA} offset:{stepA*ks + half_off}")

    def mfma_with_b(self, n, firstA, vB, firstB, dreg):
        a = self.a
        for ks in range(n):
            b = firstB + 4 * ks
            a.I(f"ds_read_b128 v[{b}:{b+3}], v{vB} offset:{64*ks}")
        for ks in range(n):
            a.I(f"s_waitcnt lgkmcnt({n-1-ks})")
            c = "0" if ks == 0 else f"v[{dreg}:{dreg+3}]"
            a.I(f"v_mfma_f32_16x16x32_bf16 v[{dreg}:{dreg+3}], v[{firstA+4*ks}:{firstA+4*ks+3}], v[{firstB+4*ks}:{firstB+4*ks+3}], {c}")

    def post_wo(self):
        a = self.a
        if not self.cfg.early_w:
            a.I(f"s_mul_i32 s45, s{S_KG}, {768*1280}")
            a.I(f"s_lshl_b32 s46, s{S_NB}, 7")
            a.I("s_add_u32 s47, s45, s46")
            self.srd(32, 12, 768 * 1280, off=47)
            self.dma_voff128(1280, 8, 9, 6, 7)
            a.I(f"s_mul_i32 s46, s44, {64*1280}")
            a.I("s_lshl_b32 s47, s44, 13")
            a.I(f"s_add_u32 s47, s47, {L_W}")
            self.dma_loop(32, 8, 8, 9, 47, 46, 8 * 1280, "L_wo_dma")
        a.I("s_mul_i32 s45, s44, 21846")
        a.I("s_lshr_b32 s45, s45, 16")
        a.I("s_mul_i32 s46, s45, 3")
        a.I("s_sub_u32 s46, s44, s46")
        a.I("s_lshl_b32 s46, s46, 6")
        a.I("v_add_u32 v10, s46, v5")
        a.I("v_mul_u32_u24 v11, 1366, v10")
        a.I("v_lshrrev_b32 v11, 16, v11")
        a.I("v_mul_u32_u24 v12, 48, v11")
        a.I("v_sub_u32 v12, v10, v12")
        a.I("v_mul_u32_u24 v11, 1536, v11")
        a.I("v_lshl_add_u32 v11, v12, 4, v11")
        a.I("s_lshl_b32 s63, s45, 5")
        a.I(f"s_lshl_b32 s46, s{S_KG}, 2")
        a.I("s_add_u32 s63, s63, s46")
        a.I("s_mul_i32 s63, s63, 1536")
        a.I(f"s_add_u32 s63, s63, {WS_O}")
        a.I("s_mul_i32 s46, s45, 1600")
        a.I(f"s_add_u32 s46, s46, {L_ACT}")
        a.I("v_lshl_add_u32 v13, v10, 3, s46")
        self.tr_addr128(14, 6, 7)
        a.I("s_and_b32 s45, s44, 3")
        a.I("s_lshl_b32 s45, s45, 5")
        a.I("v_xor_b32 v14, s45, v14")
        a.I("s_lshr_b32 s45, s44, 2")
        a.I("s_lshl_b32 s46, s45, 15")
        a.I(f"s_add_u32 s46, s46, {L_W}")
        a.I("v_add_u32 v14, s46, v14")
        self.act_addr(15, 1600, 6)
        a.I("s_lshl_b32 s46, s45, 9")
        a.I(f"s_add_u32 s46, s46, {L_ACT}")
        a.I("v_add_u32 v15, s46, v15")
        self.red_lane_addr(16, 6)
        a.I("v_and_b32 v17, 3, v5")
        a.I("v_mul_u32_u24 v17, 2560, v17")
        a.I("v_lshrrev_b32 v7, 2, v5")
        a.I("v_lshl_add_u32 v17, v7, 4, v17")
        a.I("s_waitcnt vmcnt(0)")
        a.I("s_barrier")
        self.stamp(9)
        if self.cfg.p2:
            def seed():
                self.mfma_preread(8, 14, 4096, 512, 40)
                if self.cfg.p2 > 1: a.I(f"s_sleep {self.cfg.p2}")
            self.poll2(["buffer_load_dwordx4 v[20:23], v11, s[40:43], s63 offen sc1",
                        "buffer_load_dwordx4 v[24:27], v11, s[40:43], s63 offen offset:768 sc1"], list(range(20, 28)),
                       ["buffer_load_dwordx4 v[104:107], v11, s[40:43], s63 offen sc1",
                        "buffer_load_dwordx4 v[108:111], v11, s[40:43], s63 offen offset:768 sc1"], list(range(104, 112)),
                       "L_po", 6, seed)
        else:
            self.mfma_preread(8, 14, 4096, 512, 40)
            self.poll(["buffer_load_dwordx4 v[20:23], v11, s[40:43], s63 offen sc1",
                       "buffer_load_dwordx4 v[24:27], v11, s[40:43], s63 offen offset:768 sc1"],
                      list(range(20, 28)), "L_po", pre=6)
        self.stamp(10)
        for k in range(4):
            a.I(f"v_add_f32 v{20+k}, v{20+k}, v{24+k}")
        a.I("v_cvt_pk_bf16_f32 v20, v20, v21")
        a.I("v_cvt_pk_bf16_f32 v21, v22, v23")
        a.I("ds_write_b64 v13, v[20:21]")
        a.I("s_waitcnt lgkmcnt(0)")
        a.I("s_barrier")
        self.mfma_with_b(8, 40, 15, 72, 20)
        self.write_red(20, 16)
        a.I("s_cmp_lg_u32 s44, 0")
        a.I("s_cbranch_scc1 L_wo_done")
        a.I("v_lshlrev_b32 v6, 4, v5")
        for kt in range(3):
            a.I(f"ds_read_b128 v[{20+4*kt}:{23+4*kt}], v6 offset:{L_RED + 1024*kt}")
        a.I(f"s_mul_i32 s45, s{S_KG}, 10240")
        a.I(f"s_lshl_b32 s46, s{S_NB}, 8")
        a.I("s_add_u32 s45, s45, s46")
        a.I(f"s_add_u32 s45, s45, {WS_Y}")
        a.I("s_waitcnt lgkmcnt(0)")
        for k in range(4):
            a.I(f"v_add_f32 v{20+k}, v{20+k}, v{24+k}")
        for k in range(4):
            a.I(f"v_add_f32 v{20+k}, v{20+k}, v{28+k}")
        self.canon([20, 21, 22, 23], 12)
        a.I("buffer_store_dwordx4 v[20:23], v17, s[40:43], s45 offen sc1")
        a.label("L_wo_done")
        self.stamp(11)

    def dma_band64(self, srd, rowstride, ninstr, v, lds_reg, soff_reg):
        a = self.a
        for i in range(ninstr):
            a.I(f"s_mov_b32 m0, s{lds_reg}")
            a.I(f"s_add_u32 s{lds_reg}, s{lds_reg}, 1024")
            a.I(f"buffer_load_dwordx4 v{v}, s[{srd}:{srd+3}], s{soff_reg} offen {self.cfg.ntW} lds")
            if i + 1 < ninstr:
                a.I(f"s_add_u32 s{soff_reg}, s{soff_reg}, {16*rowstride}")

    def dma_voff64(self, rowstride, v, t0, t1):
        a = self.a
        a.I(f"v_lshrrev_b32 v{t0}, 2, v5")
        a.I(f"v_bfe_u32 v{t1}, v5, 5, 1")
        a.I(f"v_lshlrev_b32 v{t1}, 5, v{t1}")
        a.I(f"v_and_b32 v{v}, 3, v5")
        a.I(f"v_lshlrev_b32 v{v}, 4, v{v}")
        a.I(f"v_xor_b32 v{v}, v{v}, v{t1}")
        a.I(f"v_mul_u32_u24 v{t0}, {rowstride}, v{t0}")
        a.I(f"v_add_u32 v{v}, v{v}, v{t0}")

    def tr_addr64(self, vdst, t0, t1):
        a = self.a
        a.I(f"v_lshrrev_b32 v{t0}, 4, v5")
        a.I(f"v_bfe_u32 v{t1}, v5, 2, 2")
        a.I(f"v_lshl_add_u32 v{vdst}, v{t0}, 3, v{t1}")
        a.I(f"v_lshlrev_b32 v{vdst}, 6, v{vdst}")
        a.I(f"v_and_b32 v{t0}, 1, v{t0}")
        a.I(f"v_lshl_or_b32 v{vdst}, v{t0}, 5, v{vdst}")
        a.I(f"v_and_b32 v{t0}, 3, v5")
        a.I(f"v_lshl_add_u32 v{vdst}, v{t0}, 3, v{vdst}")

    def x1_from_y(self, vy_addr_soff, yregs, ga, xr, out, t):
        a = self.a
        for k in range(4):
            a.I(f"v_add_f32 v{out+k}, v{yregs+k}, v{yregs+4+k}")
        for w in range(2, 8):
            for k in range(4):
                a.I(f"v_add_f32 v{out+k}, v{out+k}, v{yregs+4*w+k}")
        o = [out + k for k in range(4)]
        self.bf16_round(o, t)
        for p in range(2):
            self.unpack(ga + p, t + 1, t + 2)
            a.I(f"v_mul_f32 v{o[2*p]}, v{o[2*p]}, v{t+1}")
            a.I(f"v_mul_f32 v{o[2*p+1]}, v{o[2*p+1]}, v{t+2}")
        self.bf16_round(o, t)
        for p in range(2):
            self.unpack(xr + p, t + 1, t + 2)
            a.I(f"v_add_f32 v{o[2*p]}, v{o[2*p]}, v{t+1}")
            a.I(f"v_add_f32 v{o[2*p+1]}, v{o[2*p+1]}, v{t+2}")
        self.bf16_round(o, t)

    def post_gu(self):
        a = self.a
        a.I("s_mul_i32 s45, s44, 21846")
        a.I("s_lshr_b32 s87, s45, 16")
        a.I("s_mul_i32 s46, s87, 3")
        a.I("s_sub_u32 s88, s44, s46")
        a.I("s_mul_i32 s46, s88, 54")
        a.I("v_add_u32 v10, s46, v5")
        a.I("v_cmp_gt_u32 vcc, 54, v5")
        a.I("s_mov_b64 s[50:51], vcc")
        a.I("v_mov_b32 v6, 160")
        a.I("v_cmp_lt_u32 vcc, v10, v6")
        a.I("s_and_b64 s[50:51], s[50:51], vcc")
        a.I("v_min_u32 v10, 159, v10")
        a.I("v_lshlrev_b32 v11, 3, v10")
        a.I("s_mul_i32 s46, s87, 7680")
        a.I(f"s_add_u32 s46, s46, {WS_MOD}")
        self.srd(36, 4, 5120)
        a.I("s_mul_i32 s47, s87, 1280")
        a.I("buffer_load_dwordx2 v[18:19], v11, s[36:39], s47 offen")
        a.I("v_add_u32 v40, 2560, v11")
        a.I("v_add_u32 v41, 3840, v11")
        a.I("v_add_u32 v42, 5120, v11")
        a.I("s_mul_i32 s85, s87, 7680")
        a.I(f"s_add_u32 s85, s85, {WS_MOD}")
        a.I("v_lshlrev_b32 v32, 4, v10")
        a.I("s_mul_i32 s86, s87, 2560")
        a.I(f"s_add_u32 s86, s86, {WS_Y}")
        yloads = []
        for w in range(8):
            yloads.append((f"buffer_load_dwordx4 v[{48+4*w}:{51+4*w}], v{80+w if False else 140+w}, s[40:43], s86 offen sc1", [48+4*w+k for k in range(4)]))
            a.I(f"v_add_u32 v{140+w}, {10240*w}, v32")
        modloads = ["buffer_load_dwordx2 v[12:13], v40, s[40:43], s85 offen sc1",
                    "buffer_load_dwordx2 v[14:15], v41, s[40:43], s85 offen sc1",
                    "buffer_load_dwordx2 v[16:17], v42, s[40:43], s85 offen sc1"]
        for ld in modloads:
            a.I(ld)
        if not self.cfg.early_w:
            a.I("s_cmp_ge_u32 s44, 10")
            a.I("s_cbranch_scc1 L_gu_dn")
            a.I(f"s_lshl_b32 s47, s{S_NB}, 6")
            a.I("s_cmp_ge_u32 s44, 5")
            a.I("s_cselect_b32 s48, s18, s16")
            a.I("s_cselect_b32 s49, s19, s17")
            a.I("s_cselect_b32 s63, 5, 0")
            self.srd(32, 48, 640 * 3072, off=47)
            self.dma_voff64(3072, 8, 6, 7)
            a.I("s_sub_u32 s63, s44, s63")
            a.I(f"s_mul_i32 s46, s63, {128*3072}")
            a.I("s_lshl_b32 s47, s44, 13")
            a.I(f"s_add_u32 s47, s47, {L_W}")
            self.dma_loop(32, 8, 8, 8, 47, 46, 16 * 3072, "L_gu_dma", pol=self.cfg.ntG)
            a.I("s_waitcnt vmcnt(8)")
            a.I("s_branch L_gu_dma_done")
            a.label("L_gu_dn")
            if not self.cfg.wdl:
                a.I(f"s_mul_i32 s45, s{S_NB}, 40960")
                self.srd(32, 20, 40960, off=45)
                self.wdown_offsets()
                self.wdown_issue()
                a.I("s_waitcnt vmcnt(20)")
            else:
                a.I("s_waitcnt vmcnt(0)")
            a.label("L_gu_dma_done")
            a.fence(2)
        else:
            a.I("s_waitcnt vmcnt(0)")
        self.stamp(22)
        a.I("v_max3_u32 v6, v12, v13, v14")
        a.I("v_max3_u32 v6, v6, v15, v16")
        a.I("v_max_u32 v6, v6, v17")
        a.I("v_cmp_eq_u32 vcc, -1, v6")
        a.I("s_cmp_eq_u64 vcc, 0")
        a.I("s_cbranch_scc1 L_pm2_skip")
        self.poll(modloads, list(range(12, 18)), "L_pm2", pre=6)
        a.label("L_pm2_skip")
        self.stamp(23)
        self.unpack(16, 20, 21)
        self.unpack(17, 22, 23)
        for k in range(4):
            a.I(f"v_add_f32 v{20+k}, 1.0, v{20+k}")
        self.bf16_round([20, 21, 22, 23], 6)
        self.unpack(14, 24, 25)
        self.unpack(15, 26, 27)
        self.unpack(12, 84, 85)
        self.unpack(13, 86, 87)
        self.unpack(18, 88, 89)
        self.unpack(19, 90, 91)
        self.tr_addr64(28, 6, 7)
        a.I("s_and_b32 s45, s44, 1")
        a.I("s_lshl_b32 s45, s45, 5")
        a.I("v_xor_b32 v28, s45, v28")
        a.I("s_bfe_u32 s45, s44, 0x10001")
        a.I("s_mul_i32 s45, s45, 40960")
        a.I("s_lshr_b32 s46, s44, 2")
        a.I(f"s_mul_i32 s47, s46, {7*2048}")
        a.I("s_add_u32 s45, s45, s47")
        a.I(f"s_add_u32 s45, s45, {L_W}")
        a.I("v_add_u32 v28, s45, v28")
        self.act_addr(29, 1344, 6)
        a.I(f"s_mul_i32 s47, s46, {7*64}")
        a.I(f"s_add_u32 s47, s47, {L_ACT}")
        a.I("v_add_u32 v29, s47, v29")
        self.red_lane_addr(30, 6)
        a.I("s_mul_i32 s47, s87, 1344")
        a.I(f"s_add_u32 s47, s47, {L_ACT}")
        a.I("v_lshl_add_u32 v31, v10, 3, s47")
        a.I("s_mul_i32 s45, s87, 1280")
        a.I(f"s_add_u32 s45, s45, {L_OPART}")
        a.I("v_lshl_add_u32 v92, v10, 3, s45")
        a.I("s_cmp_eq_u32 s88, 2")
        a.I("s_mov_b32 s45, 0x3b9d89d9")
        a.I("s_cselect_b32 s45, s45, 0x3b97b426")
        a.I("v_mov_b32 v93, s45")
        a.I("s_lshl_b32 s45, s44, 3")
        a.I(f"s_add_u32 s45, s45, {L_LNST}")
        a.I("v_mov_b32 v94, s45")
        a.I("s_mul_i32 s45, s87, 24")
        a.I(f"s_add_u32 s45, s45, {L_LNST}")
        a.I("v_mov_b32 v95, s45")
        if self.cfg.early_w:
            a.I("s_cmp_eq_u32 s44, 3")
        else:
            a.I("s_cmp_ge_u32 s44, 10")
        a.I("s_cbranch_scc1 L_gu_nowait")
        a.I("s_waitcnt vmcnt(0)")
        a.label("L_gu_nowait")
        a.I("s_barrier")
        if self.cfg.wdl and not self.cfg.early_w:
            a.I("s_cmp_lt_u32 s44, 10")
            a.I("s_cbranch_scc1 L_gu_nowd")
            a.I(f"s_mul_i32 s45, s{S_NB}, 40960")
            self.srd(32, 20, 40960, off=45)
            self.wdown_offsets()
            self.wdown_issue()
            a.label("L_gu_nowd")
            a.fence(2)
        self.stamp(9)
        self.mfma_preread(7, 28, 2048, 256, 96)
        a.I("v_lshrrev_b32 v6, 4, v5")
        a.I("v_bfe_u32 v7, v5, 2, 2")
        a.I("v_lshl_add_u32 v8, v6, 3, v7")
        a.I("v_mul_u32_u24 v8, 1280, v8")
        a.I("v_and_b32 v9, 3, v5")
        a.I("v_lshl_add_u32 v8, v9, 3, v8")
        a.I(f"v_add_u32 v8, {L_WD}, v8")
        a.I("v_and_b32 v6, 1, v6")
        a.I("v_lshl_or_b32 v7, v6, 2, v7")
        a.I("v_lshlrev_b32 v7, 5, v7")
        for t in range(4):
            a.I(f"s_add_u32 s45, s44, {12*t}")
            a.I("s_lshl_b32 s45, s45, 5")
            a.I(f"v_xor_b32 v9, s45, v7")
            a.I(f"v_add_u32 v{158+t}, v8, v9")
        if self.cfg.ygate:
            a.I("s_and_b32 s45, s44, 7")
            a.I("s_mul_i32 s45, s45, 10240")
            a.I("v_add_u32 v6, s45, v32")
            self.poll(["buffer_load_dwordx4 v[44:47], v6, s[40:43], s86 offen sc1"], [44, 45, 46, 47], "L_pyg", pre=7)
        self.poll_sel(yloads, "L_py", 6)
        self.stamp(10)
        for (o_, d, q) in ((48, 48, 52), (56, 56, 60), (64, 64, 68), (72, 72, 76), (48, 48, 56), (64, 64, 72), (40, 48, 64)):
            a.I(f"v_pk_add_f32 v[{o_}:{o_+1}], v[{d}:{d+1}], v[{q}:{q+1}]")
            a.I(f"v_pk_add_f32 v[{o_+2}:{o_+3}], v[{d+2}:{d+3}], v[{q+2}:{q+3}]")
        o = [40, 41, 42, 43]
        self.bf16_round(o, 6)
        a.I("v_pk_mul_f32 v[40:41], v[40:41], v[84:85]")
        a.I("v_pk_mul_f32 v[42:43], v[42:43], v[86:87]")
        self.bf16_round(o, 6)
        a.I("v_pk_add_f32 v[40:41], v[40:41], v[88:89]")
        a.I("v_pk_add_f32 v[42:43], v[42:43], v[90:91]")
        a.I("v_cvt_pk_bf16_f32 v36, v40, v41")
        a.I("v_cvt_pk_bf16_f32 v37, v42, v43")
        self.unpack(36, 32, 33)
        self.unpack(37, 34, 35)
        a.I("s_mov_b64 exec, s[50:51]")
        a.I("ds_write_b64 v92, v[36:37]")
        a.I("s_mov_b64 exec, -1")
        a.I("v_readfirstlane_b32 s46, v32")
        for k in range(4):
            a.I(f"v_subrev_f32 v{40+k}, s46, v{32+k}")
        a.I("v_add_f32 v36, v40, v41")
        a.I("v_mul_f32 v37, v40, v40")
        a.I("v_add_f32 v38, v42, v43")
        a.I("v_fmac_f32 v37, v41, v41")
        a.I("v_add_f32 v36, v36, v38")
        a.I("v_fmac_f32 v37, v42, v42")
        a.I("v_fmac_f32 v37, v43, v43")
        a.I("v_cndmask_b32 v36, 0, v36, s[50:51]")
        a.I("v_cndmask_b32 v37, 0, v37, s[50:51]")
        for r in (8, 4, 2, 1):
            for v in (36, 37):
                a.I(f"v_add_f32_dpp v{v}, v{v}, v{v} row_ror:{r} row_mask:0xf bank_mask:0xf")
        for m in ("row_bcast:15 row_mask:0xa", "row_bcast:31 row_mask:0xc"):
            for v in (36, 37):
                a.I(f"v_add_f32_dpp v{v}, v{v}, v{v} {m} bank_mask:0xf")
        a.I("v_readlane_b32 s47, v36, 63")
        a.I("v_readlane_b32 s45, v37, 63")
        a.I("v_mul_f32 v38, s47, v93")
        a.I("v_mov_b32 v39, s45")
        a.I("v_add_f32 v37, s46, v38")
        a.I("v_mul_f32 v38, s47, v38")
        a.I("v_sub_f32 v38, v39, v38")
        a.I("ds_write_b32 v94, v37")
        a.I("ds_write_b32 v94, v38 offset:4")
        a.I("s_waitcnt lgkmcnt(0)")
        a.I("s_barrier")
        self.stamp(16)
        a.I("ds_read_b64 v[40:41], v95")
        a.I("ds_read_b64 v[42:43], v95 offset:8")
        a.I("ds_read_b64 v[44:45], v95 offset:16")
        for t in range(4):
            b = 124 + 4 * t
            a.I(f"ds_read_b64_tr_b16 v[{b}:{b+1}], v{158+t}")
            a.I(f"ds_read_b64_tr_b16 v[{b+2}:{b+3}], v{158+t} offset:{4*1280}")
        a.I("s_waitcnt lgkmcnt(8)")
        a.I("v_add_f32 v46, v40, v42")
        a.I("v_mov_b32 v47, 0x43500000")
        a.I("v_mul_f32 v46, 0x43580000, v46")
        a.I("v_add_f32 v41, v41, v43")
        a.I("v_fmac_f32 v46, v47, v44")
        a.I("v_add_f32 v41, v41, v45")
        a.I("v_mul_f32 v46, 0x3acccccd, v46")
        a.I("v_sub_f32 v40, v40, v46")
        a.I("v_sub_f32 v42, v42, v46")
        a.I("v_sub_f32 v44, v44, v46")
        a.I("v_cvt_pk_bf16_f32 v52, v46, v46")
        a.I("v_mul_f32 v40, v40, v40")
        a.I("v_mul_f32 v44, v44, v44")
        a.I("v_lshlrev_b32 v52, 16, v52")
        a.I("v_fmac_f32 v40, v42, v42")
        a.I("v_mov_b32 v53, v52")
        a.I("v_mul_f32 v40, 0x43580000, v40")
        a.I("v_pk_add_f32 v[32:33], v[32:33], v[52:53] neg_lo:[0,1] neg_hi:[0,1]")
        a.I("v_fmac_f32 v40, v47, v44")
        a.I("v_pk_add_f32 v[34:35], v[34:35], v[52:53] neg_lo:[0,1] neg_hi:[0,1]")
        a.I("v_add_f32 v40, v40, v41")
        a.I("v_cvt_pk_bf16_f32 v6, v32, v33")
        a.I("v_mul_f32 v40, 0x3acccccd, v40")
        a.I("v_cvt_pk_bf16_f32 v7, v34, v35")
        a.I("v_cvt_pk_bf16_f32 v48, v40, v40")
        a.I("v_lshlrev_b32 v32, 16, v6")
        a.I("v_lshlrev_b32 v40, 16, v48")
        a.I("v_and_b32 v33, 0xffff0000, v6")
        a.I(f"v_add_f32 v40, 0x{EPS:x}, v40")
        a.I("v_lshlrev_b32 v34, 16, v7")
        a.I("v_cvt_pk_bf16_f32 v48, v40, v40")
        a.I("v_and_b32 v35, 0xffff0000, v7")
        a.I("v_lshlrev_b32 v40, 16, v48")
        a.I("v_sqrt_f32 v48, v40")
        a.I("v_rcp_f32 v49, v48")
        a.I("v_fma_f32 v50, -v48, v48, v40")
        a.I("v_mul_f32 v49, 0.5, v49")
        a.I("v_fma_f32 v48, v50, v49, v48")
        a.I("v_cvt_pk_bf16_f32 v48, v48, v48")
        a.I("v_lshlrev_b32 v40, 16, v48")
        a.I("v_rcp_f32 v42, v40")
        a.I("v_mov_b32 v41, v40")
        a.I("v_mov_b32 v43, v42")
        o = [32, 33, 34, 35]
        for p in (32, 34):
            t = 48 if p == 32 else 50
            a.I(f"v_pk_mul_f32 v[{t}:{t+1}], v[{p}:{p+1}], v[42:43]")
        for p in (32, 34):
            t = 48 if p == 32 else 50
            a.I(f"v_pk_fma_f32 v[{p}:{p+1}], v[{t}:{t+1}], v[40:41], v[{p}:{p+1}] neg_lo:[1,0,0] neg_hi:[1,0,0]")
        for p in (32, 34):
            t = 48 if p == 32 else 50
            a.I(f"v_pk_fma_f32 v[{p}:{p+1}], v[{p}:{p+1}], v[42:43], v[{t}:{t+1}]")
        self.bf16_round(o, 6)
        a.I("v_pk_mul_f32 v[32:33], v[32:33], v[20:21]")
        a.I("v_pk_mul_f32 v[34:35], v[34:35], v[22:23]")
        self.bf16_round(o, 6)
        a.I("v_pk_add_f32 v[32:33], v[32:33], v[24:25]")
        a.I("v_pk_add_f32 v[34:35], v[34:35], v[26:27]")
        a.I("v_cvt_pk_bf16_f32 v32, v32, v33")
        a.I("v_cvt_pk_bf16_f32 v33, v34, v35")
        a.I("s_mov_b64 exec, s[50:51]")
        a.I("ds_write_b64 v31, v[32:33]")
        a.I("s_mov_b64 exec, -1")
        a.I("s_waitcnt lgkmcnt(0)")
        a.I("s_barrier")
        self.stamp(17)
        a.I("s_cmp_ge_u32 s44, 8")
        a.I("s_cbranch_scc1 L_gu_m6")
        self.mfma_with_b(7, 96, 29, 40, 20)
        a.I("s_branch L_gu_mdone")
        a.label("L_gu_m6")
        a.fence(2)
        self.mfma_with_b(6, 96, 29, 40, 20)
        a.label("L_gu_mdone")
        a.fence(8)
        self.write_red(20, 30)
        self.stamp(18)
        a.I("s_cmp_lg_u32 s44, 0")
        a.I("s_cbranch_scc1 L_gu_done")
        a.I("v_lshlrev_b32 v6, 4, v5")
        for kt in range(3):
            a.I(f"ds_read_b128 v[{20+4*kt}:{23+4*kt}], v6 offset:{L_RED + 1024*kt}")
        a.I("s_waitcnt lgkmcnt(0)")
        for k in range(4):
            a.I(f"v_add_f32 v{20+k}, v{20+k}, v{24+k}")
        for k in range(4):
            a.I(f"v_add_f32 v{20+k}, v{20+k}, v{28+k}")
        self.bf16_round([20, 21, 22, 23], 6)
        for k in range(4):
            a.I(f"v_mov_b32 v{24+k}, v{20+k}")
        for k in range(4):
            a.I(f"v_permlane32_swap_b32 v{20+k}, v{24+k}")
        for k in range(4):
            a.I(f"v_mul_f32 v{20+k}, v{20+k}, v{24+k}")
        a.I("v_cvt_pk_bf16_f32 v20, v20, v21")
        a.I("v_cvt_pk_bf16_f32 v21, v22, v23")
        a.I("v_and_b32 v6, 3, v5")
        a.I("v_lshlrev_b32 v6, 6, v6")
        a.I("v_bfe_u32 v7, v5, 2, 3")
        a.I("v_lshl_add_u32 v6, v7, 3, v6")
        a.I("s_mov_b32 exec_lo, -1"); a.I("s_mov_b32 exec_hi, 0")
        a.I(f"ds_write_b64 v6, v[20:21] offset:{L_QV}")
        a.I("s_mov_b64 exec, -1")
        a.I("s_waitcnt lgkmcnt(0)")
        a.label("L_gu_done")
        a.I("s_barrier")
        self.stamp(14)
        a.I("v_and_b32 v6, 3, v5")
        a.I("v_lshlrev_b32 v6, 6, v6")
        a.I("v_lshrrev_b32 v7, 4, v5")
        a.I("v_lshl_add_u32 v6, v7, 4, v6")
        a.I(f"ds_read_b128 v[40:43], v6 offset:{L_QV}")
        a.I("v_and_b32 v6, 3, v5")
        a.I("v_lshlrev_b32 v6, 6, v6")
        a.I("v_lshl_add_u32 v6, v7, 4, v6")
        a.I("s_mul_i32 s45, s44, 12288")
        a.I(f"s_lshl_b32 s46, s{S_NB}, 8")
        a.I("s_add_u32 s45, s45, s46")
        a.I(f"s_add_u32 s45, s45, {WS_PD}")
        a.I("s_waitcnt lgkmcnt(0)")
        for t in range(4):
            a.I(f"v_mfma_f32_16x16x32_bf16 v[{44+4*t}:{47+4*t}], v[{124+4*t}:{127+4*t}], v[40:43], 0")
        a.I(f"s_mov_b32 exec_lo, 0x{MASK_N4_LO:x}")
        a.I(f"s_mov_b32 exec_hi, 0x{MASK_N4_LO:x}")
        for t in range(4):
            if t == 3:
                a.I("s_cmp_ge_u32 s44, 4")
                a.I("s_cbranch_scc1 L_gu_st_done")
            self.canon([44+4*t+k for k in range(4)], 12)
            a.I(f"buffer_store_dwordx4 v[{44+4*t}:{47+4*t}], v6, s[40:43], s45 offen sc1")
            if t < 3:
                a.I(f"s_add_u32 s45, s45, {12*12288}")
        a.label("L_gu_st_done")
        a.I("s_mov_b64 exec, -1")
        self.stamp(11)

    def post_final(self):
        a = self.a
        a.fence(2)
        a.I("v_lshlrev_b32 v10, 4, v5")
        a.I(f"s_mul_i32 s47, s{S_DT}, 12288")
        a.I("s_lshl_b32 s45, s44, 10")
        a.I("s_add_u32 s47, s47, s45")
        a.I(f"s_add_u32 s47, s47, {WS_PD}")
        a.I("v_bfe_u32 v12, v5, 2, 2")
        a.I("v_and_b32 v13, 3, v5")
        a.I("v_mul_u32_u24 v14, 7680, v12")
        a.I("v_lshl_add_u32 v14, v13, 3, v14")
        a.I(f"s_lshl_b32 s45, s{S_DT}, 5")
        a.I(f"s_add_u32 s46, s45, {WS_MOD + 6400}")
        a.I("v_mul_u32_u24 v31, 1280, v12")
        a.I("v_lshl_add_u32 v31, v13, 3, v31")
        a.I(f"s_add_u32 s45, s45, {L_OPART}")
        a.I("v_add_u32 v31, s45, v31")
        a.I("v_and_b32 v30, 15, v5")
        a.I("v_lshlrev_b32 v30, 4, v30")
        a.I("s_lshl_b32 s45, s44, 8")
        a.I(f"s_add_u32 s45, s45, {L_RED}")
        a.I("v_add_u32 v29, s45, v30")
        self.stamp(19)
        if self.cfg.p2:
            self.poll(["buffer_load_dwordx2 v[22:23], v14, s[40:43], s46 offen sc1"], [22, 23], "L_pgb", pre=6)
            def seed2():
                if self.cfg.p2 > 1: a.I(f"s_sleep {self.cfg.p2}")
            self.poll2(["buffer_load_dwordx4 v[40:43], v10, s[40:43], s47 offen sc1"], [40, 41, 42, 43],
                       ["buffer_load_dwordx4 v[160:163], v10, s[40:43], s47 offen sc1"], [160, 161, 162, 163], "L_ph", 6, seed2)
        else:
            self.poll(["buffer_load_dwordx4 v[40:43], v10, s[40:43], s47 offen sc1",
                       "buffer_load_dwordx2 v[22:23], v14, s[40:43], s46 offen sc1"], [40, 41, 42, 43, 22, 23], "L_ph", pre=6)
        self.stamp(20)
        for sw in ("v_permlane32_swap_b32", "v_permlane16_swap_b32"):
            for k in range(4):
                a.I(f"v_mov_b32 v{44+k}, v{40+k}")
            for k in range(4):
                a.I(f"{sw} v{40+k}, v{44+k}")
            for k in range(4):
                a.I(f"v_add_f32 v{40+k}, v{40+k}, v{44+k}")
        a.I("s_mov_b32 exec_lo, 0xffff"); a.I("s_mov_b32 exec_hi, 0")
        a.I("ds_write_b128 v29, v[40:43]")
        a.I("s_mov_b64 exec, -1")
        a.I("s_waitcnt lgkmcnt(0)")
        a.I("s_barrier")
        a.I("s_cmp_lg_u32 s44, 0")
        a.I("s_cbranch_scc1 L_dn_done")
        a.I("v_lshrrev_b32 v6, 4, v5")
        a.I("v_mul_u32_u24 v6, 768, v6")
        a.I("v_add_u32 v6, v6, v30")
        for k in range(3):
            a.I(f"ds_read_b128 v[{40+4*k}:{43+4*k}], v6 offset:{L_RED + 256*k}")
        a.I("ds_read_b64 v[32:33], v31")
        self.srd(36, 26, 5120)
        a.I("s_waitcnt lgkmcnt(0)")
        for k in range(4):
            a.I(f"v_add_f32 v{40+k}, v{40+k}, v{44+k}")
        for k in range(4):
            a.I(f"v_add_f32 v{40+k}, v{40+k}, v{48+k}")
        for sw in ("v_permlane32_swap_b32", "v_permlane16_swap_b32"):
            for k in range(4):
                a.I(f"v_mov_b32 v{44+k}, v{40+k}")
            for k in range(4):
                a.I(f"{sw} v{40+k}, v{44+k}")
            for k in range(4):
                a.I(f"v_add_f32 v{40+k}, v{40+k}, v{44+k}")
        o = [40, 41, 42, 43]
        self.bf16_round(o, 6)
        self.unpack(22, 24, 25)
        self.unpack(23, 26, 27)
        for k in range(4):
            a.I(f"v_mul_f32 v{40+k}, v{40+k}, v{24+k}")
        self.bf16_round(o, 6)
        self.unpack(32, 24, 25)
        self.unpack(33, 26, 27)
        for k in range(4):
            a.I(f"v_add_f32 v{40+k}, v{40+k}, v{24+k}")
        a.I("v_cvt_pk_bf16_f32 v40, v40, v41")
        a.I("v_cvt_pk_bf16_f32 v41, v42, v43")
        a.I("v_mul_u32_u24 v6, 1280, v12")
        a.I("v_lshl_add_u32 v6, v13, 3, v6")
        a.I(f"s_lshl_b32 s45, s{S_DT}, 5")
        a.I("s_mov_b32 exec_lo, 0xffff"); a.I("s_mov_b32 exec_hi, 0")
        a.I(f"buffer_store_dwordx2 v[40:41], v6, s[36:39], s45 offen {self.cfg.outpol}")
        a.I("s_mov_b64 exec, -1")
        a.label("L_dn_done")
        self.stamp(21)

    def tail(self):
        a = self.a
        a.label("L_tail")
        if self.cfg.dbgt:
            a.fence(4)
            a.I("s_cmp_eq_u32 s44, 0")
            a.I("s_cbranch_scc0 L_end")
            self.stamp(13)
            a.I("s_mov_b64 exec, 1")
            a.I("s_not_b32 s98, s98")
            for i, r in enumerate((98, 77, 72, 66, 64 + 4, 64 + 6)):
                a.I(f"v_mov_b32 v6, {16 + 4*i}")
                a.I(f"v_mov_b32 v7, s{r}")
                a.I("global_atomic_umax v6, v7, s[28:29] sc1")
            a.I("s_branch L_end")
        if self.diag and not self.cfg.dbgt:
            a.fence(4)
            self.stamp(13)
            a.I(f"s_lshl_b32 s79, s{S_PRE}, 4")
            a.I(f"s_or_b32 s79, s79, s{S_POST}")
            a.I("s_mul_i32 s45, s2, 12")
            a.I("s_add_u32 s45, s45, s44")
            a.I("s_lshl_b32 s45, s45, 7")
            a.I(f"s_add_u32 s45, s45, {WS_DBG}")
            a.I("s_mov_b64 exec, 1")
            a.I("v_mov_b32 v6, 0")
            regs = [64 + k for k in range(16)] + [93 + k for k in range(8)]
            for q in range(6):
                for k in range(4):
                    a.I(f"v_mov_b32 v{8+k}, s{regs[4*q+k]}")
                a.I(f"buffer_store_dwordx4 v[8:11], v6, s[40:43], s45 offen offset:{16*q}")
                a.I("s_nop 1")
        a.label("L_end")
        a.I("s_endpgm")
        a.raw(f""".section .rodata,"a"
.p2align 6
.amdhsa_kernel {self.name}
  .amdhsa_next_free_vgpr 168
  .amdhsa_next_free_sgpr 102
  .amdhsa_accum_offset 168
  .amdhsa_group_segment_fixed_size 0
  .amdhsa_float_denorm_mode_32 3
  .amdhsa_kernarg_size 112
  .amdhsa_user_sgpr_count 2
  .amdhsa_user_sgpr_kernarg_segment_ptr 1
  .amdhsa_system_sgpr_workgroup_id_x 1
.end_amdhsa_kernel""")

    def build(self):
        self.entry()
        self.helper_front()
        self.stream()
        self.helper()
        self.a.I("s_branch L_post")
        self.stream_bulk()
        self.post()
        self.tail()
        txt = self.a.text()
        if self.cfg.hop2:
            assert self.nseg <= 7, self.nseg
            w = ["  s_mov_b64 exec, 0"]
            for k in range(self.nseg):
                w += [f"  s_cmp_eq_u32 s44, {4 + k}", f"  s_cbranch_scc1 L_hopP{k}_0"]
            w += ["L_warm2_ret:", "  s_mov_b64 exec, -1"]
            txt = txt.replace("@@WARM2@@", "\n".join(w))
        return txt


def make(path, diag=False, name=KNAME, **kw):
    cfg = StreamCfg()
    for k, v in kw.items():
        setattr(cfg, k, v)
    g = Gen(cfg, diag=diag, name=name)
    txt = g.build()
    open(path, 'w').write(txt)
    return g


if __name__ == '__main__':
    out = sys.argv[1]
    kw = {}
    diag = False
    name = KNAME
    for kv in sys.argv[2:]:
        k, v = kv.split('=')
        if k == 'diag': diag = bool(int(v))
        elif k == 'name': name = v
        else: kw[k] = v.replace('_', ' ').replace('none', '') if k in ('nt', 'pfpol', 'ntV', 'ntW', 'outpol', 'ntG') else int(v)
    g = make(out, diag=diag, name=name, **kw)
    print(out, 'nops', g.a.nops)
```

```python
import sys
sys.path.insert(0, 'gen')
from asmdsl import Asm
import stream as st
from stream import StreamCfg, LOG2E

KNAME = 'adaLN_cond__gqa_block_cached__glu_gated_bilinear__decode_kernel'

WS_MOD, WS_Q, WS_ML, WS_O, WS_Y, WS_PD, WS_DBG = 0, 0x8000, 0x38000, 0x40000, 0x70000, 0x84000, 0x100000
WS_SIZE = 0x200000
L_ACT = 0x0000
L_RED = 0x3200
L_QV = 0x4200
L_STATS = 0x4400
L_FIN = 0x4480
L_HFLAG = 0x4500
L_LNST = 0x4540
L_P = 0x4600
L_OPART = 0x5A00
L_W = 0x7200
L_WD = L_W + 81920
L_X1 = 0x6E00
LDS_BYTES = L_W + 81920 + 40960 + 512
LDS = dict(QV=L_QV, STATS=L_STATS, FIN=L_FIN, P=L_P, OPART=L_OPART, TICKET=L_FIN + 8)


HEADER = """; adaLN-conditioned decode block (attention over a 4096-key cache + GLU MLP), one fused persistent launch.
; Kernarg (112 bytes, pointers only, s[0:1]): 0 A_x, 8 A_k_cache, 16 A_v_cache, 24 A_wq, 32 A_wo, 40 B_x (unused by the reference),
;
; Hand-offs go through d_ws with write-through (sc1) stores and sc1 polls; every slot is first reset to a sentinel by a fixed owner,
; arrivals are counted in d_debug and workgroup 0 opens a private GO word per workgroup once all resets are done, so nothing an
; code into the instruction cache ahead of time.
"""

SPIN_MAX = 1 << 16
NANF = 0x7fc00000
NANB = 0x7fc07fc0
EPS = 0x3727c5ac

S = dict(srdK=32, srdV=36, srdW=40, wave=44, tmp=45, soff=46, mask0=48, mask1=50, sello=52, selhi=53, log2e=54,
         m=55, l=56, b=57, h=58, half=59, spin=62)
S_PRE, S_BAND, S_POST, S_NB, S_KG = 80, 81, 82, 83, 84
S_KH, S_LATE, S_PHASE, S_DT = 89, 90, 91, 92
MASK_N4_LO = 0x000f000f


class Gen:
    def __init__(self, cfg, diag=False, name=KNAME):
        self.a = Asm()
        self.cfg = cfg
        self.diag = diag
        self.name = name

    def stamp(self, k):
        if not self.diag:
            return
        a = self.a
        a.I("s_memrealtime s[60:61]")
        a.I("s_waitcnt lgkmcnt(0)")
        a.I(f"s_mov_b32 s{64+k if k < 16 else 93+k-16}, s60")

    def srd(self, dst, ptr, size, off=None):
        a = self.a
        if off is None:
            a.I(f"s_mov_b32 s{dst}, s{ptr}")
            a.I(f"s_mov_b32 s{dst+1}, s{ptr+1}")
        else:
            a.I(f"s_add_u32 s{dst}, s{ptr}, s{off}")
            a.I(f"s_addc_u32 s{dst+1}, s{ptr+1}, 0")
        a.I(f"s_mov_b32 s{dst+2}, {size}")
        a.I(f"s_mov_b32 s{dst+3}, 0x20000")

    def canon(self, regs, nanreg=None):
        a = self.a
        for r in regs:
            a.I(f"v_min_u32 v{r}, -2, v{r}")

    def poll2(self, loadsA, regsA, loadsB, regsB, label, t, seed=None):
        a = self.a
        nA, nB = len(loadsA), len(loadsB)

        def check(regs, ok):
            rs = list(regs)
            a.I(f"v_max3_u32 v{t}, v{rs[0]}, v{rs[1]}, v{rs[2]}")
            i = 3
            while i < len(rs):
                if i + 1 < len(rs):
                    a.I(f"v_max3_u32 v{t}, v{t}, v{rs[i]}, v{rs[i+1]}"); i += 2
                else:
                    a.I(f"v_max_u32 v{t}, v{t}, v{rs[i]}"); i += 1
            a.I(f"v_cmp_eq_u32 vcc, -1, v{t}")
            a.I("s_cmp_eq_u64 vcc, 0")
            a.I(f"s_cbranch_scc1 {ok}")
        a.I("s_mov_b32 s62, 0")
        for ld in loadsA: a.I(ld)
        if seed: seed()
        for ld in loadsB: a.I(ld)
        a.label(label)
        a.I(f"s_waitcnt vmcnt({nB})")
        check(regsA, f"{label}_ok")
        for ld in loadsA: a.I(ld)
        a.I(f"s_waitcnt vmcnt({nA})")
        check(regsB, f"{label}_okB")
        for ld in loadsB: a.I(ld)
        a.I("s_add_u32 s62, s62, 1")
        a.I(f"s_cmp_lt_u32 s62, {SPIN_MAX}")
        a.I(f"s_cbranch_scc1 {label}")
        a.I(f"s_branch {label}_ok")
        a.label(f"{label}_okB")
        a.I("s_waitcnt vmcnt(0)")
        for ra, rb in zip(regsA, regsB):
            a.I(f"v_mov_b32 v{ra}, v{rb}")
        a.label(f"{label}_ok")

    def poll_sel(self, loads, label, t, first_issued=False):
        a = self.a
        n = len(loads)
        a.I(f"s_mov_b32 s63, {(1 << n) - 1}")
        a.I("s_mov_b32 s62, 0")
        if first_issued:
            a.I(f"s_branch {label}_chk")
        a.label(label)
        for i, (ld, regs) in enumerate(loads):
            a.I(f"s_bitcmp1_b32 s63, {i}")
            a.I(f"s_cbranch_scc0 {label}_s{i}")
            a.I(ld)
            a.label(f"{label}_s{i}")
        a.label(f"{label}_chk")
        a.I("s_add_u32 s62, s62, 1")
        a.I("s_waitcnt vmcnt(0)")
        for i, (ld, regs) in enumerate(loads):
            r = regs
            a.I(f"v_max3_u32 v{t}, v{r[0]}, v{r[1]}, v{r[2]}")
            a.I(f"v_max_u32 v{t}, v{t}, v{r[3]}")
            a.I(f"v_cmp_eq_u32 vcc, -1, v{t}")
            a.I("s_cmp_eq_u64 vcc, 0")
            a.I(f"s_cbranch_scc0 {label}_p{i}")
            a.I(f"s_bitset0_b32 s63, {i}")
            a.label(f"{label}_p{i}")
        a.I("s_cmp_eq_u32 s63, 0")
        a.I(f"s_cbranch_scc1 {label}_ok")
        a.I(f"s_cmp_lt_u32 s62, {SPIN_MAX}")
        a.I(f"s_cbranch_scc1 {label}")
        a.label(f"{label}_ok")

    def poll(self, loads, regs, label, pre=None):
        a = self.a
        a.I("s_mov_b32 s62, 0")
        a.label(label)
        for ld in loads:
            a.I(ld)
        a.I("s_add_u32 s62, s62, 1")
        a.I("s_waitcnt vmcnt(0)")
        rs = list(regs)
        t = pre
        first = True
        i = 0
        while i < len(rs):
            if first:
                if len(rs) >= 3:
                    a.I(f"v_max3_u32 v{t}, v{rs[0]}, v{rs[1]}, v{rs[2]}"); i = 3
                elif len(rs) == 2:
                    a.I(f"v_max_u32 v{t}, v{rs[0]}, v{rs[1]}"); i = 2
                else:
                    a.I(f"v_mov_b32 v{t}, v{rs[0]}"); i = 1
                first = False
            elif i + 1 < len(rs):
                a.I(f"v_max3_u32 v{t}, v{t}, v{rs[i]}, v{rs[i+1]}"); i += 2
            else:
                a.I(f"v_max_u32 v{t}, v{t}, v{rs[i]}"); i += 1
        a.I(f"v_cmp_eq_u32 vcc, -1, v{t}")
        a.I("s_cmp_eq_u64 vcc, 0")
        a.I(f"s_cbranch_scc1 {label}_ok")
        a.I(f"s_cmp_lt_u32 s62, {SPIN_MAX}")
        a.I(f"s_cbranch_scc1 {label}")
        a.label(f"{label}_ok")

    def poll_counter(self, off, expect, label, vz, vt):
        a = self.a
        a.I(f"v_mov_b32 v{vz}, {off}")
        a.I("s_mov_b32 s62, 0")
        a.I("s_mov_b64 exec, 1")
        a.label(label)
        a.I(f"global_load_dword v{vt}, v{vz}, s[28:29] sc1")
        a.I("s_add_u32 s62, s62, 1")
        a.I("s_waitcnt vmcnt(0)")
        a.I(f"v_readfirstlane_b32 s45, v{vt}")
        a.I(f"s_cmp_ge_u32 s45, {expect}")
        a.I(f"s_cbranch_scc1 {label}_ok")
        a.I(f"s_cmp_lt_u32 s62, {SPIN_MAX}")
        a.I(f"s_cbranch_scc1 {label}")
        a.label(f"{label}_ok")
        a.I("s_mov_b64 exec, -1")

    def hsync(self, k, label, vz, vt):
        a = self.a
        a.I("s_waitcnt lgkmcnt(0)")
        a.I("s_lshl_b32 s45, s44, 2")
        a.I(f"s_add_u32 s45, s45, {L_HFLAG}")
        a.I(f"v_mov_b32 v{vz}, s45")
        a.I(f"v_mov_b32 v{vt}, {k}")
        a.I(f"ds_write_b32 v{vz}, v{vt}")
        a.I(f"v_mov_b32 v{vz}, {L_HFLAG}")
        a.I("s_mov_b32 s62, 0")
        a.label(label)
        a.I(f"ds_read_b128 v[{vt}:{vt+3}], v{vz}")
        a.I("s_add_u32 s62, s62, 1")
        a.I("s_waitcnt lgkmcnt(0)")
        a.I(f"v_min3_u32 v{vt}, v{vt}, v{vt+1}, v{vt+2}")
        a.I(f"v_min_u32 v{vt}, v{vt}, v{vt+3}")
        a.I(f"v_readfirstlane_b32 s45, v{vt}")
        a.I(f"s_cmp_ge_u32 s45, {k}")
        a.I(f"s_cbranch_scc1 {label}_ok")
        a.I(f"s_cmp_lt_u32 s62, {SPIN_MAX*4}")
        a.I(f"s_cbranch_scc1 {label}")
        a.label(f"{label}_ok")

    def bf16_round(self, regs, tmp):
        a = self.a
        for i in range(0, len(regs), 2):
            a.I(f"v_cvt_pk_bf16_f32 v{tmp}, v{regs[i]}, v{regs[i+1]}")
            a.I(f"v_lshlrev_b32 v{regs[i]}, 16, v{tmp}")
            a.I(f"v_and_b32 v{regs[i+1]}, 0xffff0000, v{tmp}")

    def unpack(self, src, lo, hi):
        a = self.a
        a.I(f"v_lshlrev_b32 v{lo}, 16, v{src}")
        a.I(f"v_and_b32 v{hi}, 0xffff0000, v{src}")

    def wave_sum_bcast(self, v, sdst):
        st.wave_reduce(self.a, 'v_add_f32', v, sdst)

    def ln_denom(self, vvar, vt):
        a = self.a
        a.I(f"v_cvt_pk_bf16_f32 v{vt}, v{vvar}, v{vvar}")
        a.I(f"v_lshlrev_b32 v{vvar}, 16, v{vt}")
        a.I(f"v_add_f32 v{vvar}, 0x{EPS:x}, v{vvar}")
        a.I(f"v_cvt_pk_bf16_f32 v{vt}, v{vvar}, v{vvar}")
        a.I(f"v_lshlrev_b32 v{vvar}, 16, v{vt}")
        a.I(f"v_sqrt_f32 v{vt}, v{vvar}")
        a.I(f"v_rcp_f32 v{vt+1}, v{vt}")
        a.I(f"v_fma_f32 v{vt+2}, -v{vt}, v{vt}, v{vvar}")
        a.I(f"v_mul_f32 v{vt+1}, 0.5, v{vt+1}")
        a.I(f"v_fma_f32 v{vt}, v{vt+2}, v{vt+1}, v{vt}")
        a.I(f"v_cvt_pk_bf16_f32 v{vt}, v{vt}, v{vt}")
        a.I(f"v_lshlrev_b32 v{vvar}, 16, v{vt}")

    def div_by(self, num, den, rcp, t):
        a = self.a
        a.I(f"v_mul_f32 v{t}, v{num}, v{rcp}")
        a.I(f"v_fma_f32 v{num}, -v{t}, v{den}, v{num}")
        a.I(f"v_fma_f32 v{num}, v{num}, v{rcp}, v{t}")

    def entry(self):
        a = self.a
        a.raw(HEADER.rstrip("\n"))
        a.raw(f"; @launch grid=(256,1,1) block=(768,1,1) lds={LDS_BYTES}")
        a.raw('.amdgcn_target "amdgcn-amd-amdhsa--gfx950"\n.text')
        a.raw(f".globl {self.name}\n.p2align 8\n.type {self.name},@function\n{self.name}:")
        a.I("s_cmp_ge_u32 s2, 256")
        a.I("s_cbranch_scc1 L_end")
        if self.cfg.dbgt:
            a.I("s_memrealtime s[98:99]")
        a.I("s_load_dwordx16 s[4:19], s[0:1], 0")
        a.I("s_load_dwordx8 s[20:27], s[0:1], 64")
        a.I("s_load_dwordx4 s[28:31], s[0:1], 96")
        a.I("v_lshrrev_b32 v1, 6, v0")
        a.I("v_and_b32 v5, 63, v0")
        a.I("v_readfirstlane_b32 s44, v1")
        a.I("s_lshr_b32 s45, s2, 1")
        a.I(f"s_mov_b32 s{S_PRE}, 2")
        a.I("s_bitcmp1_b32 s2, 0")
        a.I("s_cbranch_scc1 L_early_q")
        a.I(f"s_sub_u32 s{S_BAND}, s45, 4")
        a.I(f"s_cmp_lt_u32 s{S_BAND}, 60")
        a.I(f"s_cselect_b32 s{S_PRE}, 1, 0")
        a.I("s_cmp_lt_u32 s45, 64")
        a.I("s_cbranch_scc1 L_early_done")
        a.I(f"s_mov_b32 s{S_PRE}, 2")
        a.I("s_add_u32 s45, s45, 64")
        a.label("L_early_q")
        a.I(f"s_lshr_b32 s{S_BAND}, s45, 1")
        a.I(f"s_and_b32 s{S_KH}, s45, 1")
        a.label("L_early_done")
        a.I("s_cmp_lt_u32 s44, 4")
        a.I("s_cbranch_scc0 L_stream")

    def pair_unit(self, sv, sdst):
        a = self.a
        a.I(f"s_and_b32 s46, s{sv}, 7")
        a.I(f"s_lshr_b32 s47, s{sv}, 4")
        a.I("s_lshl_b32 s47, s47, 3")
        a.I("s_add_u32 s46, s46, s47")
        a.I(f"s_bfe_u32 s47, s{sv}, 0x10003")
        a.I(f"s_lshl_b32 s{sdst}, s46, 1")
        a.I(f"s_add_u32 s{sdst}, s{sdst}, s47")

    def roles_rest(self):
        a = self.a
        if self.cfg.xp == 0:
            a.I("s_and_b32 s45, s2, 7")
            a.I("s_lshr_b32 s46, s2, 3")
            a.I("s_and_b32 s47, s46, 3")
            a.I("s_lshl_b32 s47, s47, 3")
            a.I("s_add_u32 s58, s45, s47")
            a.I("s_lshr_b32 s46, s2, 5")
            a.I("s_lshr_b32 s57, s46, 1")
            a.I("s_and_b32 s59, s46, 1")
        else:
            a.I("s_and_b32 s59, s2, 1")
            a.I(f"s_xor_b32 s45, s2, {self.cfg.xp}")
            a.I("s_cmp_eq_u32 s59, 0")
            a.I("s_cselect_b32 s45, s2, s45")
            a.I("s_bfe_u32 s45, s45, 0x20001")
            a.I("s_lshr_b32 s46, s2, 3")
            a.I("s_lshr_b32 s57, s46, 3")
            a.I("s_and_b32 s46, s46, 7")
            a.I("s_lshl_b32 s46, s46, 2")
            a.I("s_add_u32 s58, s46, s45")
        a.I(f"s_mov_b32 s{S_POST}, 0")
        a.I("s_lshr_b32 s45, s2, 1")
        a.I("s_mul_i32 s46, s45, 6554")
        a.I("s_lshr_b32 s46, s46, 16")
        a.I(f"s_mov_b32 s{S_KG}, s46")
        a.I("s_mul_i32 s47, s46, 10")
        a.I(f"s_sub_u32 s{S_NB}, s45, s47")
        a.I("s_cmp_lt_u32 s45, 80")
        a.I(f"s_cselect_b32 s{S_POST}, 1, 0")
        lab = a.newlabel('roles_done')
        a.I("s_bitcmp1_b32 s2, 0")
        a.I(f"s_cbranch_scc0 {lab}")
        a.I(f"s_mov_b32 s{S_NB}, s45")
        a.I("s_cmp_lt_u32 s45, 48")
        a.I(f"s_cselect_b32 s{S_POST}, 2, 0")
        a.label(lab)

    def prefetch_weights(self):
        a = self.a
        pol = self.cfg.pfpol
        lab = a.newlabel('pf')
        a.I("s_cmp_eq_u32 s44, 0")
        a.I(f"s_cbranch_scc1 {lab}_done")
        a.I("v_lshlrev_b32 v8, 4, v5")
        if self.cfg.pfs:
            for i, p in enumerate((16, 18, 20)):
                a.I(f"s_cmp_eq_u32 s44, {i+1}")
                a.I(f"s_cbranch_scc0 {lab}_n{i}")
                a.I("s_mul_i32 s45, s2, 7680")
                self.srd(32, p, 7680, off=45)
                a.I("s_mov_b32 s46, 0")
                a.I("s_mov_b32 s63, 8")
                a.label(f"{lab}_t{i}")
                a.I(f"s_waitcnt vmcnt({self.cfg.PW - 1})")
                a.I(f"buffer_load_dwordx4 v[12:15], v8, s[32:35], s46 offen {pol}")
                a.I("s_add_u32 s46, s46, 1024")
                a.I("s_sub_u32 s63, s63, 1")
                a.I("s_cmp_lg_u32 s63, 0")
                a.I(f"s_cbranch_scc1 {lab}_t{i}")
                a.label(f"{lab}_n{i}")
            a.I(f"s_branch {lab}_done")
        a.I("s_cmp_eq_u32 s44, 3")
        a.I(f"s_cbranch_scc1 {lab}_small")
        a.I("s_mul_i32 s45, s2, 30720")
        self.srd(32, 12, 30720, off=45)
        a.I("s_sub_u32 s46, s44, 1")
        a.I("s_mul_i32 s46, s46, 15360")
        a.I("s_mov_b32 s63, 15")
        a.label(f"{lab}_l1")
        a.I(f"s_waitcnt vmcnt({self.cfg.PW - 1})")
        a.I(f"buffer_load_dwordx4 v[12:15], v8, s[32:35], s46 offen {pol}")
        a.I("s_add_u32 s46, s46, 1024")
        a.I("s_sub_u32 s63, s63, 1")
        a.I("s_cmp_lg_u32 s63, 0")
        a.I(f"s_cbranch_scc1 {lab}_l1")
        a.I(f"s_branch {lab}_done")
        a.label(f"{lab}_small")
        for i, p in enumerate((16, 18, 20)):
            a.I("s_mul_i32 s45, s2, 7680")
            self.srd(32, p, 7680, off=45)
            a.I("s_mov_b32 s46, 0")
            a.I("s_mov_b32 s63, 8")
            a.label(f"{lab}_s{i}")
            a.I(f"s_waitcnt vmcnt({self.cfg.PW - 1})")
            a.I(f"buffer_load_dwordx4 v[12:15], v8, s[32:35], s46 offen {pol}")
            a.I("s_add_u32 s46, s46, 1024")
            a.I("s_sub_u32 s63, s63, 1")
            a.I("s_cmp_lg_u32 s63, 0")
            a.I(f"s_cbranch_scc1 {lab}_s{i}")
        a.label(f"{lab}_done")
        a.fence(2)

    def v_weights(self):
        a = self.a
        WN = self.cfg.WW
        a.I(f"s_cmp_eq_u32 s{S_POST}, 1")
        a.I("s_cbranch_scc0 L_vw_gu")
        a.I(f"s_mul_i32 s45, s{S_KG}, {768*1280}")
        a.I(f"s_lshl_b32 s46, s{S_NB}, 7")
        a.I("s_add_u32 s47, s45, s46")
        self.srd(32, 12, 768 * 1280, off=47)
        self.dma_voff128(1280, 8, 9, 6, 7)
        a.I("s_sub_u32 s63, s44, 1")
        a.I(f"s_mul_i32 s46, s63, {256*1280}")
        a.I("s_lshl_b32 s47, s63, 15")
        a.I(f"s_add_u32 s47, s47, {L_W}")
        self.dma_loop(32, 32, 8, 9, 47, 46, 8 * 1280, "L_vw_wo_loop", window=WN + 1)
        a.I("s_branch L_vw_done")
        a.label("L_vw_gu")
        a.I(f"s_cmp_eq_u32 s{S_POST}, 2")
        a.I("s_cbranch_scc0 L_vw_done")
        a.I("s_cmp_eq_u32 s44, 3")
        a.I("s_cbranch_scc1 L_vw_dn")
        a.I(f"s_lshl_b32 s47, s{S_NB}, 6")
        a.I("s_cmp_eq_u32 s44, 2")
        a.I("s_cselect_b32 s48, s18, s16")
        a.I("s_cselect_b32 s49, s19, s17")
        self.srd(32, 48, 640 * 3072, off=47)
        self.dma_voff64(3072, 8, 6, 7)
        a.I("s_mov_b32 s46, 0")
        a.I("s_sub_u32 s47, s44, 1")
        a.I("s_mul_i32 s47, s47, 40960")
        a.I(f"s_add_u32 s47, s47, {L_W}")
        self.dma_loop(32, 40, 8, 8, 47, 46, 16 * 3072, "L_vw_gu_loop", window=WN)
        a.I("s_branch L_vw_done")
        a.label("L_vw_dn")
        a.I(f"s_mul_i32 s45, s{S_NB}, 40960")
        self.srd(32, 20, 40960, off=45)
        self.wdown_offsets()
        a.I("s_mov_b32 s46, 0")
        a.I(f"s_mov_b32 s47, {L_WD}")
        for q in range(8):
            for m in range(5):
                a.I("s_mov_b32 m0, s47")
                a.I("s_add_u32 s47, s47, 1024")
                a.I(f"buffer_load_dwordx4 v{(153 if (q >> 1) & 1 else 148) + m}, s[32:35], s46 offen {self.cfg.ntW} lds")
            if q < 7:
                a.I("s_add_u32 s46, s46, 5120")

    def wdown_issue(self):
        a = self.a
        a.I("s_sub_u32 s63, s44, 10")
        a.I("s_mul_i32 s48, s63, 20480")
        a.I(f"s_add_u32 s49, s48, {L_WD}")
        for q in range(4):
            for m in range(5):
                a.I("s_mov_b32 m0, s49")
                a.I("s_add_u32 s49, s49, 1024")
                a.I(f"buffer_load_dwordx4 v{(153 if (q >> 1) & 1 else 148) + m}, s[32:35], s48 offen {self.cfg.ntW} lds")
            if q < 3:
                a.I("s_add_u32 s48, s48, 5120")

    def wdown_offsets(self):
        a = self.a
        for m in range(5):
            a.I(f"v_lshlrev_b32 v6, 4, v5")
            a.I(f"v_add_u32 v6, {1024*m}, v6")
            a.I("v_mul_u32_u24 v7, 3277, v6")
            a.I("v_lshrrev_b32 v7, 22, v7")
            a.I("v_mul_u32_u24 v8, 1280, v7")
            a.I("v_sub_u32 v6, v6, v8")
            a.I("v_lshlrev_b32 v7, 5, v7")
            a.I("v_xor_b32 v9, v6, v7")
            a.I(f"v_add_u32 v{148+m}, v8, v9")
            a.I("v_xor_b32 v9, 128, v9")
            a.I(f"v_add_u32 v{153+m}, v8, v9")

    def roles_from_ticket(self, sfx=""):
        a = self.a
        a.I(f"v_mov_b32 v6, {L_FIN + 8}")
        a.I("ds_read_b32 v7, v6")
        a.I("s_waitcnt lgkmcnt(0)")
        a.I("v_readfirstlane_b32 s45, v7")
        if self.cfg.tkrot:
            r = self.cfg.tkrot
            a.I(f"s_add_u32 s46, s45, 48")
            a.I(f"s_sub_u32 s47, s45, {r}")
            a.I(f"s_cmp_lt_u32 s45, {r + 48}")
            a.I("s_cselect_b32 s47, s47, s45")
            a.I(f"s_cmp_lt_u32 s45, {r}")
            a.I("s_cselect_b32 s45, s46, s47")
        a.I("s_cmp_lt_u32 s45, 40")
        a.I(f"s_cselect_b32 s{S_DT}, s45, -1")
        a.I(f"s_mov_b32 s{S_NB}, s45")
        a.I("s_cmp_lt_u32 s45, 48")
        a.I(f"s_cselect_b32 s{S_POST}, 2, 0")
        a.I(f"s_cbranch_scc1 L_ticket_done{sfx}")
        a.I("s_sub_u32 s45, s45, 48")
        a.I("s_cmp_lt_u32 s45, 80")
        a.I(f"s_cselect_b32 s{S_POST}, 1, 0")
        a.I("s_mul_i32 s46, s45, 6554")
        a.I("s_lshr_b32 s46, s46, 16")
        a.I(f"s_mov_b32 s{S_KG}, s46")
        a.I("s_mul_i32 s47, s46, 10")
        a.I(f"s_sub_u32 s{S_NB}, s45, s47")
        a.label(f"L_ticket_done{sfx}")

    def code_prefetch(self, wave):
        a = self.a
        a.I(f"s_cmp_eq_u32 s44, {wave}")
        a.I("s_cbranch_scc0 L_nopf")
        a.I("s_getpc_b64 s[46:47]")
        a.label("L_pc")
        a.I(f"s_sub_u32 s46, s46, (L_pc-{self.name})")
        a.I("s_subb_u32 s47, s47, 0")
        a.I("s_lshr_b32 s45, s2, 3")
        a.I("s_lshl_b32 s45, s45, 10")
        a.I("v_lshlrev_b32 v6, 4, v5")
        a.I("v_add_u32 v6, s45, v6")
        a.I("v_mov_b32 v7, 0")
        a.I("v_mov_b32 v9, s47")
        a.I("v_add_co_u32 v8, vcc, s46, v6")
        a.I("v_addc_co_u32 v9, vcc, v9, v7, vcc")
        a.I(f"s_mov_b32 s45, (L_end-{self.name}-12)")
        a.I("v_cmp_gt_u32 vcc, s45, v6")
        a.I("s_and_saveexec_b64 s[46:47], vcc")
        a.I("s_cbranch_execz L_pfskip")
        a.I("global_load_dwordx4 v[12:15], v[8:9], off")
        a.label("L_pfskip")
        a.I("s_mov_b64 exec, s[46:47]")
        a.label("L_nopf")

    def pretouch(self):
        a = self.a
        a.I("s_cmp_eq_u32 s44, 10")
        a.I("s_cbranch_scc0 L_nopt")
        a.I("v_lshlrev_b32 v6, 21, v5")
        bufs = [(24, 640*7680), (10, 640*12288), (30, WS_SIZE), (28, 256), (4, 5120), (22, 5120),
                (12, 6144*1280), (16, 640*3072), (18, 640*3072), (20, 1536*1280), (26, 5120)]
        if self.cfg.pretouch >= 2:
            pass
        for i, (p, size) in enumerate(bufs):
            self.srd(32, p, size)
            a.I(f"buffer_load_dword v{12+i}, v6, s[32:35], 0 offen")
        a.label("L_nopt")

    def resets(self):
        a = self.a
        a.I("v_mov_b32 v8, -1")
        a.I("v_mov_b32 v9, -1")
        a.I("v_mov_b32 v10, -1")
        a.I("v_mov_b32 v11, -1")
        a.I("v_lshlrev_b32 v6, 4, v5")
        a.I("s_lshl_b32 s45, s57, 5")
        a.I("s_add_u32 s45, s45, s58")
        a.I("s_lshl_b32 s45, s45, 1")
        a.I("s_add_u32 s45, s45, s59")
        a.I("s_mul_i32 s45, s45, 768")
        a.I(f"s_add_u32 s45, s45, {WS_O}")
        a.I("s_mov_b32 exec_lo, -1"); a.I("s_mov_b32 exec_hi, 0xffff")
        a.I("buffer_store_dwordx4 v[8:11], v6, s[40:43], s45 offen sc1")
        a.I("s_lshl_b32 s45, s2, 7")
        a.I(f"s_add_u32 s45, s45, {WS_ML}")
        a.I("s_mov_b64 exec, 0x11")
        a.I("buffer_store_dwordx4 v[8:11], v6, s[40:43], s45 offen sc1")
        a.I("s_mov_b64 exec, -1")
        a.I("v_lshrrev_b32 v7, 4, v5")
        a.I("v_and_b32 v12, 15, v5")
        a.I("v_lshlrev_b32 v12, 4, v12")

        def rows(cmp, rowbytes, base, bandbytes, band_reg, nchunk, lab, extra=None):
            a.I(cmp)
            a.I(f"s_cbranch_scc0 {lab}")
            a.I(f"v_mul_u32_u24 v13, {rowbytes}, v7")
            a.I("v_add_u32 v13, v13, v12")
            a.I(f"s_mul_i32 s45, s{band_reg}, {bandbytes}")
            if extra:
                a.I(f"s_mul_i32 s46, s{extra}, {4*rowbytes}")
                a.I("s_add_u32 s45, s45, s46")
            a.I(f"s_add_u32 s45, s45, {base}")
            m = (1 << nchunk) - 1
            m32 = m | (m << 16)
            a.I(f"s_mov_b32 exec_lo, 0x{m32:x}")
            a.I(f"s_mov_b32 exec_hi, 0x{m32:x}")
            a.I("buffer_store_dwordx4 v[8:11], v13, s[40:43], s45 offen sc1")
            a.I("s_mov_b64 exec, -1")
            a.label(lab)
        rows(f"s_cmp_eq_u32 s{S_PRE}, 2", 24576, WS_Q, 256, S_BAND, 16, 'L_rs2', extra=S_KH)
        rows(f"s_cmp_eq_u32 s{S_PRE}, 1", 7680, WS_MOD, 128, S_BAND, 8, 'L_rs1')
        rows(f"s_cmp_eq_u32 s{S_POST}, 1", 2560, WS_Y, 256, S_NB, 16, 'L_rs3', extra=S_KG)
        a.I(f"s_cmp_eq_u32 s{S_POST}, 2")
        a.I("s_cbranch_scc0 L_rs4")
        a.I("v_mul_u32_u24 v13, 12288, v7")
        a.I("v_add_u32 v13, v13, v12")
        a.I(f"s_lshl_b32 s45, s{S_NB}, 8")
        a.I(f"s_add_u32 s45, s45, {WS_PD}")
        for k in range(10):
            a.I("buffer_store_dwordx4 v[8:11], v13, s[40:43], s45 offen sc1")
            if k < 9:
                a.I(f"s_add_u32 s45, s45, {4*12288}")
        a.label("L_rs4")

    def resets_arrive(self):
        a = self.a
        a.I("s_waitcnt vmcnt(0)")
        self.stamp(16)
        a.I("s_mov_b64 exec, 1")
        a.I("v_mov_b32 v8, 1")
        a.I("s_and_b32 s45, s2, 1")
        a.I("s_lshl_b32 s45, s45, 7")
        a.I("v_mov_b32 v9, s45")
        a.I("global_atomic_add v9, v8, s[28:29] sc1")
        a.I(f"s_cmp_eq_u32 s{S_PRE}, 1")
        a.I("s_cbranch_scc0 L_noc1")
        a.I(f"s_cmp_lt_u32 s{S_BAND}, 20")
        a.I("s_cbranch_scc0 L_noc1")
        a.I("v_mov_b32 v9, 132")
        a.I("global_atomic_add v9, v8, s[28:29] sc1")
        a.label("L_noc1")
        a.I("s_mov_b64 exec, -1")

    def master(self):
        a = self.a
        a.I("s_cmp_eq_u32 s44, 1")
        a.I("s_cbranch_scc0 L_notmaster")
        a.I("s_cmp_eq_u32 s2, 0")
        a.I("s_cbranch_scc0 L_notmaster")
        def go(val):
            a.I("s_mov_b64 exec, -1")
            a.I("v_lshlrev_b32 v8, 7, v5")
            a.I(f"v_mov_b32 v9, {val}")
            for k in range(4):
                a.I(f"s_mov_b32 s45, {WS_ML + 64 + 8192*k}")
                a.I("buffer_store_dword v9, v8, s[40:43], s45 offen sc1")
        a.I("v_lshlrev_b32 v7, 7, v5")
        a.I("v_mov_b32 v6, 132")
        a.I("v_cmp_eq_u32 vcc, 2, v5")
        a.I("v_cndmask_b32 v7, v7, v6, vcc")
        a.I("s_mov_b32 s62, 0")
        a.I("s_mov_b32 s63, 0")
        a.label("L_master")
        a.I("s_mov_b64 exec, 7")
        a.I("global_load_dword v6, v7, s[28:29] sc1")
        a.I("s_add_u32 s62, s62, 1")
        a.I("s_waitcnt vmcnt(0)")
        a.I("v_readlane_b32 s45, v6, 0")
        a.I("v_readlane_b32 s46, v6, 1")
        a.I("v_readlane_b32 s47, v6, 2")
        a.I("s_min_u32 s45, s45, s46")
        a.I("s_cmp_ge_u32 s45, 128")
        a.I("s_cbranch_scc1 L_master_ok")
        a.I("s_cmp_lt_u32 s47, 20")
        a.I("s_cbranch_scc1 L_master_next")
        a.I("s_cmp_eq_u32 s63, 0")
        a.I("s_cbranch_scc0 L_master_next")
        a.I("s_mov_b32 s63, 1")
        go(1)
        self.stamp(17)
        a.label("L_master_next")
        a.I(f"s_cmp_lt_u32 s62, {SPIN_MAX}")
        a.I("s_cbranch_scc1 L_master")
        a.label("L_master_ok")
        go(2)
        a.I("s_mov_b64 exec, -1")
        self.stamp(18)
        a.label("L_notmaster")

    def poll_go(self, label, vz, vt, level):
        a = self.a
        a.I("s_lshl_b32 s45, s2, 7")
        a.I(f"s_add_u32 s46, s45, {WS_ML + 64}")
        a.I(f"v_mov_b32 v{vz}, 0")
        a.I("s_mov_b32 s62, 0")
        a.I("s_mov_b64 exec, 1")
        a.label(label)
        a.I(f"buffer_load_dword v{vt}, v{vz}, s[40:43], s46 offen sc1")
        a.I("s_add_u32 s62, s62, 1")
        a.I("s_waitcnt vmcnt(0)")
        a.I(f"v_readfirstlane_b32 s{S_LATE}, v{vt}")
        a.I(f"s_sub_u32 s45, s{S_LATE}, {level}")
        a.I(f"s_cmp_le_u32 s45, {2-level}")
        a.I(f"s_cbranch_scc1 {label}_ok")
        a.I(f"s_cmp_lt_u32 s62, {SPIN_MAX}")
        a.I(f"s_cbranch_scc1 {label}")
        a.label(f"{label}_ok")
        a.I("s_mov_b64 exec, -1")

    def stream(self):
        a = self.a
        cfg = self.cfg
        a.label("L_stream")
        if self.cfg.hop2:
            a.raw("@@WARM2@@")
        a.I("s_cmp_eq_u32 s44, 11")
        a.I("s_cbranch_scc0 L_noprio")
        a.I("s_setprio 3")
        a.label("L_noprio")
        self.roles_rest()
        a.I("s_waitcnt lgkmcnt(0)")
        self.stamp(0)
        self.srd(40, 30, WS_SIZE)
        a.I("s_cmp_eq_u32 s44, 11")
        a.I("s_cbranch_scc0 L_noreset")
        self.resets()
        self.resets_arrive()
        a.I("s_setprio 0")
        a.label("L_noreset")
        a.fence(2)
        a.I("s_sub_u32 s44, s44, 4")
        a.I("s_lshl_b32 s45, s57, 5")
        a.I("s_add_u32 s45, s45, s58")
        a.I("s_mul_i32 s45, s45, 1572864")
        n0 = (128 + cfg.kx) * 6144
        a.I(f"s_mul_i32 s46, s59, {n0}")
        a.I("s_add_u32 s47, s45, s46")
        self.srd(32, 6, n0, off=47)
        self.srd(36, 8, n0, off=47)
        if cfg.kx:
            a.I("s_cmp_eq_u32 s59, 0")
            a.I(f"s_mov_b32 s45, {n0}")
            a.I(f"s_cselect_b32 s34, s45, {1572864 - n0}")
            a.I("s_mov_b32 s38, s34")
        a.I("s_branch L_stream_main")

    def stream_bulk(self):
        a = self.a
        cfg = self.cfg
        a.label("L_stream_main")
        a.fence(2)
        st.set_depth(cfg.D)

        def b0():
            a.I("s_barrier")
        S2 = dict(S); S2['b0_after'] = cfg.N1 - 1 if cfg.gate else -1
        def bm():
            a.I("s_cmp_eq_u32 s2, 0")
            a.I("s_cbranch_scc0 L_nobm")
            a.I("s_barrier")
            a.label("L_nobm")
        S2['hook_before'] = {cfg.NB0: b0}
        if cfg.NM:
            assert cfg.NM > cfg.NB0
            S2['hook_before'][cfg.NM] = bm
        issued = st.stream_prologue(a, cfg, S2)
        st.stream_main(a, cfg, S2, LDS, issued, self.stamp)
        a.I("s_add_u32 s44, s44, 4")
        a.I("s_branch L_post")

    def zero_flag(self):
        a = self.a
        a.I("s_lshl_b32 s45, s44, 2")
        a.I(f"s_add_u32 s45, s45, {L_HFLAG}")
        a.I("v_mov_b32 v6, s45")
        a.I("v_mov_b32 v7, 0")
        a.I("ds_write_b32 v6, v7")

    def u_layout(self, n, per):
        a = self.a
        magic = {80: 52429, 40: 104858}[per]
        a.I(f"s_mov_b32 s47, {magic}")
        for jj in range(n):
            a.I(f"v_add_u32 v6, {64*jj}, v5")
            a.I("v_mul_u32_u24 v7, s47, v6")
            a.I(f"v_lshrrev_b32 v{20+jj}, 22, v7")
            a.I(f"v_mul_u32_u24 v7, {per}, v{20+jj}")
            a.I("v_sub_u32 v6, v6, v7")
            a.I(f"v_lshlrev_b32 v{25+jj}, 2, v6")

    def helper_front(self):
        a = self.a
        a.label("L_helper")
        a.I("s_setprio 2")
        a.I("v_lshrrev_b32 v17, 4, v5")
        a.I("v_and_b32 v18, 15, v5")
        a.I(f"s_cmp_eq_u32 s{S_PRE}, 1")
        a.I("s_cbranch_scc0 L_hq0")
        self.dma_voff128(7680, 8, 9, 6, 7)
        a.I(f"s_mul_i32 s46, s44, {160*7680}")
        a.I(f"s_lshl_b32 s85, s{S_BAND}, 7")
        a.I("s_mul_i32 s47, s44, 20480")
        a.I(f"s_add_u32 s47, s47, {L_W}")
        a.I("v_mul_u32_u24 v16, 1280, v17")
        a.I("v_mad_u32_u24 v16, v18, 20, v16")
        a.I("s_mul_i32 s63, s44, 320")
        a.I("s_waitcnt lgkmcnt(0)")
        self.stamp(0)
        self.srd(36, 22, 5120)
        self.srd(32, 24, 640 * 7680, off=85)
        a.I("buffer_load_dwordx4 v[30:33], v16, s[36:39], s63 offen")
        a.I("buffer_load_dword v34, v16, s[36:39], s63 offen offset:16")
        self.dma_loop(32, 20, 8, 9, 47, 46, 8 * 7680, "L_mod_dma", cnt=85)
        self.stamp(3)
        a.I("s_branch L_modrest")
        a.label("L_hq0")
        a.I(f"s_cmp_eq_u32 s{S_PRE}, 2")
        a.I("s_cbranch_scc0 L_hnone")
        self.dma_voff128(12288, 8, 9, 6, 7)
        a.I(f"s_mul_i32 s46, s44, {80*12288}")
        a.I(f"s_mul_i32 s47, s{S_KH}, {320*12288}")
        a.I(f"s_lshl_b32 s45, s{S_BAND}, 7")
        a.I("s_add_u32 s85, s47, s45")
        a.I("s_mul_i32 s47, s44, 10240")
        a.I(f"s_add_u32 s47, s47, {L_W}")
        a.I("v_min_u32 v18, 9, v18")
        a.I("v_mul_u32_u24 v16, 1280, v17")
        a.I("v_lshl_add_u32 v16, v18, 4, v16")
        a.I(f"s_mul_i32 s63, s{S_KH}, 640")
        a.I("s_mul_i32 s45, s44, 160")
        a.I("s_add_u32 s63, s63, s45")
        a.I("v_lshlrev_b32 v19, 2, v5")
        a.I("s_mul_i32 s48, s44, 1280")
        a.I("s_waitcnt lgkmcnt(0)")
        self.stamp(0)
        self.srd(36, 4, 5120)
        self.srd(32, 10, 320 * 12288, off=85)
        for jj in range(5):
            a.I(f"buffer_load_dword v{35+jj}, v19, s[36:39], s48 offen offset:{256*jj}")
        a.I("buffer_load_dwordx4 v[28:31], v16, s[36:39], s63 offen")
        self.dma_loop(32, 10, 8, 9, 47, 46, 8 * 12288, "L_q_dma", cnt=85)
        self.stamp(3)
        a.I("s_branch L_qrest")

    def helper(self):
        a = self.a
        if self.cfg.hop2:
            a.hops_begin("L_hopP", self.cfg.hop2, seg=self.cfg.hop2seg, ret="L_warm2_ret")
        a.label("L_hnone")
        self.zero_flag()
        a.I("s_waitcnt lgkmcnt(0)")
        self.stamp(0)
        self.srd(40, 30, WS_SIZE)
        a.I("s_barrier")
        self.master()
        if self.cfg.NM:
            a.I("s_cmp_eq_u32 s2, 0")
            a.I("s_cbranch_scc0 L_h_go")
            a.I("s_barrier")
        a.I("s_branch L_h_go")
        a.label("L_modrest")
        a.fence(2)
        self.zero_flag()
        self.srd(40, 30, WS_SIZE)
        a.I(f"s_mov_b32 s54, 0x{LOG2E:x}")
        a.I("s_mul_i32 s47, s44, 320")
        a.I(f"s_add_u32 s47, s47, {L_ACT}")
        a.I("v_mul_u32_u24 v40, 1344, v17")
        a.I("v_mad_u32_u24 v40, v18, 20, v40")
        a.I("v_add_u32 v40, s47, v40")
        a.I("s_waitcnt vmcnt(20)")
        for jj in range(5):
            lo, hi = 46, 47
            self.unpack(30 + jj, lo, hi)
            for r in (lo, hi):
                a.I(f"v_mul_f32 v48, s54, v{r}")
                a.I("v_exp_f32 v48, -v48")
                a.I("v_add_f32 v48, 1.0, v48")
                a.I("v_min_f32 v48, 0x7f7fffff, v48")
                a.I("v_rcp_f32 v49, v48")
                self.div_by(r, 48, 49, 50)
            a.I(f"v_cvt_pk_bf16_f32 v46, v46, v47")
            a.I(f"ds_write_b32 v40, v46 offset:{4*jj}")
        self.tr_addr128(10, 6, 7)
        a.I("s_lshl_b32 s45, s44, 5")
        a.I("v_xor_b32 v10, s45, v10")
        a.I(f"v_add_u32 v10, {L_W}, v10")
        a.I(f"v_add_u32 v11, {10*4096}, v10")
        self.act_addr(14, 1344, 6)
        a.I("s_waitcnt vmcnt(0) lgkmcnt(0)")
        self.stamp(7)
        a.I("s_barrier")
        self.mfma_chain2(10, 10, 11, 4096, 512, 14, 64, 68)
        for k in range(4):
            a.I(f"v_add_f32 v{64+k}, v{64+k}, v{68+k}")
        a.I("v_cvt_pk_bf16_f32 v64, v64, v65")
        a.I("v_cvt_pk_bf16_f32 v65, v66, v67")
        self.canon([64, 65], 44)
        a.I("v_and_b32 v6, 3, v5")
        a.I("v_mul_u32_u24 v6, 7680, v6")
        a.I("v_lshrrev_b32 v7, 4, v5")
        a.I("v_lshl_add_u32 v6, v7, 3, v6")
        a.I(f"s_lshl_b32 s45, s{S_BAND}, 7")
        a.I("s_lshl_b32 s47, s44, 5")
        a.I("s_add_u32 s47, s47, s45")
        a.I(f"s_mov_b32 exec_lo, 0x{MASK_N4_LO:x}")
        a.I(f"s_mov_b32 exec_hi, 0x{MASK_N4_LO:x}")
        a.I("buffer_store_dwordx2 v[64:65], v6, s[40:43], s47 offen sc1")
        a.I("s_mov_b64 exec, -1")
        self.stamp(12)
        a.label("L_h_go")
        a.fence(2)
        a.I("s_cmp_lg_u32 s44, 0")
        a.I("s_cbranch_scc1 L_go_skip")
        self.poll_go("L_go1", 6, 7, 1 if self.cfg.gate == 2 else 2)
        a.label("L_go_skip")
        if self.cfg.gate:
            a.I("s_barrier")
        a.I("s_branch L_h_q")
        a.label("L_qrest")
        a.fence(2)
        self.zero_flag()
        self.srd(40, 30, WS_SIZE)
        a.I("s_waitcnt vmcnt(11)")
        for jj in range(5):
            self.unpack(35 + jj, 40 + 2 * jj, 41 + 2 * jj)
        a.I("v_add_f32 v6, v40, v41")
        for k in range(42, 50):
            a.I(f"v_add_f32 v6, v6, v{k}")
        self.wave_sum_bcast(6, 46)
        a.I("v_mov_b32 v6, 0x3acccccd")
        a.I("v_mul_f32 v50, s46, v6")
        a.I("v_mov_b32 v7, 0")
        for k in range(40, 50):
            a.I(f"v_sub_f32 v51, v{k}, v50")
            a.I("v_fmac_f32 v7, v51, v51")
        self.wave_sum_bcast(7, 46)
        a.I("v_mul_f32 v52, s46, v6")
        self.ln_denom(52, 53)
        a.I("v_cvt_pk_bf16_f32 v50, v50, v50")
        a.I("v_lshlrev_b32 v50, 16, v50")
        a.I("s_lshl_b32 s45, s44, 3")
        a.I(f"s_add_u32 s45, s45, {L_LNST}")
        a.I("v_mov_b32 v6, s45")
        a.I("ds_write_b32 v6, v50")
        a.I("ds_write_b32 v6, v52 offset:4")
        a.I("s_waitcnt vmcnt(0) lgkmcnt(0)")
        self.stamp(7)
        a.I("s_barrier")
        a.I("v_lshlrev_b32 v6, 3, v17")
        a.I(f"ds_read_b64 v[56:57], v6 offset:{L_LNST}")
        xr = list(range(60, 68))
        for k in range(4):
            self.unpack(28 + k, 60 + 2 * k, 61 + 2 * k)
        a.I("v_mul_u32_u24 v40, 7680, v17")
        a.I("v_lshl_add_u32 v40, v18, 4, v40")
        a.I("s_mul_i32 s47, s44, 160")
        a.I(f"s_add_u32 s47, s47, {L_ACT}")
        a.I("v_mul_u32_u24 v41, 704, v17")
        a.I("v_lshl_add_u32 v41, v18, 4, v41")
        a.I("v_add_u32 v41, s47, v41")
        a.I("s_waitcnt lgkmcnt(0)")
        for r in xr:
            a.I(f"v_sub_f32 v{r}, v{r}, v56")
        self.bf16_round(xr, 58)
        a.I("v_rcp_f32 v58, v57")
        for r in xr:
            self.div_by(r, 57, 58, 59)
        self.bf16_round(xr, 58)
        self.tr_addr128(10, 6, 7)
        a.I("s_lshl_b32 s45, s44, 5")
        a.I("v_xor_b32 v10, s45, v10")
        a.I(f"v_add_u32 v10, {L_W}, v10")
        self.act_addr(14, 704, 6)
        a.I("v_and_b32 v6, 15, v5")
        a.I("v_cmp_gt_u32 s[50:51], 10, v6")
        self.stamp(16)
        self.poll_go("L_go2", 6, 7, 1)
        if self.cfg.gate == 2:
            a.I("s_barrier")
        self.stamp(18)
        a.I(f"s_add_u32 s46, s63, {WS_MOD}")
        a.I(f"s_add_u32 s47, s63, {WS_MOD + 1280}")
        loads = ["buffer_load_dwordx4 v[28:31], v40, s[40:43], s46 offen sc1",
                 "buffer_load_dwordx4 v[32:35], v40, s[40:43], s47 offen sc1"]
        self.poll(loads, list(range(28, 36)), "L_pmod", pre=6)
        self.stamp(14)
        ca = list(range(44, 52))
        for k in range(4):
            self.unpack(32 + k, 44 + 2 * k, 45 + 2 * k)
        for r in ca:
            a.I(f"v_add_f32 v{r}, 1.0, v{r}")
        self.bf16_round(ca, 6)
        for k in range(8):
            a.I(f"v_mul_f32 v{60+k}, v{60+k}, v{44+k}")
        self.bf16_round(xr, 6)
        for k in range(4):
            self.unpack(28 + k, 44 + 2 * k, 45 + 2 * k)
        for k in range(8):
            a.I(f"v_add_f32 v{60+k}, v{60+k}, v{44+k}")
        for k in range(4):
            a.I(f"v_cvt_pk_bf16_f32 v{44+k}, v{60+2*k}, v{61+2*k}")
        a.I("s_mov_b64 exec, s[50:51]")
        a.I("ds_write_b128 v41, v[44:47]")
        a.I("s_mov_b64 exec, -1")
        if self.cfg.gate == 1:
            a.I("s_waitcnt lgkmcnt(0)")
            a.I("s_barrier")
        else:
            self.hsync(2, "L_hs2", 6, 16)
        self.stamp(17)
        self.mfma_chain(10, 10, 4096, 512, 14, 64)
        self.canon([64, 65, 66, 67], 44)
        a.I("v_and_b32 v6, 3, v5")
        a.I("v_mul_u32_u24 v6, 24576, v6")
        a.I("v_lshrrev_b32 v7, 4, v5")
        a.I("v_lshl_add_u32 v6, v7, 4, v6")
        a.I(f"s_mul_i32 s45, s{S_KH}, {4*24576}")
        a.I(f"s_lshl_b32 s47, s{S_BAND}, 8")
        a.I("s_add_u32 s47, s47, s45")
        a.I("s_lshl_b32 s45, s44, 6")
        a.I("s_add_u32 s47, s47, s45")
        a.I(f"s_add_u32 s47, s47, {WS_Q}")
        a.I(f"s_mov_b32 exec_lo, 0x{MASK_N4_LO:x}")
        a.I(f"s_mov_b32 exec_hi, 0x{MASK_N4_LO:x}")
        a.I("buffer_store_dwordx4 v[64:67], v6, s[40:43], s47 offen sc1")
        a.I("s_mov_b64 exec, -1")
        self.stamp(12)
        a.label("L_h_q")
        a.fence(2)
        self.roles_rest()
        self.srd(40, 30, WS_SIZE)
        a.I("s_cmp_lg_u32 s44, 0")
        a.I("s_cbranch_scc1 L_hb1")
        a.I(f"s_cmp_eq_u32 s{S_LATE}, 2")
        a.I("s_cbranch_scc1 L_go3_skip")
        self.poll_go("L_go3", 6, 7, 2)
        a.label("L_go3_skip")
        self.stamp(19)
        a.I("v_and_b32 v6, 31, v5")
        a.I("v_mul_u32_u24 v11, 12, v6")
        a.I("v_lshlrev_b32 v6, 1, v11")
        a.I("s_mul_i32 s45, s57, 24576")
        a.I("s_mul_i32 s46, s58, 768")
        a.I("s_add_u32 s46, s45, s46")
        a.I(f"s_add_u32 s46, s46, {WS_Q}")
        a.I(f"s_add_u32 s47, s46, {4*24576}")
        self.poll(["buffer_load_dwordx3 v[12:14], v6, s[40:43], s46 offen sc1",
                   "buffer_load_dwordx3 v[16:18], v6, s[40:43], s46 offen offset:12 sc1",
                   "buffer_load_dwordx3 v[20:22], v6, s[40:43], s47 offen sc1",
                   "buffer_load_dwordx3 v[24:26], v6, s[40:43], s47 offen offset:12 sc1"],
                  [12, 13, 14, 16, 17, 18, 20, 21, 22, 24, 25, 26], "L_pq", pre=7)
        for k in range(3):
            a.I(f"v_add_f32 v{12+k}, v{12+k}, v{20+k}")
            a.I(f"v_add_f32 v{16+k}, v{16+k}, v{24+k}")
        a.I("v_cvt_pk_bf16_f32 v8, v12, v13")
        a.I("v_cvt_pk_bf16_f32 v9, v14, v16")
        a.I("v_cvt_pk_bf16_f32 v10, v17, v18")
        a.I(f"ds_write_b32 v11, v8 offset:{L_QV}")
        a.I(f"ds_write_b32 v11, v9 offset:{L_QV+4}")
        a.I(f"ds_write_b32 v11, v10 offset:{L_QV+8}")
        a.I("s_waitcnt lgkmcnt(0)")
        a.label("L_hb1")
        self.stamp(1)
        a.I("s_barrier")
        self.stamp(2)
        if self.cfg.hop2:
            self.nseg = a.hops_end("L_warm2_ret")
        if self.cfg.hop:
            a.I("s_cmp_eq_u32 s44, 0")
            a.I("s_cbranch_scc1 L_late_done")
            a.I("s_mov_b64 exec, 0")
            a.I("s_cmp_eq_u32 s44, 1")
            a.I("s_cbranch_scc1 L_hopA_0")
            a.I("s_cmp_eq_u32 s44, 2")
            a.I("s_cbranch_scc1 L_hopB_0")
            a.I("s_branch L_hopC_0")
            a.label("L_warm_ret")
            a.I("s_mov_b64 exec, -1")
            self.stamp(22)
        if self.cfg.pf == 2:
            a.label("L_late_pf")
            self.prefetch_weights()
        a.label("L_late_done")
        a.fence(2)
        a.I("s_barrier")
        self.stamp(4)
        a.I("s_cmp_lg_u32 s44, 0")
        a.I("s_cbranch_scc1 L_hb3")
        self.ml_exchange()
        a.label("L_hb3")
        self.stamp(5)
        a.I("s_barrier")
        self.stamp(6)
        if self.cfg.early_w != 1:
            a.I("s_cmp_lg_u32 s44, 0")
            a.I("s_cbranch_scc1 L_tk_done")
            a.I(f"v_mov_b32 v6, {L_FIN}")
            a.I("s_mov_b32 s62, 0")
            a.label("L_tk_wait")
            a.I("ds_read_b32 v7, v6 offset:12")
            a.I("s_add_u32 s62, s62, 1")
            a.I("s_waitcnt lgkmcnt(0)")
            a.I("v_readfirstlane_b32 s45, v7")
            a.I("s_cmp_eq_u32 s45, 1")
            a.I("s_cbranch_scc1 L_tk_go")
            a.I(f"s_cmp_lt_u32 s62, {SPIN_MAX*16}")
            a.I("s_cbranch_scc1 L_tk_wait")
            a.label("L_tk_go")
            a.I("s_mov_b64 exec, 1")
            a.I("v_mov_b32 v7, 8")
            a.I("v_mov_b32 v8, 1")
            a.I("global_atomic_add v9, v7, v8, s[28:29] sc0 sc1")
            a.I("s_waitcnt vmcnt(0)")
            a.I("ds_write_b32 v6, v9 offset:8")
            a.I("s_waitcnt lgkmcnt(0)")
            a.I("s_mov_b64 exec, -1")
            a.label("L_tk_done")
            a.fence(2)
        if self.cfg.pf == 1:
            self.prefetch_weights()
        if self.cfg.early_w:
            a.I("s_cmp_eq_u32 s44, 0")
            a.I("s_cbranch_scc1 L_vw_done")
            if self.cfg.early_w == 2:
                a.I("s_setprio 0")
                a.I(f"v_mov_b32 v6, {L_FIN}")
                a.I("s_mov_b32 s62, 0")
                a.label("L_tkw")
                a.I("ds_read_b32 v7, v6 offset:8")
                a.I("ds_read_b32 v8, v6 offset:16")
                a.I("s_add_u32 s62, s62, 1")
                a.I("s_waitcnt lgkmcnt(0)")
                a.I("v_readfirstlane_b32 s45, v7")
                a.I("v_readfirstlane_b32 s46, v8")
                a.I("s_cmp_eq_u32 s45, -1")
                a.I("s_cselect_b32 s46, 0, s46")
                a.I("s_cmp_eq_u32 s46, 1")
                a.I("s_cbranch_scc1 L_tkw_ok")
                a.I(f"s_cmp_lt_u32 s62, {SPIN_MAX*16}")
                a.I("s_cbranch_scc1 L_tkw")
                a.label("L_tkw_ok")
            self.roles_from_ticket("v")
            self.v_weights()
            a.label("L_vw_done")
            a.fence(2)
        a.I("s_barrier")
        self.stamp(8)

    def dma_loop(self, srd, n, vE, vO, lds_reg, soff_reg, step, label, cnt=63, window=0, pol=None):
        a = self.a
        a.I(f"s_mov_b32 s{cnt}, {n // 2}")
        a.label(label)
        for v in (vE, vO):
            if window:
                a.I(f"s_waitcnt vmcnt({window - 1})")
            a.I(f"s_mov_b32 m0, s{lds_reg}")
            a.I(f"s_add_u32 s{lds_reg}, s{lds_reg}, 1024")
            a.I(f"buffer_load_dwordx4 v{v}, s[{srd}:{srd+3}], s{soff_reg} offen {self.cfg.ntW if pol is None else pol} lds")
            a.I(f"s_add_u32 s{soff_reg}, s{soff_reg}, {step}")
        a.I(f"s_sub_u32 s{cnt}, s{cnt}, 1")
        a.I(f"s_cmp_lg_u32 s{cnt}, 0")
        a.I(f"s_cbranch_scc1 {label}")

    def mfma_chain2(self, nks, vA0, vA1, stepA, half_off, vB, d0, d1):
        a = self.a
        DEPTH = 2

        def issue(ks):
            b = 80 + 16 * (ks % DEPTH)
            a.I(f"ds_read_b64_tr_b16 v[{b}:{b+1}], v{vA0} offset:{stepA*ks}")
            a.I(f"ds_read_b64_tr_b16 v[{b+2}:{b+3}], v{vA0} offset:{stepA*ks + half_off}")
            a.I(f"ds_read_b128 v[{b+4}:{b+7}], v{vB} offset:{64*ks}")
            a.I(f"ds_read_b64_tr_b16 v[{b+8}:{b+9}], v{vA1} offset:{stepA*ks}")
            a.I(f"ds_read_b64_tr_b16 v[{b+10}:{b+11}], v{vA1} offset:{stepA*ks + half_off}")
            a.I(f"ds_read_b128 v[{b+12}:{b+15}], v{vB} offset:{64*(nks+ks)}")
        for ks in range(DEPTH):
            issue(ks)
        for ks in range(nks):
            left = min(nks - 1 - ks, DEPTH - 1)
            a.I(f"s_waitcnt lgkmcnt({6*left})")
            b = 80 + 16 * (ks % DEPTH)
            c0 = "0" if ks == 0 else f"v[{d0}:{d0+3}]"
            c1 = "0" if ks == 0 else f"v[{d1}:{d1+3}]"
            a.I(f"v_mfma_f32_16x16x32_bf16 v[{d0}:{d0+3}], v[{b}:{b+3}], v[{b+4}:{b+7}], {c0}")
            a.I(f"v_mfma_f32_16x16x32_bf16 v[{d1}:{d1+3}], v[{b+8}:{b+11}], v[{b+12}:{b+15}], {c1}")
            if ks + DEPTH < nks:
                issue(ks + DEPTH)

    def mfma_chain(self, nks, vA, stepA, half_off, vB, dreg):
        a = self.a
        DEPTH = 4

        def issue(ks):
            b = 80 + 8 * (ks % DEPTH)
            a.I(f"ds_read_b64_tr_b16 v[{b}:{b+1}], v{vA} offset:{stepA*ks}")
            a.I(f"ds_read_b64_tr_b16 v[{b+2}:{b+3}], v{vA} offset:{stepA*ks + half_off}")
            a.I(f"ds_read_b128 v[{b+4}:{b+7}], v{vB} offset:{64*ks}")
        for ks in range(min(DEPTH, nks)):
            issue(ks)
        for ks in range(nks):
            left = min(nks - 1 - ks, DEPTH - 1)
            a.I(f"s_waitcnt lgkmcnt({3*left})")
            b = 80 + 8 * (ks % DEPTH)
            c = "0" if ks == 0 else f"v[{dreg}:{dreg+3}]"
            a.I(f"v_mfma_f32_16x16x32_bf16 v[{dreg}:{dreg+3}], v[{b}:{b+3}], v[{b+4}:{b+7}], {c}")
            if ks + DEPTH < nks:
                issue(ks + DEPTH)

    def dma_band128(self, srd, rowstride, ninstr, vE, vO, lds_base_sreg, soff_reg, tag):
        a = self.a
        for i in range(ninstr):
            a.I(f"s_mov_b32 m0, s{lds_base_sreg}")
            v = vO if i & 1 else vE
            a.I(f"s_add_u32 s{lds_base_sreg}, s{lds_base_sreg}, 1024")
            a.I(f"buffer_load_dwordx4 v{v}, s[{srd}:{srd+3}], s{soff_reg} offen {self.cfg.ntW} lds")
            if i + 1 < ninstr:
                a.I(f"s_add_u32 s{soff_reg}, s{soff_reg}, {8*rowstride}")

    def dma_voff128(self, rowstride, vE, vO, t0, t1):
        a = self.a
        a.I(f"v_lshrrev_b32 v{t0}, 3, v5")
        a.I(f"v_bfe_u32 v{t1}, v5, 4, 1")
        a.I(f"v_lshlrev_b32 v{t1}, 5, v{t1}")
        a.I(f"v_and_b32 v{vE}, 7, v5")
        a.I(f"v_lshlrev_b32 v{vE}, 4, v{vE}")
        a.I(f"v_xor_b32 v{vE}, v{vE}, v{t1}")
        a.I(f"v_xor_b32 v{vO}, 64, v{vE}")
        a.I(f"s_mov_b32 s45, {rowstride}")
        a.I(f"v_mul_lo_u32 v{t0}, s45, v{t0}")
        a.I(f"v_add_u32 v{vE}, v{vE}, v{t0}")
        a.I(f"v_add_u32 v{vO}, v{vO}, v{t0}")

    def tr_addr128(self, vdst, t0, t1):
        a = self.a
        a.I(f"v_lshrrev_b32 v{t0}, 4, v5")
        a.I(f"v_bfe_u32 v{t1}, v5, 2, 2")
        a.I(f"v_lshl_add_u32 v{vdst}, v{t0}, 3, v{t1}")
        a.I(f"v_lshlrev_b32 v{vdst}, 7, v{vdst}")
        a.I(f"v_and_b32 v{t0}, 1, v{t0}")
        a.I(f"v_lshlrev_b32 v{t0}, 6, v{t0}")
        a.I(f"v_bfe_u32 v{t1}, v5, 3, 1")
        a.I(f"v_lshlrev_b32 v{t1}, 5, v{t1}")
        a.I(f"v_or3_b32 v{vdst}, v{vdst}, v{t0}, v{t1}")
        a.I(f"v_and_b32 v{t0}, 3, v5")
        a.I(f"v_lshl_add_u32 v{vdst}, v{t0}, 3, v{vdst}")

    def act_addr(self, vdst, stride, t0):
        a = self.a
        a.I(f"v_and_b32 v{t0}, 3, v5")
        a.I(f"v_mul_u32_u24 v{vdst}, {stride}, v{t0}")
        a.I(f"v_lshrrev_b32 v{t0}, 4, v5")
        a.I(f"v_lshl_add_u32 v{vdst}, v{t0}, 4, v{vdst}")

    def ml_exchange(self):
        a = self.a
        a.I("v_and_b32 v6, 7, v5")
        a.I("v_lshlrev_b32 v6, 3, v6")
        a.I(f"ds_read_b64 v[8:9], v6 offset:{L_STATS}")
        a.I(f"s_mov_b32 s54, 0x{LOG2E:x}")
        a.I("s_waitcnt lgkmcnt(0)")
        a.I("v_mov_b32 v10, v8")
        a.I("v_max_f32_dpp v10, v10, v10 quad_perm:[1,0,3,2] row_mask:0xf bank_mask:0xf")
        a.I("v_max_f32_dpp v10, v10, v10 quad_perm:[2,3,0,1] row_mask:0xf bank_mask:0xf")
        a.I("v_max_f32_dpp v10, v10, v10 row_half_mirror row_mask:0xf bank_mask:0xf")
        a.I("v_sub_f32 v11, v8, v10")
        a.I("v_mul_f32 v11, s54, v11")
        a.I("v_exp_f32 v11, v11")
        a.I("v_mul_f32 v11, v11, v9")
        a.I("v_add_f32_dpp v11, v11, v11 quad_perm:[1,0,3,2] row_mask:0xf bank_mask:0xf")
        a.I("v_add_f32_dpp v11, v11, v11 quad_perm:[2,3,0,1] row_mask:0xf bank_mask:0xf")
        a.I("v_add_f32_dpp v11, v11, v11 row_half_mirror row_mask:0xf bank_mask:0xf")
        self.canon([10, 11], 12)
        a.I("s_lshl_b32 s45, s2, 7")
        a.I(f"s_add_u32 s45, s45, {WS_ML}")
        a.I("v_mov_b32 v6, 0")
        a.I("s_mov_b64 exec, 1")
        a.I("buffer_store_dwordx2 v[10:11], v6, s[40:43], s45 offen sc1")
        if self.cfg.early_w == 1:
            a.I("v_mov_b32 v7, 8")
            a.I("v_mov_b32 v18, 1")
            a.I("global_atomic_add v19, v7, v18, s[28:29] sc0 sc1")
        a.I("s_mov_b64 exec, -1")
        a.I(f"s_xor_b32 s46, s2, {self.cfg.xp or 32}")
        a.I("s_lshl_b32 s46, s46, 7")
        a.I(f"s_add_u32 s46, s46, {WS_ML}")
        self.poll(["buffer_load_dwordx2 v[12:13], v6, s[40:43], s46 offen sc1"], [12, 13], "L_pml", pre=7)
        a.I("v_max_f32 v14, v10, v12")
        a.I("v_sub_f32 v15, v10, v14")
        a.I("v_sub_f32 v16, v12, v14")
        a.I("v_mul_f32 v15, s54, v15")
        a.I("v_mul_f32 v16, s54, v16")
        a.I("v_exp_f32 v15, v15")
        a.I("v_exp_f32 v16, v16")
        a.I("v_mul_f32 v15, v15, v11")
        a.I("v_mul_f32 v16, v16, v13")
        a.I("v_add_f32 v15, v15, v16")
        a.I("v_rcp_f32 v16, v15")
        a.I("v_fma_f32 v17, -v15, v16, 1.0")
        a.I("v_fma_f32 v16, v17, v16, v16")
        a.I(f"v_mov_b32 v6, {L_FIN}")
        a.I("ds_write_b32 v6, v14")
        a.I("ds_write_b32 v6, v16 offset:4")
        if self.cfg.early_w != 1:
            a.I("v_mov_b32 v17, 0")
            a.I("ds_write_b32 v6, v17 offset:12")
            a.I("ds_write_b32 v6, v17 offset:16")
            a.I("v_mov_b32 v17, -1")
            a.I("ds_write_b32 v6, v17 offset:8")
        if self.cfg.early_w == 1:
            a.I("s_mov_b64 exec, 1")
            a.I("ds_write_b32 v6, v19 offset:8")
            a.I("s_mov_b64 exec, -1")
        a.I("s_waitcnt lgkmcnt(0)")

    def post(self):
        a = self.a
        a.label("L_post")
        a.hops_begin("L_hopA", self.cfg.hop)
        a.fence(4)
        a.I("s_setprio 0")
        a.I("v_and_b32 v5, 63, v0")
        a.I("s_cmp_lg_u32 s44, 0")
        a.I("s_cbranch_scc1 L_o_done")
        a.I("v_lshlrev_b32 v6, 4, v5")
        a.I("s_mov_b32 exec_lo, -1"); a.I("s_mov_b32 exec_hi, 0xffff")
        for w in range(8):
            a.I(f"ds_read_b128 v[{8+4*w}:{11+4*w}], v6 offset:{L_OPART+768*w}")
        for w in range(1, 8):
            a.I(f"s_waitcnt lgkmcnt({7-w})")
            for k in range(4):
                a.I(f"v_add_f32 v{8+k}, v{8+k}, v{8+4*w+k}")
        self.canon([8, 9, 10, 11], 12)
        a.I("s_lshl_b32 s45, s57, 5")
        a.I("s_add_u32 s45, s45, s58")
        a.I("s_lshl_b32 s45, s45, 1")
        a.I("s_add_u32 s45, s45, s59")
        a.I("s_mul_i32 s45, s45, 768")
        a.I(f"s_add_u32 s45, s45, {WS_O}")
        a.I("buffer_store_dwordx4 v[8:11], v6, s[40:43], s45 offen sc1")
        a.I("s_mov_b64 exec, -1")
        a.label("L_o_done")
        a.fence(2)
        self.roles_from_ticket()
        a.I(f"s_cmp_eq_u32 s{S_POST}, 0")
        a.I("s_cbranch_scc1 L_tail")
        if self.cfg.obar:
            a.I("s_barrier")
        a.I(f"s_cmp_eq_u32 s{S_POST}, 1")
        a.I("s_cbranch_scc0 L_post23")
        self.post_wo()
        a.I("s_branch L_tail")
        a.hops_end("L_warm_ret")
        a.label("L_post23")
        a.hops_begin("L_hopB", self.cfg.hop)
        a.fence(2)
        self.post_gu()
        a.I(f"s_cmp_lt_u32 s{S_DT}, 40")
        a.I("s_cbranch_scc0 L_tail")
        a.hops_end("L_warm_ret")
        a.hops_begin("L_hopC", self.cfg.hop)
        self.post_final()
        a.hops_end("L_warm_ret")

    def red_lane_addr(self, vdst, t):
        a = self.a
        a.I(f"v_lshrrev_b32 v{vdst}, 4, v5")
        a.I(f"v_and_b32 v{t}, 3, v5")
        a.I(f"v_lshl_add_u32 v{vdst}, v{vdst}, 2, v{t}")
        a.I(f"v_lshlrev_b32 v{vdst}, 4, v{vdst}")

    def write_red(self, dreg, vaddr):
        a = self.a
        a.I("s_lshl_b32 s45, s44, 8")
        a.I(f"s_add_u32 s45, s45, {L_RED}")
        a.I(f"v_add_u32 v{vaddr}, s45, v{vaddr}")
        a.I(f"s_mov_b32 exec_lo, 0x{MASK_N4_LO:x}")
        a.I(f"s_mov_b32 exec_hi, 0x{MASK_N4_LO:x}")
        a.I(f"ds_write_b128 v{vaddr}, v[{dreg}:{dreg+3}]")
        a.I("s_mov_b64 exec, -1")
        a.I("s_waitcnt lgkmcnt(0)")
        a.I("s_barrier")

    def mfma_run(self, nks, vA, offA, stepA, half_off, vB, dreg, first_reg=40):
        a = self.a
        for ks in range(nks):
            b = first_reg + 8 * ks
            a.I(f"ds_read_b64_tr_b16 v[{b}:{b+1}], v{vA} offset:{offA + stepA*ks}")
            a.I(f"ds_read_b64_tr_b16 v[{b+2}:{b+3}], v{vA} offset:{offA + stepA*ks + half_off}")
            a.I(f"ds_read_b128 v[{b+4}:{b+7}], v{vB} offset:{64*ks}")
        for ks in range(nks):
            b = first_reg + 8 * ks
            a.I(f"s_waitcnt lgkmcnt({min(15, 3*(nks-1-ks))})")
            c = "0" if ks == 0 else f"v[{dreg}:{dreg+3}]"
            a.I(f"v_mfma_f32_16x16x32_bf16 v[{dreg}:{dreg+3}], v[{b}:{b+3}], v[{b+4}:{b+7}], {c}")

    def mfma_preread(self, n, vA, stepA, half_off, first):
        a = self.a
        for ks in range(n):
            b = first + 4 * ks
            a.I(f"ds_read_b64_tr_b16 v[{b}:{b+1}], v{vA} offset:{stepA*ks}")
            a.I(f"ds_read_b64_tr_b16 v[{b+2}:{b+3}], v{vA} offset:{stepA*ks + half_off}")

    def mfma_with_b(self, n, firstA, vB, firstB, dreg):
        a = self.a
        for ks in range(n):
            b = firstB + 4 * ks
            a.I(f"ds_read_b128 v[{b}:{b+3}], v{vB} offset:{64*ks}")
        for ks in range(n):
            a.I(f"s_waitcnt lgkmcnt({n-1-ks})")
            c = "0" if ks == 0 else f"v[{dreg}:{dreg+3}]"
            a.I(f"v_mfma_f32_16x16x32_bf16 v[{dreg}:{dreg+3}], v[{firstA+4*ks}:{firstA+4*ks+3}], v[{firstB+4*ks}:{firstB+4*ks+3}], {c}")

    def post_wo(self):
        a = self.a
        if not self.cfg.early_w:
            a.I(f"s_mul_i32 s45, s{S_KG}, {768*1280}")
            a.I(f"s_lshl_b32 s46, s{S_NB}, 7")
            a.I("s_add_u32 s47, s45, s46")
            self.srd(32, 12, 768 * 1280, off=47)
            self.dma_voff128(1280, 8, 9, 6, 7)
            a.I(f"s_mul_i32 s46, s44, {64*1280}")
            a.I("s_lshl_b32 s47, s44, 13")
            a.I(f"s_add_u32 s47, s47, {L_W}")
            self.dma_loop(32, 8, 8, 9, 47, 46, 8 * 1280, "L_wo_dma")
        a.I("s_mul_i32 s45, s44, 21846")
        a.I("s_lshr_b32 s45, s45, 16")
        a.I("s_mul_i32 s46, s45, 3")
        a.I("s_sub_u32 s46, s44, s46")
        a.I("s_lshl_b32 s46, s46, 6")
        a.I("v_add_u32 v10, s46, v5")
        a.I("v_mul_u32_u24 v11, 1366, v10")
        a.I("v_lshrrev_b32 v11, 16, v11")
        a.I("v_mul_u32_u24 v12, 48, v11")
        a.I("v_sub_u32 v12, v10, v12")
        a.I("v_mul_u32_u24 v11, 1536, v11")
        a.I("v_lshl_add_u32 v11, v12, 4, v11")
        a.I("s_lshl_b32 s63, s45, 5")
        a.I(f"s_lshl_b32 s46, s{S_KG}, 2")
        a.I("s_add_u32 s63, s63, s46")
        a.I("s_mul_i32 s63, s63, 1536")
        a.I(f"s_add_u32 s63, s63, {WS_O}")
        a.I("s_mul_i32 s46, s45, 1600")
        a.I(f"s_add_u32 s46, s46, {L_ACT}")
        a.I("v_lshl_add_u32 v13, v10, 3, s46")
        self.tr_addr128(14, 6, 7)
        a.I("s_and_b32 s45, s44, 3")
        a.I("s_lshl_b32 s45, s45, 5")
        a.I("v_xor_b32 v14, s45, v14")
        a.I("s_lshr_b32 s45, s44, 2")
        a.I("s_lshl_b32 s46, s45, 15")
        a.I(f"s_add_u32 s46, s46, {L_W}")
        a.I("v_add_u32 v14, s46, v14")
        self.act_addr(15, 1600, 6)
        a.I("s_lshl_b32 s46, s45, 9")
        a.I(f"s_add_u32 s46, s46, {L_ACT}")
        a.I("v_add_u32 v15, s46, v15")
        self.red_lane_addr(16, 6)
        a.I("v_and_b32 v17, 3, v5")
        a.I("v_mul_u32_u24 v17, 2560, v17")
        a.I("v_lshrrev_b32 v7, 2, v5")
        a.I("v_lshl_add_u32 v17, v7, 4, v17")
        a.I("s_waitcnt vmcnt(0)")
        a.I("s_barrier")
        self.stamp(9)
        if self.cfg.p2:
            def seed():
                self.mfma_preread(8, 14, 4096, 512, 40)
                if self.cfg.p2 > 1: a.I(f"s_sleep {self.cfg.p2}")
            self.poll2(["buffer_load_dwordx4 v[20:23], v11, s[40:43], s63 offen sc1",
                        "buffer_load_dwordx4 v[24:27], v11, s[40:43], s63 offen offset:768 sc1"], list(range(20, 28)),
                       ["buffer_load_dwordx4 v[104:107], v11, s[40:43], s63 offen sc1",
                        "buffer_load_dwordx4 v[108:111], v11, s[40:43], s63 offen offset:768 sc1"], list(range(104, 112)),
                       "L_po", 6, seed)
        else:
            self.mfma_preread(8, 14, 4096, 512, 40)
            self.poll(["buffer_load_dwordx4 v[20:23], v11, s[40:43], s63 offen sc1",
                       "buffer_load_dwordx4 v[24:27], v11, s[40:43], s63 offen offset:768 sc1"],
                      list(range(20, 28)), "L_po", pre=6)
        self.stamp(10)
        for k in range(4):
            a.I(f"v_add_f32 v{20+k}, v{20+k}, v{24+k}")
        a.I("v_cvt_pk_bf16_f32 v20, v20, v21")
        a.I("v_cvt_pk_bf16_f32 v21, v22, v23")
        a.I("ds_write_b64 v13, v[20:21]")
        a.I("s_waitcnt lgkmcnt(0)")
        a.I("s_barrier")
        self.mfma_with_b(8, 40, 15, 72, 20)
        self.write_red(20, 16)
        a.I("s_cmp_lg_u32 s44, 0")
        a.I("s_cbranch_scc1 L_wo_done")
        a.I("v_lshlrev_b32 v6, 4, v5")
        for kt in range(3):
            a.I(f"ds_read_b128 v[{20+4*kt}:{23+4*kt}], v6 offset:{L_RED + 1024*kt}")
        a.I(f"s_mul_i32 s45, s{S_KG}, 10240")
        a.I(f"s_lshl_b32 s46, s{S_NB}, 8")
        a.I("s_add_u32 s45, s45, s46")
        a.I(f"s_add_u32 s45, s45, {WS_Y}")
        a.I("s_waitcnt lgkmcnt(0)")
        for k in range(4):
            a.I(f"v_add_f32 v{20+k}, v{20+k}, v{24+k}")
        for k in range(4):
            a.I(f"v_add_f32 v{20+k}, v{20+k}, v{28+k}")
        self.canon([20, 21, 22, 23], 12)
        a.I("buffer_store_dwordx4 v[20:23], v17, s[40:43], s45 offen sc1")
        a.label("L_wo_done")
        self.stamp(11)

    def dma_band64(self, srd, rowstride, ninstr, v, lds_reg, soff_reg):
        a = self.a
        for i in range(ninstr):
            a.I(f"s_mov_b32 m0, s{lds_reg}")
            a.I(f"s_add_u32 s{lds_reg}, s{lds_reg}, 1024")
            a.I(f"buffer_load_dwordx4 v{v}, s[{srd}:{srd+3}], s{soff_reg} offen {self.cfg.ntW} lds")
            if i + 1 < ninstr:
                a.I(f"s_add_u32 s{soff_reg}, s{soff_reg}, {16*rowstride}")

    def dma_voff64(self, rowstride, v, t0, t1):
        a = self.a
        a.I(f"v_lshrrev_b32 v{t0}, 2, v5")
        a.I(f"v_bfe_u32 v{t1}, v5, 5, 1")
        a.I(f"v_lshlrev_b32 v{t1}, 5, v{t1}")
        a.I(f"v_and_b32 v{v}, 3, v5")
        a.I(f"v_lshlrev_b32 v{v}, 4, v{v}")
        a.I(f"v_xor_b32 v{v}, v{v}, v{t1}")
        a.I(f"v_mul_u32_u24 v{t0}, {rowstride}, v{t0}")
        a.I(f"v_add_u32 v{v}, v{v}, v{t0}")

    def tr_addr64(self, vdst, t0, t1):
        a = self.a
        a.I(f"v_lshrrev_b32 v{t0}, 4, v5")
        a.I(f"v_bfe_u32 v{t1}, v5, 2, 2")
        a.I(f"v_lshl_add_u32 v{vdst}, v{t0}, 3, v{t1}")
        a.I(f"v_lshlrev_b32 v{vdst}, 6, v{vdst}")
        a.I(f"v_and_b32 v{t0}, 1, v{t0}")
        a.I(f"v_lshl_or_b32 v{vdst}, v{t0}, 5, v{vdst}")
        a.I(f"v_and_b32 v{t0}, 3, v5")
        a.I(f"v_lshl_add_u32 v{vdst}, v{t0}, 3, v{vdst}")

    def x1_from_y(self, vy_addr_soff, yregs, ga, xr, out, t):
        a = self.a
        for k in range(4):
            a.I(f"v_add_f32 v{out+k}, v{yregs+k}, v{yregs+4+k}")
        for w in range(2, 8):
            for k in range(4):
                a.I(f"v_add_f32 v{out+k}, v{out+k}, v{yregs+4*w+k}")
        o = [out + k for k in range(4)]
        self.bf16_round(o, t)
        for p in range(2):
            self.unpack(ga + p, t + 1, t + 2)
            a.I(f"v_mul_f32 v{o[2*p]}, v{o[2*p]}, v{t+1}")
            a.I(f"v_mul_f32 v{o[2*p+1]}, v{o[2*p+1]}, v{t+2}")
        self.bf16_round(o, t)
        for p in range(2):
            self.unpack(xr + p, t + 1, t + 2)
            a.I(f"v_add_f32 v{o[2*p]}, v{o[2*p]}, v{t+1}")
            a.I(f"v_add_f32 v{o[2*p+1]}, v{o[2*p+1]}, v{t+2}")
        self.bf16_round(o, t)

    def post_gu(self):
        a = self.a
        a.I("s_mul_i32 s45, s44, 21846")
        a.I("s_lshr_b32 s87, s45, 16")
        a.I("s_mul_i32 s46, s87, 3")
        a.I("s_sub_u32 s88, s44, s46")
        a.I("s_mul_i32 s46, s88, 54")
        a.I("v_add_u32 v10, s46, v5")
        a.I("v_cmp_gt_u32 vcc, 54, v5")
        a.I("s_mov_b64 s[50:51], vcc")
        a.I("v_mov_b32 v6, 160")
        a.I("v_cmp_lt_u32 vcc, v10, v6")
        a.I("s_and_b64 s[50:51], s[50:51], vcc")
        a.I("v_min_u32 v10, 159, v10")
        a.I("v_lshlrev_b32 v11, 3, v10")
        a.I("s_mul_i32 s46, s87, 7680")
        a.I(f"s_add_u32 s46, s46, {WS_MOD}")
        self.srd(36, 4, 5120)
        a.I("s_mul_i32 s47, s87, 1280")
        a.I("buffer_load_dwordx2 v[18:19], v11, s[36:39], s47 offen")
        a.I("v_add_u32 v40, 2560, v11")
        a.I("v_add_u32 v41, 3840, v11")
        a.I("v_add_u32 v42, 5120, v11")
        a.I("s_mul_i32 s85, s87, 7680")
        a.I(f"s_add_u32 s85, s85, {WS_MOD}")
        a.I("v_lshlrev_b32 v32, 4, v10")
        a.I("s_mul_i32 s86, s87, 2560")
        a.I(f"s_add_u32 s86, s86, {WS_Y}")
        yloads = []
        for w in range(8):
            yloads.append((f"buffer_load_dwordx4 v[{48+4*w}:{51+4*w}], v{80+w if False else 140+w}, s[40:43], s86 offen sc1", [48+4*w+k for k in range(4)]))
            a.I(f"v_add_u32 v{140+w}, {10240*w}, v32")
        modloads = ["buffer_load_dwordx2 v[12:13], v40, s[40:43], s85 offen sc1",
                    "buffer_load_dwordx2 v[14:15], v41, s[40:43], s85 offen sc1",
                    "buffer_load_dwordx2 v[16:17], v42, s[40:43], s85 offen sc1"]
        for ld in modloads:
            a.I(ld)
        if not self.cfg.early_w:
            a.I("s_cmp_ge_u32 s44, 10")
            a.I("s_cbranch_scc1 L_gu_dn")
            a.I(f"s_lshl_b32 s47, s{S_NB}, 6")
            a.I("s_cmp_ge_u32 s44, 5")
            a.I("s_cselect_b32 s48, s18, s16")
            a.I("s_cselect_b32 s49, s19, s17")
            a.I("s_cselect_b32 s63, 5, 0")
            self.srd(32, 48, 640 * 3072, off=47)
            self.dma_voff64(3072, 8, 6, 7)
            a.I("s_sub_u32 s63, s44, s63")
            a.I(f"s_mul_i32 s46, s63, {128*3072}")
            a.I("s_lshl_b32 s47, s44, 13")
            a.I(f"s_add_u32 s47, s47, {L_W}")
            self.dma_loop(32, 8, 8, 8, 47, 46, 16 * 3072, "L_gu_dma", pol=self.cfg.ntG)
            a.I("s_waitcnt vmcnt(8)")
            a.I("s_branch L_gu_dma_done")
            a.label("L_gu_dn")
            if not self.cfg.wdl:
                a.I(f"s_mul_i32 s45, s{S_NB}, 40960")
                self.srd(32, 20, 40960, off=45)
                self.wdown_offsets()
                self.wdown_issue()
                a.I("s_waitcnt vmcnt(20)")
            else:
                a.I("s_waitcnt vmcnt(0)")
            a.label("L_gu_dma_done")
            a.fence(2)
        else:
            a.I("s_waitcnt vmcnt(0)")
        self.stamp(22)
        a.I("v_max3_u32 v6, v12, v13, v14")
        a.I("v_max3_u32 v6, v6, v15, v16")
        a.I("v_max_u32 v6, v6, v17")
        a.I("v_cmp_eq_u32 vcc, -1, v6")
        a.I("s_cmp_eq_u64 vcc, 0")
        a.I("s_cbranch_scc1 L_pm2_skip")
        self.poll(modloads, list(range(12, 18)), "L_pm2", pre=6)
        a.label("L_pm2_skip")
        self.stamp(23)
        self.unpack(16, 20, 21)
        self.unpack(17, 22, 23)
        for k in range(4):
            a.I(f"v_add_f32 v{20+k}, 1.0, v{20+k}")
        self.bf16_round([20, 21, 22, 23], 6)
        self.unpack(14, 24, 25)
        self.unpack(15, 26, 27)
        self.unpack(12, 84, 85)
        self.unpack(13, 86, 87)
        self.unpack(18, 88, 89)
        self.unpack(19, 90, 91)
        self.tr_addr64(28, 6, 7)
        a.I("s_and_b32 s45, s44, 1")
        a.I("s_lshl_b32 s45, s45, 5")
        a.I("v_xor_b32 v28, s45, v28")
        a.I("s_bfe_u32 s45, s44, 0x10001")
        a.I("s_mul_i32 s45, s45, 40960")
        a.I("s_lshr_b32 s46, s44, 2")
        a.I(f"s_mul_i32 s47, s46, {7*2048}")
        a.I("s_add_u32 s45, s45, s47")
        a.I(f"s_add_u32 s45, s45, {L_W}")
        a.I("v_add_u32 v28, s45, v28")
        self.act_addr(29, 1344, 6)
        a.I(f"s_mul_i32 s47, s46, {7*64}")
        a.I(f"s_add_u32 s47, s47, {L_ACT}")
        a.I("v_add_u32 v29, s47, v29")
        self.red_lane_addr(30, 6)
        a.I("s_mul_i32 s47, s87, 1344")
        a.I(f"s_add_u32 s47, s47, {L_ACT}")
        a.I("v_lshl_add_u32 v31, v10, 3, s47")
        a.I("s_mul_i32 s45, s87, 1280")
        a.I(f"s_add_u32 s45, s45, {L_OPART}")
        a.I("v_lshl_add_u32 v92, v10, 3, s45")
        a.I("s_cmp_eq_u32 s88, 2")
        a.I("s_mov_b32 s45, 0x3b9d89d9")
        a.I("s_cselect_b32 s45, s45, 0x3b97b426")
        a.I("v_mov_b32 v93, s45")
        a.I("s_lshl_b32 s45, s44, 3")
        a.I(f"s_add_u32 s45, s45, {L_LNST}")
        a.I("v_mov_b32 v94, s45")
        a.I("s_mul_i32 s45, s87, 24")
        a.I(f"s_add_u32 s45, s45, {L_LNST}")
        a.I("v_mov_b32 v95, s45")
        if self.cfg.early_w:
            a.I("s_cmp_eq_u32 s44, 3")
        else:
            a.I("s_cmp_ge_u32 s44, 10")
        a.I("s_cbranch_scc1 L_gu_nowait")
        a.I("s_waitcnt vmcnt(0)")
        a.label("L_gu_nowait")
        a.I("s_barrier")
        if self.cfg.wdl and not self.cfg.early_w:
            a.I("s_cmp_lt_u32 s44, 10")
            a.I("s_cbranch_scc1 L_gu_nowd")
            a.I(f"s_mul_i32 s45, s{S_NB}, 40960")
            self.srd(32, 20, 40960, off=45)
            self.wdown_offsets()
            self.wdown_issue()
            a.label("L_gu_nowd")
            a.fence(2)
        self.stamp(9)
        self.mfma_preread(7, 28, 2048, 256, 96)
        a.I("v_lshrrev_b32 v6, 4, v5")
        a.I("v_bfe_u32 v7, v5, 2, 2")
        a.I("v_lshl_add_u32 v8, v6, 3, v7")
        a.I("v_mul_u32_u24 v8, 1280, v8")
        a.I("v_and_b32 v9, 3, v5")
        a.I("v_lshl_add_u32 v8, v9, 3, v8")
        a.I(f"v_add_u32 v8, {L_WD}, v8")
        a.I("v_and_b32 v6, 1, v6")
        a.I("v_lshl_or_b32 v7, v6, 2, v7")
        a.I("v_lshlrev_b32 v7, 5, v7")
        for t in range(4):
            a.I(f"s_add_u32 s45, s44, {12*t}")
            a.I("s_lshl_b32 s45, s45, 5")
            a.I(f"v_xor_b32 v9, s45, v7")
            a.I(f"v_add_u32 v{158+t}, v8, v9")
        if self.cfg.ygate:
            a.I("s_and_b32 s45, s44, 7")
            a.I("s_mul_i32 s45, s45, 10240")
            a.I("v_add_u32 v6, s45, v32")
            self.poll(["buffer_load_dwordx4 v[44:47], v6, s[40:43], s86 offen sc1"], [44, 45, 46, 47], "L_pyg", pre=7)
        self.poll_sel(yloads, "L_py", 6)
        self.stamp(10)
        for (o_, d, q) in ((48, 48, 52), (56, 56, 60), (64, 64, 68), (72, 72, 76), (48, 48, 56), (64, 64, 72), (40, 48, 64)):
            a.I(f"v_pk_add_f32 v[{o_}:{o_+1}], v[{d}:{d+1}], v[{q}:{q+1}]")
            a.I(f"v_pk_add_f32 v[{o_+2}:{o_+3}], v[{d+2}:{d+3}], v[{q+2}:{q+3}]")
        o = [40, 41, 42, 43]
        self.bf16_round(o, 6)
        a.I("v_pk_mul_f32 v[40:41], v[40:41], v[84:85]")
        a.I("v_pk_mul_f32 v[42:43], v[42:43], v[86:87]")
        self.bf16_round(o, 6)
        a.I("v_pk_add_f32 v[40:41], v[40:41], v[88:89]")
        a.I("v_pk_add_f32 v[42:43], v[42:43], v[90:91]")
        a.I("v_cvt_pk_bf16_f32 v36, v40, v41")
        a.I("v_cvt_pk_bf16_f32 v37, v42, v43")
        self.unpack(36, 32, 33)
        self.unpack(37, 34, 35)
        a.I("s_mov_b64 exec, s[50:51]")
        a.I("ds_write_b64 v92, v[36:37]")
        a.I("s_mov_b64 exec, -1")
        a.I("v_readfirstlane_b32 s46, v32")
        for k in range(4):
            a.I(f"v_subrev_f32 v{40+k}, s46, v{32+k}")
        a.I("v_add_f32 v36, v40, v41")
        a.I("v_mul_f32 v37, v40, v40")
        a.I("v_add_f32 v38, v42, v43")
        a.I("v_fmac_f32 v37, v41, v41")
        a.I("v_add_f32 v36, v36, v38")
        a.I("v_fmac_f32 v37, v42, v42")
        a.I("v_fmac_f32 v37, v43, v43")
        a.I("v_cndmask_b32 v36, 0, v36, s[50:51]")
        a.I("v_cndmask_b32 v37, 0, v37, s[50:51]")
        for r in (8, 4, 2, 1):
            for v in (36, 37):
                a.I(f"v_add_f32_dpp v{v}, v{v}, v{v} row_ror:{r} row_mask:0xf bank_mask:0xf")
        for m in ("row_bcast:15 row_mask:0xa", "row_bcast:31 row_mask:0xc"):
            for v in (36, 37):
                a.I(f"v_add_f32_dpp v{v}, v{v}, v{v} {m} bank_mask:0xf")
        a.I("v_readlane_b32 s47, v36, 63")
        a.I("v_readlane_b32 s45, v37, 63")
        a.I("v_mul_f32 v38, s47, v93")
        a.I("v_mov_b32 v39, s45")
        a.I("v_add_f32 v37, s46, v38")
        a.I("v_mul_f32 v38, s47, v38")
        a.I("v_sub_f32 v38, v39, v38")
        a.I("ds_write_b32 v94, v37")
        a.I("ds_write_b32 v94, v38 offset:4")
        a.I("s_waitcnt lgkmcnt(0)")
        a.I("s_barrier")
        self.stamp(16)
        a.I("ds_read_b64 v[40:41], v95")
        a.I("ds_read_b64 v[42:43], v95 offset:8")
        a.I("ds_read_b64 v[44:45], v95 offset:16")
        for t in range(4):
            b = 124 + 4 * t
            a.I(f"ds_read_b64_tr_b16 v[{b}:{b+1}], v{158+t}")
            a.I(f"ds_read_b64_tr_b16 v[{b+2}:{b+3}], v{158+t} offset:{4*1280}")
        a.I("s_waitcnt lgkmcnt(8)")
        a.I("v_add_f32 v46, v40, v42")
        a.I("v_mov_b32 v47, 0x43500000")
        a.I("v_mul_f32 v46, 0x43580000, v46")
        a.I("v_add_f32 v41, v41, v43")
        a.I("v_fmac_f32 v46, v47, v44")
        a.I("v_add_f32 v41, v41, v45")
        a.I("v_mul_f32 v46, 0x3acccccd, v46")
        a.I("v_sub_f32 v40, v40, v46")
        a.I("v_sub_f32 v42, v42, v46")
        a.I("v_sub_f32 v44, v44, v46")
        a.I("v_cvt_pk_bf16_f32 v52, v46, v46")
        a.I("v_mul_f32 v40, v40, v40")
        a.I("v_mul_f32 v44, v44, v44")
        a.I("v_lshlrev_b32 v52, 16, v52")
        a.I("v_fmac_f32 v40, v42, v42")
        a.I("v_mov_b32 v53, v52")
        a.I("v_mul_f32 v40, 0x43580000, v40")
        a.I("v_pk_add_f32 v[32:33], v[32:33], v[52:53] neg_lo:[0,1] neg_hi:[0,1]")
        a.I("v_fmac_f32 v40, v47, v44")
        a.I("v_pk_add_f32 v[34:35], v[34:35], v[52:53] neg_lo:[0,1] neg_hi:[0,1]")
        a.I("v_add_f32 v40, v40, v41")
        a.I("v_cvt_pk_bf16_f32 v6, v32, v33")
        a.I("v_mul_f32 v40, 0x3acccccd, v40")
        a.I("v_cvt_pk_bf16_f32 v7, v34, v35")
        a.I("v_cvt_pk_bf16_f32 v48, v40, v40")
        a.I("v_lshlrev_b32 v32, 16, v6")
        a.I("v_lshlrev_b32 v40, 16, v48")
        a.I("v_and_b32 v33, 0xffff0000, v6")
        a.I(f"v_add_f32 v40, 0x{EPS:x}, v40")
        a.I("v_lshlrev_b32 v34, 16, v7")
        a.I("v_cvt_pk_bf16_f32 v48, v40, v40")
        a.I("v_and_b32 v35, 0xffff0000, v7")
        a.I("v_lshlrev_b32 v40, 16, v48")
        a.I("v_sqrt_f32 v48, v40")
        a.I("v_rcp_f32 v49, v48")
        a.I("v_fma_f32 v50, -v48, v48, v40")
        a.I("v_mul_f32 v49, 0.5, v49")
        a.I("v_fma_f32 v48, v50, v49, v48")
        a.I("v_cvt_pk_bf16_f32 v48, v48, v48")
        a.I("v_lshlrev_b32 v40, 16, v48")
        a.I("v_rcp_f32 v42, v40")
        a.I("v_mov_b32 v41, v40")
        a.I("v_mov_b32 v43, v42")
        o = [32, 33, 34, 35]
        for p in (32, 34):
            t = 48 if p == 32 else 50
            a.I(f"v_pk_mul_f32 v[{t}:{t+1}], v[{p}:{p+1}], v[42:43]")
        for p in (32, 34):
            t = 48 if p == 32 else 50
            a.I(f"v_pk_fma_f32 v[{p}:{p+1}], v[{t}:{t+1}], v[40:41], v[{p}:{p+1}] neg_lo:[1,0,0] neg_hi:[1,0,0]")
        for p in (32, 34):
            t = 48 if p == 32 else 50
            a.I(f"v_pk_fma_f32 v[{p}:{p+1}], v[{p}:{p+1}], v[42:43], v[{t}:{t+1}]")
        self.bf16_round(o, 6)
        a.I("v_pk_mul_f32 v[32:33], v[32:33], v[20:21]")
        a.I("v_pk_mul_f32 v[34:35], v[34:35], v[22:23]")
        self.bf16_round(o, 6)
        a.I("v_pk_add_f32 v[32:33], v[32:33], v[24:25]")
        a.I("v_pk_add_f32 v[34:35], v[34:35], v[26:27]")
        a.I("v_cvt_pk_bf16_f32 v32, v32, v33")
        a.I("v_cvt_pk_bf16_f32 v33, v34, v35")
        a.I("s_mov_b64 exec, s[50:51]")
        a.I("ds_write_b64 v31, v[32:33]")
        a.I("s_mov_b64 exec, -1")
        a.I("s_waitcnt lgkmcnt(0)")
        a.I("s_barrier")
        self.stamp(17)
        a.I("s_cmp_ge_u32 s44, 8")
        a.I("s_cbranch_scc1 L_gu_m6")
        self.mfma_with_b(7, 96, 29, 40, 20)
        a.I("s_branch L_gu_mdone")
        a.label("L_gu_m6")
        a.fence(2)
        self.mfma_with_b(6, 96, 29, 40, 20)
        a.label("L_gu_mdone")
        a.fence(8)
        self.write_red(20, 30)
        self.stamp(18)
        a.I("s_cmp_lg_u32 s44, 0")
        a.I("s_cbranch_scc1 L_gu_done")
        a.I("v_lshlrev_b32 v6, 4, v5")
        for kt in range(3):
            a.I(f"ds_read_b128 v[{20+4*kt}:{23+4*kt}], v6 offset:{L_RED + 1024*kt}")
        a.I("s_waitcnt lgkmcnt(0)")
        for k in range(4):
            a.I(f"v_add_f32 v{20+k}, v{20+k}, v{24+k}")
        for k in range(4):
            a.I(f"v_add_f32 v{20+k}, v{20+k}, v{28+k}")
        self.bf16_round([20, 21, 22, 23], 6)
        for k in range(4):
            a.I(f"v_mov_b32 v{24+k}, v{20+k}")
        for k in range(4):
            a.I(f"v_permlane32_swap_b32 v{20+k}, v{24+k}")
        for k in range(4):
            a.I(f"v_mul_f32 v{20+k}, v{20+k}, v{24+k}")
        a.I("v_cvt_pk_bf16_f32 v20, v20, v21")
        a.I("v_cvt_pk_bf16_f32 v21, v22, v23")
        a.I("v_and_b32 v6, 3, v5")
        a.I("v_lshlrev_b32 v6, 6, v6")
        a.I("v_bfe_u32 v7, v5, 2, 3")
        a.I("v_lshl_add_u32 v6, v7, 3, v6")
        a.I("s_mov_b32 exec_lo, -1"); a.I("s_mov_b32 exec_hi, 0")
        a.I(f"ds_write_b64 v6, v[20:21] offset:{L_QV}")
        a.I("s_mov_b64 exec, -1")
        a.I("s_waitcnt lgkmcnt(0)")
        a.label("L_gu_done")
        a.I("s_barrier")
        self.stamp(14)
        a.I("v_and_b32 v6, 3, v5")
        a.I("v_lshlrev_b32 v6, 6, v6")
        a.I("v_lshrrev_b32 v7, 4, v5")
        a.I("v_lshl_add_u32 v6, v7, 4, v6")
        a.I(f"ds_read_b128 v[40:43], v6 offset:{L_QV}")
        a.I("v_and_b32 v6, 3, v5")
        a.I("v_lshlrev_b32 v6, 6, v6")
        a.I("v_lshl_add_u32 v6, v7, 4, v6")
        a.I("s_mul_i32 s45, s44, 12288")
        a.I(f"s_lshl_b32 s46, s{S_NB}, 8")
        a.I("s_add_u32 s45, s45, s46")
        a.I(f"s_add_u32 s45, s45, {WS_PD}")
        a.I("s_waitcnt lgkmcnt(0)")
        for t in range(4):
            a.I(f"v_mfma_f32_16x16x32_bf16 v[{44+4*t}:{47+4*t}], v[{124+4*t}:{127+4*t}], v[40:43], 0")
        a.I(f"s_mov_b32 exec_lo, 0x{MASK_N4_LO:x}")
        a.I(f"s_mov_b32 exec_hi, 0x{MASK_N4_LO:x}")
        for t in range(4):
            if t == 3:
                a.I("s_cmp_ge_u32 s44, 4")
                a.I("s_cbranch_scc1 L_gu_st_done")
            self.canon([44+4*t+k for k in range(4)], 12)
            a.I(f"buffer_store_dwordx4 v[{44+4*t}:{47+4*t}], v6, s[40:43], s45 offen sc1")
            if t < 3:
                a.I(f"s_add_u32 s45, s45, {12*12288}")
        a.label("L_gu_st_done")
        a.I("s_mov_b64 exec, -1")
        self.stamp(11)

    def post_final(self):
        a = self.a
        a.fence(2)
        a.I("v_lshlrev_b32 v10, 4, v5")
        a.I(f"s_mul_i32 s47, s{S_DT}, 12288")
        a.I("s_lshl_b32 s45, s44, 10")
        a.I("s_add_u32 s47, s47, s45")
        a.I(f"s_add_u32 s47, s47, {WS_PD}")
        a.I("v_bfe_u32 v12, v5, 2, 2")
        a.I("v_and_b32 v13, 3, v5")
        a.I("v_mul_u32_u24 v14, 7680, v12")
        a.I("v_lshl_add_u32 v14, v13, 3, v14")
        a.I(f"s_lshl_b32 s45, s{S_DT}, 5")
        a.I(f"s_add_u32 s46, s45, {WS_MOD + 6400}")
        a.I("v_mul_u32_u24 v31, 1280, v12")
        a.I("v_lshl_add_u32 v31, v13, 3, v31")
        a.I(f"s_add_u32 s45, s45, {L_OPART}")
        a.I("v_add_u32 v31, s45, v31")
        a.I("v_and_b32 v30, 15, v5")
        a.I("v_lshlrev_b32 v30, 4, v30")
        a.I("s_lshl_b32 s45, s44, 8")
        a.I(f"s_add_u32 s45, s45, {L_RED}")
        a.I("v_add_u32 v29, s45, v30")
        self.stamp(19)
        if self.cfg.p2:
            self.poll(["buffer_load_dwordx2 v[22:23], v14, s[40:43], s46 offen sc1"], [22, 23], "L_pgb", pre=6)
            def seed2():
                if self.cfg.p2 > 1: a.I(f"s_sleep {self.cfg.p2}")
            self.poll2(["buffer_load_dwordx4 v[40:43], v10, s[40:43], s47 offen sc1"], [40, 41, 42, 43],
                       ["buffer_load_dwordx4 v[160:163], v10, s[40:43], s47 offen sc1"], [160, 161, 162, 163], "L_ph", 6, seed2)
        else:
            self.poll(["buffer_load_dwordx4 v[40:43], v10, s[40:43], s47 offen sc1",
                       "buffer_load_dwordx2 v[22:23], v14, s[40:43], s46 offen sc1"], [40, 41, 42, 43, 22, 23], "L_ph", pre=6)
        self.stamp(20)
        for sw in ("v_permlane32_swap_b32", "v_permlane16_swap_b32"):
            for k in range(4):
                a.I(f"v_mov_b32 v{44+k}, v{40+k}")
            for k in range(4):
                a.I(f"{sw} v{40+k}, v{44+k}")
            for k in range(4):
                a.I(f"v_add_f32 v{40+k}, v{40+k}, v{44+k}")
        a.I("s_mov_b32 exec_lo, 0xffff"); a.I("s_mov_b32 exec_hi, 0")
        a.I("ds_write_b128 v29, v[40:43]")
        a.I("s_mov_b64 exec, -1")
        a.I("s_waitcnt lgkmcnt(0)")
        a.I("s_barrier")
        a.I("s_cmp_lg_u32 s44, 0")
        a.I("s_cbranch_scc1 L_dn_done")
        a.I("v_lshrrev_b32 v6, 4, v5")
        a.I("v_mul_u32_u24 v6, 768, v6")
        a.I("v_add_u32 v6, v6, v30")
        for k in range(3):
            a.I(f"ds_read_b128 v[{40+4*k}:{43+4*k}], v6 offset:{L_RED + 256*k}")
        a.I("ds_read_b64 v[32:33], v31")
        self.srd(36, 26, 5120)
        a.I("s_waitcnt lgkmcnt(0)")
        for k in range(4):
            a.I(f"v_add_f32 v{40+k}, v{40+k}, v{44+k}")
        for k in range(4):
            a.I(f"v_add_f32 v{40+k}, v{40+k}, v{48+k}")
        for sw in ("v_permlane32_swap_b32", "v_permlane16_swap_b32"):
            for k in range(4):
                a.I(f"v_mov_b32 v{44+k}, v{40+k}")
            for k in range(4):
                a.I(f"{sw} v{40+k}, v{44+k}")
            for k in range(4):
                a.I(f"v_add_f32 v{40+k}, v{40+k}, v{44+k}")
        o = [40, 41, 42, 43]
        self.bf16_round(o, 6)
        self.unpack(22, 24, 25)
        self.unpack(23, 26, 27)
        for k in range(4):
            a.I(f"v_mul_f32 v{40+k}, v{40+k}, v{24+k}")
        self.bf16_round(o, 6)
        self.unpack(32, 24, 25)
        self.unpack(33, 26, 27)
        for k in range(4):
            a.I(f"v_add_f32 v{40+k}, v{40+k}, v{24+k}")
        a.I("v_cvt_pk_bf16_f32 v40, v40, v41")
        a.I("v_cvt_pk_bf16_f32 v41, v42, v43")
        a.I("v_mul_u32_u24 v6, 1280, v12")
        a.I("v_lshl_add_u32 v6, v13, 3, v6")
        a.I(f"s_lshl_b32 s45, s{S_DT}, 5")
        a.I("s_mov_b32 exec_lo, 0xffff"); a.I("s_mov_b32 exec_hi, 0")
        a.I(f"buffer_store_dwordx2 v[40:41], v6, s[36:39], s45 offen {self.cfg.outpol}")
        a.I("s_mov_b64 exec, -1")
        a.label("L_dn_done")
        self.stamp(21)

    def tail(self):
        a = self.a
        a.label("L_tail")
        if self.cfg.dbgt:
            a.fence(4)
            a.I("s_cmp_eq_u32 s44, 0")
            a.I("s_cbranch_scc0 L_end")
            self.stamp(13)
            a.I("s_mov_b64 exec, 1")
            a.I("s_not_b32 s98, s98")
            for i, r in enumerate((98, 77, 72, 66, 64 + 4, 64 + 6)):
                a.I(f"v_mov_b32 v6, {16 + 4*i}")
                a.I(f"v_mov_b32 v7, s{r}")
                a.I("global_atomic_umax v6, v7, s[28:29] sc1")
            a.I("s_branch L_end")
        if self.diag and not self.cfg.dbgt:
            a.fence(4)
            self.stamp(13)
            a.I(f"s_lshl_b32 s79, s{S_PRE}, 4")
            a.I(f"s_or_b32 s79, s79, s{S_POST}")
            a.I("s_mul_i32 s45, s2, 12")
            a.I("s_add_u32 s45, s45, s44")
            a.I("s_lshl_b32 s45, s45, 7")
            a.I(f"s_add_u32 s45, s45, {WS_DBG}")
            a.I("s_mov_b64 exec, 1")
            a.I("v_mov_b32 v6, 0")
            regs = [64 + k for k in range(16)] + [93 + k for k in range(8)]
            for q in range(6):
                for k in range(4):
                    a.I(f"v_mov_b32 v{8+k}, s{regs[4*q+k]}")
                a.I(f"buffer_store_dwordx4 v[8:11], v6, s[40:43], s45 offen offset:{16*q}")
                a.I("s_nop 1")
        a.label("L_end")
        a.I("s_endpgm")
        a.raw(f""".section .rodata,"a"
.p2align 6
.amdhsa_kernel {self.name}
  .amdhsa_next_free_vgpr 168
  .amdhsa_next_free_sgpr 102
  .amdhsa_accum_offset 168
  .amdhsa_group_segment_fixed_size 0
  .amdhsa_float_denorm_mode_32 3
  .amdhsa_kernarg_size 112
  .amdhsa_user_sgpr_count 2
  .amdhsa_user_sgpr_kernarg_segment_ptr 1
  .amdhsa_system_sgpr_workgroup_id_x 1
.end_amdhsa_kernel""")

    def build(self):
        self.entry()
        self.helper_front()
        self.stream()
        self.helper()
        self.a.I("s_branch L_post")
        self.stream_bulk()
        self.post()
        self.tail()
        txt = self.a.text()
        if self.cfg.hop2:
            assert self.nseg <= 7, self.nseg
            w = ["  s_mov_b64 exec, 0"]
            for k in range(self.nseg):
                w += [f"  s_cmp_eq_u32 s44, {4 + k}", f"  s_cbranch_scc1 L_hopP{k}_0"]
            w += ["L_warm2_ret:", "  s_mov_b64 exec, -1"]
            txt = txt.replace("@@WARM2@@", "\n".join(w))
        return txt


def make(path, diag=False, name=KNAME, **kw):
    cfg = StreamCfg()
    for k, v in kw.items():
        setattr(cfg, k, v)
    g = Gen(cfg, diag=diag, name=name)
    txt = g.build()
    open(path, 'w').write(txt)
    return g


if __name__ == '__main__':
    out = sys.argv[1]
    kw = {}
    diag = False
    name = KNAME
    for kv in sys.argv[2:]:
        k, v = kv.split('=')
        if k == 'diag': diag = bool(int(v))
        elif k == 'name': name = v
        else: kw[k] = v.replace('_', ' ').replace('none', '') if k in ('nt', 'pfpol', 'ntV', 'ntW', 'outpol', 'ntG') else int(v)
    g = make(out, diag=diag, name=name, **kw)
    print(out, 'nops', g.a.nops)
```
